```python
import torch

def _softmax(x, axis=-1):
    return torch.softmax(x, dim=axis)
def _gelu(x):
    return torch.nn.functional.gelu(x, approximate="tanh")
def _silu(x):
    return torch.nn.functional.silu(x)
def _sigmoid(x):
    return torch.sigmoid(x)
def _layernorm(x, axis=-1, eps=1e-5):
    m = x.mean(dim=axis, keepdim=True)
    v = x.var(dim=axis, keepdim=True, unbiased=False)
    return (x - m) / torch.sqrt(v + eps)
def _scatter_add(tgt, idx, src, axis=0):
    return tgt.clone().index_add_(axis, idx, src)
def _segment_sum(src, seg, n):
    out = torch.zeros((n,) + src.shape[1:], dtype=src.dtype)
    return out.index_add_(0, seg, src)
def _pad(x, pw):
    flat = tuple(v for pair in reversed(pw) for v in pair)
    return torch.nn.functional.pad(x, flat)

kernel_name = 'standalone__edge_featured_mpnn_gatedgcn__graph'

def setup_inputs():

    _w = (lambda a: (lambda t: t.to(torch.bfloat16) if t.is_floating_point() else t)(torch.as_tensor(a)))
    N, deg, D, De = 25000, 32, 64, max(4, 1)
    E = N * deg
    return {
        "x": _w((lambda *s: torch.randn(*s, dtype=torch.bfloat16) * 0.8)(N, D)),
        "e_attr": _w((lambda *s: torch.randn(*s, dtype=torch.bfloat16) * 0.8)(E, De)),
        "src": _w((lambda lo, hi, *s: torch.randint(lo, hi, s))(0, N, E).to(torch.int64)),
        "dst": _w((lambda lo, hi, *s: torch.randint(lo, hi, s))(0, N, E).to(torch.int64)),
        "w_a": _w((lambda *s: torch.randn(*s, dtype=torch.bfloat16) * 0.8)(D, D)),
        "w_b": _w((lambda *s: torch.randn(*s, dtype=torch.bfloat16) * 0.8)(D, D)),
        "w_c": _w((lambda *s: torch.randn(*s, dtype=torch.bfloat16) * 0.8)(De, D)),
        "w_u": _w((lambda *s: torch.randn(*s, dtype=torch.bfloat16) * 0.05)(D, D)),
        "w_v": _w((lambda *s: torch.randn(*s, dtype=torch.bfloat16) * 0.05)(D, D)),
    }

def reference(x, e_attr, src, dst, w_a, w_b, w_c, w_u, w_v):
    N, D = x.shape
    hv = x @ w_v
    g = x[dst] @ w_a + x[src] @ w_b + e_attr @ w_c
    eta = _sigmoid(g)
    denom = _segment_sum(eta, dst, N) + 1e-6
    eta_n = eta / denom[dst]
    agg = _segment_sum(eta_n * hv[src], dst, N)
    z = x @ w_u + agg
    relu_z = torch.where(z > 0, z, 0 * z)
    return x + relu_z
```

```python
import sys, re

NAME = "standalone__edge_featured_mpnn_gatedgcn__graph"
N_NODES = 25000
CH = 3200
NC = 250
TMUL = 5368
WS_REC = 0
WS_OFF = 0xA00000
WS_WFR = 0xC00000
NEGLOG2E = 0xBFB8AA3B

opts = dict(a.split('=') for a in sys.argv[1:] if '=' in a)
OUT = opts.get('out', 'cdna_kernels/%s.s' % NAME)

L = []
def e(s): L.append("    " + s)
def lab(s): L.append(s + ":")
def cm(s): L.append("    ; " + s)
def vr(a, n=1): return "v%d" % a if n == 1 else "v[%d:%d]" % (a, a + n - 1)
def sr(a, n=1): return "s%d" % a if n == 1 else "s[%d:%d]" % (a, a + n - 1)

def scan64(op, v):
    for m in ["row_shr:1 row_mask:0xf bank_mask:0xf", "row_shr:2 row_mask:0xf bank_mask:0xf",
              "row_shr:4 row_mask:0xf bank_mask:0xf", "row_shr:8 row_mask:0xf bank_mask:0xf",
              "row_bcast:15 row_mask:0xa bank_mask:0xf", "row_bcast:31 row_mask:0xc bank_mask:0xf"]:
        e("s_nop 1")
        e("%s_dpp %s, %s, %s %s" % (op, vr(v), vr(v), vr(v), m))

def srd(d, base, nbytes, add=None, stride=0):
    if add is None:
        e("s_mov_b32 %s, %s" % (sr(d), sr(base)))
        e("s_and_b32 %s, %s, 0xffff" % (sr(d + 1), sr(base + 1)))
    else:
        e("s_add_u32 %s, %s, %s" % (sr(d), sr(base), add))
        e("s_addc_u32 %s, %s, 0" % (sr(d + 1), sr(base + 1)))
        e("s_and_b32 %s, %s, 0xffff" % (sr(d + 1), sr(d + 1)))
    if stride:
        e("s_or_b32 %s, %s, 0x%x" % (sr(d + 1), sr(d + 1), stride << 16))
    e("s_mov_b32 %s, 0x%x" % (sr(d + 2), nbytes))
    e("s_mov_b32 %s, 0x20000" % sr(d + 3))

def k1():
    HIST, WTOT, RB = 0, 8192, 8448
    L.append(".p2align 8"); L.append(".type k1_sort_kernel,@function"); lab("k1_sort_kernel")
    e("s_cmp_gt_u32 s2, %d" % NC)
    e("s_cbranch_scc1 K1_END")
    e("s_load_dwordx4 s[4:7], s[0:1], 8")
    e("s_load_dwordx2 s[8:9], s[0:1], 24")
    e("s_load_dwordx2 s[10:11], s[0:1], 88")
    e("s_cmp_eq_u32 s2, %d" % NC)
    e("s_cbranch_scc1 K1_AUX")
    e("v_lshlrev_b32 v1, 4, v0")
    e("v_lshlrev_b32 v2, 5, v0")
    e("v_lshlrev_b32 v3, 3, v0")
    e("v_mov_b32 v4, 0"); e("v_mov_b32 v5, 0")
    e("s_mul_i32 s12, s2, %d" % (CH * 4))
    e("s_mul_i32 s13, s2, %d" % (CH * 8))
    e("s_mul_i32 s14, s2, %d" % (CH * 12))
    e("s_lshl_b32 s15, s2, 13")
    e("s_add_u32 s15, s15, 0x%x" % WS_OFF)
    e("ds_write_b64 v3, v[4:5] offset:%d" % HIST)
    e("s_waitcnt lgkmcnt(0)")
    srd(16, 8, CH * 4, "s12")
    e("buffer_load_dwordx4 v[8:11], v1, s[16:19], 0 offen")
    srd(20, 6, CH * 4, "s12")
    e("buffer_load_dwordx4 v[12:15], v1, s[20:23], 0 offen")
    srd(24, 4, CH * 8, "s13")
    e("buffer_load_dwordx4 v[16:19], v2, s[24:27], 0 offen")
    e("buffer_load_dwordx4 v[24:27], v2, s[24:27], 0 offen offset:16")
    srd(28, 10, CH * 12, "s14")
    srd(32, 10, 8192, "s15")
    e("v_mov_b32 v6, 1")
    e("v_cmp_gt_u32 vcc, %d, v0" % (CH // 4))
    e("s_mov_b64 s[36:37], vcc")
    e("s_barrier")
    e("s_mov_b64 exec, s[36:37]")
    e("s_cbranch_execz K1_A")
    e("s_waitcnt vmcnt(3)")
    for i in range(4):
        e("v_mul_u32_u24 v%d, %d, v%d" % (32 + i, TMUL, 8 + i))
    for i in range(4):
        e("v_lshrrev_b32 v%d, 14, v%d" % (32 + i, 32 + i))
        e("v_and_b32 v%d, 0x1ffc, v%d" % (32 + i, 32 + i))
        e("ds_add_rtn_u32 v%d, v%d, v6 offset:%d" % (36 + i, 32 + i, HIST))
    for i in range(4):
        e("v_and_b32 v%d, 15, v%d" % (8 + i, 8 + i))
        e("v_add_u32 v%d, 1, v%d" % (8 + i, 8 + i))
    lab("K1_A")
    e("s_mov_b64 exec, -1")
    e("s_waitcnt lgkmcnt(0)")
    e("s_barrier")
    e("ds_read_b64 v[4:5], v3 offset:%d" % HIST)
    e("v_lshrrev_b32 v7, 6, v0")
    e("v_lshlrev_b32 v40, 2, v7")
    e("v_readfirstlane_b32 s38, v7")
    e("v_and_b32 v41, 15, v0")
    e("v_lshlrev_b32 v41, 2, v41")
    e("s_waitcnt lgkmcnt(0)")
    e("v_add_u32 v42, v4, v5")
    e("v_mov_b32 v43, v42")
    scan64("v_add_u32", 43)
    e("s_mov_b32 exec_lo, 0"); e("s_mov_b32 exec_hi, 0x80000000")
    e("ds_write_b32 v40, v43 offset:%d" % WTOT)
    e("s_mov_b64 exec, -1")
    e("v_sub_u32 v43, v43, v42")
    e("s_waitcnt lgkmcnt(0)")
    e("s_barrier")
    e("ds_read_b32 v44, v41 offset:%d" % WTOT)
    e("s_waitcnt lgkmcnt(0)")
    e("v_mov_b32 v45, v44")
    for sh in (1, 2, 4, 8):
        e("s_nop 1")
        e("v_add_u32_dpp v45, v45, v45 row_shr:%d row_mask:0xf bank_mask:0xf" % sh)
    e("v_sub_u32 v45, v45, v44")
    e("s_nop 1")
    e("v_readlane_b32 s39, v45, s38")
    e("s_nop 1")
    e("v_add_u32 v43, s39, v43")
    e("v_add_u32 v44, v43, v4")
    e("v_lshl_or_b32 v46, v4, 16, v43")
    e("v_lshl_or_b32 v47, v5, 16, v44")
    e("v_mul_u32_u24 v48, 12, v43")
    e("v_mul_u32_u24 v49, 12, v44")
    e("ds_write_b64 v3, v[48:49] offset:%d" % HIST)
    e("buffer_store_dwordx2 v[46:47], v3, s[32:35], 0 offen")
    e("s_waitcnt lgkmcnt(0)")
    e("s_barrier")
    e("s_mov_b64 exec, s[36:37]")
    e("s_cbranch_execz K1_B")
    for i in range(4):
        e("ds_read_b32 v%d, v%d offset:%d" % (32 + i, 32 + i, HIST))
    e("s_waitcnt vmcnt(1)")
    e("v_mov_b32 v20, v18"); e("v_mov_b32 v21, v19")
    e("v_mov_b32 v28, v26"); e("v_mov_b32 v29, v27")
    for i in range(4):
        e("v_lshl_or_b32 v%d, v%d, 21, v%d" % (18 + 4 * i, 8 + i, 12 + i))
    for i in range(4):
        e("s_waitcnt lgkmcnt(%d)" % 3)
        e("v_mad_u32_u24 v%d, v%d, 12, v%d" % (32 + i, 36 + i, 32 + i))
        e("ds_write_b96 v%d, v[%d:%d] offset:%d" % (32 + i, 16 + 4 * i, 18 + 4 * i, RB))
    lab("K1_B")
    e("s_mov_b64 exec, -1")
    e("s_waitcnt vmcnt(1) lgkmcnt(0)")
    e("s_barrier")
    e("ds_read_b128 v[8:11], v1 offset:%d" % RB)
    e("ds_read_b128 v[12:15], v1 offset:%d" % (RB + 16384))
    e("s_mov_b32 s40, 16384"); e("v_add_u32 v2, 32768, v1")
    e("s_cmp_gt_u32 s38, 5")
    e("s_cbranch_scc1 K1_C")
    e("ds_read_b128 v[16:19], v1 offset:%d" % (RB + 32768))
    e("s_waitcnt lgkmcnt(0)")
    e("buffer_store_dwordx4 v[16:19], v2, s[28:31], 0 offen")
    lab("K1_C")
    e("s_waitcnt lgkmcnt(0)")
    e("buffer_store_dwordx4 v[8:11], v1, s[28:31], 0 offen")
    e("buffer_store_dwordx4 v[12:15], v1, s[28:31], s40 offen")
    lab("K1_END")
    e("s_endpgm")
    lab("K1_AUX")
    e("s_load_dwordx4 s[12:15], s[0:1], 32")
    e("s_load_dwordx2 s[16:17], s[0:1], 48")
    e("s_load_dwordx4 s[20:23], s[0:1], 56")
    e("v_lshrrev_b32 v1, 6, v0")
    e("v_and_b32 v2, 63, v0")
    e("v_readfirstlane_b32 s38, v1")
    e("s_waitcnt lgkmcnt(0)")
    e("s_lshr_b32 s39, s38, 2")
    e("s_and_b32 s40, s38, 3")
    e("s_cmp_eq_u32 s39, 1"); e("s_cselect_b32 s12, s20, s12"); e("s_cselect_b32 s13, s21, s13")
    e("s_cmp_eq_u32 s39, 3"); e("s_cselect_b32 s12, s22, s12"); e("s_cselect_b32 s13, s23, s13")
    e("s_cmp_eq_u32 s39, 2"); e("s_cselect_b32 s12, s14, s12"); e("s_cselect_b32 s13, s15, s13")
    e("s_mov_b32 s42, 0x%x" % NEGLOG2E)
    e("s_cselect_b32 s41, s42, 1.0")
    srd(24, 12, 8192)
    srd(28, 16, 512)
    srd(32, 10, 32768 + 512, "0x%x" % WS_WFR)
    srd(44, 10, 512 * 12, "0x%x" % (WS_REC + 255 * CH * 12))
    e("v_and_b32 v3, 31, v2")
    e("v_lshlrev_b32 v3, 2, v3")
    e("v_lshrrev_b32 v4, 5, v2")
    e("v_lshl_add_u32 v5, v4, 10, v3")
    e("s_lshl_b32 s43, s40, 11")
    for i in range(8):
        e("buffer_load_dword v%d, v5, s[24:27], s43 offen offset:%d" % (8 + i, i * 128))
    for i in range(4):
        e("buffer_load_dword v%d, v3, s[28:31], 0 offen offset:%d" % (40 + i, i * 128))
    e("v_mul_u32_u24 v6, 12, v0")
    e("v_mov_b32 v50, 0"); e("v_mov_b32 v51, 0"); e("v_mov_b32 v52, 0xffff")
    e("buffer_store_dwordx3 v[50:52], v6, s[44:47], 0 offen")
    e("s_waitcnt vmcnt(5)")
    for i in range(8):
        e("v_lshlrev_b32 v%d, 16, v%d" % (16 + i, 8 + i))
        e("v_and_b32 v%d, 0xffff0000, v%d" % (24 + i, 8 + i))
    for i in range(16):
        e("v_mul_f32 v%d, s41, v%d" % (16 + i, 16 + i))
    for i in range(8):
        e("v_cvt_pk_bf16_f32 v%d, v%d, v%d" % (32 + i, 16 + 2 * i, 17 + 2 * i))
    e("v_lshlrev_b32 v7, 4, v2")
    e("s_lshl_b32 s43, s39, 13")
    e("s_lshl_b32 s48, s40, 10")
    e("s_add_u32 s43, s43, s48")
    e("s_add_u32 s48, s43, 4096")
    e("buffer_store_dwordx4 v[32:35], v7, s[32:35], s43 offen")
    e("buffer_store_dwordx4 v[36:39], v7, s[32:35], s48 offen")
    e("s_cmp_lg_u32 s38, 0")
    e("s_cbranch_scc1 K1_END2")
    e("s_waitcnt vmcnt(3)")
    for i in range(4):
        e("v_lshlrev_b32 v%d, 16, v%d" % (16 + i, 40 + i))
        e("v_and_b32 v%d, 0xffff0000, v%d" % (20 + i, 40 + i))
    for i in range(8):
        e("v_mul_f32 v%d, s42, v%d" % (16 + i, 16 + i))
    for i in range(4):
        e("v_cvt_pk_bf16_f32 v%d, v%d, v%d" % (44 + i, 16 + 2 * i, 17 + 2 * i))
    e("v_add_u32 v7, 32768, v7")
    e("buffer_store_dwordx4 v[44:47], v7, s[32:35], 0 offen")
    lab("K1_END2")
    e("s_endpgm")
    return RB + CH * 12

TT, TS = 0, 576
RECB = 2048
XBB = RECB + 65536
K2_LDS = XBB + 65536

class R: pass
def alloc():
    r = R(); p = 0
    def a(n, al=1):
        nonlocal p
        p = (p + al - 1) // al * al
        b = p; p += n
        return b
    r.LANE = a(1); r.PS = a(1); r.PT = a(1); r.XA0 = a(1); r.XA1 = a(1); r.SC = a(1); r.SI = a(1); r.TI = a(1)
    r.TO = a(1); r.TMP = a(3)
    r.SO = a(4, 4); r.XI = a(8, 4); r.T = a(4, 4); r.S = a(8, 4); r.X = a(16, 4)
    r.U = a(8, 4); r.XR = a(8, 4)
    r.ACC = [a(16, 4), a(16, 4)]
    r.G = [a(16, 4), None]; r.V = [a(16, 4), None]
    r.G[1] = a(16, 4); r.V[1] = a(16, 4)
    r.WB = a(32, 4); r.WV = a(32, 4); r.AT = a(16, 4)
    r.n = p
    return r

def mfma(d, a, b, c):
    return "v_mfma_f32_32x32x16_bf16 %s, %s, %s, %s" % (vr(d, 16), vr(a, 4), vr(b, 4), "0" if c is None else vr(c, 16))
def smf(d, a, b, idx):
    return "v_smfmac_f32_32x32x32_bf16 %s, %s, %s, %s" % (vr(d, 16), vr(a, 4), vr(b, 8), vr(idx))

SOFF = [0, 64, 256, 320]

def k2():
    r = alloc()
    assert r.n <= 256, r.n
    sW, sT, sStart, sEnd, sTot, sW0, sNG, sXB, sREC, sFirst = 40, 41, 42, 43, 44, 45, 46, 47, 48, 49
    sLO, sHI = 50, 52
    SX, SXI, SOFS, SRC, SWF, SOUT = 12, 16, 20, 24, 28, 32
    L.append(".p2align 8"); L.append(".type k2_main_kernel,@function"); lab("k2_main_kernel")
    e("s_cmp_gt_u32 s2, 255")
    e("s_cbranch_scc1 K2_END")
    e("s_load_dwordx2 s[4:5], s[0:1], 0")
    e("s_load_dwordx2 s[6:7], s[0:1], 72")
    e("s_load_dwordx2 s[8:9], s[0:1], 88")
    t0, t1, t2, t3, t4, t5, t6, t7 = [r.G[0] + i for i in range(8)]
    TID = r.V[1]
    e("v_mov_b32 %s, v0" % vr(TID))
    e("v_lshrrev_b32 %s, 6, v0" % vr(t0))
    e("v_and_b32 %s, 63, v0" % vr(r.LANE))
    e("v_readfirstlane_b32 %s, %s" % (sr(sW), vr(t0)))
    e("s_and_b32 s10, s2, 7"); e("s_lshl_b32 s10, s10, 5"); e("s_lshr_b32 s11, s2, 3"); e("s_add_u32 s10, s10, s11")
    e("s_lshl_b32 %s, s10, 3" % sr(sT)); e("s_add_u32 %s, %s, %s" % (sr(sT), sr(sT), sr(sW)))
    e("s_lshl_b32 %s, %s, 13" % (sr(sREC), sr(sW)))
    e("s_add_u32 %s, %s, %d" % (sr(sXB), sr(sREC), XBB))
    e("s_add_u32 %s, %s, %d" % (sr(sREC), sr(sREC), RECB))
    e("v_lshrrev_b32 %s, 1, %s" % (vr(t0), vr(r.LANE)))
    e("v_lshlrev_b32 %s, 15, %s" % (vr(t0), vr(t0)))
    e("v_and_b32 %s, 1, %s" % (vr(t1), vr(r.LANE)))
    e("v_lshl_or_b32 %s, %s, 4, %s" % (vr(t0), vr(t1), vr(t0)))
    e("s_lshr_b32 s11, %s, 2" % sr(sW)); e("s_lshl_b32 s11, s11, 20")
    e("s_and_b32 s36, %s, 3" % sr(sW)); e("s_lshl_b32 s36, s36, 13"); e("s_add_u32 s11, s11, s36")
    e("s_lshl_b32 s36, s10, 5"); e("s_add_u32 s11, s11, s36")
    e("v_add_u32 %s, s11, %s" % (vr(t0), vr(t0)))
    e("v_lshlrev_b32 %s, 4, %s" % (vr(t1), vr(r.LANE)))
    e("s_add_u32 m0, %s, 2048" % sr(sREC))
    e("s_waitcnt lgkmcnt(0)")
    srd(SOFS, 8, NC * 8192, "0x%x" % WS_OFF)
    e("buffer_load_dwordx4 %s, %s, 0 offen lds" % (vr(t0), sr(SOFS, 4)))
    srd(SWF, 8, 32768 + 512, "0x%x" % WS_WFR)
    e("s_add_u32 m0, %s, 3072" % sr(sREC))
    e("s_lshl_b32 s36, %s, 12" % sr(sW))
    for k in range(4):
        e("buffer_load_dwordx4 %s, %s, s36 offen offset:%d lds" % (vr(t1), sr(SWF, 4), k * 1024))
    e("v_add_u32 %s, 32768, %s" % (vr(t1), vr(t1)))
    WC = r.SO
    e("buffer_load_dwordx4 %s, %s, %s, 0 offen" % (vr(WC, 4), vr(t1), sr(SWF, 4)))
    srd(SX, 4, N_NODES * 128)
    srd(SXI, 4, N_NODES, stride=128)
    srd(SRC, 8, 256 * CH, stride=12)
    srd(SOUT, 6, N_NODES * 128)
    MAG = -(-(1 << 41) // 671)
    assert MAG < (1 << 32)
    for t in range(2049):
        n = t * 8192 + 670
        assert (n * MAG) >> 41 == n // 671
    e("s_mov_b32 s37, 0x%x" % MAG)
    e("s_lshl_b32 s36, %s, 13" % sr(sT)); e("s_add_u32 s36, s36, 670")
    e("s_mul_hi_u32 %s, s36, s37" % sr(sStart)); e("s_lshr_b32 %s, %s, 9" % (sr(sStart), sr(sStart)))
    e("s_add_u32 s36, s36, 8192")
    e("s_mul_hi_u32 %s, s36, s37" % sr(sEnd)); e("s_lshr_b32 %s, %s, 9" % (sr(sEnd), sr(sEnd)))
    e("s_mov_b32 %s, -1" % sr(sLO)); e("s_mov_b32 %s, 0" % sr(sLO + 1))
    e("s_mov_b32 %s, 0" % sr(sHI)); e("s_mov_b32 %s, -1" % sr(sHI + 1))
    e("v_subrev_u32 %s, %s, %s" % (vr(t2), sr(sStart), vr(r.LANE)))
    e("v_and_b32 %s, 15, %s" % (vr(t2), vr(t2)))
    e("v_add_u32 %s, %s, %s" % (vr(t2), sr(sStart), vr(t2)))
    e("v_lshrrev_b32 %s, 5, %s" % (vr(t3), vr(r.LANE)))
    e("v_lshlrev_b32 %s, 4, %s" % (vr(t4), vr(t3)))
    e("v_lshl_add_u32 %s, %s, 7, %s" % (vr(t2), vr(t2), vr(t4)))
    for i in range(16):
        e("v_mov_b32 %s, 0" % vr(r.X + i))
    e("s_mov_b64 exec, 0xffff"); e("s_mov_b32 exec_hi, 0xffff")
    for s in range(4):
        e("buffer_load_dwordx4 %s, %s, %s, 0 offen offset:%d" % (vr(r.X + 4 * s, 4), vr(t2), sr(SX, 4), s * 32))
    e("s_mov_b64 exec, -1")
    def rowaddr(q, dst, base4h, j4):
        e("v_add_u32 %s, %d, %s" % (vr(dst), 8 * (q >> 2) + (q & 3), vr(base4h)))
        e("v_and_b32 %s, 15, %s" % (vr(dst), vr(dst)))
        e("v_add_u32 %s, %s, %s" % (vr(dst), sr(sStart), vr(dst)))
    e("v_lshlrev_b32 %s, 2, %s" % (vr(t4), vr(t3)))
    e("v_subrev_u32 %s, %s, %s" % (vr(t4), sr(sStart), vr(t4)))
    e("v_and_b32 %s, 31, %s" % (vr(t5), vr(r.LANE)))
    e("v_lshlrev_b32 %s, 2, %s" % (vr(t6), vr(t5)))
    for q in range(8):
        rowaddr(q, t7, t4, t6)
        e("v_lshl_add_u32 %s, %s, 7, %s" % (vr(t7), vr(t7), vr(t6)))
        e("buffer_load_dword %s, %s, %s, 0 offen" % (vr(r.XR + q), vr(t7), sr(SX, 4)))
    e("v_cmp_gt_u32 vcc, 136, %s" % vr(TID))
    e("s_and_saveexec_b64 s[36:37], vcc")
    e("s_cbranch_execz K2_TABDONE")
    a0, a1, a2, a3, a4, a5 = [r.V[0] + i for i in range(6)]
    e("v_lshrrev_b32 %s, 3, %s" % (vr(a0), vr(TID)))
    e("v_add_u32 %s, -1, %s" % (vr(a0), vr(a0)))
    e("v_and_b32 %s, 7, %s" % (vr(a1), vr(TID)))
    e("v_and_b32 %s, 1, %s" % (vr(a2), vr(a0)))
    e("v_lshlrev_b32 %s, 4, %s" % (vr(a2), vr(a2)))
    e("v_mov_b32 %s, 0x3f80" % vr(a3))
    e("v_lshlrev_b32 %s, %s, %s" % (vr(a2), vr(a2), vr(a3)))
    e("v_ashrrev_i32 %s, 1, %s" % (vr(a3), vr(a0)))
    e("v_cmp_eq_u32 vcc, %s, %s" % (vr(a3), vr(a1)))
    e("v_lshlrev_b32 %s, 2, %s" % (vr(a5), vr(TID)))
    e("v_bfe_u32 %s, %s, 3, 1" % (vr(a4), vr(a0)))
    e("v_cndmask_b32 %s, 0, %s, vcc" % (vr(a3), vr(a2)))
    e("ds_write_b32 %s, %s offset:%d" % (vr(a5), vr(a3), TS))
    e("v_lshrrev_b32 %s, 1, %s" % (vr(a3), vr(a0)))
    e("v_and_or_b32 %s, %s, 2, %s" % (vr(a4), vr(a3), vr(a4)))
    e("v_and_b32 %s, -16, %s" % (vr(a3), vr(a0)))
    e("v_or_b32 %s, %s, %s" % (vr(a4), vr(a3), vr(a4)))
    e("v_cmp_eq_u32 vcc, %s, %s" % (vr(a4), vr(a1)))
    e("v_bfe_u32 %s, %s, 1, 1" % (vr(a4), vr(a0)))
    e("v_mul_u32_u24 %s, 0xaaaa, %s" % (vr(a4), vr(a4)))
    e("v_cndmask_b32 %s, 0, %s, vcc" % (vr(a3), vr(a2)))
    e("v_or_b32 %s, 0x4444, %s" % (vr(a4), vr(a4)))
    e("v_cmp_eq_u32 vcc, 4, %s" % vr(a1))
    e("s_nop 1")
    e("v_cndmask_b32 %s, %s, %s, vcc" % (vr(a3), vr(a3), vr(a4)))
    e("ds_write_b32 %s, %s offset:%d" % (vr(a5), vr(a3), TT))
    lab("K2_TABDONE")
    e("s_mov_b64 exec, -1")
    lane = r.LANE
    c0, c1, c2 = r.TMP, r.TMP + 1, r.TMP + 2
    e("v_and_b32 %s, 3, %s" % (vr(c0), vr(lane)))
    e("v_lshlrev_b32 %s, 3, %s" % (vr(r.SC), vr(c0)))
    e("v_add_u32 %s, %d, %s" % (vr(r.SC), TS, vr(r.SC)))
    e("v_bfe_u32 %s, %s, 4, 1" % (vr(c1), vr(lane)))
    e("v_mul_u32_u24 %s, 0x5555, %s" % (vr(r.SI), vr(c1)))
    e("v_or_b32 %s, 0x8888, %s" % (vr(r.SI), vr(r.SI)))
    e("v_xor_b32 %s, %s, %s" % (vr(c0), vr(c0), vr(t3)))
    e("v_lshl_or_b32 %s, %s, 2, %s" % (vr(c0), vr(c1), vr(c0)))
    e("v_lshlrev_b32 %s, 4, %s" % (vr(r.XI + 1), vr(c0)))
    e("v_mov_b32 %s, %s" % (vr(r.XI + 3), vr(r.XI + 1)))
    e("v_xor_b32 %s, 32, %s" % (vr(r.XI + 5), vr(r.XI + 1)))
    e("v_mov_b32 %s, %s" % (vr(r.XI + 7), vr(r.XI + 5)))
    e("v_bfe_u32 %s, %s, 3, 2" % (vr(c0), vr(lane)))
    e("v_xor_b32 %s, %s, %s" % (vr(c0), vr(c0), vr(t3)))
    e("v_lshlrev_b32 %s, 4, %s" % (vr(r.XA0), vr(c0)))
    e("v_and_b32 %s, 3, %s" % (vr(c0), vr(lane)))
    e("v_lshl_or_b32 %s, %s, 6, %s" % (vr(r.XA0), vr(c0), vr(r.XA0)))
    e("v_bfe_u32 %s, %s, 3, 1" % (vr(c0), vr(lane)))
    e("v_lshl_or_b32 %s, %s, 9, %s" % (vr(r.XA0), vr(c0), vr(r.XA0)))
    e("v_bfe_u32 %s, %s, 2, 1" % (vr(c0), vr(lane)))
    e("v_lshl_or_b32 %s, %s, 10, %s" % (vr(r.XA0), vr(c0), vr(r.XA0)))
    e("v_lshl_or_b32 %s, %s, 11, %s" % (vr(r.XA0), vr(c1), vr(r.XA0)))
    e("v_xor_b32 %s, 32, %s" % (vr(r.XA1), vr(r.XA0)))
    e("v_add_u32 %s, %s, %s" % (vr(r.XA0), sr(sXB), vr(r.XA0)))
    e("v_add_u32 %s, %s, %s" % (vr(r.XA1), sr(sXB), vr(r.XA1)))
    e("v_mov_b32 %s, 0x4444" % vr(r.TI))
    for i in range(4): e("v_mov_b32 %s, 0" % vr(r.T + i))
    EN = r.G[1]
    e("v_lshlrev_b32 %s, 5, %s" % (vr(c0), vr(t5)))
    e("v_lshl_or_b32 %s, %s, 15, %s" % (vr(c0), vr(t3), vr(c0)))
    e("s_lshl_b32 s36, %s, 2" % sr(sW)); e("s_add_u32 s36, s36, %d" % (RECB + 2048))
    e("v_add_u32 %s, s36, %s" % (vr(c0), vr(c0)))
    e("s_mov_b32 %s, 0" % sr(sW0))
    e("s_mov_b32 %s, 1" % sr(sFirst))
    e("s_waitcnt vmcnt(17) lgkmcnt(0)")
    e("s_barrier")
    for i in range(4):
        e("ds_read_b32 %s, %s offset:%d" % (vr(EN + i), vr(c0), i * 8192))
    lab("K2_EXPAND")
    Z = r.G[1] + 4
    LA = r.G[1] + 8
    P = r.V[1]
    D = r.V[1] + 4
    TOT = r.V[1] + 8; INC = r.V[1] + 9; CB = r.V[1] + 10; PREV = r.V[1] + 11; JB = r.V[1] + 12; LB = r.V[1] + 13
    M = r.S
    for i in range(4): e("v_mov_b32 %s, 0" % vr(Z + i))
    e("v_lshl_add_u32 %s, %s, 5, %s" % (vr(LA), vr(lane), sr(sXB)))
    e("ds_write_b128 %s, %s" % (vr(LA), vr(Z, 4)))
    e("ds_write_b128 %s, %s offset:16" % (vr(LA), vr(Z, 4)))
    e("v_mul_u32_u24 %s, %d, %s" % (vr(CB), 4 * CH, vr(lane)))
    e("v_lshl_add_u32 %s, %s, 3, %s" % (vr(JB), vr(lane), sr(sW0)))
    e("v_lshl_add_u32 %s, %s, 2, %s" % (vr(LB), vr(lane), sr(sXB)))
    e("s_waitcnt lgkmcnt(2)")
    e("v_lshrrev_b32 %s, 16, %s" % (vr(P + 1), vr(EN)))
    sd = "dst_sel:DWORD dst_unused:UNUSED_PAD src0_sel:WORD_%d src1_sel:DWORD"
    e("v_add_u32_sdwa %s, %s, %s %s" % (vr(P + 2), vr(EN + 1), vr(P + 1), sd % 1))
    e("v_add_u32_sdwa %s, %s, %s %s" % (vr(P + 3), vr(EN + 2), vr(P + 2), sd % 1))
    e("v_add_u32_sdwa %s, %s, %s %s" % (vr(TOT), vr(EN + 3), vr(P + 3), sd % 1))
    e("v_mov_b32 %s, %s" % (vr(INC), vr(TOT)))
    for i in range(4):
        e("v_add_u32_sdwa %s, %s, %s %s" % (vr(D + i), vr(EN + i), vr(CB), sd % 0))
    for i in range(1, 4):
        e("v_add_u32 %s, %d, %s" % (vr(D + i), i * CH, vr(D + i)))
    scan64("v_add_u32", INC)
    e("v_sub_u32 %s, %s, %s" % (vr(P), vr(INC), vr(TOT)))
    e("v_readlane_b32 %s, %s, 63" % (sr(sTot), vr(INC)))
    for i in range(1, 4):
        e("v_add_u32 %s, %s, %s" % (vr(P + i), vr(P), vr(P + i)))
    e("v_mov_b32 %s, 512" % vr(TOT))
    for i in range(4):
        e("v_sub_u32 %s, %s, %s" % (vr(D + i), vr(D + i), vr(P + i)))
        e("v_subrev_u32 %s, %s, %s" % (vr(P + i), sr(sW0), vr(P + i)))
        e("v_med3_i32 %s, %s, 0, %s" % (vr(P + i), vr(P + i), vr(TOT)))
        e("v_lshl_add_u32 %s, %s, 2, %s" % (vr(P + i), vr(P + i), sr(sXB)))
        e("ds_max_u32 %s, %s" % (vr(P + i), vr(D + i)))
    e("ds_read_b128 %s, %s" % (vr(M, 4), vr(LA)))
    e("ds_read_b128 %s, %s offset:16" % (vr(M + 4, 4), vr(LA)))
    e("s_sub_u32 s36, %s, %s" % (sr(sTot), sr(sW0)))
    e("s_min_u32 s36, s36, 512")
    e("s_add_u32 s36, s36, 31"); e("s_lshr_b32 s36, s36, 5")
    e("s_max_u32 %s, s36, 1" % sr(sNG))
    e("s_waitcnt lgkmcnt(0)")
    for k in range(1, 8):
        e("v_max_u32 %s, %s, %s" % (vr(M + k), vr(M + k - 1), vr(M + k)))
    e("v_mov_b32 %s, %s" % (vr(INC), vr(M + 7)))
    e("v_mov_b32 %s, 0" % vr(PREV))
    scan64("v_max_u32", INC)
    e("s_nop 1")
    e("v_mov_b32_dpp %s, %s wave_shr:1 row_mask:0xf bank_mask:0xf" % (vr(PREV), vr(INC)))
    for k in range(8):
        e("v_max_u32 %s, %s, %s" % (vr(M + k), vr(PREV), vr(M + k)))
        e("v_add3_u32 %s, %s, %s, %d" % (vr(M + k), vr(M + k), vr(JB), k))
    e("ds_write_b128 %s, %s" % (vr(LA), vr(M, 4)))
    e("ds_write_b128 %s, %s offset:16" % (vr(LA), vr(M + 4, 4)))
    for k in range(4):
        e("ds_read2st64_b32 %s, %s offset0:%d offset1:%d" % (vr(M + 2 * k, 2), vr(LB), 2 * k, 2 * k + 1))
    e("s_mov_b32 m0, %s" % sr(sREC))
    e("s_waitcnt lgkmcnt(3)")
    e("buffer_load_dwordx3 %s, %s, 0 idxen lds" % (vr(M), sr(SRC, 4)))
    e("s_add_u32 m0, %s, 1024" % sr(sREC))
    e("v_bfe_u32 %s, %s, 2, 2" % (vr(c0), vr(lane)))
    e("buffer_load_dwordx3 %s, %s, 0 idxen lds" % (vr(M + 1), sr(SRC, 4)))
    e("v_lshrrev_b32 %s, 5, %s" % (vr(c1), vr(lane)))
    e("v_lshl_or_b32 %s, %s, 3, %s" % (vr(c0), vr(c1), vr(c0)))
    e("v_lshl_add_u32 %s, %s, 4, %s" % (vr(r.PS), vr(c0), sr(sREC)))
    e("v_and_b32 %s, 31, %s" % (vr(c0), vr(lane)))
    e("v_lshl_add_u32 %s, %s, 4, %s" % (vr(r.PT), vr(c0), sr(sREC)))
    e("s_cmp_eq_u32 %s, 0" % sr(sFirst))
    e("s_cbranch_scc1 K2_NOW")
    e("s_waitcnt vmcnt(15)")
    e("s_barrier")
    e("v_lshlrev_b32 %s, 4, %s" % (vr(c0), vr(lane)))
    e("v_add_u32 %s, %d, %s" % (vr(c0), RECB + 3072, vr(c0)))
    WA = r.G[0]; WU = r.G[1]
    assert r.V[0] == r.G[0] + 16 and r.V[1] == r.G[1] + 16
    for m, base in enumerate([WA, WU, r.WB, r.WV]):
        for u in range(8):
            uu = m * 8 + u
            e("ds_read_b128 %s, %s offset:%d" % (vr(base + 4 * u, 4), vr(c0), (uu >> 2) * 8192 + (uu & 3) * 1024))
    e("s_waitcnt lgkmcnt(0)")
    e("s_barrier")
    lab("K2_NOW")
    def xidx(g):
        return ["ds_read_u16 %s, %s offset:%d" % (vr(r.XI + 2 * t), vr(r.PS), g * 512 + SOFF[t] + 8) for t in range(4)]
    def xdma(buf):
        o = []
        for t in range(4):
            o.append(("s_add_u32 m0, %s, %d" % (sr(sXB), buf * 4096 + t * 1024),
                      "buffer_load_dwordx4 %s, %s, 0 idxen offen lds" % (vr(r.XI + 2 * t, 2), sr(SXI, 4))))
        return o
    def xread(buf, k):
        return "ds_read_b128 %s, %s offset:%d" % (vr(r.X + 4 * k, 4), vr(r.XA1 if k & 1 else r.XA0), buf * 4096 + (k >> 1) * 256)
    def tload(g):
        return ["s_mov_b64 exec, %s" % sr(sLO, 2),
                "ds_read_b128 %s, %s offset:%d" % (vr(r.T, 4), vr(r.TO), TT),
                "ds_read_b32 %s, %s offset:%d" % (vr(r.TI), vr(r.TO), TT + 16),
                "s_mov_b64 exec, %s" % sr(sHI, 2),
                "ds_read_b64 %s, %s offset:%d" % (vr(r.T, 2), vr(r.PT), g * 512),
                "s_mov_b64 exec, -1"]
    e("s_waitcnt vmcnt(1) lgkmcnt(0)")
    for g in range(2):
        for s in xidx(g): e(s)
        e("s_waitcnt lgkmcnt(0)")
        for a, b in xdma(g):
            e(a); e("s_nop 0"); e(b)
    e("ds_read_u16 %s, %s offset:10" % (vr(r.TO), vr(r.PT)))
    e("s_cmp_eq_u32 %s, 0" % sr(sFirst))
    e("s_cbranch_scc1 K2_NOW2")
    e("s_mov_b32 s36, 0x%x" % NEGLOG2E)
    for f in range(2):
        for s in range(4):
            e(mfma(r.ACC[f], r.X + 4 * s, WA + 16 * f + 4 * s, None if s == 0 else r.ACC[f]))
    for f in range(2):
        e("v_mov_b32 %s, %s" % (vr(r.AT + 8 * f + 4), vr(WC + 2 * f)))
        e("v_mov_b32 %s, 0" % vr(r.AT + 8 * f + 5))
        e("v_mov_b32 %s, %s" % (vr(r.AT + 8 * f + 6), vr(WC + 2 * f + 1)))
        e("v_mov_b32 %s, 0" % vr(r.AT + 8 * f + 7))
    e("s_nop 7")
    for f in range(2):
        for i in range(8):
            e("v_mul_f32 %s, s36, %s" % (vr(r.ACC[f] + i), vr(r.ACC[f] + i)))
        for i in range(4):
            e("v_cvt_pk_bf16_f32 %s, %s, %s" % (vr(r.AT + 8 * f + i), vr(r.ACC[f] + 2 * i), vr(r.ACC[f] + 2 * i + 1)))
    for f in range(2):
        for s in range(4):
            e(mfma(r.ACC[f], r.X + 4 * s, WU + 16 * f + 4 * s, None if s == 0 else r.ACC[f]))
    e("s_nop 15")
    for i in range(8):
        e("v_cvt_pk_bf16_f32 %s, %s, %s" % (vr(r.U + i), vr(r.ACC[0] + i), vr(r.ACC[1] + i)))
    for f in range(2):
        for i in range(16):
            e("v_mov_b32 %s, 0" % vr(r.ACC[f] + i))
    lab("K2_NOW2")
    e("s_waitcnt lgkmcnt(0)")
    for s in tload(0): e(s)
    e("s_waitcnt vmcnt(4)")
    for k in range(4): e(xread(0, k))
    for k in range(2, 8):
        e("s_add_u32 m0, %s, %d" % (sr(sREC), k * 1024))
        e("s_nop 0")
        e("buffer_load_dwordx3 %s, %s, 0 idxen lds" % (vr(M + k), sr(SRC, 4)))
    for s in xidx(2): e(s)
    for i in range(8):
        e("v_mov_b32 %s, 0" % vr(r.S + i))
        e("v_mov_b32 %s, 1.0" % vr(r.G[1] + 8 + i))
        e("v_mov_b32 %s, 0" % vr(r.V[1] + 8 + i))
    e("s_waitcnt lgkmcnt(0)")
    for s in range(4):
        e(mfma(r.G[0], r.X + 4 * s, r.WB + 4 * s, None if s == 0 else r.G[0]))
    e(smf(r.G[0], r.T, r.AT, r.TI))
    for s in range(4):
        e(mfma(r.V[0], r.X + 4 * s, r.WV + 4 * s, None if s == 0 else r.V[0]))
    for a, b in xdma(0):
        e(a); e("s_nop 0"); e(b)
    e("s_nop 3")

    def valu_slot(a, i, lo=0, hi=5):
        out = []
        def reg(base, idx):
            return (base[a] + idx) if idx >= 0 else (base[1 - a] + 16 + idx)
        if i < 16: out.append("v_exp_f32 %s, %s" % (vr(reg(r.G, i)),) * 1 if False else "v_exp_f32 %s, %s" % (vr(reg(r.G, i)), vr(reg(r.G, i))))
        if i - 1 < 16: out.append("v_add_f32 %s, 1.0, %s" % (vr(reg(r.G, i - 1)), vr(reg(r.G, i - 1))))
        if i - 2 < 16: out.append("v_rcp_f32 %s, %s" % (vr(reg(r.G, i - 2)), vr(reg(r.G, i - 2))))
        out.append("v_mul_f32 %s, %s, %s" % (vr(reg(r.V, i - 3)), vr(reg(r.G, i - 3)), vr(reg(r.V, i - 3))))
        out.append("v_cvt_pk_bf16_f32 %s, %s, %s" % (vr(reg(r.V, i - 3)), vr(reg(r.G, i - 3)), vr(reg(r.V, i - 3))))
        return out

    body = []
    def I(text, lds=None, need=()):
        return dict(text=text, lds=lds, need=list(need))
    def phase(a, g):
        b = 1 - a
        ex = {}
        def add(slot, pos, items):
            ex.setdefault((slot, pos), []).extend(items)
        xn = ['X%d' % k for k in range(4)]
        add(3, 2, [I(smf(r.ACC[b], r.S + 4, r.V[b] + 8, r.SI), need=['S3'])])
        gs = [4, 5, 6, 8]
        for k in range(4):
            add(gs[k], 2, [I(mfma(r.G[b], r.X + 4 * k, r.WB + 16 * b + 4 * k, None if k == 0 else r.G[b]), need=[xn[k]])])
        add(9, 2, [I(smf(r.G[b], r.T, r.AT + 8 * b, r.TI), need=['T'])])
        vs = [10, 13, 14, 15]
        for k in range(4):
            add(vs[k], 2, [I(mfma(r.V[b], r.X + 4 * k, r.WV + 16 * b + 4 * k, None if k == 0 else r.V[b]))])
        add(12, 2, [I(smf(r.ACC[a], r.S, r.V[a], r.SI), need=['S1'])])
        if a == 0:
            add(0, 1, [I("ds_read_u16 %s, %s offset:%d" % (vr(r.SO + t), vr(r.PS), g * 512 + SOFF[t] + 10), lds='SO%d' % t) for t in range(4)])
            add(3, 3, [I("v_add_u32 %s, %s, %s" % (vr(r.SO + t), vr(r.SC), vr(r.SO + t)), need=['SO3']) for t in range(4)])
            add(4, 2, [I("ds_read_b64_tr_b16 %s, %s" % (vr(r.S + 2 * t, 2), vr(r.SO + t)), lds='S%d' % t) for t in range(2)])
            add(5, 2, [I("ds_read_b64_tr_b16 %s, %s" % (vr(r.S + 2 * t, 2), vr(r.SO + t)), lds='S%d' % t) for t in range(2, 4)])
            add(6, 2, [I("ds_read_u16 %s, %s offset:%d" % (vr(r.TO), vr(r.PT), (g + 1) * 512 + 10), lds='TO')])
            tl = tload(g + 1)
            add(9, 2, [I(tl[0], need=['TO']), I(tl[1], lds='Ta'), I(tl[2], lds='Tb'), I(tl[3]), I(tl[4], lds='T'), I(tl[5])])
            add(10, 2, [I("s_waitcnt vmcnt(4)")])
            for k in range(4):
                add(vs[k], 2, [I(xread((g + 1) & 1, k), lds=xn[k])])
        else:
            add(0, 1, [I(s, lds='XI%d' % t) for t, s in enumerate(xidx(g + 3))])
            d = xdma((g + 1) & 1)
            for t in range(4):
                add(8 + t, 3, [I(d[t][0])])
                add(8 + t, 4, [I(d[t][1], need=['XI3'])])
            if g == 1:
                add(1, 0, [I("v_add_u32 %s, 1024, %s" % (vr(r.PS), vr(r.PS))), I("v_add_u32 %s, 1024, %s" % (vr(r.PT), vr(r.PT)))])
        out = []
        for i in range(16):
            v = valu_slot(a, i)
            for p, t in enumerate(v):
                out.extend(ex.pop((i, p), []))
                out.append(I(t))
        assert not ex, ex
        return out
    body += phase(0, 0) + phase(1, 0)
    body += [I("s_sub_u32 %s, %s, 1" % (sr(sNG), sr(sNG))), I("s_cmp_eq_u32 %s, 0" % sr(sNG)), I("s_cbranch_scc1 K2_DRAIN")]
    body += phase(0, 1) + phase(1, 1)
    body += [I("s_sub_u32 %s, %s, 1" % (sr(sNG), sr(sNG))), I("s_cmp_lg_u32 %s, 0" % sr(sNG)), I("s_cbranch_scc1 K2_LOOP")]
    issued = []
    done = 0
    for pas in range(2):
        if pas == 1: lab("K2_LOOP")
        for it in body:
            for tag in it['need']:
                idxs = [k for k, t in enumerate(issued) if t == tag]
                if not idxs: continue
                k = idxs[-1]
                if k >= done:
                    n = len(issued) - 1 - k
                    assert n <= 15
                    if pas == 1: e("s_waitcnt lgkmcnt(%d)" % n)
                    done = k + 1
            if pas == 1: e(it['text'])
            if it['lds']: issued.append(it['lds'])
    lab("K2_DRAIN")
    for i in range(16, 19):
        for t in valu_slot(1, i): e(t)
        e("s_nop 0")
    e("s_nop 0")
    e(smf(r.ACC[1], r.S + 4, r.V[1] + 8, r.SI))
    e("s_add_u32 %s, %s, 512" % (sr(sW0), sr(sW0)))
    e("s_cmp_lt_u32 %s, %s" % (sr(sW0), sr(sTot)))
    e("s_cbranch_scc1 K2_MORE")
    AD = r.G[0]
    AD = r.X
    h4 = r.X + 8; j4 = r.X + 9; big = r.X + 10
    e("s_waitcnt lgkmcnt(0)")
    e("v_lshrrev_b32 %s, 5, %s" % (vr(h4), vr(lane)))
    e("v_lshlrev_b32 %s, 2, %s" % (vr(h4), vr(h4)))
    e("v_subrev_u32 %s, %s, %s" % (vr(h4), sr(sStart), vr(h4)))
    e("v_and_b32 %s, 31, %s" % (vr(j4), vr(lane)))
    e("v_lshlrev_b32 %s, 2, %s" % (vr(j4), vr(j4)))
    e("v_mov_b32 %s, 0x7fffff" % vr(big))
    for q in range(8):
        rowaddr(q, AD + q, h4, j4)
        e("v_cmp_gt_u32 vcc, %s, %s" % (sr(sEnd), vr(AD + q)))
        e("s_nop 1")
        e("v_cndmask_b32 %s, %s, %s, vcc" % (vr(AD + q), vr(big), vr(AD + q)))
        e("v_lshl_add_u32 %s, %s, 7, %s" % (vr(AD + q), vr(AD + q), vr(j4)))
    e("s_mov_b32 s36, 0x358637bd")
    for f in range(2):
        for q in range(8):
            e("v_add_f32 %s, s36, %s" % (vr(r.ACC[f] + q), vr(r.ACC[f] + q)))
        for q in range(8):
            e("v_rcp_f32 %s, %s" % (vr(r.ACC[f] + q), vr(r.ACC[f] + q)))
    tu = r.TMP; tx = r.TMP + 1
    for q in range(8):
        for f in range(2):
            if f == 0:
                e("v_lshlrev_b32 %s, 16, %s" % (vr(tu), vr(r.U + q)))
                e("v_lshlrev_b32 %s, 16, %s" % (vr(tx), vr(r.XR + q)))
            else:
                e("v_and_b32 %s, 0xffff0000, %s" % (vr(tu), vr(r.U + q)))
                e("v_and_b32 %s, 0xffff0000, %s" % (vr(tx), vr(r.XR + q)))
            e("v_fma_f32 %s, %s, %s, %s" % (vr(tu), vr(r.ACC[f] + q), vr(r.ACC[f] + 8 + q), vr(tu)))
            e("v_max_f32 %s, 0, %s" % (vr(tu), vr(tu)))
            e("v_add_f32 %s, %s, %s" % (vr(r.ACC[f] + q), vr(tx), vr(tu)))
        e("v_cvt_pk_bf16_f32 %s, %s, %s" % (vr(r.ACC[0] + q), vr(r.ACC[0] + q), vr(r.ACC[1] + q)))
        e("buffer_store_dword %s, %s, %s, 0 offen" % (vr(r.ACC[0] + q), vr(AD + q), sr(SOUT, 4)))
    lab("K2_END")
    e("s_endpgm")
    lab("K2_MORE")
    e("s_mov_b32 %s, 0" % sr(sFirst))
    e("s_waitcnt vmcnt(0) lgkmcnt(0)")
    e("s_nop 15")
    e("s_lshl_b32 s36, %s, 2" % sr(sT))
    e("v_lshl_add_u32 %s, %s, 15, s36" % (vr(c0), vr(lane)))
    for i in range(4):
        e("buffer_load_dword %s, %s, %s, 0 offen" % (vr(EN + i), vr(c0), sr(SOFS, 4)))
        e("v_add_u32 %s, 8192, %s" % (vr(c0), vr(c0)))
    e("s_waitcnt vmcnt(0)")
    e("s_branch K2_EXPAND")
    return r.n

hdr = open('cdna_kernels/%s.s.ref' % NAME).read().split('\n')
hdr = [l for l in hdr if l.startswith(';   offset') or l.startswith('; Kernarg')]
L.append('.amdgcn_target "amdgcn-amd-amdhsa--gfx950"')
L.append('.text')
lds1 = k1()
nv2 = k2()
def kd(name, nv, ns):
    return [".p2align 6", ".amdhsa_kernel %s" % name, "  .amdhsa_next_free_vgpr %d" % nv, "  .amdhsa_next_free_sgpr %d" % ns,
            "  .amdhsa_accum_offset %d" % ((nv + 3) // 4 * 4), "  .amdhsa_group_segment_fixed_size 0", "  .amdhsa_kernarg_size 96",
            "  .amdhsa_user_sgpr_count 2", "  .amdhsa_user_sgpr_kernarg_segment_ptr 1", "  .amdhsa_system_sgpr_workgroup_id_x 1",
            ".end_amdhsa_kernel"]
L.append('.section .rodata,"a"')
L += kd("k1_sort_kernel", 56, 64)
L += kd("k2_main_kernel", 256, 64)
top = hdr + ["; @launch kernel=k1_sort_kernel grid=(%d,1,1) block=(1024,1,1) lds=%d" % (NC + 1, lds1),
             "; @launch kernel=k2_main_kernel grid=(256,1,1) block=(512,1,1) lds=%d" % K2_LDS]
open(OUT, 'w').write("\n".join(top + L) + "\n")
print("vgprs k2:", nv2, "lines:", len(L))
```

```python
import sys, re

NAME = "standalone__edge_featured_mpnn_gatedgcn__graph"
N_NODES = 25000
CH = 3200
NC = 250
TMUL = 5368
WS_REC = 0
WS_OFF = 0xD00000
WS_WFR = 0xF00000
WS_DBG = 0x1000000
NEGLOG2E = 0xBFB8AA3B

opts = dict(a.split('=') for a in sys.argv[1:] if '=' in a)
OUT = opts.get('out', 'cdna_kernels/%s.s' % NAME)
STAMP = int(opts.get('stamp', 0))
PRIO = int(opts.get('prio', 8))
ABL = opts.get('abl', '')
STF = opts.get('stf', 'sc0+sc1').replace('+', ' ')
LDF = opts.get('ldf', '').replace('+', ' ')
PAIR = int(opts.get('pair', 1))

L = []
def e(s): L.append("    " + s)
def lab(s): L.append(s + ":")
def vr(a, n=1): return "v%d" % a if n == 1 else "v[%d:%d]" % (a, a + n - 1)
def sr(a, n=1): return "s%d" % a if n == 1 else "s[%d:%d]" % (a, a + n - 1)

DPPS = ["row_shr:1 row_mask:0xf bank_mask:0xf", "row_shr:2 row_mask:0xf bank_mask:0xf",
        "row_shr:4 row_mask:0xf bank_mask:0xf", "row_shr:8 row_mask:0xf bank_mask:0xf",
        "row_bcast:15 row_mask:0xa bank_mask:0xf", "row_bcast:31 row_mask:0xc bank_mask:0xf"]
def scan64(op, v, fill=()):
    fill = list(fill)
    for m in DPPS:
        n = 0
        while n < 2 and fill:
            e(fill.pop(0)); n += 1
        if n < 2: e("s_nop %d" % (1 - n))
        e("%s_dpp %s, %s, %s %s" % (op, vr(v), vr(v), vr(v), m))
    for f in fill: e(f)

def srd(d, base, nbytes, add=None, stride=0, sub=None):
    if sub is not None:
        e("s_sub_u32 %s, %s, %s" % (sr(d), sr(base), sub))
        e("s_subb_u32 %s, %s, 0" % (sr(d + 1), sr(base + 1)))
        e("s_and_b32 %s, %s, 0xffff" % (sr(d + 1), sr(d + 1)))
    elif add is None:
        e("s_mov_b32 %s, %s" % (sr(d), sr(base)))
        e("s_and_b32 %s, %s, 0xffff" % (sr(d + 1), sr(base + 1)))
    else:
        e("s_add_u32 %s, %s, %s" % (sr(d), sr(base), add))
        e("s_addc_u32 %s, %s, 0" % (sr(d + 1), sr(base + 1)))
        e("s_and_b32 %s, %s, 0xffff" % (sr(d + 1), sr(d + 1)))
    if stride:
        e("s_or_b32 %s, %s, 0x%x" % (sr(d + 1), sr(d + 1), stride << 16))
    e("s_mov_b32 %s, %s" % (sr(d + 2), nbytes if isinstance(nbytes, str) else "0x%x" % nbytes))
    e("s_mov_b32 %s, 0x20000" % sr(d + 3))

nstamp = [0]
def stamp(final=False, wsreg=8, wave=None, nwaves=8, kid=0, tmpv=None):
    if not STAMP: return
    k = nstamp[0]; nstamp[0] += 1
    e("s_memtime s[%d:%d]" % (64 + 2 * k, 65 + 2 * k))
    if k == 0: e("s_memrealtime s[96:97]")
    if not final: return
    e("s_memrealtime s[98:99]")
    e("s_mov_b64 exec, 1")
    e("s_mul_i32 s60, s2, %d" % nwaves); e("s_add_u32 s60, s60, %s" % wave); e("s_lshl_b32 s60, s60, 7")
    e("s_add_u32 s60, s60, 0x%x" % (WS_DBG + kid * 0x80000))
    e("s_add_u32 s60, s60, s%d" % wsreg); e("s_addc_u32 s61, s%d, 0" % (wsreg + 1))
    e("v_mov_b32 v%d, 0" % tmpv)
    e("s_waitcnt lgkmcnt(0)")
    def st(s, off):
        e("v_mov_b32 v%d, %s" % (tmpv + 1, s)); e("global_store_dword v%d, v%d, s[60:61] offset:%d" % (tmpv, tmpv + 1, off))
    for j in range(k + 1): st("s%d" % (64 + 2 * j), 4 * j)
    st("s96", 120); st("s98", 124); st("s92", 104); st("s94", 108)
    e("s_getreg_b32 s62, hwreg(HW_REG_HW_ID)"); st("s62", 116)
    e("s_getreg_b32 s62, hwreg(HW_REG_XCC_ID)"); st("s62", 112)
    nstamp[0] = 0

def k1():
    HIST, WTOT, RB = 0, 8192, 8448
    L.append(".p2align 8"); L.append(".type k1_sort_kernel,@function"); lab("k1_sort_kernel")
    e("s_load_dwordx4 s[4:7], s[0:1], 8")
    e("s_load_dwordx2 s[8:9], s[0:1], 24")
    e("s_load_dwordx2 s[10:11], s[0:1], 88")
    e("s_cmp_ge_u32 s2, %d" % NC)
    e("s_cbranch_scc1 K1_AUX")
    stamp()
    e("v_lshlrev_b32 v1, 4, v0")
    e("v_lshlrev_b32 v2, 5, v0")
    e("v_lshlrev_b32 v3, 3, v0")
    e("v_mov_b32 v4, 0"); e("v_mov_b32 v5, 0")
    e("s_mul_i32 s12, s2, %d" % (CH * 4))
    e("s_mul_i32 s13, s2, %d" % (CH * 8))
    e("s_mul_i32 s14, s2, %d" % (CH * 16))
    e("s_lshl_b32 s15, s2, 13")
    e("s_add_u32 s15, s15, 0x%x" % WS_OFF)
    e("ds_write_b64 v3, v[4:5] offset:%d" % HIST)
    e("v_lshrrev_b32 v7, 6, v0")
    e("s_waitcnt lgkmcnt(0)")
    srd(16, 8, CH * 4, "s12")
    e("buffer_load_dwordx4 v[8:11], v1, s[16:19], 0 offen " + LDF)
    srd(20, 6, CH * 4, "s12")
    e("buffer_load_dwordx4 v[12:15], v1, s[20:23], 0 offen " + LDF)
    srd(24, 4, CH * 8, "s13")
    e("buffer_load_dwordx4 v[16:19], v2, s[24:27], 0 offen " + LDF)
    e("buffer_load_dwordx4 v[24:27], v2, s[24:27], 0 offen offset:16 " + LDF)
    srd(28, 10, CH * 16, "s14")
    srd(32, 10, 8192, "s15")
    e("v_readfirstlane_b32 s38, v7")
    e("v_mov_b32 v6, 1")
    e("v_lshlrev_b32 v40, 2, v7")
    e("v_and_b32 v41, 7, v0")
    e("v_lshlrev_b32 v41, 2, v41")
    e("v_cmp_gt_u32 vcc, %d, v0" % (CH // 4))
    e("s_mov_b64 s[36:37], vcc")
    e("s_barrier")
    e("s_mov_b64 exec, s[36:37]")
    e("s_cbranch_execz K1_A")
    e("s_waitcnt vmcnt(3)")
    stamp()
    for i in range(4):
        e("v_mul_u32_u24 v%d, %d, v%d" % (32 + i, TMUL, 8 + i))
    for i in range(4):
        e("v_lshrrev_b32 v%d, 14, v%d" % (32 + i, 32 + i))
        e("v_and_b32 v%d, 0x1ffc, v%d" % (32 + i, 32 + i))
        e("ds_add_rtn_u32 v%d, v%d, v6 offset:%d" % (36 + i, 32 + i, HIST))
    for i in range(4):
        d, a, b = 8 + i, 44 + i, 48 + i
        e("v_and_b32 v%d, 15, v%d" % (d, d))
        e("v_mul_u32_u24 v52, 11, v%d" % d)
        e("v_lshrrev_b32 v52, 5, v52")
        e("v_mad_i32_i24 v%d, v52, -3, v%d" % (a, d))
        e("v_add_u32 v%d, 1, v%d" % (a, a))
        e("v_lshl_add_u32 v52, v52, 1, 20")
        e("v_lshlrev_b32 v%d, v52, v%d" % (a, a))
        e("v_and_b32 v%d, 3, v%d" % (b, d))
        e("v_add_u32 v%d, 1, v%d" % (b, b))
        e("v_and_b32 v%d, 12, v%d" % (d, d))
        e("v_lshl_add_u32 v%d, v%d, 1, 3" % (d, d))
        e("v_lshlrev_b32 v%d, v%d, v%d" % (b, d, b))
    lab("K1_A")
    e("s_mov_b64 exec, -1")
    e("s_waitcnt lgkmcnt(0)")
    e("s_barrier")
    stamp()
    e("s_cmp_gt_u32 s38, 7")
    e("s_cbranch_scc1 K1_S1")
    e("ds_read_b128 v[56:59], v1 offset:%d" % HIST)
    e("s_waitcnt lgkmcnt(0)")
    e("v_add_u32 v61, v56, v57")
    e("v_add_u32 v62, v61, v58")
    e("v_add_u32 v42, v62, v59")
    e("v_mov_b32 v43, v42")
    scan64("v_add_u32", 43)
    e("s_mov_b32 exec_lo, 0"); e("s_mov_b32 exec_hi, 0x80000000")
    e("ds_write_b32 v40, v43 offset:%d" % WTOT)
    e("s_mov_b64 exec, -1")
    e("v_sub_u32 v43, v43, v42")
    e("s_waitcnt lgkmcnt(0)")
    lab("K1_S1")
    e("s_barrier")
    e("s_cbranch_scc1 K1_S2")
    e("ds_read_b32 v53, v41 offset:%d" % WTOT)
    e("s_waitcnt lgkmcnt(0)")
    e("v_mov_b32 v54, v53")
    for sh in (1, 2, 4):
        e("s_nop 1")
        e("v_add_u32_dpp v54, v54, v54 row_shr:%d row_mask:0xf bank_mask:0xf" % sh)
    e("v_sub_u32 v54, v54, v53")
    e("s_nop 0")
    e("v_readlane_b32 s39, v54, s38")
    e("s_nop 1")
    e("v_add_u32 v43, s39, v43")
    e("v_add_u32 v60, v43, v56")
    e("v_add_u32 v61, v43, v61")
    e("v_add_u32 v62, v43, v62")
    e("v_lshlrev_b32 v64, 4, v43"); e("v_lshlrev_b32 v65, 4, v60"); e("v_lshlrev_b32 v66, 4, v61"); e("v_lshlrev_b32 v67, 4, v62")
    e("ds_write_b128 v1, v[64:67] offset:%d" % HIST)
    e("v_lshl_or_b32 v56, v56, 16, v43"); e("v_lshl_or_b32 v57, v57, 16, v60")
    e("v_lshl_or_b32 v58, v58, 16, v61"); e("v_lshl_or_b32 v59, v59, 16, v62")
    e("buffer_store_dwordx4 v[56:59], v1, s[32:35], 0 offen " + STF)
    e("s_waitcnt vmcnt(1) lgkmcnt(0)")
    e("s_branch K1_S3")
    lab("K1_S2")
    e("s_waitcnt vmcnt(0)")
    lab("K1_S3")
    e("s_barrier")
    stamp()
    e("s_mov_b64 exec, s[36:37]")
    e("s_cbranch_execz K1_B")
    for i in range(4):
        e("ds_read_b32 v%d, v%d offset:%d" % (32 + i, 32 + i, HIST))
    e("s_mov_b32 s40, 0x40000")
    e("v_mov_b32 v20, v18"); e("v_mov_b32 v21, v19")
    e("v_mov_b32 v28, v26"); e("v_mov_b32 v29, v27")
    for i in range(4):
        e("v_or3_b32 v%d, v%d, v%d, s40" % (18 + 4 * i, 44 + i, 12 + i))
        e("v_mov_b32 v%d, v%d" % (19 + 4 * i, 48 + i))
    for i in range(4):
        e("s_waitcnt lgkmcnt(3)")
        e("v_lshl_add_u32 v%d, v%d, 4, v%d" % (32 + i, 36 + i, 32 + i))
        e("ds_write_b128 v%d, v[%d:%d] offset:%d" % (32 + i, 16 + 4 * i, 19 + 4 * i, RB))
    lab("K1_B")
    e("s_mov_b64 exec, -1")
    e("s_waitcnt lgkmcnt(0)")
    e("s_barrier")
    stamp()
    for k in range(3):
        e("ds_read_b128 v[%d:%d], v1 offset:%d" % (8 + 4 * k, 11 + 4 * k, RB + 16384 * k))
    e("s_mov_b32 s40, 16384"); e("s_mov_b32 s41, 32768"); e("s_mov_b32 s42, 49152")
    e("s_cmp_gt_u32 s38, 1")
    e("s_cbranch_scc1 K1_C")
    e("ds_read_b128 v[20:23], v1 offset:%d" % (RB + 49152))
    e("s_waitcnt lgkmcnt(0)")
    e("buffer_store_dwordx4 v[20:23], v1, s[28:31], s42 offen " + STF)
    lab("K1_C")
    e("s_waitcnt lgkmcnt(2)")
    e("buffer_store_dwordx4 v[8:11], v1, s[28:31], 0 offen " + STF)
    e("s_waitcnt lgkmcnt(1)")
    e("buffer_store_dwordx4 v[12:15], v1, s[28:31], s40 offen " + STF)
    e("s_waitcnt lgkmcnt(0)")
    e("buffer_store_dwordx4 v[16:19], v1, s[28:31], s41 offen " + STF)
    stamp()
    if STAMP: e("s_waitcnt vmcnt(0)")
    stamp(final=True, wsreg=10, wave="s38", nwaves=16, kid=0, tmpv=50)
    e("s_endpgm")
    lab("K1_AUX")
    e("s_cmp_gt_u32 s2, %d" % NC)
    e("s_cbranch_scc1 K1_END2")
    e("s_load_dwordx4 s[12:15], s[0:1], 32")
    e("s_load_dwordx2 s[16:17], s[0:1], 48")
    e("s_load_dwordx4 s[20:23], s[0:1], 56")
    e("v_lshrrev_b32 v1, 6, v0")
    e("v_and_b32 v2, 63, v0")
    e("v_readfirstlane_b32 s38, v1")
    e("s_waitcnt lgkmcnt(0)")
    e("s_lshr_b32 s39, s38, 2")
    e("s_and_b32 s40, s38, 3")
    e("s_cmp_eq_u32 s39, 1"); e("s_cselect_b32 s12, s20, s12"); e("s_cselect_b32 s13, s21, s13")
    e("s_cmp_eq_u32 s39, 3"); e("s_cselect_b32 s12, s22, s12"); e("s_cselect_b32 s13, s23, s13")
    e("s_cmp_eq_u32 s39, 2"); e("s_cselect_b32 s12, s14, s12"); e("s_cselect_b32 s13, s15, s13")
    e("s_mov_b32 s42, 0x%x" % NEGLOG2E)
    e("s_cselect_b32 s41, s42, 1.0")
    srd(24, 12, 8192)
    srd(28, 16, 512)
    srd(32, 10, 32768 + 512, "0x%x" % WS_WFR)
    srd(44, 10, 512 * 16, "0x%x" % (WS_REC + 255 * CH * 16))
    e("v_and_b32 v3, 31, v2")
    e("v_lshlrev_b32 v3, 2, v3")
    e("v_lshrrev_b32 v4, 5, v2")
    e("v_lshl_add_u32 v5, v4, 10, v3")
    e("s_lshl_b32 s43, s40, 11")
    for i in range(8):
        e("buffer_load_dword v%d, v5, s[24:27], s43 offen offset:%d" % (8 + i, i * 128))
    for i in range(4):
        e("buffer_load_dword v%d, v3, s[28:31], 0 offen offset:%d" % (40 + i, i * 128))
    e("v_lshlrev_b32 v6, 4, v0")
    e("v_mov_b32 v48, 0"); e("v_mov_b32 v49, 0"); e("v_mov_b32 v50, 0x4ffff"); e("v_mov_b32 v51, 0")
    e("buffer_store_dwordx4 v[48:51], v6, s[44:47], 0 offen " + STF)
    e("s_waitcnt vmcnt(5)")
    for i in range(8):
        e("v_lshlrev_b32 v%d, 16, v%d" % (16 + i, 8 + i))
        e("v_and_b32 v%d, 0xffff0000, v%d" % (24 + i, 8 + i))
    for i in range(16):
        e("v_mul_f32 v%d, s41, v%d" % (16 + i, 16 + i))
    for i in range(8):
        e("v_cvt_pk_bf16_f32 v%d, v%d, v%d" % (32 + i, 16 + 2 * i, 17 + 2 * i))
    e("v_lshlrev_b32 v7, 4, v2")
    e("s_lshl_b32 s43, s39, 13")
    e("s_lshl_b32 s48, s40, 10")
    e("s_add_u32 s43, s43, s48")
    e("s_add_u32 s48, s43, 4096")
    e("buffer_store_dwordx4 v[32:35], v7, s[32:35], s43 offen " + STF)
    e("buffer_store_dwordx4 v[36:39], v7, s[32:35], s48 offen " + STF)
    e("s_cmp_lg_u32 s38, 0")
    e("s_cbranch_scc1 K1_END2")
    e("s_waitcnt vmcnt(3)")
    for i in range(4):
        e("v_lshlrev_b32 v%d, 16, v%d" % (16 + i, 40 + i))
        e("v_and_b32 v%d, 0xffff0000, v%d" % (20 + i, 40 + i))
    for i in range(8):
        e("v_mul_f32 v%d, s42, v%d" % (16 + i, 16 + i))
    for i in range(4):
        e("v_cvt_pk_bf16_f32 v%d, v%d, v%d" % (44 + i, 16 + 2 * i, 17 + 2 * i))
    e("v_add_u32 v7, 32768, v7")
    e("buffer_store_dwordx4 v[44:47], v7, s[32:35], 0 offen " + STF)
    lab("K1_END2")
    e("s_endpgm")
    return RB + CH * 16

TS, TOTA = 0, 64
RECB = 1024
DUMMY = RECB + 65536
XTB = DUMMY + 1024
XBB = XTB + 16384
K2_LDS = XBB + 65536

class R: pass
def alloc():
    r = R(); p = 0
    def a(n, al=1):
        nonlocal p
        p = (p + al - 1) // al * al
        b = p; p += n
        return b
    r.LANE = a(1); r.SI = a(1)
    r.PS = a(1, 2); r.PC = a(1); r.PT = a(1, 2); r.PE = a(1); r.PL = a(1); r.RI = a(1)
    r.XA0 = a(1); r.XA1 = a(1); r.TI = a(1); r.TMP = a(3)
    r.SO = a(4, 2); r.XI = a(8, 2); r.T = a(4, 2); r.S = a(8, 2); r.X = a(16, 2)
    r.U = a(16, 2)
    r.ACC = [a(16, 2), a(16, 2)]
    r.G = [a(16, 2), None]; r.V = [a(16, 2), None]
    r.G[1] = a(16, 2); r.V[1] = a(16, 2)
    r.WB = a(32, 2); r.WV = a(32, 2); r.AT = a(16, 2)
    r.n = p
    return r

def mfma(d, a, b, c):
    return "v_mfma_f32_32x32x16_bf16 %s, %s, %s, %s" % (vr(d, 16), vr(a, 4), vr(b, 4), "0" if c is None else vr(c, 16))
def smf(d, a, b, idx, abid=0):
    return "v_smfmac_f32_32x32x32_bf16 %s, %s, %s, %s%s" % (vr(d, 16), vr(a, 4), vr(b, 8), vr(idx), " abid:1" if abid else "")

SOFF = [0, 64, 256, 320]

def k2():
    r = alloc()
    assert r.n <= 256, r.n
    sW, sT, sStart, sEnd, sTot, sW0, sNG, sXB, sREC, sFirst, sBin, sMag, sRD, sRE, sXT = range(36, 51)
    sINC = 52; sSO = 54
    SX, SXI, SOFS, SRC, SWF, SOUT = 12, 16, 20, 24, 28, 32
    lane = r.LANE
    c0, c1, c2 = r.TMP, r.TMP + 1, r.TMP + 2
    MAG = -(-(1 << 41) // 671)
    for t in range(2049):
        n = t * 8192 + 670
        assert (n * MAG) >> 41 == n // 671
    def tile_range():
        e("s_lshl_b32 s10, %s, 13" % sr(sT)); e("s_add_u32 s10, s10, 670")
        e("s_mul_hi_u32 %s, s10, %s" % (sr(sStart), sr(sMag))); e("s_lshr_b32 %s, %s, 9" % (sr(sStart), sr(sStart)))
        e("s_add_u32 s10, s10, 8192")
        e("s_mul_hi_u32 %s, s10, %s" % (sr(sEnd), sr(sMag))); e("s_lshr_b32 %s, %s, 9" % (sr(sEnd), sr(sEnd)))
    L.append(".p2align 8"); L.append(".type k2_main_kernel,@function"); lab("k2_main_kernel")
    e("s_load_dwordx2 s[8:9], s[0:1], 88")
    e("s_load_dwordx2 s[4:5], s[0:1], 0")
    e("s_load_dwordx2 s[6:7], s[0:1], 72")
    e("s_cmp_gt_u32 s2, 255")
    e("s_cbranch_scc1 K2_END")
    e("s_setprio 3")
    stamp()
    t0, t1, t2, t3, t4, t5, t6, t7 = [r.G[0] + i for i in range(8)]
    e("v_lshrrev_b32 %s, 6, v0" % vr(t0))
    e("v_and_b32 %s, 63, v0" % vr(lane))
    e("v_readfirstlane_b32 %s, %s" % (sr(sW), vr(t0)))
    e("s_and_b32 s10, s2, 7"); e("s_lshl_b32 s10, s10, 5"); e("s_lshr_b32 s11, s2, 3"); e("s_add_u32 %s, s10, s11" % sr(sBin))
    e("v_lshrrev_b32 %s, 1, %s" % (vr(t0), vr(lane)))
    e("v_lshlrev_b32 %s, 15, %s" % (vr(t0), vr(t0)))
    e("v_and_b32 %s, 1, %s" % (vr(t1), vr(lane)))
    e("v_lshl_or_b32 %s, %s, 4, %s" % (vr(t0), vr(t1), vr(t0)))
    e("s_lshr_b32 s11, %s, 2" % sr(sW)); e("s_lshl_b32 s11, s11, 20")
    e("s_and_b32 s10, %s, 3" % sr(sW)); e("s_lshl_b32 s10, s10, 13"); e("s_add_u32 s11, s11, s10")
    e("s_lshl_b32 s10, %s, 5" % sr(sBin)); e("s_add_u32 s11, s11, s10")
    e("v_add_u32 %s, s11, %s" % (vr(t0), vr(t0)))
    e("s_lshl_b32 %s, %s, 13" % (sr(sREC), sr(sW)))
    e("s_add_u32 %s, %s, %d" % (sr(sXB), sr(sREC), XBB))
    e("s_add_u32 %s, %s, %d" % (sr(sREC), sr(sREC), RECB))
    e("s_add_u32 m0, %s, 3072" % sr(sXB))
    e("s_lshl_b32 %s, %s, 3" % (sr(sT), sr(sBin))); e("s_add_u32 %s, %s, %s" % (sr(sT), sr(sT), sr(sW)))
    e("s_mov_b32 %s, 0x%x" % (sr(sMag), MAG))
    tile_range()
    e("v_lshlrev_b32 %s, 4, %s" % (vr(t1), vr(lane)))
    e("v_lshrrev_b32 %s, 3, %s" % (vr(t2), vr(lane)))
    e("v_xor_b32 %s, %s, %s" % (vr(t3), vr(t2), vr(lane)))
    e("v_and_b32 %s, 7, %s" % (vr(t3), vr(t3)))
    e("v_lshlrev_b32 %s, 4, %s" % (vr(t3), vr(t3)))
    e("v_subrev_u32 %s, %s, %s" % (vr(t2), sr(sStart), vr(t2)))
    e("v_and_b32 %s, 15, %s" % (vr(t2), vr(t2)))
    e("v_xor_b32 %s, 8, %s" % (vr(t4), vr(t2)))
    e("v_add_u32 %s, %s, %s" % (vr(t2), sr(sStart), vr(t2)))
    e("v_add_u32 %s, %s, %s" % (vr(t4), sr(sStart), vr(t4)))
    e("v_lshl_add_u32 %s, %s, 7, %s" % (vr(t2), vr(t2), vr(t3)))
    e("v_lshl_add_u32 %s, %s, 7, %s" % (vr(t4), vr(t4), vr(t3)))
    e("s_waitcnt lgkmcnt(0)")
    srd(SOFS, 8, NC * 8192, "0x%x" % WS_OFF)
    e("buffer_load_dwordx4 %s, %s, 0 offen lds" % (vr(t0), sr(SOFS, 4)))
    e("s_add_u32 m0, %s, 4096" % sr(sXB))
    srd(SWF, 8, 32768 + 512, "0x%x" % WS_WFR)
    e("s_lshl_b32 s10, %s, 12" % sr(sW))
    for k in range(4):
        e("buffer_load_dwordx4 %s, %s, s10 offen offset:%d lds" % (vr(t1), sr(SWF, 4), k * 1024))
    e("s_lshl_b32 s10, %s, 11" % sr(sW))
    e("s_add_u32 m0, s10, %d" % XTB)
    srd(SX, 4, N_NODES * 128)
    e("buffer_load_dwordx4 %s, %s, 0 offen lds" % (vr(t2), sr(SX, 4)))
    e("s_add_u32 m0, s10, %d" % (XTB + 1024))
    e("v_add_u32 %s, 32768, %s" % (vr(t5), vr(t1)))
    e("buffer_load_dwordx4 %s, %s, 0 offen lds" % (vr(t4), sr(SX, 4)))
    WC = r.U
    e("buffer_load_dwordx4 %s, %s, %s, 0 offen" % (vr(WC, 4), vr(t5), sr(SWF, 4)))
    srd(SXI, 4, N_NODES, stride=128, sub="3072")
    srd(SRC, 8, 256 * CH, stride=16)
    e("s_mov_b32 %s, 1024" % sr(sINC)); e("s_mov_b32 %s, 1024" % sr(sINC + 1))
    e("s_mov_b32 %s, 3072" % sr(sSO)); e("s_mov_b32 %s, 2048" % sr(sSO + 1)); e("s_mov_b32 %s, 1024" % sr(sSO + 2))
    H = t3
    e("v_lshrrev_b32 %s, 5, %s" % (vr(H), vr(lane)))
    e("v_mov_b32 %s, 0x%x" % (vr(t4), (1 << 4) | (2 << 8) | (1 << 14) | (2 << 18)))
    e("v_lshlrev_b32 %s, 1, %s" % (vr(t5), vr(lane)))
    e("v_bfe_u32 %s, %s, %s, 2" % (vr(t4), vr(t4), vr(t5)))
    e("v_mul_u32_u24 %s, 0x8001, %s" % (vr(t4), vr(t4)))
    e("v_and_b32 %s, 0x10001, %s" % (vr(t4), vr(t4)))
    e("v_mul_u32_u24 %s, 0x3f80, %s" % (vr(t4), vr(t4)))
    e("v_lshlrev_b32 %s, 2, %s" % (vr(t5), vr(lane)))
    e("s_mov_b64 exec, 0x3ff")
    e("ds_write_b32 %s, %s offset:%d" % (vr(t5), vr(t4), TS))
    e("s_mov_b64 exec, -1")
    e("v_and_b32 %s, 3, %s" % (vr(c0), vr(lane)))
    e("v_bfe_u32 %s, %s, 4, 1" % (vr(c1), vr(lane)))
    e("v_mul_u32_u24 %s, 0x5555, %s" % (vr(r.SI), vr(c1)))
    e("v_or_b32 %s, 0x8888, %s" % (vr(r.SI), vr(r.SI)))
    e("v_xor_b32 %s, %s, %s" % (vr(c2), vr(c0), vr(H)))
    e("v_lshl_or_b32 %s, %s, 2, %s" % (vr(c2), vr(c1), vr(c2)))
    e("v_lshlrev_b32 %s, 4, %s" % (vr(r.XI + 1), vr(c2)))
    e("v_mov_b32 %s, %s" % (vr(r.XI + 3), vr(r.XI + 1)))
    e("v_xor_b32 %s, 32, %s" % (vr(r.XI + 5), vr(r.XI + 1)))
    e("v_mov_b32 %s, %s" % (vr(r.XI + 7), vr(r.XI + 5)))
    e("v_bfe_u32 %s, %s, 3, 2" % (vr(c2), vr(lane)))
    e("v_xor_b32 %s, %s, %s" % (vr(c2), vr(c2), vr(H)))
    e("v_lshlrev_b32 %s, 4, %s" % (vr(r.XA0), vr(c2)))
    e("v_lshl_or_b32 %s, %s, 6, %s" % (vr(r.XA0), vr(c0), vr(r.XA0)))
    e("v_bfe_u32 %s, %s, 3, 1" % (vr(c2), vr(lane)))
    e("v_lshl_or_b32 %s, %s, 9, %s" % (vr(r.XA0), vr(c2), vr(r.XA0)))
    e("v_bfe_u32 %s, %s, 2, 1" % (vr(t4), vr(lane)))
    e("v_lshl_or_b32 %s, %s, 10, %s" % (vr(r.XA0), vr(t4), vr(r.XA0)))
    e("v_lshl_or_b32 %s, %s, 11, %s" % (vr(r.XA0), vr(c1), vr(r.XA0)))
    e("v_xor_b32 %s, 32, %s" % (vr(r.XA1), vr(r.XA0)))
    e("v_add_u32 %s, %s, %s" % (vr(r.XA0), sr(sXB), vr(r.XA0)))
    e("v_add_u32 %s, %s, %s" % (vr(r.XA1), sr(sXB), vr(r.XA1)))
    FA, FU = r.AT + 14, r.AT + 15
    e("v_lshl_or_b32 %s, %s, 1, %s" % (vr(c2), vr(t4), vr(c2)))
    e("v_lshl_or_b32 %s, %s, 1, %s" % (vr(c2), vr(c2), vr(c1)))
    e("v_mad_u32_u24 %s, %s, 3, %s" % (vr(c2), vr(c2), vr(c0)))
    e("v_add_u32 %s, 9, %s" % (vr(c2), vr(c2)))
    e("v_and_b32 %s, 15, %s" % (vr(c2), vr(c2)))
    for dst, src in ((FA, c2), (FU, None)):
        if src is None:
            e("v_and_b32 %s, 15, %s" % (vr(c2), vr(lane)))
        e("v_xor_b32 %s, %s, %s" % (vr(t4), vr(c2), vr(H)))
        e("v_and_b32 %s, 7, %s" % (vr(t4), vr(t4)))
        e("v_lshlrev_b32 %s, 4, %s" % (vr(t4), vr(t4)))
        e("v_lshl_or_b32 %s, %s, 7, %s" % (vr(dst), vr(c2), vr(t4)))
    e("v_lshlrev_b32 %s, 4, %s" % (vr(t4), vr(H)))
    e("v_mov_b32 %s, 0x3f80" % vr(t5))
    e("v_lshlrev_b32 %s, %s, %s" % (vr(r.T + 1), vr(t4), vr(t5)))
    e("v_mov_b32 %s, %s" % (vr(r.T + 2), vr(r.T + 1)))
    e("v_mov_b32 %s, %s" % (vr(r.T + 3), vr(r.T + 1)))
    EN = r.G[1]
    e("v_and_b32 %s, 31, %s" % (vr(t5), vr(lane)))
    e("v_lshlrev_b32 %s, 5, %s" % (vr(t5), vr(t5)))
    e("v_lshl_or_b32 %s, %s, 15, %s" % (vr(t5), vr(H), vr(t5)))
    e("s_lshl_b32 s10, %s, 2" % sr(sW)); e("s_add_u32 s10, s10, %d" % (XBB + 3072))
    e("v_add_u32 %s, s10, %s" % (vr(t5), vr(t5)))
    e("s_mov_b32 %s, 0" % sr(sW0))
    e("s_mov_b32 %s, 1" % sr(sFirst))
    Z = r.G[1] + 4; LA = r.G[1] + 8; WA_ = r.G[1] + 9
    P = r.V[1]; D = r.V[1] + 4
    TOT = r.V[1] + 8; INC = r.V[1] + 9; CB = r.V[1] + 10; PREV = r.V[1] + 11; JB = r.V[1] + 12; C512 = r.V[1] + 13
    M = r.S
    def expand_pre():
        for i in range(4): e("v_mov_b32 %s, 0" % vr(Z + i))
        e("v_lshl_add_u32 %s, %s, 5, %s" % (vr(LA), vr(lane), sr(sXB)))
        e("ds_write_b128 %s, %s" % (vr(LA), vr(Z, 4)))
        e("ds_write_b128 %s, %s offset:16" % (vr(LA), vr(Z, 4)))
        e("v_mul_u32_u24 %s, %d, %s" % (vr(CB), 4 * CH, vr(lane)))
        e("v_lshl_add_u32 %s, %s, 3, %s" % (vr(JB), vr(lane), sr(sW0)))
        e("v_mov_b32 %s, 512" % vr(C512))
        e("v_mov_b32 %s, 0" % vr(PREV))
        e("v_and_b32 %s, 7, %s" % (vr(WA_), vr(lane)))
        e("v_lshlrev_b32 %s, 4, %s" % (vr(WA_), vr(WA_)))
        e("v_lshl_or_b32 %s, %s, 7, %s" % (vr(WA_), vr(lane), vr(WA_)))
        e("v_add_u32 %s, %s, %s" % (vr(WA_), sr(sREC), vr(WA_)))
        e("v_lshl_add_u32 %s, %s, 4, %s" % (vr(r.PL), vr(lane), sr(sREC)))
    expand_pre()
    stamp()
    e("s_waitcnt vmcnt(7) lgkmcnt(0)")
    e("s_barrier")
    stamp()
    for i in range(4):
        e("ds_read_b32 %s, %s offset:%d" % (vr(EN + i), vr(t5), i * 8192))
    e("s_waitcnt lgkmcnt(0)")
    lab("K2_EXPAND")
    sd = "dst_sel:DWORD dst_unused:UNUSED_PAD src0_sel:WORD_%d src1_sel:DWORD"
    e("v_lshrrev_b32 %s, 16, %s" % (vr(P + 1), vr(EN)))
    e("v_add_u32_sdwa %s, %s, %s %s" % (vr(P + 2), vr(EN + 1), vr(P + 1), sd % 1))
    e("v_add_u32_sdwa %s, %s, %s %s" % (vr(P + 3), vr(EN + 2), vr(P + 2), sd % 1))
    e("v_add_u32_sdwa %s, %s, %s %s" % (vr(INC), vr(EN + 3), vr(P + 3), sd % 1))
    fill = ["v_add_u32 %s, %s, %s" % (vr(TOT), sr(sW0), vr(INC))]
    fill += ["v_add_u32_sdwa %s, %s, %s %s" % (vr(D + i), vr(EN + i), vr(CB), sd % 0) for i in range(4)]
    fill += ["v_add_u32 %s, %d, %s" % (vr(D + i), i * CH, vr(D + i)) for i in range(1, 4)]
    fill += ["v_subrev_u32 %s, %s, %s" % (vr(D + i), sr(sW0), vr(D + i)) for i in range(4)]
    scan64("v_add_u32", INC, fill)
    e("v_sub_u32 %s, %s, %s" % (vr(P), vr(INC), vr(TOT)))
    e("v_readlane_b32 %s, %s, 63" % (sr(sTot), vr(INC)))
    for i in range(1, 4):
        e("v_add_u32 %s, %s, %s" % (vr(P + i), vr(P), vr(P + i)))
    for i in range(4):
        e("v_sub_u32 %s, %s, %s" % (vr(D + i), vr(D + i), vr(P + i)))
        e("v_med3_i32 %s, %s, 0, %s" % (vr(P + i), vr(P + i), vr(C512)))
        e("v_lshl_add_u32 %s, %s, 2, %s" % (vr(P + i), vr(P + i), sr(sXB)))
        e("ds_max_u32 %s, %s" % (vr(P + i), vr(D + i)))
    e("ds_read_b128 %s, %s" % (vr(M, 4), vr(LA)))
    e("ds_read_b128 %s, %s offset:16" % (vr(M + 4, 4), vr(LA)))
    e("s_lshl_b32 s10, %s, 3" % sr(sTot)); e("s_or_b32 s10, s10, %s" % sr(sW)); e("s_lshl_b32 s11, %s, 2" % sr(sW))
    e("v_mov_b32 %s, s10" % vr(TOT)); e("v_mov_b32 %s, s11" % vr(INC))
    e("s_mov_b64 exec, 1")
    e("ds_write_b32 %s, %s offset:%d" % (vr(INC), vr(TOT), TOTA))
    e("s_mov_b64 exec, -1")
    e("s_waitcnt lgkmcnt(1)")
    e("v_max3_u32 %s, %s, %s, %s" % (vr(INC), vr(M), vr(M + 1), vr(M + 2)))
    e("v_max3_u32 %s, %s, %s, %s" % (vr(INC), vr(INC), vr(M + 3), vr(M + 4)))
    e("v_max3_u32 %s, %s, %s, %s" % (vr(INC), vr(INC), vr(M + 5), vr(M + 6)))
    e("v_max_u32 %s, %s, %s" % (vr(INC), vr(INC), vr(M + 7)))
    AD = r.X
    fill = ["v_xor_b32 %s, %d, %s" % (vr(AD + k), 16 * k, vr(WA_)) for k in range(1, 8)]
    scan64("v_max_u32", INC, fill)
    e("s_nop 1")
    e("v_mov_b32_dpp %s, %s wave_shr:1 row_mask:0xf bank_mask:0xf" % (vr(PREV), vr(INC)))
    for k in range(8):
        e("v_max_u32 %s, %s, %s" % (vr(PREV), vr(PREV), vr(M + k)))
        e("v_add3_u32 %s, %s, %s, %d" % (vr(M + k), vr(PREV), vr(JB), k))
        e("ds_write_b32 %s, %s offset:12" % (vr(WA_ if k == 0 else AD + k), vr(M + k)))
    e("ds_read_b32 %s, %s offset:12" % (vr(c0), vr(r.PL)))
    e("ds_read_b32 %s, %s offset:%d" % (vr(c1), vr(r.PL), 1024 + 12))
    e("s_mov_b32 m0, %s" % sr(sREC))
    e("s_waitcnt lgkmcnt(1)")
    e("buffer_load_dwordx4 %s, %s, 0 idxen lds" % (vr(c0), sr(SRC, 4)))
    e("s_add_u32 m0, %s, 1024" % sr(sREC))
    e("s_waitcnt lgkmcnt(0)")
    e("buffer_load_dwordx4 %s, %s, 0 idxen lds" % (vr(c1), sr(SRC, 4)))
    e("s_cmp_eq_u32 %s, 0" % sr(sFirst))
    e("s_cbranch_scc1 K2_NOW")
    stamp()
    e("v_lshrrev_b32 %s, 3, %s" % (vr(c0), vr(lane)))
    e("v_lshlrev_b32 %s, 2, %s" % (vr(c0), vr(c0)))
    e("v_and_b32 %s, 7, %s" % (vr(c1), vr(lane)))
    e("v_lshlrev_b32 %s, 3, %s" % (vr(r.RI), vr(c1)))
    e("v_lshlrev_b32 %s, 2, %s" % (vr(c1), vr(c1)))
    e("v_lshlrev_b32 %s, 4, %s" % (vr(c2), vr(lane)))
    e("v_add_u32 %s, %d, %s" % (vr(c2), XBB + 4096, vr(c2)))
    e("s_sub_u32 s10, 7, %s" % sr(sW)); e("s_sub_u32 s11, %s, 4" % sr(sW))
    e("s_cmp_lt_u32 %s, 4" % sr(sW)); e("s_cselect_b32 s11, s10, s11")
    e("s_waitcnt vmcnt(2)")
    e("s_barrier")
    stamp()
    e("ds_read_b32 %s, %s offset:%d" % (vr(c0), vr(c0), TOTA))
    e("ds_read_b32 %s, %s offset:%d" % (vr(c1), vr(c1), TOTA))
    WA = r.G[0]; WU = r.G[1]
    assert r.V[0] == r.G[0] + 16 and r.V[1] == r.G[1] + 16
    wr = []
    for m, base in enumerate([WA, WU, r.WB, r.WV]):
        for u in range(8):
            uu = m * 8 + u
            wr.append("ds_read_b128 %s, %s offset:%d" % (vr(base + 4 * u, 4), vr(c2), (uu >> 2) * 8192 + (uu & 3) * 1024))
    for s in wr[:8]: e(s)
    e("s_waitcnt lgkmcnt(8)")
    if PAIR:
        e("v_cmp_lt_u32 vcc, %s, %s" % (vr(c1), vr(c0)))
        e(wr[8]); e(wr[9])
        e("v_lshrrev_b64 %s, %s, vcc" % (vr(r.SO, 2), vr(r.RI)))
        e("v_and_b32 %s, 0xff, %s" % (vr(r.SO), vr(r.SO)))
        e("v_bcnt_u32_b32 %s, %s, 0" % (vr(r.SO), vr(r.SO)))
        e("v_cmp_eq_u32 vcc, s11, %s" % vr(r.SO))
        e("s_ff1_i32_b64 s10, vcc")
        e(wr[10]); e(wr[11])
        e("v_readlane_b32 %s, %s, s10" % (sr(sTot), vr(c1)))
        e("s_lshr_b32 %s, %s, 3" % (sr(sTot), sr(sTot)))
    else:
        for s in wr[8:12]: e(s)
        e("s_mov_b32 s10, %s" % sr(sW))
    e("s_lshl_b32 %s, s10, 11" % sr(sXT)); e("s_add_u32 %s, %s, %d" % (sr(sXT), sr(sXT), XTB))
    e("s_lshl_b32 %s, s10, 13" % sr(sREC)); e("s_add_u32 %s, %s, %d" % (sr(sREC), sr(sREC), RECB))
    e("s_lshl_b32 %s, %s, 3" % (sr(sT), sr(sBin))); e("s_add_u32 %s, %s, s10" % (sr(sT), sr(sT)))
    tile_range()
    def xtile(mapreg):
        e("v_add_u32 %s, %s, %s" % (vr(c0), sr(sXT), vr(mapreg)))
        for s in range(4):
            if s: e("v_xor_b32 %s, %d, %s" % (vr(c1), 32 * s, vr(c0)))
            e("ds_read_b128 %s, %s" % (vr(r.X + 4 * s, 4), vr(c1 if s else c0)))
    xtile(FA)
    for s in wr[12:]: e(s)
    e("s_min_u32 %s, %s, %d" % (sr(sEnd), sr(sEnd), N_NODES))
    e("s_sub_u32 s10, %s, %s" % (sr(sEnd), sr(sStart))); e("s_lshl_b32 s10, s10, 7")
    e("s_lshl_b32 s11, %s, 7" % sr(sStart))
    srd(SOUT, 6, "s10", "s11")
    e("v_lshl_add_u32 %s, %s, 4, %s" % (vr(r.PL), vr(lane), sr(sREC)))
    lab("K2_NOW")
    e("v_bfe_u32 %s, %s, 2, 2" % (vr(c0), vr(lane)))
    e("v_lshrrev_b32 %s, 5, %s" % (vr(c1), vr(lane)))
    e("v_lshl_or_b32 %s, %s, 3, %s" % (vr(c0), vr(c1), vr(c0)))
    e("v_lshl_add_u32 %s, %s, 4, %s" % (vr(r.PS), vr(c0), sr(sREC)))
    e("v_and_b32 %s, 3, %s" % (vr(c0), vr(lane)))
    e("v_add_u32 %s, %s, %s" % (vr(r.PC), vr(c0), vr(r.PS)))
    e("v_and_b32 %s, 31, %s" % (vr(c0), vr(lane)))
    e("v_lshl_add_u32 %s, %s, 4, %s" % (vr(r.PT), vr(c0), sr(sREC)))
    e("v_lshl_add_u32 %s, %s, 2, %s" % (vr(r.PE), vr(c1), vr(r.PT)))
    e("s_sub_u32 s10, %s, %s" % (sr(sTot), sr(sW0)))
    e("s_min_u32 s10, s10, 512")
    e("s_add_u32 s10, s10, 31"); e("s_lshr_b32 s10, s10, 5")
    e("s_max_u32 s10, s10, 1")
    e("s_sub_u32 %s, s10, 1" % sr(sNG))
    e("s_add_u32 %s, %s, 3072" % (sr(sRD), sr(sREC)))
    e("s_add_u32 %s, %s, 8192" % (sr(sRE), sr(sREC)))
    stamp()
    e("s_waitcnt vmcnt(0) lgkmcnt(0)")
    e("s_cmp_eq_u32 %s, 0" % sr(sFirst))
    e("s_cbranch_scc1 K2_NOB")
    e("s_barrier")
    lab("K2_NOB")
    stamp()
    def xidx(g, t):
        return "ds_read_u16 %s, %s offset:%d" % (vr(r.XI + 2 * t), vr(r.PS), g * 512 + SOFF[t] + 8)
    def xm0(buf):
        return "s_add_u32 m0, %s, %d" % (sr(sXB), buf * 4096)
    def xdma(t):
        return "buffer_load_dwordx4 %s, %s, %s idxen offen offset:%d lds" % (vr(r.XI + 2 * t, 2), sr(SXI, 4), sr(sSO + t) if t < 3 else "0", t * 1024)
    def xread(buf, k):
        return "ds_read_b128 %s, %s offset:%d" % (vr(r.X + 4 * k, 4), vr(r.XA1 if k & 1 else r.XA0), buf * 4096 + (k >> 1) * 256)
    def t0read(g): return "ds_read_b32 %s, %s offset:%d" % (vr(r.T), vr(r.PE), g * 512)
    def tiread(g): return "ds_read_b32 %s, %s offset:%d" % (vr(r.TI), vr(r.PT), g * 512 + 8)
    def soread(g, t): return "ds_read_u8 %s, %s offset:%d" % (vr(r.SO + t), vr(r.PC), g * 512 + SOFF[t] + 12)
    def trread(t): return "ds_read_b64_tr_b16 %s, %s offset:%d" % (vr(r.S + 2 * t, 2), vr(r.SO + t), TS)
    def riread(blk): return "ds_read_b32 %s, %s offset:%d" % (vr(r.RI), vr(r.PL), blk * 1024 + 12)
    rdma = "buffer_load_dwordx4 %s, %s, 0 idxen lds" % (vr(r.RI), sr(SRC, 4))
    for t in range(4): e(xidx(0, t))
    X2 = r.S
    for t in range(4): e("ds_read_u16 %s, %s offset:%d" % (vr(X2 + 2 * t), vr(r.PS), 512 + SOFF[t] + 8))
    e(riread(2))
    for t in range(4): e("v_mov_b32 %s, %s" % (vr(X2 + 2 * t + 1), vr(r.XI + 2 * t + 1)))
    e(xm0(0))
    e("s_waitcnt lgkmcnt(5)")
    for t in range(4): e(xdma(t))
    e(xm0(1))
    e("s_waitcnt lgkmcnt(1)")
    for t in range(4): e(xdma(t).replace(vr(r.XI + 2 * t, 2), vr(X2 + 2 * t, 2)))
    e("s_add_u32 m0, %s, 2048" % sr(sREC))
    e("s_waitcnt lgkmcnt(0)")
    e(rdma)
    for t in range(4): e(soread(0, t))
    e(t0read(0)); e(tiread(0))
    for t in range(4): e(xidx(2, t))
    e(riread(3))
    e("s_cmp_eq_u32 %s, 0" % sr(sFirst))
    e("s_cbranch_scc1 K2_NOW2")
    e("s_mov_b32 s10, 0x%x" % NEGLOG2E)
    for f in range(2):
        for s in range(4):
            e(mfma(r.ACC[f], r.X + 4 * s, WA + 16 * f + 4 * s, None if s == 0 else r.ACC[f]))
    xtile(FU)
    e("s_nop 2")
    for f in range(2):
        for i in range(16):
            if i & 3: e("v_mul_f32 %s, s10, %s" % (vr(r.ACC[f] + i), vr(r.ACC[f] + i)))
        if f == 0:
            e("s_waitcnt lgkmcnt(0)")
            for ff in range(2):
                for s in range(4):
                    e(mfma(WA + 16 * ff, r.X + 4 * s, WU + 16 * ff + 4 * s, None if s == 0 else WA + 16 * ff))
    for f in range(2):
        for i in range(8):
            e("v_cvt_pk_bf16_f32 %s, %s, %s" % (vr(r.AT + 8 * f + i), vr(r.ACC[f] + 2 * i) if i & 1 else "0", vr(r.ACC[f] + 2 * i + 1)))
    e("s_mov_b32 exec_hi, 0")
    for f in range(2):
        e("v_mov_b32 %s, %s" % (vr(r.AT + 8 * f), vr(WC + 2 * f)))
        e("v_mov_b32 %s, %s" % (vr(r.AT + 8 * f + 4), vr(WC + 2 * f + 1)))
    e("s_mov_b64 exec, -1")
    for f in range(2):
        for i in range(16):
            e("v_mov_b32 %s, 0" % vr(r.ACC[f] + i))
    for f in range(2):
        for i in range(8):
            e("v_mov_b32 %s, %s" % (vr(r.U + 8 * f + i), vr(WA + 16 * f + i)))
    lab("K2_NOW2")
    e("s_waitcnt lgkmcnt(0)")
    e(trread(0)); e(trread(1))
    for i in range(4): e("v_mov_b32 %s, 0" % vr(r.S + 4 + i))
    for i in range(8):
        e("v_mov_b32 %s, 0" % vr(r.V[1] + 8 + i))
    for i in range(13, 16):
        e("v_mov_b32 %s, 1.0" % vr(r.G[1] + i))
    stamp()
    e("s_waitcnt vmcnt(5)")
    stamp()
    for k in range(4): e(xread(0, k))
    e(xm0(0))
    for s in range(4):
        e("s_waitcnt lgkmcnt(%d)" % (3 - s))
        e(mfma(r.G[0], r.X + 4 * s, r.WB + 4 * s, None if s == 0 else r.G[0]))
    e(smf(r.G[0], r.T, r.AT, r.TI, 1))
    for s in range(4):
        e(mfma(r.V[0], r.X + 4 * s, r.WV + 4 * s, None if s == 0 else r.V[0]))
        e(xdma(s))
    e("s_setprio 1")
    e("s_nop 4")
    stamp()
    if STAMP: e("s_memrealtime s[92:93]"); e("s_waitcnt lgkmcnt(0)"); e("s_add_u32 s63, %s, 1" % sr(sNG))

    def valu_slot(a, i):
        out = []
        def reg(base, idx):
            return (base[a] + idx) if idx >= 0 else (base[1 - a] + 16 + idx)
        if i < 16: out.append("v_exp_f32 %s, %s" % (vr(reg(r.G, i)), vr(reg(r.G, i))))
        if i - 1 < 16: out.append("v_add_f32 %s, 1.0, %s" % (vr(reg(r.G, i - 1)), vr(reg(r.G, i - 1))))
        if i - 2 < 16: out.append("v_rcp_f32 %s, %s" % (vr(reg(r.G, i - 2)), vr(reg(r.G, i - 2))))
        out.append("v_mul_f32 %s, %s, %s" % (vr(reg(r.V, i - 3)), vr(reg(r.G, i - 3)), vr(reg(r.V, i - 3))))
        out.append("v_cvt_pk_bf16_f32 %s, %s, %s" % (vr(reg(r.V, i - 3)), vr(reg(r.G, i - 3)), vr(reg(r.V, i - 3))))
        return out
    def I(text, lds=None, need=()):
        return dict(text=text, lds=lds, need=list(need))
    POS = [(3, 2), (4, 3), (5, 4), (7, 0), (8, 1), (9, 2), (10, 4), (12, 0), (13, 2), (14, 3), (15, 4)]
    def phase(a, g):
        b = 1 - a
        xn = ['X%d' % k for k in range(4)]
        mm = [I(smf(r.ACC[b], r.S + 4, r.V[b] + 8, r.SI), need=['S3'])]
        mm += [I(mfma(r.G[b], r.X + 4 * k, r.WB + 16 * b + 4 * k, None if k == 0 else r.G[b]), need=[xn[k]]) for k in range(4)]
        mm += [I(smf(r.G[b], r.T, r.AT + 8 * b, r.TI, 1), need=['T0', 'TI'])]
        vv = [I(mfma(r.V[b], r.X + 4 * k, r.WV + 16 * b + 4 * k, None if k == 0 else r.V[b])) for k in range(4)]
        mm += [vv[0], I(smf(r.ACC[a], r.S, r.V[a], r.SI), need=['S1'])] + vv[1:]
        aux = [[] for _ in range(11)]
        nb = (g + 1) & 1
        if a == 0:
            aux[0] += [I(trread(2), lds='S2', need=['SO3'])]
            aux[1] += [I(trread(3), lds='S3')]
            if g == 0:
                aux[1].insert(0, I("s_mov_b32 m0, %s" % sr(sRD)))
                aux[2] += [I(rdma, need=['RI'])]
                aux[3] += [I("s_add_u32 %s, %s, 1024" % (sr(sRD), sr(sRD)))]
                aux[4] += [I("s_cmp_lt_u32 %s, %s" % (sr(sRD), sr(sRE)))]
                aux[5] += [I("s_cselect_b32 %s, %s, %d" % (sr(sRD), sr(sRD), DUMMY))]
                aux[3] += [I(xidx(g + 3, 0), lds='XI0'), I(xidx(g + 3, 1), lds='XI1')]
            else:
                aux[2] += [I(xidx(g + 3, 0), lds='XI0')]
                aux[3] += [I(xidx(g + 3, 1), lds='XI1')]
            aux[4] += [I(xidx(g + 3, 2), lds='XI2'), I(xidx(g + 3, 3), lds='XI3')]
            aux[5] += [I(t0read(g + 1), lds='T0')]
            aux[6] += [I("s_waitcnt vmcnt(5)", need=['S3']), I(xread(nb, 0), lds='X0')]
            aux[7] += [I(tiread(g + 1), lds='TI')]
            for k in range(1, 4): aux[7 + k] += [I(xread(nb, k), lds=xn[k])]
        else:
            aux[0] += [I(soread(g + 1, 0), lds='SO0', need=['X3'])]
            aux[1] += [I(soread(g + 1, 1), lds='SO1')]
            aux[2] += [I(soread(g + 1, 2), lds='SO2')]
            aux[3] += [I(xm0(nb)), I(soread(g + 1, 3), lds='SO3')]
            aux[4] += [I(xdma(0), need=['XI3'])]
            aux[5] += [I(xdma(1))]
            aux[6] += [I(xdma(2))]
            aux[7] += [I(trread(0), lds='S0', need=['SO3'])]
            aux[8] += [I(trread(1), lds='S1')]
            aux[9] += [I(xdma(3))]
            aux[10] += [I("s_sub_u32 %s, %s, 1" % (sr(sNG), sr(sNG)))]
            if g == 1:
                aux[10] += [I(riread(3), lds='RI')]
        ex = {}
        for k in range(11): ex[POS[k]] = [mm[k]] + aux[k]
        if a == 1 and g == 1:
            ex.setdefault((8, 0), []).extend([I("v_lshl_add_u64 %s, %s, 0, %s" % (vr(r.PS, 2), vr(r.PS, 2), sr(sINC, 2))),
                                              I("v_lshl_add_u64 %s, %s, 0, %s" % (vr(r.PT, 2), vr(r.PT, 2), sr(sINC, 2)))])
        if a == 0 and g == 0:
            ex.setdefault((1, 0), []).append(I("v_add_u32 %s, 1024, %s" % (vr(r.PL), vr(r.PL))))
        if PRIO and a == 1:
            ex[POS[0]].insert(1, I("s_setprio 0"))
            ex[POS[PRIO]].insert(1, I("s_setprio 1"))
        out = []
        for i in range(16):
            for p, t in enumerate(valu_slot(a, i)):
                out.extend(ex.pop((i, p), []))
                out.append(I(t))
        assert not ex, ex
        return out
    body = phase(0, 0) + phase(1, 0) + [I("s_cbranch_scc1 K2_DRAIN")] + phase(0, 1) + phase(1, 1) + [I("s_cbranch_scc0 K2_LOOP")]
    issued = []; done = 0
    for pas in range(2):
        if pas == 1: lab("K2_LOOP")
        for it in body:
            n = None
            for tag in it['need']:
                idxs = [k for k, t in enumerate(issued) if t == tag]
                if not idxs: continue
                k = idxs[-1]
                if k >= done:
                    n = len(issued) - 1 - k
                    done = k + 1
            tx = it['text']
            if n is not None:
                assert n <= 15
                if tx.startswith("s_waitcnt"): tx += " lgkmcnt(%d)" % n
                elif pas == 1: e("s_waitcnt lgkmcnt(%d)" % n)
            if pas == 1:
                if ABL == 'nomfma' and 'mfma' in tx: tx = "s_nop 0"
                e(tx)
            if it['lds']: issued.append(it['lds'])
    lab("K2_DRAIN")
    stamp()
    if STAMP: e("s_memrealtime s[94:95]")
    e("s_setprio 2")
    XR = r.X; EA = r.X + 8
    e("s_waitcnt lgkmcnt(0)")
    pre = []
    pre.append("v_lshrrev_b32 %s, 5, %s" % (vr(c0), vr(lane)))
    pre.append("v_and_b32 %s, 31, %s" % (vr(c1), vr(lane)))
    pre.append("v_lshlrev_b32 %s, 2, %s" % (vr(c1), vr(c1)))
    pre.append("v_mul_u32_u24 %s, 0x240, %s" % (vr(c2), vr(c0)))
    pre.append("v_xor_b32 %s, %s, %s" % (vr(c2), vr(c2), vr(c1)))
    pre.append("v_add_u32 %s, %s, %s" % (vr(c2), sr(sXT), vr(c2)))
    for i in range(16, 19):
        for t in valu_slot(1, i): e(t)
        e(pre.pop(0)); e(pre.pop(0))
    e(smf(r.ACC[1], r.S + 4, r.V[1] + 8, r.SI))
    e("s_add_u32 %s, %s, 512" % (sr(sW0), sr(sW0)))
    e("s_cmp_lt_u32 %s, %s" % (sr(sW0), sr(sTot)))
    e("s_cbranch_scc1 K2_MORE")
    for q in range(4):
        if q: e("v_xor_b32 %s, %d, %s" % (vr(EA), 16 * q, vr(c2)))
        e("ds_read_b32 %s, %s offset:%d" % (vr(XR + q), vr(EA if q else c2), q * 128))
        e("ds_read_b32 %s, %s offset:%d" % (vr(XR + q + 4), vr(EA if q else c2), q * 128 + 1024))
    e("v_lshlrev_b32 %s, 2, %s" % (vr(c0), vr(c0)))
    e("v_subrev_u32 %s, %s, %s" % (vr(c0), sr(sStart), vr(c0)))
    e("v_lshl_add_u32 %s, %s, 7, %s" % (vr(c0), vr(c0), vr(c1)))
    for q in range(8):
        e("v_add_u32 %s, %d, %s" % (vr(EA + q), (8 * (q >> 2) + (q & 3)) * 128, vr(c0)))
        e("v_and_b32 %s, 0x7ff, %s" % (vr(EA + q), vr(EA + q)))
    e("s_mov_b32 s10, 0x358637bd")
    for f in range(2):
        for q in range(8):
            e("v_add_f32 %s, s10, %s" % (vr(r.ACC[f] + q), vr(r.ACC[f] + q)))
        for q in range(8):
            e("v_rcp_f32 %s, %s" % (vr(r.ACC[f] + q), vr(r.ACC[f] + q)))
    e("s_waitcnt lgkmcnt(0)")
    for q in range(8):
        for f in range(2):
            u = r.U + 8 * f + q
            e("v_fmac_f32 %s, %s, %s" % (vr(u), vr(r.ACC[f] + q), vr(r.ACC[f] + 8 + q)))
            if f == 0: e("v_lshlrev_b32 %s, 16, %s" % (vr(c1), vr(XR + q)))
            else: e("v_and_b32 %s, 0xffff0000, %s" % (vr(c1), vr(XR + q)))
            e("v_max_f32 %s, 0, %s" % (vr(u), vr(u)))
            e("v_add_f32 %s, %s, %s" % (vr(u), vr(c1), vr(u)))
        e("v_cvt_pk_bf16_f32 %s, %s, %s" % (vr(r.U + q), vr(r.U + q), vr(r.U + 8 + q)))
        e("buffer_store_dword %s, %s, %s, 0 offen" % (vr(r.U + q), vr(EA + q), sr(SOUT, 4)))
    stamp()
    if STAMP:
        e("s_waitcnt vmcnt(0) lgkmcnt(0)"); e("s_mov_b32 s%d, s63" % (64 + 2 * nstamp[0])); nstamp[0] += 1
    stamp(final=True, wsreg=8, wave=sr(sW), nwaves=8, kid=1, tmpv=10)
    lab("K2_END")
    e("s_endpgm")
    lab("K2_MORE")
    e("s_mov_b32 %s, 0" % sr(sFirst))
    e("s_waitcnt vmcnt(0) lgkmcnt(0)")
    e("s_nop 15")
    e("s_lshl_b32 s10, %s, 2" % sr(sT))
    e("v_lshl_add_u32 %s, %s, 15, s10" % (vr(c0), vr(lane)))
    for i in range(4):
        e("buffer_load_dword %s, %s, %s, 0 offen" % (vr(EN + i), vr(c0), sr(SOFS, 4)))
        e("v_add_u32 %s, 8192, %s" % (vr(c0), vr(c0)))
    expand_pre()
    e("s_waitcnt vmcnt(0)")
    e("s_branch K2_EXPAND")
    return r.n

hdr = open('cdna_kernels/%s.s.ref' % NAME).read().split('\n')
hdr = [l for l in hdr if l.startswith(';   offset') or l.startswith('; Kernarg')]
L.append('.amdgcn_target "amdgcn-amd-amdhsa--gfx950"')
L.append('.text')
lds1 = k1()
nv2 = k2()
def kd(name, nv, ns):
    return [".p2align 6", ".amdhsa_kernel %s" % name, "  .amdhsa_next_free_vgpr %d" % nv, "  .amdhsa_next_free_sgpr %d" % ns,
            "  .amdhsa_accum_offset %d" % ((nv + 3) // 4 * 4), "  .amdhsa_group_segment_fixed_size 0", "  .amdhsa_kernarg_size 96",
            "  .amdhsa_user_sgpr_count 2", "  .amdhsa_user_sgpr_kernarg_segment_ptr 1", "  .amdhsa_system_sgpr_workgroup_id_x 1",
            ".end_amdhsa_kernel"]
L.append('.section .rodata,"a"')
L += kd("k1_sort_kernel", 72, 102 if STAMP else 64)
L += kd("k2_main_kernel", 256, 102 if STAMP else 64)
top = hdr + ["; @launch kernel=k1_sort_kernel grid=(%d,1,1) block=(1024,1,1) lds=%d" % (NC + 1, lds1),
             "; @launch kernel=k2_main_kernel grid=(256,1,1) block=(512,1,1) lds=%d" % K2_LDS]
open(OUT, 'w').write("\n".join(top + L) + "\n")
print("vgprs k2:", nv2, "lines:", len(L))
```

```python
import sys, re

NAME = "standalone__edge_featured_mpnn_gatedgcn__graph"
N_NODES = 25000
CH = 3200
NC = 250
TMUL = 5368
WS_REC = 0
WS_OFF = 0xD00000
WS_WFR = 0xF00000
WS_DBG = 0x1000000
NEGLOG2E = 0xBFB8AA3B

opts = dict(a.split('=') for a in sys.argv[1:] if '=' in a)
OUT = opts.get('out', 'cdna_kernels/%s.s' % NAME)
STAMP = int(opts.get('stamp', 0))
PRIO = int(opts.get('prio', 8))
ABL = opts.get('abl', '')
STF = opts.get('stf', 'sc0+sc1').replace('+', ' ')
LDF = opts.get('ldf', '').replace('+', ' ')
PAIR = int(opts.get('pair', 1))
DLY1 = int(opts.get('dly1', 0)); DLY2 = int(opts.get('dly2', 0)); XL = opts.get('xl', '')

L = []
def e(s): L.append("    " + s)
def lab(s): L.append(s + ":")
def vr(a, n=1): return "v%d" % a if n == 1 else "v[%d:%d]" % (a, a + n - 1)
def sr(a, n=1): return "s%d" % a if n == 1 else "s[%d:%d]" % (a, a + n - 1)

DPPS = ["row_shr:1 row_mask:0xf bank_mask:0xf", "row_shr:2 row_mask:0xf bank_mask:0xf",
        "row_shr:4 row_mask:0xf bank_mask:0xf", "row_shr:8 row_mask:0xf bank_mask:0xf",
        "row_bcast:15 row_mask:0xa bank_mask:0xf", "row_bcast:31 row_mask:0xc bank_mask:0xf"]
def scan64(op, v, fill=()):
    fill = list(fill)
    for m in DPPS:
        n = 0
        while n < 2 and fill:
            e(fill.pop(0)); n += 1
        if n < 2: e("s_nop %d" % (1 - n))
        e("%s_dpp %s, %s, %s %s" % (op, vr(v), vr(v), vr(v), m))
    for f in fill: e(f)

def srd(d, base, nbytes, add=None, stride=0, sub=None):
    if sub is not None:
        e("s_sub_u32 %s, %s, %s" % (sr(d), sr(base), sub))
        e("s_subb_u32 %s, %s, 0" % (sr(d + 1), sr(base + 1)))
        e("s_and_b32 %s, %s, 0xffff" % (sr(d + 1), sr(d + 1)))
    elif add is None:
        e("s_mov_b32 %s, %s" % (sr(d), sr(base)))
        e("s_and_b32 %s, %s, 0xffff" % (sr(d + 1), sr(base + 1)))
    else:
        e("s_add_u32 %s, %s, %s" % (sr(d), sr(base), add))
        e("s_addc_u32 %s, %s, 0" % (sr(d + 1), sr(base + 1)))
        e("s_and_b32 %s, %s, 0xffff" % (sr(d + 1), sr(d + 1)))
    if stride:
        e("s_or_b32 %s, %s, 0x%x" % (sr(d + 1), sr(d + 1), stride << 16))
    e("s_mov_b32 %s, %s" % (sr(d + 2), nbytes if isinstance(nbytes, str) else "0x%x" % nbytes))
    e("s_mov_b32 %s, 0x20000" % sr(d + 3))

nstamp = [0]
def stamp(final=False, wsreg=8, wave=None, nwaves=8, kid=0, tmpv=None):
    if not STAMP: return
    k = nstamp[0]; nstamp[0] += 1
    e("s_memtime s[%d:%d]" % (64 + 2 * k, 65 + 2 * k))
    if k == 0: e("s_memrealtime s[96:97]")
    if not final: return
    e("s_memrealtime s[98:99]")
    e("s_mov_b64 exec, 1")
    e("s_mul_i32 s60, s2, %d" % nwaves); e("s_add_u32 s60, s60, %s" % wave); e("s_lshl_b32 s60, s60, 7")
    e("s_add_u32 s60, s60, 0x%x" % (WS_DBG + kid * 0x80000))
    e("s_add_u32 s60, s60, s%d" % wsreg); e("s_addc_u32 s61, s%d, 0" % (wsreg + 1))
    e("v_mov_b32 v%d, 0" % tmpv)
    e("s_waitcnt lgkmcnt(0)")
    def st(s, off):
        e("v_mov_b32 v%d, %s" % (tmpv + 1, s)); e("global_store_dword v%d, v%d, s[60:61] offset:%d" % (tmpv, tmpv + 1, off))
    for j in range(k + 1): st("s%d" % (64 + 2 * j), 4 * j)
    st("s96", 120); st("s98", 124); st("s92", 104); st("s94", 108)
    e("s_getreg_b32 s62, hwreg(HW_REG_HW_ID)"); st("s62", 116)
    e("s_getreg_b32 s62, hwreg(HW_REG_XCC_ID)"); st("s62", 112)
    nstamp[0] = 0

def k1():
    HIST, WTOT, RB = 0, 8192, 8448
    L.append(".p2align 8"); L.append(".type k1_sort_kernel,@function"); lab("k1_sort_kernel")
    e("s_load_dwordx4 s[4:7], s[0:1], 8")
    e("s_load_dwordx2 s[8:9], s[0:1], 24")
    e("s_load_dwordx2 s[10:11], s[0:1], 88")
    e("s_cmp_ge_u32 s2, %d" % NC)
    e("s_cbranch_scc1 K1_AUX")
    for _ in range(DLY1): e("s_sleep 36")
    stamp()
    e("v_lshlrev_b32 v1, 4, v0")
    e("v_lshlrev_b32 v2, 5, v0")
    e("v_lshlrev_b32 v3, 3, v0")
    e("v_mov_b32 v4, 0"); e("v_mov_b32 v5, 0")
    e("s_mul_i32 s12, s2, %d" % (CH * 4))
    e("s_mul_i32 s13, s2, %d" % (CH * 8))
    e("s_mul_i32 s14, s2, %d" % (CH * 16))
    e("s_lshl_b32 s15, s2, 13")
    e("s_add_u32 s15, s15, 0x%x" % WS_OFF)
    e("ds_write_b64 v3, v[4:5] offset:%d" % HIST)
    e("v_lshrrev_b32 v7, 6, v0")
    e("s_waitcnt lgkmcnt(0)")
    srd(16, 8, CH * 4, "s12")
    e("buffer_load_dwordx4 v[8:11], v1, s[16:19], 0 offen " + LDF)
    srd(20, 6, CH * 4, "s12")
    e("buffer_load_dwordx4 v[12:15], v1, s[20:23], 0 offen " + LDF)
    srd(24, 4, CH * 8, "s13")
    e("buffer_load_dwordx4 v[16:19], v2, s[24:27], 0 offen " + LDF)
    e("buffer_load_dwordx4 v[24:27], v2, s[24:27], 0 offen offset:16 " + LDF)
    srd(28, 10, CH * 16, "s14")
    srd(32, 10, 8192, "s15")
    e("v_readfirstlane_b32 s38, v7")
    e("v_mov_b32 v6, 1")
    e("v_lshlrev_b32 v40, 2, v7")
    e("v_and_b32 v41, 7, v0")
    e("v_lshlrev_b32 v41, 2, v41")
    e("v_cmp_gt_u32 vcc, %d, v0" % (CH // 4))
    e("s_mov_b64 s[36:37], vcc")
    e("s_barrier")
    e("s_mov_b64 exec, s[36:37]")
    e("s_cbranch_execz K1_A")
    e("s_waitcnt vmcnt(3)")
    stamp()
    for i in range(4):
        e("v_mul_u32_u24 v%d, %d, v%d" % (32 + i, TMUL, 8 + i))
    for i in range(4):
        e("v_lshrrev_b32 v%d, 14, v%d" % (32 + i, 32 + i))
        e("v_and_b32 v%d, 0x1ffc, v%d" % (32 + i, 32 + i))
        e("ds_add_rtn_u32 v%d, v%d, v6 offset:%d" % (36 + i, 32 + i, HIST))
    for i in range(4):
        d, a, b = 8 + i, 44 + i, 48 + i
        e("v_and_b32 v%d, 15, v%d" % (d, d))
        e("v_mul_u32_u24 v52, 11, v%d" % d)
        e("v_lshrrev_b32 v52, 5, v52")
        e("v_mad_i32_i24 v%d, v52, -3, v%d" % (a, d))
        e("v_add_u32 v%d, 1, v%d" % (a, a))
        e("v_lshl_add_u32 v52, v52, 1, 20")
        e("v_lshlrev_b32 v%d, v52, v%d" % (a, a))
        e("v_and_b32 v%d, 3, v%d" % (b, d))
        e("v_add_u32 v%d, 1, v%d" % (b, b))
        e("v_and_b32 v%d, 12, v%d" % (d, d))
        e("v_lshl_add_u32 v%d, v%d, 1, 3" % (d, d))
        e("v_lshlrev_b32 v%d, v%d, v%d" % (b, d, b))
    lab("K1_A")
    e("s_mov_b64 exec, -1")
    e("s_waitcnt lgkmcnt(0)")
    e("s_barrier")
    stamp()
    e("s_cmp_gt_u32 s38, 7")
    e("s_cbranch_scc1 K1_S1")
    e("ds_read_b128 v[56:59], v1 offset:%d" % HIST)
    e("s_waitcnt lgkmcnt(0)")
    e("v_add_u32 v61, v56, v57")
    e("v_add_u32 v62, v61, v58")
    e("v_add_u32 v42, v62, v59")
    e("v_mov_b32 v43, v42")
    scan64("v_add_u32", 43)
    e("s_mov_b32 exec_lo, 0"); e("s_mov_b32 exec_hi, 0x80000000")
    e("ds_write_b32 v40, v43 offset:%d" % WTOT)
    e("s_mov_b64 exec, -1")
    e("v_sub_u32 v43, v43, v42")
    e("s_waitcnt lgkmcnt(0)")
    lab("K1_S1")
    e("s_barrier")
    e("s_cbranch_scc1 K1_S2")
    e("ds_read_b32 v53, v41 offset:%d" % WTOT)
    e("s_waitcnt lgkmcnt(0)")
    e("v_mov_b32 v54, v53")
    for sh in (1, 2, 4):
        e("s_nop 1")
        e("v_add_u32_dpp v54, v54, v54 row_shr:%d row_mask:0xf bank_mask:0xf" % sh)
    e("v_sub_u32 v54, v54, v53")
    e("s_nop 0")
    e("v_readlane_b32 s39, v54, s38")
    e("s_nop 1")
    e("v_add_u32 v43, s39, v43")
    e("v_add_u32 v60, v43, v56")
    e("v_add_u32 v61, v43, v61")
    e("v_add_u32 v62, v43, v62")
    e("v_lshlrev_b32 v64, 4, v43"); e("v_lshlrev_b32 v65, 4, v60"); e("v_lshlrev_b32 v66, 4, v61"); e("v_lshlrev_b32 v67, 4, v62")
    e("ds_write_b128 v1, v[64:67] offset:%d" % HIST)
    e("v_lshl_or_b32 v56, v56, 16, v43"); e("v_lshl_or_b32 v57, v57, 16, v60")
    e("v_lshl_or_b32 v58, v58, 16, v61"); e("v_lshl_or_b32 v59, v59, 16, v62")
    e("buffer_store_dwordx4 v[56:59], v1, s[32:35], 0 offen " + STF)
    e("s_waitcnt vmcnt(1) lgkmcnt(0)")
    e("s_branch K1_S3")
    lab("K1_S2")
    e("s_waitcnt vmcnt(0)")
    lab("K1_S3")
    e("s_barrier")
    stamp()
    e("s_mov_b64 exec, s[36:37]")
    e("s_cbranch_execz K1_B")
    for i in range(4):
        e("ds_read_b32 v%d, v%d offset:%d" % (32 + i, 32 + i, HIST))
    e("s_mov_b32 s40, 0x40000")
    e("v_mov_b32 v20, v18"); e("v_mov_b32 v21, v19")
    e("v_mov_b32 v28, v26"); e("v_mov_b32 v29, v27")
    for i in range(4):
        e("v_or3_b32 v%d, v%d, v%d, s40" % (18 + 4 * i, 44 + i, 12 + i))
        e("v_mov_b32 v%d, v%d" % (19 + 4 * i, 48 + i))
    for i in range(4):
        e("s_waitcnt lgkmcnt(3)")
        e("v_lshl_add_u32 v%d, v%d, 4, v%d" % (32 + i, 36 + i, 32 + i))
        e("ds_write_b128 v%d, v[%d:%d] offset:%d" % (32 + i, 16 + 4 * i, 19 + 4 * i, RB))
    lab("K1_B")
    e("s_mov_b64 exec, -1")
    e("s_waitcnt lgkmcnt(0)")
    e("s_barrier")
    stamp()
    for k in range(3):
        e("ds_read_b128 v[%d:%d], v1 offset:%d" % (8 + 4 * k, 11 + 4 * k, RB + 16384 * k))
    e("s_mov_b32 s40, 16384"); e("s_mov_b32 s41, 32768"); e("s_mov_b32 s42, 49152")
    e("s_cmp_gt_u32 s38, 1")
    e("s_cbranch_scc1 K1_C")
    e("ds_read_b128 v[20:23], v1 offset:%d" % (RB + 49152))
    e("s_waitcnt lgkmcnt(0)")
    e("buffer_store_dwordx4 v[20:23], v1, s[28:31], s42 offen " + STF)
    lab("K1_C")
    e("s_waitcnt lgkmcnt(2)")
    e("buffer_store_dwordx4 v[8:11], v1, s[28:31], 0 offen " + STF)
    e("s_waitcnt lgkmcnt(1)")
    e("buffer_store_dwordx4 v[12:15], v1, s[28:31], s40 offen " + STF)
    e("s_waitcnt lgkmcnt(0)")
    e("buffer_store_dwordx4 v[16:19], v1, s[28:31], s41 offen " + STF)
    stamp()
    if STAMP: e("s_waitcnt vmcnt(0)")
    stamp(final=True, wsreg=10, wave="s38", nwaves=16, kid=0, tmpv=50)
    e("s_endpgm")
    lab("K1_AUX")
    e("s_cmp_gt_u32 s2, %d" % NC)
    e("s_cbranch_scc1 K1_END2")
    e("s_load_dwordx4 s[12:15], s[0:1], 32")
    e("s_load_dwordx2 s[16:17], s[0:1], 48")
    e("s_load_dwordx4 s[20:23], s[0:1], 56")
    e("v_lshrrev_b32 v1, 6, v0")
    e("v_and_b32 v2, 63, v0")
    e("v_readfirstlane_b32 s38, v1")
    e("s_waitcnt lgkmcnt(0)")
    e("s_lshr_b32 s39, s38, 2")
    e("s_and_b32 s40, s38, 3")
    e("s_cmp_eq_u32 s39, 1"); e("s_cselect_b32 s12, s20, s12"); e("s_cselect_b32 s13, s21, s13")
    e("s_cmp_eq_u32 s39, 3"); e("s_cselect_b32 s12, s22, s12"); e("s_cselect_b32 s13, s23, s13")
    e("s_cmp_eq_u32 s39, 2"); e("s_cselect_b32 s12, s14, s12"); e("s_cselect_b32 s13, s15, s13")
    e("s_mov_b32 s42, 0x%x" % NEGLOG2E)
    e("s_cselect_b32 s41, s42, 1.0")
    srd(24, 12, 8192)
    srd(28, 16, 512)
    srd(32, 10, 32768 + 512, "0x%x" % WS_WFR)
    srd(44, 10, 512 * 16, "0x%x" % (WS_REC + 255 * CH * 16))
    e("v_and_b32 v3, 31, v2")
    e("v_lshlrev_b32 v3, 2, v3")
    e("v_lshrrev_b32 v4, 5, v2")
    e("v_lshl_add_u32 v5, v4, 10, v3")
    e("s_lshl_b32 s43, s40, 11")
    for i in range(8):
        e("buffer_load_dword v%d, v5, s[24:27], s43 offen offset:%d" % (8 + i, i * 128))
    for i in range(4):
        e("buffer_load_dword v%d, v3, s[28:31], 0 offen offset:%d" % (40 + i, i * 128))
    e("v_lshlrev_b32 v6, 4, v0")
    e("v_mov_b32 v48, 0"); e("v_mov_b32 v49, 0"); e("v_mov_b32 v50, 0x4ffff"); e("v_mov_b32 v51, 0")
    e("buffer_store_dwordx4 v[48:51], v6, s[44:47], 0 offen " + STF)
    e("s_waitcnt vmcnt(5)")
    for i in range(8):
        e("v_lshlrev_b32 v%d, 16, v%d" % (16 + i, 8 + i))
        e("v_and_b32 v%d, 0xffff0000, v%d" % (24 + i, 8 + i))
    for i in range(16):
        e("v_mul_f32 v%d, s41, v%d" % (16 + i, 16 + i))
    for i in range(8):
        e("v_cvt_pk_bf16_f32 v%d, v%d, v%d" % (32 + i, 16 + 2 * i, 17 + 2 * i))
    e("v_lshlrev_b32 v7, 4, v2")
    e("s_lshl_b32 s43, s39, 13")
    e("s_lshl_b32 s48, s40, 10")
    e("s_add_u32 s43, s43, s48")
    e("s_add_u32 s48, s43, 4096")
    e("buffer_store_dwordx4 v[32:35], v7, s[32:35], s43 offen " + STF)
    e("buffer_store_dwordx4 v[36:39], v7, s[32:35], s48 offen " + STF)
    e("s_cmp_lg_u32 s38, 0")
    e("s_cbranch_scc1 K1_END2")
    e("s_waitcnt vmcnt(3)")
    for i in range(4):
        e("v_lshlrev_b32 v%d, 16, v%d" % (16 + i, 40 + i))
        e("v_and_b32 v%d, 0xffff0000, v%d" % (20 + i, 40 + i))
    for i in range(8):
        e("v_mul_f32 v%d, s42, v%d" % (16 + i, 16 + i))
    for i in range(4):
        e("v_cvt_pk_bf16_f32 v%d, v%d, v%d" % (44 + i, 16 + 2 * i, 17 + 2 * i))
    e("v_add_u32 v7, 32768, v7")
    e("buffer_store_dwordx4 v[44:47], v7, s[32:35], 0 offen " + STF)
    lab("K1_END2")
    e("s_endpgm")
    return RB + CH * 16

TS, TOTA = 0, 64
RECB = 1024
DUMMY = RECB + 65536
XTB = DUMMY + 1024
XBB = XTB + 16384
K2_LDS = XBB + 65536

class R: pass
def alloc():
    r = R(); p = 0
    def a(n, al=1):
        nonlocal p
        p = (p + al - 1) // al * al
        b = p; p += n
        return b
    r.LANE = a(1); r.SI = a(1)
    r.PS = a(1, 2); r.PC = a(1); r.PT = a(1, 2); r.PE = a(1); r.PL = a(1); r.RI = a(1)
    r.XA0 = a(1); r.XA1 = a(1); r.TI = a(1); r.TMP = a(3)
    r.SO = a(4, 2); r.XI = a(8, 2); r.T = a(4, 2); r.S = a(8, 2); r.X = a(16, 2)
    r.U = a(16, 2)
    r.ACC = [a(16, 2), a(16, 2)]
    r.G = [a(16, 2), None]; r.V = [a(16, 2), None]
    r.G[1] = a(16, 2); r.V[1] = a(16, 2)
    r.WB = a(32, 2); r.WV = a(32, 2); r.AT = a(16, 2)
    r.n = p
    return r

def mfma(d, a, b, c):
    return "v_mfma_f32_32x32x16_bf16 %s, %s, %s, %s" % (vr(d, 16), vr(a, 4), vr(b, 4), "0" if c is None else vr(c, 16))
def smf(d, a, b, idx, abid=0):
    return "v_smfmac_f32_32x32x32_bf16 %s, %s, %s, %s%s" % (vr(d, 16), vr(a, 4), vr(b, 8), vr(idx), " abid:1" if abid else "")

SOFF = [0, 64, 256, 320]

def k2():
    r = alloc()
    assert r.n <= 256, r.n
    sW, sT, sStart, sEnd, sTot, sW0, sNG, sXB, sREC, sFirst, sBin, sMag, sRD, sRE, sXT = range(36, 51)
    sINC = 52; sSO = 54
    SX, SXI, SOFS, SRC, SWF, SOUT = 12, 16, 20, 24, 28, 32
    lane = r.LANE
    c0, c1, c2 = r.TMP, r.TMP + 1, r.TMP + 2
    MAG = -(-(1 << 41) // 671)
    for t in range(2049):
        n = t * 8192 + 670
        assert (n * MAG) >> 41 == n // 671
    def tile_range():
        e("s_lshl_b32 s10, %s, 13" % sr(sT)); e("s_add_u32 s10, s10, 670")
        e("s_mul_hi_u32 %s, s10, %s" % (sr(sStart), sr(sMag))); e("s_lshr_b32 %s, %s, 9" % (sr(sStart), sr(sStart)))
        e("s_add_u32 s10, s10, 8192")
        e("s_mul_hi_u32 %s, s10, %s" % (sr(sEnd), sr(sMag))); e("s_lshr_b32 %s, %s, 9" % (sr(sEnd), sr(sEnd)))
    L.append(".p2align 8"); L.append(".type k2_main_kernel,@function"); lab("k2_main_kernel")
    e("s_load_dwordx2 s[8:9], s[0:1], 88")
    e("s_load_dwordx2 s[4:5], s[0:1], 0")
    e("s_load_dwordx2 s[6:7], s[0:1], 72")
    e("s_cmp_gt_u32 s2, 255")
    e("s_cbranch_scc1 K2_END")
    e("s_setprio 3")
    for _ in range(DLY2): e("s_sleep 36")
    stamp()
    t0, t1, t2, t3, t4, t5, t6, t7 = [r.G[0] + i for i in range(8)]
    e("v_lshrrev_b32 %s, 6, v0" % vr(t0))
    e("v_and_b32 %s, 63, v0" % vr(lane))
    e("v_readfirstlane_b32 %s, %s" % (sr(sW), vr(t0)))
    e("s_and_b32 s10, s2, 7"); e("s_lshl_b32 s10, s10, 5"); e("s_lshr_b32 s11, s2, 3"); e("s_add_u32 %s, s10, s11" % sr(sBin))
    e("v_lshrrev_b32 %s, 1, %s" % (vr(t0), vr(lane)))
    e("v_lshlrev_b32 %s, 15, %s" % (vr(t0), vr(t0)))
    e("v_and_b32 %s, 1, %s" % (vr(t1), vr(lane)))
    e("v_lshl_or_b32 %s, %s, 4, %s" % (vr(t0), vr(t1), vr(t0)))
    e("s_lshr_b32 s11, %s, 2" % sr(sW)); e("s_lshl_b32 s11, s11, 20")
    e("s_and_b32 s10, %s, 3" % sr(sW)); e("s_lshl_b32 s10, s10, 13"); e("s_add_u32 s11, s11, s10")
    e("s_lshl_b32 s10, %s, 5" % sr(sBin)); e("s_add_u32 s11, s11, s10")
    e("v_add_u32 %s, s11, %s" % (vr(t0), vr(t0)))
    e("s_lshl_b32 %s, %s, 13" % (sr(sREC), sr(sW)))
    e("s_add_u32 %s, %s, %d" % (sr(sXB), sr(sREC), XBB))
    e("s_add_u32 %s, %s, %d" % (sr(sREC), sr(sREC), RECB))
    e("s_add_u32 m0, %s, 3072" % sr(sXB))
    e("s_lshl_b32 %s, %s, 3" % (sr(sT), sr(sBin))); e("s_add_u32 %s, %s, %s" % (sr(sT), sr(sT), sr(sW)))
    e("s_mov_b32 %s, 0x%x" % (sr(sMag), MAG))
    tile_range()
    e("v_lshlrev_b32 %s, 4, %s" % (vr(t1), vr(lane)))
    e("v_lshrrev_b32 %s, 3, %s" % (vr(t2), vr(lane)))
    e("v_xor_b32 %s, %s, %s" % (vr(t3), vr(t2), vr(lane)))
    e("v_and_b32 %s, 7, %s" % (vr(t3), vr(t3)))
    e("v_lshlrev_b32 %s, 4, %s" % (vr(t3), vr(t3)))
    e("v_subrev_u32 %s, %s, %s" % (vr(t2), sr(sStart), vr(t2)))
    e("v_and_b32 %s, 15, %s" % (vr(t2), vr(t2)))
    e("v_xor_b32 %s, 8, %s" % (vr(t4), vr(t2)))
    e("v_add_u32 %s, %s, %s" % (vr(t2), sr(sStart), vr(t2)))
    e("v_add_u32 %s, %s, %s" % (vr(t4), sr(sStart), vr(t4)))
    e("v_lshl_add_u32 %s, %s, 7, %s" % (vr(t2), vr(t2), vr(t3)))
    e("v_lshl_add_u32 %s, %s, 7, %s" % (vr(t4), vr(t4), vr(t3)))
    e("s_waitcnt lgkmcnt(0)")
    srd(SOFS, 8, NC * 8192, "0x%x" % WS_OFF)
    e("buffer_load_dwordx4 %s, %s, 0 offen lds" % (vr(t0), sr(SOFS, 4)))
    e("s_add_u32 m0, %s, 4096" % sr(sXB))
    srd(SWF, 8, 32768 + 512, "0x%x" % WS_WFR)
    e("s_lshl_b32 s10, %s, 12" % sr(sW))
    for k in range(4):
        e("buffer_load_dwordx4 %s, %s, s10 offen offset:%d lds" % (vr(t1), sr(SWF, 4), k * 1024))
    e("s_lshl_b32 s10, %s, 11" % sr(sW))
    e("s_add_u32 m0, s10, %d" % XTB)
    srd(SX, 4, N_NODES * 128)
    e("buffer_load_dwordx4 %s, %s, 0 offen lds" % (vr(t2), sr(SX, 4)))
    e("s_add_u32 m0, s10, %d" % (XTB + 1024))
    e("v_add_u32 %s, 32768, %s" % (vr(t5), vr(t1)))
    e("buffer_load_dwordx4 %s, %s, 0 offen lds" % (vr(t4), sr(SX, 4)))
    WC = r.U
    e("buffer_load_dwordx4 %s, %s, %s, 0 offen" % (vr(WC, 4), vr(t5), sr(SWF, 4)))
    srd(SXI, 4, N_NODES, stride=128, sub="3072")
    srd(SRC, 8, 256 * CH, stride=16)
    e("s_mov_b32 %s, 1024" % sr(sINC)); e("s_mov_b32 %s, 1024" % sr(sINC + 1))
    e("s_mov_b32 %s, 3072" % sr(sSO)); e("s_mov_b32 %s, 2048" % sr(sSO + 1)); e("s_mov_b32 %s, 1024" % sr(sSO + 2))
    H = t3
    e("v_lshrrev_b32 %s, 5, %s" % (vr(H), vr(lane)))
    e("v_mov_b32 %s, 0x%x" % (vr(t4), (1 << 4) | (2 << 8) | (1 << 14) | (2 << 18)))
    e("v_lshlrev_b32 %s, 1, %s" % (vr(t5), vr(lane)))
    e("v_bfe_u32 %s, %s, %s, 2" % (vr(t4), vr(t4), vr(t5)))
    e("v_mul_u32_u24 %s, 0x8001, %s" % (vr(t4), vr(t4)))
    e("v_and_b32 %s, 0x10001, %s" % (vr(t4), vr(t4)))
    e("v_mul_u32_u24 %s, 0x3f80, %s" % (vr(t4), vr(t4)))
    e("v_lshlrev_b32 %s, 2, %s" % (vr(t5), vr(lane)))
    e("s_mov_b64 exec, 0x3ff")
    e("ds_write_b32 %s, %s offset:%d" % (vr(t5), vr(t4), TS))
    e("s_mov_b64 exec, -1")
    e("v_and_b32 %s, 3, %s" % (vr(c0), vr(lane)))
    e("v_bfe_u32 %s, %s, 4, 1" % (vr(c1), vr(lane)))
    e("v_mul_u32_u24 %s, 0x5555, %s" % (vr(r.SI), vr(c1)))
    e("v_or_b32 %s, 0x8888, %s" % (vr(r.SI), vr(r.SI)))
    e("v_xor_b32 %s, %s, %s" % (vr(c2), vr(c0), vr(H)))
    e("v_lshl_or_b32 %s, %s, 2, %s" % (vr(c2), vr(c1), vr(c2)))
    e("v_lshlrev_b32 %s, 4, %s" % (vr(r.XI + 1), vr(c2)))
    e("v_mov_b32 %s, %s" % (vr(r.XI + 3), vr(r.XI + 1)))
    e("v_xor_b32 %s, 32, %s" % (vr(r.XI + 5), vr(r.XI + 1)))
    e("v_mov_b32 %s, %s" % (vr(r.XI + 7), vr(r.XI + 5)))
    e("v_bfe_u32 %s, %s, 3, 2" % (vr(c2), vr(lane)))
    e("v_xor_b32 %s, %s, %s" % (vr(c2), vr(c2), vr(H)))
    e("v_lshlrev_b32 %s, 4, %s" % (vr(r.XA0), vr(c2)))
    e("v_lshl_or_b32 %s, %s, 6, %s" % (vr(r.XA0), vr(c0), vr(r.XA0)))
    e("v_bfe_u32 %s, %s, 3, 1" % (vr(c2), vr(lane)))
    e("v_lshl_or_b32 %s, %s, 9, %s" % (vr(r.XA0), vr(c2), vr(r.XA0)))
    e("v_bfe_u32 %s, %s, 2, 1" % (vr(t4), vr(lane)))
    e("v_lshl_or_b32 %s, %s, 10, %s" % (vr(r.XA0), vr(t4), vr(r.XA0)))
    e("v_lshl_or_b32 %s, %s, 11, %s" % (vr(r.XA0), vr(c1), vr(r.XA0)))
    e("v_xor_b32 %s, 32, %s" % (vr(r.XA1), vr(r.XA0)))
    e("v_add_u32 %s, %s, %s" % (vr(r.XA0), sr(sXB), vr(r.XA0)))
    e("v_add_u32 %s, %s, %s" % (vr(r.XA1), sr(sXB), vr(r.XA1)))
    FA, FU = r.AT + 14, r.AT + 15
    e("v_lshl_or_b32 %s, %s, 1, %s" % (vr(c2), vr(t4), vr(c2)))
    e("v_lshl_or_b32 %s, %s, 1, %s" % (vr(c2), vr(c2), vr(c1)))
    e("v_mad_u32_u24 %s, %s, 3, %s" % (vr(c2), vr(c2), vr(c0)))
    e("v_add_u32 %s, 9, %s" % (vr(c2), vr(c2)))
    e("v_and_b32 %s, 15, %s" % (vr(c2), vr(c2)))
    for dst, src in ((FA, c2), (FU, None)):
        if src is None:
            e("v_and_b32 %s, 15, %s" % (vr(c2), vr(lane)))
        e("v_xor_b32 %s, %s, %s" % (vr(t4), vr(c2), vr(H)))
        e("v_and_b32 %s, 7, %s" % (vr(t4), vr(t4)))
        e("v_lshlrev_b32 %s, 4, %s" % (vr(t4), vr(t4)))
        e("v_lshl_or_b32 %s, %s, 7, %s" % (vr(dst), vr(c2), vr(t4)))
    e("v_lshlrev_b32 %s, 4, %s" % (vr(t4), vr(H)))
    e("v_mov_b32 %s, 0x3f80" % vr(t5))
    e("v_lshlrev_b32 %s, %s, %s" % (vr(r.T + 1), vr(t4), vr(t5)))
    e("v_mov_b32 %s, %s" % (vr(r.T + 2), vr(r.T + 1)))
    e("v_mov_b32 %s, %s" % (vr(r.T + 3), vr(r.T + 1)))
    EN = r.G[1]
    e("v_and_b32 %s, 31, %s" % (vr(t5), vr(lane)))
    e("v_lshlrev_b32 %s, 5, %s" % (vr(t5), vr(t5)))
    e("v_lshl_or_b32 %s, %s, 15, %s" % (vr(t5), vr(H), vr(t5)))
    e("s_lshl_b32 s10, %s, 2" % sr(sW)); e("s_add_u32 s10, s10, %d" % (XBB + 3072))
    e("v_add_u32 %s, s10, %s" % (vr(t5), vr(t5)))
    e("s_mov_b32 %s, 0" % sr(sW0))
    e("s_mov_b32 %s, 1" % sr(sFirst))
    Z = r.G[1] + 4; LA = r.G[1] + 8; WA_ = r.G[1] + 9
    P = r.V[1]; D = r.V[1] + 4
    TOT = r.V[1] + 8; INC = r.V[1] + 9; CB = r.V[1] + 10; PREV = r.V[1] + 11; JB = r.V[1] + 12; C512 = r.V[1] + 13
    M = r.S
    def expand_pre():
        for i in range(4): e("v_mov_b32 %s, 0" % vr(Z + i))
        e("v_lshl_add_u32 %s, %s, 5, %s" % (vr(LA), vr(lane), sr(sXB)))
        e("ds_write_b128 %s, %s" % (vr(LA), vr(Z, 4)))
        e("ds_write_b128 %s, %s offset:16" % (vr(LA), vr(Z, 4)))
        e("v_mul_u32_u24 %s, %d, %s" % (vr(CB), 4 * CH, vr(lane)))
        e("v_lshl_add_u32 %s, %s, 3, %s" % (vr(JB), vr(lane), sr(sW0)))
        e("v_mov_b32 %s, 512" % vr(C512))
        e("v_mov_b32 %s, 0" % vr(PREV))
        e("v_and_b32 %s, 7, %s" % (vr(WA_), vr(lane)))
        e("v_lshlrev_b32 %s, 4, %s" % (vr(WA_), vr(WA_)))
        e("v_lshl_or_b32 %s, %s, 7, %s" % (vr(WA_), vr(lane), vr(WA_)))
        e("v_add_u32 %s, %s, %s" % (vr(WA_), sr(sREC), vr(WA_)))
        e("v_lshl_add_u32 %s, %s, 4, %s" % (vr(r.PL), vr(lane), sr(sREC)))
    expand_pre()
    stamp()
    e("s_waitcnt vmcnt(7) lgkmcnt(0)")
    e("s_barrier")
    stamp()
    for i in range(4):
        e("ds_read_b32 %s, %s offset:%d" % (vr(EN + i), vr(t5), i * 8192))
    e("s_waitcnt lgkmcnt(0)")
    lab("K2_EXPAND")
    sd = "dst_sel:DWORD dst_unused:UNUSED_PAD src0_sel:WORD_%d src1_sel:DWORD"
    e("v_lshrrev_b32 %s, 16, %s" % (vr(P + 1), vr(EN)))
    e("v_add_u32_sdwa %s, %s, %s %s" % (vr(P + 2), vr(EN + 1), vr(P + 1), sd % 1))
    e("v_add_u32_sdwa %s, %s, %s %s" % (vr(P + 3), vr(EN + 2), vr(P + 2), sd % 1))
    e("v_add_u32_sdwa %s, %s, %s %s" % (vr(INC), vr(EN + 3), vr(P + 3), sd % 1))
    fill = ["v_add_u32 %s, %s, %s" % (vr(TOT), sr(sW0), vr(INC))]
    fill += ["v_add_u32_sdwa %s, %s, %s %s" % (vr(D + i), vr(EN + i), vr(CB), sd % 0) for i in range(4)]
    fill += ["v_add_u32 %s, %d, %s" % (vr(D + i), i * CH, vr(D + i)) for i in range(1, 4)]
    fill += ["v_subrev_u32 %s, %s, %s" % (vr(D + i), sr(sW0), vr(D + i)) for i in range(4)]
    scan64("v_add_u32", INC, fill)
    e("v_sub_u32 %s, %s, %s" % (vr(P), vr(INC), vr(TOT)))
    e("v_readlane_b32 %s, %s, 63" % (sr(sTot), vr(INC)))
    for i in range(1, 4):
        e("v_add_u32 %s, %s, %s" % (vr(P + i), vr(P), vr(P + i)))
    for i in range(4):
        e("v_sub_u32 %s, %s, %s" % (vr(D + i), vr(D + i), vr(P + i)))
        e("v_med3_i32 %s, %s, 0, %s" % (vr(P + i), vr(P + i), vr(C512)))
        e("v_lshl_add_u32 %s, %s, 2, %s" % (vr(P + i), vr(P + i), sr(sXB)))
        e("ds_max_u32 %s, %s" % (vr(P + i), vr(D + i)))
    e("ds_read_b128 %s, %s" % (vr(M, 4), vr(LA)))
    e("ds_read_b128 %s, %s offset:16" % (vr(M + 4, 4), vr(LA)))
    e("s_lshl_b32 s10, %s, 3" % sr(sTot)); e("s_or_b32 s10, s10, %s" % sr(sW)); e("s_lshl_b32 s11, %s, 2" % sr(sW))
    e("v_mov_b32 %s, s10" % vr(TOT)); e("v_mov_b32 %s, s11" % vr(INC))
    e("s_mov_b64 exec, 1")
    e("ds_write_b32 %s, %s offset:%d" % (vr(INC), vr(TOT), TOTA))
    e("s_mov_b64 exec, -1")
    e("s_waitcnt lgkmcnt(1)")
    e("v_max3_u32 %s, %s, %s, %s" % (vr(INC), vr(M), vr(M + 1), vr(M + 2)))
    e("v_max3_u32 %s, %s, %s, %s" % (vr(INC), vr(INC), vr(M + 3), vr(M + 4)))
    e("v_max3_u32 %s, %s, %s, %s" % (vr(INC), vr(INC), vr(M + 5), vr(M + 6)))
    e("v_max_u32 %s, %s, %s" % (vr(INC), vr(INC), vr(M + 7)))
    AD = r.X
    fill = ["v_xor_b32 %s, %d, %s" % (vr(AD + k), 16 * k, vr(WA_)) for k in range(1, 8)]
    scan64("v_max_u32", INC, fill)
    e("s_nop 1")
    e("v_mov_b32_dpp %s, %s wave_shr:1 row_mask:0xf bank_mask:0xf" % (vr(PREV), vr(INC)))
    for k in range(8):
        e("v_max_u32 %s, %s, %s" % (vr(PREV), vr(PREV), vr(M + k)))
        e("v_add3_u32 %s, %s, %s, %d" % (vr(M + k), vr(PREV), vr(JB), k))
        e("ds_write_b32 %s, %s offset:12" % (vr(WA_ if k == 0 else AD + k), vr(M + k)))
    e("ds_read_b32 %s, %s offset:12" % (vr(c0), vr(r.PL)))
    e("ds_read_b32 %s, %s offset:%d" % (vr(c1), vr(r.PL), 1024 + 12))
    e("s_mov_b32 m0, %s" % sr(sREC))
    e("s_waitcnt lgkmcnt(1)")
    e("buffer_load_dwordx4 %s, %s, 0 idxen lds" % (vr(c0), sr(SRC, 4)))
    e("s_add_u32 m0, %s, 1024" % sr(sREC))
    e("s_waitcnt lgkmcnt(0)")
    e("buffer_load_dwordx4 %s, %s, 0 idxen lds" % (vr(c1), sr(SRC, 4)))
    e("s_cmp_eq_u32 %s, 0" % sr(sFirst))
    e("s_cbranch_scc1 K2_NOW")
    stamp()
    e("v_lshrrev_b32 %s, 3, %s" % (vr(c0), vr(lane)))
    e("v_lshlrev_b32 %s, 2, %s" % (vr(c0), vr(c0)))
    e("v_and_b32 %s, 7, %s" % (vr(c1), vr(lane)))
    e("v_lshlrev_b32 %s, 3, %s" % (vr(r.RI), vr(c1)))
    e("v_lshlrev_b32 %s, 2, %s" % (vr(c1), vr(c1)))
    e("v_lshlrev_b32 %s, 4, %s" % (vr(c2), vr(lane)))
    e("v_add_u32 %s, %d, %s" % (vr(c2), XBB + 4096, vr(c2)))
    e("s_sub_u32 s10, 7, %s" % sr(sW)); e("s_sub_u32 s11, %s, 4" % sr(sW))
    e("s_cmp_lt_u32 %s, 4" % sr(sW)); e("s_cselect_b32 s11, s10, s11")
    e("s_waitcnt vmcnt(2)")
    e("s_barrier")
    stamp()
    e("ds_read_b32 %s, %s offset:%d" % (vr(c0), vr(c0), TOTA))
    e("ds_read_b32 %s, %s offset:%d" % (vr(c1), vr(c1), TOTA))
    WA = r.G[0]; WU = r.G[1]
    assert r.V[0] == r.G[0] + 16 and r.V[1] == r.G[1] + 16
    wr = []
    for m, base in enumerate([WA, WU, r.WB, r.WV]):
        for u in range(8):
            uu = m * 8 + u
            wr.append("ds_read_b128 %s, %s offset:%d" % (vr(base + 4 * u, 4), vr(c2), (uu >> 2) * 8192 + (uu & 3) * 1024))
    for s in wr[:8]: e(s)
    e("s_waitcnt lgkmcnt(8)")
    if PAIR:
        e("v_cmp_lt_u32 vcc, %s, %s" % (vr(c1), vr(c0)))
        e(wr[8]); e(wr[9])
        e("v_lshrrev_b64 %s, %s, vcc" % (vr(r.SO, 2), vr(r.RI)))
        e("v_and_b32 %s, 0xff, %s" % (vr(r.SO), vr(r.SO)))
        e("v_bcnt_u32_b32 %s, %s, 0" % (vr(r.SO), vr(r.SO)))
        e("v_cmp_eq_u32 vcc, s11, %s" % vr(r.SO))
        e("s_ff1_i32_b64 s10, vcc")
        e(wr[10]); e(wr[11])
        e("v_readlane_b32 %s, %s, s10" % (sr(sTot), vr(c1)))
        e("s_lshr_b32 %s, %s, 3" % (sr(sTot), sr(sTot)))
    else:
        for s in wr[8:12]: e(s)
        e("s_mov_b32 s10, %s" % sr(sW))
    e("s_lshl_b32 %s, s10, 11" % sr(sXT)); e("s_add_u32 %s, %s, %d" % (sr(sXT), sr(sXT), XTB))
    e("s_lshl_b32 %s, s10, 13" % sr(sREC)); e("s_add_u32 %s, %s, %d" % (sr(sREC), sr(sREC), RECB))
    e("s_lshl_b32 %s, %s, 3" % (sr(sT), sr(sBin))); e("s_add_u32 %s, %s, s10" % (sr(sT), sr(sT)))
    tile_range()
    def xtile(mapreg):
        e("v_add_u32 %s, %s, %s" % (vr(c0), sr(sXT), vr(mapreg)))
        for s in range(4):
            if s: e("v_xor_b32 %s, %d, %s" % (vr(c1), 32 * s, vr(c0)))
            e("ds_read_b128 %s, %s" % (vr(r.X + 4 * s, 4), vr(c1 if s else c0)))
    xtile(FA)
    for s in wr[12:]: e(s)
    e("s_min_u32 %s, %s, %d" % (sr(sEnd), sr(sEnd), N_NODES))
    e("s_sub_u32 s10, %s, %s" % (sr(sEnd), sr(sStart))); e("s_lshl_b32 s10, s10, 7")
    e("s_lshl_b32 s11, %s, 7" % sr(sStart))
    srd(SOUT, 6, "s10", "s11")
    e("v_lshl_add_u32 %s, %s, 4, %s" % (vr(r.PL), vr(lane), sr(sREC)))
    lab("K2_NOW")
    e("v_bfe_u32 %s, %s, 2, 2" % (vr(c0), vr(lane)))
    e("v_lshrrev_b32 %s, 5, %s" % (vr(c1), vr(lane)))
    e("v_lshl_or_b32 %s, %s, 3, %s" % (vr(c0), vr(c1), vr(c0)))
    e("v_lshl_add_u32 %s, %s, 4, %s" % (vr(r.PS), vr(c0), sr(sREC)))
    e("v_and_b32 %s, 3, %s" % (vr(c0), vr(lane)))
    e("v_add_u32 %s, %s, %s" % (vr(r.PC), vr(c0), vr(r.PS)))
    e("v_and_b32 %s, 31, %s" % (vr(c0), vr(lane)))
    e("v_lshl_add_u32 %s, %s, 4, %s" % (vr(r.PT), vr(c0), sr(sREC)))
    e("v_lshl_add_u32 %s, %s, 2, %s" % (vr(r.PE), vr(c1), vr(r.PT)))
    e("s_sub_u32 s10, %s, %s" % (sr(sTot), sr(sW0)))
    e("s_min_u32 s10, s10, 512")
    e("s_add_u32 s10, s10, 31"); e("s_lshr_b32 s10, s10, 5")
    e("s_max_u32 s10, s10, 1")
    e("s_sub_u32 %s, s10, 1" % sr(sNG))
    e("s_add_u32 %s, %s, 3072" % (sr(sRD), sr(sREC)))
    e("s_add_u32 %s, %s, 8192" % (sr(sRE), sr(sREC)))
    stamp()
    e("s_waitcnt vmcnt(0) lgkmcnt(0)")
    e("s_cmp_eq_u32 %s, 0" % sr(sFirst))
    e("s_cbranch_scc1 K2_NOB")
    e("s_barrier")
    lab("K2_NOB")
    stamp()
    def xidx(g, t):
        return "ds_read_u16 %s, %s offset:%d" % (vr(r.XI + 2 * t), vr(r.PS), g * 512 + SOFF[t] + 8)
    def xm0(buf):
        return "s_add_u32 m0, %s, %d" % (sr(sXB), buf * 4096)
    def xdma(t):
        return "buffer_load_dwordx4 %s, %s, %s idxen offen offset:%d lds" % (vr(r.XI + 2 * t, 2), sr(SXI, 4), sr(sSO + t) if t < 3 else "0", t * 1024)
    def xread(buf, k):
        return "ds_read_b128 %s, %s offset:%d" % (vr(r.X + 4 * k, 4), vr(r.XA1 if k & 1 else r.XA0), buf * 4096 + (k >> 1) * 256)
    def t0read(g): return "ds_read_b32 %s, %s offset:%d" % (vr(r.T), vr(r.PE), g * 512)
    def tiread(g): return "ds_read_b32 %s, %s offset:%d" % (vr(r.TI), vr(r.PT), g * 512 + 8)
    def soread(g, t): return "ds_read_u8 %s, %s offset:%d" % (vr(r.SO + t), vr(r.PC), g * 512 + SOFF[t] + 12)
    def trread(t): return "ds_read_b64_tr_b16 %s, %s offset:%d" % (vr(r.S + 2 * t, 2), vr(r.SO + t), TS)
    def riread(blk): return "ds_read_b32 %s, %s offset:%d" % (vr(r.RI), vr(r.PL), blk * 1024 + 12)
    rdma = "buffer_load_dwordx4 %s, %s, 0 idxen lds" % (vr(r.RI), sr(SRC, 4))
    for t in range(4): e(xidx(0, t))
    X2 = r.S
    for t in range(4): e("ds_read_u16 %s, %s offset:%d" % (vr(X2 + 2 * t), vr(r.PS), 512 + SOFF[t] + 8))
    e(riread(2))
    for t in range(4): e("v_mov_b32 %s, %s" % (vr(X2 + 2 * t + 1), vr(r.XI + 2 * t + 1)))
    e(xm0(0))
    e("s_waitcnt lgkmcnt(5)")
    for t in range(4): e(xdma(t))
    e(xm0(1))
    e("s_waitcnt lgkmcnt(1)")
    for t in range(4): e(xdma(t).replace(vr(r.XI + 2 * t, 2), vr(X2 + 2 * t, 2)))
    e("s_add_u32 m0, %s, 2048" % sr(sREC))
    e("s_waitcnt lgkmcnt(0)")
    e(rdma)
    for t in range(4): e(soread(0, t))
    e(t0read(0)); e(tiread(0))
    for t in range(4): e(xidx(2, t))
    e(riread(3))
    e("s_cmp_eq_u32 %s, 0" % sr(sFirst))
    e("s_cbranch_scc1 K2_NOW2")
    e("s_mov_b32 s10, 0x%x" % NEGLOG2E)
    for f in range(2):
        for s in range(4):
            e(mfma(r.ACC[f], r.X + 4 * s, WA + 16 * f + 4 * s, None if s == 0 else r.ACC[f]))
    xtile(FU)
    e("s_nop 2")
    for f in range(2):
        for i in range(16):
            if i & 3: e("v_mul_f32 %s, s10, %s" % (vr(r.ACC[f] + i), vr(r.ACC[f] + i)))
        if f == 0:
            e("s_waitcnt lgkmcnt(0)")
            for ff in range(2):
                for s in range(4):
                    e(mfma(WA + 16 * ff, r.X + 4 * s, WU + 16 * ff + 4 * s, None if s == 0 else WA + 16 * ff))
    for f in range(2):
        for i in range(8):
            e("v_cvt_pk_bf16_f32 %s, %s, %s" % (vr(r.AT + 8 * f + i), vr(r.ACC[f] + 2 * i) if i & 1 else "0", vr(r.ACC[f] + 2 * i + 1)))
    e("s_mov_b32 exec_hi, 0")
    for f in range(2):
        e("v_mov_b32 %s, %s" % (vr(r.AT + 8 * f), vr(WC + 2 * f)))
        e("v_mov_b32 %s, %s" % (vr(r.AT + 8 * f + 4), vr(WC + 2 * f + 1)))
    e("s_mov_b64 exec, -1")
    for f in range(2):
        for i in range(16):
            e("v_mov_b32 %s, 0" % vr(r.ACC[f] + i))
    for f in range(2):
        for i in range(8):
            e("v_mov_b32 %s, %s" % (vr(r.U + 8 * f + i), vr(WA + 16 * f + i)))
    lab("K2_NOW2")
    e("s_waitcnt lgkmcnt(0)")
    e(trread(0)); e(trread(1))
    for i in range(4): e("v_mov_b32 %s, 0" % vr(r.S + 4 + i))
    for i in range(8):
        e("v_mov_b32 %s, 0" % vr(r.V[1] + 8 + i))
    for i in range(13, 16):
        e("v_mov_b32 %s, 1.0" % vr(r.G[1] + i))
    stamp()
    e("s_waitcnt vmcnt(5)")
    stamp()
    for k in range(4): e(xread(0, k))
    e(xm0(0))
    for s in range(4):
        e("s_waitcnt lgkmcnt(%d)" % (3 - s))
        e(mfma(r.G[0], r.X + 4 * s, r.WB + 4 * s, None if s == 0 else r.G[0]))
    e(smf(r.G[0], r.T, r.AT, r.TI, 1))
    for s in range(4):
        e(mfma(r.V[0], r.X + 4 * s, r.WV + 4 * s, None if s == 0 else r.V[0]))
        e(xdma(s))
    e("s_setprio 1")
    e("s_nop 4")
    stamp()
    if STAMP: e("s_memrealtime s[92:93]"); e("s_waitcnt lgkmcnt(0)"); e("s_add_u32 s63, %s, 1" % sr(sNG))

    def valu_slot(a, i):
        out = []
        def reg(base, idx):
            return (base[a] + idx) if idx >= 0 else (base[1 - a] + 16 + idx)
        if i < 16: out.append("v_exp_f32 %s, %s" % (vr(reg(r.G, i)), vr(reg(r.G, i))))
        if i - 1 < 16: out.append("v_add_f32 %s, 1.0, %s" % (vr(reg(r.G, i - 1)), vr(reg(r.G, i - 1))))
        if i - 2 < 16: out.append("v_rcp_f32 %s, %s" % (vr(reg(r.G, i - 2)), vr(reg(r.G, i - 2))))
        out.append("v_mul_f32 %s, %s, %s" % (vr(reg(r.V, i - 3)), vr(reg(r.G, i - 3)), vr(reg(r.V, i - 3))))
        out.append("v_cvt_pk_bf16_f32 %s, %s, %s" % (vr(reg(r.V, i - 3)), vr(reg(r.G, i - 3)), vr(reg(r.V, i - 3))))
        return out
    def I(text, lds=None, need=()):
        return dict(text=text, lds=lds, need=list(need))
    POS = [(3, 2), (4, 3), (5, 4), (7, 0), (8, 1), (9, 2), (10, 4), (12, 0), (13, 2), (14, 3), (15, 4)]
    def phase(a, g):
        b = 1 - a
        xn = ['X%d' % k for k in range(4)]
        mm = [I(smf(r.ACC[b], r.S + 4, r.V[b] + 8, r.SI), need=['S3'])]
        mm += [I(mfma(r.G[b], r.X + 4 * k, r.WB + 16 * b + 4 * k, None if k == 0 else r.G[b]), need=[xn[k]]) for k in range(4)]
        mm += [I(smf(r.G[b], r.T, r.AT + 8 * b, r.TI, 1), need=['T0', 'TI'])]
        vv = [I(mfma(r.V[b], r.X + 4 * k, r.WV + 16 * b + 4 * k, None if k == 0 else r.V[b])) for k in range(4)]
        mm += [vv[0], I(smf(r.ACC[a], r.S, r.V[a], r.SI), need=['S1'])] + vv[1:]
        aux = [[] for _ in range(11)]
        nb = (g + 1) & 1
        if a == 0:
            aux[0] += [I(trread(2), lds='S2', need=['SO3'])]
            aux[1] += [I(trread(3), lds='S3')]
            if g == 0:
                aux[1].insert(0, I("s_mov_b32 m0, %s" % sr(sRD)))
                aux[2] += [I(rdma, need=['RI'])]
                aux[3] += [I("s_add_u32 %s, %s, 1024" % (sr(sRD), sr(sRD)))]
                aux[4] += [I("s_cmp_lt_u32 %s, %s" % (sr(sRD), sr(sRE)))]
                aux[5] += [I("s_cselect_b32 %s, %s, %d" % (sr(sRD), sr(sRD), DUMMY))]
                aux[3] += [I(xidx(g + 3, 0), lds='XI0'), I(xidx(g + 3, 1), lds='XI1')]
            else:
                aux[2] += [I(xidx(g + 3, 0), lds='XI0')]
                aux[3] += [I(xidx(g + 3, 1), lds='XI1')]
            aux[4] += [I(xidx(g + 3, 2), lds='XI2'), I(xidx(g + 3, 3), lds='XI3')]
            aux[5] += [I(t0read(g + 1), lds='T0')]
            aux[6] += [I("s_waitcnt vmcnt(5)", need=['S3']), I(xread(nb, 0), lds='X0')]
            aux[7] += [I(tiread(g + 1), lds='TI')]
            for k in range(1, 4): aux[7 + k] += [I(xread(nb, k), lds=xn[k])]
        else:
            aux[0] += [I(soread(g + 1, 0), lds='SO0', need=['X3'])]
            aux[1] += [I(soread(g + 1, 1), lds='SO1')]
            aux[2] += [I(soread(g + 1, 2), lds='SO2')]
            aux[3] += [I(xm0(nb)), I(soread(g + 1, 3), lds='SO3')]
            aux[4] += [I(xdma(0), need=['XI3'])]
            aux[5] += [I(xdma(1))]
            aux[6] += [I(xdma(2))]
            aux[7] += [I(trread(0), lds='S0', need=['SO3'])]
            aux[8] += [I(trread(1), lds='S1')]
            aux[9] += [I(xdma(3))]
            aux[10] += [I("s_sub_u32 %s, %s, 1" % (sr(sNG), sr(sNG)))]
            if g == 1:
                aux[10] += [I(riread(3), lds='RI')]
        ex = {}
        for k in range(11): ex[POS[k]] = [mm[k]] + aux[k]
        if a == 1 and g == 1:
            ex.setdefault((8, 0), []).extend([I("v_lshl_add_u64 %s, %s, 0, %s" % (vr(r.PS, 2), vr(r.PS, 2), sr(sINC, 2))),
                                              I("v_lshl_add_u64 %s, %s, 0, %s" % (vr(r.PT, 2), vr(r.PT, 2), sr(sINC, 2)))])
        if a == 0 and g == 0:
            ex.setdefault((1, 0), []).append(I("v_add_u32 %s, 1024, %s" % (vr(r.PL), vr(r.PL))))
        if PRIO and a == 1:
            ex[POS[0]].insert(1, I("s_setprio 0"))
            ex[POS[PRIO]].insert(1, I("s_setprio 1"))
        out = []
        for i in range(16):
            for p, t in enumerate(valu_slot(a, i)):
                out.extend(ex.pop((i, p), []))
                out.append(I(t))
        assert not ex, ex
        return out
    body = phase(0, 0) + phase(1, 0) + [I("s_cbranch_scc1 K2_DRAIN")] + phase(0, 1) + phase(1, 1) + [I("s_cbranch_scc0 K2_LOOP")]
    issued = []; done = 0
    for pas in range(2):
        if pas == 1: lab("K2_LOOP")
        for it in body:
            n = None
            for tag in it['need']:
                idxs = [k for k, t in enumerate(issued) if t == tag]
                if not idxs: continue
                k = idxs[-1]
                if k >= done:
                    n = len(issued) - 1 - k
                    done = k + 1
            tx = it['text']
            if n is not None:
                assert n <= 15
                if tx.startswith("s_waitcnt"): tx += " lgkmcnt(%d)" % n
                elif pas == 1: e("s_waitcnt lgkmcnt(%d)" % n)
            if pas == 1:
                if ABL == 'nomfma' and 'mfma' in tx: tx = "s_nop 0"
                e(tx)
            if it['lds']: issued.append(it['lds'])
    lab("K2_DRAIN")
    stamp()
    if STAMP: e("s_memrealtime s[94:95]")
    e("s_setprio 2")
    XR = r.X; EA = r.X + 8
    e("s_waitcnt lgkmcnt(0)")
    pre = []
    pre.append("v_lshrrev_b32 %s, 5, %s" % (vr(c0), vr(lane)))
    pre.append("v_and_b32 %s, 31, %s" % (vr(c1), vr(lane)))
    pre.append("v_lshlrev_b32 %s, 2, %s" % (vr(c1), vr(c1)))
    pre.append("v_mul_u32_u24 %s, 0x240, %s" % (vr(c2), vr(c0)))
    pre.append("v_xor_b32 %s, %s, %s" % (vr(c2), vr(c2), vr(c1)))
    pre.append("v_add_u32 %s, %s, %s" % (vr(c2), sr(sXT), vr(c2)))
    for i in range(16, 19):
        for t in valu_slot(1, i): e(t)
        e(pre.pop(0)); e(pre.pop(0))
    e(smf(r.ACC[1], r.S + 4, r.V[1] + 8, r.SI))
    e("s_add_u32 %s, %s, 512" % (sr(sW0), sr(sW0)))
    e("s_cmp_lt_u32 %s, %s" % (sr(sW0), sr(sTot)))
    e("s_cbranch_scc1 K2_MORE")
    for q in range(4):
        if q: e("v_xor_b32 %s, %d, %s" % (vr(EA), 16 * q, vr(c2)))
        e("ds_read_b32 %s, %s offset:%d" % (vr(XR + q), vr(EA if q else c2), q * 128))
        e("ds_read_b32 %s, %s offset:%d" % (vr(XR + q + 4), vr(EA if q else c2), q * 128 + 1024))
    e("v_lshlrev_b32 %s, 2, %s" % (vr(c0), vr(c0)))
    e("v_subrev_u32 %s, %s, %s" % (vr(c0), sr(sStart), vr(c0)))
    e("v_lshl_add_u32 %s, %s, 7, %s" % (vr(c0), vr(c0), vr(c1)))
    for q in range(8):
        e("v_add_u32 %s, %d, %s" % (vr(EA + q), (8 * (q >> 2) + (q & 3)) * 128, vr(c0)))
        e("v_and_b32 %s, 0x7ff, %s" % (vr(EA + q), vr(EA + q)))
    e("s_mov_b32 s10, 0x358637bd")
    for f in range(2):
        for q in range(8):
            e("v_add_f32 %s, s10, %s" % (vr(r.ACC[f] + q), vr(r.ACC[f] + q)))
        for q in range(8):
            e("v_rcp_f32 %s, %s" % (vr(r.ACC[f] + q), vr(r.ACC[f] + q)))
    e("s_waitcnt lgkmcnt(0)")
    for q in range(8):
        for f in range(2):
            u = r.U + 8 * f + q
            e("v_fmac_f32 %s, %s, %s" % (vr(u), vr(r.ACC[f] + q), vr(r.ACC[f] + 8 + q)))
            if f == 0: e("v_lshlrev_b32 %s, 16, %s" % (vr(c1), vr(XR + q)))
            else: e("v_and_b32 %s, 0xffff0000, %s" % (vr(c1), vr(XR + q)))
            e("v_max_f32 %s, 0, %s" % (vr(u), vr(u)))
            e("v_add_f32 %s, %s, %s" % (vr(u), vr(c1), vr(u)))
        e("v_cvt_pk_bf16_f32 %s, %s, %s" % (vr(r.U + q), vr(r.U + q), vr(r.U + 8 + q)))
        e("buffer_store_dword %s, %s, %s, 0 offen" % (vr(r.U + q), vr(EA + q), sr(SOUT, 4)))
    stamp()
    if STAMP:
        e("s_waitcnt vmcnt(0) lgkmcnt(0)"); e("s_mov_b32 s%d, s63" % (64 + 2 * nstamp[0])); nstamp[0] += 1
    stamp(final=True, wsreg=8, wave=sr(sW), nwaves=8, kid=1, tmpv=10)
    lab("K2_END")
    e("s_endpgm")
    lab("K2_MORE")
    e("s_mov_b32 %s, 0" % sr(sFirst))
    e("s_waitcnt vmcnt(0) lgkmcnt(0)")
    e("s_nop 15")
    e("s_lshl_b32 s10, %s, 2" % sr(sT))
    e("v_lshl_add_u32 %s, %s, 15, s10" % (vr(c0), vr(lane)))
    for i in range(4):
        e("buffer_load_dword %s, %s, %s, 0 offen" % (vr(EN + i), vr(c0), sr(SOFS, 4)))
        e("v_add_u32 %s, 8192, %s" % (vr(c0), vr(c0)))
    expand_pre()
    e("s_waitcnt vmcnt(0)")
    e("s_branch K2_EXPAND")
    return r.n

hdr = open('cdna_kernels/%s.s.ref' % NAME).read().split('\n')
hdr = [l for l in hdr if l.startswith(';   offset') or l.startswith('; Kernarg')]
L.append('.amdgcn_target "amdgcn-amd-amdhsa--gfx950"')
L.append('.text')
lds1 = k1()
nv2 = k2()
def kd(name, nv, ns):
    return [".p2align 6", ".amdhsa_kernel %s" % name, "  .amdhsa_next_free_vgpr %d" % nv, "  .amdhsa_next_free_sgpr %d" % ns,
            "  .amdhsa_accum_offset %d" % ((nv + 3) // 4 * 4), "  .amdhsa_group_segment_fixed_size 0", "  .amdhsa_kernarg_size 96",
            "  .amdhsa_user_sgpr_count 2", "  .amdhsa_user_sgpr_kernarg_segment_ptr 1", "  .amdhsa_system_sgpr_workgroup_id_x 1",
            ".end_amdhsa_kernel"]
if XL:
    L.append(".p2align 8"); L.append(".type k0_nop_kernel,@function"); lab("k0_nop_kernel"); e("s_endpgm")
L.append('.section .rodata,"a"')
if XL: L += kd("k0_nop_kernel", 8, 16)
L += kd("k1_sort_kernel", 72, 102 if STAMP else 64)
L += kd("k2_main_kernel", 256, 102 if STAMP else 64)
top = hdr + ["; @launch kernel=k1_sort_kernel grid=(%d,1,1) block=(1024,1,1) lds=%d" % (NC + 1, lds1),
             "; @launch kernel=k2_main_kernel grid=(256,1,1) block=(512,1,1) lds=%d" % K2_LDS]
if XL:
    ln = "; @launch kernel=k0_nop_kernel grid=(256,1,1) block=(64,1,1) lds=0"
    top.insert({'a': len(top) - 2, 'b': len(top) - 1, 'c': len(top)}[XL], ln)
open(OUT, 'w').write("\n".join(top + L) + "\n")
print("vgprs k2:", nv2, "lines:", len(L))
```

```python
import sys, re

NAME = "standalone__edge_featured_mpnn_gatedgcn__graph"
N_NODES = 25000
CH = 3200
NC = 250
TMUL = 5368
WS_REC = 0
WS_OFF = 0xD00000
WS_WFR = 0xF00000
WS_DBG = 0x1000000
NEGLOG2E = 0xBFB8AA3B

opts = dict(a.split('=') for a in sys.argv[1:] if '=' in a)
OUT = opts.get('out', 'cdna_kernels/%s.s' % NAME)
STAMP = int(opts.get('stamp', 0))
PRIO = int(opts.get('prio', 8))
ABL = opts.get('abl', '')
STF = opts.get('stf', 'sc0+sc1').replace('+', ' ')
LDF = opts.get('ldf', '').replace('+', ' ')
PAIR = int(opts.get('pair', 1))
DLY1 = int(opts.get('dly1', 0)); DLY2 = int(opts.get('dly2', 0)); XL = opts.get('xl', '')

L = []
def e(s): L.append("    " + s)
def lab(s): L.append(s + ":")
def vr(a, n=1): return "v%d" % a if n == 1 else "v[%d:%d]" % (a, a + n - 1)
def sr(a, n=1): return "s%d" % a if n == 1 else "s[%d:%d]" % (a, a + n - 1)

DPPS = ["row_shr:1 row_mask:0xf bank_mask:0xf", "row_shr:2 row_mask:0xf bank_mask:0xf",
        "row_shr:4 row_mask:0xf bank_mask:0xf", "row_shr:8 row_mask:0xf bank_mask:0xf",
        "row_bcast:15 row_mask:0xa bank_mask:0xf", "row_bcast:31 row_mask:0xc bank_mask:0xf"]
def scan64(op, v, fill=()):
    fill = list(fill)
    for m in DPPS:
        n = 0
        while n < 2 and fill:
            e(fill.pop(0)); n += 1
        if n < 2: e("s_nop %d" % (1 - n))
        e("%s_dpp %s, %s, %s %s" % (op, vr(v), vr(v), vr(v), m))
    for f in fill: e(f)

def srd(d, base, nbytes, add=None, stride=0, sub=None):
    if sub is not None:
        e("s_sub_u32 %s, %s, %s" % (sr(d), sr(base), sub))
        e("s_subb_u32 %s, %s, 0" % (sr(d + 1), sr(base + 1)))
        e("s_and_b32 %s, %s, 0xffff" % (sr(d + 1), sr(d + 1)))
    elif add is None:
        e("s_mov_b32 %s, %s" % (sr(d), sr(base)))
        e("s_and_b32 %s, %s, 0xffff" % (sr(d + 1), sr(base + 1)))
    else:
        e("s_add_u32 %s, %s, %s" % (sr(d), sr(base), add))
        e("s_addc_u32 %s, %s, 0" % (sr(d + 1), sr(base + 1)))
        e("s_and_b32 %s, %s, 0xffff" % (sr(d + 1), sr(d + 1)))
    if stride:
        e("s_or_b32 %s, %s, 0x%x" % (sr(d + 1), sr(d + 1), stride << 16))
    e("s_mov_b32 %s, %s" % (sr(d + 2), nbytes if isinstance(nbytes, str) else "0x%x" % nbytes))
    e("s_mov_b32 %s, 0x20000" % sr(d + 3))

nstamp = [0]
def stamp(final=False, wsreg=8, wave=None, nwaves=8, kid=0, tmpv=None):
    if not STAMP: return
    k = nstamp[0]; nstamp[0] += 1
    e("s_memtime s[%d:%d]" % (64 + 2 * k, 65 + 2 * k))
    if k == 0: e("s_memrealtime s[96:97]")
    if not final: return
    e("s_memrealtime s[98:99]")
    e("s_mov_b64 exec, 1")
    e("s_mul_i32 s60, s2, %d" % nwaves); e("s_add_u32 s60, s60, %s" % wave); e("s_lshl_b32 s60, s60, 7")
    e("s_add_u32 s60, s60, 0x%x" % (WS_DBG + kid * 0x80000))
    e("s_add_u32 s60, s60, s%d" % wsreg); e("s_addc_u32 s61, s%d, 0" % (wsreg + 1))
    e("v_mov_b32 v%d, 0" % tmpv)
    e("s_waitcnt lgkmcnt(0)")
    def st(s, off):
        e("v_mov_b32 v%d, %s" % (tmpv + 1, s)); e("global_store_dword v%d, v%d, s[60:61] offset:%d" % (tmpv, tmpv + 1, off))
    for j in range(k + 1): st("s%d" % (64 + 2 * j), 4 * j)
    st("s96", 120); st("s98", 124); st("s92", 104); st("s94", 108)
    if STAMP == 2:
        e("s_load_dwordx2 s[60:61], s[0:1], 80")
        e("s_waitcnt lgkmcnt(0)")
        if kid == 1:
            e("s_sub_u32 s60, s60, 512"); e("s_subb_u32 s61, s61, 0")
        def am(s, off, neg):
            if neg: e("s_not_b32 s62, %s" % s); s = "s62"
            e("v_mov_b32 v%d, %s" % (tmpv + 1, s)); e("global_atomic_umax v%d, v%d, s[60:61] offset:%d" % (tmpv, tmpv + 1, off))
        if kid == 0:
            am("s96", 0, True); am("s96", 4, False); am("s98", 8, False)
            e("s_sub_u32 s62, s66, s64"); am("s62", 44, False)
            e("s_sub_u32 s62, s72, s64"); am("s62", 48, False)
        else:
            am("s96", 12, True); am("s96", 16, False); am("s92", 20, True); am("s92", 24, False); am("s94", 28, True); am("s94", 32, False); am("s98", 36, False)
            e("s_sub_u32 s62, s68, s64"); am("s62", 52, False)
            e("s_sub_u32 s62, s72, s64"); am("s62", 56, False)
            e("s_sub_u32 s62, s76, s64"); am("s62", 60, False)
        nstamp[0] = 0
        return
    e("s_getreg_b32 s62, hwreg(HW_REG_HW_ID)"); st("s62", 116)
    e("s_getreg_b32 s62, hwreg(HW_REG_XCC_ID)"); st("s62", 112)
    nstamp[0] = 0

def k1():
    HIST, WTOT, RB = 0, 8192, 8448
    L.append(".p2align 8"); L.append(".type k1_sort_kernel,@function"); lab("k1_sort_kernel")
    e("s_load_dwordx4 s[4:7], s[0:1], 8")
    e("s_load_dwordx2 s[8:9], s[0:1], 24")
    e("s_load_dwordx2 s[10:11], s[0:1], 88")
    e("s_cmp_ge_u32 s2, %d" % NC)
    e("s_cbranch_scc1 K1_AUX")
    for _ in range(DLY1): e("s_sleep 36")
    stamp()
    e("v_lshlrev_b32 v1, 4, v0")
    e("v_lshlrev_b32 v2, 5, v0")
    e("v_lshlrev_b32 v3, 3, v0")
    e("v_mov_b32 v4, 0"); e("v_mov_b32 v5, 0")
    e("s_mul_i32 s12, s2, %d" % (CH * 4))
    e("s_mul_i32 s13, s2, %d" % (CH * 8))
    e("s_mul_i32 s14, s2, %d" % (CH * 16))
    e("s_lshl_b32 s15, s2, 13")
    e("s_add_u32 s15, s15, 0x%x" % WS_OFF)
    e("ds_write_b64 v3, v[4:5] offset:%d" % HIST)
    e("v_lshrrev_b32 v7, 6, v0")
    e("s_waitcnt lgkmcnt(0)")
    srd(16, 8, CH * 4, "s12")
    e("buffer_load_dwordx4 v[8:11], v1, s[16:19], 0 offen " + LDF)
    srd(20, 6, CH * 4, "s12")
    e("buffer_load_dwordx4 v[12:15], v1, s[20:23], 0 offen " + LDF)
    srd(24, 4, CH * 8, "s13")
    e("buffer_load_dwordx4 v[16:19], v2, s[24:27], 0 offen " + LDF)
    e("buffer_load_dwordx4 v[24:27], v2, s[24:27], 0 offen offset:16 " + LDF)
    srd(28, 10, CH * 16, "s14")
    srd(32, 10, 8192, "s15")
    e("v_readfirstlane_b32 s38, v7")
    e("v_mov_b32 v6, 1")
    e("v_lshlrev_b32 v40, 2, v7")
    e("v_and_b32 v41, 7, v0")
    e("v_lshlrev_b32 v41, 2, v41")
    e("v_cmp_gt_u32 vcc, %d, v0" % (CH // 4))
    e("s_mov_b64 s[36:37], vcc")
    e("s_barrier")
    e("s_mov_b64 exec, s[36:37]")
    e("s_cbranch_execz K1_A")
    e("s_waitcnt vmcnt(3)")
    stamp()
    for i in range(4):
        e("v_mul_u32_u24 v%d, %d, v%d" % (32 + i, TMUL, 8 + i))
    for i in range(4):
        e("v_lshrrev_b32 v%d, 14, v%d" % (32 + i, 32 + i))
        e("v_and_b32 v%d, 0x1ffc, v%d" % (32 + i, 32 + i))
        e("ds_add_rtn_u32 v%d, v%d, v6 offset:%d" % (36 + i, 32 + i, HIST))
    for i in range(4):
        d, a, b = 8 + i, 44 + i, 48 + i
        e("v_and_b32 v%d, 15, v%d" % (d, d))
        e("v_mul_u32_u24 v52, 11, v%d" % d)
        e("v_lshrrev_b32 v52, 5, v52")
        e("v_mad_i32_i24 v%d, v52, -3, v%d" % (a, d))
        e("v_add_u32 v%d, 1, v%d" % (a, a))
        e("v_lshl_add_u32 v52, v52, 1, 20")
        e("v_lshlrev_b32 v%d, v52, v%d" % (a, a))
        e("v_and_b32 v%d, 3, v%d" % (b, d))
        e("v_add_u32 v%d, 1, v%d" % (b, b))
        e("v_and_b32 v%d, 12, v%d" % (d, d))
        e("v_lshl_add_u32 v%d, v%d, 1, 3" % (d, d))
        e("v_lshlrev_b32 v%d, v%d, v%d" % (b, d, b))
    lab("K1_A")
    e("s_mov_b64 exec, -1")
    e("s_waitcnt lgkmcnt(0)")
    e("s_barrier")
    stamp()
    e("s_cmp_gt_u32 s38, 7")
    e("s_cbranch_scc1 K1_S1")
    e("ds_read_b128 v[56:59], v1 offset:%d" % HIST)
    e("s_waitcnt lgkmcnt(0)")
    e("v_add_u32 v61, v56, v57")
    e("v_add_u32 v62, v61, v58")
    e("v_add_u32 v42, v62, v59")
    e("v_mov_b32 v43, v42")
    scan64("v_add_u32", 43)
    e("s_mov_b32 exec_lo, 0"); e("s_mov_b32 exec_hi, 0x80000000")
    e("ds_write_b32 v40, v43 offset:%d" % WTOT)
    e("s_mov_b64 exec, -1")
    e("v_sub_u32 v43, v43, v42")
    e("s_waitcnt lgkmcnt(0)")
    lab("K1_S1")
    e("s_barrier")
    e("s_cbranch_scc1 K1_S2")
    e("ds_read_b32 v53, v41 offset:%d" % WTOT)
    e("s_waitcnt lgkmcnt(0)")
    e("v_mov_b32 v54, v53")
    for sh in (1, 2, 4):
        e("s_nop 1")
        e("v_add_u32_dpp v54, v54, v54 row_shr:%d row_mask:0xf bank_mask:0xf" % sh)
    e("v_sub_u32 v54, v54, v53")
    e("s_nop 0")
    e("v_readlane_b32 s39, v54, s38")
    e("s_nop 1")
    e("v_add_u32 v43, s39, v43")
    e("v_add_u32 v60, v43, v56")
    e("v_add_u32 v61, v43, v61")
    e("v_add_u32 v62, v43, v62")
    e("v_lshlrev_b32 v64, 4, v43"); e("v_lshlrev_b32 v65, 4, v60"); e("v_lshlrev_b32 v66, 4, v61"); e("v_lshlrev_b32 v67, 4, v62")
    e("ds_write_b128 v1, v[64:67] offset:%d" % HIST)
    e("v_lshl_or_b32 v56, v56, 16, v43"); e("v_lshl_or_b32 v57, v57, 16, v60")
    e("v_lshl_or_b32 v58, v58, 16, v61"); e("v_lshl_or_b32 v59, v59, 16, v62")
    e("buffer_store_dwordx4 v[56:59], v1, s[32:35], 0 offen " + STF)
    e("s_waitcnt vmcnt(1) lgkmcnt(0)")
    e("s_branch K1_S3")
    lab("K1_S2")
    e("s_waitcnt vmcnt(0)")
    lab("K1_S3")
    e("s_barrier")
    stamp()
    e("s_mov_b64 exec, s[36:37]")
    e("s_cbranch_execz K1_B")
    for i in range(4):
        e("ds_read_b32 v%d, v%d offset:%d" % (32 + i, 32 + i, HIST))
    e("s_mov_b32 s40, 0x40000")
    e("v_mov_b32 v20, v18"); e("v_mov_b32 v21, v19")
    e("v_mov_b32 v28, v26"); e("v_mov_b32 v29, v27")
    for i in range(4):
        e("v_or3_b32 v%d, v%d, v%d, s40" % (18 + 4 * i, 44 + i, 12 + i))
        e("v_mov_b32 v%d, v%d" % (19 + 4 * i, 48 + i))
    for i in range(4):
        e("s_waitcnt lgkmcnt(3)")
        e("v_lshl_add_u32 v%d, v%d, 4, v%d" % (32 + i, 36 + i, 32 + i))
        e("ds_write_b128 v%d, v[%d:%d] offset:%d" % (32 + i, 16 + 4 * i, 19 + 4 * i, RB))
    lab("K1_B")
    e("s_mov_b64 exec, -1")
    e("s_waitcnt lgkmcnt(0)")
    e("s_barrier")
    stamp()
    for k in range(3):
        e("ds_read_b128 v[%d:%d], v1 offset:%d" % (8 + 4 * k, 11 + 4 * k, RB + 16384 * k))
    e("s_mov_b32 s40, 16384"); e("s_mov_b32 s41, 32768"); e("s_mov_b32 s42, 49152")
    e("s_cmp_gt_u32 s38, 1")
    e("s_cbranch_scc1 K1_C")
    e("ds_read_b128 v[20:23], v1 offset:%d" % (RB + 49152))
    e("s_waitcnt lgkmcnt(0)")
    e("buffer_store_dwordx4 v[20:23], v1, s[28:31], s42 offen " + STF)
    lab("K1_C")
    e("s_waitcnt lgkmcnt(2)")
    e("buffer_store_dwordx4 v[8:11], v1, s[28:31], 0 offen " + STF)
    e("s_waitcnt lgkmcnt(1)")
    e("buffer_store_dwordx4 v[12:15], v1, s[28:31], s40 offen " + STF)
    e("s_waitcnt lgkmcnt(0)")
    e("buffer_store_dwordx4 v[16:19], v1, s[28:31], s41 offen " + STF)
    stamp()
    if STAMP: e("s_waitcnt vmcnt(0)")
    stamp(final=True, wsreg=10, wave="s38", nwaves=16, kid=0, tmpv=50)
    e("s_endpgm")
    lab("K1_AUX")
    e("s_cmp_gt_u32 s2, %d" % NC)
    e("s_cbranch_scc1 K1_END2")
    e("s_load_dwordx4 s[12:15], s[0:1], 32")
    e("s_load_dwordx2 s[16:17], s[0:1], 48")
    e("s_load_dwordx4 s[20:23], s[0:1], 56")
    e("v_lshrrev_b32 v1, 6, v0")
    e("v_and_b32 v2, 63, v0")
    e("v_readfirstlane_b32 s38, v1")
    e("s_waitcnt lgkmcnt(0)")
    e("s_lshr_b32 s39, s38, 2")
    e("s_and_b32 s40, s38, 3")
    e("s_cmp_eq_u32 s39, 1"); e("s_cselect_b32 s12, s20, s12"); e("s_cselect_b32 s13, s21, s13")
    e("s_cmp_eq_u32 s39, 3"); e("s_cselect_b32 s12, s22, s12"); e("s_cselect_b32 s13, s23, s13")
    e("s_cmp_eq_u32 s39, 2"); e("s_cselect_b32 s12, s14, s12"); e("s_cselect_b32 s13, s15, s13")
    e("s_mov_b32 s42, 0x%x" % NEGLOG2E)
    e("s_cselect_b32 s41, s42, 1.0")
    srd(24, 12, 8192)
    srd(28, 16, 512)
    srd(32, 10, 32768 + 512, "0x%x" % WS_WFR)
    srd(44, 10, 512 * 16, "0x%x" % (WS_REC + 255 * CH * 16))
    e("v_and_b32 v3, 31, v2")
    e("v_lshlrev_b32 v3, 2, v3")
    e("v_lshrrev_b32 v4, 5, v2")
    e("v_lshl_add_u32 v5, v4, 10, v3")
    e("s_lshl_b32 s43, s40, 11")
    for i in range(8):
        e("buffer_load_dword v%d, v5, s[24:27], s43 offen offset:%d" % (8 + i, i * 128))
    for i in range(4):
        e("buffer_load_dword v%d, v3, s[28:31], 0 offen offset:%d" % (40 + i, i * 128))
    e("v_lshlrev_b32 v6, 4, v0")
    e("v_mov_b32 v48, 0"); e("v_mov_b32 v49, 0"); e("v_mov_b32 v50, 0x4ffff"); e("v_mov_b32 v51, 0")
    e("buffer_store_dwordx4 v[48:51], v6, s[44:47], 0 offen " + STF)
    e("s_waitcnt vmcnt(5)")
    for i in range(8):
        e("v_lshlrev_b32 v%d, 16, v%d" % (16 + i, 8 + i))
        e("v_and_b32 v%d, 0xffff0000, v%d" % (24 + i, 8 + i))
    for i in range(16):
        e("v_mul_f32 v%d, s41, v%d" % (16 + i, 16 + i))
    for i in range(8):
        e("v_cvt_pk_bf16_f32 v%d, v%d, v%d" % (32 + i, 16 + 2 * i, 17 + 2 * i))
    e("v_lshlrev_b32 v7, 4, v2")
    e("s_lshl_b32 s43, s39, 13")
    e("s_lshl_b32 s48, s40, 10")
    e("s_add_u32 s43, s43, s48")
    e("s_add_u32 s48, s43, 4096")
    e("buffer_store_dwordx4 v[32:35], v7, s[32:35], s43 offen " + STF)
    e("buffer_store_dwordx4 v[36:39], v7, s[32:35], s48 offen " + STF)
    e("s_cmp_lg_u32 s38, 0")
    e("s_cbranch_scc1 K1_END2")
    e("s_waitcnt vmcnt(3)")
    for i in range(4):
        e("v_lshlrev_b32 v%d, 16, v%d" % (16 + i, 40 + i))
        e("v_and_b32 v%d, 0xffff0000, v%d" % (20 + i, 40 + i))
    for i in range(8):
        e("v_mul_f32 v%d, s42, v%d" % (16 + i, 16 + i))
    for i in range(4):
        e("v_cvt_pk_bf16_f32 v%d, v%d, v%d" % (44 + i, 16 + 2 * i, 17 + 2 * i))
    e("v_add_u32 v7, 32768, v7")
    e("buffer_store_dwordx4 v[44:47], v7, s[32:35], 0 offen " + STF)
    lab("K1_END2")
    e("s_endpgm")
    return RB + CH * 16

TS, TOTA = 0, 64
RECB = 1024
DUMMY = RECB + 65536
XTB = DUMMY + 1024
XBB = XTB + 16384
K2_LDS = XBB + 65536

class R: pass
def alloc():
    r = R(); p = 0
    def a(n, al=1):
        nonlocal p
        p = (p + al - 1) // al * al
        b = p; p += n
        return b
    r.LANE = a(1); r.SI = a(1)
    r.PS = a(1, 2); r.PC = a(1); r.PT = a(1, 2); r.PE = a(1); r.PL = a(1); r.RI = a(1)
    r.XA0 = a(1); r.XA1 = a(1); r.TI = a(1); r.TMP = a(3)
    r.SO = a(4, 2); r.XI = a(8, 2); r.T = a(4, 2); r.S = a(8, 2); r.X = a(16, 2)
    r.U = a(16, 2)
    r.ACC = [a(16, 2), a(16, 2)]
    r.G = [a(16, 2), None]; r.V = [a(16, 2), None]
    r.G[1] = a(16, 2); r.V[1] = a(16, 2)
    r.WB = a(32, 2); r.WV = a(32, 2); r.AT = a(16, 2)
    r.n = p
    return r

def mfma(d, a, b, c):
    return "v_mfma_f32_32x32x16_bf16 %s, %s, %s, %s" % (vr(d, 16), vr(a, 4), vr(b, 4), "0" if c is None else vr(c, 16))
def smf(d, a, b, idx, abid=0):
    return "v_smfmac_f32_32x32x32_bf16 %s, %s, %s, %s%s" % (vr(d, 16), vr(a, 4), vr(b, 8), vr(idx), " abid:1" if abid else "")

SOFF = [0, 64, 256, 320]

def k2():
    r = alloc()
    assert r.n <= 256, r.n
    sW, sT, sStart, sEnd, sTot, sW0, sNG, sXB, sREC, sFirst, sBin, sMag, sRD, sRE, sXT = range(36, 51)
    sINC = 52; sSO = 54
    SX, SXI, SOFS, SRC, SWF, SOUT = 12, 16, 20, 24, 28, 32
    lane = r.LANE
    c0, c1, c2 = r.TMP, r.TMP + 1, r.TMP + 2
    MAG = -(-(1 << 41) // 671)
    for t in range(2049):
        n = t * 8192 + 670
        assert (n * MAG) >> 41 == n // 671
    def tile_range():
        e("s_lshl_b32 s10, %s, 13" % sr(sT)); e("s_add_u32 s10, s10, 670")
        e("s_mul_hi_u32 %s, s10, %s" % (sr(sStart), sr(sMag))); e("s_lshr_b32 %s, %s, 9" % (sr(sStart), sr(sStart)))
        e("s_add_u32 s10, s10, 8192")
        e("s_mul_hi_u32 %s, s10, %s" % (sr(sEnd), sr(sMag))); e("s_lshr_b32 %s, %s, 9" % (sr(sEnd), sr(sEnd)))
    L.append(".p2align 8"); L.append(".type k2_main_kernel,@function"); lab("k2_main_kernel")
    e("s_load_dwordx2 s[8:9], s[0:1], 88")
    e("s_load_dwordx2 s[4:5], s[0:1], 0")
    e("s_load_dwordx2 s[6:7], s[0:1], 72")
    e("s_cmp_gt_u32 s2, 255")
    e("s_cbranch_scc1 K2_END")
    e("s_setprio 3")
    for _ in range(DLY2): e("s_sleep 36")
    stamp()
    t0, t1, t2, t3, t4, t5, t6, t7 = [r.G[0] + i for i in range(8)]
    e("v_lshrrev_b32 %s, 6, v0" % vr(t0))
    e("v_and_b32 %s, 63, v0" % vr(lane))
    e("v_readfirstlane_b32 %s, %s" % (sr(sW), vr(t0)))
    e("s_and_b32 s10, s2, 7"); e("s_lshl_b32 s10, s10, 5"); e("s_lshr_b32 s11, s2, 3"); e("s_add_u32 %s, s10, s11" % sr(sBin))
    e("v_lshrrev_b32 %s, 1, %s" % (vr(t0), vr(lane)))
    e("v_lshlrev_b32 %s, 15, %s" % (vr(t0), vr(t0)))
    e("v_and_b32 %s, 1, %s" % (vr(t1), vr(lane)))
    e("v_lshl_or_b32 %s, %s, 4, %s" % (vr(t0), vr(t1), vr(t0)))
    e("s_lshr_b32 s11, %s, 2" % sr(sW)); e("s_lshl_b32 s11, s11, 20")
    e("s_and_b32 s10, %s, 3" % sr(sW)); e("s_lshl_b32 s10, s10, 13"); e("s_add_u32 s11, s11, s10")
    e("s_lshl_b32 s10, %s, 5" % sr(sBin)); e("s_add_u32 s11, s11, s10")
    e("v_add_u32 %s, s11, %s" % (vr(t0), vr(t0)))
    e("s_lshl_b32 %s, %s, 13" % (sr(sREC), sr(sW)))
    e("s_add_u32 %s, %s, %d" % (sr(sXB), sr(sREC), XBB))
    e("s_add_u32 %s, %s, %d" % (sr(sREC), sr(sREC), RECB))
    e("s_add_u32 m0, %s, 3072" % sr(sXB))
    e("s_lshl_b32 %s, %s, 3" % (sr(sT), sr(sBin))); e("s_add_u32 %s, %s, %s" % (sr(sT), sr(sT), sr(sW)))
    e("s_mov_b32 %s, 0x%x" % (sr(sMag), MAG))
    tile_range()
    e("v_lshlrev_b32 %s, 4, %s" % (vr(t1), vr(lane)))
    e("v_lshrrev_b32 %s, 3, %s" % (vr(t2), vr(lane)))
    e("v_xor_b32 %s, %s, %s" % (vr(t3), vr(t2), vr(lane)))
    e("v_and_b32 %s, 7, %s" % (vr(t3), vr(t3)))
    e("v_lshlrev_b32 %s, 4, %s" % (vr(t3), vr(t3)))
    e("v_subrev_u32 %s, %s, %s" % (vr(t2), sr(sStart), vr(t2)))
    e("v_and_b32 %s, 15, %s" % (vr(t2), vr(t2)))
    e("v_xor_b32 %s, 8, %s" % (vr(t4), vr(t2)))
    e("v_add_u32 %s, %s, %s" % (vr(t2), sr(sStart), vr(t2)))
    e("v_add_u32 %s, %s, %s" % (vr(t4), sr(sStart), vr(t4)))
    e("v_lshl_add_u32 %s, %s, 7, %s" % (vr(t2), vr(t2), vr(t3)))
    e("v_lshl_add_u32 %s, %s, 7, %s" % (vr(t4), vr(t4), vr(t3)))
    e("s_waitcnt lgkmcnt(0)")
    srd(SOFS, 8, NC * 8192, "0x%x" % WS_OFF)
    e("buffer_load_dwordx4 %s, %s, 0 offen lds" % (vr(t0), sr(SOFS, 4)))
    e("s_add_u32 m0, %s, 4096" % sr(sXB))
    srd(SWF, 8, 32768 + 512, "0x%x" % WS_WFR)
    e("s_lshl_b32 s10, %s, 12" % sr(sW))
    for k in range(4):
        e("buffer_load_dwordx4 %s, %s, s10 offen offset:%d lds" % (vr(t1), sr(SWF, 4), k * 1024))
    e("s_lshl_b32 s10, %s, 11" % sr(sW))
    e("s_add_u32 m0, s10, %d" % XTB)
    srd(SX, 4, N_NODES * 128)
    e("buffer_load_dwordx4 %s, %s, 0 offen lds" % (vr(t2), sr(SX, 4)))
    e("s_add_u32 m0, s10, %d" % (XTB + 1024))
    e("v_add_u32 %s, 32768, %s" % (vr(t5), vr(t1)))
    e("buffer_load_dwordx4 %s, %s, 0 offen lds" % (vr(t4), sr(SX, 4)))
    WC = r.U
    e("buffer_load_dwordx4 %s, %s, %s, 0 offen" % (vr(WC, 4), vr(t5), sr(SWF, 4)))
    srd(SXI, 4, N_NODES, stride=128, sub="3072")
    srd(SRC, 8, 256 * CH, stride=16)
    e("s_mov_b32 %s, 1024" % sr(sINC)); e("s_mov_b32 %s, 1024" % sr(sINC + 1))
    e("s_mov_b32 %s, 3072" % sr(sSO)); e("s_mov_b32 %s, 2048" % sr(sSO + 1)); e("s_mov_b32 %s, 1024" % sr(sSO + 2))
    H = t3
    e("v_lshrrev_b32 %s, 5, %s" % (vr(H), vr(lane)))
    e("v_mov_b32 %s, 0x%x" % (vr(t4), (1 << 4) | (2 << 8) | (1 << 14) | (2 << 18)))
    e("v_lshlrev_b32 %s, 1, %s" % (vr(t5), vr(lane)))
    e("v_bfe_u32 %s, %s, %s, 2" % (vr(t4), vr(t4), vr(t5)))
    e("v_mul_u32_u24 %s, 0x8001, %s" % (vr(t4), vr(t4)))
    e("v_and_b32 %s, 0x10001, %s" % (vr(t4), vr(t4)))
    e("v_mul_u32_u24 %s, 0x3f80, %s" % (vr(t4), vr(t4)))
    e("v_lshlrev_b32 %s, 2, %s" % (vr(t5), vr(lane)))
    e("s_mov_b64 exec, 0x3ff")
    e("ds_write_b32 %s, %s offset:%d" % (vr(t5), vr(t4), TS))
    e("s_mov_b64 exec, -1")
    e("v_and_b32 %s, 3, %s" % (vr(c0), vr(lane)))
    e("v_bfe_u32 %s, %s, 4, 1" % (vr(c1), vr(lane)))
    e("v_mul_u32_u24 %s, 0x5555, %s" % (vr(r.SI), vr(c1)))
    e("v_or_b32 %s, 0x8888, %s" % (vr(r.SI), vr(r.SI)))
    e("v_xor_b32 %s, %s, %s" % (vr(c2), vr(c0), vr(H)))
    e("v_lshl_or_b32 %s, %s, 2, %s" % (vr(c2), vr(c1), vr(c2)))
    e("v_lshlrev_b32 %s, 4, %s" % (vr(r.XI + 1), vr(c2)))
    e("v_mov_b32 %s, %s" % (vr(r.XI + 3), vr(r.XI + 1)))
    e("v_xor_b32 %s, 32, %s" % (vr(r.XI + 5), vr(r.XI + 1)))
    e("v_mov_b32 %s, %s" % (vr(r.XI + 7), vr(r.XI + 5)))
    e("v_bfe_u32 %s, %s, 3, 2" % (vr(c2), vr(lane)))
    e("v_xor_b32 %s, %s, %s" % (vr(c2), vr(c2), vr(H)))
    e("v_lshlrev_b32 %s, 4, %s" % (vr(r.XA0), vr(c2)))
    e("v_lshl_or_b32 %s, %s, 6, %s" % (vr(r.XA0), vr(c0), vr(r.XA0)))
    e("v_bfe_u32 %s, %s, 3, 1" % (vr(c2), vr(lane)))
    e("v_lshl_or_b32 %s, %s, 9, %s" % (vr(r.XA0), vr(c2), vr(r.XA0)))
    e("v_bfe_u32 %s, %s, 2, 1" % (vr(t4), vr(lane)))
    e("v_lshl_or_b32 %s, %s, 10, %s" % (vr(r.XA0), vr(t4), vr(r.XA0)))
    e("v_lshl_or_b32 %s, %s, 11, %s" % (vr(r.XA0), vr(c1), vr(r.XA0)))
    e("v_xor_b32 %s, 32, %s" % (vr(r.XA1), vr(r.XA0)))
    e("v_add_u32 %s, %s, %s" % (vr(r.XA0), sr(sXB), vr(r.XA0)))
    e("v_add_u32 %s, %s, %s" % (vr(r.XA1), sr(sXB), vr(r.XA1)))
    FA, FU = r.AT + 14, r.AT + 15
    e("v_lshl_or_b32 %s, %s, 1, %s" % (vr(c2), vr(t4), vr(c2)))
    e("v_lshl_or_b32 %s, %s, 1, %s" % (vr(c2), vr(c2), vr(c1)))
    e("v_mad_u32_u24 %s, %s, 3, %s" % (vr(c2), vr(c2), vr(c0)))
    e("v_add_u32 %s, 9, %s" % (vr(c2), vr(c2)))
    e("v_and_b32 %s, 15, %s" % (vr(c2), vr(c2)))
    for dst, src in ((FA, c2), (FU, None)):
        if src is None:
            e("v_and_b32 %s, 15, %s" % (vr(c2), vr(lane)))
        e("v_xor_b32 %s, %s, %s" % (vr(t4), vr(c2), vr(H)))
        e("v_and_b32 %s, 7, %s" % (vr(t4), vr(t4)))
        e("v_lshlrev_b32 %s, 4, %s" % (vr(t4), vr(t4)))
        e("v_lshl_or_b32 %s, %s, 7, %s" % (vr(dst), vr(c2), vr(t4)))
    e("v_lshlrev_b32 %s, 4, %s" % (vr(t4), vr(H)))
    e("v_mov_b32 %s, 0x3f80" % vr(t5))
    e("v_lshlrev_b32 %s, %s, %s" % (vr(r.T + 1), vr(t4), vr(t5)))
    e("v_mov_b32 %s, %s" % (vr(r.T + 2), vr(r.T + 1)))
    e("v_mov_b32 %s, %s" % (vr(r.T + 3), vr(r.T + 1)))
    EN = r.G[1]
    e("v_and_b32 %s, 31, %s" % (vr(t5), vr(lane)))
    e("v_lshlrev_b32 %s, 5, %s" % (vr(t5), vr(t5)))
    e("v_lshl_or_b32 %s, %s, 15, %s" % (vr(t5), vr(H), vr(t5)))
    e("s_lshl_b32 s10, %s, 2" % sr(sW)); e("s_add_u32 s10, s10, %d" % (XBB + 3072))
    e("v_add_u32 %s, s10, %s" % (vr(t5), vr(t5)))
    e("s_mov_b32 %s, 0" % sr(sW0))
    e("s_mov_b32 %s, 1" % sr(sFirst))
    Z = r.G[1] + 4; LA = r.G[1] + 8; WA_ = r.G[1] + 9
    P = r.V[1]; D = r.V[1] + 4
    TOT = r.V[1] + 8; INC = r.V[1] + 9; CB = r.V[1] + 10; PREV = r.V[1] + 11; JB = r.V[1] + 12; C512 = r.V[1] + 13
    M = r.S
    def expand_pre():
        for i in range(4): e("v_mov_b32 %s, 0" % vr(Z + i))
        e("v_lshl_add_u32 %s, %s, 5, %s" % (vr(LA), vr(lane), sr(sXB)))
        e("ds_write_b128 %s, %s" % (vr(LA), vr(Z, 4)))
        e("ds_write_b128 %s, %s offset:16" % (vr(LA), vr(Z, 4)))
        e("v_mul_u32_u24 %s, %d, %s" % (vr(CB), 4 * CH, vr(lane)))
        e("v_lshl_add_u32 %s, %s, 3, %s" % (vr(JB), vr(lane), sr(sW0)))
        e("v_mov_b32 %s, 512" % vr(C512))
        e("v_mov_b32 %s, 0" % vr(PREV))
        e("v_and_b32 %s, 7, %s" % (vr(WA_), vr(lane)))
        e("v_lshlrev_b32 %s, 4, %s" % (vr(WA_), vr(WA_)))
        e("v_lshl_or_b32 %s, %s, 7, %s" % (vr(WA_), vr(lane), vr(WA_)))
        e("v_add_u32 %s, %s, %s" % (vr(WA_), sr(sREC), vr(WA_)))
        e("v_lshl_add_u32 %s, %s, 4, %s" % (vr(r.PL), vr(lane), sr(sREC)))
    expand_pre()
    stamp()
    e("s_waitcnt vmcnt(7) lgkmcnt(0)")
    e("s_barrier")
    stamp()
    for i in range(4):
        e("ds_read_b32 %s, %s offset:%d" % (vr(EN + i), vr(t5), i * 8192))
    e("s_waitcnt lgkmcnt(0)")
    lab("K2_EXPAND")
    sd = "dst_sel:DWORD dst_unused:UNUSED_PAD src0_sel:WORD_%d src1_sel:DWORD"
    e("v_lshrrev_b32 %s, 16, %s" % (vr(P + 1), vr(EN)))
    e("v_add_u32_sdwa %s, %s, %s %s" % (vr(P + 2), vr(EN + 1), vr(P + 1), sd % 1))
    e("v_add_u32_sdwa %s, %s, %s %s" % (vr(P + 3), vr(EN + 2), vr(P + 2), sd % 1))
    e("v_add_u32_sdwa %s, %s, %s %s" % (vr(INC), vr(EN + 3), vr(P + 3), sd % 1))
    fill = ["v_add_u32 %s, %s, %s" % (vr(TOT), sr(sW0), vr(INC))]
    fill += ["v_add_u32_sdwa %s, %s, %s %s" % (vr(D + i), vr(EN + i), vr(CB), sd % 0) for i in range(4)]
    fill += ["v_add_u32 %s, %d, %s" % (vr(D + i), i * CH, vr(D + i)) for i in range(1, 4)]
    fill += ["v_subrev_u32 %s, %s, %s" % (vr(D + i), sr(sW0), vr(D + i)) for i in range(4)]
    scan64("v_add_u32", INC, fill)
    e("v_sub_u32 %s, %s, %s" % (vr(P), vr(INC), vr(TOT)))
    e("v_readlane_b32 %s, %s, 63" % (sr(sTot), vr(INC)))
    for i in range(1, 4):
        e("v_add_u32 %s, %s, %s" % (vr(P + i), vr(P), vr(P + i)))
    for i in range(4):
        e("v_sub_u32 %s, %s, %s" % (vr(D + i), vr(D + i), vr(P + i)))
        e("v_med3_i32 %s, %s, 0, %s" % (vr(P + i), vr(P + i), vr(C512)))
        e("v_lshl_add_u32 %s, %s, 2, %s" % (vr(P + i), vr(P + i), sr(sXB)))
        e("ds_max_u32 %s, %s" % (vr(P + i), vr(D + i)))
    e("ds_read_b128 %s, %s" % (vr(M, 4), vr(LA)))
    e("ds_read_b128 %s, %s offset:16" % (vr(M + 4, 4), vr(LA)))
    e("s_lshl_b32 s10, %s, 3" % sr(sTot)); e("s_or_b32 s10, s10, %s" % sr(sW)); e("s_lshl_b32 s11, %s, 2" % sr(sW))
    e("v_mov_b32 %s, s10" % vr(TOT)); e("v_mov_b32 %s, s11" % vr(INC))
    e("s_mov_b64 exec, 1")
    e("ds_write_b32 %s, %s offset:%d" % (vr(INC), vr(TOT), TOTA))
    e("s_mov_b64 exec, -1")
    e("s_waitcnt lgkmcnt(1)")
    e("v_max3_u32 %s, %s, %s, %s" % (vr(INC), vr(M), vr(M + 1), vr(M + 2)))
    e("v_max3_u32 %s, %s, %s, %s" % (vr(INC), vr(INC), vr(M + 3), vr(M + 4)))
    e("v_max3_u32 %s, %s, %s, %s" % (vr(INC), vr(INC), vr(M + 5), vr(M + 6)))
    e("v_max_u32 %s, %s, %s" % (vr(INC), vr(INC), vr(M + 7)))
    AD = r.X
    fill = ["v_xor_b32 %s, %d, %s" % (vr(AD + k), 16 * k, vr(WA_)) for k in range(1, 8)]
    scan64("v_max_u32", INC, fill)
    e("s_nop 1")
    e("v_mov_b32_dpp %s, %s wave_shr:1 row_mask:0xf bank_mask:0xf" % (vr(PREV), vr(INC)))
    for k in range(8):
        e("v_max_u32 %s, %s, %s" % (vr(PREV), vr(PREV), vr(M + k)))
        e("v_add3_u32 %s, %s, %s, %d" % (vr(M + k), vr(PREV), vr(JB), k))
        e("ds_write_b32 %s, %s offset:12" % (vr(WA_ if k == 0 else AD + k), vr(M + k)))
    e("ds_read_b32 %s, %s offset:12" % (vr(c0), vr(r.PL)))
    e("ds_read_b32 %s, %s offset:%d" % (vr(c1), vr(r.PL), 1024 + 12))
    e("s_mov_b32 m0, %s" % sr(sREC))
    e("s_waitcnt lgkmcnt(1)")
    e("buffer_load_dwordx4 %s, %s, 0 idxen lds" % (vr(c0), sr(SRC, 4)))
    e("s_add_u32 m0, %s, 1024" % sr(sREC))
    e("s_waitcnt lgkmcnt(0)")
    e("buffer_load_dwordx4 %s, %s, 0 idxen lds" % (vr(c1), sr(SRC, 4)))
    e("s_cmp_eq_u32 %s, 0" % sr(sFirst))
    e("s_cbranch_scc1 K2_NOW")
    stamp()
    e("v_lshrrev_b32 %s, 3, %s" % (vr(c0), vr(lane)))
    e("v_lshlrev_b32 %s, 2, %s" % (vr(c0), vr(c0)))
    e("v_and_b32 %s, 7, %s" % (vr(c1), vr(lane)))
    e("v_lshlrev_b32 %s, 3, %s" % (vr(r.RI), vr(c1)))
    e("v_lshlrev_b32 %s, 2, %s" % (vr(c1), vr(c1)))
    e("v_lshlrev_b32 %s, 4, %s" % (vr(c2), vr(lane)))
    e("v_add_u32 %s, %d, %s" % (vr(c2), XBB + 4096, vr(c2)))
    e("s_sub_u32 s10, 7, %s" % sr(sW)); e("s_sub_u32 s11, %s, 4" % sr(sW))
    e("s_cmp_lt_u32 %s, 4" % sr(sW)); e("s_cselect_b32 s11, s10, s11")
    e("s_waitcnt vmcnt(2)")
    e("s_barrier")
    stamp()
    e("ds_read_b32 %s, %s offset:%d" % (vr(c0), vr(c0), TOTA))
    e("ds_read_b32 %s, %s offset:%d" % (vr(c1), vr(c1), TOTA))
    WA = r.G[0]; WU = r.G[1]
    assert r.V[0] == r.G[0] + 16 and r.V[1] == r.G[1] + 16
    wr = []
    for m, base in enumerate([WA, WU, r.WB, r.WV]):
        for u in range(8):
            uu = m * 8 + u
            wr.append("ds_read_b128 %s, %s offset:%d" % (vr(base + 4 * u, 4), vr(c2), (uu >> 2) * 8192 + (uu & 3) * 1024))
    for s in wr[:8]: e(s)
    e("s_waitcnt lgkmcnt(8)")
    if PAIR:
        e("v_cmp_lt_u32 vcc, %s, %s" % (vr(c1), vr(c0)))
        e(wr[8]); e(wr[9])
        e("v_lshrrev_b64 %s, %s, vcc" % (vr(r.SO, 2), vr(r.RI)))
        e("v_and_b32 %s, 0xff, %s" % (vr(r.SO), vr(r.SO)))
        e("v_bcnt_u32_b32 %s, %s, 0" % (vr(r.SO), vr(r.SO)))
        e("v_cmp_eq_u32 vcc, s11, %s" % vr(r.SO))
        e("s_ff1_i32_b64 s10, vcc")
        e(wr[10]); e(wr[11])
        e("v_readlane_b32 %s, %s, s10" % (sr(sTot), vr(c1)))
        e("s_lshr_b32 %s, %s, 3" % (sr(sTot), sr(sTot)))
    else:
        for s in wr[8:12]: e(s)
        e("s_mov_b32 s10, %s" % sr(sW))
    e("s_lshl_b32 %s, s10, 11" % sr(sXT)); e("s_add_u32 %s, %s, %d" % (sr(sXT), sr(sXT), XTB))
    e("s_lshl_b32 %s, s10, 13" % sr(sREC)); e("s_add_u32 %s, %s, %d" % (sr(sREC), sr(sREC), RECB))
    e("s_lshl_b32 %s, %s, 3" % (sr(sT), sr(sBin))); e("s_add_u32 %s, %s, s10" % (sr(sT), sr(sT)))
    tile_range()
    def xtile(mapreg):
        e("v_add_u32 %s, %s, %s" % (vr(c0), sr(sXT), vr(mapreg)))
        for s in range(4):
            if s: e("v_xor_b32 %s, %d, %s" % (vr(c1), 32 * s, vr(c0)))
            e("ds_read_b128 %s, %s" % (vr(r.X + 4 * s, 4), vr(c1 if s else c0)))
    xtile(FA)
    for s in wr[12:]: e(s)
    e("s_min_u32 %s, %s, %d" % (sr(sEnd), sr(sEnd), N_NODES))
    e("s_sub_u32 s10, %s, %s" % (sr(sEnd), sr(sStart))); e("s_lshl_b32 s10, s10, 7")
    e("s_lshl_b32 s11, %s, 7" % sr(sStart))
    srd(SOUT, 6, "s10", "s11")
    e("v_lshl_add_u32 %s, %s, 4, %s" % (vr(r.PL), vr(lane), sr(sREC)))
    lab("K2_NOW")
    e("v_bfe_u32 %s, %s, 2, 2" % (vr(c0), vr(lane)))
    e("v_lshrrev_b32 %s, 5, %s" % (vr(c1), vr(lane)))
    e("v_lshl_or_b32 %s, %s, 3, %s" % (vr(c0), vr(c1), vr(c0)))
    e("v_lshl_add_u32 %s, %s, 4, %s" % (vr(r.PS), vr(c0), sr(sREC)))
    e("v_and_b32 %s, 3, %s" % (vr(c0), vr(lane)))
    e("v_add_u32 %s, %s, %s" % (vr(r.PC), vr(c0), vr(r.PS)))
    e("v_and_b32 %s, 31, %s" % (vr(c0), vr(lane)))
    e("v_lshl_add_u32 %s, %s, 4, %s" % (vr(r.PT), vr(c0), sr(sREC)))
    e("v_lshl_add_u32 %s, %s, 2, %s" % (vr(r.PE), vr(c1), vr(r.PT)))
    e("s_sub_u32 s10, %s, %s" % (sr(sTot), sr(sW0)))
    e("s_min_u32 s10, s10, 512")
    e("s_add_u32 s10, s10, 31"); e("s_lshr_b32 s10, s10, 5")
    e("s_max_u32 s10, s10, 1")
    e("s_sub_u32 %s, s10, 1" % sr(sNG))
    e("s_add_u32 %s, %s, 3072" % (sr(sRD), sr(sREC)))
    e("s_add_u32 %s, %s, 8192" % (sr(sRE), sr(sREC)))
    stamp()
    e("s_waitcnt vmcnt(0) lgkmcnt(0)")
    e("s_cmp_eq_u32 %s, 0" % sr(sFirst))
    e("s_cbranch_scc1 K2_NOB")
    e("s_barrier")
    lab("K2_NOB")
    stamp()
    def xidx(g, t):
        return "ds_read_u16 %s, %s offset:%d" % (vr(r.XI + 2 * t), vr(r.PS), g * 512 + SOFF[t] + 8)
    def xm0(buf):
        return "s_add_u32 m0, %s, %d" % (sr(sXB), buf * 4096)
    def xdma(t):
        return "buffer_load_dwordx4 %s, %s, %s idxen offen offset:%d lds" % (vr(r.XI + 2 * t, 2), sr(SXI, 4), sr(sSO + t) if t < 3 else "0", t * 1024)
    def xread(buf, k):
        return "ds_read_b128 %s, %s offset:%d" % (vr(r.X + 4 * k, 4), vr(r.XA1 if k & 1 else r.XA0), buf * 4096 + (k >> 1) * 256)
    def t0read(g): return "ds_read_b32 %s, %s offset:%d" % (vr(r.T), vr(r.PE), g * 512)
    def tiread(g): return "ds_read_b32 %s, %s offset:%d" % (vr(r.TI), vr(r.PT), g * 512 + 8)
    def soread(g, t): return "ds_read_u8 %s, %s offset:%d" % (vr(r.SO + t), vr(r.PC), g * 512 + SOFF[t] + 12)
    def trread(t): return "ds_read_b64_tr_b16 %s, %s offset:%d" % (vr(r.S + 2 * t, 2), vr(r.SO + t), TS)
    def riread(blk): return "ds_read_b32 %s, %s offset:%d" % (vr(r.RI), vr(r.PL), blk * 1024 + 12)
    rdma = "buffer_load_dwordx4 %s, %s, 0 idxen lds" % (vr(r.RI), sr(SRC, 4))
    for t in range(4): e(xidx(0, t))
    X2 = r.S
    for t in range(4): e("ds_read_u16 %s, %s offset:%d" % (vr(X2 + 2 * t), vr(r.PS), 512 + SOFF[t] + 8))
    e(riread(2))
    for t in range(4): e("v_mov_b32 %s, %s" % (vr(X2 + 2 * t + 1), vr(r.XI + 2 * t + 1)))
    e(xm0(0))
    e("s_waitcnt lgkmcnt(5)")
    for t in range(4): e(xdma(t))
    e(xm0(1))
    e("s_waitcnt lgkmcnt(1)")
    for t in range(4): e(xdma(t).replace(vr(r.XI + 2 * t, 2), vr(X2 + 2 * t, 2)))
    e("s_add_u32 m0, %s, 2048" % sr(sREC))
    e("s_waitcnt lgkmcnt(0)")
    e(rdma)
    for t in range(4): e(soread(0, t))
    e(t0read(0)); e(tiread(0))
    for t in range(4): e(xidx(2, t))
    e(riread(3))
    e("s_cmp_eq_u32 %s, 0" % sr(sFirst))
    e("s_cbranch_scc1 K2_NOW2")
    e("s_mov_b32 s10, 0x%x" % NEGLOG2E)
    for f in range(2):
        for s in range(4):
            e(mfma(r.ACC[f], r.X + 4 * s, WA + 16 * f + 4 * s, None if s == 0 else r.ACC[f]))
    xtile(FU)
    e("s_nop 2")
    for f in range(2):
        for i in range(16):
            if i & 3: e("v_mul_f32 %s, s10, %s" % (vr(r.ACC[f] + i), vr(r.ACC[f] + i)))
        if f == 0:
            e("s_waitcnt lgkmcnt(0)")
            for ff in range(2):
                for s in range(4):
                    e(mfma(WA + 16 * ff, r.X + 4 * s, WU + 16 * ff + 4 * s, None if s == 0 else WA + 16 * ff))
    for f in range(2):
        for i in range(8):
            e("v_cvt_pk_bf16_f32 %s, %s, %s" % (vr(r.AT + 8 * f + i), vr(r.ACC[f] + 2 * i) if i & 1 else "0", vr(r.ACC[f] + 2 * i + 1)))
    e("s_mov_b32 exec_hi, 0")
    for f in range(2):
        e("v_mov_b32 %s, %s" % (vr(r.AT + 8 * f), vr(WC + 2 * f)))
        e("v_mov_b32 %s, %s" % (vr(r.AT + 8 * f + 4), vr(WC + 2 * f + 1)))
    e("s_mov_b64 exec, -1")
    for f in range(2):
        for i in range(16):
            e("v_mov_b32 %s, 0" % vr(r.ACC[f] + i))
    for f in range(2):
        for i in range(8):
            e("v_mov_b32 %s, %s" % (vr(r.U + 8 * f + i), vr(WA + 16 * f + i)))
    lab("K2_NOW2")
    e("s_waitcnt lgkmcnt(0)")
    e(trread(0)); e(trread(1))
    for i in range(4): e("v_mov_b32 %s, 0" % vr(r.S + 4 + i))
    for i in range(8):
        e("v_mov_b32 %s, 0" % vr(r.V[1] + 8 + i))
    for i in range(13, 16):
        e("v_mov_b32 %s, 1.0" % vr(r.G[1] + i))
    stamp()
    e("s_waitcnt vmcnt(5)")
    stamp()
    for k in range(4): e(xread(0, k))
    e(xm0(0))
    for s in range(4):
        e("s_waitcnt lgkmcnt(%d)" % (3 - s))
        e(mfma(r.G[0], r.X + 4 * s, r.WB + 4 * s, None if s == 0 else r.G[0]))
    e(smf(r.G[0], r.T, r.AT, r.TI, 1))
    for s in range(4):
        e(mfma(r.V[0], r.X + 4 * s, r.WV + 4 * s, None if s == 0 else r.V[0]))
        e(xdma(s))
    e("s_setprio 1")
    e("s_nop 4")
    stamp()
    if STAMP: e("s_memrealtime s[92:93]"); e("s_waitcnt lgkmcnt(0)"); e("s_add_u32 s63, %s, 1" % sr(sNG))

    def valu_slot(a, i):
        out = []
        def reg(base, idx):
            return (base[a] + idx) if idx >= 0 else (base[1 - a] + 16 + idx)
        if i < 16: out.append("v_exp_f32 %s, %s" % (vr(reg(r.G, i)), vr(reg(r.G, i))))
        if i - 1 < 16: out.append("v_add_f32 %s, 1.0, %s" % (vr(reg(r.G, i - 1)), vr(reg(r.G, i - 1))))
        if i - 2 < 16: out.append("v_rcp_f32 %s, %s" % (vr(reg(r.G, i - 2)), vr(reg(r.G, i - 2))))
        out.append("v_mul_f32 %s, %s, %s" % (vr(reg(r.V, i - 3)), vr(reg(r.G, i - 3)), vr(reg(r.V, i - 3))))
        out.append("v_cvt_pk_bf16_f32 %s, %s, %s" % (vr(reg(r.V, i - 3)), vr(reg(r.G, i - 3)), vr(reg(r.V, i - 3))))
        return out
    def I(text, lds=None, need=()):
        return dict(text=text, lds=lds, need=list(need))
    POS = [(3, 2), (4, 3), (5, 4), (7, 0), (8, 1), (9, 2), (10, 4), (12, 0), (13, 2), (14, 3), (15, 4)]
    def phase(a, g):
        b = 1 - a
        xn = ['X%d' % k for k in range(4)]
        mm = [I(smf(r.ACC[b], r.S + 4, r.V[b] + 8, r.SI), need=['S3'])]
        mm += [I(mfma(r.G[b], r.X + 4 * k, r.WB + 16 * b + 4 * k, None if k == 0 else r.G[b]), need=[xn[k]]) for k in range(4)]
        mm += [I(smf(r.G[b], r.T, r.AT + 8 * b, r.TI, 1), need=['T0', 'TI'])]
        vv = [I(mfma(r.V[b], r.X + 4 * k, r.WV + 16 * b + 4 * k, None if k == 0 else r.V[b])) for k in range(4)]
        mm += [vv[0], I(smf(r.ACC[a], r.S, r.V[a], r.SI), need=['S1'])] + vv[1:]
        aux = [[] for _ in range(11)]
        nb = (g + 1) & 1
        if a == 0:
            aux[0] += [I(trread(2), lds='S2', need=['SO3'])]
            aux[1] += [I(trread(3), lds='S3')]
            if g == 0:
                aux[1].insert(0, I("s_mov_b32 m0, %s" % sr(sRD)))
                aux[2] += [I(rdma, need=['RI'])]
                aux[3] += [I("s_add_u32 %s, %s, 1024" % (sr(sRD), sr(sRD)))]
                aux[4] += [I("s_cmp_lt_u32 %s, %s" % (sr(sRD), sr(sRE)))]
                aux[5] += [I("s_cselect_b32 %s, %s, %d" % (sr(sRD), sr(sRD), DUMMY))]
                aux[3] += [I(xidx(g + 3, 0), lds='XI0'), I(xidx(g + 3, 1), lds='XI1')]
            else:
                aux[2] += [I(xidx(g + 3, 0), lds='XI0')]
                aux[3] += [I(xidx(g + 3, 1), lds='XI1')]
            aux[4] += [I(xidx(g + 3, 2), lds='XI2'), I(xidx(g + 3, 3), lds='XI3')]
            aux[5] += [I(t0read(g + 1), lds='T0')]
            aux[6] += [I("s_waitcnt vmcnt(5)", need=['S3']), I(xread(nb, 0), lds='X0')]
            aux[7] += [I(tiread(g + 1), lds='TI')]
            for k in range(1, 4): aux[7 + k] += [I(xread(nb, k), lds=xn[k])]
        else:
            aux[0] += [I(soread(g + 1, 0), lds='SO0', need=['X3'])]
            aux[1] += [I(soread(g + 1, 1), lds='SO1')]
            aux[2] += [I(soread(g + 1, 2), lds='SO2')]
            aux[3] += [I(xm0(nb)), I(soread(g + 1, 3), lds='SO3')]
            aux[4] += [I(xdma(0), need=['XI3'])]
            aux[5] += [I(xdma(1))]
            aux[6] += [I(xdma(2))]
            aux[7] += [I(trread(0), lds='S0', need=['SO3'])]
            aux[8] += [I(trread(1), lds='S1')]
            aux[9] += [I(xdma(3))]
            aux[10] += [I("s_sub_u32 %s, %s, 1" % (sr(sNG), sr(sNG)))]
            if g == 1:
                aux[10] += [I(riread(3), lds='RI')]
        ex = {}
        for k in range(11): ex[POS[k]] = [mm[k]] + aux[k]
        if a == 1 and g == 1:
            ex.setdefault((8, 0), []).extend([I("v_lshl_add_u64 %s, %s, 0, %s" % (vr(r.PS, 2), vr(r.PS, 2), sr(sINC, 2))),
                                              I("v_lshl_add_u64 %s, %s, 0, %s" % (vr(r.PT, 2), vr(r.PT, 2), sr(sINC, 2)))])
        if a == 0 and g == 0:
            ex.setdefault((1, 0), []).append(I("v_add_u32 %s, 1024, %s" % (vr(r.PL), vr(r.PL))))
        if PRIO and a == 1:
            ex[POS[0]].insert(1, I("s_setprio 0"))
            ex[POS[PRIO]].insert(1, I("s_setprio 1"))
        out = []
        for i in range(16):
            for p, t in enumerate(valu_slot(a, i)):
                out.extend(ex.pop((i, p), []))
                out.append(I(t))
        assert not ex, ex
        return out
    body = phase(0, 0) + phase(1, 0) + [I("s_cbranch_scc1 K2_DRAIN")] + phase(0, 1) + phase(1, 1) + [I("s_cbranch_scc0 K2_LOOP")]
    issued = []; done = 0
    for pas in range(2):
        if pas == 1: lab("K2_LOOP")
        for it in body:
            n = None
            for tag in it['need']:
                idxs = [k for k, t in enumerate(issued) if t == tag]
                if not idxs: continue
                k = idxs[-1]
                if k >= done:
                    n = len(issued) - 1 - k
                    done = k + 1
            tx = it['text']
            if n is not None:
                assert n <= 15
                if tx.startswith("s_waitcnt"): tx += " lgkmcnt(%d)" % n
                elif pas == 1: e("s_waitcnt lgkmcnt(%d)" % n)
            if pas == 1:
                if ABL == 'nomfma' and 'mfma' in tx: tx = "s_nop 0"
                e(tx)
            if it['lds']: issued.append(it['lds'])
    lab("K2_DRAIN")
    stamp()
    if STAMP: e("s_memrealtime s[94:95]")
    e("s_setprio 2")
    XR = r.X; EA = r.X + 8
    e("s_waitcnt lgkmcnt(0)")
    pre = []
    pre.append("v_lshrrev_b32 %s, 5, %s" % (vr(c0), vr(lane)))
    pre.append("v_and_b32 %s, 31, %s" % (vr(c1), vr(lane)))
    pre.append("v_lshlrev_b32 %s, 2, %s" % (vr(c1), vr(c1)))
    pre.append("v_mul_u32_u24 %s, 0x240, %s" % (vr(c2), vr(c0)))
    pre.append("v_xor_b32 %s, %s, %s" % (vr(c2), vr(c2), vr(c1)))
    pre.append("v_add_u32 %s, %s, %s" % (vr(c2), sr(sXT), vr(c2)))
    for i in range(16, 19):
        for t in valu_slot(1, i): e(t)
        e(pre.pop(0)); e(pre.pop(0))
    e(smf(r.ACC[1], r.S + 4, r.V[1] + 8, r.SI))
    e("s_add_u32 %s, %s, 512" % (sr(sW0), sr(sW0)))
    e("s_cmp_lt_u32 %s, %s" % (sr(sW0), sr(sTot)))
    e("s_cbranch_scc1 K2_MORE")
    for q in range(4):
        if q: e("v_xor_b32 %s, %d, %s" % (vr(EA), 16 * q, vr(c2)))
        e("ds_read_b32 %s, %s offset:%d" % (vr(XR + q), vr(EA if q else c2), q * 128))
        e("ds_read_b32 %s, %s offset:%d" % (vr(XR + q + 4), vr(EA if q else c2), q * 128 + 1024))
    e("v_lshlrev_b32 %s, 2, %s" % (vr(c0), vr(c0)))
    e("v_subrev_u32 %s, %s, %s" % (vr(c0), sr(sStart), vr(c0)))
    e("v_lshl_add_u32 %s, %s, 7, %s" % (vr(c0), vr(c0), vr(c1)))
    for q in range(8):
        e("v_add_u32 %s, %d, %s" % (vr(EA + q), (8 * (q >> 2) + (q & 3)) * 128, vr(c0)))
        e("v_and_b32 %s, 0x7ff, %s" % (vr(EA + q), vr(EA + q)))
    e("s_mov_b32 s10, 0x358637bd")
    for f in range(2):
        for q in range(8):
            e("v_add_f32 %s, s10, %s" % (vr(r.ACC[f] + q), vr(r.ACC[f] + q)))
        for q in range(8):
            e("v_rcp_f32 %s, %s" % (vr(r.ACC[f] + q), vr(r.ACC[f] + q)))
    e("s_waitcnt lgkmcnt(0)")
    for q in range(8):
        for f in range(2):
            u = r.U + 8 * f + q
            e("v_fmac_f32 %s, %s, %s" % (vr(u), vr(r.ACC[f] + q), vr(r.ACC[f] + 8 + q)))
            if f == 0: e("v_lshlrev_b32 %s, 16, %s" % (vr(c1), vr(XR + q)))
            else: e("v_and_b32 %s, 0xffff0000, %s" % (vr(c1), vr(XR + q)))
            e("v_max_f32 %s, 0, %s" % (vr(u), vr(u)))
            e("v_add_f32 %s, %s, %s" % (vr(u), vr(c1), vr(u)))
        e("v_cvt_pk_bf16_f32 %s, %s, %s" % (vr(r.U + q), vr(r.U + q), vr(r.U + 8 + q)))
        e("buffer_store_dword %s, %s, %s, 0 offen" % (vr(r.U + q), vr(EA + q), sr(SOUT, 4)))
    stamp()
    if STAMP:
        e("s_waitcnt vmcnt(0) lgkmcnt(0)"); e("s_mov_b32 s%d, s63" % (64 + 2 * nstamp[0])); nstamp[0] += 1
    stamp(final=True, wsreg=8, wave=sr(sW), nwaves=8, kid=1, tmpv=10)
    lab("K2_END")
    e("s_endpgm")
    lab("K2_MORE")
    e("s_mov_b32 %s, 0" % sr(sFirst))
    e("s_waitcnt vmcnt(0) lgkmcnt(0)")
    e("s_nop 15")
    e("s_lshl_b32 s10, %s, 2" % sr(sT))
    e("v_lshl_add_u32 %s, %s, 15, s10" % (vr(c0), vr(lane)))
    for i in range(4):
        e("buffer_load_dword %s, %s, %s, 0 offen" % (vr(EN + i), vr(c0), sr(SOFS, 4)))
        e("v_add_u32 %s, 8192, %s" % (vr(c0), vr(c0)))
    expand_pre()
    e("s_waitcnt vmcnt(0)")
    e("s_branch K2_EXPAND")
    return r.n

hdr = open('cdna_kernels/%s.s.ref' % NAME).read().split('\n')
hdr = [l for l in hdr if l.startswith(';   offset') or l.startswith('; Kernarg')]
L.append('.amdgcn_target "amdgcn-amd-amdhsa--gfx950"')
L.append('.text')
lds1 = k1()
nv2 = k2()
def kd(name, nv, ns):
    return [".p2align 6", ".amdhsa_kernel %s" % name, "  .amdhsa_next_free_vgpr %d" % nv, "  .amdhsa_next_free_sgpr %d" % ns,
            "  .amdhsa_accum_offset %d" % ((nv + 3) // 4 * 4), "  .amdhsa_group_segment_fixed_size 0", "  .amdhsa_kernarg_size 96",
            "  .amdhsa_user_sgpr_count 2", "  .amdhsa_user_sgpr_kernarg_segment_ptr 1", "  .amdhsa_system_sgpr_workgroup_id_x 1",
            ".end_amdhsa_kernel"]
if XL:
    L.append(".p2align 8"); L.append(".type k0_nop_kernel,@function"); lab("k0_nop_kernel"); e("s_endpgm")
L.append('.section .rodata,"a"')
if XL: L += kd("k0_nop_kernel", 8, 16)
L += kd("k1_sort_kernel", 72, 102 if STAMP else 64)
L += kd("k2_main_kernel", 256, 102 if STAMP else 64)
top = hdr + ["; @launch kernel=k1_sort_kernel grid=(%d,1,1) block=(1024,1,1) lds=%d" % (NC + 1, lds1),
             "; @launch kernel=k2_main_kernel grid=(256,1,1) block=(512,1,1) lds=%d" % K2_LDS]
if XL:
    ln = "; @launch kernel=k0_nop_kernel grid=(256,1,1) block=(64,1,1) lds=0"
    top.insert({'a': len(top) - 2, 'b': len(top) - 1, 'c': len(top)}[XL], ln)
open(OUT, 'w').write("\n".join(top + L) + "\n")
print("vgprs k2:", nv2, "lines:", len(L))
```

```python
import sys, re

NAME = "standalone__edge_featured_mpnn_gatedgcn__graph"
N_NODES = 25000
CH = 3200
NC = 250
TMUL = 5368
WS_REC = 0
WS_OFF = 0xD00000
WS_WFR = 0xF00000
WS_DBG = 0x1000000
NEGLOG2E = 0xBFB8AA3B

opts = dict(a.split('=') for a in sys.argv[1:] if '=' in a)
OUT = opts.get('out', 'cdna_kernels/%s.s' % NAME)
STAMP = int(opts.get('stamp', 0))
PRIO = int(opts.get('prio', 8))
ABL = opts.get('abl', '')
STF = opts.get('stf', 'sc0+sc1').replace('+', ' ')
LDF = opts.get('ldf', '').replace('+', ' ')
PAIR = int(opts.get('pair', 1))
DLY1 = int(opts.get('dly1', 0)); DLY2 = int(opts.get('dly2', 0)); XL = opts.get('xl', '')

L = []
def e(s): L.append("    " + s)
def lab(s): L.append(s + ":")
def vr(a, n=1): return "v%d" % a if n == 1 else "v[%d:%d]" % (a, a + n - 1)
def sr(a, n=1): return "s%d" % a if n == 1 else "s[%d:%d]" % (a, a + n - 1)

DPPS = ["row_shr:1 row_mask:0xf bank_mask:0xf", "row_shr:2 row_mask:0xf bank_mask:0xf",
        "row_shr:4 row_mask:0xf bank_mask:0xf", "row_shr:8 row_mask:0xf bank_mask:0xf",
        "row_bcast:15 row_mask:0xa bank_mask:0xf", "row_bcast:31 row_mask:0xc bank_mask:0xf"]
def scan64(op, v, fill=()):
    fill = list(fill)
    for m in DPPS:
        n = 0
        while n < 2 and fill:
            e(fill.pop(0)); n += 1
        if n < 2: e("s_nop %d" % (1 - n))
        e("%s_dpp %s, %s, %s %s" % (op, vr(v), vr(v), vr(v), m))
    for f in fill: e(f)

def srd(d, base, nbytes, add=None, stride=0, sub=None):
    if sub is not None:
        e("s_sub_u32 %s, %s, %s" % (sr(d), sr(base), sub))
        e("s_subb_u32 %s, %s, 0" % (sr(d + 1), sr(base + 1)))
        e("s_and_b32 %s, %s, 0xffff" % (sr(d + 1), sr(d + 1)))
    elif add is None:
        e("s_mov_b32 %s, %s" % (sr(d), sr(base)))
        e("s_and_b32 %s, %s, 0xffff" % (sr(d + 1), sr(base + 1)))
    else:
        e("s_add_u32 %s, %s, %s" % (sr(d), sr(base), add))
        e("s_addc_u32 %s, %s, 0" % (sr(d + 1), sr(base + 1)))
        e("s_and_b32 %s, %s, 0xffff" % (sr(d + 1), sr(d + 1)))
    if stride:
        e("s_or_b32 %s, %s, 0x%x" % (sr(d + 1), sr(d + 1), stride << 16))
    e("s_mov_b32 %s, %s" % (sr(d + 2), nbytes if isinstance(nbytes, str) else "0x%x" % nbytes))
    e("s_mov_b32 %s, 0x20000" % sr(d + 3))

nstamp = [0]
def stamp(final=False, wsreg=8, wave=None, nwaves=8, kid=0, tmpv=None):
    if not STAMP: return
    k = nstamp[0]; nstamp[0] += 1
    e("s_memtime s[%d:%d]" % (64 + 2 * k, 65 + 2 * k))
    if k == 0: e("s_memrealtime s[96:97]")
    if not final: return
    e("s_memrealtime s[98:99]")
    e("s_mov_b64 exec, 1")
    e("s_mul_i32 s60, s2, %d" % nwaves); e("s_add_u32 s60, s60, %s" % wave); e("s_lshl_b32 s60, s60, 7")
    e("s_add_u32 s60, s60, 0x%x" % (WS_DBG + kid * 0x80000))
    e("s_add_u32 s60, s60, s%d" % wsreg); e("s_addc_u32 s61, s%d, 0" % (wsreg + 1))
    e("v_mov_b32 v%d, 0" % tmpv)
    e("s_waitcnt lgkmcnt(0)")
    def st(s, off):
        e("v_mov_b32 v%d, %s" % (tmpv + 1, s)); e("global_store_dword v%d, v%d, s[60:61] offset:%d" % (tmpv, tmpv + 1, off))
    for j in range(k + 1): st("s%d" % (64 + 2 * j), 4 * j)
    st("s96", 120); st("s98", 124); st("s92", 104); st("s94", 108)
    if STAMP == 2:
        e("s_load_dwordx2 s[60:61], s[0:1], 80")
        e("s_waitcnt lgkmcnt(0)")
        if kid == 0:
            e("s_add_u32 s60, s60, 512"); e("s_addc_u32 s61, s61, 0")
        e("s_and_b32 s62, %s, 3" % wave); e("s_cmp_lg_u32 s62, 0"); e("s_cbranch_scc1 DBG_SKIP%d" % kid)
        e("s_lshr_b32 s62, s2, 3"); e("s_xor_b32 s62, s62, s2"); e("s_and_b32 s62, s62, 7"); e("s_cmp_lg_u32 s62, 0"); e("s_cbranch_scc1 DBG_SKIP%d" % kid)
        def am(s, off, neg):
            if neg: e("s_not_b32 s62, %s" % s); s = "s62"
            e("v_mov_b32 v%d, %s" % (tmpv + 1, s)); e("global_atomic_umax v%d, v%d, s[60:61] offset:%d" % (tmpv, tmpv + 1, off))
        if kid == 0:
            am("s96", 0, True); am("s96", 4, False); am("s98", 8, False)
            e("s_sub_u32 s62, s66, s64"); am("s62", 44, False)
            e("s_sub_u32 s62, s72, s64"); am("s62", 48, False)
        else:
            am("s96", 12, True); am("s96", 16, False); am("s92", 20, True); am("s92", 24, False); am("s94", 28, True); am("s94", 32, False); am("s98", 36, False)
            e("s_sub_u32 s62, s68, s64"); am("s62", 52, False)
            e("s_sub_u32 s62, s72, s64"); am("s62", 56, False)
            e("s_sub_u32 s62, s76, s64"); am("s62", 60, False)
        lab("DBG_SKIP%d" % kid)
        nstamp[0] = 0
        return
    e("s_getreg_b32 s62, hwreg(HW_REG_HW_ID)"); st("s62", 116)
    e("s_getreg_b32 s62, hwreg(HW_REG_XCC_ID)"); st("s62", 112)
    nstamp[0] = 0

def k1():
    HIST, WTOT, RB = 0, 8192, 8448
    L.append(".p2align 8"); L.append(".type k1_sort_kernel,@function"); lab("k1_sort_kernel")
    e("s_load_dwordx4 s[4:7], s[0:1], 8")
    e("s_load_dwordx2 s[8:9], s[0:1], 24")
    e("s_load_dwordx2 s[10:11], s[0:1], 88")
    e("s_cmp_ge_u32 s2, %d" % NC)
    e("s_cbranch_scc1 K1_AUX")
    for _ in range(DLY1): e("s_sleep 36")
    stamp()
    e("v_lshlrev_b32 v1, 4, v0")
    e("v_lshlrev_b32 v2, 5, v0")
    e("v_lshlrev_b32 v3, 3, v0")
    e("v_mov_b32 v4, 0"); e("v_mov_b32 v5, 0")
    e("s_mul_i32 s12, s2, %d" % (CH * 4))
    e("s_mul_i32 s13, s2, %d" % (CH * 8))
    e("s_mul_i32 s14, s2, %d" % (CH * 16))
    e("s_lshl_b32 s15, s2, 13")
    e("s_add_u32 s15, s15, 0x%x" % WS_OFF)
    e("ds_write_b64 v3, v[4:5] offset:%d" % HIST)
    e("v_lshrrev_b32 v7, 6, v0")
    e("s_waitcnt lgkmcnt(0)")
    srd(16, 8, CH * 4, "s12")
    e("buffer_load_dwordx4 v[8:11], v1, s[16:19], 0 offen " + LDF)
    srd(20, 6, CH * 4, "s12")
    e("buffer_load_dwordx4 v[12:15], v1, s[20:23], 0 offen " + LDF)
    srd(24, 4, CH * 8, "s13")
    e("buffer_load_dwordx4 v[16:19], v2, s[24:27], 0 offen " + LDF)
    e("buffer_load_dwordx4 v[24:27], v2, s[24:27], 0 offen offset:16 " + LDF)
    srd(28, 10, CH * 16, "s14")
    srd(32, 10, 8192, "s15")
    e("v_readfirstlane_b32 s38, v7")
    e("v_mov_b32 v6, 1")
    e("v_lshlrev_b32 v40, 2, v7")
    e("v_and_b32 v41, 7, v0")
    e("v_lshlrev_b32 v41, 2, v41")
    e("v_cmp_gt_u32 vcc, %d, v0" % (CH // 4))
    e("s_mov_b64 s[36:37], vcc")
    e("s_barrier")
    e("s_mov_b64 exec, s[36:37]")
    e("s_cbranch_execz K1_A")
    e("s_waitcnt vmcnt(3)")
    stamp()
    for i in range(4):
        e("v_mul_u32_u24 v%d, %d, v%d" % (32 + i, TMUL, 8 + i))
    for i in range(4):
        e("v_lshrrev_b32 v%d, 14, v%d" % (32 + i, 32 + i))
        e("v_and_b32 v%d, 0x1ffc, v%d" % (32 + i, 32 + i))
        e("ds_add_rtn_u32 v%d, v%d, v6 offset:%d" % (36 + i, 32 + i, HIST))
    for i in range(4):
        d, a, b = 8 + i, 44 + i, 48 + i
        e("v_and_b32 v%d, 15, v%d" % (d, d))
        e("v_mul_u32_u24 v52, 11, v%d" % d)
        e("v_lshrrev_b32 v52, 5, v52")
        e("v_mad_i32_i24 v%d, v52, -3, v%d" % (a, d))
        e("v_add_u32 v%d, 1, v%d" % (a, a))
        e("v_lshl_add_u32 v52, v52, 1, 20")
        e("v_lshlrev_b32 v%d, v52, v%d" % (a, a))
        e("v_and_b32 v%d, 3, v%d" % (b, d))
        e("v_add_u32 v%d, 1, v%d" % (b, b))
        e("v_and_b32 v%d, 12, v%d" % (d, d))
        e("v_lshl_add_u32 v%d, v%d, 1, 3" % (d, d))
        e("v_lshlrev_b32 v%d, v%d, v%d" % (b, d, b))
    lab("K1_A")
    e("s_mov_b64 exec, -1")
    e("s_waitcnt lgkmcnt(0)")
    e("s_barrier")
    stamp()
    e("s_cmp_gt_u32 s38, 7")
    e("s_cbranch_scc1 K1_S1")
    e("ds_read_b128 v[56:59], v1 offset:%d" % HIST)
    e("s_waitcnt lgkmcnt(0)")
    e("v_add_u32 v61, v56, v57")
    e("v_add_u32 v62, v61, v58")
    e("v_add_u32 v42, v62, v59")
    e("v_mov_b32 v43, v42")
    scan64("v_add_u32", 43)
    e("s_mov_b32 exec_lo, 0"); e("s_mov_b32 exec_hi, 0x80000000")
    e("ds_write_b32 v40, v43 offset:%d" % WTOT)
    e("s_mov_b64 exec, -1")
    e("v_sub_u32 v43, v43, v42")
    e("s_waitcnt lgkmcnt(0)")
    lab("K1_S1")
    e("s_barrier")
    e("s_cbranch_scc1 K1_S2")
    e("ds_read_b32 v53, v41 offset:%d" % WTOT)
    e("s_waitcnt lgkmcnt(0)")
    e("v_mov_b32 v54, v53")
    for sh in (1, 2, 4):
        e("s_nop 1")
        e("v_add_u32_dpp v54, v54, v54 row_shr:%d row_mask:0xf bank_mask:0xf" % sh)
    e("v_sub_u32 v54, v54, v53")
    e("s_nop 0")
    e("v_readlane_b32 s39, v54, s38")
    e("s_nop 1")
    e("v_add_u32 v43, s39, v43")
    e("v_add_u32 v60, v43, v56")
    e("v_add_u32 v61, v43, v61")
    e("v_add_u32 v62, v43, v62")
    e("v_lshlrev_b32 v64, 4, v43"); e("v_lshlrev_b32 v65, 4, v60"); e("v_lshlrev_b32 v66, 4, v61"); e("v_lshlrev_b32 v67, 4, v62")
    e("ds_write_b128 v1, v[64:67] offset:%d" % HIST)
    e("v_lshl_or_b32 v56, v56, 16, v43"); e("v_lshl_or_b32 v57, v57, 16, v60")
    e("v_lshl_or_b32 v58, v58, 16, v61"); e("v_lshl_or_b32 v59, v59, 16, v62")
    e("buffer_store_dwordx4 v[56:59], v1, s[32:35], 0 offen " + STF)
    e("s_waitcnt vmcnt(1) lgkmcnt(0)")
    e("s_branch K1_S3")
    lab("K1_S2")
    e("s_waitcnt vmcnt(0)")
    lab("K1_S3")
    e("s_barrier")
    stamp()
    e("s_mov_b64 exec, s[36:37]")
    e("s_cbranch_execz K1_B")
    for i in range(4):
        e("ds_read_b32 v%d, v%d offset:%d" % (32 + i, 32 + i, HIST))
    e("s_mov_b32 s40, 0x40000")
    e("v_mov_b32 v20, v18"); e("v_mov_b32 v21, v19")
    e("v_mov_b32 v28, v26"); e("v_mov_b32 v29, v27")
    for i in range(4):
        e("v_or3_b32 v%d, v%d, v%d, s40" % (18 + 4 * i, 44 + i, 12 + i))
        e("v_mov_b32 v%d, v%d" % (19 + 4 * i, 48 + i))
    for i in range(4):
        e("s_waitcnt lgkmcnt(3)")
        e("v_lshl_add_u32 v%d, v%d, 4, v%d" % (32 + i, 36 + i, 32 + i))
        e("ds_write_b128 v%d, v[%d:%d] offset:%d" % (32 + i, 16 + 4 * i, 19 + 4 * i, RB))
    lab("K1_B")
    e("s_mov_b64 exec, -1")
    e("s_waitcnt lgkmcnt(0)")
    e("s_barrier")
    stamp()
    for k in range(3):
        e("ds_read_b128 v[%d:%d], v1 offset:%d" % (8 + 4 * k, 11 + 4 * k, RB + 16384 * k))
    e("s_mov_b32 s40, 16384"); e("s_mov_b32 s41, 32768"); e("s_mov_b32 s42, 49152")
    e("s_cmp_gt_u32 s38, 1")
    e("s_cbranch_scc1 K1_C")
    e("ds_read_b128 v[20:23], v1 offset:%d" % (RB + 49152))
    e("s_waitcnt lgkmcnt(0)")
    e("buffer_store_dwordx4 v[20:23], v1, s[28:31], s42 offen " + STF)
    lab("K1_C")
    e("s_waitcnt lgkmcnt(2)")
    e("buffer_store_dwordx4 v[8:11], v1, s[28:31], 0 offen " + STF)
    e("s_waitcnt lgkmcnt(1)")
    e("buffer_store_dwordx4 v[12:15], v1, s[28:31], s40 offen " + STF)
    e("s_waitcnt lgkmcnt(0)")
    e("buffer_store_dwordx4 v[16:19], v1, s[28:31], s41 offen " + STF)
    stamp()
    if STAMP: e("s_waitcnt vmcnt(0)")
    stamp(final=True, wsreg=10, wave="s38", nwaves=16, kid=0, tmpv=50)
    e("s_endpgm")
    lab("K1_AUX")
    e("s_cmp_gt_u32 s2, %d" % NC)
    e("s_cbranch_scc1 K1_END2")
    e("s_load_dwordx4 s[12:15], s[0:1], 32")
    e("s_load_dwordx2 s[16:17], s[0:1], 48")
    e("s_load_dwordx4 s[20:23], s[0:1], 56")
    e("v_lshrrev_b32 v1, 6, v0")
    e("v_and_b32 v2, 63, v0")
    e("v_readfirstlane_b32 s38, v1")
    e("s_waitcnt lgkmcnt(0)")
    e("s_lshr_b32 s39, s38, 2")
    e("s_and_b32 s40, s38, 3")
    e("s_cmp_eq_u32 s39, 1"); e("s_cselect_b32 s12, s20, s12"); e("s_cselect_b32 s13, s21, s13")
    e("s_cmp_eq_u32 s39, 3"); e("s_cselect_b32 s12, s22, s12"); e("s_cselect_b32 s13, s23, s13")
    e("s_cmp_eq_u32 s39, 2"); e("s_cselect_b32 s12, s14, s12"); e("s_cselect_b32 s13, s15, s13")
    e("s_mov_b32 s42, 0x%x" % NEGLOG2E)
    e("s_cselect_b32 s41, s42, 1.0")
    srd(24, 12, 8192)
    srd(28, 16, 512)
    srd(32, 10, 32768 + 512, "0x%x" % WS_WFR)
    srd(44, 10, 512 * 16, "0x%x" % (WS_REC + 255 * CH * 16))
    e("v_and_b32 v3, 31, v2")
    e("v_lshlrev_b32 v3, 2, v3")
    e("v_lshrrev_b32 v4, 5, v2")
    e("v_lshl_add_u32 v5, v4, 10, v3")
    e("s_lshl_b32 s43, s40, 11")
    for i in range(8):
        e("buffer_load_dword v%d, v5, s[24:27], s43 offen offset:%d" % (8 + i, i * 128))
    for i in range(4):
        e("buffer_load_dword v%d, v3, s[28:31], 0 offen offset:%d" % (40 + i, i * 128))
    e("v_lshlrev_b32 v6, 4, v0")
    e("v_mov_b32 v48, 0"); e("v_mov_b32 v49, 0"); e("v_mov_b32 v50, 0x4ffff"); e("v_mov_b32 v51, 0")
    e("buffer_store_dwordx4 v[48:51], v6, s[44:47], 0 offen " + STF)
    e("s_waitcnt vmcnt(5)")
    for i in range(8):
        e("v_lshlrev_b32 v%d, 16, v%d" % (16 + i, 8 + i))
        e("v_and_b32 v%d, 0xffff0000, v%d" % (24 + i, 8 + i))
    for i in range(16):
        e("v_mul_f32 v%d, s41, v%d" % (16 + i, 16 + i))
    for i in range(8):
        e("v_cvt_pk_bf16_f32 v%d, v%d, v%d" % (32 + i, 16 + 2 * i, 17 + 2 * i))
    e("v_lshlrev_b32 v7, 4, v2")
    e("s_lshl_b32 s43, s39, 13")
    e("s_lshl_b32 s48, s40, 10")
    e("s_add_u32 s43, s43, s48")
    e("s_add_u32 s48, s43, 4096")
    e("buffer_store_dwordx4 v[32:35], v7, s[32:35], s43 offen " + STF)
    e("buffer_store_dwordx4 v[36:39], v7, s[32:35], s48 offen " + STF)
    e("s_cmp_lg_u32 s38, 0")
    e("s_cbranch_scc1 K1_END2")
    e("s_waitcnt vmcnt(3)")
    for i in range(4):
        e("v_lshlrev_b32 v%d, 16, v%d" % (16 + i, 40 + i))
        e("v_and_b32 v%d, 0xffff0000, v%d" % (20 + i, 40 + i))
    for i in range(8):
        e("v_mul_f32 v%d, s42, v%d" % (16 + i, 16 + i))
    for i in range(4):
        e("v_cvt_pk_bf16_f32 v%d, v%d, v%d" % (44 + i, 16 + 2 * i, 17 + 2 * i))
    e("v_add_u32 v7, 32768, v7")
    e("buffer_store_dwordx4 v[44:47], v7, s[32:35], 0 offen " + STF)
    lab("K1_END2")
    e("s_endpgm")
    return RB + CH * 16

TS, TOTA = 0, 64
RECB = 1024
DUMMY = RECB + 65536
XTB = DUMMY + 1024
XBB = XTB + 16384
K2_LDS = XBB + 65536

class R: pass
def alloc():
    r = R(); p = 0
    def a(n, al=1):
        nonlocal p
        p = (p + al - 1) // al * al
        b = p; p += n
        return b
    r.LANE = a(1); r.SI = a(1)
    r.PS = a(1, 2); r.PC = a(1); r.PT = a(1, 2); r.PE = a(1); r.PL = a(1); r.RI = a(1)
    r.XA0 = a(1); r.XA1 = a(1); r.TI = a(1); r.TMP = a(3)
    r.SO = a(4, 2); r.XI = a(8, 2); r.T = a(4, 2); r.S = a(8, 2); r.X = a(16, 2)
    r.U = a(16, 2)
    r.ACC = [a(16, 2), a(16, 2)]
    r.G = [a(16, 2), None]; r.V = [a(16, 2), None]
    r.G[1] = a(16, 2); r.V[1] = a(16, 2)
    r.WB = a(32, 2); r.WV = a(32, 2); r.AT = a(16, 2)
    r.n = p
    return r

def mfma(d, a, b, c):
    return "v_mfma_f32_32x32x16_bf16 %s, %s, %s, %s" % (vr(d, 16), vr(a, 4), vr(b, 4), "0" if c is None else vr(c, 16))
def smf(d, a, b, idx, abid=0):
    return "v_smfmac_f32_32x32x32_bf16 %s, %s, %s, %s%s" % (vr(d, 16), vr(a, 4), vr(b, 8), vr(idx), " abid:1" if abid else "")

SOFF = [0, 64, 256, 320]

def k2():
    r = alloc()
    assert r.n <= 256, r.n
    sW, sT, sStart, sEnd, sTot, sW0, sNG, sXB, sREC, sFirst, sBin, sMag, sRD, sRE, sXT = range(36, 51)
    sINC = 52; sSO = 54
    SX, SXI, SOFS, SRC, SWF, SOUT = 12, 16, 20, 24, 28, 32
    lane = r.LANE
    c0, c1, c2 = r.TMP, r.TMP + 1, r.TMP + 2
    MAG = -(-(1 << 41) // 671)
    for t in range(2049):
        n = t * 8192 + 670
        assert (n * MAG) >> 41 == n // 671
    def tile_range():
        e("s_lshl_b32 s10, %s, 13" % sr(sT)); e("s_add_u32 s10, s10, 670")
        e("s_mul_hi_u32 %s, s10, %s" % (sr(sStart), sr(sMag))); e("s_lshr_b32 %s, %s, 9" % (sr(sStart), sr(sStart)))
        e("s_add_u32 s10, s10, 8192")
        e("s_mul_hi_u32 %s, s10, %s" % (sr(sEnd), sr(sMag))); e("s_lshr_b32 %s, %s, 9" % (sr(sEnd), sr(sEnd)))
    L.append(".p2align 8"); L.append(".type k2_main_kernel,@function"); lab("k2_main_kernel")
    e("s_load_dwordx2 s[8:9], s[0:1], 88")
    e("s_load_dwordx2 s[4:5], s[0:1], 0")
    e("s_load_dwordx2 s[6:7], s[0:1], 72")
    e("s_cmp_gt_u32 s2, 255")
    e("s_cbranch_scc1 K2_END")
    e("s_setprio 3")
    for _ in range(DLY2): e("s_sleep 36")
    stamp()
    t0, t1, t2, t3, t4, t5, t6, t7 = [r.G[0] + i for i in range(8)]
    e("v_lshrrev_b32 %s, 6, v0" % vr(t0))
    e("v_and_b32 %s, 63, v0" % vr(lane))
    e("v_readfirstlane_b32 %s, %s" % (sr(sW), vr(t0)))
    e("s_and_b32 s10, s2, 7"); e("s_lshl_b32 s10, s10, 5"); e("s_lshr_b32 s11, s2, 3"); e("s_add_u32 %s, s10, s11" % sr(sBin))
    e("v_lshrrev_b32 %s, 1, %s" % (vr(t0), vr(lane)))
    e("v_lshlrev_b32 %s, 15, %s" % (vr(t0), vr(t0)))
    e("v_and_b32 %s, 1, %s" % (vr(t1), vr(lane)))
    e("v_lshl_or_b32 %s, %s, 4, %s" % (vr(t0), vr(t1), vr(t0)))
    e("s_lshr_b32 s11, %s, 2" % sr(sW)); e("s_lshl_b32 s11, s11, 20")
    e("s_and_b32 s10, %s, 3" % sr(sW)); e("s_lshl_b32 s10, s10, 13"); e("s_add_u32 s11, s11, s10")
    e("s_lshl_b32 s10, %s, 5" % sr(sBin)); e("s_add_u32 s11, s11, s10")
    e("v_add_u32 %s, s11, %s" % (vr(t0), vr(t0)))
    e("s_lshl_b32 %s, %s, 13" % (sr(sREC), sr(sW)))
    e("s_add_u32 %s, %s, %d" % (sr(sXB), sr(sREC), XBB))
    e("s_add_u32 %s, %s, %d" % (sr(sREC), sr(sREC), RECB))
    e("s_add_u32 m0, %s, 3072" % sr(sXB))
    e("s_lshl_b32 %s, %s, 3" % (sr(sT), sr(sBin))); e("s_add_u32 %s, %s, %s" % (sr(sT), sr(sT), sr(sW)))
    e("s_mov_b32 %s, 0x%x" % (sr(sMag), MAG))
    tile_range()
    e("v_lshlrev_b32 %s, 4, %s" % (vr(t1), vr(lane)))
    e("v_lshrrev_b32 %s, 3, %s" % (vr(t2), vr(lane)))
    e("v_xor_b32 %s, %s, %s" % (vr(t3), vr(t2), vr(lane)))
    e("v_and_b32 %s, 7, %s" % (vr(t3), vr(t3)))
    e("v_lshlrev_b32 %s, 4, %s" % (vr(t3), vr(t3)))
    e("v_subrev_u32 %s, %s, %s" % (vr(t2), sr(sStart), vr(t2)))
    e("v_and_b32 %s, 15, %s" % (vr(t2), vr(t2)))
    e("v_xor_b32 %s, 8, %s" % (vr(t4), vr(t2)))
    e("v_add_u32 %s, %s, %s" % (vr(t2), sr(sStart), vr(t2)))
    e("v_add_u32 %s, %s, %s" % (vr(t4), sr(sStart), vr(t4)))
    e("v_lshl_add_u32 %s, %s, 7, %s" % (vr(t2), vr(t2), vr(t3)))
    e("v_lshl_add_u32 %s, %s, 7, %s" % (vr(t4), vr(t4), vr(t3)))
    e("s_waitcnt lgkmcnt(0)")
    srd(SOFS, 8, NC * 8192, "0x%x" % WS_OFF)
    e("buffer_load_dwordx4 %s, %s, 0 offen lds" % (vr(t0), sr(SOFS, 4)))
    e("s_add_u32 m0, %s, 4096" % sr(sXB))
    srd(SWF, 8, 32768 + 512, "0x%x" % WS_WFR)
    e("s_lshl_b32 s10, %s, 12" % sr(sW))
    for k in range(4):
        e("buffer_load_dwordx4 %s, %s, s10 offen offset:%d lds" % (vr(t1), sr(SWF, 4), k * 1024))
    e("s_lshl_b32 s10, %s, 11" % sr(sW))
    e("s_add_u32 m0, s10, %d" % XTB)
    srd(SX, 4, N_NODES * 128)
    e("buffer_load_dwordx4 %s, %s, 0 offen lds" % (vr(t2), sr(SX, 4)))
    e("s_add_u32 m0, s10, %d" % (XTB + 1024))
    e("v_add_u32 %s, 32768, %s" % (vr(t5), vr(t1)))
    e("buffer_load_dwordx4 %s, %s, 0 offen lds" % (vr(t4), sr(SX, 4)))
    WC = r.U
    e("buffer_load_dwordx4 %s, %s, %s, 0 offen" % (vr(WC, 4), vr(t5), sr(SWF, 4)))
    srd(SXI, 4, N_NODES, stride=128, sub="3072")
    srd(SRC, 8, 256 * CH, stride=16)
    e("s_mov_b32 %s, 1024" % sr(sINC)); e("s_mov_b32 %s, 1024" % sr(sINC + 1))
    e("s_mov_b32 %s, 3072" % sr(sSO)); e("s_mov_b32 %s, 2048" % sr(sSO + 1)); e("s_mov_b32 %s, 1024" % sr(sSO + 2))
    H = t3
    e("v_lshrrev_b32 %s, 5, %s" % (vr(H), vr(lane)))
    e("v_mov_b32 %s, 0x%x" % (vr(t4), (1 << 4) | (2 << 8) | (1 << 14) | (2 << 18)))
    e("v_lshlrev_b32 %s, 1, %s" % (vr(t5), vr(lane)))
    e("v_bfe_u32 %s, %s, %s, 2" % (vr(t4), vr(t4), vr(t5)))
    e("v_mul_u32_u24 %s, 0x8001, %s" % (vr(t4), vr(t4)))
    e("v_and_b32 %s, 0x10001, %s" % (vr(t4), vr(t4)))
    e("v_mul_u32_u24 %s, 0x3f80, %s" % (vr(t4), vr(t4)))
    e("v_lshlrev_b32 %s, 2, %s" % (vr(t5), vr(lane)))
    e("s_mov_b64 exec, 0x3ff")
    e("ds_write_b32 %s, %s offset:%d" % (vr(t5), vr(t4), TS))
    e("s_mov_b64 exec, -1")
    e("v_and_b32 %s, 3, %s" % (vr(c0), vr(lane)))
    e("v_bfe_u32 %s, %s, 4, 1" % (vr(c1), vr(lane)))
    e("v_mul_u32_u24 %s, 0x5555, %s" % (vr(r.SI), vr(c1)))
    e("v_or_b32 %s, 0x8888, %s" % (vr(r.SI), vr(r.SI)))
    e("v_xor_b32 %s, %s, %s" % (vr(c2), vr(c0), vr(H)))
    e("v_lshl_or_b32 %s, %s, 2, %s" % (vr(c2), vr(c1), vr(c2)))
    e("v_lshlrev_b32 %s, 4, %s" % (vr(r.XI + 1), vr(c2)))
    e("v_mov_b32 %s, %s" % (vr(r.XI + 3), vr(r.XI + 1)))
    e("v_xor_b32 %s, 32, %s" % (vr(r.XI + 5), vr(r.XI + 1)))
    e("v_mov_b32 %s, %s" % (vr(r.XI + 7), vr(r.XI + 5)))
    e("v_bfe_u32 %s, %s, 3, 2" % (vr(c2), vr(lane)))
    e("v_xor_b32 %s, %s, %s" % (vr(c2), vr(c2), vr(H)))
    e("v_lshlrev_b32 %s, 4, %s" % (vr(r.XA0), vr(c2)))
    e("v_lshl_or_b32 %s, %s, 6, %s" % (vr(r.XA0), vr(c0), vr(r.XA0)))
    e("v_bfe_u32 %s, %s, 3, 1" % (vr(c2), vr(lane)))
    e("v_lshl_or_b32 %s, %s, 9, %s" % (vr(r.XA0), vr(c2), vr(r.XA0)))
    e("v_bfe_u32 %s, %s, 2, 1" % (vr(t4), vr(lane)))
    e("v_lshl_or_b32 %s, %s, 10, %s" % (vr(r.XA0), vr(t4), vr(r.XA0)))
    e("v_lshl_or_b32 %s, %s, 11, %s" % (vr(r.XA0), vr(c1), vr(r.XA0)))
    e("v_xor_b32 %s, 32, %s" % (vr(r.XA1), vr(r.XA0)))
    e("v_add_u32 %s, %s, %s" % (vr(r.XA0), sr(sXB), vr(r.XA0)))
    e("v_add_u32 %s, %s, %s" % (vr(r.XA1), sr(sXB), vr(r.XA1)))
    FA, FU = r.AT + 14, r.AT + 15
    e("v_lshl_or_b32 %s, %s, 1, %s" % (vr(c2), vr(t4), vr(c2)))
    e("v_lshl_or_b32 %s, %s, 1, %s" % (vr(c2), vr(c2), vr(c1)))
    e("v_mad_u32_u24 %s, %s, 3, %s" % (vr(c2), vr(c2), vr(c0)))
    e("v_add_u32 %s, 9, %s" % (vr(c2), vr(c2)))
    e("v_and_b32 %s, 15, %s" % (vr(c2), vr(c2)))
    for dst, src in ((FA, c2), (FU, None)):
        if src is None:
            e("v_and_b32 %s, 15, %s" % (vr(c2), vr(lane)))
        e("v_xor_b32 %s, %s, %s" % (vr(t4), vr(c2), vr(H)))
        e("v_and_b32 %s, 7, %s" % (vr(t4), vr(t4)))
        e("v_lshlrev_b32 %s, 4, %s" % (vr(t4), vr(t4)))
        e("v_lshl_or_b32 %s, %s, 7, %s" % (vr(dst), vr(c2), vr(t4)))
    e("v_lshlrev_b32 %s, 4, %s" % (vr(t4), vr(H)))
    e("v_mov_b32 %s, 0x3f80" % vr(t5))
    e("v_lshlrev_b32 %s, %s, %s" % (vr(r.T + 1), vr(t4), vr(t5)))
    e("v_mov_b32 %s, %s" % (vr(r.T + 2), vr(r.T + 1)))
    e("v_mov_b32 %s, %s" % (vr(r.T + 3), vr(r.T + 1)))
    EN = r.G[1]
    e("v_and_b32 %s, 31, %s" % (vr(t5), vr(lane)))
    e("v_lshlrev_b32 %s, 5, %s" % (vr(t5), vr(t5)))
    e("v_lshl_or_b32 %s, %s, 15, %s" % (vr(t5), vr(H), vr(t5)))
    e("s_lshl_b32 s10, %s, 2" % sr(sW)); e("s_add_u32 s10, s10, %d" % (XBB + 3072))
    e("v_add_u32 %s, s10, %s" % (vr(t5), vr(t5)))
    e("s_mov_b32 %s, 0" % sr(sW0))
    e("s_mov_b32 %s, 1" % sr(sFirst))
    Z = r.G[1] + 4; LA = r.G[1] + 8; WA_ = r.G[1] + 9
    P = r.V[1]; D = r.V[1] + 4
    TOT = r.V[1] + 8; INC = r.V[1] + 9; CB = r.V[1] + 10; PREV = r.V[1] + 11; JB = r.V[1] + 12; C512 = r.V[1] + 13
    M = r.S
    def expand_pre():
        for i in range(4): e("v_mov_b32 %s, 0" % vr(Z + i))
        e("v_lshl_add_u32 %s, %s, 5, %s" % (vr(LA), vr(lane), sr(sXB)))
        e("ds_write_b128 %s, %s" % (vr(LA), vr(Z, 4)))
        e("ds_write_b128 %s, %s offset:16" % (vr(LA), vr(Z, 4)))
        e("v_mul_u32_u24 %s, %d, %s" % (vr(CB), 4 * CH, vr(lane)))
        e("v_lshl_add_u32 %s, %s, 3, %s" % (vr(JB), vr(lane), sr(sW0)))
        e("v_mov_b32 %s, 512" % vr(C512))
        e("v_mov_b32 %s, 0" % vr(PREV))
        e("v_and_b32 %s, 7, %s" % (vr(WA_), vr(lane)))
        e("v_lshlrev_b32 %s, 4, %s" % (vr(WA_), vr(WA_)))
        e("v_lshl_or_b32 %s, %s, 7, %s" % (vr(WA_), vr(lane), vr(WA_)))
        e("v_add_u32 %s, %s, %s" % (vr(WA_), sr(sREC), vr(WA_)))
        e("v_lshl_add_u32 %s, %s, 4, %s" % (vr(r.PL), vr(lane), sr(sREC)))
    expand_pre()
    stamp()
    e("s_waitcnt vmcnt(7) lgkmcnt(0)")
    e("s_barrier")
    stamp()
    for i in range(4):
        e("ds_read_b32 %s, %s offset:%d" % (vr(EN + i), vr(t5), i * 8192))
    e("s_waitcnt lgkmcnt(0)")
    lab("K2_EXPAND")
    sd = "dst_sel:DWORD dst_unused:UNUSED_PAD src0_sel:WORD_%d src1_sel:DWORD"
    e("v_lshrrev_b32 %s, 16, %s" % (vr(P + 1), vr(EN)))
    e("v_add_u32_sdwa %s, %s, %s %s" % (vr(P + 2), vr(EN + 1), vr(P + 1), sd % 1))
    e("v_add_u32_sdwa %s, %s, %s %s" % (vr(P + 3), vr(EN + 2), vr(P + 2), sd % 1))
    e("v_add_u32_sdwa %s, %s, %s %s" % (vr(INC), vr(EN + 3), vr(P + 3), sd % 1))
    fill = ["v_add_u32 %s, %s, %s" % (vr(TOT), sr(sW0), vr(INC))]
    fill += ["v_add_u32_sdwa %s, %s, %s %s" % (vr(D + i), vr(EN + i), vr(CB), sd % 0) for i in range(4)]
    fill += ["v_add_u32 %s, %d, %s" % (vr(D + i), i * CH, vr(D + i)) for i in range(1, 4)]
    fill += ["v_subrev_u32 %s, %s, %s" % (vr(D + i), sr(sW0), vr(D + i)) for i in range(4)]
    scan64("v_add_u32", INC, fill)
    e("v_sub_u32 %s, %s, %s" % (vr(P), vr(INC), vr(TOT)))
    e("v_readlane_b32 %s, %s, 63" % (sr(sTot), vr(INC)))
    for i in range(1, 4):
        e("v_add_u32 %s, %s, %s" % (vr(P + i), vr(P), vr(P + i)))
    for i in range(4):
        e("v_sub_u32 %s, %s, %s" % (vr(D + i), vr(D + i), vr(P + i)))
        e("v_med3_i32 %s, %s, 0, %s" % (vr(P + i), vr(P + i), vr(C512)))
        e("v_lshl_add_u32 %s, %s, 2, %s" % (vr(P + i), vr(P + i), sr(sXB)))
        e("ds_max_u32 %s, %s" % (vr(P + i), vr(D + i)))
    e("ds_read_b128 %s, %s" % (vr(M, 4), vr(LA)))
    e("ds_read_b128 %s, %s offset:16" % (vr(M + 4, 4), vr(LA)))
    e("s_lshl_b32 s10, %s, 3" % sr(sTot)); e("s_or_b32 s10, s10, %s" % sr(sW)); e("s_lshl_b32 s11, %s, 2" % sr(sW))
    e("v_mov_b32 %s, s10" % vr(TOT)); e("v_mov_b32 %s, s11" % vr(INC))
    e("s_mov_b64 exec, 1")
    e("ds_write_b32 %s, %s offset:%d" % (vr(INC), vr(TOT), TOTA))
    e("s_mov_b64 exec, -1")
    e("s_waitcnt lgkmcnt(1)")
    e("v_max3_u32 %s, %s, %s, %s" % (vr(INC), vr(M), vr(M + 1), vr(M + 2)))
    e("v_max3_u32 %s, %s, %s, %s" % (vr(INC), vr(INC), vr(M + 3), vr(M + 4)))
    e("v_max3_u32 %s, %s, %s, %s" % (vr(INC), vr(INC), vr(M + 5), vr(M + 6)))
    e("v_max_u32 %s, %s, %s" % (vr(INC), vr(INC), vr(M + 7)))
    AD = r.X
    fill = ["v_xor_b32 %s, %d, %s" % (vr(AD + k), 16 * k, vr(WA_)) for k in range(1, 8)]
    scan64("v_max_u32", INC, fill)
    e("s_nop 1")
    e("v_mov_b32_dpp %s, %s wave_shr:1 row_mask:0xf bank_mask:0xf" % (vr(PREV), vr(INC)))
    for k in range(8):
        e("v_max_u32 %s, %s, %s" % (vr(PREV), vr(PREV), vr(M + k)))
        e("v_add3_u32 %s, %s, %s, %d" % (vr(M + k), vr(PREV), vr(JB), k))
        e("ds_write_b32 %s, %s offset:12" % (vr(WA_ if k == 0 else AD + k), vr(M + k)))
    e("ds_read_b32 %s, %s offset:12" % (vr(c0), vr(r.PL)))
    e("ds_read_b32 %s, %s offset:%d" % (vr(c1), vr(r.PL), 1024 + 12))
    e("s_mov_b32 m0, %s" % sr(sREC))
    e("s_waitcnt lgkmcnt(1)")
    e("buffer_load_dwordx4 %s, %s, 0 idxen lds" % (vr(c0), sr(SRC, 4)))
    e("s_add_u32 m0, %s, 1024" % sr(sREC))
    e("s_waitcnt lgkmcnt(0)")
    e("buffer_load_dwordx4 %s, %s, 0 idxen lds" % (vr(c1), sr(SRC, 4)))
    e("s_cmp_eq_u32 %s, 0" % sr(sFirst))
    e("s_cbranch_scc1 K2_NOW")
    stamp()
    e("v_lshrrev_b32 %s, 3, %s" % (vr(c0), vr(lane)))
    e("v_lshlrev_b32 %s, 2, %s" % (vr(c0), vr(c0)))
    e("v_and_b32 %s, 7, %s" % (vr(c1), vr(lane)))
    e("v_lshlrev_b32 %s, 3, %s" % (vr(r.RI), vr(c1)))
    e("v_lshlrev_b32 %s, 2, %s" % (vr(c1), vr(c1)))
    e("v_lshlrev_b32 %s, 4, %s" % (vr(c2), vr(lane)))
    e("v_add_u32 %s, %d, %s" % (vr(c2), XBB + 4096, vr(c2)))
    e("s_sub_u32 s10, 7, %s" % sr(sW)); e("s_sub_u32 s11, %s, 4" % sr(sW))
    e("s_cmp_lt_u32 %s, 4" % sr(sW)); e("s_cselect_b32 s11, s10, s11")
    e("s_waitcnt vmcnt(2)")
    e("s_barrier")
    stamp()
    e("ds_read_b32 %s, %s offset:%d" % (vr(c0), vr(c0), TOTA))
    e("ds_read_b32 %s, %s offset:%d" % (vr(c1), vr(c1), TOTA))
    WA = r.G[0]; WU = r.G[1]
    assert r.V[0] == r.G[0] + 16 and r.V[1] == r.G[1] + 16
    wr = []
    for m, base in enumerate([WA, WU, r.WB, r.WV]):
        for u in range(8):
            uu = m * 8 + u
            wr.append("ds_read_b128 %s, %s offset:%d" % (vr(base + 4 * u, 4), vr(c2), (uu >> 2) * 8192 + (uu & 3) * 1024))
    for s in wr[:8]: e(s)
    e("s_waitcnt lgkmcnt(8)")
    if PAIR:
        e("v_cmp_lt_u32 vcc, %s, %s" % (vr(c1), vr(c0)))
        e(wr[8]); e(wr[9])
        e("v_lshrrev_b64 %s, %s, vcc" % (vr(r.SO, 2), vr(r.RI)))
        e("v_and_b32 %s, 0xff, %s" % (vr(r.SO), vr(r.SO)))
        e("v_bcnt_u32_b32 %s, %s, 0" % (vr(r.SO), vr(r.SO)))
        e("v_cmp_eq_u32 vcc, s11, %s" % vr(r.SO))
        e("s_ff1_i32_b64 s10, vcc")
        e(wr[10]); e(wr[11])
        e("v_readlane_b32 %s, %s, s10" % (sr(sTot), vr(c1)))
        e("s_lshr_b32 %s, %s, 3" % (sr(sTot), sr(sTot)))
    else:
        for s in wr[8:12]: e(s)
        e("s_mov_b32 s10, %s" % sr(sW))
    e("s_lshl_b32 %s, s10, 11" % sr(sXT)); e("s_add_u32 %s, %s, %d" % (sr(sXT), sr(sXT), XTB))
    e("s_lshl_b32 %s, s10, 13" % sr(sREC)); e("s_add_u32 %s, %s, %d" % (sr(sREC), sr(sREC), RECB))
    e("s_lshl_b32 %s, %s, 3" % (sr(sT), sr(sBin))); e("s_add_u32 %s, %s, s10" % (sr(sT), sr(sT)))
    tile_range()
    def xtile(mapreg):
        e("v_add_u32 %s, %s, %s" % (vr(c0), sr(sXT), vr(mapreg)))
        for s in range(4):
            if s: e("v_xor_b32 %s, %d, %s" % (vr(c1), 32 * s, vr(c0)))
            e("ds_read_b128 %s, %s" % (vr(r.X + 4 * s, 4), vr(c1 if s else c0)))
    xtile(FA)
    for s in wr[12:]: e(s)
    e("s_min_u32 %s, %s, %d" % (sr(sEnd), sr(sEnd), N_NODES))
    e("s_sub_u32 s10, %s, %s" % (sr(sEnd), sr(sStart))); e("s_lshl_b32 s10, s10, 7")
    e("s_lshl_b32 s11, %s, 7" % sr(sStart))
    srd(SOUT, 6, "s10", "s11")
    e("v_lshl_add_u32 %s, %s, 4, %s" % (vr(r.PL), vr(lane), sr(sREC)))
    lab("K2_NOW")
    e("v_bfe_u32 %s, %s, 2, 2" % (vr(c0), vr(lane)))
    e("v_lshrrev_b32 %s, 5, %s" % (vr(c1), vr(lane)))
    e("v_lshl_or_b32 %s, %s, 3, %s" % (vr(c0), vr(c1), vr(c0)))
    e("v_lshl_add_u32 %s, %s, 4, %s" % (vr(r.PS), vr(c0), sr(sREC)))
    e("v_and_b32 %s, 3, %s" % (vr(c0), vr(lane)))
    e("v_add_u32 %s, %s, %s" % (vr(r.PC), vr(c0), vr(r.PS)))
    e("v_and_b32 %s, 31, %s" % (vr(c0), vr(lane)))
    e("v_lshl_add_u32 %s, %s, 4, %s" % (vr(r.PT), vr(c0), sr(sREC)))
    e("v_lshl_add_u32 %s, %s, 2, %s" % (vr(r.PE), vr(c1), vr(r.PT)))
    e("s_sub_u32 s10, %s, %s" % (sr(sTot), sr(sW0)))
    e("s_min_u32 s10, s10, 512")
    e("s_add_u32 s10, s10, 31"); e("s_lshr_b32 s10, s10, 5")
    e("s_max_u32 s10, s10, 1")
    e("s_sub_u32 %s, s10, 1" % sr(sNG))
    e("s_add_u32 %s, %s, 3072" % (sr(sRD), sr(sREC)))
    e("s_add_u32 %s, %s, 8192" % (sr(sRE), sr(sREC)))
    stamp()
    e("s_waitcnt vmcnt(0) lgkmcnt(0)")
    e("s_cmp_eq_u32 %s, 0" % sr(sFirst))
    e("s_cbranch_scc1 K2_NOB")
    e("s_barrier")
    lab("K2_NOB")
    stamp()
    def xidx(g, t):
        return "ds_read_u16 %s, %s offset:%d" % (vr(r.XI + 2 * t), vr(r.PS), g * 512 + SOFF[t] + 8)
    def xm0(buf):
        return "s_add_u32 m0, %s, %d" % (sr(sXB), buf * 4096)
    def xdma(t):
        return "buffer_load_dwordx4 %s, %s, %s idxen offen offset:%d lds" % (vr(r.XI + 2 * t, 2), sr(SXI, 4), sr(sSO + t) if t < 3 else "0", t * 1024)
    def xread(buf, k):
        return "ds_read_b128 %s, %s offset:%d" % (vr(r.X + 4 * k, 4), vr(r.XA1 if k & 1 else r.XA0), buf * 4096 + (k >> 1) * 256)
    def t0read(g): return "ds_read_b32 %s, %s offset:%d" % (vr(r.T), vr(r.PE), g * 512)
    def tiread(g): return "ds_read_b32 %s, %s offset:%d" % (vr(r.TI), vr(r.PT), g * 512 + 8)
    def soread(g, t): return "ds_read_u8 %s, %s offset:%d" % (vr(r.SO + t), vr(r.PC), g * 512 + SOFF[t] + 12)
    def trread(t): return "ds_read_b64_tr_b16 %s, %s offset:%d" % (vr(r.S + 2 * t, 2), vr(r.SO + t), TS)
    def riread(blk): return "ds_read_b32 %s, %s offset:%d" % (vr(r.RI), vr(r.PL), blk * 1024 + 12)
    rdma = "buffer_load_dwordx4 %s, %s, 0 idxen lds" % (vr(r.RI), sr(SRC, 4))
    for t in range(4): e(xidx(0, t))
    X2 = r.S
    for t in range(4): e("ds_read_u16 %s, %s offset:%d" % (vr(X2 + 2 * t), vr(r.PS), 512 + SOFF[t] + 8))
    e(riread(2))
    for t in range(4): e("v_mov_b32 %s, %s" % (vr(X2 + 2 * t + 1), vr(r.XI + 2 * t + 1)))
    e(xm0(0))
    e("s_waitcnt lgkmcnt(5)")
    for t in range(4): e(xdma(t))
    e(xm0(1))
    e("s_waitcnt lgkmcnt(1)")
    for t in range(4): e(xdma(t).replace(vr(r.XI + 2 * t, 2), vr(X2 + 2 * t, 2)))
    e("s_add_u32 m0, %s, 2048" % sr(sREC))
    e("s_waitcnt lgkmcnt(0)")
    e(rdma)
    for t in range(4): e(soread(0, t))
    e(t0read(0)); e(tiread(0))
    for t in range(4): e(xidx(2, t))
    e(riread(3))
    e("s_cmp_eq_u32 %s, 0" % sr(sFirst))
    e("s_cbranch_scc1 K2_NOW2")
    e("s_mov_b32 s10, 0x%x" % NEGLOG2E)
    for f in range(2):
        for s in range(4):
            e(mfma(r.ACC[f], r.X + 4 * s, WA + 16 * f + 4 * s, None if s == 0 else r.ACC[f]))
    xtile(FU)
    e("s_nop 2")
    for f in range(2):
        for i in range(16):
            if i & 3: e("v_mul_f32 %s, s10, %s" % (vr(r.ACC[f] + i), vr(r.ACC[f] + i)))
        if f == 0:
            e("s_waitcnt lgkmcnt(0)")
            for ff in range(2):
                for s in range(4):
                    e(mfma(WA + 16 * ff, r.X + 4 * s, WU + 16 * ff + 4 * s, None if s == 0 else WA + 16 * ff))
    for f in range(2):
        for i in range(8):
            e("v_cvt_pk_bf16_f32 %s, %s, %s" % (vr(r.AT + 8 * f + i), vr(r.ACC[f] + 2 * i) if i & 1 else "0", vr(r.ACC[f] + 2 * i + 1)))
    e("s_mov_b32 exec_hi, 0")
    for f in range(2):
        e("v_mov_b32 %s, %s" % (vr(r.AT + 8 * f), vr(WC + 2 * f)))
        e("v_mov_b32 %s, %s" % (vr(r.AT + 8 * f + 4), vr(WC + 2 * f + 1)))
    e("s_mov_b64 exec, -1")
    for f in range(2):
        for i in range(16):
            e("v_mov_b32 %s, 0" % vr(r.ACC[f] + i))
    for f in range(2):
        for i in range(8):
            e("v_mov_b32 %s, %s" % (vr(r.U + 8 * f + i), vr(WA + 16 * f + i)))
    lab("K2_NOW2")
    e("s_waitcnt lgkmcnt(0)")
    e(trread(0)); e(trread(1))
    for i in range(4): e("v_mov_b32 %s, 0" % vr(r.S + 4 + i))
    for i in range(8):
        e("v_mov_b32 %s, 0" % vr(r.V[1] + 8 + i))
    for i in range(13, 16):
        e("v_mov_b32 %s, 1.0" % vr(r.G[1] + i))
    stamp()
    e("s_waitcnt vmcnt(5)")
    stamp()
    for k in range(4): e(xread(0, k))
    e(xm0(0))
    for s in range(4):
        e("s_waitcnt lgkmcnt(%d)" % (3 - s))
        e(mfma(r.G[0], r.X + 4 * s, r.WB + 4 * s, None if s == 0 else r.G[0]))
    e(smf(r.G[0], r.T, r.AT, r.TI, 1))
    for s in range(4):
        e(mfma(r.V[0], r.X + 4 * s, r.WV + 4 * s, None if s == 0 else r.V[0]))
        e(xdma(s))
    e("s_setprio 1")
    e("s_nop 4")
    stamp()
    if STAMP: e("s_memrealtime s[92:93]"); e("s_waitcnt lgkmcnt(0)"); e("s_add_u32 s63, %s, 1" % sr(sNG))

    def valu_slot(a, i):
        out = []
        def reg(base, idx):
            return (base[a] + idx) if idx >= 0 else (base[1 - a] + 16 + idx)
        if i < 16: out.append("v_exp_f32 %s, %s" % (vr(reg(r.G, i)), vr(reg(r.G, i))))
        if i - 1 < 16: out.append("v_add_f32 %s, 1.0, %s" % (vr(reg(r.G, i - 1)), vr(reg(r.G, i - 1))))
        if i - 2 < 16: out.append("v_rcp_f32 %s, %s" % (vr(reg(r.G, i - 2)), vr(reg(r.G, i - 2))))
        out.append("v_mul_f32 %s, %s, %s" % (vr(reg(r.V, i - 3)), vr(reg(r.G, i - 3)), vr(reg(r.V, i - 3))))
        out.append("v_cvt_pk_bf16_f32 %s, %s, %s" % (vr(reg(r.V, i - 3)), vr(reg(r.G, i - 3)), vr(reg(r.V, i - 3))))
        return out
    def I(text, lds=None, need=()):
        return dict(text=text, lds=lds, need=list(need))
    POS = [(3, 2), (4, 3), (5, 4), (7, 0), (8, 1), (9, 2), (10, 4), (12, 0), (13, 2), (14, 3), (15, 4)]
    def phase(a, g):
        b = 1 - a
        xn = ['X%d' % k for k in range(4)]
        mm = [I(smf(r.ACC[b], r.S + 4, r.V[b] + 8, r.SI), need=['S3'])]
        mm += [I(mfma(r.G[b], r.X + 4 * k, r.WB + 16 * b + 4 * k, None if k == 0 else r.G[b]), need=[xn[k]]) for k in range(4)]
        mm += [I(smf(r.G[b], r.T, r.AT + 8 * b, r.TI, 1), need=['T0', 'TI'])]
        vv = [I(mfma(r.V[b], r.X + 4 * k, r.WV + 16 * b + 4 * k, None if k == 0 else r.V[b])) for k in range(4)]
        mm += [vv[0], I(smf(r.ACC[a], r.S, r.V[a], r.SI), need=['S1'])] + vv[1:]
        aux = [[] for _ in range(11)]
        nb = (g + 1) & 1
        if a == 0:
            aux[0] += [I(trread(2), lds='S2', need=['SO3'])]
            aux[1] += [I(trread(3), lds='S3')]
            if g == 0:
                aux[1].insert(0, I("s_mov_b32 m0, %s" % sr(sRD)))
                aux[2] += [I(rdma, need=['RI'])]
                aux[3] += [I("s_add_u32 %s, %s, 1024" % (sr(sRD), sr(sRD)))]
                aux[4] += [I("s_cmp_lt_u32 %s, %s" % (sr(sRD), sr(sRE)))]
                aux[5] += [I("s_cselect_b32 %s, %s, %d" % (sr(sRD), sr(sRD), DUMMY))]
                aux[3] += [I(xidx(g + 3, 0), lds='XI0'), I(xidx(g + 3, 1), lds='XI1')]
            else:
                aux[2] += [I(xidx(g + 3, 0), lds='XI0')]
                aux[3] += [I(xidx(g + 3, 1), lds='XI1')]
            aux[4] += [I(xidx(g + 3, 2), lds='XI2'), I(xidx(g + 3, 3), lds='XI3')]
            aux[5] += [I(t0read(g + 1), lds='T0')]
            aux[6] += [I("s_waitcnt vmcnt(5)", need=['S3']), I(xread(nb, 0), lds='X0')]
            aux[7] += [I(tiread(g + 1), lds='TI')]
            for k in range(1, 4): aux[7 + k] += [I(xread(nb, k), lds=xn[k])]
        else:
            aux[0] += [I(soread(g + 1, 0), lds='SO0', need=['X3'])]
            aux[1] += [I(soread(g + 1, 1), lds='SO1')]
            aux[2] += [I(soread(g + 1, 2), lds='SO2')]
            aux[3] += [I(xm0(nb)), I(soread(g + 1, 3), lds='SO3')]
            aux[4] += [I(xdma(0), need=['XI3'])]
            aux[5] += [I(xdma(1))]
            aux[6] += [I(xdma(2))]
            aux[7] += [I(trread(0), lds='S0', need=['SO3'])]
            aux[8] += [I(trread(1), lds='S1')]
            aux[9] += [I(xdma(3))]
            aux[10] += [I("s_sub_u32 %s, %s, 1" % (sr(sNG), sr(sNG)))]
            if g == 1:
                aux[10] += [I(riread(3), lds='RI')]
        ex = {}
        for k in range(11): ex[POS[k]] = [mm[k]] + aux[k]
        if a == 1 and g == 1:
            ex.setdefault((8, 0), []).extend([I("v_lshl_add_u64 %s, %s, 0, %s" % (vr(r.PS, 2), vr(r.PS, 2), sr(sINC, 2))),
                                              I("v_lshl_add_u64 %s, %s, 0, %s" % (vr(r.PT, 2), vr(r.PT, 2), sr(sINC, 2)))])
        if a == 0 and g == 0:
            ex.setdefault((1, 0), []).append(I("v_add_u32 %s, 1024, %s" % (vr(r.PL), vr(r.PL))))
        if PRIO and a == 1:
            ex[POS[0]].insert(1, I("s_setprio 0"))
            ex[POS[PRIO]].insert(1, I("s_setprio 1"))
        out = []
        for i in range(16):
            for p, t in enumerate(valu_slot(a, i)):
                out.extend(ex.pop((i, p), []))
                out.append(I(t))
        assert not ex, ex
        return out
    body = phase(0, 0) + phase(1, 0) + [I("s_cbranch_scc1 K2_DRAIN")] + phase(0, 1) + phase(1, 1) + [I("s_cbranch_scc0 K2_LOOP")]
    issued = []; done = 0
    for pas in range(2):
        if pas == 1: lab("K2_LOOP")
        for it in body:
            n = None
            for tag in it['need']:
                idxs = [k for k, t in enumerate(issued) if t == tag]
                if not idxs: continue
                k = idxs[-1]
                if k >= done:
                    n = len(issued) - 1 - k
                    done = k + 1
            tx = it['text']
            if n is not None:
                assert n <= 15
                if tx.startswith("s_waitcnt"): tx += " lgkmcnt(%d)" % n
                elif pas == 1: e("s_waitcnt lgkmcnt(%d)" % n)
            if pas == 1:
                if ABL == 'nomfma' and 'mfma' in tx: tx = "s_nop 0"
                e(tx)
            if it['lds']: issued.append(it['lds'])
    lab("K2_DRAIN")
    stamp()
    if STAMP: e("s_memrealtime s[94:95]")
    e("s_setprio 2")
    XR = r.X; EA = r.X + 8
    e("s_waitcnt lgkmcnt(0)")
    pre = []
    pre.append("v_lshrrev_b32 %s, 5, %s" % (vr(c0), vr(lane)))
    pre.append("v_and_b32 %s, 31, %s" % (vr(c1), vr(lane)))
    pre.append("v_lshlrev_b32 %s, 2, %s" % (vr(c1), vr(c1)))
    pre.append("v_mul_u32_u24 %s, 0x240, %s" % (vr(c2), vr(c0)))
    pre.append("v_xor_b32 %s, %s, %s" % (vr(c2), vr(c2), vr(c1)))
    pre.append("v_add_u32 %s, %s, %s" % (vr(c2), sr(sXT), vr(c2)))
    for i in range(16, 19):
        for t in valu_slot(1, i): e(t)
        e(pre.pop(0)); e(pre.pop(0))
    e(smf(r.ACC[1], r.S + 4, r.V[1] + 8, r.SI))
    e("s_add_u32 %s, %s, 512" % (sr(sW0), sr(sW0)))
    e("s_cmp_lt_u32 %s, %s" % (sr(sW0), sr(sTot)))
    e("s_cbranch_scc1 K2_MORE")
    for q in range(4):
        if q: e("v_xor_b32 %s, %d, %s" % (vr(EA), 16 * q, vr(c2)))
        e("ds_read_b32 %s, %s offset:%d" % (vr(XR + q), vr(EA if q else c2), q * 128))
        e("ds_read_b32 %s, %s offset:%d" % (vr(XR + q + 4), vr(EA if q else c2), q * 128 + 1024))
    e("v_lshlrev_b32 %s, 2, %s" % (vr(c0), vr(c0)))
    e("v_subrev_u32 %s, %s, %s" % (vr(c0), sr(sStart), vr(c0)))
    e("v_lshl_add_u32 %s, %s, 7, %s" % (vr(c0), vr(c0), vr(c1)))
    for q in range(8):
        e("v_add_u32 %s, %d, %s" % (vr(EA + q), (8 * (q >> 2) + (q & 3)) * 128, vr(c0)))
        e("v_and_b32 %s, 0x7ff, %s" % (vr(EA + q), vr(EA + q)))
    e("s_mov_b32 s10, 0x358637bd")
    for f in range(2):
        for q in range(8):
            e("v_add_f32 %s, s10, %s" % (vr(r.ACC[f] + q), vr(r.ACC[f] + q)))
        for q in range(8):
            e("v_rcp_f32 %s, %s" % (vr(r.ACC[f] + q), vr(r.ACC[f] + q)))
    e("s_waitcnt lgkmcnt(0)")
    for q in range(8):
        for f in range(2):
            u = r.U + 8 * f + q
            e("v_fmac_f32 %s, %s, %s" % (vr(u), vr(r.ACC[f] + q), vr(r.ACC[f] + 8 + q)))
            if f == 0: e("v_lshlrev_b32 %s, 16, %s" % (vr(c1), vr(XR + q)))
            else: e("v_and_b32 %s, 0xffff0000, %s" % (vr(c1), vr(XR + q)))
            e("v_max_f32 %s, 0, %s" % (vr(u), vr(u)))
            e("v_add_f32 %s, %s, %s" % (vr(u), vr(c1), vr(u)))
        e("v_cvt_pk_bf16_f32 %s, %s, %s" % (vr(r.U + q), vr(r.U + q), vr(r.U + 8 + q)))
        e("buffer_store_dword %s, %s, %s, 0 offen" % (vr(r.U + q), vr(EA + q), sr(SOUT, 4)))
    stamp()
    if STAMP:
        e("s_waitcnt vmcnt(0) lgkmcnt(0)"); e("s_mov_b32 s%d, s63" % (64 + 2 * nstamp[0])); nstamp[0] += 1
    stamp(final=True, wsreg=8, wave=sr(sW), nwaves=8, kid=1, tmpv=10)
    lab("K2_END")
    e("s_endpgm")
    lab("K2_MORE")
    e("s_mov_b32 %s, 0" % sr(sFirst))
    e("s_waitcnt vmcnt(0) lgkmcnt(0)")
    e("s_nop 15")
    e("s_lshl_b32 s10, %s, 2" % sr(sT))
    e("v_lshl_add_u32 %s, %s, 15, s10" % (vr(c0), vr(lane)))
    for i in range(4):
        e("buffer_load_dword %s, %s, %s, 0 offen" % (vr(EN + i), vr(c0), sr(SOFS, 4)))
        e("v_add_u32 %s, 8192, %s" % (vr(c0), vr(c0)))
    expand_pre()
    e("s_waitcnt vmcnt(0)")
    e("s_branch K2_EXPAND")
    return r.n

hdr = open('cdna_kernels/%s.s.ref' % NAME).read().split('\n')
hdr = [l for l in hdr if l.startswith(';   offset') or l.startswith('; Kernarg')]
L.append('.amdgcn_target "amdgcn-amd-amdhsa--gfx950"')
L.append('.text')
lds1 = k1()
nv2 = k2()
def kd(name, nv, ns):
    return [".p2align 6", ".amdhsa_kernel %s" % name, "  .amdhsa_next_free_vgpr %d" % nv, "  .amdhsa_next_free_sgpr %d" % ns,
            "  .amdhsa_accum_offset %d" % ((nv + 3) // 4 * 4), "  .amdhsa_group_segment_fixed_size 0", "  .amdhsa_kernarg_size 96",
            "  .amdhsa_user_sgpr_count 2", "  .amdhsa_user_sgpr_kernarg_segment_ptr 1", "  .amdhsa_system_sgpr_workgroup_id_x 1",
            ".end_amdhsa_kernel"]
if XL:
    L.append(".p2align 8"); L.append(".type k0_nop_kernel,@function"); lab("k0_nop_kernel"); e("s_endpgm")
L.append('.section .rodata,"a"')
if XL: L += kd("k0_nop_kernel", 8, 16)
L += kd("k1_sort_kernel", 72, 102 if STAMP else 64)
L += kd("k2_main_kernel", 256, 102 if STAMP else 64)
top = hdr + ["; @launch kernel=k1_sort_kernel grid=(%d,1,1) block=(1024,1,1) lds=%d" % (NC + 1, lds1),
             "; @launch kernel=k2_main_kernel grid=(256,1,1) block=(512,1,1) lds=%d" % K2_LDS]
if XL:
    ln = "; @launch kernel=k0_nop_kernel grid=(256,1,1) block=(64,1,1) lds=0"
    top.insert({'a': len(top) - 2, 'b': len(top) - 1, 'c': len(top)}[XL], ln)
open(OUT, 'w').write("\n".join(top + L) + "\n")
print("vgprs k2:", nv2, "lines:", len(L))
```

```python
import sys, re

NAME = "standalone__edge_featured_mpnn_gatedgcn__graph"
N_NODES = 25000
CH = 3200
NC = 250
TMUL = 5368
WS_REC = 0
WS_OFF = 0xD00000
WS_WFR = 0xF00000
WS_DBG = 0x1000000
NEGLOG2E = 0xBFB8AA3B

opts = dict(a.split('=') for a in sys.argv[1:] if '=' in a)
OUT = opts.get('out', 'cdna_kernels/%s.s' % NAME)
STAMP = int(opts.get('stamp', 0))
PRIO = int(opts.get('prio', 6))
ABL = opts.get('abl', '')
STF = opts.get('stf', 'sc0+sc1').replace('+', ' ')
LDF = opts.get('ldf', '').replace('+', ' ')
PAIR = int(opts.get('pair', 1))
PF = opts.get('pf', '')
OSF = opts.get('osf', '').replace('+', ' ')
XST = int(opts.get('xst', 7))
DLY1 = int(opts.get('dly1', 0)); DLY2 = int(opts.get('dly2', 0)); XL = opts.get('xl', '')

L = []
def e(s): L.append("    " + s)
def lab(s): L.append(s + ":")
def vr(a, n=1): return "v%d" % a if n == 1 else "v[%d:%d]" % (a, a + n - 1)
def sr(a, n=1): return "s%d" % a if n == 1 else "s[%d:%d]" % (a, a + n - 1)

DPPS = ["row_shr:1 row_mask:0xf bank_mask:0xf", "row_shr:2 row_mask:0xf bank_mask:0xf",
        "row_shr:4 row_mask:0xf bank_mask:0xf", "row_shr:8 row_mask:0xf bank_mask:0xf",
        "row_bcast:15 row_mask:0xa bank_mask:0xf", "row_bcast:31 row_mask:0xc bank_mask:0xf"]
def scan64(op, v, fill=()):
    fill = list(fill)
    for m in DPPS:
        n = 0
        while n < 2 and fill:
            e(fill.pop(0)); n += 1
        if n < 2: e("s_nop %d" % (1 - n))
        e("%s_dpp %s, %s, %s %s" % (op, vr(v), vr(v), vr(v), m))
    for f in fill: e(f)

def srd(d, base, nbytes, add=None, stride=0, sub=None):
    if sub is not None:
        e("s_sub_u32 %s, %s, %s" % (sr(d), sr(base), sub))
        e("s_subb_u32 %s, %s, 0" % (sr(d + 1), sr(base + 1)))
        e("s_and_b32 %s, %s, 0xffff" % (sr(d + 1), sr(d + 1)))
    elif add is None:
        e("s_mov_b32 %s, %s" % (sr(d), sr(base)))
        e("s_and_b32 %s, %s, 0xffff" % (sr(d + 1), sr(base + 1)))
    else:
        e("s_add_u32 %s, %s, %s" % (sr(d), sr(base), add))
        e("s_addc_u32 %s, %s, 0" % (sr(d + 1), sr(base + 1)))
        e("s_and_b32 %s, %s, 0xffff" % (sr(d + 1), sr(d + 1)))
    if stride:
        e("s_or_b32 %s, %s, 0x%x" % (sr(d + 1), sr(d + 1), stride << 16))
    e("s_mov_b32 %s, %s" % (sr(d + 2), nbytes if isinstance(nbytes, str) else "0x%x" % nbytes))
    e("s_mov_b32 %s, 0x20000" % sr(d + 3))

nstamp = [0]
def stamp(final=False, wsreg=8, wave=None, nwaves=8, kid=0, tmpv=None):
    if not STAMP: return
    k = nstamp[0]; nstamp[0] += 1
    e("s_memtime s[%d:%d]" % (64 + 2 * k, 65 + 2 * k))
    if k == 0: e("s_memrealtime s[96:97]")
    if not final: return
    e("s_memrealtime s[98:99]")
    e("s_mov_b64 exec, 1")
    e("s_mul_i32 s60, s2, %d" % nwaves); e("s_add_u32 s60, s60, %s" % wave); e("s_lshl_b32 s60, s60, 7")
    e("s_add_u32 s60, s60, 0x%x" % (WS_DBG + kid * 0x80000))
    e("s_add_u32 s60, s60, s%d" % wsreg); e("s_addc_u32 s61, s%d, 0" % (wsreg + 1))
    e("v_mov_b32 v%d, 0" % tmpv)
    e("s_waitcnt lgkmcnt(0)")
    def st(s, off):
        e("v_mov_b32 v%d, %s" % (tmpv + 1, s)); e("global_store_dword v%d, v%d, s[60:61] offset:%d" % (tmpv, tmpv + 1, off))
    for j in range(k + 1): st("s%d" % (64 + 2 * j), 4 * j)
    st("s96", 120); st("s98", 124); st("s92", 104); st("s94", 108)
    if STAMP == 2:
        e("s_load_dwordx2 s[60:61], s[0:1], 80")
        e("s_waitcnt lgkmcnt(0)")
        if kid == 0:
            e("s_add_u32 s60, s60, 512"); e("s_addc_u32 s61, s61, 0")
        e("s_and_b32 s62, %s, 3" % wave); e("s_cmp_lg_u32 s62, 0"); e("s_cbranch_scc1 DBG_SKIP%d" % kid)
        e("s_lshr_b32 s62, s2, 3"); e("s_xor_b32 s62, s62, s2"); e("s_and_b32 s62, s62, 7"); e("s_cmp_lg_u32 s62, 0"); e("s_cbranch_scc1 DBG_SKIP%d" % kid)
        def am(s, off, neg):
            if neg: e("s_not_b32 s62, %s" % s); s = "s62"
            e("v_mov_b32 v%d, %s" % (tmpv + 1, s)); e("global_atomic_umax v%d, v%d, s[60:61] offset:%d" % (tmpv, tmpv + 1, off))
        if kid == 0:
            am("s96", 0, True); am("s96", 4, False); am("s98", 8, False)
            e("s_sub_u32 s62, s66, s64"); am("s62", 44, False)
            e("s_sub_u32 s62, s72, s64"); am("s62", 48, False)
        else:
            am("s96", 12, True); am("s96", 16, False); am("s92", 20, True); am("s92", 24, False); am("s94", 28, True); am("s94", 32, False); am("s98", 36, False)
            e("s_sub_u32 s62, s68, s64"); am("s62", 52, False)
            e("s_sub_u32 s62, s72, s64"); am("s62", 56, False)
            e("s_sub_u32 s62, s76, s64"); am("s62", 60, False)
        lab("DBG_SKIP%d" % kid)
        nstamp[0] = 0
        return
    e("s_getreg_b32 s62, hwreg(HW_REG_HW_ID)"); st("s62", 116)
    e("s_getreg_b32 s62, hwreg(HW_REG_XCC_ID)"); st("s62", 112)
    nstamp[0] = 0

def k1():
    HIST, WTOT, RB = 0, 8192, 8448
    L.append(".p2align 8"); L.append(".type k1_sort_kernel,@function"); lab("k1_sort_kernel")
    e("s_load_dwordx4 s[4:7], s[0:1], 8")
    e("s_load_dwordx2 s[8:9], s[0:1], 24")
    e("s_load_dwordx2 s[10:11], s[0:1], 88")
    e("s_load_dwordx2 s[44:45], s[0:1], 0")
    e("s_cmp_ge_u32 s2, %d" % NC)
    e("s_cbranch_scc1 K1_AUX")
    for _ in range(DLY1): e("s_sleep 36")
    stamp()
    e("v_lshlrev_b32 v1, 4, v0")
    e("v_lshlrev_b32 v2, 5, v0")
    e("v_lshlrev_b32 v3, 3, v0")
    e("v_mov_b32 v4, 0"); e("v_mov_b32 v5, 0")
    e("s_mul_i32 s12, s2, %d" % (CH * 4))
    e("s_mul_i32 s13, s2, %d" % (CH * 8))
    e("s_mul_i32 s14, s2, %d" % (CH * 16))
    e("s_lshl_b32 s15, s2, 13")
    e("s_add_u32 s15, s15, 0x%x" % WS_OFF)
    e("ds_write_b64 v3, v[4:5] offset:%d" % HIST)
    e("v_lshrrev_b32 v7, 6, v0")
    e("s_waitcnt lgkmcnt(0)")
    srd(16, 8, CH * 4, "s12")
    e("buffer_load_dwordx4 v[8:11], v1, s[16:19], 0 offen " + LDF)
    srd(20, 6, CH * 4, "s12")
    srd(24, 4, CH * 8, "s13")
    def rest():
        e("buffer_load_dwordx4 v[12:15], v1, s[20:23], 0 offen " + LDF)
        e("buffer_load_dwordx4 v[16:19], v2, s[24:27], 0 offen " + LDF)
        e("buffer_load_dwordx4 v[24:27], v2, s[24:27], 0 offen offset:16 " + LDF)
    if 'd' not in PF: rest()
    srd(28, 10, CH * 16, "s14")
    srd(32, 10, 8192, "s15")
    srd(48, 44, N_NODES * 128)
    e("v_readfirstlane_b32 s38, v7")
    e("v_mov_b32 v6, 1")
    e("v_lshlrev_b32 v40, 2, v7")
    e("v_and_b32 v41, 7, v0")
    e("v_lshlrev_b32 v41, 2, v41")
    e("v_cmp_gt_u32 vcc, %d, v0" % (CH // 4))
    e("s_mov_b64 s[36:37], vcc")
    if 'w' in PF or 'c' in PF:
        e("s_cmp_lg_u32 s38, 15")
        e("s_cbranch_scc1 K1_NOPF")
        e("v_and_b32 v68, 63, v0")
        if 'w' in PF:
            e("v_lshlrev_b32 v69, 12, v68")
            e("buffer_load_dword v70, v69, s[28:31], 0 offen")
            e("buffer_load_dword v70, v69, s[32:35], 0 offen")
        if 'c' in PF:
            e("s_getpc_b64 s[46:47]")
            lab("K1_PC")
            e("v_lshlrev_b32 v69, 7, v68")
            e("global_load_dword v70, v69, s[46:47]")
            e("s_add_u32 s46, s46, k2_main_kernel-K1_PC")
            e("s_addc_u32 s47, s47, 0")
            e("global_load_dword v70, v69, s[46:47]")
        lab("K1_NOPF")
    e("s_barrier")
    e("s_mov_b64 exec, s[36:37]")
    e("s_cbranch_execz K1_A")
    e("s_waitcnt vmcnt(%d)" % (0 if 'd' in PF else 3))
    if 'd' in PF: rest()
    stamp()
    for i in range(4):
        e("v_mul_u32_u24 v%d, %d, v%d" % (32 + i, TMUL, 8 + i))
    for i in range(4):
        e("v_lshrrev_b32 v%d, 14, v%d" % (32 + i, 32 + i))
        e("v_and_b32 v%d, 0x1ffc, v%d" % (32 + i, 32 + i))
        e("ds_add_rtn_u32 v%d, v%d, v6 offset:%d" % (36 + i, 32 + i, HIST))
    for i in range(4):
        d, a, b = 8 + i, 44 + i, 48 + i
        e("v_and_b32 v%d, 15, v%d" % (d, d))
        e("v_mul_u32_u24 v52, 11, v%d" % d)
        e("v_lshrrev_b32 v52, 5, v52")
        e("v_mad_i32_i24 v%d, v52, -3, v%d" % (a, d))
        e("v_add_u32 v%d, 1, v%d" % (a, a))
        e("v_lshl_add_u32 v52, v52, 1, 20")
        e("v_lshlrev_b32 v%d, v52, v%d" % (a, a))
        e("v_and_b32 v%d, 3, v%d" % (b, d))
        e("v_add_u32 v%d, 1, v%d" % (b, b))
        e("v_and_b32 v%d, 12, v%d" % (d, d))
        e("v_lshl_add_u32 v%d, v%d, 1, 3" % (d, d))
        e("v_lshlrev_b32 v%d, v%d, v%d" % (b, d, b))
    lab("K1_A")
    e("s_mov_b64 exec, -1")
    e("s_waitcnt lgkmcnt(0)")
    e("s_barrier")
    stamp()
    e("s_cmp_gt_u32 s38, 7")
    e("s_cbranch_scc1 K1_S1")
    e("ds_read_b128 v[56:59], v1 offset:%d" % HIST)
    e("s_waitcnt lgkmcnt(0)")
    e("v_add_u32 v61, v56, v57")
    e("v_add_u32 v62, v61, v58")
    e("v_add_u32 v42, v62, v59")
    e("v_mov_b32 v43, v42")
    scan64("v_add_u32", 43)
    e("s_mov_b32 exec_lo, 0"); e("s_mov_b32 exec_hi, 0x80000000")
    e("ds_write_b32 v40, v43 offset:%d" % WTOT)
    e("s_mov_b64 exec, -1")
    e("v_sub_u32 v43, v43, v42")
    e("s_waitcnt lgkmcnt(0)")
    lab("K1_S1")
    e("s_barrier")
    e("s_cbranch_scc1 K1_S2")
    e("ds_read_b32 v53, v41 offset:%d" % WTOT)
    e("s_waitcnt lgkmcnt(0)")
    e("v_mov_b32 v54, v53")
    for sh in (1, 2, 4):
        e("s_nop 1")
        e("v_add_u32_dpp v54, v54, v54 row_shr:%d row_mask:0xf bank_mask:0xf" % sh)
    e("v_sub_u32 v54, v54, v53")
    e("s_nop 0")
    e("v_readlane_b32 s39, v54, s38")
    e("s_nop 1")
    e("v_add_u32 v43, s39, v43")
    e("v_add_u32 v60, v43, v56")
    e("v_add_u32 v61, v43, v61")
    e("v_add_u32 v62, v43, v62")
    e("v_lshlrev_b32 v64, 4, v43"); e("v_lshlrev_b32 v65, 4, v60"); e("v_lshlrev_b32 v66, 4, v61"); e("v_lshlrev_b32 v67, 4, v62")
    e("ds_write_b128 v1, v[64:67] offset:%d" % HIST)
    e("v_lshl_or_b32 v56, v56, 16, v43"); e("v_lshl_or_b32 v57, v57, 16, v60")
    e("v_lshl_or_b32 v58, v58, 16, v61"); e("v_lshl_or_b32 v59, v59, 16, v62")
    e("buffer_store_dwordx4 v[56:59], v1, s[32:35], 0 offen " + STF)
    e("s_waitcnt vmcnt(1) lgkmcnt(0)")
    e("s_branch K1_S3")
    lab("K1_S2")
    e("s_waitcnt vmcnt(0)")
    if 'x' in PF:
        per = 807 * 128
        e("s_lshr_b32 s43, s2, 3"); e("s_mul_i32 s43, s43, %d" % per)
        e("v_and_b32 v68, 511, v0")
        e("v_lshlrev_b32 v68, %d, v68" % XST)
        e("v_add_u32 v68, s43, v68")
        for k in range(2 << (7 - XST)):
            e("buffer_load_dword v70, v68, s[48:51], 0 offen")
            e("v_add_u32 v68, %d, v68" % (512 << XST))
    lab("K1_S3")
    e("s_barrier")
    stamp()
    e("s_mov_b64 exec, s[36:37]")
    e("s_cbranch_execz K1_B")
    for i in range(4):
        e("ds_read_b32 v%d, v%d offset:%d" % (32 + i, 32 + i, HIST))
    e("s_mov_b32 s40, 0x40000")
    e("v_mov_b32 v20, v18"); e("v_mov_b32 v21, v19")
    e("v_mov_b32 v28, v26"); e("v_mov_b32 v29, v27")
    for i in range(4):
        e("v_or3_b32 v%d, v%d, v%d, s40" % (18 + 4 * i, 44 + i, 12 + i))
        e("v_mov_b32 v%d, v%d" % (19 + 4 * i, 48 + i))
    for i in range(4):
        e("s_waitcnt lgkmcnt(3)")
        e("v_lshl_add_u32 v%d, v%d, 4, v%d" % (32 + i, 36 + i, 32 + i))
        e("ds_write_b128 v%d, v[%d:%d] offset:%d" % (32 + i, 16 + 4 * i, 19 + 4 * i, RB))
    lab("K1_B")
    e("s_mov_b64 exec, -1")
    e("s_waitcnt lgkmcnt(0)")
    e("s_barrier")
    stamp()
    for k in range(3):
        e("ds_read_b128 v[%d:%d], v1 offset:%d" % (8 + 4 * k, 11 + 4 * k, RB + 16384 * k))
    e("s_mov_b32 s40, 16384"); e("s_mov_b32 s41, 32768"); e("s_mov_b32 s42, 49152")
    e("s_cmp_gt_u32 s38, 1")
    e("s_cbranch_scc1 K1_C")
    e("ds_read_b128 v[20:23], v1 offset:%d" % (RB + 49152))
    e("s_waitcnt lgkmcnt(0)")
    e("buffer_store_dwordx4 v[20:23], v1, s[28:31], s42 offen " + STF)
    lab("K1_C")
    e("s_waitcnt lgkmcnt(2)")
    e("buffer_store_dwordx4 v[8:11], v1, s[28:31], 0 offen " + STF)
    e("s_waitcnt lgkmcnt(1)")
    e("buffer_store_dwordx4 v[12:15], v1, s[28:31], s40 offen " + STF)
    e("s_waitcnt lgkmcnt(0)")
    e("buffer_store_dwordx4 v[16:19], v1, s[28:31], s41 offen " + STF)
    stamp()
    if STAMP: e("s_waitcnt vmcnt(0)")
    stamp(final=True, wsreg=10, wave="s38", nwaves=16, kid=0, tmpv=50)
    e("s_endpgm")
    lab("K1_AUX")
    e("s_cmp_gt_u32 s2, %d" % NC)
    e("s_cbranch_scc1 K1_END2")
    e("s_load_dwordx4 s[12:15], s[0:1], 32")
    e("s_load_dwordx2 s[16:17], s[0:1], 48")
    e("s_load_dwordx4 s[20:23], s[0:1], 56")
    e("v_lshrrev_b32 v1, 6, v0")
    e("v_and_b32 v2, 63, v0")
    e("v_readfirstlane_b32 s38, v1")
    e("s_waitcnt lgkmcnt(0)")
    e("s_lshr_b32 s39, s38, 2")
    e("s_and_b32 s40, s38, 3")
    e("s_cmp_eq_u32 s39, 1"); e("s_cselect_b32 s12, s20, s12"); e("s_cselect_b32 s13, s21, s13")
    e("s_cmp_eq_u32 s39, 3"); e("s_cselect_b32 s12, s22, s12"); e("s_cselect_b32 s13, s23, s13")
    e("s_cmp_eq_u32 s39, 2"); e("s_cselect_b32 s12, s14, s12"); e("s_cselect_b32 s13, s15, s13")
    e("s_mov_b32 s42, 0x%x" % NEGLOG2E)
    e("s_cselect_b32 s41, s42, 1.0")
    srd(24, 12, 8192)
    srd(28, 16, 512)
    srd(32, 10, 32768 + 512, "0x%x" % WS_WFR)
    srd(52, 10, 512 * 16, "0x%x" % (WS_REC + 255 * CH * 16))
    e("v_and_b32 v3, 31, v2")
    e("v_lshlrev_b32 v3, 2, v3")
    e("v_lshrrev_b32 v4, 5, v2")
    e("v_lshl_add_u32 v5, v4, 10, v3")
    e("s_lshl_b32 s43, s40, 11")
    for i in range(8):
        e("buffer_load_dword v%d, v5, s[24:27], s43 offen offset:%d" % (8 + i, i * 128))
    for i in range(4):
        e("buffer_load_dword v%d, v3, s[28:31], 0 offen offset:%d" % (40 + i, i * 128))
    e("v_lshlrev_b32 v6, 4, v0")
    e("v_mov_b32 v48, 0"); e("v_mov_b32 v49, 0"); e("v_mov_b32 v50, 0x4ffff"); e("v_mov_b32 v51, 0")
    e("buffer_store_dwordx4 v[48:51], v6, s[52:55], 0 offen " + STF)
    e("s_waitcnt vmcnt(5)")
    for i in range(8):
        e("v_lshlrev_b32 v%d, 16, v%d" % (16 + i, 8 + i))
        e("v_and_b32 v%d, 0xffff0000, v%d" % (24 + i, 8 + i))
    for i in range(16):
        e("v_mul_f32 v%d, s41, v%d" % (16 + i, 16 + i))
    for i in range(8):
        e("v_cvt_pk_bf16_f32 v%d, v%d, v%d" % (32 + i, 16 + 2 * i, 17 + 2 * i))
    e("v_lshlrev_b32 v7, 4, v2")
    e("s_lshl_b32 s43, s39, 13")
    e("s_lshl_b32 s48, s40, 10")
    e("s_add_u32 s43, s43, s48")
    e("s_add_u32 s48, s43, 4096")
    e("buffer_store_dwordx4 v[32:35], v7, s[32:35], s43 offen " + STF)
    e("buffer_store_dwordx4 v[36:39], v7, s[32:35], s48 offen " + STF)
    e("s_cmp_lg_u32 s38, 0")
    e("s_cbranch_scc1 K1_END2")
    e("s_waitcnt vmcnt(3)")
    for i in range(4):
        e("v_lshlrev_b32 v%d, 16, v%d" % (16 + i, 40 + i))
        e("v_and_b32 v%d, 0xffff0000, v%d" % (20 + i, 40 + i))
    for i in range(8):
        e("v_mul_f32 v%d, s42, v%d" % (16 + i, 16 + i))
    for i in range(4):
        e("v_cvt_pk_bf16_f32 v%d, v%d, v%d" % (44 + i, 16 + 2 * i, 17 + 2 * i))
    e("v_add_u32 v7, 32768, v7")
    e("buffer_store_dwordx4 v[44:47], v7, s[32:35], 0 offen " + STF)
    lab("K1_END2")
    e("s_endpgm")
    return RB + CH * 16

TS, TOTA = 0, 64
RECB = 1024
DUMMY = RECB + 65536
XTB = DUMMY + 1024
XBB = XTB + 16384
K2_LDS = XBB + 65536

class R: pass
def alloc():
    r = R(); p = 0
    def a(n, al=1):
        nonlocal p
        p = (p + al - 1) // al * al
        b = p; p += n
        return b
    r.LANE = a(1); r.SI = a(1)
    r.PS = a(1, 2); r.PC = a(1); r.PT = a(1, 2); r.PE = a(1); r.PL = a(1); r.RI = a(1)
    r.XA0 = a(1); r.XA1 = a(1); r.TI = a(1); r.TMP = a(3)
    r.SO = a(4, 2); r.XI = a(8, 2); r.T = a(4, 2); r.S = a(8, 2); r.X = a(16, 2)
    r.U = a(16, 2)
    r.ACC = [a(16, 2), a(16, 2)]
    r.G = [a(16, 2), None]; r.V = [a(16, 2), None]
    r.G[1] = a(16, 2); r.V[1] = a(16, 2)
    r.WB = a(32, 2); r.WV = a(32, 2); r.AT = a(16, 2)
    r.n = p
    return r

def mfma(d, a, b, c):
    return "v_mfma_f32_32x32x16_bf16 %s, %s, %s, %s" % (vr(d, 16), vr(a, 4), vr(b, 4), "0" if c is None else vr(c, 16))
def smf(d, a, b, idx, abid=0):
    return "v_smfmac_f32_32x32x32_bf16 %s, %s, %s, %s%s" % (vr(d, 16), vr(a, 4), vr(b, 8), vr(idx), " abid:1" if abid else "")

SOFF = [0, 64, 256, 320]

def k2():
    r = alloc()
    assert r.n <= 256, r.n
    sW, sT, sStart, sEnd, sTot, sW0, sNG, sXB, sREC, sFirst, sBin, sMag, sRD, sRE, sXT = range(36, 51)
    sINC = 52; sSO = 54
    SX, SXI, SOFS, SRC, SWF, SOUT = 12, 16, 20, 24, 28, 32
    lane = r.LANE
    c0, c1, c2 = r.TMP, r.TMP + 1, r.TMP + 2
    MAG = -(-(1 << 41) // 671)
    for t in range(2049):
        n = t * 8192 + 670
        assert (n * MAG) >> 41 == n // 671
    def tile_range():
        e("s_lshl_b32 s10, %s, 13" % sr(sT)); e("s_add_u32 s10, s10, 670")
        e("s_mul_hi_u32 %s, s10, %s" % (sr(sStart), sr(sMag))); e("s_lshr_b32 %s, %s, 9" % (sr(sStart), sr(sStart)))
        e("s_add_u32 s10, s10, 8192")
        e("s_mul_hi_u32 %s, s10, %s" % (sr(sEnd), sr(sMag))); e("s_lshr_b32 %s, %s, 9" % (sr(sEnd), sr(sEnd)))
    L.append(".p2align 8"); L.append(".type k2_main_kernel,@function"); lab("k2_main_kernel")
    e("s_load_dwordx2 s[8:9], s[0:1], 88")
    e("s_load_dwordx2 s[4:5], s[0:1], 0")
    e("s_load_dwordx2 s[6:7], s[0:1], 72")
    e("s_cmp_gt_u32 s2, 255")
    e("s_cbranch_scc1 K2_END")
    e("s_setprio 3")
    for _ in range(DLY2): e("s_sleep 36")
    stamp()
    t0, t1, t2, t3, t4, t5, t6, t7 = [r.G[0] + i for i in range(8)]
    e("v_lshrrev_b32 %s, 6, v0" % vr(t0))
    e("v_and_b32 %s, 63, v0" % vr(lane))
    e("v_readfirstlane_b32 %s, %s" % (sr(sW), vr(t0)))
    e("s_and_b32 s10, s2, 7"); e("s_lshl_b32 s10, s10, 5"); e("s_lshr_b32 s11, s2, 3"); e("s_add_u32 %s, s10, s11" % sr(sBin))
    e("v_lshrrev_b32 %s, 1, %s" % (vr(t0), vr(lane)))
    e("v_lshlrev_b32 %s, 15, %s" % (vr(t0), vr(t0)))
    e("v_and_b32 %s, 1, %s" % (vr(t1), vr(lane)))
    e("v_lshl_or_b32 %s, %s, 4, %s" % (vr(t0), vr(t1), vr(t0)))
    e("s_lshr_b32 s11, %s, 2" % sr(sW)); e("s_lshl_b32 s11, s11, 20")
    e("s_and_b32 s10, %s, 3" % sr(sW)); e("s_lshl_b32 s10, s10, 13"); e("s_add_u32 s11, s11, s10")
    e("s_lshl_b32 s10, %s, 5" % sr(sBin)); e("s_add_u32 s11, s11, s10")
    e("v_add_u32 %s, s11, %s" % (vr(t0), vr(t0)))
    e("s_lshl_b32 %s, %s, 13" % (sr(sREC), sr(sW)))
    e("s_add_u32 %s, %s, %d" % (sr(sXB), sr(sREC), XBB))
    e("s_add_u32 %s, %s, %d" % (sr(sREC), sr(sREC), RECB))
    e("s_add_u32 m0, %s, 3072" % sr(sXB))
    e("s_lshl_b32 %s, %s, 3" % (sr(sT), sr(sBin))); e("s_add_u32 %s, %s, %s" % (sr(sT), sr(sT), sr(sW)))
    e("s_mov_b32 %s, 0x%x" % (sr(sMag), MAG))
    tile_range()
    e("v_lshlrev_b32 %s, 4, %s" % (vr(t1), vr(lane)))
    e("v_lshrrev_b32 %s, 3, %s" % (vr(t2), vr(lane)))
    e("v_xor_b32 %s, %s, %s" % (vr(t3), vr(t2), vr(lane)))
    e("v_and_b32 %s, 7, %s" % (vr(t3), vr(t3)))
    e("v_lshlrev_b32 %s, 4, %s" % (vr(t3), vr(t3)))
    e("v_subrev_u32 %s, %s, %s" % (vr(t2), sr(sStart), vr(t2)))
    e("v_and_b32 %s, 15, %s" % (vr(t2), vr(t2)))
    e("v_xor_b32 %s, 8, %s" % (vr(t4), vr(t2)))
    e("v_add_u32 %s, %s, %s" % (vr(t2), sr(sStart), vr(t2)))
    e("v_add_u32 %s, %s, %s" % (vr(t4), sr(sStart), vr(t4)))
    e("v_lshl_add_u32 %s, %s, 7, %s" % (vr(t2), vr(t2), vr(t3)))
    e("v_lshl_add_u32 %s, %s, 7, %s" % (vr(t4), vr(t4), vr(t3)))
    e("s_waitcnt lgkmcnt(0)")
    srd(SOFS, 8, NC * 8192, "0x%x" % WS_OFF)
    e("buffer_load_dwordx4 %s, %s, 0 offen lds" % (vr(t0), sr(SOFS, 4)))
    e("s_add_u32 m0, %s, 4096" % sr(sXB))
    srd(SWF, 8, 32768 + 512, "0x%x" % WS_WFR)
    e("s_lshl_b32 s10, %s, 12" % sr(sW))
    for k in range(4):
        e("buffer_load_dwordx4 %s, %s, s10 offen offset:%d lds" % (vr(t1), sr(SWF, 4), k * 1024))
    e("s_lshl_b32 s10, %s, 11" % sr(sW))
    e("s_add_u32 m0, s10, %d" % XTB)
    srd(SX, 4, N_NODES * 128)
    e("buffer_load_dwordx4 %s, %s, 0 offen lds" % (vr(t2), sr(SX, 4)))
    e("s_add_u32 m0, s10, %d" % (XTB + 1024))
    e("v_add_u32 %s, 32768, %s" % (vr(t5), vr(t1)))
    e("buffer_load_dwordx4 %s, %s, 0 offen lds" % (vr(t4), sr(SX, 4)))
    WC = r.U
    e("buffer_load_dwordx4 %s, %s, %s, 0 offen" % (vr(WC, 4), vr(t5), sr(SWF, 4)))
    srd(SXI, 4, N_NODES, stride=128, sub="3072")
    srd(SRC, 8, 256 * CH, stride=16)
    e("s_mov_b32 %s, 1024" % sr(sINC)); e("s_mov_b32 %s, 1024" % sr(sINC + 1))
    e("s_mov_b32 %s, 3072" % sr(sSO)); e("s_mov_b32 %s, 2048" % sr(sSO + 1)); e("s_mov_b32 %s, 1024" % sr(sSO + 2))
    H = t3
    e("v_lshrrev_b32 %s, 5, %s" % (vr(H), vr(lane)))
    e("v_mov_b32 %s, 0x%x" % (vr(t4), (1 << 4) | (2 << 8) | (1 << 14) | (2 << 18)))
    e("v_lshlrev_b32 %s, 1, %s" % (vr(t5), vr(lane)))
    e("v_bfe_u32 %s, %s, %s, 2" % (vr(t4), vr(t4), vr(t5)))
    e("v_mul_u32_u24 %s, 0x8001, %s" % (vr(t4), vr(t4)))
    e("v_and_b32 %s, 0x10001, %s" % (vr(t4), vr(t4)))
    e("v_mul_u32_u24 %s, 0x3f80, %s" % (vr(t4), vr(t4)))
    e("v_lshlrev_b32 %s, 2, %s" % (vr(t5), vr(lane)))
    e("s_mov_b64 exec, 0x3ff")
    e("ds_write_b32 %s, %s offset:%d" % (vr(t5), vr(t4), TS))
    e("s_mov_b64 exec, -1")
    e("v_and_b32 %s, 3, %s" % (vr(c0), vr(lane)))
    e("v_bfe_u32 %s, %s, 4, 1" % (vr(c1), vr(lane)))
    e("v_mul_u32_u24 %s, 0x5555, %s" % (vr(r.SI), vr(c1)))
    e("v_or_b32 %s, 0x8888, %s" % (vr(r.SI), vr(r.SI)))
    e("v_xor_b32 %s, %s, %s" % (vr(c2), vr(c0), vr(H)))
    e("v_lshl_or_b32 %s, %s, 2, %s" % (vr(c2), vr(c1), vr(c2)))
    e("v_lshlrev_b32 %s, 4, %s" % (vr(r.XI + 1), vr(c2)))
    e("v_mov_b32 %s, %s" % (vr(r.XI + 3), vr(r.XI + 1)))
    e("v_xor_b32 %s, 32, %s" % (vr(r.XI + 5), vr(r.XI + 1)))
    e("v_mov_b32 %s, %s" % (vr(r.XI + 7), vr(r.XI + 5)))
    e("v_bfe_u32 %s, %s, 3, 2" % (vr(c2), vr(lane)))
    e("v_xor_b32 %s, %s, %s" % (vr(c2), vr(c2), vr(H)))
    e("v_lshlrev_b32 %s, 4, %s" % (vr(r.XA0), vr(c2)))
    e("v_lshl_or_b32 %s, %s, 6, %s" % (vr(r.XA0), vr(c0), vr(r.XA0)))
    e("v_bfe_u32 %s, %s, 3, 1" % (vr(c2), vr(lane)))
    e("v_lshl_or_b32 %s, %s, 9, %s" % (vr(r.XA0), vr(c2), vr(r.XA0)))
    e("v_bfe_u32 %s, %s, 2, 1" % (vr(t4), vr(lane)))
    e("v_lshl_or_b32 %s, %s, 10, %s" % (vr(r.XA0), vr(t4), vr(r.XA0)))
    e("v_lshl_or_b32 %s, %s, 11, %s" % (vr(r.XA0), vr(c1), vr(r.XA0)))
    e("v_xor_b32 %s, 32, %s" % (vr(r.XA1), vr(r.XA0)))
    e("v_add_u32 %s, %s, %s" % (vr(r.XA0), sr(sXB), vr(r.XA0)))
    e("v_add_u32 %s, %s, %s" % (vr(r.XA1), sr(sXB), vr(r.XA1)))
    FA, FU = r.AT + 14, r.AT + 15
    e("v_lshl_or_b32 %s, %s, 1, %s" % (vr(c2), vr(t4), vr(c2)))
    e("v_lshl_or_b32 %s, %s, 1, %s" % (vr(c2), vr(c2), vr(c1)))
    e("v_mad_u32_u24 %s, %s, 3, %s" % (vr(c2), vr(c2), vr(c0)))
    e("v_add_u32 %s, 9, %s" % (vr(c2), vr(c2)))
    e("v_and_b32 %s, 15, %s" % (vr(c2), vr(c2)))
    for dst, src in ((FA, c2), (FU, None)):
        if src is None:
            e("v_and_b32 %s, 15, %s" % (vr(c2), vr(lane)))
        e("v_xor_b32 %s, %s, %s" % (vr(t4), vr(c2), vr(H)))
        e("v_and_b32 %s, 7, %s" % (vr(t4), vr(t4)))
        e("v_lshlrev_b32 %s, 4, %s" % (vr(t4), vr(t4)))
        e("v_lshl_or_b32 %s, %s, 7, %s" % (vr(dst), vr(c2), vr(t4)))
    e("v_lshlrev_b32 %s, 4, %s" % (vr(t4), vr(H)))
    e("v_mov_b32 %s, 0x3f80" % vr(t5))
    e("v_lshlrev_b32 %s, %s, %s" % (vr(r.T + 1), vr(t4), vr(t5)))
    e("v_mov_b32 %s, %s" % (vr(r.T + 2), vr(r.T + 1)))
    e("v_mov_b32 %s, %s" % (vr(r.T + 3), vr(r.T + 1)))
    EN = r.G[1]
    e("v_and_b32 %s, 31, %s" % (vr(t5), vr(lane)))
    e("v_lshlrev_b32 %s, 5, %s" % (vr(t5), vr(t5)))
    e("v_lshl_or_b32 %s, %s, 15, %s" % (vr(t5), vr(H), vr(t5)))
    e("s_lshl_b32 s10, %s, 2" % sr(sW)); e("s_add_u32 s10, s10, %d" % (XBB + 3072))
    e("v_add_u32 %s, s10, %s" % (vr(t5), vr(t5)))
    e("s_mov_b32 %s, 0" % sr(sW0))
    e("s_mov_b32 %s, 1" % sr(sFirst))
    Z = r.G[1] + 4; LA = r.G[1] + 8; WA_ = r.G[1] + 9
    P = r.V[1]; D = r.V[1] + 4
    TOT = r.V[1] + 8; INC = r.V[1] + 9; CB = r.V[1] + 10; PREV = r.V[1] + 11; JB = r.V[1] + 12; C512 = r.V[1] + 13
    M = r.S
    def expand_pre():
        for i in range(4): e("v_mov_b32 %s, 0" % vr(Z + i))
        e("v_lshl_add_u32 %s, %s, 5, %s" % (vr(LA), vr(lane), sr(sXB)))
        e("ds_write_b128 %s, %s" % (vr(LA), vr(Z, 4)))
        e("ds_write_b128 %s, %s offset:16" % (vr(LA), vr(Z, 4)))
        e("v_mul_u32_u24 %s, %d, %s" % (vr(CB), 4 * CH, vr(lane)))
        e("v_lshl_add_u32 %s, %s, 3, %s" % (vr(JB), vr(lane), sr(sW0)))
        e("v_mov_b32 %s, 512" % vr(C512))
        e("v_mov_b32 %s, 0" % vr(PREV))
        e("v_and_b32 %s, 7, %s" % (vr(WA_), vr(lane)))
        e("v_lshlrev_b32 %s, 4, %s" % (vr(WA_), vr(WA_)))
        e("v_lshl_or_b32 %s, %s, 7, %s" % (vr(WA_), vr(lane), vr(WA_)))
        e("v_add_u32 %s, %s, %s" % (vr(WA_), sr(sREC), vr(WA_)))
        e("v_lshl_add_u32 %s, %s, 4, %s" % (vr(r.PL), vr(lane), sr(sREC)))
    expand_pre()
    stamp()
    e("s_waitcnt vmcnt(7) lgkmcnt(0)")
    e("s_barrier")
    stamp()
    for i in range(4):
        e("ds_read_b32 %s, %s offset:%d" % (vr(EN + i), vr(t5), i * 8192))
    e("s_waitcnt lgkmcnt(0)")
    lab("K2_EXPAND")
    sd = "dst_sel:DWORD dst_unused:UNUSED_PAD src0_sel:WORD_%d src1_sel:DWORD"
    e("v_lshrrev_b32 %s, 16, %s" % (vr(P + 1), vr(EN)))
    e("v_add_u32_sdwa %s, %s, %s %s" % (vr(P + 2), vr(EN + 1), vr(P + 1), sd % 1))
    e("v_add_u32_sdwa %s, %s, %s %s" % (vr(P + 3), vr(EN + 2), vr(P + 2), sd % 1))
    e("v_add_u32_sdwa %s, %s, %s %s" % (vr(INC), vr(EN + 3), vr(P + 3), sd % 1))
    fill = ["v_add_u32 %s, %s, %s" % (vr(TOT), sr(sW0), vr(INC))]
    fill += ["v_add_u32_sdwa %s, %s, %s %s" % (vr(D + i), vr(EN + i), vr(CB), sd % 0) for i in range(4)]
    fill += ["v_add_u32 %s, %d, %s" % (vr(D + i), i * CH, vr(D + i)) for i in range(1, 4)]
    fill += ["v_subrev_u32 %s, %s, %s" % (vr(D + i), sr(sW0), vr(D + i)) for i in range(4)]
    scan64("v_add_u32", INC, fill)
    e("v_sub_u32 %s, %s, %s" % (vr(P), vr(INC), vr(TOT)))
    e("v_readlane_b32 %s, %s, 63" % (sr(sTot), vr(INC)))
    for i in range(1, 4):
        e("v_add_u32 %s, %s, %s" % (vr(P + i), vr(P), vr(P + i)))
    for i in range(4):
        e("v_sub_u32 %s, %s, %s" % (vr(D + i), vr(D + i), vr(P + i)))
        e("v_med3_i32 %s, %s, 0, %s" % (vr(P + i), vr(P + i), vr(C512)))
        e("v_lshl_add_u32 %s, %s, 2, %s" % (vr(P + i), vr(P + i), sr(sXB)))
        e("ds_max_u32 %s, %s" % (vr(P + i), vr(D + i)))
    e("ds_read_b128 %s, %s" % (vr(M, 4), vr(LA)))
    e("ds_read_b128 %s, %s offset:16" % (vr(M + 4, 4), vr(LA)))
    e("s_lshl_b32 s10, %s, 3" % sr(sTot)); e("s_or_b32 s10, s10, %s" % sr(sW)); e("s_lshl_b32 s11, %s, 2" % sr(sW))
    e("v_mov_b32 %s, s10" % vr(TOT)); e("v_mov_b32 %s, s11" % vr(INC))
    e("s_mov_b64 exec, 1")
    e("ds_write_b32 %s, %s offset:%d" % (vr(INC), vr(TOT), TOTA))
    e("s_mov_b64 exec, -1")
    e("s_waitcnt lgkmcnt(1)")
    e("v_max3_u32 %s, %s, %s, %s" % (vr(INC), vr(M), vr(M + 1), vr(M + 2)))
    e("v_max3_u32 %s, %s, %s, %s" % (vr(INC), vr(INC), vr(M + 3), vr(M + 4)))
    e("v_max3_u32 %s, %s, %s, %s" % (vr(INC), vr(INC), vr(M + 5), vr(M + 6)))
    e("v_max_u32 %s, %s, %s" % (vr(INC), vr(INC), vr(M + 7)))
    AD = r.X
    fill = ["v_xor_b32 %s, %d, %s" % (vr(AD + k), 16 * k, vr(WA_)) for k in range(1, 8)]
    scan64("v_max_u32", INC, fill)
    e("s_nop 1")
    e("v_mov_b32_dpp %s, %s wave_shr:1 row_mask:0xf bank_mask:0xf" % (vr(PREV), vr(INC)))
    for k in range(8):
        e("v_max_u32 %s, %s, %s" % (vr(PREV), vr(PREV), vr(M + k)))
        e("v_add3_u32 %s, %s, %s, %d" % (vr(M + k), vr(PREV), vr(JB), k))
        e("ds_write_b32 %s, %s offset:12" % (vr(WA_ if k == 0 else AD + k), vr(M + k)))
    e("ds_read_b32 %s, %s offset:12" % (vr(c0), vr(r.PL)))
    e("ds_read_b32 %s, %s offset:%d" % (vr(c1), vr(r.PL), 1024 + 12))
    e("s_mov_b32 m0, %s" % sr(sREC))
    e("s_waitcnt lgkmcnt(1)")
    e("buffer_load_dwordx4 %s, %s, 0 idxen lds" % (vr(c0), sr(SRC, 4)))
    e("s_add_u32 m0, %s, 1024" % sr(sREC))
    e("s_waitcnt lgkmcnt(0)")
    e("buffer_load_dwordx4 %s, %s, 0 idxen lds" % (vr(c1), sr(SRC, 4)))
    e("s_cmp_eq_u32 %s, 0" % sr(sFirst))
    e("s_cbranch_scc1 K2_NOW")
    stamp()
    e("v_lshrrev_b32 %s, 3, %s" % (vr(c0), vr(lane)))
    e("v_lshlrev_b32 %s, 2, %s" % (vr(c0), vr(c0)))
    e("v_and_b32 %s, 7, %s" % (vr(c1), vr(lane)))
    e("v_lshlrev_b32 %s, 3, %s" % (vr(r.RI), vr(c1)))
    e("v_lshlrev_b32 %s, 2, %s" % (vr(c1), vr(c1)))
    e("v_lshlrev_b32 %s, 4, %s" % (vr(c2), vr(lane)))
    e("v_add_u32 %s, %d, %s" % (vr(c2), XBB + 4096, vr(c2)))
    e("s_sub_u32 s10, 7, %s" % sr(sW)); e("s_sub_u32 s11, %s, 4" % sr(sW))
    e("s_cmp_lt_u32 %s, 4" % sr(sW)); e("s_cselect_b32 s11, s10, s11")
    e("s_waitcnt vmcnt(2)")
    e("s_barrier")
    stamp()
    e("ds_read_b32 %s, %s offset:%d" % (vr(c0), vr(c0), TOTA))
    e("ds_read_b32 %s, %s offset:%d" % (vr(c1), vr(c1), TOTA))
    WA = r.G[0]; WU = r.G[1]
    assert r.V[0] == r.G[0] + 16 and r.V[1] == r.G[1] + 16
    wr = []
    for m, base in enumerate([WA, WU, r.WB, r.WV]):
        for u in range(8):
            uu = m * 8 + u
            wr.append("ds_read_b128 %s, %s offset:%d" % (vr(base + 4 * u, 4), vr(c2), (uu >> 2) * 8192 + (uu & 3) * 1024))
    for s in wr[:8]: e(s)
    e("s_waitcnt lgkmcnt(8)")
    if PAIR:
        e("v_cmp_lt_u32 vcc, %s, %s" % (vr(c1), vr(c0)))
        e(wr[8]); e(wr[9])
        e("v_lshrrev_b64 %s, %s, vcc" % (vr(r.SO, 2), vr(r.RI)))
        e("v_and_b32 %s, 0xff, %s" % (vr(r.SO), vr(r.SO)))
        e("v_bcnt_u32_b32 %s, %s, 0" % (vr(r.SO), vr(r.SO)))
        e("v_cmp_eq_u32 vcc, s11, %s" % vr(r.SO))
        e("s_ff1_i32_b64 s10, vcc")
        e(wr[10]); e(wr[11])
        e("v_readlane_b32 %s, %s, s10" % (sr(sTot), vr(c1)))
        e("s_lshr_b32 %s, %s, 3" % (sr(sTot), sr(sTot)))
    else:
        for s in wr[8:12]: e(s)
        e("s_mov_b32 s10, %s" % sr(sW))
    e("s_lshl_b32 %s, s10, 11" % sr(sXT)); e("s_add_u32 %s, %s, %d" % (sr(sXT), sr(sXT), XTB))
    e("s_lshl_b32 %s, s10, 13" % sr(sREC)); e("s_add_u32 %s, %s, %d" % (sr(sREC), sr(sREC), RECB))
    e("s_lshl_b32 %s, %s, 3" % (sr(sT), sr(sBin))); e("s_add_u32 %s, %s, s10" % (sr(sT), sr(sT)))
    tile_range()
    def xtile(mapreg):
        e("v_add_u32 %s, %s, %s" % (vr(c0), sr(sXT), vr(mapreg)))
        for s in range(4):
            if s: e("v_xor_b32 %s, %d, %s" % (vr(c1), 32 * s, vr(c0)))
            e("ds_read_b128 %s, %s" % (vr(r.X + 4 * s, 4), vr(c1 if s else c0)))
    xtile(FA)
    for s in wr[12:]: e(s)
    e("s_min_u32 %s, %s, %d" % (sr(sEnd), sr(sEnd), N_NODES))
    e("s_sub_u32 s10, %s, %s" % (sr(sEnd), sr(sStart))); e("s_lshl_b32 s10, s10, 7")
    e("s_lshl_b32 s11, %s, 7" % sr(sStart))
    srd(SOUT, 6, "s10", "s11")
    if 'o' in PF:
        e("v_lshlrev_b32 %s, 7, %s" % (vr(r.TI), vr(lane)))
        e("buffer_load_dword %s, %s, %s, 0 offen" % (vr(r.TI), vr(r.TI), sr(SOUT, 4)))
    e("v_lshl_add_u32 %s, %s, 4, %s" % (vr(r.PL), vr(lane), sr(sREC)))
    lab("K2_NOW")
    e("v_bfe_u32 %s, %s, 2, 2" % (vr(c0), vr(lane)))
    e("v_lshrrev_b32 %s, 5, %s" % (vr(c1), vr(lane)))
    e("v_lshl_or_b32 %s, %s, 3, %s" % (vr(c0), vr(c1), vr(c0)))
    e("v_lshl_add_u32 %s, %s, 4, %s" % (vr(r.PS), vr(c0), sr(sREC)))
    e("v_and_b32 %s, 3, %s" % (vr(c0), vr(lane)))
    e("v_add_u32 %s, %s, %s" % (vr(r.PC), vr(c0), vr(r.PS)))
    e("v_and_b32 %s, 31, %s" % (vr(c0), vr(lane)))
    e("v_lshl_add_u32 %s, %s, 4, %s" % (vr(r.PT), vr(c0), sr(sREC)))
    e("v_lshl_add_u32 %s, %s, 2, %s" % (vr(r.PE), vr(c1), vr(r.PT)))
    e("s_sub_u32 s10, %s, %s" % (sr(sTot), sr(sW0)))
    e("s_min_u32 s10, s10, 512")
    e("s_add_u32 s10, s10, 31"); e("s_lshr_b32 s10, s10, 5")
    e("s_max_u32 s10, s10, 1")
    e("s_sub_u32 %s, s10, 1" % sr(sNG))
    e("s_add_u32 %s, %s, 3072" % (sr(sRD), sr(sREC)))
    e("s_add_u32 %s, %s, 8192" % (sr(sRE), sr(sREC)))
    stamp()
    e("s_waitcnt vmcnt(0) lgkmcnt(0)")
    e("s_cmp_eq_u32 %s, 0" % sr(sFirst))
    e("s_cbranch_scc1 K2_NOB")
    e("s_barrier")
    lab("K2_NOB")
    stamp()
    def xidx(g, t):
        return "ds_read_u16 %s, %s offset:%d" % (vr(r.XI + 2 * t), vr(r.PS), g * 512 + SOFF[t] + 8)
    def xm0(buf):
        return "s_add_u32 m0, %s, %d" % (sr(sXB), buf * 4096)
    def xdma(t):
        return "buffer_load_dwordx4 %s, %s, %s idxen offen offset:%d lds" % (vr(r.XI + 2 * t, 2), sr(SXI, 4), sr(sSO + t) if t < 3 else "0", t * 1024)
    def xread(buf, k):
        return "ds_read_b128 %s, %s offset:%d" % (vr(r.X + 4 * k, 4), vr(r.XA1 if k & 1 else r.XA0), buf * 4096 + (k >> 1) * 256)
    def t0read(g): return "ds_read_b32 %s, %s offset:%d" % (vr(r.T), vr(r.PE), g * 512)
    def tiread(g): return "ds_read_b32 %s, %s offset:%d" % (vr(r.TI), vr(r.PT), g * 512 + 8)
    def soread(g, t): return "ds_read_u8 %s, %s offset:%d" % (vr(r.SO + t), vr(r.PC), g * 512 + SOFF[t] + 12)
    def trread(t): return "ds_read_b64_tr_b16 %s, %s offset:%d" % (vr(r.S + 2 * t, 2), vr(r.SO + t), TS)
    def riread(blk): return "ds_read_b32 %s, %s offset:%d" % (vr(r.RI), vr(r.PL), blk * 1024 + 12)
    rdma = "buffer_load_dwordx4 %s, %s, 0 idxen lds" % (vr(r.RI), sr(SRC, 4))
    for t in range(4): e(xidx(0, t))
    X2 = r.S
    for t in range(4): e("ds_read_u16 %s, %s offset:%d" % (vr(X2 + 2 * t), vr(r.PS), 512 + SOFF[t] + 8))
    e(riread(2))
    for t in range(4): e("v_mov_b32 %s, %s" % (vr(X2 + 2 * t + 1), vr(r.XI + 2 * t + 1)))
    e(xm0(0))
    e("s_waitcnt lgkmcnt(5)")
    for t in range(4): e(xdma(t))
    e(xm0(1))
    e("s_waitcnt lgkmcnt(1)")
    for t in range(4): e(xdma(t).replace(vr(r.XI + 2 * t, 2), vr(X2 + 2 * t, 2)))
    e("s_add_u32 m0, %s, 2048" % sr(sREC))
    e("s_waitcnt lgkmcnt(0)")
    e(rdma)
    for t in range(4): e(soread(0, t))
    e(t0read(0)); e(tiread(0))
    for t in range(4): e(xidx(2, t))
    e(riread(3))
    e("s_cmp_eq_u32 %s, 0" % sr(sFirst))
    e("s_cbranch_scc1 K2_NOW2")
    e("s_mov_b32 s10, 0x%x" % NEGLOG2E)
    for f in range(2):
        for s in range(4):
            e(mfma(r.ACC[f], r.X + 4 * s, WA + 16 * f + 4 * s, None if s == 0 else r.ACC[f]))
    xtile(FU)
    e("s_nop 2")
    for f in range(2):
        for i in range(16):
            if i & 3: e("v_mul_f32 %s, s10, %s" % (vr(r.ACC[f] + i), vr(r.ACC[f] + i)))
        if f == 0:
            e("s_waitcnt lgkmcnt(0)")
            for ff in range(2):
                for s in range(4):
                    e(mfma(WA + 16 * ff, r.X + 4 * s, WU + 16 * ff + 4 * s, None if s == 0 else WA + 16 * ff))
    for f in range(2):
        for i in range(8):
            e("v_cvt_pk_bf16_f32 %s, %s, %s" % (vr(r.AT + 8 * f + i), vr(r.ACC[f] + 2 * i) if i & 1 else "0", vr(r.ACC[f] + 2 * i + 1)))
    e("s_mov_b32 exec_hi, 0")
    for f in range(2):
        e("v_mov_b32 %s, %s" % (vr(r.AT + 8 * f), vr(WC + 2 * f)))
        e("v_mov_b32 %s, %s" % (vr(r.AT + 8 * f + 4), vr(WC + 2 * f + 1)))
    e("s_mov_b64 exec, -1")
    for f in range(2):
        for i in range(16):
            e("v_mov_b32 %s, 0" % vr(r.ACC[f] + i))
    for f in range(2):
        for i in range(8):
            e("v_mov_b32 %s, %s" % (vr(r.U + 8 * f + i), vr(WA + 16 * f + i)))
    lab("K2_NOW2")
    e("s_waitcnt lgkmcnt(0)")
    e(trread(0)); e(trread(1))
    for i in range(4): e("v_mov_b32 %s, 0" % vr(r.S + 4 + i))
    for i in range(8):
        e("v_mov_b32 %s, 0" % vr(r.V[1] + 8 + i))
    for i in range(13, 16):
        e("v_mov_b32 %s, 1.0" % vr(r.G[1] + i))
    stamp()
    e("s_waitcnt vmcnt(5)")
    stamp()
    for k in range(4): e(xread(0, k))
    e(xm0(0))
    for s in range(4):
        e("s_waitcnt lgkmcnt(%d)" % (3 - s))
        e(mfma(r.G[0], r.X + 4 * s, r.WB + 4 * s, None if s == 0 else r.G[0]))
    e(smf(r.G[0], r.T, r.AT, r.TI, 1))
    for s in range(4):
        e(mfma(r.V[0], r.X + 4 * s, r.WV + 4 * s, None if s == 0 else r.V[0]))
        e(xdma(s))
    e("s_setprio 1")
    e("s_nop 4")
    stamp()
    if STAMP: e("s_memrealtime s[92:93]"); e("s_waitcnt lgkmcnt(0)"); e("s_add_u32 s63, %s, 1" % sr(sNG))

    def valu_slot(a, i):
        out = []
        def reg(base, idx):
            return (base[a] + idx) if idx >= 0 else (base[1 - a] + 16 + idx)
        if i < 16: out.append("v_exp_f32 %s, %s" % (vr(reg(r.G, i)), vr(reg(r.G, i))))
        if i - 1 < 16: out.append("v_add_f32 %s, 1.0, %s" % (vr(reg(r.G, i - 1)), vr(reg(r.G, i - 1))))
        if i - 2 < 16: out.append("v_rcp_f32 %s, %s" % (vr(reg(r.G, i - 2)), vr(reg(r.G, i - 2))))
        out.append("v_mul_f32 %s, %s, %s" % (vr(reg(r.V, i - 3)), vr(reg(r.G, i - 3)), vr(reg(r.V, i - 3))))
        out.append("v_cvt_pk_bf16_f32 %s, %s, %s" % (vr(reg(r.V, i - 3)), vr(reg(r.G, i - 3)), vr(reg(r.V, i - 3))))
        return out
    def I(text, lds=None, need=()):
        return dict(text=text, lds=lds, need=list(need))
    POS = [(3, 2), (4, 3), (5, 4), (7, 0), (8, 1), (9, 2), (10, 4), (12, 0), (13, 2), (14, 3), (15, 4)]
    def phase(a, g):
        b = 1 - a
        xn = ['X%d' % k for k in range(4)]
        mm = [I(smf(r.ACC[b], r.S + 4, r.V[b] + 8, r.SI), need=['S3'])]
        mm += [I(mfma(r.G[b], r.X + 4 * k, r.WB + 16 * b + 4 * k, None if k == 0 else r.G[b]), need=[xn[k]]) for k in range(4)]
        mm += [I(smf(r.G[b], r.T, r.AT + 8 * b, r.TI, 1), need=['T0', 'TI'])]
        vv = [I(mfma(r.V[b], r.X + 4 * k, r.WV + 16 * b + 4 * k, None if k == 0 else r.V[b])) for k in range(4)]
        mm += [vv[0], I(smf(r.ACC[a], r.S, r.V[a], r.SI), need=['S1'])] + vv[1:]
        aux = [[] for _ in range(11)]
        nb = (g + 1) & 1
        if a == 0:
            aux[0] += [I(trread(2), lds='S2', need=['SO3'])]
            aux[1] += [I(trread(3), lds='S3')]
            if g == 0:
                aux[1].insert(0, I("s_mov_b32 m0, %s" % sr(sRD)))
                aux[2] += [I(rdma, need=['RI'])]
                aux[3] += [I("s_add_u32 %s, %s, 1024" % (sr(sRD), sr(sRD)))]
                aux[4] += [I("s_cmp_lt_u32 %s, %s" % (sr(sRD), sr(sRE)))]
                aux[5] += [I("s_cselect_b32 %s, %s, %d" % (sr(sRD), sr(sRD), DUMMY))]
                aux[3] += [I(xidx(g + 3, 0), lds='XI0'), I(xidx(g + 3, 1), lds='XI1')]
            else:
                aux[2] += [I(xidx(g + 3, 0), lds='XI0')]
                aux[3] += [I(xidx(g + 3, 1), lds='XI1')]
            aux[4] += [I(xidx(g + 3, 2), lds='XI2'), I(xidx(g + 3, 3), lds='XI3')]
            aux[5] += [I(t0read(g + 1), lds='T0')]
            aux[6] += [I("s_waitcnt vmcnt(5)", need=['S3']), I(xread(nb, 0), lds='X0')]
            aux[7] += [I(tiread(g + 1), lds='TI')]
            for k in range(1, 4): aux[7 + k] += [I(xread(nb, k), lds=xn[k])]
        else:
            aux[0] += [I(soread(g + 1, 0), lds='SO0', need=['X3'])]
            aux[1] += [I(soread(g + 1, 1), lds='SO1')]
            aux[2] += [I(soread(g + 1, 2), lds='SO2')]
            aux[3] += [I(xm0(nb)), I(soread(g + 1, 3), lds='SO3')]
            aux[4] += [I(xdma(0), need=['XI3'])]
            aux[5] += [I(xdma(1))]
            aux[6] += [I(xdma(2))]
            aux[7] += [I(trread(0), lds='S0', need=['SO3'])]
            aux[8] += [I(trread(1), lds='S1')]
            aux[9] += [I(xdma(3))]
            aux[10] += [I("s_sub_u32 %s, %s, 1" % (sr(sNG), sr(sNG)))]
            if g == 1:
                aux[10] += [I(riread(3), lds='RI')]
        ex = {}
        for k in range(11): ex[POS[k]] = [mm[k]] + aux[k]
        if a == 1 and g == 1:
            ex.setdefault((8, 0), []).extend([I("v_lshl_add_u64 %s, %s, 0, %s" % (vr(r.PS, 2), vr(r.PS, 2), sr(sINC, 2))),
                                              I("v_lshl_add_u64 %s, %s, 0, %s" % (vr(r.PT, 2), vr(r.PT, 2), sr(sINC, 2)))])
        if a == 0 and g == 0:
            ex.setdefault((1, 0), []).append(I("v_add_u32 %s, 1024, %s" % (vr(r.PL), vr(r.PL))))
        if PRIO and a == 1:
            ex[POS[0]].insert(1, I("s_setprio 0"))
            ex[POS[PRIO]].insert(1, I("s_setprio 1"))
        out = []
        for i in range(16):
            for p, t in enumerate(valu_slot(a, i)):
                out.extend(ex.pop((i, p), []))
                out.append(I(t))
        assert not ex, ex
        return out
    body = phase(0, 0) + phase(1, 0) + [I("s_cbranch_scc1 K2_DRAIN")] + phase(0, 1) + phase(1, 1) + [I("s_cbranch_scc0 K2_LOOP")]
    issued = []; done = 0
    for pas in range(2):
        if pas == 1: lab("K2_LOOP")
        for it in body:
            n = None
            for tag in it['need']:
                idxs = [k for k, t in enumerate(issued) if t == tag]
                if not idxs: continue
                k = idxs[-1]
                if k >= done:
                    n = len(issued) - 1 - k
                    done = k + 1
            tx = it['text']
            if n is not None:
                assert n <= 15
                if tx.startswith("s_waitcnt"): tx += " lgkmcnt(%d)" % n
                elif pas == 1: e("s_waitcnt lgkmcnt(%d)" % n)
            if pas == 1:
                if ABL == 'nomfma' and 'mfma' in tx: tx = "s_nop 0"
                e(tx)
            if it['lds']: issued.append(it['lds'])
    lab("K2_DRAIN")
    stamp()
    if STAMP: e("s_memrealtime s[94:95]")
    e("s_setprio 2")
    XR = r.X; EA = r.X + 8
    e("s_waitcnt lgkmcnt(0)")
    pre = []
    pre.append("v_lshrrev_b32 %s, 5, %s" % (vr(c0), vr(lane)))
    pre.append("v_and_b32 %s, 31, %s" % (vr(c1), vr(lane)))
    pre.append("v_lshlrev_b32 %s, 2, %s" % (vr(c1), vr(c1)))
    pre.append("v_mul_u32_u24 %s, 0x240, %s" % (vr(c2), vr(c0)))
    pre.append("v_xor_b32 %s, %s, %s" % (vr(c2), vr(c2), vr(c1)))
    pre.append("v_add_u32 %s, %s, %s" % (vr(c2), sr(sXT), vr(c2)))
    for i in range(16, 19):
        for t in valu_slot(1, i): e(t)
        e(pre.pop(0)); e(pre.pop(0))
    e(smf(r.ACC[1], r.S + 4, r.V[1] + 8, r.SI))
    e("s_add_u32 %s, %s, 512" % (sr(sW0), sr(sW0)))
    e("s_cmp_lt_u32 %s, %s" % (sr(sW0), sr(sTot)))
    e("s_cbranch_scc1 K2_MORE")
    for q in range(4):
        if q: e("v_xor_b32 %s, %d, %s" % (vr(EA), 16 * q, vr(c2)))
        e("ds_read_b32 %s, %s offset:%d" % (vr(XR + q), vr(EA if q else c2), q * 128))
        e("ds_read_b32 %s, %s offset:%d" % (vr(XR + q + 4), vr(EA if q else c2), q * 128 + 1024))
    e("v_lshlrev_b32 %s, 2, %s" % (vr(c0), vr(c0)))
    e("v_subrev_u32 %s, %s, %s" % (vr(c0), sr(sStart), vr(c0)))
    e("v_lshl_add_u32 %s, %s, 7, %s" % (vr(c0), vr(c0), vr(c1)))
    for q in range(8):
        e("v_add_u32 %s, %d, %s" % (vr(EA + q), (8 * (q >> 2) + (q & 3)) * 128, vr(c0)))
        e("v_and_b32 %s, 0x7ff, %s" % (vr(EA + q), vr(EA + q)))
    e("s_mov_b32 s10, 0x358637bd")
    for f in range(2):
        for q in range(8):
            e("v_add_f32 %s, s10, %s" % (vr(r.ACC[f] + q), vr(r.ACC[f] + q)))
        for q in range(8):
            e("v_rcp_f32 %s, %s" % (vr(r.ACC[f] + q), vr(r.ACC[f] + q)))
    e("s_waitcnt lgkmcnt(0)")
    for q in range(8):
        for f in range(2):
            u = r.U + 8 * f + q
            e("v_fmac_f32 %s, %s, %s" % (vr(u), vr(r.ACC[f] + q), vr(r.ACC[f] + 8 + q)))
            if f == 0: e("v_lshlrev_b32 %s, 16, %s" % (vr(c1), vr(XR + q)))
            else: e("v_and_b32 %s, 0xffff0000, %s" % (vr(c1), vr(XR + q)))
            e("v_max_f32 %s, 0, %s" % (vr(u), vr(u)))
            e("v_add_f32 %s, %s, %s" % (vr(u), vr(c1), vr(u)))
        e("v_cvt_pk_bf16_f32 %s, %s, %s" % (vr(r.U + q), vr(r.U + q), vr(r.U + 8 + q)))
        e("buffer_store_dword %s, %s, %s, 0 offen %s" % (vr(r.U + q), vr(EA + q), sr(SOUT, 4), OSF))
    stamp()
    if STAMP:
        e("s_waitcnt vmcnt(0) lgkmcnt(0)"); e("s_mov_b32 s%d, s63" % (64 + 2 * nstamp[0])); nstamp[0] += 1
    stamp(final=True, wsreg=8, wave=sr(sW), nwaves=8, kid=1, tmpv=10)
    lab("K2_END")
    e("s_endpgm")
    lab("K2_MORE")
    e("s_mov_b32 %s, 0" % sr(sFirst))
    e("s_waitcnt vmcnt(0) lgkmcnt(0)")
    e("s_nop 15")
    e("s_lshl_b32 s10, %s, 2" % sr(sT))
    e("v_lshl_add_u32 %s, %s, 15, s10" % (vr(c0), vr(lane)))
    for i in range(4):
        e("buffer_load_dword %s, %s, %s, 0 offen" % (vr(EN + i), vr(c0), sr(SOFS, 4)))
        e("v_add_u32 %s, 8192, %s" % (vr(c0), vr(c0)))
    expand_pre()
    e("s_waitcnt vmcnt(0)")
    e("s_branch K2_EXPAND")
    return r.n

hdr = open('cdna_kernels/%s.s.ref' % NAME).read().split('\n')
hdr = [l for l in hdr if l.startswith(';   offset') or l.startswith('; Kernarg')]
L.append('.amdgcn_target "amdgcn-amd-amdhsa--gfx950"')
L.append('.text')
lds1 = k1()
nv2 = k2()
def kd(name, nv, ns):
    return [".p2align 6", ".amdhsa_kernel %s" % name, "  .amdhsa_next_free_vgpr %d" % nv, "  .amdhsa_next_free_sgpr %d" % ns,
            "  .amdhsa_accum_offset %d" % ((nv + 3) // 4 * 4), "  .amdhsa_group_segment_fixed_size 0", "  .amdhsa_kernarg_size 96",
            "  .amdhsa_user_sgpr_count 2", "  .amdhsa_user_sgpr_kernarg_segment_ptr 1", "  .amdhsa_system_sgpr_workgroup_id_x 1",
            ".end_amdhsa_kernel"]
if XL:
    L.append(".p2align 8"); L.append(".type k0_nop_kernel,@function"); lab("k0_nop_kernel"); e("s_endpgm")
L.append('.section .rodata,"a"')
if XL: L += kd("k0_nop_kernel", 8, 16)
L += kd("k1_sort_kernel", 72, 102 if STAMP else 64)
L += kd("k2_main_kernel", 256, 102 if STAMP else 64)
top = hdr + ["; @launch kernel=k1_sort_kernel grid=(%d,1,1) block=(1024,1,1) lds=%d" % (NC + 1, lds1),
             "; @launch kernel=k2_main_kernel grid=(256,1,1) block=(512,1,1) lds=%d" % K2_LDS]
if XL:
    ln = "; @launch kernel=k0_nop_kernel grid=(256,1,1) block=(64,1,1) lds=0"
    top.insert({'a': len(top) - 2, 'b': len(top) - 1, 'c': len(top)}[XL], ln)
open(OUT, 'w').write("\n".join(top + L) + "\n")
print("vgprs k2:", nv2, "lines:", len(L))
```

```python
import sys, re

NAME = "standalone__edge_featured_mpnn_gatedgcn__graph"
N_NODES = 25000
CH = 3200
NC = 250
TMUL = 5368
WS_REC = 0
WS_OFF = 0xD00000
WS_WFR = 0xF00000
WS_DBG = 0x1000000
NEGLOG2E = 0xBFB8AA3B

opts = dict(a.split('=') for a in sys.argv[1:] if '=' in a)
OUT = opts.get('out', 'cdna_kernels/%s.s' % NAME)
STAMP = int(opts.get('stamp', 0))
PRIO = int(opts.get('prio', 6))
ABL = opts.get('abl', '')
STF = opts.get('stf', 'sc0+sc1').replace('+', ' ')
LDF = opts.get('ldf', '').replace('+', ' ')
PAIR = int(opts.get('pair', 1))
PF = opts.get('pf', '')
OSF = opts.get('osf', '').replace('+', ' ')
XST = int(opts.get('xst', 7))
DLY1 = int(opts.get('dly1', 0)); DLY2 = int(opts.get('dly2', 0)); XL = opts.get('xl', '')

L = []
def e(s): L.append("    " + s)
def lab(s): L.append(s + ":")
def vr(a, n=1): return "v%d" % a if n == 1 else "v[%d:%d]" % (a, a + n - 1)
def sr(a, n=1): return "s%d" % a if n == 1 else "s[%d:%d]" % (a, a + n - 1)

DPPS = ["row_shr:1 row_mask:0xf bank_mask:0xf", "row_shr:2 row_mask:0xf bank_mask:0xf",
        "row_shr:4 row_mask:0xf bank_mask:0xf", "row_shr:8 row_mask:0xf bank_mask:0xf",
        "row_bcast:15 row_mask:0xa bank_mask:0xf", "row_bcast:31 row_mask:0xc bank_mask:0xf"]
def scan64(op, v, fill=()):
    fill = list(fill)
    for m in DPPS:
        n = 0
        while n < 2 and fill:
            e(fill.pop(0)); n += 1
        if n < 2: e("s_nop %d" % (1 - n))
        e("%s_dpp %s, %s, %s %s" % (op, vr(v), vr(v), vr(v), m))
    for f in fill: e(f)

def srd(d, base, nbytes, add=None, stride=0, sub=None):
    if sub is not None:
        e("s_sub_u32 %s, %s, %s" % (sr(d), sr(base), sub))
        e("s_subb_u32 %s, %s, 0" % (sr(d + 1), sr(base + 1)))
        e("s_and_b32 %s, %s, 0xffff" % (sr(d + 1), sr(d + 1)))
    elif add is None:
        e("s_mov_b32 %s, %s" % (sr(d), sr(base)))
        e("s_and_b32 %s, %s, 0xffff" % (sr(d + 1), sr(base + 1)))
    else:
        e("s_add_u32 %s, %s, %s" % (sr(d), sr(base), add))
        e("s_addc_u32 %s, %s, 0" % (sr(d + 1), sr(base + 1)))
        e("s_and_b32 %s, %s, 0xffff" % (sr(d + 1), sr(d + 1)))
    if stride:
        e("s_or_b32 %s, %s, 0x%x" % (sr(d + 1), sr(d + 1), stride << 16))
    e("s_mov_b32 %s, %s" % (sr(d + 2), nbytes if isinstance(nbytes, str) else "0x%x" % nbytes))
    e("s_mov_b32 %s, 0x20000" % sr(d + 3))

nstamp = [0]
def stamp(final=False, wsreg=8, wave=None, nwaves=8, kid=0, tmpv=None):
    if not STAMP: return
    k = nstamp[0]; nstamp[0] += 1
    e("s_memtime s[%d:%d]" % (64 + 2 * k, 65 + 2 * k))
    if k == 0: e("s_memrealtime s[96:97]")
    if not final: return
    e("s_memrealtime s[98:99]")
    e("s_mov_b64 exec, 1")
    e("s_mul_i32 s60, s2, %d" % nwaves); e("s_add_u32 s60, s60, %s" % wave); e("s_lshl_b32 s60, s60, 7")
    e("s_add_u32 s60, s60, 0x%x" % (WS_DBG + kid * 0x80000))
    e("s_add_u32 s60, s60, s%d" % wsreg); e("s_addc_u32 s61, s%d, 0" % (wsreg + 1))
    e("v_mov_b32 v%d, 0" % tmpv)
    e("s_waitcnt lgkmcnt(0)")
    def st(s, off):
        e("v_mov_b32 v%d, %s" % (tmpv + 1, s)); e("global_store_dword v%d, v%d, s[60:61] offset:%d" % (tmpv, tmpv + 1, off))
    for j in range(k + 1): st("s%d" % (64 + 2 * j), 4 * j)
    st("s96", 120); st("s98", 124); st("s92", 104); st("s94", 108)
    if STAMP >= 2:
        e("s_load_dwordx2 s[60:61], s[0:1], 80")
        e("s_waitcnt lgkmcnt(0)")
        if kid == 0:
            e("s_add_u32 s60, s60, 512"); e("s_addc_u32 s61, s61, 0")
        e("s_and_b32 s62, %s, 3" % wave); e("s_cmp_lg_u32 s62, 0"); e("s_cbranch_scc1 DBG_SKIP%d" % kid)
        e("s_lshr_b32 s62, s2, 3"); e("s_xor_b32 s62, s62, s2"); e("s_and_b32 s62, s62, 7"); e("s_cmp_lg_u32 s62, 0"); e("s_cbranch_scc1 DBG_SKIP%d" % kid)
        def am(s, off, neg):
            if neg: e("s_not_b32 s62, %s" % s); s = "s62"
            e("v_mov_b32 v%d, %s" % (tmpv + 1, s)); e("global_atomic_umax v%d, v%d, s[60:61] offset:%d" % (tmpv, tmpv + 1, off))
        if STAMP == 3:
            if kid == 0:
                am("s96", 0, True); am("s96", 4, False); am("s98", 8, False)
                for j in range(1, 8):
                    e("s_sub_u32 s63, s%d, s64" % (64 + 2 * j)); am("s63", 12 + 4 * j, False)
                for j in range(1, 5):
                    e("s_sub_u32 s63, s%d, s64" % (64 + 2 * [0, 1, 2, 4, 7][j])); am("s63", 40 + 4 * j, True)
            else:
                am("s96", 12, True); am("s98", 60, False)
        elif STAMP == 4:
            if kid == 1:
                am("s96", 0, True); am("s96", 4, False); am("s98", 8, False)
                for j in range(1, 14):
                    if j == 12: continue
                    e("s_sub_u32 s63, s%d, s64" % (64 + 2 * j)); am("s63", 8 + 4 * j, False)
        elif kid == 0:
            am("s96", 0, True); am("s96", 4, False); am("s98", 8, False)
            e("s_sub_u32 s62, s66, s64"); am("s62", 44, False)
            e("s_sub_u32 s62, s72, s64"); am("s62", 48, False)
        else:
            am("s96", 12, True); am("s96", 16, False); am("s92", 20, True); am("s92", 24, False); am("s94", 28, True); am("s94", 32, False); am("s98", 36, False)
            e("s_sub_u32 s62, s68, s64"); am("s62", 52, False)
            e("s_sub_u32 s62, s72, s64"); am("s62", 56, False)
            e("s_sub_u32 s62, s76, s64"); am("s62", 60, False)
        lab("DBG_SKIP%d" % kid)
        nstamp[0] = 0
        return
    e("s_getreg_b32 s62, hwreg(HW_REG_HW_ID)"); st("s62", 116)
    e("s_getreg_b32 s62, hwreg(HW_REG_XCC_ID)"); st("s62", 112)
    nstamp[0] = 0

def k1():
    HIST, WTOT, RB = 0, 8192, 8448
    L.append(".p2align 8"); L.append(".type k1_sort_kernel,@function"); lab("k1_sort_kernel")
    e("s_load_dwordx4 s[4:7], s[0:1], 8")
    e("s_load_dwordx2 s[8:9], s[0:1], 24")
    e("s_load_dwordx2 s[10:11], s[0:1], 88")
    e("s_load_dwordx2 s[44:45], s[0:1], 0")
    e("s_cmp_ge_u32 s2, %d" % NC)
    e("s_cbranch_scc1 K1_AUX")
    for _ in range(DLY1): e("s_sleep 36")
    stamp()
    e("v_lshlrev_b32 v1, 4, v0")
    e("v_lshlrev_b32 v2, 5, v0")
    e("v_lshlrev_b32 v3, 3, v0")
    e("v_mov_b32 v4, 0"); e("v_mov_b32 v5, 0")
    e("s_mul_i32 s12, s2, %d" % (CH * 4))
    e("s_mul_i32 s13, s2, %d" % (CH * 8))
    e("s_mul_i32 s14, s2, %d" % (CH * 16))
    e("s_lshl_b32 s15, s2, 13")
    e("s_add_u32 s15, s15, 0x%x" % WS_OFF)
    e("ds_write_b64 v3, v[4:5] offset:%d" % HIST)
    e("v_lshrrev_b32 v7, 6, v0")
    e("s_waitcnt lgkmcnt(0)")
    if STAMP == 3: stamp()
    srd(16, 8, CH * 4, "s12")
    e("buffer_load_dwordx4 v[8:11], v1, s[16:19], 0 offen " + LDF)
    srd(20, 6, CH * 4, "s12")
    srd(24, 4, CH * 8, "s13")
    def rest():
        e("buffer_load_dwordx4 v[12:15], v1, s[20:23], 0 offen " + LDF)
        e("buffer_load_dwordx4 v[16:19], v2, s[24:27], 0 offen " + LDF)
        e("buffer_load_dwordx4 v[24:27], v2, s[24:27], 0 offen offset:16 " + LDF)
    if 'd' not in PF: rest()
    srd(28, 10, CH * 16, "s14")
    srd(32, 10, 8192, "s15")
    srd(48, 44, N_NODES * 128)
    e("v_readfirstlane_b32 s38, v7")
    e("v_mov_b32 v6, 1")
    e("v_lshlrev_b32 v40, 2, v7")
    e("v_and_b32 v41, 7, v0")
    e("v_lshlrev_b32 v41, 2, v41")
    e("v_cmp_gt_u32 vcc, %d, v0" % (CH // 4))
    e("s_mov_b64 s[36:37], vcc")
    if 'w' in PF or 'c' in PF:
        e("s_cmp_lg_u32 s38, 15")
        e("s_cbranch_scc1 K1_NOPF")
        e("v_and_b32 v68, 63, v0")
        if 'w' in PF:
            e("v_lshlrev_b32 v69, 12, v68")
            e("buffer_load_dword v70, v69, s[28:31], 0 offen")
            e("buffer_load_dword v70, v69, s[32:35], 0 offen")
        if 'c' in PF:
            e("s_getpc_b64 s[46:47]")
            lab("K1_PC")
            e("v_lshlrev_b32 v69, 7, v68")
            e("global_load_dword v70, v69, s[46:47]")
            e("v_add_u32 v69, 8192, v69")
            e("v_min_u32 v69, K2_END-K1_PC, v69")
            e("global_load_dword v70, v69, s[46:47]")
        lab("K1_NOPF")
    e("s_barrier")
    e("s_mov_b64 exec, s[36:37]")
    e("s_cbranch_execz K1_A")
    e("s_waitcnt vmcnt(%d)" % (0 if 'd' in PF else 3))
    if 'd' in PF: rest()
    stamp()
    for i in range(4):
        e("v_mul_u32_u24 v%d, %d, v%d" % (32 + i, TMUL, 8 + i))
    for i in range(4):
        e("v_lshrrev_b32 v%d, 14, v%d" % (32 + i, 32 + i))
        e("v_and_b32 v%d, 0x1ffc, v%d" % (32 + i, 32 + i))
        e("ds_add_rtn_u32 v%d, v%d, v6 offset:%d" % (36 + i, 32 + i, HIST))
    for i in range(4):
        d, a, b = 8 + i, 44 + i, 48 + i
        e("v_and_b32 v%d, 15, v%d" % (d, d))
        e("v_mul_u32_u24 v52, 11, v%d" % d)
        e("v_lshrrev_b32 v52, 5, v52")
        e("v_mad_i32_i24 v%d, v52, -3, v%d" % (a, d))
        e("v_add_u32 v%d, 1, v%d" % (a, a))
        e("v_lshl_add_u32 v52, v52, 1, 20")
        e("v_lshlrev_b32 v%d, v52, v%d" % (a, a))
        e("v_and_b32 v%d, 3, v%d" % (b, d))
        e("v_add_u32 v%d, 1, v%d" % (b, b))
        e("v_and_b32 v%d, 12, v%d" % (d, d))
        e("v_lshl_add_u32 v%d, v%d, 1, 3" % (d, d))
        e("v_lshlrev_b32 v%d, v%d, v%d" % (b, d, b))
    lab("K1_A")
    e("s_mov_b64 exec, -1")
    e("s_waitcnt lgkmcnt(0)")
    e("s_barrier")
    stamp()
    e("s_cmp_gt_u32 s38, 7")
    e("s_cbranch_scc1 K1_S1")
    e("ds_read_b128 v[56:59], v1 offset:%d" % HIST)
    e("s_waitcnt lgkmcnt(0)")
    e("v_add_u32 v61, v56, v57")
    e("v_add_u32 v62, v61, v58")
    e("v_add_u32 v42, v62, v59")
    e("v_mov_b32 v43, v42")
    scan64("v_add_u32", 43)
    e("s_mov_b32 exec_lo, 0"); e("s_mov_b32 exec_hi, 0x80000000")
    e("ds_write_b32 v40, v43 offset:%d" % WTOT)
    e("s_mov_b64 exec, -1")
    e("v_sub_u32 v43, v43, v42")
    e("s_waitcnt lgkmcnt(0)")
    lab("K1_S1")
    e("s_barrier")
    e("s_cbranch_scc1 K1_S2")
    e("ds_read_b32 v53, v41 offset:%d" % WTOT)
    e("s_waitcnt lgkmcnt(0)")
    e("v_mov_b32 v54, v53")
    for sh in (1, 2, 4):
        e("s_nop 1")
        e("v_add_u32_dpp v54, v54, v54 row_shr:%d row_mask:0xf bank_mask:0xf" % sh)
    e("v_sub_u32 v54, v54, v53")
    e("s_nop 0")
    e("v_readlane_b32 s39, v54, s38")
    e("s_nop 1")
    e("v_add_u32 v43, s39, v43")
    e("v_add_u32 v60, v43, v56")
    e("v_add_u32 v61, v43, v61")
    e("v_add_u32 v62, v43, v62")
    e("v_lshlrev_b32 v64, 4, v43"); e("v_lshlrev_b32 v65, 4, v60"); e("v_lshlrev_b32 v66, 4, v61"); e("v_lshlrev_b32 v67, 4, v62")
    e("ds_write_b128 v1, v[64:67] offset:%d" % HIST)
    e("v_lshl_or_b32 v56, v56, 16, v43"); e("v_lshl_or_b32 v57, v57, 16, v60")
    e("v_lshl_or_b32 v58, v58, 16, v61"); e("v_lshl_or_b32 v59, v59, 16, v62")
    e("buffer_store_dwordx4 v[56:59], v1, s[32:35], 0 offen " + STF)
    e("s_waitcnt vmcnt(1) lgkmcnt(0)")
    e("s_branch K1_S3")
    lab("K1_S2")
    e("s_waitcnt vmcnt(0)")
    if 'x' in PF:
        per = 807 * 128
        e("s_lshr_b32 s43, s2, 3"); e("s_mul_i32 s43, s43, %d" % per)
        e("v_and_b32 v68, 511, v0")
        e("v_lshlrev_b32 v68, %d, v68" % XST)
        e("v_add_u32 v68, s43, v68")
        for k in range(2 << (7 - XST)):
            e("buffer_load_dword v70, v68, s[48:51], 0 offen")
            e("v_add_u32 v68, %d, v68" % (512 << XST))
    lab("K1_S3")
    e("s_barrier")
    stamp()
    e("s_mov_b64 exec, s[36:37]")
    e("s_cbranch_execz K1_B")
    for i in range(4):
        e("ds_read_b32 v%d, v%d offset:%d" % (32 + i, 32 + i, HIST))
    e("s_mov_b32 s40, 0x40000")
    e("v_mov_b32 v20, v18"); e("v_mov_b32 v21, v19")
    e("v_mov_b32 v28, v26"); e("v_mov_b32 v29, v27")
    for i in range(4):
        e("v_or3_b32 v%d, v%d, v%d, s40" % (18 + 4 * i, 44 + i, 12 + i))
        e("v_mov_b32 v%d, v%d" % (19 + 4 * i, 48 + i))
    for i in range(4):
        e("s_waitcnt lgkmcnt(3)")
        e("v_lshl_add_u32 v%d, v%d, 4, v%d" % (32 + i, 36 + i, 32 + i))
        e("ds_write_b128 v%d, v[%d:%d] offset:%d" % (32 + i, 16 + 4 * i, 19 + 4 * i, RB))
    lab("K1_B")
    e("s_mov_b64 exec, -1")
    e("s_waitcnt lgkmcnt(0)")
    e("s_barrier")
    stamp()
    for k in range(3):
        e("ds_read_b128 v[%d:%d], v1 offset:%d" % (8 + 4 * k, 11 + 4 * k, RB + 16384 * k))
    e("s_mov_b32 s40, 16384"); e("s_mov_b32 s41, 32768"); e("s_mov_b32 s42, 49152")
    e("s_cmp_gt_u32 s38, 1")
    e("s_cbranch_scc1 K1_C")
    e("ds_read_b128 v[20:23], v1 offset:%d" % (RB + 49152))
    e("s_waitcnt lgkmcnt(0)")
    e("buffer_store_dwordx4 v[20:23], v1, s[28:31], s42 offen " + STF)
    lab("K1_C")
    e("s_waitcnt lgkmcnt(2)")
    e("buffer_store_dwordx4 v[8:11], v1, s[28:31], 0 offen " + STF)
    e("s_waitcnt lgkmcnt(1)")
    e("buffer_store_dwordx4 v[12:15], v1, s[28:31], s40 offen " + STF)
    e("s_waitcnt lgkmcnt(0)")
    e("buffer_store_dwordx4 v[16:19], v1, s[28:31], s41 offen " + STF)
    stamp()
    if STAMP: e("s_waitcnt vmcnt(0)")
    stamp(final=True, wsreg=10, wave="s38", nwaves=16, kid=0, tmpv=50)
    e("s_endpgm")
    lab("K1_AUX")
    e("s_cmp_gt_u32 s2, %d" % NC)
    e("s_cbranch_scc1 K1_END2")
    e("s_load_dwordx4 s[12:15], s[0:1], 32")
    e("s_load_dwordx2 s[16:17], s[0:1], 48")
    e("s_load_dwordx4 s[20:23], s[0:1], 56")
    e("v_lshrrev_b32 v1, 6, v0")
    e("v_and_b32 v2, 63, v0")
    e("v_readfirstlane_b32 s38, v1")
    e("s_waitcnt lgkmcnt(0)")
    e("s_lshr_b32 s39, s38, 2")
    e("s_and_b32 s40, s38, 3")
    e("s_cmp_eq_u32 s39, 1"); e("s_cselect_b32 s12, s20, s12"); e("s_cselect_b32 s13, s21, s13")
    e("s_cmp_eq_u32 s39, 3"); e("s_cselect_b32 s12, s22, s12"); e("s_cselect_b32 s13, s23, s13")
    e("s_cmp_eq_u32 s39, 2"); e("s_cselect_b32 s12, s14, s12"); e("s_cselect_b32 s13, s15, s13")
    e("s_mov_b32 s42, 0x%x" % NEGLOG2E)
    e("s_cselect_b32 s41, s42, 1.0")
    srd(24, 12, 8192)
    srd(28, 16, 512)
    srd(32, 10, 32768 + 512, "0x%x" % WS_WFR)
    srd(52, 10, 512 * 16, "0x%x" % (WS_REC + 255 * CH * 16))
    e("v_and_b32 v3, 31, v2")
    e("v_lshlrev_b32 v3, 2, v3")
    e("v_lshrrev_b32 v4, 5, v2")
    e("v_lshl_add_u32 v5, v4, 10, v3")
    e("s_lshl_b32 s43, s40, 11")
    for i in range(8):
        e("buffer_load_dword v%d, v5, s[24:27], s43 offen offset:%d" % (8 + i, i * 128))
    for i in range(4):
        e("buffer_load_dword v%d, v3, s[28:31], 0 offen offset:%d" % (40 + i, i * 128))
    e("v_lshlrev_b32 v6, 4, v0")
    e("v_mov_b32 v48, 0"); e("v_mov_b32 v49, 0"); e("v_mov_b32 v50, 0x4ffff"); e("v_mov_b32 v51, 0")
    e("buffer_store_dwordx4 v[48:51], v6, s[52:55], 0 offen " + STF)
    e("s_waitcnt vmcnt(5)")
    for i in range(8):
        e("v_lshlrev_b32 v%d, 16, v%d" % (16 + i, 8 + i))
        e("v_and_b32 v%d, 0xffff0000, v%d" % (24 + i, 8 + i))
    for i in range(16):
        e("v_mul_f32 v%d, s41, v%d" % (16 + i, 16 + i))
    for i in range(8):
        e("v_cvt_pk_bf16_f32 v%d, v%d, v%d" % (32 + i, 16 + 2 * i, 17 + 2 * i))
    e("v_lshlrev_b32 v7, 4, v2")
    e("s_lshl_b32 s43, s39, 13")
    e("s_lshl_b32 s48, s40, 10")
    e("s_add_u32 s43, s43, s48")
    e("s_add_u32 s48, s43, 4096")
    e("buffer_store_dwordx4 v[32:35], v7, s[32:35], s43 offen " + STF)
    e("buffer_store_dwordx4 v[36:39], v7, s[32:35], s48 offen " + STF)
    e("s_cmp_lg_u32 s38, 0")
    e("s_cbranch_scc1 K1_END2")
    e("s_waitcnt vmcnt(3)")
    for i in range(4):
        e("v_lshlrev_b32 v%d, 16, v%d" % (16 + i, 40 + i))
        e("v_and_b32 v%d, 0xffff0000, v%d" % (20 + i, 40 + i))
    for i in range(8):
        e("v_mul_f32 v%d, s42, v%d" % (16 + i, 16 + i))
    for i in range(4):
        e("v_cvt_pk_bf16_f32 v%d, v%d, v%d" % (44 + i, 16 + 2 * i, 17 + 2 * i))
    e("v_add_u32 v7, 32768, v7")
    e("buffer_store_dwordx4 v[44:47], v7, s[32:35], 0 offen " + STF)
    lab("K1_END2")
    e("s_endpgm")
    return RB + CH * 16

TS, TOTA = 0, 64
RECB = 1024
DUMMY = RECB + 65536
XTB = DUMMY + 1024
XBB = XTB + 16384
K2_LDS = XBB + 65536

class R: pass
def alloc():
    r = R(); p = 0
    def a(n, al=1):
        nonlocal p
        p = (p + al - 1) // al * al
        b = p; p += n
        return b
    r.LANE = a(1); r.SI = a(1)
    r.PS = a(1, 2); r.PC = a(1); r.PT = a(1, 2); r.PE = a(1); r.PL = a(1); r.RI = a(1)
    r.XA0 = a(1); r.XA1 = a(1); r.TI = a(1); r.TMP = a(3)
    r.SO = a(4, 2); r.XI = a(8, 2); r.T = a(4, 2); r.S = a(8, 2); r.X = a(16, 2)
    r.U = a(16, 2)
    r.ACC = [a(16, 2), a(16, 2)]
    r.G = [a(16, 2), None]; r.V = [a(16, 2), None]
    r.G[1] = a(16, 2); r.V[1] = a(16, 2)
    r.WB = a(32, 2); r.WV = a(32, 2); r.AT = a(16, 2)
    r.n = p
    return r

def mfma(d, a, b, c):
    return "v_mfma_f32_32x32x16_bf16 %s, %s, %s, %s" % (vr(d, 16), vr(a, 4), vr(b, 4), "0" if c is None else vr(c, 16))
def smf(d, a, b, idx, abid=0):
    return "v_smfmac_f32_32x32x32_bf16 %s, %s, %s, %s%s" % (vr(d, 16), vr(a, 4), vr(b, 8), vr(idx), " abid:1" if abid else "")

SOFF = [0, 64, 256, 320]

def k2():
    r = alloc()
    assert r.n <= 256, r.n
    sW, sT, sStart, sEnd, sTot, sW0, sNG, sXB, sREC, sFirst, sBin, sMag, sRD, sRE, sXT = range(36, 51)
    sINC = 52; sSO = 54
    SX, SXI, SOFS, SRC, SWF, SOUT = 12, 16, 20, 24, 28, 32
    lane = r.LANE
    c0, c1, c2 = r.TMP, r.TMP + 1, r.TMP + 2
    MAG = -(-(1 << 41) // 671)
    for t in range(2049):
        n = t * 8192 + 670
        assert (n * MAG) >> 41 == n // 671
    def tile_range():
        e("s_lshl_b32 s10, %s, 13" % sr(sT)); e("s_add_u32 s10, s10, 670")
        e("s_mul_hi_u32 %s, s10, %s" % (sr(sStart), sr(sMag))); e("s_lshr_b32 %s, %s, 9" % (sr(sStart), sr(sStart)))
        e("s_add_u32 s10, s10, 8192")
        e("s_mul_hi_u32 %s, s10, %s" % (sr(sEnd), sr(sMag))); e("s_lshr_b32 %s, %s, 9" % (sr(sEnd), sr(sEnd)))
    L.append(".p2align 8"); L.append(".type k2_main_kernel,@function"); lab("k2_main_kernel")
    e("s_load_dwordx2 s[8:9], s[0:1], 88")
    e("s_load_dwordx2 s[4:5], s[0:1], 0")
    e("s_load_dwordx2 s[6:7], s[0:1], 72")
    e("s_cmp_gt_u32 s2, 255")
    e("s_cbranch_scc1 K2_END")
    e("s_setprio 3")
    for _ in range(DLY2): e("s_sleep 36")
    stamp()
    t0, t1, t2, t3, t4, t5, t6, t7 = [r.G[0] + i for i in range(8)]
    e("v_lshrrev_b32 %s, 6, v0" % vr(t0))
    e("v_and_b32 %s, 63, v0" % vr(lane))
    e("v_readfirstlane_b32 %s, %s" % (sr(sW), vr(t0)))
    e("s_and_b32 s10, s2, 7"); e("s_lshl_b32 s10, s10, 5"); e("s_lshr_b32 s11, s2, 3"); e("s_add_u32 %s, s10, s11" % sr(sBin))
    e("v_lshrrev_b32 %s, 1, %s" % (vr(t0), vr(lane)))
    e("v_lshlrev_b32 %s, 15, %s" % (vr(t0), vr(t0)))
    e("v_and_b32 %s, 1, %s" % (vr(t1), vr(lane)))
    e("v_lshl_or_b32 %s, %s, 4, %s" % (vr(t0), vr(t1), vr(t0)))
    e("s_lshr_b32 s11, %s, 2" % sr(sW)); e("s_lshl_b32 s11, s11, 20")
    e("s_and_b32 s10, %s, 3" % sr(sW)); e("s_lshl_b32 s10, s10, 13"); e("s_add_u32 s11, s11, s10")
    e("s_lshl_b32 s10, %s, 5" % sr(sBin)); e("s_add_u32 s11, s11, s10")
    e("v_add_u32 %s, s11, %s" % (vr(t0), vr(t0)))
    e("s_lshl_b32 %s, %s, 13" % (sr(sREC), sr(sW)))
    e("s_add_u32 %s, %s, %d" % (sr(sXB), sr(sREC), XBB))
    e("s_add_u32 %s, %s, %d" % (sr(sREC), sr(sREC), RECB))
    e("s_add_u32 m0, %s, 3072" % sr(sXB))
    e("s_lshl_b32 %s, %s, 3" % (sr(sT), sr(sBin))); e("s_add_u32 %s, %s, %s" % (sr(sT), sr(sT), sr(sW)))
    e("s_mov_b32 %s, 0x%x" % (sr(sMag), MAG))
    tile_range()
    e("v_lshlrev_b32 %s, 4, %s" % (vr(t1), vr(lane)))
    e("v_lshrrev_b32 %s, 3, %s" % (vr(t2), vr(lane)))
    e("v_xor_b32 %s, %s, %s" % (vr(t3), vr(t2), vr(lane)))
    e("v_and_b32 %s, 7, %s" % (vr(t3), vr(t3)))
    e("v_lshlrev_b32 %s, 4, %s" % (vr(t3), vr(t3)))
    e("v_subrev_u32 %s, %s, %s" % (vr(t2), sr(sStart), vr(t2)))
    e("v_and_b32 %s, 15, %s" % (vr(t2), vr(t2)))
    e("v_xor_b32 %s, 8, %s" % (vr(t4), vr(t2)))
    e("v_add_u32 %s, %s, %s" % (vr(t2), sr(sStart), vr(t2)))
    e("v_add_u32 %s, %s, %s" % (vr(t4), sr(sStart), vr(t4)))
    e("v_lshl_add_u32 %s, %s, 7, %s" % (vr(t2), vr(t2), vr(t3)))
    e("v_lshl_add_u32 %s, %s, 7, %s" % (vr(t4), vr(t4), vr(t3)))
    e("s_waitcnt lgkmcnt(0)")
    srd(SOFS, 8, NC * 8192, "0x%x" % WS_OFF)
    e("buffer_load_dwordx4 %s, %s, 0 offen lds" % (vr(t0), sr(SOFS, 4)))
    e("s_add_u32 m0, %s, 4096" % sr(sXB))
    srd(SWF, 8, 32768 + 512, "0x%x" % WS_WFR)
    e("s_lshl_b32 s10, %s, 12" % sr(sW))
    for k in range(4):
        e("buffer_load_dwordx4 %s, %s, s10 offen offset:%d lds" % (vr(t1), sr(SWF, 4), k * 1024))
    e("s_lshl_b32 s10, %s, 11" % sr(sW))
    e("s_add_u32 m0, s10, %d" % XTB)
    srd(SX, 4, N_NODES * 128)
    e("buffer_load_dwordx4 %s, %s, 0 offen lds" % (vr(t2), sr(SX, 4)))
    e("s_add_u32 m0, s10, %d" % (XTB + 1024))
    e("v_add_u32 %s, 32768, %s" % (vr(t5), vr(t1)))
    e("buffer_load_dwordx4 %s, %s, 0 offen lds" % (vr(t4), sr(SX, 4)))
    WC = r.U
    e("buffer_load_dwordx4 %s, %s, %s, 0 offen" % (vr(WC, 4), vr(t5), sr(SWF, 4)))
    srd(SXI, 4, N_NODES, stride=128, sub="3072")
    srd(SRC, 8, 256 * CH, stride=16)
    e("s_mov_b32 %s, 1024" % sr(sINC)); e("s_mov_b32 %s, 1024" % sr(sINC + 1))
    e("s_mov_b32 %s, 3072" % sr(sSO)); e("s_mov_b32 %s, 2048" % sr(sSO + 1)); e("s_mov_b32 %s, 1024" % sr(sSO + 2))
    H = t3
    e("v_lshrrev_b32 %s, 5, %s" % (vr(H), vr(lane)))
    e("v_mov_b32 %s, 0x%x" % (vr(t4), (1 << 4) | (2 << 8) | (1 << 14) | (2 << 18)))
    e("v_lshlrev_b32 %s, 1, %s" % (vr(t5), vr(lane)))
    e("v_bfe_u32 %s, %s, %s, 2" % (vr(t4), vr(t4), vr(t5)))
    e("v_mul_u32_u24 %s, 0x8001, %s" % (vr(t4), vr(t4)))
    e("v_and_b32 %s, 0x10001, %s" % (vr(t4), vr(t4)))
    e("v_mul_u32_u24 %s, 0x3f80, %s" % (vr(t4), vr(t4)))
    e("v_lshlrev_b32 %s, 2, %s" % (vr(t5), vr(lane)))
    e("s_mov_b64 exec, 0x3ff")
    e("ds_write_b32 %s, %s offset:%d" % (vr(t5), vr(t4), TS))
    e("s_mov_b64 exec, -1")
    e("v_and_b32 %s, 3, %s" % (vr(c0), vr(lane)))
    e("v_bfe_u32 %s, %s, 4, 1" % (vr(c1), vr(lane)))
    e("v_mul_u32_u24 %s, 0x5555, %s" % (vr(r.SI), vr(c1)))
    e("v_or_b32 %s, 0x8888, %s" % (vr(r.SI), vr(r.SI)))
    e("v_xor_b32 %s, %s, %s" % (vr(c2), vr(c0), vr(H)))
    e("v_lshl_or_b32 %s, %s, 2, %s" % (vr(c2), vr(c1), vr(c2)))
    e("v_lshlrev_b32 %s, 4, %s" % (vr(r.XI + 1), vr(c2)))
    e("v_mov_b32 %s, %s" % (vr(r.XI + 3), vr(r.XI + 1)))
    e("v_xor_b32 %s, 32, %s" % (vr(r.XI + 5), vr(r.XI + 1)))
    e("v_mov_b32 %s, %s" % (vr(r.XI + 7), vr(r.XI + 5)))
    e("v_bfe_u32 %s, %s, 3, 2" % (vr(c2), vr(lane)))
    e("v_xor_b32 %s, %s, %s" % (vr(c2), vr(c2), vr(H)))
    e("v_lshlrev_b32 %s, 4, %s" % (vr(r.XA0), vr(c2)))
    e("v_lshl_or_b32 %s, %s, 6, %s" % (vr(r.XA0), vr(c0), vr(r.XA0)))
    e("v_bfe_u32 %s, %s, 3, 1" % (vr(c2), vr(lane)))
    e("v_lshl_or_b32 %s, %s, 9, %s" % (vr(r.XA0), vr(c2), vr(r.XA0)))
    e("v_bfe_u32 %s, %s, 2, 1" % (vr(t4), vr(lane)))
    e("v_lshl_or_b32 %s, %s, 10, %s" % (vr(r.XA0), vr(t4), vr(r.XA0)))
    e("v_lshl_or_b32 %s, %s, 11, %s" % (vr(r.XA0), vr(c1), vr(r.XA0)))
    e("v_xor_b32 %s, 32, %s" % (vr(r.XA1), vr(r.XA0)))
    e("v_add_u32 %s, %s, %s" % (vr(r.XA0), sr(sXB), vr(r.XA0)))
    e("v_add_u32 %s, %s, %s" % (vr(r.XA1), sr(sXB), vr(r.XA1)))
    FA, FU = r.AT + 14, r.AT + 15
    e("v_lshl_or_b32 %s, %s, 1, %s" % (vr(c2), vr(t4), vr(c2)))
    e("v_lshl_or_b32 %s, %s, 1, %s" % (vr(c2), vr(c2), vr(c1)))
    e("v_mad_u32_u24 %s, %s, 3, %s" % (vr(c2), vr(c2), vr(c0)))
    e("v_add_u32 %s, 9, %s" % (vr(c2), vr(c2)))
    e("v_and_b32 %s, 15, %s" % (vr(c2), vr(c2)))
    for dst, src in ((FA, c2), (FU, None)):
        if src is None:
            e("v_and_b32 %s, 15, %s" % (vr(c2), vr(lane)))
        e("v_xor_b32 %s, %s, %s" % (vr(t4), vr(c2), vr(H)))
        e("v_and_b32 %s, 7, %s" % (vr(t4), vr(t4)))
        e("v_lshlrev_b32 %s, 4, %s" % (vr(t4), vr(t4)))
        e("v_lshl_or_b32 %s, %s, 7, %s" % (vr(dst), vr(c2), vr(t4)))
    e("v_lshlrev_b32 %s, 4, %s" % (vr(t4), vr(H)))
    e("v_mov_b32 %s, 0x3f80" % vr(t5))
    e("v_lshlrev_b32 %s, %s, %s" % (vr(r.T + 1), vr(t4), vr(t5)))
    e("v_mov_b32 %s, %s" % (vr(r.T + 2), vr(r.T + 1)))
    e("v_mov_b32 %s, %s" % (vr(r.T + 3), vr(r.T + 1)))
    EN = r.G[1]
    e("v_and_b32 %s, 31, %s" % (vr(t5), vr(lane)))
    e("v_lshlrev_b32 %s, 5, %s" % (vr(t5), vr(t5)))
    e("v_lshl_or_b32 %s, %s, 15, %s" % (vr(t5), vr(H), vr(t5)))
    e("s_lshl_b32 s10, %s, 2" % sr(sW)); e("s_add_u32 s10, s10, %d" % (XBB + 3072))
    e("v_add_u32 %s, s10, %s" % (vr(t5), vr(t5)))
    e("s_mov_b32 %s, 0" % sr(sW0))
    e("s_mov_b32 %s, 1" % sr(sFirst))
    Z = r.G[1] + 4; LA = r.G[1] + 8; WA_ = r.G[1] + 9
    P = r.V[1]; D = r.V[1] + 4
    TOT = r.V[1] + 8; INC = r.V[1] + 9; CB = r.V[1] + 10; PREV = r.V[1] + 11; JB = r.V[1] + 12; C512 = r.V[1] + 13
    M = r.S
    def expand_pre():
        for i in range(4): e("v_mov_b32 %s, 0" % vr(Z + i))
        e("v_lshl_add_u32 %s, %s, 5, %s" % (vr(LA), vr(lane), sr(sXB)))
        e("ds_write_b128 %s, %s" % (vr(LA), vr(Z, 4)))
        e("ds_write_b128 %s, %s offset:16" % (vr(LA), vr(Z, 4)))
        e("v_mul_u32_u24 %s, %d, %s" % (vr(CB), 4 * CH, vr(lane)))
        e("v_lshl_add_u32 %s, %s, 3, %s" % (vr(JB), vr(lane), sr(sW0)))
        e("v_mov_b32 %s, 512" % vr(C512))
        e("v_mov_b32 %s, 0" % vr(PREV))
        e("v_and_b32 %s, 7, %s" % (vr(WA_), vr(lane)))
        e("v_lshlrev_b32 %s, 4, %s" % (vr(WA_), vr(WA_)))
        e("v_lshl_or_b32 %s, %s, 7, %s" % (vr(WA_), vr(lane), vr(WA_)))
        e("v_add_u32 %s, %s, %s" % (vr(WA_), sr(sREC), vr(WA_)))
        e("v_lshl_add_u32 %s, %s, 4, %s" % (vr(r.PL), vr(lane), sr(sREC)))
    expand_pre()
    stamp()
    e("s_waitcnt vmcnt(7) lgkmcnt(0)")
    e("s_barrier")
    stamp()
    for i in range(4):
        e("ds_read_b32 %s, %s offset:%d" % (vr(EN + i), vr(t5), i * 8192))
    e("s_waitcnt lgkmcnt(0)")
    lab("K2_EXPAND")
    sd = "dst_sel:DWORD dst_unused:UNUSED_PAD src0_sel:WORD_%d src1_sel:DWORD"
    e("v_lshrrev_b32 %s, 16, %s" % (vr(P + 1), vr(EN)))
    e("v_add_u32_sdwa %s, %s, %s %s" % (vr(P + 2), vr(EN + 1), vr(P + 1), sd % 1))
    e("v_add_u32_sdwa %s, %s, %s %s" % (vr(P + 3), vr(EN + 2), vr(P + 2), sd % 1))
    e("v_add_u32_sdwa %s, %s, %s %s" % (vr(INC), vr(EN + 3), vr(P + 3), sd % 1))
    fill = ["v_add_u32 %s, %s, %s" % (vr(TOT), sr(sW0), vr(INC))]
    fill += ["v_add_u32_sdwa %s, %s, %s %s" % (vr(D + i), vr(EN + i), vr(CB), sd % 0) for i in range(4)]
    fill += ["v_add_u32 %s, %d, %s" % (vr(D + i), i * CH, vr(D + i)) for i in range(1, 4)]
    fill += ["v_subrev_u32 %s, %s, %s" % (vr(D + i), sr(sW0), vr(D + i)) for i in range(4)]
    scan64("v_add_u32", INC, fill)
    e("v_sub_u32 %s, %s, %s" % (vr(P), vr(INC), vr(TOT)))
    e("v_readlane_b32 %s, %s, 63" % (sr(sTot), vr(INC)))
    for i in range(1, 4):
        e("v_add_u32 %s, %s, %s" % (vr(P + i), vr(P), vr(P + i)))
    for i in range(4):
        e("v_sub_u32 %s, %s, %s" % (vr(D + i), vr(D + i), vr(P + i)))
        e("v_med3_i32 %s, %s, 0, %s" % (vr(P + i), vr(P + i), vr(C512)))
        e("v_lshl_add_u32 %s, %s, 2, %s" % (vr(P + i), vr(P + i), sr(sXB)))
        e("ds_max_u32 %s, %s" % (vr(P + i), vr(D + i)))
    e("ds_read_b128 %s, %s" % (vr(M, 4), vr(LA)))
    e("ds_read_b128 %s, %s offset:16" % (vr(M + 4, 4), vr(LA)))
    e("s_lshl_b32 s10, %s, 3" % sr(sTot)); e("s_or_b32 s10, s10, %s" % sr(sW)); e("s_lshl_b32 s11, %s, 2" % sr(sW))
    e("v_mov_b32 %s, s10" % vr(TOT)); e("v_mov_b32 %s, s11" % vr(INC))
    e("s_mov_b64 exec, 1")
    e("ds_write_b32 %s, %s offset:%d" % (vr(INC), vr(TOT), TOTA))
    e("s_mov_b64 exec, -1")
    e("s_waitcnt lgkmcnt(1)")
    e("v_max3_u32 %s, %s, %s, %s" % (vr(INC), vr(M), vr(M + 1), vr(M + 2)))
    e("v_max3_u32 %s, %s, %s, %s" % (vr(INC), vr(INC), vr(M + 3), vr(M + 4)))
    e("v_max3_u32 %s, %s, %s, %s" % (vr(INC), vr(INC), vr(M + 5), vr(M + 6)))
    e("v_max_u32 %s, %s, %s" % (vr(INC), vr(INC), vr(M + 7)))
    AD = r.X
    fill = ["v_xor_b32 %s, %d, %s" % (vr(AD + k), 16 * k, vr(WA_)) for k in range(1, 8)]
    scan64("v_max_u32", INC, fill)
    e("s_nop 1")
    e("v_mov_b32_dpp %s, %s wave_shr:1 row_mask:0xf bank_mask:0xf" % (vr(PREV), vr(INC)))
    for k in range(8):
        e("v_max_u32 %s, %s, %s" % (vr(PREV), vr(PREV), vr(M + k)))
        e("v_add3_u32 %s, %s, %s, %d" % (vr(M + k), vr(PREV), vr(JB), k))
        e("ds_write_b32 %s, %s offset:12" % (vr(WA_ if k == 0 else AD + k), vr(M + k)))
    e("ds_read_b32 %s, %s offset:12" % (vr(c0), vr(r.PL)))
    e("ds_read_b32 %s, %s offset:%d" % (vr(c1), vr(r.PL), 1024 + 12))
    e("s_mov_b32 m0, %s" % sr(sREC))
    e("s_waitcnt lgkmcnt(1)")
    e("buffer_load_dwordx4 %s, %s, 0 idxen lds" % (vr(c0), sr(SRC, 4)))
    e("s_add_u32 m0, %s, 1024" % sr(sREC))
    e("s_waitcnt lgkmcnt(0)")
    e("buffer_load_dwordx4 %s, %s, 0 idxen lds" % (vr(c1), sr(SRC, 4)))
    e("s_cmp_eq_u32 %s, 0" % sr(sFirst))
    e("s_cbranch_scc1 K2_NOW")
    stamp()
    e("v_lshrrev_b32 %s, 3, %s" % (vr(c0), vr(lane)))
    e("v_lshlrev_b32 %s, 2, %s" % (vr(c0), vr(c0)))
    e("v_and_b32 %s, 7, %s" % (vr(c1), vr(lane)))
    e("v_lshlrev_b32 %s, 3, %s" % (vr(r.RI), vr(c1)))
    e("v_lshlrev_b32 %s, 2, %s" % (vr(c1), vr(c1)))
    e("v_lshlrev_b32 %s, 4, %s" % (vr(c2), vr(lane)))
    e("v_add_u32 %s, %d, %s" % (vr(c2), XBB + 4096, vr(c2)))
    e("s_sub_u32 s10, 7, %s" % sr(sW)); e("s_sub_u32 s11, %s, 4" % sr(sW))
    e("s_cmp_lt_u32 %s, 4" % sr(sW)); e("s_cselect_b32 s11, s10, s11")
    e("s_waitcnt vmcnt(2)")
    e("s_barrier")
    stamp()
    e("ds_read_b32 %s, %s offset:%d" % (vr(c0), vr(c0), TOTA))
    e("ds_read_b32 %s, %s offset:%d" % (vr(c1), vr(c1), TOTA))
    WA = r.G[0]; WU = r.G[1]
    assert r.V[0] == r.G[0] + 16 and r.V[1] == r.G[1] + 16
    wr = []
    for m, base in enumerate([WA, WU, r.WB, r.WV]):
        for u in range(8):
            uu = m * 8 + u
            wr.append("ds_read_b128 %s, %s offset:%d" % (vr(base + 4 * u, 4), vr(c2), (uu >> 2) * 8192 + (uu & 3) * 1024))
    for s in wr[:8]: e(s)
    e("s_waitcnt lgkmcnt(8)")
    if PAIR:
        e("v_cmp_lt_u32 vcc, %s, %s" % (vr(c1), vr(c0)))
        e(wr[8]); e(wr[9])
        e("v_lshrrev_b64 %s, %s, vcc" % (vr(r.SO, 2), vr(r.RI)))
        e("v_and_b32 %s, 0xff, %s" % (vr(r.SO), vr(r.SO)))
        e("v_bcnt_u32_b32 %s, %s, 0" % (vr(r.SO), vr(r.SO)))
        e("v_cmp_eq_u32 vcc, s11, %s" % vr(r.SO))
        e("s_ff1_i32_b64 s10, vcc")
        e(wr[10]); e(wr[11])
        e("v_readlane_b32 %s, %s, s10" % (sr(sTot), vr(c1)))
        e("s_lshr_b32 %s, %s, 3" % (sr(sTot), sr(sTot)))
    else:
        for s in wr[8:12]: e(s)
        e("s_mov_b32 s10, %s" % sr(sW))
    e("s_lshl_b32 %s, s10, 11" % sr(sXT)); e("s_add_u32 %s, %s, %d" % (sr(sXT), sr(sXT), XTB))
    e("s_lshl_b32 %s, s10, 13" % sr(sREC)); e("s_add_u32 %s, %s, %d" % (sr(sREC), sr(sREC), RECB))
    e("s_lshl_b32 %s, %s, 3" % (sr(sT), sr(sBin))); e("s_add_u32 %s, %s, s10" % (sr(sT), sr(sT)))
    tile_range()
    def xtile(mapreg):
        e("v_add_u32 %s, %s, %s" % (vr(c0), sr(sXT), vr(mapreg)))
        for s in range(4):
            if s: e("v_xor_b32 %s, %d, %s" % (vr(c1), 32 * s, vr(c0)))
            e("ds_read_b128 %s, %s" % (vr(r.X + 4 * s, 4), vr(c1 if s else c0)))
    xtile(FA)
    for s in wr[12:]: e(s)
    e("s_min_u32 %s, %s, %d" % (sr(sEnd), sr(sEnd), N_NODES))
    e("s_sub_u32 s10, %s, %s" % (sr(sEnd), sr(sStart))); e("s_lshl_b32 s10, s10, 7")
    e("s_lshl_b32 s11, %s, 7" % sr(sStart))
    srd(SOUT, 6, "s10", "s11")
    if 'o' in PF:
        e("v_lshlrev_b32 %s, 7, %s" % (vr(r.TI), vr(lane)))
        e("buffer_load_dword %s, %s, %s, 0 offen" % (vr(r.TI), vr(r.TI), sr(SOUT, 4)))
    e("v_lshl_add_u32 %s, %s, 4, %s" % (vr(r.PL), vr(lane), sr(sREC)))
    lab("K2_NOW")
    e("v_bfe_u32 %s, %s, 2, 2" % (vr(c0), vr(lane)))
    e("v_lshrrev_b32 %s, 5, %s" % (vr(c1), vr(lane)))
    e("v_lshl_or_b32 %s, %s, 3, %s" % (vr(c0), vr(c1), vr(c0)))
    e("v_lshl_add_u32 %s, %s, 4, %s" % (vr(r.PS), vr(c0), sr(sREC)))
    e("v_and_b32 %s, 3, %s" % (vr(c0), vr(lane)))
    e("v_add_u32 %s, %s, %s" % (vr(r.PC), vr(c0), vr(r.PS)))
    e("v_and_b32 %s, 31, %s" % (vr(c0), vr(lane)))
    e("v_lshl_add_u32 %s, %s, 4, %s" % (vr(r.PT), vr(c0), sr(sREC)))
    e("v_lshl_add_u32 %s, %s, 2, %s" % (vr(r.PE), vr(c1), vr(r.PT)))
    e("s_sub_u32 s10, %s, %s" % (sr(sTot), sr(sW0)))
    e("s_min_u32 s10, s10, 512")
    e("s_add_u32 s10, s10, 31"); e("s_lshr_b32 s10, s10, 5")
    e("s_max_u32 s10, s10, 1")
    e("s_sub_u32 %s, s10, 1" % sr(sNG))
    e("s_add_u32 %s, %s, 3072" % (sr(sRD), sr(sREC)))
    e("s_add_u32 %s, %s, 8192" % (sr(sRE), sr(sREC)))
    stamp()
    e("s_waitcnt vmcnt(0) lgkmcnt(0)")
    e("s_cmp_eq_u32 %s, 0" % sr(sFirst))
    e("s_cbranch_scc1 K2_NOB")
    e("s_barrier")
    lab("K2_NOB")
    stamp()
    def xidx(g, t):
        return "ds_read_u16 %s, %s offset:%d" % (vr(r.XI + 2 * t), vr(r.PS), g * 512 + SOFF[t] + 8)
    def xm0(buf):
        return "s_add_u32 m0, %s, %d" % (sr(sXB), buf * 4096)
    def xdma(t):
        return "buffer_load_dwordx4 %s, %s, %s idxen offen offset:%d lds" % (vr(r.XI + 2 * t, 2), sr(SXI, 4), sr(sSO + t) if t < 3 else "0", t * 1024)
    def xread(buf, k):
        return "ds_read_b128 %s, %s offset:%d" % (vr(r.X + 4 * k, 4), vr(r.XA1 if k & 1 else r.XA0), buf * 4096 + (k >> 1) * 256)
    def t0read(g): return "ds_read_b32 %s, %s offset:%d" % (vr(r.T), vr(r.PE), g * 512)
    def tiread(g): return "ds_read_b32 %s, %s offset:%d" % (vr(r.TI), vr(r.PT), g * 512 + 8)
    def soread(g, t): return "ds_read_u8 %s, %s offset:%d" % (vr(r.SO + t), vr(r.PC), g * 512 + SOFF[t] + 12)
    def trread(t): return "ds_read_b64_tr_b16 %s, %s offset:%d" % (vr(r.S + 2 * t, 2), vr(r.SO + t), TS)
    def riread(blk): return "ds_read_b32 %s, %s offset:%d" % (vr(r.RI), vr(r.PL), blk * 1024 + 12)
    rdma = "buffer_load_dwordx4 %s, %s, 0 idxen lds" % (vr(r.RI), sr(SRC, 4))
    for t in range(4): e(xidx(0, t))
    X2 = r.S
    for t in range(4): e("ds_read_u16 %s, %s offset:%d" % (vr(X2 + 2 * t), vr(r.PS), 512 + SOFF[t] + 8))
    e(riread(2))
    for t in range(4): e("v_mov_b32 %s, %s" % (vr(X2 + 2 * t + 1), vr(r.XI + 2 * t + 1)))
    e(xm0(0))
    e("s_waitcnt lgkmcnt(5)")
    for t in range(4): e(xdma(t))
    e(xm0(1))
    e("s_waitcnt lgkmcnt(1)")
    for t in range(4): e(xdma(t).replace(vr(r.XI + 2 * t, 2), vr(X2 + 2 * t, 2)))
    e("s_add_u32 m0, %s, 2048" % sr(sREC))
    e("s_waitcnt lgkmcnt(0)")
    e(rdma)
    for t in range(4): e(soread(0, t))
    e(t0read(0)); e(tiread(0))
    for t in range(4): e(xidx(2, t))
    e(riread(3))
    e("s_cmp_eq_u32 %s, 0" % sr(sFirst))
    e("s_cbranch_scc1 K2_NOW2")
    e("s_mov_b32 s10, 0x%x" % NEGLOG2E)
    for f in range(2):
        for s in range(4):
            e(mfma(r.ACC[f], r.X + 4 * s, WA + 16 * f + 4 * s, None if s == 0 else r.ACC[f]))
    xtile(FU)
    e("s_nop 2")
    for f in range(2):
        for i in range(16):
            if i & 3: e("v_mul_f32 %s, s10, %s" % (vr(r.ACC[f] + i), vr(r.ACC[f] + i)))
        if f == 0:
            e("s_waitcnt lgkmcnt(0)")
            for ff in range(2):
                for s in range(4):
                    e(mfma(WA + 16 * ff, r.X + 4 * s, WU + 16 * ff + 4 * s, None if s == 0 else WA + 16 * ff))
    for f in range(2):
        for i in range(8):
            e("v_cvt_pk_bf16_f32 %s, %s, %s" % (vr(r.AT + 8 * f + i), vr(r.ACC[f] + 2 * i) if i & 1 else "0", vr(r.ACC[f] + 2 * i + 1)))
    e("s_mov_b32 exec_hi, 0")
    for f in range(2):
        e("v_mov_b32 %s, %s" % (vr(r.AT + 8 * f), vr(WC + 2 * f)))
        e("v_mov_b32 %s, %s" % (vr(r.AT + 8 * f + 4), vr(WC + 2 * f + 1)))
    e("s_mov_b64 exec, -1")
    for f in range(2):
        for i in range(16):
            e("v_mov_b32 %s, 0" % vr(r.ACC[f] + i))
    for f in range(2):
        for i in range(8):
            e("v_mov_b32 %s, %s" % (vr(r.U + 8 * f + i), vr(WA + 16 * f + i)))
    lab("K2_NOW2")
    e("s_waitcnt lgkmcnt(0)")
    e(trread(0)); e(trread(1))
    for i in range(4): e("v_mov_b32 %s, 0" % vr(r.S + 4 + i))
    for i in range(8):
        e("v_mov_b32 %s, 0" % vr(r.V[1] + 8 + i))
    for i in range(13, 16):
        e("v_mov_b32 %s, 1.0" % vr(r.G[1] + i))
    stamp()
    e("s_waitcnt vmcnt(5)")
    stamp()
    for k in range(4): e(xread(0, k))
    e(xm0(0))
    for s in range(4):
        e("s_waitcnt lgkmcnt(%d)" % (3 - s))
        e(mfma(r.G[0], r.X + 4 * s, r.WB + 4 * s, None if s == 0 else r.G[0]))
    e(smf(r.G[0], r.T, r.AT, r.TI, 1))
    for s in range(4):
        e(mfma(r.V[0], r.X + 4 * s, r.WV + 4 * s, None if s == 0 else r.V[0]))
        e(xdma(s))
    e("s_setprio 1")
    e("s_nop 4")
    stamp()
    if STAMP: e("s_memrealtime s[92:93]"); e("s_waitcnt lgkmcnt(0)"); e("s_add_u32 s63, %s, 1" % sr(sNG))

    def valu_slot(a, i):
        out = []
        def reg(base, idx):
            return (base[a] + idx) if idx >= 0 else (base[1 - a] + 16 + idx)
        if i < 16: out.append("v_exp_f32 %s, %s" % (vr(reg(r.G, i)), vr(reg(r.G, i))))
        if i - 1 < 16: out.append("v_add_f32 %s, 1.0, %s" % (vr(reg(r.G, i - 1)), vr(reg(r.G, i - 1))))
        if i - 2 < 16: out.append("v_rcp_f32 %s, %s" % (vr(reg(r.G, i - 2)), vr(reg(r.G, i - 2))))
        out.append("v_mul_f32 %s, %s, %s" % (vr(reg(r.V, i - 3)), vr(reg(r.G, i - 3)), vr(reg(r.V, i - 3))))
        out.append("v_cvt_pk_bf16_f32 %s, %s, %s" % (vr(reg(r.V, i - 3)), vr(reg(r.G, i - 3)), vr(reg(r.V, i - 3))))
        return out
    def I(text, lds=None, need=()):
        return dict(text=text, lds=lds, need=list(need))
    POS = [(3, 2), (4, 3), (5, 4), (7, 0), (8, 1), (9, 2), (10, 4), (12, 0), (13, 2), (14, 3), (15, 4)]
    def phase(a, g):
        b = 1 - a
        xn = ['X%d' % k for k in range(4)]
        mm = [I(smf(r.ACC[b], r.S + 4, r.V[b] + 8, r.SI), need=['S3'])]
        mm += [I(mfma(r.G[b], r.X + 4 * k, r.WB + 16 * b + 4 * k, None if k == 0 else r.G[b]), need=[xn[k]]) for k in range(4)]
        mm += [I(smf(r.G[b], r.T, r.AT + 8 * b, r.TI, 1), need=['T0', 'TI'])]
        vv = [I(mfma(r.V[b], r.X + 4 * k, r.WV + 16 * b + 4 * k, None if k == 0 else r.V[b])) for k in range(4)]
        mm += [vv[0], I(smf(r.ACC[a], r.S, r.V[a], r.SI), need=['S1'])] + vv[1:]
        aux = [[] for _ in range(11)]
        nb = (g + 1) & 1
        if a == 0:
            aux[0] += [I(trread(2), lds='S2', need=['SO3'])]
            aux[1] += [I(trread(3), lds='S3')]
            if g == 0:
                aux[1].insert(0, I("s_mov_b32 m0, %s" % sr(sRD)))
                aux[2] += [I(rdma, need=['RI'])]
                aux[3] += [I("s_add_u32 %s, %s, 1024" % (sr(sRD), sr(sRD)))]
                aux[4] += [I("s_cmp_lt_u32 %s, %s" % (sr(sRD), sr(sRE)))]
                aux[5] += [I("s_cselect_b32 %s, %s, %d" % (sr(sRD), sr(sRD), DUMMY))]
                aux[3] += [I(xidx(g + 3, 0), lds='XI0'), I(xidx(g + 3, 1), lds='XI1')]
            else:
                aux[2] += [I(xidx(g + 3, 0), lds='XI0')]
                aux[3] += [I(xidx(g + 3, 1), lds='XI1')]
            aux[4] += [I(xidx(g + 3, 2), lds='XI2'), I(xidx(g + 3, 3), lds='XI3')]
            aux[5] += [I(t0read(g + 1), lds='T0')]
            aux[6] += [I("s_waitcnt vmcnt(5)", need=['S3']), I(xread(nb, 0), lds='X0')]
            aux[7] += [I(tiread(g + 1), lds='TI')]
            for k in range(1, 4): aux[7 + k] += [I(xread(nb, k), lds=xn[k])]
        else:
            aux[0] += [I(soread(g + 1, 0), lds='SO0', need=['X3'])]
            aux[1] += [I(soread(g + 1, 1), lds='SO1')]
            aux[2] += [I(soread(g + 1, 2), lds='SO2')]
            aux[3] += [I(xm0(nb)), I(soread(g + 1, 3), lds='SO3')]
            aux[4] += [I(xdma(0), need=['XI3'])]
            aux[5] += [I(xdma(1))]
            aux[6] += [I(xdma(2))]
            aux[7] += [I(trread(0), lds='S0', need=['SO3'])]
            aux[8] += [I(trread(1), lds='S1')]
            aux[9] += [I(xdma(3))]
            aux[10] += [I("s_sub_u32 %s, %s, 1" % (sr(sNG), sr(sNG)))]
            if g == 1:
                aux[10] += [I(riread(3), lds='RI')]
        ex = {}
        for k in range(11): ex[POS[k]] = [mm[k]] + aux[k]
        if a == 1 and g == 1:
            ex.setdefault((8, 0), []).extend([I("v_lshl_add_u64 %s, %s, 0, %s" % (vr(r.PS, 2), vr(r.PS, 2), sr(sINC, 2))),
                                              I("v_lshl_add_u64 %s, %s, 0, %s" % (vr(r.PT, 2), vr(r.PT, 2), sr(sINC, 2)))])
        if a == 0 and g == 0:
            ex.setdefault((1, 0), []).append(I("v_add_u32 %s, 1024, %s" % (vr(r.PL), vr(r.PL))))
        if PRIO and a == 1:
            ex[POS[0]].insert(1, I("s_setprio 0"))
            ex[POS[PRIO]].insert(1, I("s_setprio 1"))
        out = []
        for i in range(16):
            for p, t in enumerate(valu_slot(a, i)):
                out.extend(ex.pop((i, p), []))
                out.append(I(t))
        assert not ex, ex
        return out
    body = phase(0, 0) + phase(1, 0) + [I("s_cbranch_scc1 K2_DRAIN")] + phase(0, 1) + phase(1, 1) + [I("s_cbranch_scc0 K2_LOOP")]
    issued = []; done = 0
    for pas in range(2):
        if pas == 1: lab("K2_LOOP")
        for it in body:
            n = None
            for tag in it['need']:
                idxs = [k for k, t in enumerate(issued) if t == tag]
                if not idxs: continue
                k = idxs[-1]
                if k >= done:
                    n = len(issued) - 1 - k
                    done = k + 1
            tx = it['text']
            if n is not None:
                assert n <= 15
                if tx.startswith("s_waitcnt"): tx += " lgkmcnt(%d)" % n
                elif pas == 1: e("s_waitcnt lgkmcnt(%d)" % n)
            if pas == 1:
                if ABL == 'nomfma' and 'mfma' in tx: tx = "s_nop 0"
                e(tx)
            if it['lds']: issued.append(it['lds'])
    lab("K2_DRAIN")
    stamp()
    if STAMP: e("s_memrealtime s[94:95]")
    e("s_setprio 2")
    XR = r.X; EA = r.X + 8
    e("s_waitcnt lgkmcnt(0)")
    pre = []
    pre.append("v_lshrrev_b32 %s, 5, %s" % (vr(c0), vr(lane)))
    pre.append("v_and_b32 %s, 31, %s" % (vr(c1), vr(lane)))
    pre.append("v_lshlrev_b32 %s, 2, %s" % (vr(c1), vr(c1)))
    pre.append("v_mul_u32_u24 %s, 0x240, %s" % (vr(c2), vr(c0)))
    pre.append("v_xor_b32 %s, %s, %s" % (vr(c2), vr(c2), vr(c1)))
    pre.append("v_add_u32 %s, %s, %s" % (vr(c2), sr(sXT), vr(c2)))
    for i in range(16, 19):
        for t in valu_slot(1, i): e(t)
        e(pre.pop(0)); e(pre.pop(0))
    e(smf(r.ACC[1], r.S + 4, r.V[1] + 8, r.SI))
    e("s_add_u32 %s, %s, 512" % (sr(sW0), sr(sW0)))
    e("s_cmp_lt_u32 %s, %s" % (sr(sW0), sr(sTot)))
    e("s_cbranch_scc1 K2_MORE")
    for q in range(4):
        if q: e("v_xor_b32 %s, %d, %s" % (vr(EA), 16 * q, vr(c2)))
        e("ds_read_b32 %s, %s offset:%d" % (vr(XR + q), vr(EA if q else c2), q * 128))
        e("ds_read_b32 %s, %s offset:%d" % (vr(XR + q + 4), vr(EA if q else c2), q * 128 + 1024))
    e("v_lshlrev_b32 %s, 2, %s" % (vr(c0), vr(c0)))
    e("v_subrev_u32 %s, %s, %s" % (vr(c0), sr(sStart), vr(c0)))
    e("v_lshl_add_u32 %s, %s, 7, %s" % (vr(c0), vr(c0), vr(c1)))
    for q in range(8):
        e("v_add_u32 %s, %d, %s" % (vr(EA + q), (8 * (q >> 2) + (q & 3)) * 128, vr(c0)))
        e("v_and_b32 %s, 0x7ff, %s" % (vr(EA + q), vr(EA + q)))
    e("s_mov_b32 s10, 0x358637bd")
    for f in range(2):
        for q in range(8):
            e("v_add_f32 %s, s10, %s" % (vr(r.ACC[f] + q), vr(r.ACC[f] + q)))
        for q in range(8):
            e("v_rcp_f32 %s, %s" % (vr(r.ACC[f] + q), vr(r.ACC[f] + q)))
    e("s_waitcnt lgkmcnt(0)")
    for q in range(8):
        for f in range(2):
            u = r.U + 8 * f + q
            e("v_fmac_f32 %s, %s, %s" % (vr(u), vr(r.ACC[f] + q), vr(r.ACC[f] + 8 + q)))
            if f == 0: e("v_lshlrev_b32 %s, 16, %s" % (vr(c1), vr(XR + q)))
            else: e("v_and_b32 %s, 0xffff0000, %s" % (vr(c1), vr(XR + q)))
            e("v_max_f32 %s, 0, %s" % (vr(u), vr(u)))
            e("v_add_f32 %s, %s, %s" % (vr(u), vr(c1), vr(u)))
        e("v_cvt_pk_bf16_f32 %s, %s, %s" % (vr(r.U + q), vr(r.U + q), vr(r.U + 8 + q)))
        e("buffer_store_dword %s, %s, %s, 0 offen %s" % (vr(r.U + q), vr(EA + q), sr(SOUT, 4), OSF))
    stamp()
    if STAMP:
        e("s_waitcnt vmcnt(0) lgkmcnt(0)"); e("s_mov_b32 s%d, s63" % (64 + 2 * nstamp[0])); nstamp[0] += 1
    stamp(final=True, wsreg=8, wave=sr(sW), nwaves=8, kid=1, tmpv=10)
    lab("K2_END")
    e("s_endpgm")
    lab("K2_MORE")
    e("s_mov_b32 %s, 0" % sr(sFirst))
    e("s_waitcnt vmcnt(0) lgkmcnt(0)")
    e("s_nop 15")
    e("s_lshl_b32 s10, %s, 2" % sr(sT))
    e("v_lshl_add_u32 %s, %s, 15, s10" % (vr(c0), vr(lane)))
    for i in range(4):
        e("buffer_load_dword %s, %s, %s, 0 offen" % (vr(EN + i), vr(c0), sr(SOFS, 4)))
        e("v_add_u32 %s, 8192, %s" % (vr(c0), vr(c0)))
    expand_pre()
    e("s_waitcnt vmcnt(0)")
    e("s_branch K2_EXPAND")
    return r.n

hdr = open('cdna_kernels/%s.s.ref' % NAME).read().split('\n')
hdr = [l for l in hdr if l.startswith(';   offset') or l.startswith('; Kernarg')]
L.append('.amdgcn_target "amdgcn-amd-amdhsa--gfx950"')
L.append('.text')
lds1 = k1()
nv2 = k2()
def kd(name, nv, ns):
    return [".p2align 6", ".amdhsa_kernel %s" % name, "  .amdhsa_next_free_vgpr %d" % nv, "  .amdhsa_next_free_sgpr %d" % ns,
            "  .amdhsa_accum_offset %d" % ((nv + 3) // 4 * 4), "  .amdhsa_group_segment_fixed_size 0", "  .amdhsa_kernarg_size 96",
            "  .amdhsa_user_sgpr_count 2", "  .amdhsa_user_sgpr_kernarg_segment_ptr 1", "  .amdhsa_system_sgpr_workgroup_id_x 1",
            ".end_amdhsa_kernel"]
if XL:
    L.append(".p2align 8"); L.append(".type k0_nop_kernel,@function"); lab("k0_nop_kernel"); e("s_endpgm")
L.append('.section .rodata,"a"')
if XL: L += kd("k0_nop_kernel", 8, 16)
L += kd("k1_sort_kernel", 72, 102 if STAMP else 64)
L += kd("k2_main_kernel", 256, 102 if STAMP else 64)
top = hdr + ["; @launch kernel=k1_sort_kernel grid=(%d,1,1) block=(1024,1,1) lds=%d" % (NC + 1, lds1),
             "; @launch kernel=k2_main_kernel grid=(256,1,1) block=(512,1,1) lds=%d" % K2_LDS]
if XL:
    ln = "; @launch kernel=k0_nop_kernel grid=(256,1,1) block=(64,1,1) lds=0"
    top.insert({'a': len(top) - 2, 'b': len(top) - 1, 'c': len(top)}[XL], ln)
open(OUT, 'w').write("\n".join(top + L) + "\n")
print("vgprs k2:", nv2, "lines:", len(L))
```

```python
import sys, re

NAME = "standalone__edge_featured_mpnn_gatedgcn__graph"
N_NODES = 25000
CH = 3200
NC = 250
TMUL = 5368
WS_REC = 0
WS_OFF = 0xD00000
WS_WFR = 0xF00000
WS_DBG = 0x1000000
NEGLOG2E = 0xBFB8AA3B

opts = dict(a.split('=') for a in sys.argv[1:] if '=' in a)
OUT = opts.get('out', 'cdna_kernels/%s.s' % NAME)
STAMP = int(opts.get('stamp', 0))
PRIO = int(opts.get('prio', 6))
ABL = opts.get('abl', '')
STF = opts.get('stf', 'sc0+sc1').replace('+', ' ')
LDF = opts.get('ldf', 'nt').replace('+', ' ')
PAIR = int(opts.get('pair', 1))
SOLO = int(opts.get('solo', 0))
BP = int(opts.get('bp', 0))
LOWS = opts.get('lows', '')
RP = [int(x) for x in opts['rp'].split(',')] if 'rp' in opts else None
PK = int(opts.get('pk', 1))
USEPK = int(opts.get('usepk', 1))
PF = opts.get('pf', '')
OSF = opts.get('osf', '').replace('+', ' ')
XST = int(opts.get('xst', 7))
DLY1 = int(opts.get('dly1', 0)); DLY2 = int(opts.get('dly2', 0)); XL = opts.get('xl', '')

L = []
def e(s): L.append("    " + s)
def lab(s): L.append(s + ":")
def vr(a, n=1): return "v%d" % a if n == 1 else "v[%d:%d]" % (a, a + n - 1)
def sr(a, n=1): return "s%d" % a if n == 1 else "s[%d:%d]" % (a, a + n - 1)

DPPS = ["row_shr:1 row_mask:0xf bank_mask:0xf", "row_shr:2 row_mask:0xf bank_mask:0xf",
        "row_shr:4 row_mask:0xf bank_mask:0xf", "row_shr:8 row_mask:0xf bank_mask:0xf",
        "row_bcast:15 row_mask:0xa bank_mask:0xf", "row_bcast:31 row_mask:0xc bank_mask:0xf"]
def scan64(op, v, fill=()):
    fill = list(fill)
    for m in DPPS:
        n = 0
        while n < 2 and fill:
            e(fill.pop(0)); n += 1
        if n < 2: e("s_nop %d" % (1 - n))
        e("%s_dpp %s, %s, %s %s" % (op, vr(v), vr(v), vr(v), m))
    for f in fill: e(f)

def srd(d, base, nbytes, add=None, stride=0, sub=None):
    if sub is not None:
        e("s_sub_u32 %s, %s, %s" % (sr(d), sr(base), sub))
        e("s_subb_u32 %s, %s, 0" % (sr(d + 1), sr(base + 1)))
        e("s_and_b32 %s, %s, 0xffff" % (sr(d + 1), sr(d + 1)))
    elif add is None:
        e("s_mov_b32 %s, %s" % (sr(d), sr(base)))
        e("s_and_b32 %s, %s, 0xffff" % (sr(d + 1), sr(base + 1)))
    else:
        e("s_add_u32 %s, %s, %s" % (sr(d), sr(base), add))
        e("s_addc_u32 %s, %s, 0" % (sr(d + 1), sr(base + 1)))
        e("s_and_b32 %s, %s, 0xffff" % (sr(d + 1), sr(d + 1)))
    if stride:
        e("s_or_b32 %s, %s, 0x%x" % (sr(d + 1), sr(d + 1), stride << 16))
    e("s_mov_b32 %s, %s" % (sr(d + 2), nbytes if isinstance(nbytes, str) else "0x%x" % nbytes))
    e("s_mov_b32 %s, 0x20000" % sr(d + 3))

nstamp = [0]
def stamp(final=False, wsreg=8, wave=None, nwaves=8, kid=0, tmpv=None):
    if not STAMP: return
    k = nstamp[0]; nstamp[0] += 1
    e("s_memtime s[%d:%d]" % (64 + 2 * k, 65 + 2 * k))
    if k == 0: e("s_memrealtime s[96:97]")
    if not final: return
    e("s_memrealtime s[98:99]")
    e("s_mov_b64 exec, 1")
    e("s_mul_i32 s60, s2, %d" % nwaves); e("s_add_u32 s60, s60, %s" % wave); e("s_lshl_b32 s60, s60, 7")
    e("s_add_u32 s60, s60, 0x%x" % (WS_DBG + kid * 0x80000))
    e("s_add_u32 s60, s60, s%d" % wsreg); e("s_addc_u32 s61, s%d, 0" % (wsreg + 1))
    e("v_mov_b32 v%d, 0" % tmpv)
    e("s_waitcnt lgkmcnt(0)")
    def st(s, off):
        e("v_mov_b32 v%d, %s" % (tmpv + 1, s)); e("global_store_dword v%d, v%d, s[60:61] offset:%d" % (tmpv, tmpv + 1, off))
    for j in range(k + 1): st("s%d" % (64 + 2 * j), 4 * j)
    st("s96", 120); st("s98", 124); st("s92", 104); st("s94", 108)
    if STAMP >= 2:
        e("s_load_dwordx2 s[60:61], s[0:1], 80")
        e("s_waitcnt lgkmcnt(0)")
        if kid == 0:
            e("s_add_u32 s60, s60, 512"); e("s_addc_u32 s61, s61, 0")
        e("s_and_b32 s62, %s, 3" % wave); e("s_cmp_lg_u32 s62, 0"); e("s_cbranch_scc1 DBG_SKIP%d" % kid)
        e("s_lshr_b32 s62, s2, 3"); e("s_xor_b32 s62, s62, s2"); e("s_and_b32 s62, s62, 7"); e("s_cmp_lg_u32 s62, 0"); e("s_cbranch_scc1 DBG_SKIP%d" % kid)
        def am(s, off, neg):
            if neg: e("s_not_b32 s62, %s" % s); s = "s62"
            e("v_mov_b32 v%d, %s" % (tmpv + 1, s)); e("global_atomic_umax v%d, v%d, s[60:61] offset:%d" % (tmpv, tmpv + 1, off))
        if STAMP == 3:
            if kid == 0:
                am("s96", 0, True); am("s96", 4, False); am("s98", 8, False)
                for j in range(1, 8):
                    e("s_sub_u32 s63, s%d, s64" % (64 + 2 * j)); am("s63", 12 + 4 * j, False)
                for j in range(1, 5):
                    e("s_sub_u32 s63, s%d, s64" % (64 + 2 * [0, 1, 2, 4, 7][j])); am("s63", 40 + 4 * j, True)
            else:
                am("s96", 12, True); am("s98", 60, False)
        elif STAMP == 4:
            if kid == 1:
                am("s96", 0, True); am("s96", 4, False); am("s98", 8, False)
                for j in range(1, 14):
                    if j == 12: continue
                    e("s_sub_u32 s63, s%d, s64" % (64 + 2 * j)); am("s63", 8 + 4 * j, False)
        elif kid == 0:
            am("s96", 0, True); am("s96", 4, False); am("s98", 8, False)
            e("s_sub_u32 s62, s66, s64"); am("s62", 44, False)
            e("s_sub_u32 s62, s72, s64"); am("s62", 48, False)
        else:
            am("s96", 12, True); am("s96", 16, False); am("s92", 20, True); am("s92", 24, False); am("s94", 28, True); am("s94", 32, False); am("s98", 36, False)
            e("s_sub_u32 s62, s68, s64"); am("s62", 52, False)
            e("s_sub_u32 s62, s72, s64"); am("s62", 56, False)
            e("s_sub_u32 s62, s76, s64"); am("s62", 60, False)
        lab("DBG_SKIP%d" % kid)
        nstamp[0] = 0
        return
    e("s_getreg_b32 s62, hwreg(HW_REG_HW_ID)"); st("s62", 116)
    e("s_getreg_b32 s62, hwreg(HW_REG_XCC_ID)"); st("s62", 112)
    nstamp[0] = 0

def k1():
    HIST, WTOT, RB = 0, 8192, 8448
    L.append(".p2align 8"); L.append(".type k1_sort_kernel,@function"); lab("k1_sort_kernel")
    e("s_load_dwordx4 s[4:7], s[0:1], 8")
    e("s_load_dwordx2 s[8:9], s[0:1], 24")
    e("s_load_dwordx2 s[10:11], s[0:1], 88")
    e("s_load_dwordx2 s[44:45], s[0:1], 0")
    e("s_cmp_ge_u32 s2, %d" % NC)
    e("s_cbranch_scc1 K1_AUX")
    for _ in range(DLY1): e("s_sleep 36")
    stamp()
    e("v_lshlrev_b32 v1, 4, v0")
    e("v_lshlrev_b32 v2, 5, v0")
    e("v_lshlrev_b32 v3, 3, v0")
    e("v_mov_b32 v4, 0"); e("v_mov_b32 v5, 0")
    e("s_mul_i32 s12, s2, %d" % (CH * 4))
    e("s_mul_i32 s13, s2, %d" % (CH * 8))
    e("s_mul_i32 s14, s2, %d" % (CH * 16))
    e("s_lshl_b32 s15, s2, 13")
    e("s_add_u32 s15, s15, 0x%x" % WS_OFF)
    e("ds_write_b64 v3, v[4:5] offset:%d" % HIST)
    e("v_lshrrev_b32 v7, 6, v0")
    e("s_waitcnt lgkmcnt(0)")
    if STAMP == 3: stamp()
    srd(16, 8, CH * 4, "s12")
    e("buffer_load_dwordx4 v[8:11], v1, s[16:19], 0 offen " + LDF)
    srd(20, 6, CH * 4, "s12")
    srd(24, 4, CH * 8, "s13")
    def rest():
        e("buffer_load_dwordx4 v[12:15], v1, s[20:23], 0 offen " + LDF)
        e("buffer_load_dwordx4 v[16:19], v2, s[24:27], 0 offen " + LDF)
        e("buffer_load_dwordx4 v[24:27], v2, s[24:27], 0 offen offset:16 " + LDF)
    if 'd' not in PF: rest()
    srd(28, 10, CH * 16, "s14")
    srd(32, 10, 8192, "s15")
    srd(48, 44, N_NODES * 128)
    e("v_readfirstlane_b32 s38, v7")
    e("v_mov_b32 v6, 1")
    e("v_lshlrev_b32 v40, 2, v7")
    e("v_and_b32 v41, 7, v0")
    e("v_lshlrev_b32 v41, 2, v41")
    e("v_cmp_gt_u32 vcc, %d, v0" % (CH // 4))
    e("s_mov_b64 s[36:37], vcc")
    if 'w' in PF or 'c' in PF:
        e("s_cmp_lg_u32 s38, 15")
        e("s_cbranch_scc1 K1_NOPF")
        e("v_and_b32 v68, 63, v0")
        if 'w' in PF:
            e("v_lshlrev_b32 v69, 12, v68")
            e("buffer_load_dword v70, v69, s[28:31], 0 offen")
            e("buffer_load_dword v70, v69, s[32:35], 0 offen")
        if 'c' in PF:
            e("s_getpc_b64 s[46:47]")
            lab("K1_PC")
            e("v_lshlrev_b32 v69, 7, v68")
            e("global_load_dword v70, v69, s[46:47]")
            e("v_add_u32 v69, 8192, v69")
            e("v_min_u32 v69, K2_END-K1_PC, v69")
            e("global_load_dword v70, v69, s[46:47]")
        lab("K1_NOPF")
    e("s_barrier")
    e("s_mov_b64 exec, s[36:37]")
    e("s_cbranch_execz K1_A")
    e("s_waitcnt vmcnt(%d)" % (0 if 'd' in PF else 3))
    if 'd' in PF: rest()
    stamp()
    for i in range(4):
        e("v_mul_u32_u24 v%d, %d, v%d" % (32 + i, TMUL, 8 + i))
    for i in range(4):
        e("v_lshrrev_b32 v%d, 14, v%d" % (32 + i, 32 + i))
        e("v_and_b32 v%d, 0x1ffc, v%d" % (32 + i, 32 + i))
        e("ds_add_rtn_u32 v%d, v%d, v6 offset:%d" % (36 + i, 32 + i, HIST))
    for i in range(4):
        d, a, b = 8 + i, 44 + i, 48 + i
        e("v_and_b32 v%d, 15, v%d" % (d, d))
        e("v_mul_u32_u24 v52, 11, v%d" % d)
        e("v_lshrrev_b32 v52, 5, v52")
        e("v_mad_i32_i24 v%d, v52, -3, v%d" % (a, d))
        e("v_add_u32 v%d, 1, v%d" % (a, a))
        e("v_lshl_add_u32 v52, v52, 1, 20")
        e("v_lshlrev_b32 v%d, v52, v%d" % (a, a))
        e("v_and_b32 v%d, 3, v%d" % (b, d))
        e("v_add_u32 v%d, 1, v%d" % (b, b))
        e("v_and_b32 v%d, 12, v%d" % (d, d))
        e("v_lshl_add_u32 v%d, v%d, 1, 3" % (d, d))
        e("v_lshlrev_b32 v%d, v%d, v%d" % (b, d, b))
    lab("K1_A")
    e("s_mov_b64 exec, -1")
    e("s_waitcnt lgkmcnt(0)")
    e("s_barrier")
    stamp()
    e("s_cmp_gt_u32 s38, 7")
    e("s_cbranch_scc1 K1_S1")
    e("ds_read_b128 v[56:59], v1 offset:%d" % HIST)
    e("s_waitcnt lgkmcnt(0)")
    e("v_add_u32 v61, v56, v57")
    e("v_add_u32 v62, v61, v58")
    e("v_add_u32 v42, v62, v59")
    e("v_mov_b32 v43, v42")
    scan64("v_add_u32", 43)
    e("s_mov_b32 exec_lo, 0"); e("s_mov_b32 exec_hi, 0x80000000")
    e("ds_write_b32 v40, v43 offset:%d" % WTOT)
    e("s_mov_b64 exec, -1")
    e("v_sub_u32 v43, v43, v42")
    e("s_waitcnt lgkmcnt(0)")
    lab("K1_S1")
    e("s_barrier")
    e("s_cbranch_scc1 K1_S2")
    e("ds_read_b32 v53, v41 offset:%d" % WTOT)
    e("s_waitcnt lgkmcnt(0)")
    e("v_mov_b32 v54, v53")
    for sh in (1, 2, 4):
        e("s_nop 1")
        e("v_add_u32_dpp v54, v54, v54 row_shr:%d row_mask:0xf bank_mask:0xf" % sh)
    e("v_sub_u32 v54, v54, v53")
    e("s_nop 0")
    e("v_readlane_b32 s39, v54, s38")
    e("s_nop 1")
    e("v_add_u32 v43, s39, v43")
    e("v_add_u32 v60, v43, v56")
    e("v_add_u32 v61, v43, v61")
    e("v_add_u32 v62, v43, v62")
    e("v_lshlrev_b32 v64, 4, v43"); e("v_lshlrev_b32 v65, 4, v60"); e("v_lshlrev_b32 v66, 4, v61"); e("v_lshlrev_b32 v67, 4, v62")
    e("ds_write_b128 v1, v[64:67] offset:%d" % HIST)
    e("v_lshl_or_b32 v56, v56, 16, v43"); e("v_lshl_or_b32 v57, v57, 16, v60")
    e("v_lshl_or_b32 v58, v58, 16, v61"); e("v_lshl_or_b32 v59, v59, 16, v62")
    e("s_bitcmp1_b32 s2, 4"); e("s_cbranch_scc0 K1_R1")
    e("v_swap_b32 v56, v57"); e("v_swap_b32 v58, v59")
    lab("K1_R1")
    e("s_bitcmp1_b32 s2, 5"); e("s_cbranch_scc0 K1_R2")
    e("v_swap_b32 v56, v58"); e("v_swap_b32 v57, v59")
    lab("K1_R2")
    e("s_lshr_b32 s39, s2, 2"); e("s_and_b32 s39, s39, 16")
    e("v_xor_b32 v60, s39, v1")
    e("buffer_store_dwordx4 v[56:59], v60, s[32:35], 0 offen " + STF)
    e("s_waitcnt vmcnt(1) lgkmcnt(0)")
    e("s_branch K1_S3")
    lab("K1_S2")
    e("s_waitcnt vmcnt(0)")
    if 'x' in PF:
        per = 807 * 128
        e("s_lshr_b32 s43, s2, 3"); e("s_mul_i32 s43, s43, %d" % per)
        e("v_and_b32 v68, 511, v0")
        e("v_lshlrev_b32 v68, %d, v68" % XST)
        e("v_add_u32 v68, s43, v68")
        for k in range(2 << (7 - XST)):
            e("buffer_load_dword v70, v68, s[48:51], 0 offen")
            e("v_add_u32 v68, %d, v68" % (512 << XST))
    lab("K1_S3")
    e("s_barrier")
    stamp()
    e("s_mov_b64 exec, s[36:37]")
    e("s_cbranch_execz K1_B")
    for i in range(4):
        e("ds_read_b32 v%d, v%d offset:%d" % (32 + i, 32 + i, HIST))
    e("s_mov_b32 s40, 0x40000")
    e("v_mov_b32 v20, v18"); e("v_mov_b32 v21, v19")
    e("v_mov_b32 v28, v26"); e("v_mov_b32 v29, v27")
    for i in range(4):
        e("v_or3_b32 v%d, v%d, v%d, s40" % (18 + 4 * i, 44 + i, 12 + i))
        e("v_mov_b32 v%d, v%d" % (19 + 4 * i, 48 + i))
    for i in range(4):
        e("s_waitcnt lgkmcnt(3)")
        e("v_lshl_add_u32 v%d, v%d, 4, v%d" % (32 + i, 36 + i, 32 + i))
        e("ds_write_b128 v%d, v[%d:%d] offset:%d" % (32 + i, 16 + 4 * i, 19 + 4 * i, RB))
    lab("K1_B")
    e("s_mov_b64 exec, -1")
    e("s_waitcnt lgkmcnt(0)")
    e("s_barrier")
    stamp()
    for k in range(3):
        e("ds_read_b128 v[%d:%d], v1 offset:%d" % (8 + 4 * k, 11 + 4 * k, RB + 16384 * k))
    e("s_mov_b32 s40, 16384"); e("s_mov_b32 s41, 32768"); e("s_mov_b32 s42, 49152")
    e("s_cmp_gt_u32 s38, 1")
    e("s_cbranch_scc1 K1_C")
    e("ds_read_b128 v[20:23], v1 offset:%d" % (RB + 49152))
    e("s_waitcnt lgkmcnt(0)")
    e("buffer_store_dwordx4 v[20:23], v1, s[28:31], s42 offen " + STF)
    lab("K1_C")
    e("s_waitcnt lgkmcnt(2)")
    e("buffer_store_dwordx4 v[8:11], v1, s[28:31], 0 offen " + STF)
    e("s_waitcnt lgkmcnt(1)")
    e("buffer_store_dwordx4 v[12:15], v1, s[28:31], s40 offen " + STF)
    e("s_waitcnt lgkmcnt(0)")
    e("buffer_store_dwordx4 v[16:19], v1, s[28:31], s41 offen " + STF)
    stamp()
    if STAMP: e("s_waitcnt vmcnt(0)")
    stamp(final=True, wsreg=10, wave="s38", nwaves=16, kid=0, tmpv=50)
    e("s_endpgm")
    lab("K1_AUX")
    e("s_cmp_gt_u32 s2, %d" % NC)
    e("s_cbranch_scc1 K1_END2")
    e("s_load_dwordx4 s[12:15], s[0:1], 32")
    e("s_load_dwordx2 s[16:17], s[0:1], 48")
    e("s_load_dwordx4 s[20:23], s[0:1], 56")
    e("v_lshrrev_b32 v1, 6, v0")
    e("v_and_b32 v2, 63, v0")
    e("v_readfirstlane_b32 s38, v1")
    e("s_waitcnt lgkmcnt(0)")
    e("s_lshr_b32 s39, s38, 2")
    e("s_and_b32 s40, s38, 3")
    e("s_cmp_eq_u32 s39, 1"); e("s_cselect_b32 s12, s20, s12"); e("s_cselect_b32 s13, s21, s13")
    e("s_cmp_eq_u32 s39, 3"); e("s_cselect_b32 s12, s22, s12"); e("s_cselect_b32 s13, s23, s13")
    e("s_cmp_eq_u32 s39, 2"); e("s_cselect_b32 s12, s14, s12"); e("s_cselect_b32 s13, s15, s13")
    e("s_mov_b32 s42, 0x%x" % NEGLOG2E)
    e("s_bitcmp0_b32 s39, 0")
    e("s_cselect_b32 s41, s42, 1.0")
    srd(24, 12, 8192)
    srd(28, 16, 512)
    srd(32, 10, 32768 + 512, "0x%x" % WS_WFR)
    srd(52, 10, 512 * 16, "0x%x" % (WS_REC + 255 * CH * 16))
    e("v_and_b32 v3, 31, v2")
    e("v_lshlrev_b32 v3, 2, v3")
    e("v_lshrrev_b32 v4, 5, v2")
    e("v_lshl_add_u32 v5, v4, 10, v3")
    e("s_lshl_b32 s43, s40, 11")
    for i in range(8):
        e("buffer_load_dword v%d, v5, s[24:27], s43 offen offset:%d" % (8 + i, i * 128))
    for i in range(4):
        e("buffer_load_dword v%d, v3, s[28:31], 0 offen offset:%d" % (40 + i, i * 128))
    e("v_lshlrev_b32 v6, 4, v0")
    e("v_mov_b32 v48, 0"); e("v_mov_b32 v49, 0"); e("v_mov_b32 v50, 0x4ffff"); e("v_mov_b32 v51, 0")
    e("buffer_store_dwordx4 v[48:51], v6, s[52:55], 0 offen " + STF)
    e("s_waitcnt vmcnt(5)")
    for i in range(8):
        e("v_lshlrev_b32 v%d, 16, v%d" % (16 + i, 8 + i))
        e("v_and_b32 v%d, 0xffff0000, v%d" % (24 + i, 8 + i))
    for i in range(16):
        e("v_mul_f32 v%d, s41, v%d" % (16 + i, 16 + i))
    for i in range(8):
        e("v_cvt_pk_bf16_f32 v%d, v%d, v%d" % (32 + i, 16 + 2 * i, 17 + 2 * i))
    e("v_lshlrev_b32 v7, 4, v2")
    e("s_lshl_b32 s43, s39, 13")
    e("s_lshl_b32 s48, s40, 10")
    e("s_add_u32 s43, s43, s48")
    e("s_add_u32 s48, s43, 4096")
    e("buffer_store_dwordx4 v[32:35], v7, s[32:35], s43 offen " + STF)
    e("buffer_store_dwordx4 v[36:39], v7, s[32:35], s48 offen " + STF)
    e("s_cmp_lg_u32 s38, 0")
    e("s_cbranch_scc1 K1_END2")
    e("s_waitcnt vmcnt(3)")
    for i in range(4):
        e("v_lshlrev_b32 v%d, 16, v%d" % (16 + i, 40 + i))
        e("v_and_b32 v%d, 0xffff0000, v%d" % (20 + i, 40 + i))
    for i in range(8):
        e("v_mul_f32 v%d, s42, v%d" % (16 + i, 16 + i))
    for i in range(4):
        e("v_cvt_pk_bf16_f32 v%d, v%d, v%d" % (44 + i, 16 + 2 * i, 17 + 2 * i))
    e("v_add_u32 v7, 32768, v7")
    e("buffer_store_dwordx4 v[44:47], v7, s[32:35], 0 offen " + STF)
    lab("K1_END2")
    e("s_endpgm")
    return RB + CH * 16

TS, TOTA = 0, 64
RECB = 1024
DUMMY = RECB + 65536
XTB = DUMMY + 1024
XBB = XTB + 16384
K2_LDS = XBB + 65536

class R: pass
def alloc():
    r = R(); p = 0
    def a(n, al=1):
        nonlocal p
        p = (p + al - 1) // al * al
        b = p; p += n
        return b
    r.LANE = a(1); r.SI = a(1)
    r.PS = a(1, 2); r.PC = a(1); r.PT = a(1, 2); r.PE = a(1); r.PL = a(1); r.RI = a(1)
    r.XA0 = a(1); r.XA1 = a(1); r.TI = a(1); r.TMP = a(3)
    r.SO = a(4, 2); r.XI = a(8, 2); r.T = a(4, 2); r.S = a(8, 2); r.ETA = a(8, 2); r.X = a(16, 2)
    r.U = a(16, 2)
    r.ACC = [a(16, 2), a(16, 2)]
    r.G = [a(16, 2), None]; r.V = [a(16, 2), None]
    r.G[1] = a(16, 2); r.V[1] = a(16, 2)
    r.WB = a(32, 2); r.WV = a(32, 2); r.AT = a(16, 2)
    r.WCR = r.ETA
    r.n = p
    return r

def mfma(d, a, b, c):
    return "v_mfma_f32_32x32x16_bf16 %s, %s, %s, %s" % (vr(d, 16), vr(a, 4), vr(b, 4), "0" if c is None else vr(c, 16))
def smf(d, a, b, idx, abid=0):
    return "v_smfmac_f32_32x32x32_bf16 %s, %s, %s, %s%s" % (vr(d, 16), vr(a, 4), vr(b, 8), vr(idx), " abid:1" if abid else "")

SOFF = [0, 64, 256, 320]

def k2():
    r = alloc()
    assert r.n <= 256, r.n
    sW, sT, sStart, sEnd, sTot, sW0, sNG, sXB, sREC, sFirst, sBin, sMag, sRD, sRE, sXT = range(36, 51)
    sINC = 52; sSO = 54
    SX, SXI, SOFS, SRC, SWF, SOUT = 12, 16, 20, 24, 28, 32
    lane = r.LANE
    c0, c1, c2 = r.TMP, r.TMP + 1, r.TMP + 2
    MAG = -(-(1 << 41) // 671)
    for t in range(2049):
        n = t * 8192 + 670
        assert (n * MAG) >> 41 == n // 671
    def tile_range():
        e("s_lshl_b32 s10, %s, 13" % sr(sT)); e("s_add_u32 s10, s10, 670")
        e("s_mul_hi_u32 %s, s10, %s" % (sr(sStart), sr(sMag))); e("s_lshr_b32 %s, %s, 9" % (sr(sStart), sr(sStart)))
        e("s_add_u32 s10, s10, 8192")
        e("s_mul_hi_u32 %s, s10, %s" % (sr(sEnd), sr(sMag))); e("s_lshr_b32 %s, %s, 9" % (sr(sEnd), sr(sEnd)))
    L.append(".p2align 8"); L.append(".type k2_main_kernel,@function"); lab("k2_main_kernel")
    e("s_load_dwordx2 s[8:9], s[0:1], 88")
    e("s_load_dwordx2 s[4:5], s[0:1], 0")
    e("s_load_dwordx2 s[6:7], s[0:1], 72")
    if PK == 2: e("s_load_dwordx2 s[58:59], s[0:1], 8")
    e("s_cmp_gt_u32 s2, 255")
    e("s_cbranch_scc1 K2_END")
    e("s_setprio 3")
    for _ in range(DLY2): e("s_sleep 36")
    stamp()
    t0, t1, t2, t3, t4, t5, t6 = [r.G[0] + i for i in range(7)]
    t7 = r.TI
    e("v_lshrrev_b32 %s, 6, v0" % vr(t0))
    e("v_and_b32 %s, 63, v0" % vr(lane))
    e("v_readfirstlane_b32 %s, %s" % (sr(sW), vr(t0)))
    e("s_and_b32 s10, s2, 7"); e("s_lshl_b32 s10, s10, 5"); e("s_lshr_b32 s11, s2, 3"); e("s_add_u32 %s, s10, s11" % sr(sBin))
    e("v_lshrrev_b32 %s, 1, %s" % (vr(t0), vr(lane)))
    e("v_lshlrev_b32 %s, 15, %s" % (vr(t0), vr(t0)))
    e("v_and_b32 %s, 1, %s" % (vr(t1), vr(lane)))
    e("v_lshl_or_b32 %s, %s, 4, %s" % (vr(t0), vr(t1), vr(t0)))
    e("s_lshr_b32 s11, %s, 2" % sr(sW)); e("s_lshl_b32 s11, s11, 20")
    e("s_and_b32 s10, %s, 3" % sr(sW)); e("s_lshl_b32 s10, s10, 13"); e("s_add_u32 s11, s11, s10")
    e("s_lshl_b32 s10, %s, 5" % sr(sBin)); e("s_add_u32 s11, s11, s10")
    e("v_add_u32 %s, s11, %s" % (vr(t0), vr(t0)))
    e("s_lshl_b32 %s, %s, 13" % (sr(sREC), sr(sW)))
    e("s_add_u32 %s, %s, %d" % (sr(sXB), sr(sREC), XBB))
    e("s_add_u32 %s, %s, %d" % (sr(sREC), sr(sREC), RECB))
    e("s_add_u32 m0, %s, 3072" % sr(sXB))
    e("s_lshl_b32 %s, %s, 3" % (sr(sT), sr(sBin))); e("s_add_u32 %s, %s, %s" % (sr(sT), sr(sT), sr(sW)))
    e("s_mov_b32 %s, 0x%x" % (sr(sMag), MAG))
    tile_range()
    e("v_lshlrev_b32 %s, 4, %s" % (vr(t1), vr(lane)))
    e("v_lshrrev_b32 %s, 3, %s" % (vr(t2), vr(lane)))
    e("v_xor_b32 %s, %s, %s" % (vr(t3), vr(t2), vr(lane)))
    e("v_and_b32 %s, 7, %s" % (vr(t3), vr(t3)))
    e("v_lshlrev_b32 %s, 4, %s" % (vr(t3), vr(t3)))
    e("v_subrev_u32 %s, %s, %s" % (vr(t2), sr(sStart), vr(t2)))
    e("v_and_b32 %s, 15, %s" % (vr(t2), vr(t2)))
    e("v_xor_b32 %s, 8, %s" % (vr(t4), vr(t2)))
    e("v_add_u32 %s, %s, %s" % (vr(t2), sr(sStart), vr(t2)))
    e("v_add_u32 %s, %s, %s" % (vr(t4), sr(sStart), vr(t4)))
    e("v_lshl_add_u32 %s, %s, 7, %s" % (vr(t2), vr(t2), vr(t3)))
    e("v_lshl_add_u32 %s, %s, 7, %s" % (vr(t4), vr(t4), vr(t3)))
    e("s_waitcnt lgkmcnt(0)")
    srd(SOFS, 8, NC * 8192, "0x%x" % WS_OFF)
    e("buffer_load_dwordx4 %s, %s, 0 offen lds" % (vr(t0), sr(SOFS, 4)))
    e("s_add_u32 m0, %s, 4096" % sr(sXB))
    srd(SWF, 8, 32768 + 512, "0x%x" % WS_WFR)
    e("s_lshl_b32 s10, %s, 12" % sr(sW))
    for k in range(4):
        e("buffer_load_dwordx4 %s, %s, s10 offen offset:%d lds" % (vr(t1), sr(SWF, 4), k * 1024))
    e("s_lshl_b32 s10, %s, 11" % sr(sW))
    e("s_add_u32 m0, s10, %d" % XTB)
    srd(SX, 4, N_NODES * 128)
    e("buffer_load_dwordx4 %s, %s, 0 offen lds" % (vr(t2), sr(SX, 4)))
    e("s_add_u32 m0, s10, %d" % (XTB + 1024))
    e("v_add_u32 %s, 32768, %s" % (vr(t5), vr(t1)))
    e("buffer_load_dwordx4 %s, %s, 0 offen lds" % (vr(t4), sr(SX, 4)))
    WC = r.WCR
    e("buffer_load_dwordx4 %s, %s, %s, 0 offen" % (vr(WC, 4), vr(t5), sr(SWF, 4)))
    NPF = 0
    if 'y' in PF:
        e("s_lshr_b32 s10, s2, 3"); e("s_mul_i32 s10, s10, %d" % (782 * 128))
        e("s_mul_i32 s11, %s, %d" % (sr(sW), 98 * 128)); e("s_add_u32 s10, s10, s11")
        e("v_lshl_add_u32 %s, %s, %d, s10" % (vr(t6), vr(lane), XST))
        NPF = 2 if XST == 7 else 3
        for k in range(NPF):
            if XST == 7 and k == 1: e("s_mov_b64 exec, 0x3ffffffff" if False else "s_mov_b32 exec_hi, 3")
            e("buffer_load_dword %s, %s, %s, 0 offen" % (vr(t7), vr(t6), sr(SX, 4)))
            e("v_add_u32 %s, %d, %s" % (vr(t6), 64 << XST, vr(t6)))
        e("s_mov_b64 exec, -1")
    if PK == 2: srd(SXI, 58, N_NODES, stride=int(opts.get('tstride', 256)), sub="3072")
    else: srd(SXI, 4, N_NODES, stride=128, sub="3072")
    srd(SRC, 8, 256 * CH, stride=16)
    e("s_mov_b32 %s, 1024" % sr(sINC)); e("s_mov_b32 %s, 1024" % sr(sINC + 1))
    e("s_mov_b32 %s, 3072" % sr(sSO)); e("s_mov_b32 %s, 2048" % sr(sSO + 1)); e("s_mov_b32 %s, 1024" % sr(sSO + 2))
    H = t3
    e("v_lshrrev_b32 %s, 5, %s" % (vr(H), vr(lane)))
    e("v_mov_b32 %s, 0x%x" % (vr(t4), (1 << 4) | (2 << 8) | (1 << 14) | (2 << 18)))
    e("v_lshlrev_b32 %s, 1, %s" % (vr(t5), vr(lane)))
    e("v_bfe_u32 %s, %s, %s, 2" % (vr(t4), vr(t4), vr(t5)))
    e("v_mul_u32_u24 %s, 0x8001, %s" % (vr(t4), vr(t4)))
    e("v_and_b32 %s, 0x10001, %s" % (vr(t4), vr(t4)))
    e("v_mul_u32_u24 %s, 0x3f80, %s" % (vr(t4), vr(t4)))
    e("v_lshlrev_b32 %s, 2, %s" % (vr(t5), vr(lane)))
    e("s_mov_b64 exec, 0x3ff")
    e("ds_write_b32 %s, %s offset:%d" % (vr(t5), vr(t4), TS))
    e("s_mov_b64 exec, -1")
    e("v_and_b32 %s, 3, %s" % (vr(c0), vr(lane)))
    e("v_bfe_u32 %s, %s, 4, 1" % (vr(c1), vr(lane)))
    e("v_mul_u32_u24 %s, 0x5555, %s" % (vr(r.SI), vr(c1)))
    e("v_or_b32 %s, 0x8888, %s" % (vr(r.SI), vr(r.SI)))
    e("v_xor_b32 %s, %s, %s" % (vr(c2), vr(c0), vr(H)))
    e("v_lshl_or_b32 %s, %s, 2, %s" % (vr(c2), vr(c1), vr(c2)))
    e("v_lshlrev_b32 %s, 4, %s" % (vr(r.XI + 1), vr(c2)))
    e("v_mov_b32 %s, %s" % (vr(r.XI + 3), vr(r.XI + 1)))
    e("v_xor_b32 %s, 32, %s" % (vr(r.XI + 5), vr(r.XI + 1)))
    e("v_mov_b32 %s, %s" % (vr(r.XI + 7), vr(r.XI + 5)))
    e("v_bfe_u32 %s, %s, 3, 2" % (vr(c2), vr(lane)))
    e("v_xor_b32 %s, %s, %s" % (vr(c2), vr(c2), vr(H)))
    e("v_lshlrev_b32 %s, 4, %s" % (vr(r.XA0), vr(c2)))
    e("v_lshl_or_b32 %s, %s, 6, %s" % (vr(r.XA0), vr(c0), vr(r.XA0)))
    e("v_bfe_u32 %s, %s, 3, 1" % (vr(c2), vr(lane)))
    e("v_lshl_or_b32 %s, %s, 9, %s" % (vr(r.XA0), vr(c2), vr(r.XA0)))
    e("v_bfe_u32 %s, %s, 2, 1" % (vr(t4), vr(lane)))
    e("v_lshl_or_b32 %s, %s, 10, %s" % (vr(r.XA0), vr(t4), vr(r.XA0)))
    e("v_lshl_or_b32 %s, %s, 11, %s" % (vr(r.XA0), vr(c1), vr(r.XA0)))
    e("v_xor_b32 %s, 32, %s" % (vr(r.XA1), vr(r.XA0)))
    e("v_add_u32 %s, %s, %s" % (vr(r.XA0), sr(sXB), vr(r.XA0)))
    e("v_add_u32 %s, %s, %s" % (vr(r.XA1), sr(sXB), vr(r.XA1)))
    FA, FU = r.SO + 2, r.SO + 3
    e("v_lshl_or_b32 %s, %s, 1, %s" % (vr(c2), vr(t4), vr(c2)))
    e("v_lshl_or_b32 %s, %s, 1, %s" % (vr(c2), vr(c2), vr(c1)))
    e("v_mad_u32_u24 %s, %s, 3, %s" % (vr(c2), vr(c2), vr(c0)))
    e("v_add_u32 %s, 9, %s" % (vr(c2), vr(c2)))
    e("v_and_b32 %s, 15, %s" % (vr(c2), vr(c2)))
    for dst, src in ((FA, c2), (FU, None)):
        if src is None:
            e("v_and_b32 %s, 15, %s" % (vr(c2), vr(lane)))
        e("v_xor_b32 %s, %s, %s" % (vr(t4), vr(c2), vr(H)))
        e("v_and_b32 %s, 7, %s" % (vr(t4), vr(t4)))
        e("v_lshlrev_b32 %s, 4, %s" % (vr(t4), vr(t4)))
        e("v_lshl_or_b32 %s, %s, 7, %s" % (vr(dst), vr(c2), vr(t4)))
    e("v_lshlrev_b32 %s, 4, %s" % (vr(t4), vr(H)))
    e("v_mov_b32 %s, 0x3f80" % vr(t5))
    e("v_lshlrev_b32 %s, %s, %s" % (vr(r.T + 1), vr(t4), vr(t5)))
    e("v_mov_b32 %s, %s" % (vr(r.T + 2), vr(r.T + 1)))
    e("v_mov_b32 %s, %s" % (vr(r.T + 3), vr(r.T + 1)))
    EN = r.G[1]
    e("v_and_b32 %s, 31, %s" % (vr(t5), vr(lane)))
    e("v_lshlrev_b32 %s, 5, %s" % (vr(t5), vr(t5)))
    e("v_lshl_or_b32 %s, %s, 15, %s" % (vr(t5), vr(H), vr(t5)))
    e("s_lshl_b32 s10, %s, 2" % sr(sW))
    e("v_xor_b32 %s, s10, %s" % (vr(t4), vr(lane)))
    e("v_and_or_b32 %s, %s, 28, %s" % (vr(t5), vr(t4), vr(t5)))
    e("v_add_u32 %s, %d, %s" % (vr(t5), XBB + 3072, vr(t5)))
    e("s_mov_b32 %s, 0" % sr(sW0))
    e("s_mov_b32 %s, 1" % sr(sFirst))
    Z = r.G[1] + 4; LA = r.G[1] + 8; WA_ = r.G[1] + 9
    P = r.V[1]; D = r.V[1] + 4
    TOT = r.V[1] + 8; INC = r.V[1] + 9; CB = r.V[1] + 10; PREV = r.V[1] + 11; JB = r.V[1] + 12; C512 = r.V[1] + 13
    M = r.S
    LOFF = 8192 - 2048 - 16
    def expand_pre():
        for i in range(4): e("v_mov_b32 %s, 0" % vr(Z + i))
        e("v_lshl_add_u32 %s, %s, 5, %s" % (vr(LA), vr(lane), sr(sREC)))
        e("ds_write_b128 %s, %s offset:%d" % (vr(LA), vr(Z, 4), LOFF))
        e("ds_write_b128 %s, %s offset:%d" % (vr(LA), vr(Z, 4), LOFF + 16))
        e("v_mul_u32_u24 %s, %d, %s" % (vr(CB), 4 * CH, vr(lane)))
        e("v_subrev_u32 %s, %s, %s" % (vr(CB), sr(sW0), vr(CB)))
        e("v_lshl_add_u32 %s, %s, 3, %s" % (vr(JB), vr(lane), sr(sW0)))
        e("v_mov_b32 %s, 512" % vr(C512))
        e("v_mov_b32 %s, 0" % vr(PREV))
        e("v_lshl_add_u32 %s, %s, 2, %s" % (vr(r.PL), vr(lane), sr(sREC)))
        e("s_lshl_b32 s11, %s, 2" % sr(sW))
        e("v_mov_b32 %s, s11" % vr(WA_))
    expand_pre()
    stamp()
    e("s_waitcnt vmcnt(%d) lgkmcnt(0)" % (7 + NPF))
    e("s_barrier")
    stamp()
    for i in range(4):
        e("ds_read_b32 %s, %s offset:%d" % (vr(EN + i), vr(t5), i * 8192))
    e("s_waitcnt lgkmcnt(0)")
    def xidx(g, t):
        return "ds_read_u16 %s, %s offset:%d" % (vr(r.XI + 2 * t), vr(r.PS), g * 512 + SOFF[t] + 8)
    def xm0(buf):
        return "s_add_u32 m0, %s, %d" % (sr(sXB), buf * 4096)
    def xdma(t):
        return "buffer_load_dwordx4 %s, %s, %s idxen offen offset:%d lds" % (vr(r.XI + 2 * t, 2), sr(SXI, 4), sr(sSO + t) if t < 3 else "0", t * 1024)
    def xread(buf, k):
        return "ds_read_b128 %s, %s offset:%d" % (vr(r.X + 4 * k, 4), vr(r.XA1 if k & 1 else r.XA0), buf * 4096 + (k >> 1) * 256)
    def t0read(g): return "ds_read_b32 %s, %s offset:%d" % (vr(r.T), vr(r.PE), g * 512)
    def tiread(g): return "ds_read_b32 %s, %s offset:%d" % (vr(r.TI), vr(r.PT), g * 512 + 8)
    def soread(g, t): return "ds_read_u8 %s, %s offset:%d" % (vr(r.SO + t), vr(r.PC), g * 512 + SOFF[t] + 12)
    def trread(t): return "ds_read_b64_tr_b16 %s, %s offset:%d" % (vr(r.S + 2 * t, 2), vr(r.SO + t), TS)
    def riread(blk): return "ds_read_b32 %s, %s offset:%d" % (vr(r.RI), vr(r.PL), LOFF + blk * 256)
    rdma = "buffer_load_dwordx4 %s, %s, 0 idxen lds" % (vr(r.RI), sr(SRC, 4))
    lab("K2_EXPAND")
    sd = "dst_sel:DWORD dst_unused:UNUSED_PAD src0_sel:WORD_%d src1_sel:DWORD"
    e("v_lshrrev_b32 %s, 16, %s" % (vr(P + 1), vr(EN)))
    e("v_add_u32_sdwa %s, %s, %s %s" % (vr(P + 2), vr(EN + 1), vr(P + 1), sd % 1))
    e("v_add_u32_sdwa %s, %s, %s %s" % (vr(P + 3), vr(EN + 2), vr(P + 2), sd % 1))
    e("v_add_u32_sdwa %s, %s, %s %s" % (vr(INC), vr(EN + 3), vr(P + 3), sd % 1))
    fill = ["v_add_u32 %s, %s, %s" % (vr(TOT), sr(sW0), vr(INC))]
    fill += ["v_add_u32_sdwa %s, %s, %s %s" % (vr(D + i), vr(EN + i), vr(CB), sd % 0) for i in range(4)]
    fill += ["v_add_u32 %s, %d, %s" % (vr(D + i), i * CH, vr(D + i)) for i in range(1, 4)]
    fill += ["v_sub_u32 %s, %s, %s" % (vr(P + i), vr(P + i), vr(TOT)) for i in range(1, 4)]
    scan64("v_add_u32", INC, fill)
    e("v_sub_u32 %s, %s, %s" % (vr(P), vr(INC), vr(TOT)))
    e("v_readlane_b32 %s, %s, 63" % (sr(sTot), vr(INC)))
    for i in range(1, 4):
        e("v_add_u32 %s, %s, %s" % (vr(P + i), vr(INC), vr(P + i)))
    for i in range(4):
        e("v_sub_u32 %s, %s, %s" % (vr(D + i), vr(D + i), vr(P + i)))
        e("v_med3_i32 %s, %s, 0, %s" % (vr(P + i), vr(P + i), vr(C512)))
        e("v_lshl_add_u32 %s, %s, 2, %s" % (vr(P + i), vr(P + i), sr(sREC)))
    for i in range(4):
        e("ds_max_u32 %s, %s offset:%d" % (vr(P + i), vr(D + i), LOFF))
    e("ds_read_b128 %s, %s offset:%d" % (vr(M, 4), vr(LA), LOFF))
    e("ds_read_b128 %s, %s offset:%d" % (vr(M + 4, 4), vr(LA), LOFF + 16))
    e("s_lshl_b32 s10, %s, 3" % sr(sTot)); e("s_or_b32 s10, s10, %s" % sr(sW))
    e("v_mov_b32 %s, s10" % vr(TOT))
    e("s_mov_b64 exec, 1")
    e("ds_write_b32 %s, %s offset:%d" % (vr(WA_), vr(TOT), TOTA))
    e("s_mov_b64 exec, -1")
    e("s_waitcnt lgkmcnt(1)")
    e("v_max3_u32 %s, %s, %s, %s" % (vr(INC), vr(M), vr(M + 1), vr(M + 2)))
    e("v_max3_u32 %s, %s, %s, %s" % (vr(INC), vr(INC), vr(M + 3), vr(M + 4)))
    e("v_max3_u32 %s, %s, %s, %s" % (vr(INC), vr(INC), vr(M + 5), vr(M + 6)))
    e("v_max_u32 %s, %s, %s" % (vr(INC), vr(INC), vr(M + 7)))
    fill = ["v_max_u32 %s, %s, %s" % (vr(M + k), vr(M + k - 1), vr(M + k)) for k in range(1, 8)]
    scan64("v_max_u32", INC, fill)
    e("s_mov_b32 m0, %s" % sr(sREC))
    e("s_nop 0")
    e("v_mov_b32_dpp %s, %s wave_shr:1 row_mask:0xf bank_mask:0xf" % (vr(PREV), vr(INC)))
    for k in range(8):
        e("v_max_u32 %s, %s, %s" % (vr(M + k), vr(PREV), vr(M + k)))
        e("v_add3_u32 %s, %s, %s, %d" % (vr(M + k), vr(M + k), vr(JB), k))
    e("ds_write_b128 %s, %s offset:%d" % (vr(LA), vr(M, 4), LOFF))
    e("ds_write_b128 %s, %s offset:%d" % (vr(LA), vr(M + 4, 4), LOFF + 16))
    e("ds_read_b32 %s, %s offset:%d" % (vr(Z), vr(r.PL), LOFF))
    e("ds_read_b32 %s, %s offset:%d" % (vr(Z + 1), vr(r.PL), LOFF + 256))
    e("v_lshrrev_b32 %s, 3, %s" % (vr(c0), vr(lane)))
    e("v_lshlrev_b32 %s, 2, %s" % (vr(c0), vr(c0)))
    e("v_and_b32 %s, 7, %s" % (vr(c1), vr(lane)))
    e("v_lshlrev_b32 %s, 3, %s" % (vr(r.RI), vr(c1)))
    e("v_lshlrev_b32 %s, 2, %s" % (vr(c1), vr(c1)))
    e("v_lshlrev_b32 %s, 4, %s" % (vr(c2), vr(lane)))
    e("v_add_u32 %s, %d, %s" % (vr(c2), XBB + 4096, vr(c2)))
    e("s_waitcnt lgkmcnt(1)")
    e("buffer_load_dwordx4 %s, %s, 0 idxen lds" % (vr(Z), sr(SRC, 4)))
    e("s_add_u32 m0, %s, 1024" % sr(sREC))
    e("s_waitcnt lgkmcnt(0)")
    e("buffer_load_dwordx4 %s, %s, 0 idxen lds" % (vr(Z + 1), sr(SRC, 4)))
    for i in range(4): e("v_mov_b32 %s, 0" % vr(r.S + 4 + i))
    e("s_cmp_eq_u32 %s, 0" % sr(sFirst))
    e("s_cbranch_scc1 K2_NOW")
    stamp()
    e("s_sub_u32 s10, 7, %s" % sr(sW)); e("s_sub_u32 s11, %s, 4" % sr(sW))
    e("s_cmp_lt_u32 %s, 4" % sr(sW)); e("s_cselect_b32 s11, s10, s11")
    e("s_waitcnt vmcnt(%d)" % (2 + NPF))
    e("s_barrier")
    stamp()
    e("ds_read_b32 %s, %s offset:%d" % (vr(c0), vr(c0), TOTA))
    e("ds_read_b32 %s, %s offset:%d" % (vr(c1), vr(c1), TOTA))
    WA = r.G[0]; WU = r.G[1]
    assert r.V[0] == r.G[0] + 16 and r.V[1] == r.G[1] + 16 and r.ACC[0] == r.U + 16
    wr = []
    for m, base in enumerate([WA, WU, r.WB, r.WV]):
        for u in range(8):
            uu = m * 8 + u
            wr.append("ds_read_b128 %s, %s offset:%d" % (vr(base + 4 * u, 4), vr(c2), (uu >> 2) * 8192 + (uu & 3) * 1024))
    for s in wr[8:12]: e(s)
    e("s_waitcnt lgkmcnt(4)")
    if PAIR:
        e("v_cmp_lt_u32 vcc, %s, %s" % (vr(c1), vr(c0)))
        e(wr[12]); e(wr[13])
        e("v_lshrrev_b64 %s, %s, vcc" % (vr(r.SO, 2), vr(r.RI)))
        e("v_and_b32 %s, 0xff, %s" % (vr(r.SO), vr(r.SO)))
        e("v_bcnt_u32_b32 %s, %s, 0" % (vr(r.SO), vr(r.SO)))
        e("v_cmp_eq_u32 vcc, s11, %s" % vr(r.SO))
        e("s_ff1_i32_b64 s10, vcc")
        e("v_readlane_b32 %s, %s, s10" % (sr(sTot), vr(c1)))
    else:
        for s in wr[12:14]: e(s)
        e("s_mov_b32 s10, %s" % sr(sW))
    e("s_lshl_b32 %s, s10, 11" % sr(sXT)); e("s_add_u32 %s, %s, %d" % (sr(sXT), sr(sXT), XTB))
    def xtile(mapreg, dst):
        e("v_add_u32 %s, %s, %s" % (vr(mapreg), sr(sXT), vr(mapreg)))
        tm = [mapreg, c0, c1, r.SO]
        for s in range(1, 4): e("v_xor_b32 %s, %d, %s" % (vr(tm[s]), 32 * s, vr(mapreg)))
        for s in range(4): e("ds_read_b128 %s, %s" % (vr(dst + 4 * s, 4), vr(tm[s])))
    xtile(FU, r.AT)
    e(wr[14]); e(wr[15])
    xtile(FA, r.X)
    for s in wr[0:8]: e(s)
    if PAIR: e("s_lshr_b32 %s, %s, 3" % (sr(sTot), sr(sTot)))
    e("s_lshl_b32 %s, s10, 13" % sr(sREC)); e("s_add_u32 %s, %s, %d" % (sr(sREC), sr(sREC), RECB))
    e("s_lshl_b32 %s, %s, 3" % (sr(sT), sr(sBin))); e("s_add_u32 %s, %s, s10" % (sr(sT), sr(sT)))
    e("v_lshl_add_u32 %s, %s, 2, %s" % (vr(r.PL), vr(lane), sr(sREC)))
    lab("K2_NOW")
    e("v_bfe_u32 %s, %s, 2, 2" % (vr(c0), vr(lane)))
    e("v_lshrrev_b32 %s, 5, %s" % (vr(c1), vr(lane)))
    e("v_lshl_or_b32 %s, %s, 3, %s" % (vr(c0), vr(c1), vr(c0)))
    e("v_lshl_add_u32 %s, %s, 4, %s" % (vr(r.PS), vr(c0), sr(sREC)))
    e("v_and_b32 %s, 3, %s" % (vr(c0), vr(lane)))
    e("v_add_u32 %s, %s, %s" % (vr(r.PC), vr(c0), vr(r.PS)))
    e("v_and_b32 %s, 31, %s" % (vr(c0), vr(lane)))
    e("v_lshl_add_u32 %s, %s, 4, %s" % (vr(r.PT), vr(c0), sr(sREC)))
    e("v_lshl_add_u32 %s, %s, 2, %s" % (vr(r.PE), vr(c1), vr(r.PT)))
    e("s_sub_u32 s10, %s, %s" % (sr(sTot), sr(sW0)))
    e("s_min_u32 s10, s10, 512")
    e("s_add_u32 s10, s10, 31"); e("s_lshr_b32 s10, s10, 5")
    e("s_max_u32 s10, s10, 1")
    e("s_sub_u32 %s, s10, 1" % sr(sNG))
    e("s_add_u32 %s, %s, 3072" % (sr(sRD), sr(sREC)))
    e("s_add_u32 %s, %s, 8192" % (sr(sRE), sr(sREC)))
    e("s_mov_b32 m0, %s" % sr(sXB))
    stamp()
    e("s_waitcnt vmcnt(0)")
    e("s_cmp_eq_u32 %s, 0" % sr(sFirst))
    e("s_cbranch_scc1 K2_NOB")
    e("s_barrier")
    lab("K2_NOB")
    stamp()
    for t in range(4): e(xidx(0, t))
    e("s_waitcnt lgkmcnt(0)")
    for t in range(4): e(xdma(t))
    if not PK:
        for t in range(4): e(soread(0, t))
    e(riread(2))
    for t in range(4): e(xidx(1, t))
    e(t0read(0)); e(tiread(0))
    stamp()
    e("s_cbranch_scc1 K2_NOW2")
    rest = wr[16:]
    for f in range(2):
        for s in range(4):
            e(mfma(r.U + 8 * f, r.AT + 4 * s, WU + 16 * f + 4 * s, None if s == 0 else r.U + 8 * f))
            e(rest.pop(0))
    for f in range(2):
        for s in range(4):
            e(mfma(r.ACC[f], r.X + 4 * s, WA + 16 * f + 4 * s, None if s == 0 else r.ACC[f]))
            e(rest.pop(0))
    assert not rest
    tile_range()
    e("s_min_u32 %s, %s, %d" % (sr(sEnd), sr(sEnd), N_NODES))
    e("s_sub_u32 s10, %s, %s" % (sr(sEnd), sr(sStart))); e("s_lshl_b32 s10, s10, 7")
    e("s_lshl_b32 s11, %s, 7" % sr(sStart))
    srd(SOUT, 6, "s10", "s11")
    for f in range(2):
        for i in range(8):
            e("v_cvt_pk_bf16_f32 %s, %s, %s" % (vr(r.AT + 8 * f + i), vr(r.ACC[f] + 2 * i) if i & 1 else "0", vr(r.ACC[f] + 2 * i + 1)))
        e(mfma(r.ACC[f], r.S + 4, r.S + 4, None))
    e("s_mov_b32 exec_hi, 0")
    for f in range(2):
        e("v_mov_b32 %s, %s" % (vr(r.AT + 8 * f), vr(WC + 2 * f)))
        e("v_mov_b32 %s, %s" % (vr(r.AT + 8 * f + 4), vr(WC + 2 * f + 1)))
    e("s_mov_b64 exec, -1")
    e("s_waitcnt lgkmcnt(0)")
    e("s_barrier")
    lab("K2_NOW2")
    e(xm0(1))
    e("s_waitcnt lgkmcnt(0)")
    for t in range(4): e(xdma(t))
    def I(text, lds=None, need=()):
        return dict(text=text, lds=lds, need=list(need))
    def emit_loop(body):
        if RP:
            nm = sum('mfma' in it['text'] for it in body) // 2
            nb_ = []; k = 0
            for it in body:
                nb_.append(it)
                if 'mfma' in it['text']:
                    for idx, pr in ((RP[0], 0), (RP[1], 2)):
                        if k % nm == idx:
                            nb_.append(I("s_cbranch_vccz 1")); nb_.append(I("s_setprio %d" % pr))
                    k += 1
            body = nb_
            e("s_cmp_lt_u32 %s, 4" % sr(sW)); e("s_cselect_b64 vcc, -1, 0"); e("s_setprio 1")
        issued = []; done = 0
        for pas in range(2):
            if pas == 1:
                if SOLO:
                    e("s_cmp_gt_u32 %s, 3" % sr(sW)); e("s_cbranch_scc1 K2_DRAIN")
                lab("K2_LOOP")
            for it in body:
                n = None
                for tag in it['need']:
                    idxs = [k for k, t in enumerate(issued) if t == tag]
                    if not idxs: continue
                    k = idxs[-1]
                    if k >= done:
                        n = len(issued) - 1 - k
                        done = k + 1
                tx = it['text']
                if n is not None:
                    assert n <= 15
                    if tx.startswith("s_waitcnt"): tx += " lgkmcnt(%d)" % n
                    elif pas == 1: e("s_waitcnt lgkmcnt(%d)" % n)
                if pas == 1:
                    if ABL == 'nomfma' and 'mfma' in tx: tx = "s_nop 0"
                    if ABL == 'nogather' and tx.startswith('buffer_load'): tx = "s_nop 0"
                    if ABL == 'nolds' and (tx.startswith('ds_read') or tx.startswith('buffer_load') or tx.startswith('s_waitcnt')): tx = "s_waitcnt"
                    if ABL == 'nowait' and tx.startswith('s_waitcnt vmcnt'): tx = re.sub(r"vmcnt\(\d+\)", "vmcnt(40)", tx)
                    if ABL == 'halfvm' and tx.startswith('buffer_load') and re.search(r", s(28|29|30|31) idxen", tx): tx = "s_waitcnt"
                    if ABL == 'novm' and tx.startswith('buffer_load'): tx = "s_waitcnt"
                    if ABL == 'nosm' and 'smfmac' in tx: tx = "s_nop 0"
                    if ABL == 'nodense' and tx.startswith('v_mfma'): tx = "s_nop 0"
                    if ABL == 'noaux' and tx.startswith('ds_read') and 'b128' not in tx: tx = "s_nop 0"
                    if ABL == 'nocvt' and tx.startswith('v_cvt'): tx = "s_nop 0"
                    if ABL == 'noam' and (tx.startswith('v_add_f32') or tx.startswith('v_mul_f32')): tx = "s_nop 0"
                    if ABL == 'nov' and tx.startswith('v_mfma') and (tx.split(',')[0].endswith(vr(r.V[0], 16)) or tx.split(',')[0].endswith(vr(r.V[1], 16))): tx = "s_nop 0"
                    if tx != "s_waitcnt": e(tx)
                if it['lds']: issued.append(it['lds'])
    XR = r.X; EA = r.X + 8
    pre = []
    pre.append("v_lshrrev_b32 %s, 5, %s" % (vr(c0), vr(lane)))
    pre.append("v_and_b32 %s, 31, %s" % (vr(c1), vr(lane)))
    pre.append("v_lshlrev_b32 %s, 2, %s" % (vr(c1), vr(c1)))
    pre.append("v_mul_u32_u24 %s, 0x240, %s" % (vr(c2), vr(c0)))
    pre.append("v_xor_b32 %s, %s, %s" % (vr(c2), vr(c2), vr(c1)))
    pre.append("v_add_u32 %s, %s, %s" % (vr(c2), sr(sXT), vr(c2)))
    if PK:
        assert r.ETA == r.S + 8
        e("s_add_u32 m0, %s, 2048" % sr(sREC))
        for t in range(4): e(xidx(2, t))
        e(rdma)
        e(riread(3))
        for i in range(4): e("v_mov_b32 %s, 0" % vr(r.SO + i))
        e(mfma(r.V[0], r.S + 4, r.S + 4, None))
        e(mfma(r.V[1], r.S + 4, r.S + 4, None))
        e(mfma(r.G[1], r.S + 4, r.S + 4, None).replace(", 0", ", 1.0"))
        e(mfma(r.S, r.SO, r.SO, None))
        e("s_waitcnt vmcnt(5)")
        stamp()
        for k in range(4): e(xread(0, k))
        e(xm0(0))
        for s_ in range(4):
            e("s_waitcnt lgkmcnt(%d)" % (3 - s_))
            e(mfma(r.G[0], r.X + 4 * s_, r.WB + 4 * s_, None if s_ == 0 else r.G[0]))
        e(xdma(0))
        e(smf(r.G[0], r.T, r.AT, r.TI, 1))
        e(xdma(1))
        e("s_setprio %d" % (1 if PRIO else 0))
        e("s_nop 7")
        stamp()
        if STAMP: e("s_memrealtime s[92:93]"); e("s_waitcnt lgkmcnt(0)"); e("s_add_u32 s63, %s, 1" % sr(sNG))
        def oct_(base, o):
            o %= 4
            return base[o >> 1] + 8 * (o & 1)
        def C_(o, i): return "v_cvt_pk_bf16_f32 %s, %s, %s" % (vr(oct_(r.V, o) + i), vr(r.ETA + i), vr(oct_(r.V, o) + i))
        def R_(o, i): return "v_rcp_f32 %s, %s" % (vr(r.ETA + i), vr(oct_(r.G, o) + i))
        def E_(o, i): return "v_exp_f32 %s, %s" % (vr(oct_(r.G, o) + i), vr(oct_(r.G, o) + i))
        def A_(o):
            g_ = oct_(r.G, o)
            if USEPK: return ["v_pk_add_f32 %s, %s, 1.0 op_sel_hi:[1,0]" % (vr(g_ + i, 2), vr(g_ + i, 2)) for i in range(0, 8, 2)]
            return ["v_add_f32 %s, 1.0, %s" % (vr(g_ + i), vr(g_ + i)) for i in range(8)]
        def M_(o, pk=True):
            v_ = oct_(r.V, o)
            if USEPK and pk: return ["v_pk_mul_f32 %s, %s, %s" % (vr(v_ + i, 2), vr(v_ + i, 2), vr(r.ETA + i, 2)) for i in range(0, 8, 2)]
            return ["v_mul_f32 %s, %s, %s" % (vr(v_ + i), vr(r.ETA + i), vr(v_ + i)) for i in range(8)]
        def red(f, hi): return smf(r.ACC[f], r.S + 4 * hi, r.V[f] + 8 * hi, r.SI)
        def gch(f): return [mfma(r.G[f], r.X + 4 * k, r.WB + 16 * f + 4 * k, None if k == 0 else r.G[f]) for k in range(4)] + [smf(r.G[f], r.T, r.AT + 8 * f, r.TI, 1)]
        def vch(f): return [mfma(r.V[f], r.X + 4 * k, r.WV + 16 * f + 4 * k, None if k == 0 else r.V[f]) for k in range(4)]
        CUT6 = [int(x) for x in opts.get('cut6', '0,3,7,11,15,19').split(',')]
        CUT5 = [int(x) for x in opts.get('cut5', '0,4,9,13,18').split(',')]
        def sub(s_, g):
            nb = (g + 1) & 1
            if s_ == 0:
                mm = [I(red(0, 1), need=['S3'])] + [I(t) for t in vch(0)]
                aux = [[I(soread(g, 0), lds='SO0')], [I(xdma(2)), I(soread(g, 1), lds='SO1')], [I(xdma(3))],
                       [I(soread(g, 2), lds='SO2')], [I(soread(g, 3), lds='SO3')]]
                if g == 0:
                    aux[4].insert(0, I("s_mov_b32 m0, %s" % sr(sRD)))
            elif s_ == 1:
                mm = [I(red(1, 0))] + [I(t) for t in gch(1)]
                aux = [[I(trread(0), lds='S0', need=['SO1'])], [I(trread(1), lds='S1')], [I(xidx(g + 3, 0), lds='XI0')], [I(xidx(g + 3, 1), lds='XI1')],
                       [I(xidx(g + 3, 2), lds='XI2'), I(xidx(g + 3, 3), lds='XI3')], [I(t0read(g + 1), lds='T0')]]
                if g == 0:
                    aux[1].insert(0, I("s_add_u32 %s, %s, 1024" % (sr(sRD), sr(sRD))))
                    aux[2].insert(0, I(rdma, need=['RI']))
                    aux[3].insert(0, I("s_cmp_lt_u32 %s, %s" % (sr(sRD), sr(sRE))))
                    aux[4].insert(0, I("s_cselect_b32 %s, %s, %d" % (sr(sRD), sr(sRD), DUMMY)))
            elif s_ == 2:
                mm = [I(red(1, 1))] + [I(t) for t in vch(1)]
                aux = [[I("s_waitcnt vmcnt(5)", need=['XI3']), I(tiread(g + 1), lds='TI')]] + [[I(xread(nb, k), lds='X%d' % k)] for k in range(4)]
            else:
                gc = gch(0)
                mm = [I(red(0, 0), need=['S1'])] + [I(gc[k], need=['X%d' % k]) for k in range(4)] + [I(gc[4], need=['T0', 'TI'])]
                aux = [[I(trread(2), lds='S2', need=['X1'])], [I(trread(3), lds='S3')], [I("s_waitcnt", need=['X3'])], [I(xm0(nb))],
                       [I("s_sub_u32 %s, %s, 1" % (sr(sNG), sr(sNG))), I(xdma(0))], [I("s_waitcnt", need=['S3']), I(xdma(1))]]
                if g == 1:
                    aux[3].append(I(riread(3), lds='RI'))
            if PRIO and s_ == PRIO // 10:
                aux[0].insert(0, I("s_setprio 0")); aux[PRIO % 10].insert(0, I("s_setprio 1"))
            if BP:
                aux[0].insert(0, I("s_setprio %d" % (0 if str(s_) in LOWS else 1)))
                if BP == 1: aux[-1].insert(0, I("s_setprio 3"))
            cut = CUT6 if len(mm) == 6 else CUT5
            va = []
            for i in range(8): va += [C_(s_ - 2, i), R_(s_ - 1, i), E_(s_, i)]
            out = []
            for k, t in enumerate(va):
                if k in cut:
                    j = cut.index(k); out.append(mm[j]); out.extend(aux[j])
                out.append(I(t))
            if s_ == 3 and g == 1:
                out += [I("v_lshl_add_u64 %s, %s, 0, %s" % (vr(r.PS, 2), vr(r.PS, 2), sr(sINC, 2))),
                        I("v_lshl_add_u64 %s, %s, 0, %s" % (vr(r.PT, 2), vr(r.PT, 2), sr(sINC, 2)))]
            if s_ == 1 and g == 0:
                out.append(I("v_add_u32 %s, 256, %s" % (vr(r.PL), vr(r.PL))))
            out += ([I("s_setprio 3")] if BP == 2 else []) + [I(t) for t in M_(s_ - 1) + A_(s_)]
            return out
        if PK == 2:
            ID = r.WB
            TOFF = 128 if int(opts.get('tstride', 256)) == 256 else 0
            for s2_ in range(4): e("s_mov_b32 s%d, %d" % (60 + s2_ - 60 + 28, 3072 - 1024 * s2_ + TOFF))
            e("v_and_b32 %s, 31, %s" % (vr(c0), vr(lane)))
            e("v_lshrrev_b32 %s, 5, %s" % (vr(c1), vr(lane)))
            e("v_lshlrev_b32 %s, 3, %s" % (vr(c1), vr(c1)))
            e("v_sub_u32 %s, %s, %s" % (vr(c0), vr(c0), vr(c1)))
            e("v_and_b32 %s, 1, %s" % (vr(c1), vr(c0)))
            e("v_lshlrev_b32 %s, 4, %s" % (vr(c1), vr(c1)))
            e("v_mov_b32 %s, 0x3f80" % vr(c2))
            e("v_lshlrev_b32 %s, %s, %s" % (vr(c2), vr(c1), vr(c2)))
            e("v_ashrrev_i32 %s, 1, %s" % (vr(c0), vr(c0)))
            for k in range(8):
                e("v_cmp_eq_u32 vcc, %d, %s" % ((k & 3) + 8 * (k >> 2), vr(c0)))
                e("s_nop 1")
                e("v_cndmask_b32 %s, 0, %s, vcc" % (vr(ID + k), vr(c2)))
            e("s_nop 1")
            def xdma2(t, f): return "buffer_load_dwordx4 %s, %s, %s idxen offen offset:%d lds" % (vr(r.XI + 2 * t, 2), sr(SXI, 4), (sr(28 + t) if f else (sr(sSO + t) if t < 3 else "0")), t * 1024)
            def gch(f): return [mfma(r.G[f], r.X + 4 * k, ID + 4 * k, None if k == 0 else r.G[f]) for k in range(2)] + [smf(r.G[f], r.T, r.AT + 8 * f, r.TI, 1)]
            def vch(f): return [mfma(r.V[f], r.X + 8 + 4 * k, ID + 4 * k, None if k == 0 else r.V[f]) for k in range(2)]
            CUT4 = [int(x) for x in opts.get('cut4', '0,3,7,11').split(',')]
            CUT3 = [int(x) for x in opts.get('cut3', '0,3,7').split(',')]
            def sub(s_, g):
                if s_ == 0:
                    mm = [I(red(0, 1), need=['S3'])] + [I(t) for t in vch(0)]
                    aux = [[I("s_waitcnt vmcnt(%d)" % (4 if g == 0 else 4)), I(xread(1, 0), lds='X0')], [I(xread(1, 1), lds='X1'), I(xread(1, 2), lds='X2'), I(soread(g, 0), lds='SO0')],
                           [I(xm0(1)), I(xread(1, 3), lds='X3'), I(soread(g, 1), lds='SO1'), I(soread(g, 2), lds='SO2'), I(soread(g, 3), lds='SO3')]]
                elif s_ == 1:
                    mm = [I(red(1, 0))] + [I(t) for t in gch(1)]
                    aux = [[I(xdma2(0, 1), need=['SO1'])], [I(xdma2(1, 1)), I(trread(0), lds='S0')], [I(xdma2(2, 1)), I(trread(1), lds='S1')],
                           [I(xdma2(3, 1)), I(t0read(g + 1), lds='T0')]]
                elif s_ == 2:
                    mm = [I(red(1, 1))] + [I(t) for t in vch(1)]
                    aux = [[I("s_waitcnt vmcnt(4)"), I(xread(0, 0), lds='X0'), I(tiread(g + 1), lds='TI')],
                           [I(xread(0, 1), lds='X1'), I(xread(0, 2), lds='X2'), I(xidx(g + 2, 0), lds='XI0'), I(xidx(g + 2, 1), lds='XI1')],
                           [I(xread(0, 3), lds='X3'), I(xidx(g + 2, 2), lds='XI2'), I(xidx(g + 2, 3), lds='XI3')]]
                    if g == 0:
                        aux[1].insert(0, I("s_mov_b32 m0, %s" % sr(sRD)))
                        aux[2] = [I(rdma, need=['RI']), I("s_add_u32 %s, %s, 1024" % (sr(sRD), sr(sRD))), I("s_cmp_lt_u32 %s, %s" % (sr(sRD), sr(sRE))),
                                  I("s_cselect_b32 %s, %s, %d" % (sr(sRD), sr(sRD), DUMMY))] + aux[2]
                    else:
                        aux[2].append(I(riread(3), lds='RI'))
                    aux[2].append(I(xm0(0)))
                else:
                    mm = [I(red(0, 0))] + [I(t) for t in gch(0)]
                    aux = [[I(xdma2(0, 0), need=['XI3'])], [I(xdma2(1, 0)), I(trread(2), lds='S2')], [I(xdma2(2, 0)), I(trread(3), lds='S3')],
                           [I("s_sub_u32 %s, %s, 1" % (sr(sNG), sr(sNG))), I(xdma2(3, 0))]]
                if PRIO and s_ == PRIO // 10:
                    aux[0].insert(0, I("s_setprio 0"))
                if PRIO and s_ == PRIO // 10 + 1:
                    aux[PRIO % 10].insert(0, I("s_setprio 1"))
                if BP:
                    aux[0].insert(0, I("s_setprio %d" % (0 if str(s_) in LOWS else 1)))
                    if BP == 1: aux[-1].insert(0, I("s_setprio 3"))
                cut = CUT4 if len(mm) == 4 else CUT3
                va = []
                for i in range(8): va += [C_(s_ - 2, i), R_(s_ - 1, i), E_(s_, i)]
                out = []
                for k, t in enumerate(va):
                    if k in cut:
                        j = cut.index(k); out.append(mm[j]); out.extend(aux[j])
                    out.append(I(t))
                if s_ == 3 and g == 1:
                    out += [I("v_lshl_add_u64 %s, %s, 0, %s" % (vr(r.PS, 2), vr(r.PS, 2), sr(sINC, 2))),
                            I("v_lshl_add_u64 %s, %s, 0, %s" % (vr(r.PT, 2), vr(r.PT, 2), sr(sINC, 2)))]
                if s_ == 1 and g == 0:
                    out.append(I("v_add_u32 %s, 256, %s" % (vr(r.PL), vr(r.PL))))
                out += ([I("s_setprio 3")] if BP == 2 else []) + [I(t) for t in M_(s_ - 1) + A_(s_)]
                return out
        body = []
        for g in range(2):
            for s_ in range(4): body += sub(s_, g)
            body.append(I("s_cbranch_scc1 K2_DRAIN" if g == 0 else "s_cbranch_scc0 K2_LOOP"))
        emit_loop(body)
        lab("K2_DRAIN")
        stamp()
        if STAMP: e("s_memrealtime s[94:95]")
        e("s_setprio 2")
        e("s_waitcnt lgkmcnt(0)")
        e(red(0, 1))
        for i in range(8): e(C_(2, i)); e(R_(3, i))
        e(pre.pop(0)); e(pre.pop(0))
        e(red(1, 0))
        for t in M_(3, False): e(t)
        for i in range(8): e(C_(3, i))
        for t in pre: e(t)
        e(red(1, 1))
    else:
        e("s_add_u32 m0, %s, 2048" % sr(sREC))
        e(trread(0)); e(trread(1))
        for t in range(4): e(xidx(2, t))
        e(rdma)
        e(riread(3))
        for i in range(8):
            e("v_mov_b32 %s, 0" % vr(r.V[1] + 8 + i))
        for i in range(13, 16):
            e("v_mov_b32 %s, 1.0" % vr(r.G[1] + i))
        e("s_waitcnt vmcnt(5)")
        stamp()
        for k in range(4): e(xread(0, k))
        e(xm0(0))
        for s in range(4):
            e("s_waitcnt lgkmcnt(%d)" % (3 - s))
            e(mfma(r.G[0], r.X + 4 * s, r.WB + 4 * s, None if s == 0 else r.G[0]))
        e(smf(r.G[0], r.T, r.AT, r.TI, 1))
        for s in range(4):
            e(mfma(r.V[0], r.X + 4 * s, r.WV + 4 * s, None if s == 0 else r.V[0]))
            e(xdma(s))
        e("s_setprio 1")
        e("s_nop 4")
        stamp()
        if STAMP: e("s_memrealtime s[92:93]"); e("s_waitcnt lgkmcnt(0)"); e("s_add_u32 s63, %s, 1" % sr(sNG))

        def valu_slot(a, i):
            out = []
            def reg(base, idx):
                return (base[a] + idx) if idx >= 0 else (base[1 - a] + 16 + idx)
            if i < 16: out.append("v_exp_f32 %s, %s" % (vr(reg(r.G, i)), vr(reg(r.G, i))))
            if i - 1 < 16: out.append("v_add_f32 %s, 1.0, %s" % (vr(reg(r.G, i - 1)), vr(reg(r.G, i - 1))))
            if i - 2 < 16: out.append("v_rcp_f32 %s, %s" % (vr(reg(r.G, i - 2)), vr(reg(r.G, i - 2))))
            out.append("v_mul_f32 %s, %s, %s" % (vr(reg(r.V, i - 3)), vr(reg(r.G, i - 3)), vr(reg(r.V, i - 3))))
            out.append("v_cvt_pk_bf16_f32 %s, %s, %s" % (vr(reg(r.V, i - 3)), vr(reg(r.G, i - 3)), vr(reg(r.V, i - 3))))
            return out
        def I(text, lds=None, need=()):
            return dict(text=text, lds=lds, need=list(need))
        POS = [(3, 2), (4, 3), (5, 4), (7, 0), (8, 1), (9, 2), (10, 4), (12, 0), (13, 2), (14, 3), (15, 4)]
        def phase(a, g):
            b = 1 - a
            xn = ['X%d' % k for k in range(4)]
            mm = [I(smf(r.ACC[b], r.S + 4, r.V[b] + 8, r.SI), need=['S3'])]
            mm += [I(mfma(r.G[b], r.X + 4 * k, r.WB + 16 * b + 4 * k, None if k == 0 else r.G[b]), need=[xn[k]]) for k in range(4)]
            mm += [I(smf(r.G[b], r.T, r.AT + 8 * b, r.TI, 1), need=['T0', 'TI'])]
            vv = [I(mfma(r.V[b], r.X + 4 * k, r.WV + 16 * b + 4 * k, None if k == 0 else r.V[b])) for k in range(4)]
            mm += [vv[0], I(smf(r.ACC[a], r.S, r.V[a], r.SI), need=['S1'])] + vv[1:]
            aux = [[] for _ in range(11)]
            nb = (g + 1) & 1
            if a == 0:
                aux[0] += [I(trread(2), lds='S2', need=['SO3'])]
                aux[1] += [I(trread(3), lds='S3')]
                if g == 0:
                    aux[1].insert(0, I("s_mov_b32 m0, %s" % sr(sRD)))
                    aux[2] += [I(rdma, need=['RI'])]
                    aux[3] += [I("s_add_u32 %s, %s, 1024" % (sr(sRD), sr(sRD)))]
                    aux[4] += [I("s_cmp_lt_u32 %s, %s" % (sr(sRD), sr(sRE)))]
                    aux[5] += [I("s_cselect_b32 %s, %s, %d" % (sr(sRD), sr(sRD), DUMMY))]
                    aux[3] += [I(xidx(g + 3, 0), lds='XI0'), I(xidx(g + 3, 1), lds='XI1')]
                else:
                    aux[2] += [I(xidx(g + 3, 0), lds='XI0')]
                    aux[3] += [I(xidx(g + 3, 1), lds='XI1')]
                aux[4] += [I(xidx(g + 3, 2), lds='XI2'), I(xidx(g + 3, 3), lds='XI3')]
                aux[5] += [I(t0read(g + 1), lds='T0')]
                aux[6] += [I("s_waitcnt vmcnt(5)", need=['S3']), I(xread(nb, 0), lds='X0')]
                aux[7] += [I(tiread(g + 1), lds='TI')]
                for k in range(1, 4): aux[7 + k] += [I(xread(nb, k), lds=xn[k])]
            else:
                aux[0] += [I(soread(g + 1, 0), lds='SO0', need=['X3'])]
                aux[1] += [I(soread(g + 1, 1), lds='SO1')]
                aux[2] += [I(soread(g + 1, 2), lds='SO2')]
                aux[3] += [I(xm0(nb)), I(soread(g + 1, 3), lds='SO3')]
                aux[4] += [I(xdma(0), need=['XI3'])]
                aux[5] += [I(xdma(1))]
                aux[6] += [I(xdma(2))]
                aux[7] += [I(trread(0), lds='S0', need=['SO3'])]
                aux[8] += [I(trread(1), lds='S1')]
                aux[9] += [I(xdma(3))]
                aux[10] += [I("s_sub_u32 %s, %s, 1" % (sr(sNG), sr(sNG)))]
                if g == 1:
                    aux[10] += [I(riread(3), lds='RI')]
            ex = {}
            for k in range(11): ex[POS[k]] = [mm[k]] + aux[k]
            if a == 1 and g == 1:
                ex.setdefault((8, 0), []).extend([I("v_lshl_add_u64 %s, %s, 0, %s" % (vr(r.PS, 2), vr(r.PS, 2), sr(sINC, 2))),
                                                  I("v_lshl_add_u64 %s, %s, 0, %s" % (vr(r.PT, 2), vr(r.PT, 2), sr(sINC, 2)))])
            if a == 0 and g == 0:
                ex.setdefault((1, 0), []).append(I("v_add_u32 %s, 256, %s" % (vr(r.PL), vr(r.PL))))
            if PRIO and a == 1:
                ex[POS[0]].insert(1, I("s_setprio 0"))
                ex[POS[PRIO]].insert(1, I("s_setprio 1"))
            out = []
            for i in range(16):
                for p, t in enumerate(valu_slot(a, i)):
                    out.extend(ex.pop((i, p), []))
                    out.append(I(t))
            assert not ex, ex
            return out
        body = phase(0, 0) + phase(1, 0) + [I("s_cbranch_scc1 K2_DRAIN")] + phase(0, 1) + phase(1, 1) + [I("s_cbranch_scc0 K2_LOOP")]
        emit_loop(body)
        lab("K2_DRAIN")
        stamp()
        if STAMP: e("s_memrealtime s[94:95]")
        e("s_setprio 2")
        XR = r.X; EA = r.X + 8
        e("s_waitcnt lgkmcnt(0)")
        pre = []
        pre.append("v_lshrrev_b32 %s, 5, %s" % (vr(c0), vr(lane)))
        pre.append("v_and_b32 %s, 31, %s" % (vr(c1), vr(lane)))
        pre.append("v_lshlrev_b32 %s, 2, %s" % (vr(c1), vr(c1)))
        pre.append("v_mul_u32_u24 %s, 0x240, %s" % (vr(c2), vr(c0)))
        pre.append("v_xor_b32 %s, %s, %s" % (vr(c2), vr(c2), vr(c1)))
        pre.append("v_add_u32 %s, %s, %s" % (vr(c2), sr(sXT), vr(c2)))
        for i in range(16, 19):
            for t in valu_slot(1, i): e(t)
            e(pre.pop(0)); e(pre.pop(0))
        e(smf(r.ACC[1], r.S + 4, r.V[1] + 8, r.SI))
    e("s_add_u32 %s, %s, 512" % (sr(sW0), sr(sW0)))
    e("s_cmp_lt_u32 %s, %s" % (sr(sW0), sr(sTot)))
    e("s_cbranch_scc1 K2_MORE")
    for q in range(4):
        if q: e("v_xor_b32 %s, %d, %s" % (vr(EA), 16 * q, vr(c2)))
        e("ds_read_b32 %s, %s offset:%d" % (vr(XR + q), vr(EA if q else c2), q * 128))
        e("ds_read_b32 %s, %s offset:%d" % (vr(XR + q + 4), vr(EA if q else c2), q * 128 + 1024))
    e("v_lshlrev_b32 %s, 2, %s" % (vr(c0), vr(c0)))
    e("v_subrev_u32 %s, %s, %s" % (vr(c0), sr(sStart), vr(c0)))
    e("v_lshl_add_u32 %s, %s, 7, %s" % (vr(c0), vr(c0), vr(c1)))
    for q in range(8):
        e("v_add_u32 %s, %d, %s" % (vr(EA + q), (8 * (q >> 2) + (q & 3)) * 128, vr(c0)))
        e("v_and_b32 %s, 0x7ff, %s" % (vr(EA + q), vr(EA + q)))
    e("s_mov_b32 s10, 0x358637bd")
    for f in range(2):
        for q in range(8):
            e("v_add_f32 %s, s10, %s" % (vr(r.ACC[f] + q), vr(r.ACC[f] + q)))
        for q in range(8):
            e("v_rcp_f32 %s, %s" % (vr(r.ACC[f] + q), vr(r.ACC[f] + q)))
    e("s_waitcnt lgkmcnt(0)")
    for q in range(8):
        for f in range(2):
            u = r.U + 8 * f + q
            e("v_fmac_f32 %s, %s, %s" % (vr(u), vr(r.ACC[f] + q), vr(r.ACC[f] + 8 + q)))
            if f == 0: e("v_lshlrev_b32 %s, 16, %s" % (vr(c1), vr(XR + q)))
            else: e("v_and_b32 %s, 0xffff0000, %s" % (vr(c1), vr(XR + q)))
            e("v_max_f32 %s, 0, %s" % (vr(u), vr(u)))
            e("v_add_f32 %s, %s, %s" % (vr(u), vr(c1), vr(u)))
        e("v_cvt_pk_bf16_f32 %s, %s, %s" % (vr(r.U + q), vr(r.U + q), vr(r.U + 8 + q)))
        e("buffer_store_dword %s, %s, %s, 0 offen %s" % (vr(r.U + q), vr(EA + q), sr(SOUT, 4), OSF))
    stamp()
    if STAMP:
        e("s_waitcnt vmcnt(0) lgkmcnt(0)"); e("s_mov_b32 s%d, s63" % (64 + 2 * nstamp[0])); nstamp[0] += 1
    stamp(final=True, wsreg=8, wave=sr(sW), nwaves=8, kid=1, tmpv=10)
    lab("K2_END")
    e("s_endpgm")
    lab("K2_MORE")
    e("s_mov_b32 %s, 0" % sr(sFirst))
    e("s_waitcnt vmcnt(0) lgkmcnt(0)")
    e("s_nop 15")
    e("s_lshl_b32 s10, %s, 2" % sr(sT))
    e("v_and_b32 %s, 28, %s" % (vr(c1), vr(lane)))
    e("v_xor_b32 %s, s10, %s" % (vr(c1), vr(c1)))
    e("v_lshl_add_u32 %s, %s, 15, %s" % (vr(c0), vr(lane), vr(c1)))
    for i in range(4):
        e("buffer_load_dword %s, %s, %s, 0 offen" % (vr(EN + i), vr(c0), sr(SOFS, 4)))
        e("v_add_u32 %s, 8192, %s" % (vr(c0), vr(c0)))
    expand_pre()
    e("s_waitcnt vmcnt(0)")
    e("s_branch K2_EXPAND")
    return r.n

hdr = open('cdna_kernels/%s.s.ref' % NAME).read().split('\n')
hdr = [l for l in hdr if l.startswith(';   offset') or l.startswith('; Kernarg')]
L.append('.amdgcn_target "amdgcn-amd-amdhsa--gfx950"')
L.append('.text')
lds1 = k1()
nv2 = k2()
def kd(name, nv, ns):
    return [".p2align 6", ".amdhsa_kernel %s" % name, "  .amdhsa_next_free_vgpr %d" % nv, "  .amdhsa_next_free_sgpr %d" % ns,
            "  .amdhsa_accum_offset %d" % ((nv + 3) // 4 * 4), "  .amdhsa_group_segment_fixed_size 0", "  .amdhsa_kernarg_size 96",
            "  .amdhsa_user_sgpr_count 2", "  .amdhsa_user_sgpr_kernarg_segment_ptr 1", "  .amdhsa_system_sgpr_workgroup_id_x 1",
            ".end_amdhsa_kernel"]
if XL:
    L.append(".p2align 8"); L.append(".type k0_nop_kernel,@function"); lab("k0_nop_kernel"); e("s_endpgm")
L.append('.section .rodata,"a"')
if XL: L += kd("k0_nop_kernel", 8, 16)
L += kd("k1_sort_kernel", 72, 102 if STAMP else 64)
L += kd("k2_main_kernel", 256, 102 if STAMP else 64)
top = hdr + ["; @launch kernel=k1_sort_kernel grid=(%d,1,1) block=(1024,1,1) lds=%d" % (NC + 1, lds1),
             "; @launch kernel=k2_main_kernel grid=(256,1,1) block=(512,1,1) lds=%d" % K2_LDS]
if XL:
    ln = "; @launch kernel=k0_nop_kernel grid=(256,1,1) block=(64,1,1) lds=0"
    top.insert({'a': len(top) - 2, 'b': len(top) - 1, 'c': len(top)}[XL], ln)
open(OUT, 'w').write("\n".join(top + L) + "\n")
print("vgprs k2:", nv2, "lines:", len(L))
```

```python
import sys, re

NAME = "standalone__edge_featured_mpnn_gatedgcn__graph"
N_NODES = 25000
CH = 3200
NC = 250
TMUL = 5368
WS_REC = 0
WS_OFF = 0xD00000
WS_WFR = 0xF00000
WS_DBG = 0x1000000
NEGLOG2E = 0xBFB8AA3B

opts = dict(a.split('=') for a in sys.argv[1:] if '=' in a)
OUT = opts.get('out', 'cdna_kernels/%s.s' % NAME)
STAMP = int(opts.get('stamp', 0))
PRIO = int(opts.get('prio', 0))
ABL = opts.get('abl', '')
STF = opts.get('stf', 'sc0+sc1').replace('+', ' ')
LDF = opts.get('ldf', 'nt').replace('+', ' ')
PAIR = int(opts.get('pair', 1))
SOLO = int(opts.get('solo', 0))
DW = int(opts.get('dw', 0))
BP = int(opts.get('bp', 1))
LOWS = opts.get('lows', '')
RP = [int(x) for x in opts['rp'].split(',')] if 'rp' in opts else None
PK = int(opts.get('pk', 1))
USEPK = int(opts.get('usepk', 1))
PF = opts.get('pf', '')
OSF = opts.get('osf', '').replace('+', ' ')
XST = int(opts.get('xst', 7))
DLY1 = int(opts.get('dly1', 0)); DLY2 = int(opts.get('dly2', 0)); XL = opts.get('xl', '')

L = []
def e(s): L.append("    " + s)
def lab(s): L.append(s + ":")
def vr(a, n=1): return "v%d" % a if n == 1 else "v[%d:%d]" % (a, a + n - 1)
def sr(a, n=1): return "s%d" % a if n == 1 else "s[%d:%d]" % (a, a + n - 1)

DPPS = ["row_shr:1 row_mask:0xf bank_mask:0xf", "row_shr:2 row_mask:0xf bank_mask:0xf",
        "row_shr:4 row_mask:0xf bank_mask:0xf", "row_shr:8 row_mask:0xf bank_mask:0xf",
        "row_bcast:15 row_mask:0xa bank_mask:0xf", "row_bcast:31 row_mask:0xc bank_mask:0xf"]
def scan64(op, v, fill=()):
    fill = list(fill)
    for m in DPPS:
        n = 0
        while n < 2 and fill:
            e(fill.pop(0)); n += 1
        if n < 2: e("s_nop %d" % (1 - n))
        e("%s_dpp %s, %s, %s %s" % (op, vr(v), vr(v), vr(v), m))
    for f in fill: e(f)

def srd(d, base, nbytes, add=None, stride=0, sub=None):
    if sub is not None:
        e("s_sub_u32 %s, %s, %s" % (sr(d), sr(base), sub))
        e("s_subb_u32 %s, %s, 0" % (sr(d + 1), sr(base + 1)))
        e("s_and_b32 %s, %s, 0xffff" % (sr(d + 1), sr(d + 1)))
    elif add is None:
        e("s_mov_b32 %s, %s" % (sr(d), sr(base)))
        e("s_and_b32 %s, %s, 0xffff" % (sr(d + 1), sr(base + 1)))
    else:
        e("s_add_u32 %s, %s, %s" % (sr(d), sr(base), add))
        e("s_addc_u32 %s, %s, 0" % (sr(d + 1), sr(base + 1)))
        e("s_and_b32 %s, %s, 0xffff" % (sr(d + 1), sr(d + 1)))
    if stride:
        e("s_or_b32 %s, %s, 0x%x" % (sr(d + 1), sr(d + 1), stride << 16))
    e("s_mov_b32 %s, %s" % (sr(d + 2), nbytes if isinstance(nbytes, str) else "0x%x" % nbytes))
    e("s_mov_b32 %s, 0x20000" % sr(d + 3))

nstamp = [0]
def stamp(final=False, wsreg=8, wave=None, nwaves=8, kid=0, tmpv=None):
    if not STAMP: return
    k = nstamp[0]; nstamp[0] += 1
    e("s_memtime s[%d:%d]" % (64 + 2 * k, 65 + 2 * k))
    if k == 0: e("s_memrealtime s[96:97]")
    if not final: return
    e("s_memrealtime s[98:99]")
    e("s_mov_b64 exec, 1")
    e("s_mul_i32 s60, s2, %d" % nwaves); e("s_add_u32 s60, s60, %s" % wave); e("s_lshl_b32 s60, s60, 7")
    e("s_add_u32 s60, s60, 0x%x" % (WS_DBG + kid * 0x80000))
    e("s_add_u32 s60, s60, s%d" % wsreg); e("s_addc_u32 s61, s%d, 0" % (wsreg + 1))
    e("v_mov_b32 v%d, 0" % tmpv)
    e("s_waitcnt lgkmcnt(0)")
    def st(s, off):
        e("v_mov_b32 v%d, %s" % (tmpv + 1, s)); e("global_store_dword v%d, v%d, s[60:61] offset:%d" % (tmpv, tmpv + 1, off))
    for j in range(k + 1): st("s%d" % (64 + 2 * j), 4 * j)
    st("s96", 120); st("s98", 124); st("s92", 104); st("s94", 108)
    if STAMP >= 2:
        e("s_load_dwordx2 s[60:61], s[0:1], 80")
        e("s_waitcnt lgkmcnt(0)")
        if kid == 0:
            e("s_add_u32 s60, s60, 512"); e("s_addc_u32 s61, s61, 0")
        e("s_and_b32 s62, %s, 3" % wave); e("s_cmp_lg_u32 s62, 0"); e("s_cbranch_scc1 DBG_SKIP%d" % kid)
        e("s_lshr_b32 s62, s2, 3"); e("s_xor_b32 s62, s62, s2"); e("s_and_b32 s62, s62, 7"); e("s_cmp_lg_u32 s62, 0"); e("s_cbranch_scc1 DBG_SKIP%d" % kid)
        def am(s, off, neg):
            if neg: e("s_not_b32 s62, %s" % s); s = "s62"
            e("v_mov_b32 v%d, %s" % (tmpv + 1, s)); e("global_atomic_umax v%d, v%d, s[60:61] offset:%d" % (tmpv, tmpv + 1, off))
        if STAMP == 3:
            if kid == 0:
                am("s96", 0, True); am("s96", 4, False); am("s98", 8, False)
                for j in range(1, 8):
                    e("s_sub_u32 s63, s%d, s64" % (64 + 2 * j)); am("s63", 12 + 4 * j, False)
                for j in range(1, 5):
                    e("s_sub_u32 s63, s%d, s64" % (64 + 2 * [0, 1, 2, 4, 7][j])); am("s63", 40 + 4 * j, True)
            else:
                am("s96", 12, True); am("s98", 60, False)
        elif STAMP == 4:
            if kid == 1:
                am("s96", 0, True); am("s96", 4, False); am("s98", 8, False)
                for j in range(1, 14):
                    if j == 12: continue
                    e("s_sub_u32 s63, s%d, s64" % (64 + 2 * j)); am("s63", 8 + 4 * j, False)
        elif kid == 0:
            am("s96", 0, True); am("s96", 4, False); am("s98", 8, False)
            e("s_sub_u32 s62, s66, s64"); am("s62", 44, False)
            e("s_sub_u32 s62, s72, s64"); am("s62", 48, False)
        else:
            am("s96", 12, True); am("s96", 16, False); am("s92", 20, True); am("s92", 24, False); am("s94", 28, True); am("s94", 32, False); am("s98", 36, False)
            e("s_sub_u32 s62, s68, s64"); am("s62", 52, False)
            e("s_sub_u32 s62, s72, s64"); am("s62", 56, False)
            e("s_sub_u32 s62, s76, s64"); am("s62", 60, False)
        lab("DBG_SKIP%d" % kid)
        nstamp[0] = 0
        return
    e("s_getreg_b32 s62, hwreg(HW_REG_HW_ID)"); st("s62", 116)
    e("s_getreg_b32 s62, hwreg(HW_REG_XCC_ID)"); st("s62", 112)
    nstamp[0] = 0

def mark(*modes):
    if DW in modes: e("s_memrealtime s[70:71]")
def spin(tag):
    e("s_waitcnt vmcnt(0) lgkmcnt(0)")
    lab("SPIN%s" % tag)
    e("s_memrealtime s[72:73]"); e("s_waitcnt lgkmcnt(0)")
    e("s_sub_u32 s72, s72, s70"); e("s_cmp_lt_u32 s72, 6000"); e("s_cbranch_scc1 SPIN%s" % tag)

def k1():
    HIST, WTOT, RB = 0, 8192, 8448
    L.append(".p2align 8"); L.append(".type k1_sort_kernel,@function"); lab("k1_sort_kernel")
    e("s_load_dwordx4 s[4:7], s[0:1], 8")
    e("s_load_dwordx2 s[8:9], s[0:1], 24")
    e("s_load_dwordx2 s[10:11], s[0:1], 88")
    e("s_load_dwordx2 s[44:45], s[0:1], 0")
    e("s_cmp_ge_u32 s2, %d" % NC)
    e("s_cbranch_scc1 K1_AUX")
    mark(1, 5)
    stamp()
    e("v_lshlrev_b32 v1, 4, v0")
    e("v_lshlrev_b32 v2, 5, v0")
    e("v_lshlrev_b32 v3, 3, v0")
    e("v_mov_b32 v4, 0"); e("v_mov_b32 v5, 0")
    e("s_mul_i32 s12, s2, %d" % (CH * 4))
    e("s_mul_i32 s13, s2, %d" % (CH * 8))
    e("s_mul_i32 s14, s2, %d" % (CH * 16))
    e("s_lshl_b32 s15, s2, 13")
    e("s_add_u32 s15, s15, 0x%x" % WS_OFF)
    e("ds_write_b64 v3, v[4:5] offset:%d" % HIST)
    e("v_lshrrev_b32 v7, 6, v0")
    e("s_waitcnt lgkmcnt(0)")
    if STAMP == 3: stamp()
    srd(16, 8, CH * 4, "s12")
    e("buffer_load_dwordx4 v[8:11], v1, s[16:19], 0 offen " + LDF)
    srd(20, 6, CH * 4, "s12")
    srd(24, 4, CH * 8, "s13")
    def rest():
        e("buffer_load_dwordx4 v[12:15], v1, s[20:23], 0 offen " + LDF)
        e("buffer_load_dwordx4 v[16:19], v2, s[24:27], 0 offen " + LDF)
        e("buffer_load_dwordx4 v[24:27], v2, s[24:27], 0 offen offset:16 " + LDF)
    if 'd' not in PF: rest()
    srd(28, 10, CH * 16, "s14")
    srd(32, 10, 8192, "s15")
    srd(48, 44, N_NODES * 128)
    e("v_readfirstlane_b32 s38, v7")
    e("v_mov_b32 v6, 1")
    e("v_lshlrev_b32 v40, 2, v7")
    e("v_and_b32 v41, 7, v0")
    e("v_lshlrev_b32 v41, 2, v41")
    e("v_cmp_gt_u32 vcc, %d, v0" % (CH // 4))
    e("s_mov_b64 s[36:37], vcc")
    if 'w' in PF or 'c' in PF:
        e("s_cmp_lg_u32 s38, 15")
        e("s_cbranch_scc1 K1_NOPF")
        e("v_and_b32 v68, 63, v0")
        if 'w' in PF:
            e("v_lshlrev_b32 v69, 12, v68")
            e("buffer_load_dword v70, v69, s[28:31], 0 offen")
            e("buffer_load_dword v70, v69, s[32:35], 0 offen")
        if 'c' in PF:
            e("s_getpc_b64 s[46:47]")
            lab("K1_PC")
            e("v_lshlrev_b32 v69, 7, v68")
            e("global_load_dword v70, v69, s[46:47]")
            e("v_add_u32 v69, 8192, v69")
            e("v_min_u32 v69, K2_END-K1_PC, v69")
            e("global_load_dword v70, v69, s[46:47]")
        lab("K1_NOPF")
    e("s_barrier")
    e("s_mov_b64 exec, s[36:37]")
    e("s_cbranch_execz K1_A")
    e("s_waitcnt vmcnt(%d)" % (0 if 'd' in PF else 3))
    if 'd' in PF: rest()
    stamp()
    for i in range(4):
        e("v_mul_u32_u24 v%d, %d, v%d" % (32 + i, TMUL, 8 + i))
    for i in range(4):
        e("v_lshrrev_b32 v%d, 14, v%d" % (32 + i, 32 + i))
        e("v_and_b32 v%d, 0x1ffc, v%d" % (32 + i, 32 + i))
        e("ds_add_rtn_u32 v%d, v%d, v6 offset:%d" % (36 + i, 32 + i, HIST))
    for i in range(4):
        d, a, b = 8 + i, 44 + i, 48 + i
        e("v_and_b32 v%d, 15, v%d" % (d, d))
        e("v_mul_u32_u24 v52, 11, v%d" % d)
        e("v_lshrrev_b32 v52, 5, v52")
        e("v_mad_i32_i24 v%d, v52, -3, v%d" % (a, d))
        e("v_add_u32 v%d, 1, v%d" % (a, a))
        e("v_lshl_add_u32 v52, v52, 1, 20")
        e("v_lshlrev_b32 v%d, v52, v%d" % (a, a))
        e("v_and_b32 v%d, 3, v%d" % (b, d))
        e("v_add_u32 v%d, 1, v%d" % (b, b))
        e("v_and_b32 v%d, 12, v%d" % (d, d))
        e("v_lshl_add_u32 v%d, v%d, 1, 3" % (d, d))
        e("v_lshlrev_b32 v%d, v%d, v%d" % (b, d, b))
    lab("K1_A")
    e("s_mov_b64 exec, -1")
    e("s_waitcnt lgkmcnt(0)")
    e("s_barrier")
    mark(6)
    stamp()
    e("s_cmp_gt_u32 s38, 7")
    e("s_cbranch_scc1 K1_S1")
    e("ds_read_b128 v[56:59], v1 offset:%d" % HIST)
    e("s_waitcnt lgkmcnt(0)")
    e("v_add_u32 v61, v56, v57")
    e("v_add_u32 v62, v61, v58")
    e("v_add_u32 v42, v62, v59")
    e("v_mov_b32 v43, v42")
    scan64("v_add_u32", 43)
    e("s_mov_b32 exec_lo, 0"); e("s_mov_b32 exec_hi, 0x80000000")
    e("ds_write_b32 v40, v43 offset:%d" % WTOT)
    e("s_mov_b64 exec, -1")
    e("v_sub_u32 v43, v43, v42")
    e("s_waitcnt lgkmcnt(0)")
    lab("K1_S1")
    e("s_barrier")
    e("s_cbranch_scc1 K1_S2")
    e("ds_read_b32 v53, v41 offset:%d" % WTOT)
    e("s_waitcnt lgkmcnt(0)")
    e("v_mov_b32 v54, v53")
    for sh in (1, 2, 4):
        e("s_nop 1")
        e("v_add_u32_dpp v54, v54, v54 row_shr:%d row_mask:0xf bank_mask:0xf" % sh)
    e("v_sub_u32 v54, v54, v53")
    e("s_nop 0")
    e("v_readlane_b32 s39, v54, s38")
    e("s_nop 1")
    e("v_add_u32 v43, s39, v43")
    e("v_add_u32 v60, v43, v56")
    e("v_add_u32 v61, v43, v61")
    e("v_add_u32 v62, v43, v62")
    e("v_lshlrev_b32 v64, 4, v43"); e("v_lshlrev_b32 v65, 4, v60"); e("v_lshlrev_b32 v66, 4, v61"); e("v_lshlrev_b32 v67, 4, v62")
    e("ds_write_b128 v1, v[64:67] offset:%d" % HIST)
    e("v_lshl_or_b32 v56, v56, 16, v43"); e("v_lshl_or_b32 v57, v57, 16, v60")
    e("v_lshl_or_b32 v58, v58, 16, v61"); e("v_lshl_or_b32 v59, v59, 16, v62")
    e("s_bitcmp1_b32 s2, 4"); e("s_cbranch_scc0 K1_R1")
    e("v_swap_b32 v56, v57"); e("v_swap_b32 v58, v59")
    lab("K1_R1")
    e("s_bitcmp1_b32 s2, 5"); e("s_cbranch_scc0 K1_R2")
    e("v_swap_b32 v56, v58"); e("v_swap_b32 v57, v59")
    lab("K1_R2")
    e("s_lshr_b32 s39, s2, 2"); e("s_and_b32 s39, s39, 16")
    e("v_xor_b32 v60, s39, v1")
    e("buffer_store_dwordx4 v[56:59], v60, s[32:35], 0 offen " + STF)
    e("s_waitcnt vmcnt(1) lgkmcnt(0)")
    e("s_branch K1_S3")
    lab("K1_S2")
    e("s_waitcnt vmcnt(0)")
    if 'x' in PF:
        per = 807 * 128
        e("s_lshr_b32 s43, s2, 3"); e("s_mul_i32 s43, s43, %d" % per)
        e("v_and_b32 v68, 511, v0")
        e("v_lshlrev_b32 v68, %d, v68" % XST)
        e("v_add_u32 v68, s43, v68")
        for k in range(2 << (7 - XST)):
            e("buffer_load_dword v70, v68, s[48:51], 0 offen")
            e("v_add_u32 v68, %d, v68" % (512 << XST))
    lab("K1_S3")
    e("s_barrier")
    stamp()
    e("s_mov_b64 exec, s[36:37]")
    e("s_cbranch_execz K1_B")
    for i in range(4):
        e("ds_read_b32 v%d, v%d offset:%d" % (32 + i, 32 + i, HIST))
    e("s_mov_b32 s40, 0x40000")
    e("v_mov_b32 v20, v18"); e("v_mov_b32 v21, v19")
    e("v_mov_b32 v28, v26"); e("v_mov_b32 v29, v27")
    for i in range(4):
        e("v_or3_b32 v%d, v%d, v%d, s40" % (18 + 4 * i, 44 + i, 12 + i))
        e("v_mov_b32 v%d, v%d" % (19 + 4 * i, 48 + i))
    for i in range(4):
        e("s_waitcnt lgkmcnt(3)")
        e("v_lshl_add_u32 v%d, v%d, 4, v%d" % (32 + i, 36 + i, 32 + i))
        e("ds_write_b128 v%d, v[%d:%d] offset:%d" % (32 + i, 16 + 4 * i, 19 + 4 * i, RB))
    lab("K1_B")
    e("s_mov_b64 exec, -1")
    e("s_waitcnt lgkmcnt(0)")
    e("s_barrier")
    mark(7)
    stamp()
    for k in range(3):
        e("ds_read_b128 v[%d:%d], v1 offset:%d" % (8 + 4 * k, 11 + 4 * k, RB + 16384 * k))
    e("s_mov_b32 s40, 16384"); e("s_mov_b32 s41, 32768"); e("s_mov_b32 s42, 49152")
    e("s_cmp_gt_u32 s38, 1")
    e("s_cbranch_scc1 K1_C")
    e("ds_read_b128 v[20:23], v1 offset:%d" % (RB + 49152))
    e("s_waitcnt lgkmcnt(0)")
    e("buffer_store_dwordx4 v[20:23], v1, s[28:31], s42 offen " + STF)
    lab("K1_C")
    e("s_waitcnt lgkmcnt(2)")
    e("buffer_store_dwordx4 v[8:11], v1, s[28:31], 0 offen " + STF)
    e("s_waitcnt lgkmcnt(1)")
    e("buffer_store_dwordx4 v[12:15], v1, s[28:31], s40 offen " + STF)
    e("s_waitcnt lgkmcnt(0)")
    e("buffer_store_dwordx4 v[16:19], v1, s[28:31], s41 offen " + STF)
    stamp()
    if STAMP: e("s_waitcnt vmcnt(0)")
    stamp(final=True, wsreg=10, wave="s38", nwaves=16, kid=0, tmpv=50)
    if DW == 1:
        e("s_cmp_lg_u32 s2, 0"); e("s_cbranch_scc1 K1_DW")
        e("s_cmp_lg_u32 s38, 0"); e("s_cbranch_scc1 K1_DW")
        e("v_mov_b32 v50, 0x%x" % WS_DBG); e("v_mov_b32 v51, s70")
        e("global_store_dword v50, v51, s[10:11]")
        lab("K1_DW")
    if DW in (5, 6, 7): spin("1")
    e("s_endpgm")
    lab("K1_AUX")
    e("s_cmp_gt_u32 s2, %d" % NC)
    e("s_cbranch_scc1 K1_END2")
    e("s_load_dwordx4 s[12:15], s[0:1], 32")
    e("s_load_dwordx2 s[16:17], s[0:1], 48")
    e("s_load_dwordx4 s[20:23], s[0:1], 56")
    e("v_lshrrev_b32 v1, 6, v0")
    e("v_and_b32 v2, 63, v0")
    e("v_readfirstlane_b32 s38, v1")
    e("s_waitcnt lgkmcnt(0)")
    e("s_lshr_b32 s39, s38, 2")
    e("s_and_b32 s40, s38, 3")
    e("s_cmp_eq_u32 s39, 1"); e("s_cselect_b32 s12, s20, s12"); e("s_cselect_b32 s13, s21, s13")
    e("s_cmp_eq_u32 s39, 3"); e("s_cselect_b32 s12, s22, s12"); e("s_cselect_b32 s13, s23, s13")
    e("s_cmp_eq_u32 s39, 2"); e("s_cselect_b32 s12, s14, s12"); e("s_cselect_b32 s13, s15, s13")
    e("s_mov_b32 s42, 0x%x" % NEGLOG2E)
    e("s_bitcmp0_b32 s39, 0")
    e("s_cselect_b32 s41, s42, 1.0")
    srd(24, 12, 8192)
    srd(28, 16, 512)
    srd(32, 10, 32768 + 512, "0x%x" % WS_WFR)
    srd(52, 10, 512 * 16, "0x%x" % (WS_REC + 255 * CH * 16))
    e("v_and_b32 v3, 31, v2")
    e("v_lshlrev_b32 v3, 2, v3")
    e("v_lshrrev_b32 v4, 5, v2")
    e("v_lshl_add_u32 v5, v4, 10, v3")
    e("s_lshl_b32 s43, s40, 11")
    for i in range(8):
        e("buffer_load_dword v%d, v5, s[24:27], s43 offen offset:%d" % (8 + i, i * 128))
    for i in range(4):
        e("buffer_load_dword v%d, v3, s[28:31], 0 offen offset:%d" % (40 + i, i * 128))
    e("v_lshlrev_b32 v6, 4, v0")
    e("v_mov_b32 v48, 0"); e("v_mov_b32 v49, 0"); e("v_mov_b32 v50, 0x4ffff"); e("v_mov_b32 v51, 0")
    e("buffer_store_dwordx4 v[48:51], v6, s[52:55], 0 offen " + STF)
    e("s_waitcnt vmcnt(5)")
    for i in range(8):
        e("v_lshlrev_b32 v%d, 16, v%d" % (16 + i, 8 + i))
        e("v_and_b32 v%d, 0xffff0000, v%d" % (24 + i, 8 + i))
    for i in range(16):
        e("v_mul_f32 v%d, s41, v%d" % (16 + i, 16 + i))
    for i in range(8):
        e("v_cvt_pk_bf16_f32 v%d, v%d, v%d" % (32 + i, 16 + 2 * i, 17 + 2 * i))
    e("v_lshlrev_b32 v7, 4, v2")
    e("s_lshl_b32 s43, s39, 13")
    e("s_lshl_b32 s48, s40, 10")
    e("s_add_u32 s43, s43, s48")
    e("s_add_u32 s48, s43, 4096")
    e("buffer_store_dwordx4 v[32:35], v7, s[32:35], s43 offen " + STF)
    e("buffer_store_dwordx4 v[36:39], v7, s[32:35], s48 offen " + STF)
    e("s_cmp_lg_u32 s38, 0")
    e("s_cbranch_scc1 K1_END2")
    e("s_waitcnt vmcnt(3)")
    for i in range(4):
        e("v_lshlrev_b32 v%d, 16, v%d" % (16 + i, 40 + i))
        e("v_and_b32 v%d, 0xffff0000, v%d" % (20 + i, 40 + i))
    for i in range(8):
        e("v_mul_f32 v%d, s42, v%d" % (16 + i, 16 + i))
    for i in range(4):
        e("v_cvt_pk_bf16_f32 v%d, v%d, v%d" % (44 + i, 16 + 2 * i, 17 + 2 * i))
    e("v_add_u32 v7, 32768, v7")
    e("buffer_store_dwordx4 v[44:47], v7, s[32:35], 0 offen " + STF)
    lab("K1_END2")
    e("s_endpgm")
    return RB + CH * 16

TS, TOTA = 0, 64
RECB = 1024
DUMMY = RECB + 65536
XTB = DUMMY + 1024
XBB = XTB + 16384
K2_LDS = XBB + 65536

class R: pass
def alloc():
    r = R(); p = 0
    def a(n, al=1):
        nonlocal p
        p = (p + al - 1) // al * al
        b = p; p += n
        return b
    r.LANE = a(1); r.SI = a(1)
    r.PS = a(1, 2); r.PC = a(1); r.PT = a(1, 2); r.PE = a(1); r.PL = a(1); r.RI = a(1)
    r.XA0 = a(1); r.XA1 = a(1); r.TI = a(1); r.TMP = a(3)
    r.SO = a(4, 2); r.XI = a(8, 2); r.T = a(4, 2); r.S = a(8, 2); r.ETA = a(8, 2); r.X = a(16, 2)
    r.U = a(16, 2)
    r.ACC = [a(16, 2), a(16, 2)]
    r.G = [a(16, 2), None]; r.V = [a(16, 2), None]
    r.G[1] = a(16, 2); r.V[1] = a(16, 2)
    r.WB = a(32, 2); r.WV = a(32, 2); r.AT = a(16, 2)
    r.WCR = r.ETA
    r.n = p
    return r

def mfma(d, a, b, c):
    return "v_mfma_f32_32x32x16_bf16 %s, %s, %s, %s" % (vr(d, 16), vr(a, 4), vr(b, 4), "0" if c is None else vr(c, 16))
def smf(d, a, b, idx, abid=0):
    return "v_smfmac_f32_32x32x32_bf16 %s, %s, %s, %s%s" % (vr(d, 16), vr(a, 4), vr(b, 8), vr(idx), " abid:1" if abid else "")

SOFF = [0, 64, 256, 320]

def k2():
    r = alloc()
    assert r.n <= 256, r.n
    sW, sT, sStart, sEnd, sTot, sW0, sNG, sXB, sREC, sFirst, sBin, sMag, sRD, sRE, sXT = range(36, 51)
    sINC = 52; sSO = 54
    SX, SXI, SOFS, SRC, SWF, SOUT = 12, 16, 20, 24, 28, 32
    lane = r.LANE
    c0, c1, c2 = r.TMP, r.TMP + 1, r.TMP + 2
    MAG = -(-(1 << 41) // 671)
    for t in range(2049):
        n = t * 8192 + 670
        assert (n * MAG) >> 41 == n // 671
    def tile_range():
        e("s_lshl_b32 s10, %s, 13" % sr(sT)); e("s_add_u32 s10, s10, 670")
        e("s_mul_hi_u32 %s, s10, %s" % (sr(sStart), sr(sMag))); e("s_lshr_b32 %s, %s, 9" % (sr(sStart), sr(sStart)))
        e("s_add_u32 s10, s10, 8192")
        e("s_mul_hi_u32 %s, s10, %s" % (sr(sEnd), sr(sMag))); e("s_lshr_b32 %s, %s, 9" % (sr(sEnd), sr(sEnd)))
    L.append(".p2align 8"); L.append(".type k2_main_kernel,@function"); lab("k2_main_kernel")
    e("s_load_dwordx2 s[8:9], s[0:1], 88")
    e("s_load_dwordx2 s[4:5], s[0:1], 0")
    e("s_load_dwordx2 s[6:7], s[0:1], 72")
    if PK == 2: e("s_load_dwordx2 s[58:59], s[0:1], 8")
    e("s_cmp_gt_u32 s2, 255")
    e("s_cbranch_scc1 K2_END")
    e("s_setprio 3")
    mark(2)
    stamp()
    t0, t1, t2, t3, t4, t5, t6 = [r.G[0] + i for i in range(7)]
    t7 = r.TI
    e("v_lshrrev_b32 %s, 6, v0" % vr(t0))
    e("v_and_b32 %s, 63, v0" % vr(lane))
    e("v_readfirstlane_b32 %s, %s" % (sr(sW), vr(t0)))
    e("s_and_b32 s10, s2, 7"); e("s_lshl_b32 s10, s10, 5"); e("s_lshr_b32 s11, s2, 3"); e("s_add_u32 %s, s10, s11" % sr(sBin))
    e("v_lshrrev_b32 %s, 1, %s" % (vr(t0), vr(lane)))
    e("v_lshlrev_b32 %s, 15, %s" % (vr(t0), vr(t0)))
    e("v_and_b32 %s, 1, %s" % (vr(t1), vr(lane)))
    e("v_lshl_or_b32 %s, %s, 4, %s" % (vr(t0), vr(t1), vr(t0)))
    e("s_lshr_b32 s11, %s, 2" % sr(sW)); e("s_lshl_b32 s11, s11, 20")
    e("s_and_b32 s10, %s, 3" % sr(sW)); e("s_lshl_b32 s10, s10, 13"); e("s_add_u32 s11, s11, s10")
    e("s_lshl_b32 s10, %s, 5" % sr(sBin)); e("s_add_u32 s11, s11, s10")
    e("v_add_u32 %s, s11, %s" % (vr(t0), vr(t0)))
    e("s_lshl_b32 %s, %s, 13" % (sr(sREC), sr(sW)))
    e("s_add_u32 %s, %s, %d" % (sr(sXB), sr(sREC), XBB))
    e("s_add_u32 %s, %s, %d" % (sr(sREC), sr(sREC), RECB))
    e("s_add_u32 m0, %s, 3072" % sr(sXB))
    e("s_lshl_b32 %s, %s, 3" % (sr(sT), sr(sBin))); e("s_add_u32 %s, %s, %s" % (sr(sT), sr(sT), sr(sW)))
    e("s_mov_b32 %s, 0x%x" % (sr(sMag), MAG))
    tile_range()
    e("v_lshlrev_b32 %s, 4, %s" % (vr(t1), vr(lane)))
    e("v_lshrrev_b32 %s, 3, %s" % (vr(t2), vr(lane)))
    e("v_xor_b32 %s, %s, %s" % (vr(t3), vr(t2), vr(lane)))
    e("v_and_b32 %s, 7, %s" % (vr(t3), vr(t3)))
    e("v_lshlrev_b32 %s, 4, %s" % (vr(t3), vr(t3)))
    e("v_subrev_u32 %s, %s, %s" % (vr(t2), sr(sStart), vr(t2)))
    e("v_and_b32 %s, 15, %s" % (vr(t2), vr(t2)))
    e("v_xor_b32 %s, 8, %s" % (vr(t4), vr(t2)))
    e("v_add_u32 %s, %s, %s" % (vr(t2), sr(sStart), vr(t2)))
    e("v_add_u32 %s, %s, %s" % (vr(t4), sr(sStart), vr(t4)))
    e("v_lshl_add_u32 %s, %s, 7, %s" % (vr(t2), vr(t2), vr(t3)))
    e("v_lshl_add_u32 %s, %s, 7, %s" % (vr(t4), vr(t4), vr(t3)))
    e("s_waitcnt lgkmcnt(0)")
    srd(SOFS, 8, NC * 8192, "0x%x" % WS_OFF)
    e("buffer_load_dwordx4 %s, %s, 0 offen lds" % (vr(t0), sr(SOFS, 4)))
    e("s_add_u32 m0, %s, 4096" % sr(sXB))
    srd(SWF, 8, 32768 + 512, "0x%x" % WS_WFR)
    e("s_lshl_b32 s10, %s, 12" % sr(sW))
    for k in range(4):
        e("buffer_load_dwordx4 %s, %s, s10 offen offset:%d lds" % (vr(t1), sr(SWF, 4), k * 1024))
    e("s_lshl_b32 s10, %s, 11" % sr(sW))
    e("s_add_u32 m0, s10, %d" % XTB)
    srd(SX, 4, N_NODES * 128)
    e("buffer_load_dwordx4 %s, %s, 0 offen lds" % (vr(t2), sr(SX, 4)))
    e("s_add_u32 m0, s10, %d" % (XTB + 1024))
    e("v_add_u32 %s, 32768, %s" % (vr(t5), vr(t1)))
    e("buffer_load_dwordx4 %s, %s, 0 offen lds" % (vr(t4), sr(SX, 4)))
    WC = r.WCR
    e("buffer_load_dwordx4 %s, %s, %s, 0 offen" % (vr(WC, 4), vr(t5), sr(SWF, 4)))
    NPF = 0
    if 'y' in PF:
        e("s_lshr_b32 s10, s2, 3"); e("s_mul_i32 s10, s10, %d" % (782 * 128))
        e("s_mul_i32 s11, %s, %d" % (sr(sW), 98 * 128)); e("s_add_u32 s10, s10, s11")
        e("v_lshl_add_u32 %s, %s, %d, s10" % (vr(t6), vr(lane), XST))
        NPF = 2 if XST == 7 else 3
        for k in range(NPF):
            if XST == 7 and k == 1: e("s_mov_b64 exec, 0x3ffffffff" if False else "s_mov_b32 exec_hi, 3")
            e("buffer_load_dword %s, %s, %s, 0 offen" % (vr(t7), vr(t6), sr(SX, 4)))
            e("v_add_u32 %s, %d, %s" % (vr(t6), 64 << XST, vr(t6)))
        e("s_mov_b64 exec, -1")
    if PK == 2: srd(SXI, 58, N_NODES, stride=int(opts.get('tstride', 256)), sub="3072")
    else: srd(SXI, 4, N_NODES, stride=128, sub="3072")
    srd(SRC, 8, 256 * CH, stride=16)
    e("s_mov_b32 %s, 1024" % sr(sINC)); e("s_mov_b32 %s, 1024" % sr(sINC + 1))
    e("s_mov_b32 %s, 3072" % sr(sSO)); e("s_mov_b32 %s, 2048" % sr(sSO + 1)); e("s_mov_b32 %s, 1024" % sr(sSO + 2))
    H = t3
    e("v_lshrrev_b32 %s, 5, %s" % (vr(H), vr(lane)))
    e("v_mov_b32 %s, 0x%x" % (vr(t4), (1 << 4) | (2 << 8) | (1 << 14) | (2 << 18)))
    e("v_lshlrev_b32 %s, 1, %s" % (vr(t5), vr(lane)))
    e("v_bfe_u32 %s, %s, %s, 2" % (vr(t4), vr(t4), vr(t5)))
    e("v_mul_u32_u24 %s, 0x8001, %s" % (vr(t4), vr(t4)))
    e("v_and_b32 %s, 0x10001, %s" % (vr(t4), vr(t4)))
    e("v_mul_u32_u24 %s, 0x3f80, %s" % (vr(t4), vr(t4)))
    e("v_lshlrev_b32 %s, 2, %s" % (vr(t5), vr(lane)))
    e("s_mov_b64 exec, 0x3ff")
    e("ds_write_b32 %s, %s offset:%d" % (vr(t5), vr(t4), TS))
    e("s_mov_b64 exec, -1")
    e("v_and_b32 %s, 3, %s" % (vr(c0), vr(lane)))
    e("v_bfe_u32 %s, %s, 4, 1" % (vr(c1), vr(lane)))
    e("v_mul_u32_u24 %s, 0x5555, %s" % (vr(r.SI), vr(c1)))
    e("v_or_b32 %s, 0x8888, %s" % (vr(r.SI), vr(r.SI)))
    e("v_xor_b32 %s, %s, %s" % (vr(c2), vr(c0), vr(H)))
    e("v_lshl_or_b32 %s, %s, 2, %s" % (vr(c2), vr(c1), vr(c2)))
    e("v_lshlrev_b32 %s, 4, %s" % (vr(r.XI + 1), vr(c2)))
    e("v_mov_b32 %s, %s" % (vr(r.XI + 3), vr(r.XI + 1)))
    e("v_xor_b32 %s, 32, %s" % (vr(r.XI + 5), vr(r.XI + 1)))
    e("v_mov_b32 %s, %s" % (vr(r.XI + 7), vr(r.XI + 5)))
    e("v_bfe_u32 %s, %s, 3, 2" % (vr(c2), vr(lane)))
    e("v_xor_b32 %s, %s, %s" % (vr(c2), vr(c2), vr(H)))
    e("v_lshlrev_b32 %s, 4, %s" % (vr(r.XA0), vr(c2)))
    e("v_lshl_or_b32 %s, %s, 6, %s" % (vr(r.XA0), vr(c0), vr(r.XA0)))
    e("v_bfe_u32 %s, %s, 3, 1" % (vr(c2), vr(lane)))
    e("v_lshl_or_b32 %s, %s, 9, %s" % (vr(r.XA0), vr(c2), vr(r.XA0)))
    e("v_bfe_u32 %s, %s, 2, 1" % (vr(t4), vr(lane)))
    e("v_lshl_or_b32 %s, %s, 10, %s" % (vr(r.XA0), vr(t4), vr(r.XA0)))
    e("v_lshl_or_b32 %s, %s, 11, %s" % (vr(r.XA0), vr(c1), vr(r.XA0)))
    e("v_xor_b32 %s, 32, %s" % (vr(r.XA1), vr(r.XA0)))
    e("v_add_u32 %s, %s, %s" % (vr(r.XA0), sr(sXB), vr(r.XA0)))
    e("v_add_u32 %s, %s, %s" % (vr(r.XA1), sr(sXB), vr(r.XA1)))
    FA, FU = r.SO + 2, r.SO + 3
    e("v_lshl_or_b32 %s, %s, 1, %s" % (vr(c2), vr(t4), vr(c2)))
    e("v_lshl_or_b32 %s, %s, 1, %s" % (vr(c2), vr(c2), vr(c1)))
    e("v_mad_u32_u24 %s, %s, 3, %s" % (vr(c2), vr(c2), vr(c0)))
    e("v_add_u32 %s, 9, %s" % (vr(c2), vr(c2)))
    e("v_and_b32 %s, 15, %s" % (vr(c2), vr(c2)))
    for dst, src in ((FA, c2), (FU, None)):
        if src is None:
            e("v_and_b32 %s, 15, %s" % (vr(c2), vr(lane)))
        e("v_xor_b32 %s, %s, %s" % (vr(t4), vr(c2), vr(H)))
        e("v_and_b32 %s, 7, %s" % (vr(t4), vr(t4)))
        e("v_lshlrev_b32 %s, 4, %s" % (vr(t4), vr(t4)))
        e("v_lshl_or_b32 %s, %s, 7, %s" % (vr(dst), vr(c2), vr(t4)))
    e("v_lshlrev_b32 %s, 4, %s" % (vr(t4), vr(H)))
    e("v_mov_b32 %s, 0x3f80" % vr(t5))
    e("v_lshlrev_b32 %s, %s, %s" % (vr(r.T + 1), vr(t4), vr(t5)))
    e("v_mov_b32 %s, %s" % (vr(r.T + 2), vr(r.T + 1)))
    e("v_mov_b32 %s, %s" % (vr(r.T + 3), vr(r.T + 1)))
    EN = r.G[1]
    e("v_and_b32 %s, 31, %s" % (vr(t5), vr(lane)))
    e("v_lshlrev_b32 %s, 5, %s" % (vr(t5), vr(t5)))
    e("v_lshl_or_b32 %s, %s, 15, %s" % (vr(t5), vr(H), vr(t5)))
    e("s_lshl_b32 s10, %s, 2" % sr(sW))
    e("v_xor_b32 %s, s10, %s" % (vr(t4), vr(lane)))
    e("v_and_or_b32 %s, %s, 28, %s" % (vr(t5), vr(t4), vr(t5)))
    e("v_add_u32 %s, %d, %s" % (vr(t5), XBB + 3072, vr(t5)))
    e("s_mov_b32 %s, 0" % sr(sW0))
    e("s_mov_b32 %s, 1" % sr(sFirst))
    Z = r.G[1] + 4; LA = r.G[1] + 8; WA_ = r.G[1] + 9
    P = r.V[1]; D = r.V[1] + 4
    TOT = r.V[1] + 8; INC = r.V[1] + 9; CB = r.V[1] + 10; PREV = r.V[1] + 11; JB = r.V[1] + 12; C512 = r.V[1] + 13
    M = r.S
    LOFF = 8192 - 2048 - 16
    def expand_pre():
        for i in range(4): e("v_mov_b32 %s, 0" % vr(Z + i))
        e("v_lshl_add_u32 %s, %s, 5, %s" % (vr(LA), vr(lane), sr(sREC)))
        e("ds_write_b128 %s, %s offset:%d" % (vr(LA), vr(Z, 4), LOFF))
        e("ds_write_b128 %s, %s offset:%d" % (vr(LA), vr(Z, 4), LOFF + 16))
        e("v_mul_u32_u24 %s, %d, %s" % (vr(CB), 4 * CH, vr(lane)))
        e("v_subrev_u32 %s, %s, %s" % (vr(CB), sr(sW0), vr(CB)))
        e("v_lshl_add_u32 %s, %s, 3, %s" % (vr(JB), vr(lane), sr(sW0)))
        e("v_mov_b32 %s, 512" % vr(C512))
        e("v_mov_b32 %s, 0" % vr(PREV))
        e("v_lshl_add_u32 %s, %s, 2, %s" % (vr(r.PL), vr(lane), sr(sREC)))
        e("s_lshl_b32 s11, %s, 2" % sr(sW))
        e("v_mov_b32 %s, s11" % vr(WA_))
    expand_pre()
    stamp()
    e("s_waitcnt vmcnt(%d) lgkmcnt(0)" % (7 + NPF))
    e("s_barrier")
    stamp()
    mark(4)
    for i in range(4):
        e("ds_read_b32 %s, %s offset:%d" % (vr(EN + i), vr(t5), i * 8192))
    e("s_waitcnt lgkmcnt(0)")
    def xidx(g, t):
        return "ds_read_u16 %s, %s offset:%d" % (vr(r.XI + 2 * t), vr(r.PS), g * 512 + SOFF[t] + 8)
    def xm0(buf):
        return "s_add_u32 m0, %s, %d" % (sr(sXB), buf * 4096)
    def xdma(t):
        return "buffer_load_dwordx4 %s, %s, %s idxen offen offset:%d lds" % (vr(r.XI + 2 * t, 2), sr(SXI, 4), sr(sSO + t) if t < 3 else "0", t * 1024)
    def xread(buf, k):
        return "ds_read_b128 %s, %s offset:%d" % (vr(r.X + 4 * k, 4), vr(r.XA1 if k & 1 else r.XA0), buf * 4096 + (k >> 1) * 256)
    def t0read(g): return "ds_read_b32 %s, %s offset:%d" % (vr(r.T), vr(r.PE), g * 512)
    def tiread(g): return "ds_read_b32 %s, %s offset:%d" % (vr(r.TI), vr(r.PT), g * 512 + 8)
    def soread(g, t): return "ds_read_u8 %s, %s offset:%d" % (vr(r.SO + t), vr(r.PC), g * 512 + SOFF[t] + 12)
    def trread(t): return "ds_read_b64_tr_b16 %s, %s offset:%d" % (vr(r.S + 2 * t, 2), vr(r.SO + t), TS)
    def riread(blk): return "ds_read_b32 %s, %s offset:%d" % (vr(r.RI), vr(r.PL), LOFF + blk * 256)
    rdma = "buffer_load_dwordx4 %s, %s, 0 idxen lds" % (vr(r.RI), sr(SRC, 4))
    lab("K2_EXPAND")
    sd = "dst_sel:DWORD dst_unused:UNUSED_PAD src0_sel:WORD_%d src1_sel:DWORD"
    e("v_lshrrev_b32 %s, 16, %s" % (vr(P + 1), vr(EN)))
    e("v_add_u32_sdwa %s, %s, %s %s" % (vr(P + 2), vr(EN + 1), vr(P + 1), sd % 1))
    e("v_add_u32_sdwa %s, %s, %s %s" % (vr(P + 3), vr(EN + 2), vr(P + 2), sd % 1))
    e("v_add_u32_sdwa %s, %s, %s %s" % (vr(INC), vr(EN + 3), vr(P + 3), sd % 1))
    fill = ["v_add_u32 %s, %s, %s" % (vr(TOT), sr(sW0), vr(INC))]
    fill += ["v_add_u32_sdwa %s, %s, %s %s" % (vr(D + i), vr(EN + i), vr(CB), sd % 0) for i in range(4)]
    fill += ["v_add_u32 %s, %d, %s" % (vr(D + i), i * CH, vr(D + i)) for i in range(1, 4)]
    fill += ["v_sub_u32 %s, %s, %s" % (vr(P + i), vr(P + i), vr(TOT)) for i in range(1, 4)]
    scan64("v_add_u32", INC, fill)
    e("v_sub_u32 %s, %s, %s" % (vr(P), vr(INC), vr(TOT)))
    e("v_readlane_b32 %s, %s, 63" % (sr(sTot), vr(INC)))
    for i in range(1, 4):
        e("v_add_u32 %s, %s, %s" % (vr(P + i), vr(INC), vr(P + i)))
    for i in range(4):
        e("v_sub_u32 %s, %s, %s" % (vr(D + i), vr(D + i), vr(P + i)))
        e("v_med3_i32 %s, %s, 0, %s" % (vr(P + i), vr(P + i), vr(C512)))
        e("v_lshl_add_u32 %s, %s, 2, %s" % (vr(P + i), vr(P + i), sr(sREC)))
    for i in range(4):
        e("ds_max_u32 %s, %s offset:%d" % (vr(P + i), vr(D + i), LOFF))
    e("ds_read_b128 %s, %s offset:%d" % (vr(M, 4), vr(LA), LOFF))
    e("ds_read_b128 %s, %s offset:%d" % (vr(M + 4, 4), vr(LA), LOFF + 16))
    e("s_lshl_b32 s10, %s, 3" % sr(sTot)); e("s_or_b32 s10, s10, %s" % sr(sW))
    e("v_mov_b32 %s, s10" % vr(TOT))
    e("s_mov_b64 exec, 1")
    e("ds_write_b32 %s, %s offset:%d" % (vr(WA_), vr(TOT), TOTA))
    e("s_mov_b64 exec, -1")
    e("s_waitcnt lgkmcnt(1)")
    e("v_max3_u32 %s, %s, %s, %s" % (vr(INC), vr(M), vr(M + 1), vr(M + 2)))
    e("v_max3_u32 %s, %s, %s, %s" % (vr(INC), vr(INC), vr(M + 3), vr(M + 4)))
    e("v_max3_u32 %s, %s, %s, %s" % (vr(INC), vr(INC), vr(M + 5), vr(M + 6)))
    e("v_max_u32 %s, %s, %s" % (vr(INC), vr(INC), vr(M + 7)))
    fill = ["v_max_u32 %s, %s, %s" % (vr(M + k), vr(M + k - 1), vr(M + k)) for k in range(1, 8)]
    scan64("v_max_u32", INC, fill)
    e("s_mov_b32 m0, %s" % sr(sREC))
    e("s_nop 0")
    e("v_mov_b32_dpp %s, %s wave_shr:1 row_mask:0xf bank_mask:0xf" % (vr(PREV), vr(INC)))
    for k in range(8):
        e("v_max_u32 %s, %s, %s" % (vr(M + k), vr(PREV), vr(M + k)))
        e("v_add3_u32 %s, %s, %s, %d" % (vr(M + k), vr(M + k), vr(JB), k))
    e("ds_write_b128 %s, %s offset:%d" % (vr(LA), vr(M, 4), LOFF))
    e("ds_write_b128 %s, %s offset:%d" % (vr(LA), vr(M + 4, 4), LOFF + 16))
    e("ds_read_b32 %s, %s offset:%d" % (vr(Z), vr(r.PL), LOFF))
    e("ds_read_b32 %s, %s offset:%d" % (vr(Z + 1), vr(r.PL), LOFF + 256))
    e("v_lshrrev_b32 %s, 3, %s" % (vr(c0), vr(lane)))
    e("v_lshlrev_b32 %s, 2, %s" % (vr(c0), vr(c0)))
    e("v_and_b32 %s, 7, %s" % (vr(c1), vr(lane)))
    e("v_lshlrev_b32 %s, 3, %s" % (vr(r.RI), vr(c1)))
    e("v_lshlrev_b32 %s, 2, %s" % (vr(c1), vr(c1)))
    e("v_lshlrev_b32 %s, 4, %s" % (vr(c2), vr(lane)))
    e("v_add_u32 %s, %d, %s" % (vr(c2), XBB + 4096, vr(c2)))
    e("s_waitcnt lgkmcnt(1)")
    e("buffer_load_dwordx4 %s, %s, 0 idxen lds" % (vr(Z), sr(SRC, 4)))
    e("s_add_u32 m0, %s, 1024" % sr(sREC))
    e("s_waitcnt lgkmcnt(0)")
    e("buffer_load_dwordx4 %s, %s, 0 idxen lds" % (vr(Z + 1), sr(SRC, 4)))
    for i in range(4): e("v_mov_b32 %s, 0" % vr(r.S + 4 + i))
    e("s_cmp_eq_u32 %s, 0" % sr(sFirst))
    e("s_cbranch_scc1 K2_NOW")
    stamp()
    e("s_sub_u32 s10, 7, %s" % sr(sW)); e("s_sub_u32 s11, %s, 4" % sr(sW))
    e("s_cmp_lt_u32 %s, 4" % sr(sW)); e("s_cselect_b32 s11, s10, s11")
    e("s_waitcnt vmcnt(%d)" % (2 + NPF))
    e("s_barrier")
    stamp()
    e("ds_read_b32 %s, %s offset:%d" % (vr(c0), vr(c0), TOTA))
    e("ds_read_b32 %s, %s offset:%d" % (vr(c1), vr(c1), TOTA))
    WA = r.G[0]; WU = r.G[1]
    assert r.V[0] == r.G[0] + 16 and r.V[1] == r.G[1] + 16 and r.ACC[0] == r.U + 16
    wr = []
    for m, base in enumerate([WA, WU, r.WB, r.WV]):
        for u in range(8):
            uu = m * 8 + u
            wr.append("ds_read_b128 %s, %s offset:%d" % (vr(base + 4 * u, 4), vr(c2), (uu >> 2) * 8192 + (uu & 3) * 1024))
    for s in wr[8:12]: e(s)
    e("s_waitcnt lgkmcnt(4)")
    if PAIR:
        e("v_cmp_lt_u32 vcc, %s, %s" % (vr(c1), vr(c0)))
        e(wr[12]); e(wr[13])
        e("v_lshrrev_b64 %s, %s, vcc" % (vr(r.SO, 2), vr(r.RI)))
        e("v_and_b32 %s, 0xff, %s" % (vr(r.SO), vr(r.SO)))
        e("v_bcnt_u32_b32 %s, %s, 0" % (vr(r.SO), vr(r.SO)))
        e("v_cmp_eq_u32 vcc, s11, %s" % vr(r.SO))
        e("s_ff1_i32_b64 s10, vcc")
        e("v_readlane_b32 %s, %s, s10" % (sr(sTot), vr(c1)))
    else:
        for s in wr[12:14]: e(s)
        e("s_mov_b32 s10, %s" % sr(sW))
    e("s_lshl_b32 %s, s10, 11" % sr(sXT)); e("s_add_u32 %s, %s, %d" % (sr(sXT), sr(sXT), XTB))
    def xtile(mapreg, dst):
        e("v_add_u32 %s, %s, %s" % (vr(mapreg), sr(sXT), vr(mapreg)))
        tm = [mapreg, c0, c1, r.SO]
        for s in range(1, 4): e("v_xor_b32 %s, %d, %s" % (vr(tm[s]), 32 * s, vr(mapreg)))
        for s in range(4): e("ds_read_b128 %s, %s" % (vr(dst + 4 * s, 4), vr(tm[s])))
    xtile(FU, r.AT)
    e(wr[14]); e(wr[15])
    xtile(FA, r.X)
    for s in wr[0:8]: e(s)
    if PAIR: e("s_lshr_b32 %s, %s, 3" % (sr(sTot), sr(sTot)))
    e("s_lshl_b32 %s, s10, 13" % sr(sREC)); e("s_add_u32 %s, %s, %d" % (sr(sREC), sr(sREC), RECB))
    e("s_lshl_b32 %s, %s, 3" % (sr(sT), sr(sBin))); e("s_add_u32 %s, %s, s10" % (sr(sT), sr(sT)))
    e("v_lshl_add_u32 %s, %s, 2, %s" % (vr(r.PL), vr(lane), sr(sREC)))
    lab("K2_NOW")
    e("v_bfe_u32 %s, %s, 2, 2" % (vr(c0), vr(lane)))
    e("v_lshrrev_b32 %s, 5, %s" % (vr(c1), vr(lane)))
    e("v_lshl_or_b32 %s, %s, 3, %s" % (vr(c0), vr(c1), vr(c0)))
    e("v_lshl_add_u32 %s, %s, 4, %s" % (vr(r.PS), vr(c0), sr(sREC)))
    e("v_and_b32 %s, 3, %s" % (vr(c0), vr(lane)))
    e("v_add_u32 %s, %s, %s" % (vr(r.PC), vr(c0), vr(r.PS)))
    e("v_and_b32 %s, 31, %s" % (vr(c0), vr(lane)))
    e("v_lshl_add_u32 %s, %s, 4, %s" % (vr(r.PT), vr(c0), sr(sREC)))
    e("v_lshl_add_u32 %s, %s, 2, %s" % (vr(r.PE), vr(c1), vr(r.PT)))
    e("s_sub_u32 s10, %s, %s" % (sr(sTot), sr(sW0)))
    e("s_min_u32 s10, s10, 512")
    e("s_add_u32 s10, s10, 31"); e("s_lshr_b32 s10, s10, 5")
    e("s_max_u32 s10, s10, 1")
    e("s_sub_u32 %s, s10, 1" % sr(sNG))
    e("s_add_u32 %s, %s, 3072" % (sr(sRD), sr(sREC)))
    e("s_add_u32 %s, %s, 8192" % (sr(sRE), sr(sREC)))
    e("s_mov_b32 m0, %s" % sr(sXB))
    stamp()
    e("s_waitcnt vmcnt(0)")
    e("s_cmp_eq_u32 %s, 0" % sr(sFirst))
    e("s_cbranch_scc1 K2_NOB")
    e("s_barrier")
    lab("K2_NOB")
    stamp()
    for t in range(4): e(xidx(0, t))
    e("s_waitcnt lgkmcnt(0)")
    for t in range(4): e(xdma(t))
    if not PK:
        for t in range(4): e(soread(0, t))
    e(riread(2))
    for t in range(4): e(xidx(1, t))
    e(t0read(0)); e(tiread(0))
    stamp()
    e("s_cbranch_scc1 K2_NOW2")
    rest = wr[16:]
    for f in range(2):
        for s in range(4):
            e(mfma(r.U + 8 * f, r.AT + 4 * s, WU + 16 * f + 4 * s, None if s == 0 else r.U + 8 * f))
            e(rest.pop(0))
    for f in range(2):
        for s in range(4):
            e(mfma(r.ACC[f], r.X + 4 * s, WA + 16 * f + 4 * s, None if s == 0 else r.ACC[f]))
            e(rest.pop(0))
    assert not rest
    tile_range()
    e("s_min_u32 %s, %s, %d" % (sr(sEnd), sr(sEnd), N_NODES))
    e("s_sub_u32 s10, %s, %s" % (sr(sEnd), sr(sStart))); e("s_lshl_b32 s10, s10, 7")
    e("s_lshl_b32 s11, %s, 7" % sr(sStart))
    srd(SOUT, 6, "s10", "s11")
    for f in range(2):
        for i in range(8):
            e("v_cvt_pk_bf16_f32 %s, %s, %s" % (vr(r.AT + 8 * f + i), vr(r.ACC[f] + 2 * i) if i & 1 else "0", vr(r.ACC[f] + 2 * i + 1)))
        e(mfma(r.ACC[f], r.S + 4, r.S + 4, None))
    e("s_mov_b32 exec_hi, 0")
    for f in range(2):
        e("v_mov_b32 %s, %s" % (vr(r.AT + 8 * f), vr(WC + 2 * f)))
        e("v_mov_b32 %s, %s" % (vr(r.AT + 8 * f + 4), vr(WC + 2 * f + 1)))
    e("s_mov_b64 exec, -1")
    e("s_waitcnt lgkmcnt(0)")
    e("s_barrier")
    lab("K2_NOW2")
    e(xm0(1))
    e("s_waitcnt lgkmcnt(0)")
    for t in range(4): e(xdma(t))
    def I(text, lds=None, need=()):
        return dict(text=text, lds=lds, need=list(need))
    def emit_loop(body):
        if RP:
            nm = sum('mfma' in it['text'] for it in body) // 2
            nb_ = []; k = 0
            for it in body:
                nb_.append(it)
                if 'mfma' in it['text']:
                    for idx, pr in ((RP[0], 0), (RP[1], 2)):
                        if k % nm == idx:
                            nb_.append(I("s_cbranch_vccz 1")); nb_.append(I("s_setprio %d" % pr))
                    k += 1
            body = nb_
            e("s_cmp_lt_u32 %s, 4" % sr(sW)); e("s_cselect_b64 vcc, -1, 0"); e("s_setprio 1")
        issued = []; done = 0
        for pas in range(2):
            if pas == 1:
                if SOLO:
                    e("s_cmp_gt_u32 %s, 3" % sr(sW)); e("s_cbranch_scc1 K2_DRAIN")
                mark(3)
                if DW == 3: e("s_waitcnt lgkmcnt(0)")
                lab("K2_LOOP")
            for it in body:
                n = None
                for tag in it['need']:
                    idxs = [k for k, t in enumerate(issued) if t == tag]
                    if not idxs: continue
                    k = idxs[-1]
                    if k >= done:
                        n = len(issued) - 1 - k
                        done = k + 1
                tx = it['text']
                if n is not None:
                    assert n <= 15
                    if tx.startswith("s_waitcnt"): tx += " lgkmcnt(%d)" % n
                    elif pas == 1: e("s_waitcnt lgkmcnt(%d)" % n)
                if pas == 1:
                    if ABL == 'nomfma' and 'mfma' in tx: tx = "s_nop 0"
                    if ABL == 'nogather' and tx.startswith('buffer_load'): tx = "s_nop 0"
                    if ABL == 'nolds' and (tx.startswith('ds_read') or tx.startswith('buffer_load') or tx.startswith('s_waitcnt')): tx = "s_waitcnt"
                    if ABL == 'nowait' and tx.startswith('s_waitcnt vmcnt'): tx = re.sub(r"vmcnt\(\d+\)", "vmcnt(40)", tx)
                    if ABL == 'halfvm' and tx.startswith('buffer_load') and re.search(r", s(28|29|30|31) idxen", tx): tx = "s_waitcnt"
                    if ABL == 'novm' and tx.startswith('buffer_load'): tx = "s_waitcnt"
                    if ABL == 'nosm' and 'smfmac' in tx: tx = "s_nop 0"
                    if ABL == 'nodense' and tx.startswith('v_mfma'): tx = "s_nop 0"
                    if ABL == 'noaux' and tx.startswith('ds_read') and 'b128' not in tx: tx = "s_nop 0"
                    if ABL == 'nocvt' and tx.startswith('v_cvt'): tx = "s_nop 0"
                    if ABL == 'noam' and (tx.startswith('v_add_f32') or tx.startswith('v_mul_f32')): tx = "s_nop 0"
                    if ABL == 'nov' and tx.startswith('v_mfma') and (tx.split(',')[0].endswith(vr(r.V[0], 16)) or tx.split(',')[0].endswith(vr(r.V[1], 16))): tx = "s_nop 0"
                    if tx != "s_waitcnt": e(tx)
                if it['lds']: issued.append(it['lds'])
    XR = r.X; EA = r.X + 8
    pre = []
    pre.append("v_lshrrev_b32 %s, 5, %s" % (vr(c0), vr(lane)))
    pre.append("v_and_b32 %s, 31, %s" % (vr(c1), vr(lane)))
    pre.append("v_lshlrev_b32 %s, 2, %s" % (vr(c1), vr(c1)))
    pre.append("v_mul_u32_u24 %s, 0x240, %s" % (vr(c2), vr(c0)))
    pre.append("v_xor_b32 %s, %s, %s" % (vr(c2), vr(c2), vr(c1)))
    pre.append("v_add_u32 %s, %s, %s" % (vr(c2), sr(sXT), vr(c2)))
    if PK:
        assert r.ETA == r.S + 8
        e("s_add_u32 m0, %s, 2048" % sr(sREC))
        for t in range(4): e(xidx(2, t))
        e(rdma)
        e(riread(3))
        for i in range(4): e("v_mov_b32 %s, 0" % vr(r.SO + i))
        e(mfma(r.V[0], r.S + 4, r.S + 4, None))
        e(mfma(r.V[1], r.S + 4, r.S + 4, None))
        e(mfma(r.G[1], r.S + 4, r.S + 4, None).replace(", 0", ", 1.0"))
        e(mfma(r.S, r.SO, r.SO, None))
        e("s_waitcnt vmcnt(5)")
        stamp()
        for k in range(4): e(xread(0, k))
        e(xm0(0))
        for s_ in range(4):
            e("s_waitcnt lgkmcnt(%d)" % (3 - s_))
            e(mfma(r.G[0], r.X + 4 * s_, r.WB + 4 * s_, None if s_ == 0 else r.G[0]))
        e(xdma(0))
        e(smf(r.G[0], r.T, r.AT, r.TI, 1))
        e(xdma(1))
        e("s_setprio %d" % (1 if PRIO else 0))
        e("s_nop 7")
        stamp()
        if STAMP: e("s_memrealtime s[92:93]"); e("s_waitcnt lgkmcnt(0)"); e("s_add_u32 s63, %s, 1" % sr(sNG))
        def oct_(base, o):
            o %= 4
            return base[o >> 1] + 8 * (o & 1)
        def C_(o, i): return "v_cvt_pk_bf16_f32 %s, %s, %s" % (vr(oct_(r.V, o) + i), vr(r.ETA + i), vr(oct_(r.V, o) + i))
        def R_(o, i): return "v_rcp_f32 %s, %s" % (vr(r.ETA + i), vr(oct_(r.G, o) + i))
        def E_(o, i): return "v_exp_f32 %s, %s" % (vr(oct_(r.G, o) + i), vr(oct_(r.G, o) + i))
        def A_(o):
            g_ = oct_(r.G, o)
            if USEPK: return ["v_pk_add_f32 %s, %s, 1.0 op_sel_hi:[1,0]" % (vr(g_ + i, 2), vr(g_ + i, 2)) for i in range(0, 8, 2)]
            return ["v_add_f32 %s, 1.0, %s" % (vr(g_ + i), vr(g_ + i)) for i in range(8)]
        def M_(o, pk=True):
            v_ = oct_(r.V, o)
            if USEPK and pk: return ["v_pk_mul_f32 %s, %s, %s" % (vr(v_ + i, 2), vr(v_ + i, 2), vr(r.ETA + i, 2)) for i in range(0, 8, 2)]
            return ["v_mul_f32 %s, %s, %s" % (vr(v_ + i), vr(r.ETA + i), vr(v_ + i)) for i in range(8)]
        def red(f, hi): return smf(r.ACC[f], r.S + 4 * hi, r.V[f] + 8 * hi, r.SI)
        def gch(f): return [mfma(r.G[f], r.X + 4 * k, r.WB + 16 * f + 4 * k, None if k == 0 else r.G[f]) for k in range(4)] + [smf(r.G[f], r.T, r.AT + 8 * f, r.TI, 1)]
        def vch(f): return [mfma(r.V[f], r.X + 4 * k, r.WV + 16 * f + 4 * k, None if k == 0 else r.V[f]) for k in range(4)]
        CUT6 = [int(x) for x in opts.get('cut6', '0,3,7,11,15,19').split(',')]
        CUT5 = [int(x) for x in opts.get('cut5', '0,4,9,13,18').split(',')]
        def sub(s_, g):
            nb = (g + 1) & 1
            if s_ == 0:
                mm = [I(red(0, 1), need=['S3'])] + [I(t) for t in vch(0)]
                aux = [[I(soread(g, 0), lds='SO0')], [I(xdma(2)), I(soread(g, 1), lds='SO1')], [I(xdma(3))],
                       [I(soread(g, 2), lds='SO2')], [I(soread(g, 3), lds='SO3')]]
                if g == 0:
                    aux[4].insert(0, I("s_mov_b32 m0, %s" % sr(sRD)))
            elif s_ == 1:
                mm = [I(red(1, 0))] + [I(t) for t in gch(1)]
                aux = [[I(trread(0), lds='S0', need=['SO1'])], [I(trread(1), lds='S1')], [I(xidx(g + 3, 0), lds='XI0')], [I(xidx(g + 3, 1), lds='XI1')],
                       [I(xidx(g + 3, 2), lds='XI2'), I(xidx(g + 3, 3), lds='XI3')], [I(t0read(g + 1), lds='T0')]]
                if g == 0:
                    aux[1].insert(0, I("s_add_u32 %s, %s, 1024" % (sr(sRD), sr(sRD))))
                    aux[2].insert(0, I(rdma, need=['RI']))
                    aux[3].insert(0, I("s_cmp_lt_u32 %s, %s" % (sr(sRD), sr(sRE))))
                    aux[4].insert(0, I("s_cselect_b32 %s, %s, %d" % (sr(sRD), sr(sRD), DUMMY)))
            elif s_ == 2:
                mm = [I(red(1, 1))] + [I(t) for t in vch(1)]
                aux = [[I("s_waitcnt vmcnt(5)", need=['XI3']), I(tiread(g + 1), lds='TI')]] + [[I(xread(nb, k), lds='X%d' % k)] for k in range(4)]
            else:
                gc = gch(0)
                mm = [I(red(0, 0), need=['S1'])] + [I(gc[k], need=['X%d' % k]) for k in range(4)] + [I(gc[4], need=['T0', 'TI'])]
                aux = [[I(trread(2), lds='S2', need=['X1'])], [I(trread(3), lds='S3')], [I("s_waitcnt", need=['X3'])], [I(xm0(nb))],
                       [I("s_sub_u32 %s, %s, 1" % (sr(sNG), sr(sNG))), I(xdma(0))], [I("s_waitcnt", need=['S3']), I(xdma(1))]]
                if g == 1:
                    aux[3].append(I(riread(3), lds='RI'))
            if PRIO and s_ == PRIO // 10:
                aux[0].insert(0, I("s_setprio 0")); aux[PRIO % 10].insert(0, I("s_setprio 1"))
            if BP:
                aux[0].insert(0, I("s_setprio %d" % (0 if str(s_) in LOWS else 1)))
                if BP == 1: aux[-1].insert(0, I("s_setprio 3"))
            cut = CUT6 if len(mm) == 6 else CUT5
            va = []
            for i in range(8): va += [C_(s_ - 2, i), R_(s_ - 1, i), E_(s_, i)]
            out = []
            for k, t in enumerate(va):
                if k in cut:
                    j = cut.index(k); out.append(mm[j]); out.extend(aux[j])
                out.append(I(t))
            if s_ == 3 and g == 1:
                out += [I("v_lshl_add_u64 %s, %s, 0, %s" % (vr(r.PS, 2), vr(r.PS, 2), sr(sINC, 2))),
                        I("v_lshl_add_u64 %s, %s, 0, %s" % (vr(r.PT, 2), vr(r.PT, 2), sr(sINC, 2)))]
            if s_ == 1 and g == 0:
                out.append(I("v_add_u32 %s, 256, %s" % (vr(r.PL), vr(r.PL))))
            out += ([I("s_setprio 3")] if BP == 2 else []) + [I(t) for t in M_(s_ - 1) + A_(s_)]
            return out
        if PK == 2:
            ID = r.WB
            TOFF = 128 if int(opts.get('tstride', 256)) == 256 else 0
            for s2_ in range(4): e("s_mov_b32 s%d, %d" % (60 + s2_ - 60 + 28, 3072 - 1024 * s2_ + TOFF))
            e("v_and_b32 %s, 31, %s" % (vr(c0), vr(lane)))
            e("v_lshrrev_b32 %s, 5, %s" % (vr(c1), vr(lane)))
            e("v_lshlrev_b32 %s, 3, %s" % (vr(c1), vr(c1)))
            e("v_sub_u32 %s, %s, %s" % (vr(c0), vr(c0), vr(c1)))
            e("v_and_b32 %s, 1, %s" % (vr(c1), vr(c0)))
            e("v_lshlrev_b32 %s, 4, %s" % (vr(c1), vr(c1)))
            e("v_mov_b32 %s, 0x3f80" % vr(c2))
            e("v_lshlrev_b32 %s, %s, %s" % (vr(c2), vr(c1), vr(c2)))
            e("v_ashrrev_i32 %s, 1, %s" % (vr(c0), vr(c0)))
            for k in range(8):
                e("v_cmp_eq_u32 vcc, %d, %s" % ((k & 3) + 8 * (k >> 2), vr(c0)))
                e("s_nop 1")
                e("v_cndmask_b32 %s, 0, %s, vcc" % (vr(ID + k), vr(c2)))
            e("s_nop 1")
            def xdma2(t, f): return "buffer_load_dwordx4 %s, %s, %s idxen offen offset:%d lds" % (vr(r.XI + 2 * t, 2), sr(SXI, 4), (sr(28 + t) if f else (sr(sSO + t) if t < 3 else "0")), t * 1024)
            def gch(f): return [mfma(r.G[f], r.X + 4 * k, ID + 4 * k, None if k == 0 else r.G[f]) for k in range(2)] + [smf(r.G[f], r.T, r.AT + 8 * f, r.TI, 1)]
            def vch(f): return [mfma(r.V[f], r.X + 8 + 4 * k, ID + 4 * k, None if k == 0 else r.V[f]) for k in range(2)]
            CUT4 = [int(x) for x in opts.get('cut4', '0,3,7,11').split(',')]
            CUT3 = [int(x) for x in opts.get('cut3', '0,3,7').split(',')]
            def sub(s_, g):
                if s_ == 0:
                    mm = [I(red(0, 1), need=['S3'])] + [I(t) for t in vch(0)]
                    aux = [[I("s_waitcnt vmcnt(%d)" % (4 if g == 0 else 4)), I(xread(1, 0), lds='X0')], [I(xread(1, 1), lds='X1'), I(xread(1, 2), lds='X2'), I(soread(g, 0), lds='SO0')],
                           [I(xm0(1)), I(xread(1, 3), lds='X3'), I(soread(g, 1), lds='SO1'), I(soread(g, 2), lds='SO2'), I(soread(g, 3), lds='SO3')]]
                elif s_ == 1:
                    mm = [I(red(1, 0))] + [I(t) for t in gch(1)]
                    aux = [[I(xdma2(0, 1), need=['SO1'])], [I(xdma2(1, 1)), I(trread(0), lds='S0')], [I(xdma2(2, 1)), I(trread(1), lds='S1')],
                           [I(xdma2(3, 1)), I(t0read(g + 1), lds='T0')]]
                elif s_ == 2:
                    mm = [I(red(1, 1))] + [I(t) for t in vch(1)]
                    aux = [[I("s_waitcnt vmcnt(4)"), I(xread(0, 0), lds='X0'), I(tiread(g + 1), lds='TI')],
                           [I(xread(0, 1), lds='X1'), I(xread(0, 2), lds='X2'), I(xidx(g + 2, 0), lds='XI0'), I(xidx(g + 2, 1), lds='XI1')],
                           [I(xread(0, 3), lds='X3'), I(xidx(g + 2, 2), lds='XI2'), I(xidx(g + 2, 3), lds='XI3')]]
                    if g == 0:
                        aux[1].insert(0, I("s_mov_b32 m0, %s" % sr(sRD)))
                        aux[2] = [I(rdma, need=['RI']), I("s_add_u32 %s, %s, 1024" % (sr(sRD), sr(sRD))), I("s_cmp_lt_u32 %s, %s" % (sr(sRD), sr(sRE))),
                                  I("s_cselect_b32 %s, %s, %d" % (sr(sRD), sr(sRD), DUMMY))] + aux[2]
                    else:
                        aux[2].append(I(riread(3), lds='RI'))
                    aux[2].append(I(xm0(0)))
                else:
                    mm = [I(red(0, 0))] + [I(t) for t in gch(0)]
                    aux = [[I(xdma2(0, 0), need=['XI3'])], [I(xdma2(1, 0)), I(trread(2), lds='S2')], [I(xdma2(2, 0)), I(trread(3), lds='S3')],
                           [I("s_sub_u32 %s, %s, 1" % (sr(sNG), sr(sNG))), I(xdma2(3, 0))]]
                if PRIO and s_ == PRIO // 10:
                    aux[0].insert(0, I("s_setprio 0"))
                if PRIO and s_ == PRIO // 10 + 1:
                    aux[PRIO % 10].insert(0, I("s_setprio 1"))
                if BP:
                    aux[0].insert(0, I("s_setprio %d" % (0 if str(s_) in LOWS else 1)))
                    if BP == 1: aux[-1].insert(0, I("s_setprio 3"))
                cut = CUT4 if len(mm) == 4 else CUT3
                va = []
                for i in range(8): va += [C_(s_ - 2, i), R_(s_ - 1, i), E_(s_, i)]
                out = []
                for k, t in enumerate(va):
                    if k in cut:
                        j = cut.index(k); out.append(mm[j]); out.extend(aux[j])
                    out.append(I(t))
                if s_ == 3 and g == 1:
                    out += [I("v_lshl_add_u64 %s, %s, 0, %s" % (vr(r.PS, 2), vr(r.PS, 2), sr(sINC, 2))),
                            I("v_lshl_add_u64 %s, %s, 0, %s" % (vr(r.PT, 2), vr(r.PT, 2), sr(sINC, 2)))]
                if s_ == 1 and g == 0:
                    out.append(I("v_add_u32 %s, 256, %s" % (vr(r.PL), vr(r.PL))))
                out += ([I("s_setprio 3")] if BP == 2 else []) + [I(t) for t in M_(s_ - 1) + A_(s_)]
                return out
        body = []
        for g in range(2):
            for s_ in range(4): body += sub(s_, g)
            body.append(I("s_cbranch_scc1 K2_DRAIN" if g == 0 else "s_cbranch_scc0 K2_LOOP"))
        emit_loop(body)
        lab("K2_DRAIN")
        stamp()
        if STAMP: e("s_memrealtime s[94:95]")
        e("s_setprio 2")
        e("s_waitcnt lgkmcnt(0)")
        e(red(0, 1))
        for i in range(8): e(C_(2, i)); e(R_(3, i))
        e(pre.pop(0)); e(pre.pop(0))
        e(red(1, 0))
        for t in M_(3, False): e(t)
        for i in range(8): e(C_(3, i))
        for t in pre: e(t)
        e(red(1, 1))
    else:
        e("s_add_u32 m0, %s, 2048" % sr(sREC))
        e(trread(0)); e(trread(1))
        for t in range(4): e(xidx(2, t))
        e(rdma)
        e(riread(3))
        for i in range(8):
            e("v_mov_b32 %s, 0" % vr(r.V[1] + 8 + i))
        for i in range(13, 16):
            e("v_mov_b32 %s, 1.0" % vr(r.G[1] + i))
        e("s_waitcnt vmcnt(5)")
        stamp()
        for k in range(4): e(xread(0, k))
        e(xm0(0))
        for s in range(4):
            e("s_waitcnt lgkmcnt(%d)" % (3 - s))
            e(mfma(r.G[0], r.X + 4 * s, r.WB + 4 * s, None if s == 0 else r.G[0]))
        e(smf(r.G[0], r.T, r.AT, r.TI, 1))
        for s in range(4):
            e(mfma(r.V[0], r.X + 4 * s, r.WV + 4 * s, None if s == 0 else r.V[0]))
            e(xdma(s))
        e("s_setprio 1")
        e("s_nop 4")
        stamp()
        if STAMP: e("s_memrealtime s[92:93]"); e("s_waitcnt lgkmcnt(0)"); e("s_add_u32 s63, %s, 1" % sr(sNG))

        def valu_slot(a, i):
            out = []
            def reg(base, idx):
                return (base[a] + idx) if idx >= 0 else (base[1 - a] + 16 + idx)
            if i < 16: out.append("v_exp_f32 %s, %s" % (vr(reg(r.G, i)), vr(reg(r.G, i))))
            if i - 1 < 16: out.append("v_add_f32 %s, 1.0, %s" % (vr(reg(r.G, i - 1)), vr(reg(r.G, i - 1))))
            if i - 2 < 16: out.append("v_rcp_f32 %s, %s" % (vr(reg(r.G, i - 2)), vr(reg(r.G, i - 2))))
            out.append("v_mul_f32 %s, %s, %s" % (vr(reg(r.V, i - 3)), vr(reg(r.G, i - 3)), vr(reg(r.V, i - 3))))
            out.append("v_cvt_pk_bf16_f32 %s, %s, %s" % (vr(reg(r.V, i - 3)), vr(reg(r.G, i - 3)), vr(reg(r.V, i - 3))))
            return out
        def I(text, lds=None, need=()):
            return dict(text=text, lds=lds, need=list(need))
        POS = [(3, 2), (4, 3), (5, 4), (7, 0), (8, 1), (9, 2), (10, 4), (12, 0), (13, 2), (14, 3), (15, 4)]
        def phase(a, g):
            b = 1 - a
            xn = ['X%d' % k for k in range(4)]
            mm = [I(smf(r.ACC[b], r.S + 4, r.V[b] + 8, r.SI), need=['S3'])]
            mm += [I(mfma(r.G[b], r.X + 4 * k, r.WB + 16 * b + 4 * k, None if k == 0 else r.G[b]), need=[xn[k]]) for k in range(4)]
            mm += [I(smf(r.G[b], r.T, r.AT + 8 * b, r.TI, 1), need=['T0', 'TI'])]
            vv = [I(mfma(r.V[b], r.X + 4 * k, r.WV + 16 * b + 4 * k, None if k == 0 else r.V[b])) for k in range(4)]
            mm += [vv[0], I(smf(r.ACC[a], r.S, r.V[a], r.SI), need=['S1'])] + vv[1:]
            aux = [[] for _ in range(11)]
            nb = (g + 1) & 1
            if a == 0:
                aux[0] += [I(trread(2), lds='S2', need=['SO3'])]
                aux[1] += [I(trread(3), lds='S3')]
                if g == 0:
                    aux[1].insert(0, I("s_mov_b32 m0, %s" % sr(sRD)))
                    aux[2] += [I(rdma, need=['RI'])]
                    aux[3] += [I("s_add_u32 %s, %s, 1024" % (sr(sRD), sr(sRD)))]
                    aux[4] += [I("s_cmp_lt_u32 %s, %s" % (sr(sRD), sr(sRE)))]
                    aux[5] += [I("s_cselect_b32 %s, %s, %d" % (sr(sRD), sr(sRD), DUMMY))]
                    aux[3] += [I(xidx(g + 3, 0), lds='XI0'), I(xidx(g + 3, 1), lds='XI1')]
                else:
                    aux[2] += [I(xidx(g + 3, 0), lds='XI0')]
                    aux[3] += [I(xidx(g + 3, 1), lds='XI1')]
                aux[4] += [I(xidx(g + 3, 2), lds='XI2'), I(xidx(g + 3, 3), lds='XI3')]
                aux[5] += [I(t0read(g + 1), lds='T0')]
                aux[6] += [I("s_waitcnt vmcnt(5)", need=['S3']), I(xread(nb, 0), lds='X0')]
                aux[7] += [I(tiread(g + 1), lds='TI')]
                for k in range(1, 4): aux[7 + k] += [I(xread(nb, k), lds=xn[k])]
            else:
                aux[0] += [I(soread(g + 1, 0), lds='SO0', need=['X3'])]
                aux[1] += [I(soread(g + 1, 1), lds='SO1')]
                aux[2] += [I(soread(g + 1, 2), lds='SO2')]
                aux[3] += [I(xm0(nb)), I(soread(g + 1, 3), lds='SO3')]
                aux[4] += [I(xdma(0), need=['XI3'])]
                aux[5] += [I(xdma(1))]
                aux[6] += [I(xdma(2))]
                aux[7] += [I(trread(0), lds='S0', need=['SO3'])]
                aux[8] += [I(trread(1), lds='S1')]
                aux[9] += [I(xdma(3))]
                aux[10] += [I("s_sub_u32 %s, %s, 1" % (sr(sNG), sr(sNG)))]
                if g == 1:
                    aux[10] += [I(riread(3), lds='RI')]
            ex = {}
            for k in range(11): ex[POS[k]] = [mm[k]] + aux[k]
            if a == 1 and g == 1:
                ex.setdefault((8, 0), []).extend([I("v_lshl_add_u64 %s, %s, 0, %s" % (vr(r.PS, 2), vr(r.PS, 2), sr(sINC, 2))),
                                                  I("v_lshl_add_u64 %s, %s, 0, %s" % (vr(r.PT, 2), vr(r.PT, 2), sr(sINC, 2)))])
            if a == 0 and g == 0:
                ex.setdefault((1, 0), []).append(I("v_add_u32 %s, 256, %s" % (vr(r.PL), vr(r.PL))))
            if PRIO and a == 1:
                ex[POS[0]].insert(1, I("s_setprio 0"))
                ex[POS[PRIO]].insert(1, I("s_setprio 1"))
            out = []
            for i in range(16):
                for p, t in enumerate(valu_slot(a, i)):
                    out.extend(ex.pop((i, p), []))
                    out.append(I(t))
            assert not ex, ex
            return out
        body = phase(0, 0) + phase(1, 0) + [I("s_cbranch_scc1 K2_DRAIN")] + phase(0, 1) + phase(1, 1) + [I("s_cbranch_scc0 K2_LOOP")]
        emit_loop(body)
        lab("K2_DRAIN")
        stamp()
        if STAMP: e("s_memrealtime s[94:95]")
        e("s_setprio 2")
        XR = r.X; EA = r.X + 8
        e("s_waitcnt lgkmcnt(0)")
        pre = []
        pre.append("v_lshrrev_b32 %s, 5, %s" % (vr(c0), vr(lane)))
        pre.append("v_and_b32 %s, 31, %s" % (vr(c1), vr(lane)))
        pre.append("v_lshlrev_b32 %s, 2, %s" % (vr(c1), vr(c1)))
        pre.append("v_mul_u32_u24 %s, 0x240, %s" % (vr(c2), vr(c0)))
        pre.append("v_xor_b32 %s, %s, %s" % (vr(c2), vr(c2), vr(c1)))
        pre.append("v_add_u32 %s, %s, %s" % (vr(c2), sr(sXT), vr(c2)))
        for i in range(16, 19):
            for t in valu_slot(1, i): e(t)
            e(pre.pop(0)); e(pre.pop(0))
        e(smf(r.ACC[1], r.S + 4, r.V[1] + 8, r.SI))
    e("s_add_u32 %s, %s, 512" % (sr(sW0), sr(sW0)))
    e("s_cmp_lt_u32 %s, %s" % (sr(sW0), sr(sTot)))
    e("s_cbranch_scc1 K2_MORE")
    for q in range(4):
        if q: e("v_xor_b32 %s, %d, %s" % (vr(EA), 16 * q, vr(c2)))
        e("ds_read_b32 %s, %s offset:%d" % (vr(XR + q), vr(EA if q else c2), q * 128))
        e("ds_read_b32 %s, %s offset:%d" % (vr(XR + q + 4), vr(EA if q else c2), q * 128 + 1024))
    e("v_lshlrev_b32 %s, 2, %s" % (vr(c0), vr(c0)))
    e("v_subrev_u32 %s, %s, %s" % (vr(c0), sr(sStart), vr(c0)))
    e("v_lshl_add_u32 %s, %s, 7, %s" % (vr(c0), vr(c0), vr(c1)))
    for q in range(8):
        e("v_add_u32 %s, %d, %s" % (vr(EA + q), (8 * (q >> 2) + (q & 3)) * 128, vr(c0)))
        e("v_and_b32 %s, 0x7ff, %s" % (vr(EA + q), vr(EA + q)))
    e("s_mov_b32 s10, 0x358637bd")
    for f in range(2):
        for q in range(8):
            e("v_add_f32 %s, s10, %s" % (vr(r.ACC[f] + q), vr(r.ACC[f] + q)))
        for q in range(8):
            e("v_rcp_f32 %s, %s" % (vr(r.ACC[f] + q), vr(r.ACC[f] + q)))
    e("s_waitcnt lgkmcnt(0)")
    for q in range(8):
        for f in range(2):
            u = r.U + 8 * f + q
            e("v_fmac_f32 %s, %s, %s" % (vr(u), vr(r.ACC[f] + q), vr(r.ACC[f] + 8 + q)))
            if f == 0: e("v_lshlrev_b32 %s, 16, %s" % (vr(c1), vr(XR + q)))
            else: e("v_and_b32 %s, 0xffff0000, %s" % (vr(c1), vr(XR + q)))
            e("v_max_f32 %s, 0, %s" % (vr(u), vr(u)))
            e("v_add_f32 %s, %s, %s" % (vr(u), vr(c1), vr(u)))
        e("v_cvt_pk_bf16_f32 %s, %s, %s" % (vr(r.U + q), vr(r.U + q), vr(r.U + 8 + q)))
        e("buffer_store_dword %s, %s, %s, 0 offen %s" % (vr(r.U + q), vr(EA + q), sr(SOUT, 4), OSF))
    stamp()
    if STAMP:
        e("s_waitcnt vmcnt(0) lgkmcnt(0)"); e("s_mov_b32 s%d, s63" % (64 + 2 * nstamp[0])); nstamp[0] += 1
    stamp(final=True, wsreg=8, wave=sr(sW), nwaves=8, kid=1, tmpv=10)
    if DW == 1:
        e("s_load_dword s70, s[8:9], 0x%x" % 0)
        L[-1] = "    s_add_u32 s74, s8, 0x%x\n    s_addc_u32 s75, s9, 0\n    s_load_dword s70, s[74:75], 0" % WS_DBG
    if DW in (1, 2, 3, 4): spin("2")
    lab("K2_END")
    e("s_endpgm")
    lab("K2_MORE")
    e("s_mov_b32 %s, 0" % sr(sFirst))
    e("s_waitcnt vmcnt(0) lgkmcnt(0)")
    e("s_nop 15")
    e("s_lshl_b32 s10, %s, 2" % sr(sT))
    e("v_and_b32 %s, 28, %s" % (vr(c1), vr(lane)))
    e("v_xor_b32 %s, s10, %s" % (vr(c1), vr(c1)))
    e("v_lshl_add_u32 %s, %s, 15, %s" % (vr(c0), vr(lane), vr(c1)))
    for i in range(4):
        e("buffer_load_dword %s, %s, %s, 0 offen" % (vr(EN + i), vr(c0), sr(SOFS, 4)))
        e("v_add_u32 %s, 8192, %s" % (vr(c0), vr(c0)))
    expand_pre()
    e("s_waitcnt vmcnt(0)")
    e("s_branch K2_EXPAND")
    return r.n

hdr = open('cdna_kernels/%s.s.ref' % NAME).read().split('\n')
hdr = [l for l in hdr if l.startswith(';   offset') or l.startswith('; Kernarg')]
L.append('.amdgcn_target "amdgcn-amd-amdhsa--gfx950"')
L.append('.text')
lds1 = k1()
nv2 = k2()
def kd(name, nv, ns):
    return [".p2align 6", ".amdhsa_kernel %s" % name, "  .amdhsa_next_free_vgpr %d" % nv, "  .amdhsa_next_free_sgpr %d" % ns,
            "  .amdhsa_accum_offset %d" % ((nv + 3) // 4 * 4), "  .amdhsa_group_segment_fixed_size 0", "  .amdhsa_kernarg_size 96",
            "  .amdhsa_user_sgpr_count 2", "  .amdhsa_user_sgpr_kernarg_segment_ptr 1", "  .amdhsa_system_sgpr_workgroup_id_x 1",
            ".end_amdhsa_kernel"]
if XL:
    L.append(".p2align 8"); L.append(".type k0_nop_kernel,@function"); lab("k0_nop_kernel"); e("s_endpgm")
L.append('.section .rodata,"a"')
if XL: L += kd("k0_nop_kernel", 8, 16)
L += kd("k1_sort_kernel", 72, 102 if STAMP or DW else 64)
L += kd("k2_main_kernel", 256, 102 if STAMP or DW else 64)
top = hdr + ["; @launch kernel=k1_sort_kernel grid=(%d,1,1) block=(1024,1,1) lds=%d" % (NC + 1, lds1),
             "; @launch kernel=k2_main_kernel grid=(256,1,1) block=(512,1,1) lds=%d" % K2_LDS]
if XL:
    ln = "; @launch kernel=k0_nop_kernel grid=(256,1,1) block=(64,1,1) lds=0"
    top.insert({'a': len(top) - 2, 'b': len(top) - 1, 'c': len(top)}[XL], ln)
open(OUT, 'w').write("\n".join(top + L) + "\n")
print("vgprs k2:", nv2, "lines:", len(L))
```

```python
import sys, re

NAME = "standalone__edge_featured_mpnn_gatedgcn__graph"
KN = NAME + "_kernel"
N_NODES = 25000
CH = 3200
NC = 250
TMUL = 5368
WS_REC = 0
WS_OFF = 0xD00000
WS_EPO = 0xF00000
WS_DBG = 0x1000000
NEGLOG2E = 0xBFB8AA3B
SPINMAX = 200000

opts = dict(a.split('=') for a in sys.argv[1:] if '=' in a)
OUT = opts.get('out', 'cdna_kernels/%s.s' % NAME)
STAMP = int(opts.get('stamp', 0))
STF = opts.get('stf', 'sc0+sc1').replace('+', ' ')
LDF = opts.get('ldf', 'nt').replace('+', ' ')
RLF = opts.get('rlf', 'sc1').replace('+', ' ')
RL0 = opts.get('rl0', 'sc0+sc1').replace('+', ' ')
RL2 = opts.get('rl2', 'sc0+sc1').replace('+', ' ')
XPF = int(opts.get('xpf', 0))
PLF = opts.get('plf', 'sc0+sc1').replace('+', ' ')
OSF = opts.get('osf', '').replace('+', ' ')
DW = int(opts.get('dw', 0))
LOWS = opts.get('lows', '')
DELAY = int(opts.get('delay', 0))

L = []
def e(s): L.append("    " + s)
def lab(s): L.append(s + ":")
def vr(a, n=1): return "v%d" % a if n == 1 else "v[%d:%d]" % (a, a + n - 1)
def sr(a, n=1): return "s%d" % a if n == 1 else "s[%d:%d]" % (a, a + n - 1)

DPPS = ["row_shr:1 row_mask:0xf bank_mask:0xf", "row_shr:2 row_mask:0xf bank_mask:0xf",
        "row_shr:4 row_mask:0xf bank_mask:0xf", "row_shr:8 row_mask:0xf bank_mask:0xf",
        "row_bcast:15 row_mask:0xa bank_mask:0xf", "row_bcast:31 row_mask:0xc bank_mask:0xf"]
def scan64(op, v, fill=()):
    fill = list(fill)
    for m in DPPS:
        n = 0
        while n < 2 and fill:
            e(fill.pop(0)); n += 1
        if n < 2: e("s_nop %d" % (1 - n))
        e("%s_dpp %s, %s, %s %s" % (op, vr(v), vr(v), vr(v), m))
    for f in fill: e(f)

def srd(d, base, nbytes, add=None, stride=0, sub=None):
    if sub is not None:
        e("s_sub_u32 %s, %s, %s" % (sr(d), sr(base), sub))
        e("s_subb_u32 %s, %s, 0" % (sr(d + 1), sr(base + 1)))
        e("s_and_b32 %s, %s, 0xffff" % (sr(d + 1), sr(d + 1)))
    elif add is None:
        e("s_mov_b32 %s, %s" % (sr(d), sr(base)))
        e("s_and_b32 %s, %s, 0xffff" % (sr(d + 1), sr(base + 1)))
    else:
        e("s_add_u32 %s, %s, %s" % (sr(d), sr(base), add))
        e("s_addc_u32 %s, %s, 0" % (sr(d + 1), sr(base + 1)))
        e("s_and_b32 %s, %s, 0xffff" % (sr(d + 1), sr(d + 1)))
    if stride:
        e("s_or_b32 %s, %s, 0x%x" % (sr(d + 1), sr(d + 1), stride << 16))
    e("s_mov_b32 %s, %s" % (sr(d + 2), nbytes if isinstance(nbytes, str) else "0x%x" % nbytes))
    e("s_mov_b32 %s, 0x20000" % sr(d + 3))

STV = 255
names = []
def stamp(name, real=False):
    if not STAMP: return
    if 'only' in opts and name not in opts['only'].split(',') + ['rt0', 'start', 'loop', 'rtloop', 'loopend', 'rtloopend', 'end', 'rtend']: return
    k = len(names); names.append(name)
    e("s_mem%stime s[100:101]" % ("real" if real else ""))
    e("s_waitcnt lgkmcnt(0)")
    e("v_writelane_b32 v%d, s100, %d" % (STV, k))
def mark(*modes):
    if DW in modes: e("s_memrealtime s[98:99]"); e("s_waitcnt lgkmcnt(0)")

TS, TOTA, WTOT = 0, 64, 128
RECB = 1024
HIST = RECB + CH * 16
XTB = RECB + 65536
XBB = XTB + 16384
PCB = XBB + 65536
LDS_BYTES = PCB + 8192
LOFF = 8192 - 2048 - 16

class R: pass
def alloc():
    r = R(); p = 0
    def a(n, al=1):
        nonlocal p
        p = (p + al - 1) // al * al
        b = p; p += n
        return b
    r.LANE = a(1); r.SI = a(1)
    r.PS = a(1, 2); r.PC = a(1); r.PT = a(1, 2); r.PE = a(1); r.PL = a(1, 2); r.PW = a(1)
    r.XA0 = a(1); r.XA1 = a(1); r.TI = a(1); r.TMP = a(3); r.RI = a(1)
    r.SO = a(4, 2); r.XI = a(8, 2); r.T = a(4, 2); r.RD = a(4, 2); r.U = a(8, 2)
    r.S = a(8, 2); r.ETA = a(8, 2); r.X = a(16, 2)
    r.ACC = [a(16, 2), a(16, 2)]
    r.G = [a(16, 2), None]; r.V = [a(16, 2), None]
    r.G[1] = a(16, 2); r.V[1] = a(16, 2)
    r.WB = a(32, 2); r.WV = a(32, 2); r.AT = a(16, 2)
    r.n = p
    return r

def mfma(d, a, b, c):
    return "v_mfma_f32_32x32x16_bf16 %s, %s, %s, %s" % (vr(d, 16), vr(a, 4), vr(b, 4), "0" if c is None else vr(c, 16))
def smf(d, a, b, idx, abid=0):
    return "v_smfmac_f32_32x32x32_bf16 %s, %s, %s, %s%s" % (vr(d, 16), vr(a, 4), vr(b, 8), vr(idx), " abid:1" if abid else "")
SOFF = [0, 64, 256, 320]

def kernel():
    r = alloc()
    assert r.n <= 255, r.n
    SX, SXI, SOFS, SRC, SOUT, SA, SB, SC_ = 28, 32, 36, 40, 44, 48, 52, 56
    sW, sT, sStart, sEnd, sTot, sW0, sNG, sXB, sREC, sFirst, sBin, sMag, sBLK, sXT, sTag, sTagH, sSpin, sLim, sKm, sKx = range(60, 80)
    sINC = 80; sINC2 = 82; sSO = 84; sE2 = 88; sRET = 90
    lane = r.LANE
    c0, c1, c2 = r.TMP, r.TMP + 1, r.TMP + 2
    MAG = -(-(1 << 41) // 671)
    for t in range(2049):
        n = t * 8192 + 670
        assert (n * MAG) >> 41 == n // 671
    def tile_range():
        e("s_lshl_b32 s3, %s, 13" % sr(sT)); e("s_add_u32 s3, s3, 670")
        e("s_mul_hi_u32 %s, s3, %s" % (sr(sStart), sr(sMag))); e("s_lshr_b32 %s, %s, 9" % (sr(sStart), sr(sStart)))
        e("s_add_u32 s3, s3, 8192")
        e("s_mul_hi_u32 %s, s3, %s" % (sr(sEnd), sr(sMag))); e("s_lshr_b32 %s, %s, 9" % (sr(sEnd), sr(sEnd)))
    L.append(".globl %s" % KN); L.append(".p2align 8"); L.append(".type %s,@function" % KN); lab(KN)
    e("s_load_dwordx16 s[4:19], s[0:1], 0")
    e("s_load_dwordx8 s[20:27], s[0:1], 64")
    e("s_cmp_gt_u32 s2, 255")
    e("s_cbranch_scc1 K_END")
    e("s_setprio 3")
    mark(1)
    stamp("rt0", True); stamp("start")
    q = r.X
    TID = q; T16 = q + 1; T32 = q + 2; ONE = q + 3; ZER = q + 4
    DST = q + 8
    SRCV = q + 16
    EA = q + 24
    HA = q + 56
    RK = q + 64
    CN = q + 72
    ST = q + 76
    PC_ = q + 80
    tA, tB, tC, tD, tE, tF = [q + 84 + i for i in range(6)]
    EP = q + 90
    T16B = q + 92; T32B = q + 93
    assert q + 94 <= r.WB
    WRAW = r.AT
    WCR = r.ETA
    e("v_mov_b32 %s, v0" % vr(TID))
    e("v_lshrrev_b32 %s, 6, v0" % vr(tA))
    e("v_lshlrev_b32 %s, 4, v0" % vr(T16))
    e("v_readfirstlane_b32 %s, %s" % (sr(sW), vr(tA)))
    e("v_lshlrev_b32 %s, 5, v0" % vr(T32))
    e("v_and_b32 %s, 63, v0" % vr(lane))
    e("v_add_u32 %s, 8192, %s" % (vr(T16B), vr(T16)))
    e("v_add_u32 %s, 16384, %s" % (vr(T32B), vr(T32)))
    for i in range(4): e("v_mov_b32 %s, 0" % vr(ZER + i))
    e("v_mov_b32 %s, 1" % vr(ONE))
    e("ds_write_b128 %s, %s offset:%d" % (vr(T16), vr(ZER, 4), HIST))
    e("s_min_u32 s3, s2, %d" % (NC - 1))
    e("s_mul_i32 s92, s3, %d" % (CH * 4))
    e("s_lshl_b32 s93, s92, 1")
    e("s_cmp_lt_u32 s2, %d" % NC)
    e("s_cselect_b32 s94, %d, 0" % (CH * 4))
    e("s_cselect_b32 s95, %d, 0" % (CH * 8))
    e("s_cselect_b32 s96, %d, 0" % (CH // 4))
    e("s_and_b32 s3, s2, 7"); e("s_lshl_b32 s3, s3, 5"); e("s_lshr_b32 %s, s2, 3" % sr(sBin)); e("s_add_u32 %s, %s, s3" % (sr(sBin), sr(sBin)))
    e("s_lshl_b32 %s, %s, 13" % (sr(sREC), sr(sW)))
    e("s_add_u32 %s, %s, %d" % (sr(sXB), sr(sREC), XBB))
    e("s_add_u32 %s, %s, %d" % (sr(sREC), sr(sREC), RECB))
    e("s_lshl_b32 %s, %s, 3" % (sr(sT), sr(sBin))); e("s_add_u32 %s, %s, %s" % (sr(sT), sr(sT), sr(sW)))
    e("s_mov_b32 %s, 0x%x" % (sr(sMag), MAG))
    tile_range()
    e("s_waitcnt lgkmcnt(0)")
    srd(SA, 10, "s94", "s92")
    e("buffer_load_dwordx4 %s, %s, %s, 0 offen %s" % (vr(DST, 4), vr(T16), sr(SA, 4), LDF))
    e("buffer_load_dwordx4 %s, %s, %s, 0 offen %s" % (vr(DST + 4, 4), vr(T16B), sr(SA, 4), LDF))
    srd(SOUT, 26, 8, "0x%x" % WS_EPO)
    e("buffer_load_dwordx2 %s, %s, %s, 0 offen sc1" % (vr(EP, 2), vr(ZER), sr(SOUT, 4)))
    DF = int(opts.get('df', 2))
    SS, SE = (SB, SC_) if not DF else (SRC, SOFS)
    srd(SS, 8, "s94", "s92")
    srd(SE, 6, "s95", "s93")
    RL = ["buffer_load_dwordx4 %s, %s, %s, 0 offen %s" % (vr(SRCV, 4), vr(T16), sr(SS, 4), LDF),
          "buffer_load_dwordx4 %s, %s, %s, 0 offen %s" % (vr(SRCV + 4, 4), vr(T16B), sr(SS, 4), LDF)]
    for k in (2, 3, 0, 1):
        RL.append("buffer_load_dwordx4 %s, %s, %s, 0 offen offset:%d %s" % (vr(EA + 8 * k, 4), vr(T32B if k >> 1 else T32), sr(SE, 4), 16 * (k & 1), LDF))
    NE = int(opts.get('ne', 2))
    NE2 = int(opts.get('ne2', 0))
    for _ in range(NE): e(RL.pop(0))
    def rest_loads():
        for t in RL: e(t)
        if DF:
            srd(SOFS, 26, 256 * 8192, "0x%x" % WS_OFF)
            srd(SRC, 26, NC * CH, stride=16)
    if DF == 0: rest_loads()
    e("v_cmp_gt_u32 vcc, s96, %s" % vr(TID))
    e("s_mov_b64 s[92:93], vcc")
    e("v_add_u32 %s, 512, %s" % (vr(tA), vr(TID)))
    e("v_cmp_gt_u32 vcc, s96, %s" % vr(tA))
    e("s_mov_b64 s[94:95], vcc")
    e("s_and_b32 s3, %s, 3" % sr(sW))
    e("s_cmp_eq_u32 s3, 1"); e("s_cselect_b32 s12, s18, s12"); e("s_cselect_b32 s13, s19, s13")
    e("s_cmp_eq_u32 s3, 2"); e("s_cselect_b32 s12, s14, s12"); e("s_cselect_b32 s13, s15, s13")
    e("s_cmp_eq_u32 s3, 3"); e("s_cselect_b32 s12, s20, s12"); e("s_cselect_b32 s13, s21, s13")
    srd(SA, 12, 8192)
    srd(SB, 16, 512)
    srd(SX, 4, N_NODES * 128)
    H = r.SO
    XT0, XT1, J4, L16 = r.RD, r.RD + 1, r.RD + 2, r.RD + 3
    e("v_lshrrev_b32 %s, 5, %s" % (vr(H), vr(lane)))
    e("v_and_b32 %s, 31, %s" % (vr(J4), vr(lane)))
    e("v_lshlrev_b32 %s, 2, %s" % (vr(J4), vr(J4)))
    e("v_lshlrev_b32 %s, 4, %s" % (vr(L16), vr(lane)))
    e("v_lshrrev_b32 %s, 3, %s" % (vr(tA), vr(lane)))
    e("v_xor_b32 %s, %s, %s" % (vr(tB), vr(tA), vr(lane)))
    e("v_and_b32 %s, 7, %s" % (vr(tB), vr(tB)))
    e("v_lshlrev_b32 %s, 4, %s" % (vr(tB), vr(tB)))
    e("v_subrev_u32 %s, %s, %s" % (vr(tA), sr(sStart), vr(tA)))
    e("v_and_b32 %s, 15, %s" % (vr(tA), vr(tA)))
    e("v_xor_b32 %s, 8, %s" % (vr(tC), vr(tA)))
    e("v_add_u32 %s, %s, %s" % (vr(tA), sr(sStart), vr(tA)))
    e("v_add_u32 %s, %s, %s" % (vr(tC), sr(sStart), vr(tC)))
    e("v_lshl_add_u32 %s, %s, 7, %s" % (vr(XT0), vr(tA), vr(tB)))
    e("v_lshl_add_u32 %s, %s, 7, %s" % (vr(XT1), vr(tC), vr(tB)))
    def late_loads():
        e("s_cmp_lt_u32 %s, 4" % sr(sW))
        e("s_cbranch_scc1 LATE_B")
        e("s_and_b32 s93, %s, 3" % sr(sW)); e("s_lshl_b32 s93, s93, 14")
        e("s_add_u32 m0, s93, %d" % XBB)
        e("s_mov_b32 s3, 4096")
        for k in range(4):
            e("buffer_load_dwordx4 %s, %s, 0 offen offset:%d lds" % (vr(L16), sr(SA, 4), k * 1024))
        e("s_add_u32 m0, s93, %d" % (XBB + 8192))
        e("s_nop 0")
        for k in range(4):
            e("buffer_load_dwordx4 %s, %s, s3 offen offset:%d lds" % (vr(L16), sr(SA, 4), k * 1024))
        if XPF:
            e("s_lshr_b32 s3, s2, 3"); e("s_mul_i32 s3, s3, %d" % (782 * 128))
            e("s_lshr_b32 s94, s93, 1"); e("s_mul_i32 s94, s94, %d" % XPF); e("s_add_u32 s3, s3, s94")
            e("v_lshl_add_u32 %s, %s, 7, s3" % (vr(tF), vr(lane)))
            for k in range(XPF):
                e("buffer_load_dword %s, %s, %s, 0 offen" % (vr(tE), vr(tF), sr(SX, 4)))
                if k + 1 < XPF: e("v_add_u32 %s, 8192, %s" % (vr(tF), vr(tF)))
        lab("LATE_B")
        e("s_lshl_b32 s3, %s, 11" % sr(sW))
        e("s_add_u32 m0, s3, %d" % XTB)
        e("s_mov_b32 exec_hi, 0")
        for i in range(4):
            e("buffer_load_dword %s, %s, %s, 0 offen offset:%d" % (vr(WCR + i), vr(J4), sr(SB, 4), i * 128))
        e("s_mov_b64 exec, -1")
        e("buffer_load_dwordx4 %s, %s, 0 offen lds" % (vr(XT0), sr(SX, 4)))
        e("s_add_u32 m0, s3, %d" % (XTB + 1024))
        e("s_nop 0")
        e("buffer_load_dwordx4 %s, %s, 0 offen lds" % (vr(XT1), sr(SX, 4)))
    e("s_mul_i32 s3, s2, %d" % (CH * 16))
    NLATE = 0
    srd(SC_, 26, CH * 16, "s3")
    if not DF: srd(SOFS, 26, 256 * 8192, "0x%x" % WS_OFF)
    srd(SXI, 4, N_NODES, stride=128, sub="3072")
    if not DF: srd(SRC, 26, NC * CH, stride=16)
    e("s_mov_b32 %s, 1024" % sr(sINC)); e("s_mov_b32 %s, 1024" % sr(sINC + 1))
    e("s_mov_b32 %s, 256" % sr(sINC2)); e("s_mov_b32 %s, 1024" % sr(sINC2 + 1))
    e("s_mov_b32 %s, 3072" % sr(sSO)); e("s_mov_b32 %s, 2048" % sr(sSO + 1)); e("s_mov_b32 %s, 1024" % sr(sSO + 2))
    e("s_mov_b32 %s, %d" % (sr(sLim), NC * CH))
    e("s_mov_b32 %s, 0xfff0ffff" % sr(sKm))
    e("s_mov_b32 %s, 0" % sr(sW0)); e("s_mov_b32 %s, 1" % sr(sFirst)); e("s_mov_b32 %s, %d" % (sr(sSpin), SPINMAX))
    e("v_mov_b32 %s, 0x%x" % (vr(tA), (1 << 4) | (2 << 8) | (1 << 14) | (2 << 18)))
    e("v_lshlrev_b32 %s, 1, %s" % (vr(tB), vr(lane)))
    e("v_bfe_u32 %s, %s, %s, 2" % (vr(tA), vr(tA), vr(tB)))
    e("v_mul_u32_u24 %s, 0x8001, %s" % (vr(tA), vr(tA)))
    e("v_and_b32 %s, 0x10001, %s" % (vr(tA), vr(tA)))
    e("v_mul_u32_u24 %s, 0x3f80, %s" % (vr(tA), vr(tA)))
    e("v_lshlrev_b32 %s, 2, %s" % (vr(tB), vr(lane)))
    e("s_mov_b64 exec, 0x3ff")
    e("ds_write_b32 %s, %s offset:%d" % (vr(tB), vr(tA), TS))
    e("s_mov_b64 exec, -1")
    e("v_and_b32 %s, 3, %s" % (vr(c0), vr(lane)))
    e("v_bfe_u32 %s, %s, 4, 1" % (vr(c1), vr(lane)))
    e("v_mul_u32_u24 %s, 0x5555, %s" % (vr(r.SI), vr(c1)))
    e("v_or_b32 %s, 0x8888, %s" % (vr(r.SI), vr(r.SI)))
    e("v_xor_b32 %s, %s, %s" % (vr(c2), vr(c0), vr(H)))
    e("v_lshl_or_b32 %s, %s, 2, %s" % (vr(c2), vr(c1), vr(c2)))
    e("v_lshlrev_b32 %s, 4, %s" % (vr(r.XI + 1), vr(c2)))
    e("v_mov_b32 %s, %s" % (vr(r.XI + 3), vr(r.XI + 1)))
    e("v_xor_b32 %s, 32, %s" % (vr(r.XI + 5), vr(r.XI + 1)))
    e("v_mov_b32 %s, %s" % (vr(r.XI + 7), vr(r.XI + 5)))
    e("v_bfe_u32 %s, %s, 3, 2" % (vr(c2), vr(lane)))
    e("v_xor_b32 %s, %s, %s" % (vr(c2), vr(c2), vr(H)))
    e("v_lshlrev_b32 %s, 4, %s" % (vr(r.XA0), vr(c2)))
    e("v_lshl_or_b32 %s, %s, 6, %s" % (vr(r.XA0), vr(c0), vr(r.XA0)))
    e("v_bfe_u32 %s, %s, 3, 1" % (vr(c2), vr(lane)))
    e("v_lshl_or_b32 %s, %s, 9, %s" % (vr(r.XA0), vr(c2), vr(r.XA0)))
    e("v_bfe_u32 %s, %s, 2, 1" % (vr(tA), vr(lane)))
    e("v_lshl_or_b32 %s, %s, 10, %s" % (vr(r.XA0), vr(tA), vr(r.XA0)))
    e("v_lshl_or_b32 %s, %s, 11, %s" % (vr(r.XA0), vr(c1), vr(r.XA0)))
    e("v_xor_b32 %s, 32, %s" % (vr(r.XA1), vr(r.XA0)))
    e("v_add_u32 %s, %s, %s" % (vr(r.XA0), sr(sXB), vr(r.XA0)))
    e("v_add_u32 %s, %s, %s" % (vr(r.XA1), sr(sXB), vr(r.XA1)))
    FA, FU = r.SO + 2, r.SO + 3
    e("v_lshl_or_b32 %s, %s, 1, %s" % (vr(c2), vr(tA), vr(c2)))
    e("v_lshl_or_b32 %s, %s, 1, %s" % (vr(c2), vr(c2), vr(c1)))
    e("v_mad_u32_u24 %s, %s, 3, %s" % (vr(c2), vr(c2), vr(c0)))
    e("v_add_u32 %s, 9, %s" % (vr(c2), vr(c2)))
    e("v_and_b32 %s, 15, %s" % (vr(c2), vr(c2)))
    for dst, src in ((FA, c2), (FU, None)):
        if src is None:
            e("v_and_b32 %s, 15, %s" % (vr(c2), vr(lane)))
        e("v_xor_b32 %s, %s, %s" % (vr(tA), vr(c2), vr(H)))
        e("v_and_b32 %s, 7, %s" % (vr(tA), vr(tA)))
        e("v_lshlrev_b32 %s, 4, %s" % (vr(tA), vr(tA)))
        e("v_lshl_or_b32 %s, %s, 7, %s" % (vr(dst), vr(c2), vr(tA)))
    e("v_lshlrev_b32 %s, 4, %s" % (vr(tA), vr(H)))
    e("v_mov_b32 %s, 0x3f80" % vr(tB))
    e("v_lshlrev_b32 %s, %s, %s" % (vr(r.T + 1), vr(tA), vr(tB)))
    e("v_mov_b32 %s, %s" % (vr(r.T + 2), vr(r.T + 1)))
    e("v_mov_b32 %s, %s" % (vr(r.T + 3), vr(r.T + 1)))
    e("s_lshl_b32 s3, %s, 2" % sr(sW))
    e("v_mov_b32 %s, s3" % vr(tE))
    e("v_and_b32 %s, 7, %s" % (vr(tF), vr(lane)))
    e("v_lshlrev_b32 %s, 2, %s" % (vr(tF), vr(tF)))
    e("s_waitcnt lgkmcnt(0)")
    e("s_barrier")
    if DF == 1: rest_loads()
    if DF == 2:
        for _ in range(NE2): e(RL.pop(0))
    e("s_waitcnt vmcnt(%d)" % (1 + NE + NE2 if DF == 2 else 7))
    stamp("dst")
    for rd in range(2):
        e("s_mov_b64 exec, s[%d:%d]" % (92 + 2 * rd, 93 + 2 * rd))
        e("s_cbranch_execz P1_A")
        for i in range(4 * rd, 4 * rd + 4):
            e("v_mul_u32_u24 %s, %d, %s" % (vr(HA + i), TMUL, vr(DST + i)))
            e("v_lshrrev_b32 %s, 14, %s" % (vr(HA + i), vr(HA + i)))
            e("v_and_b32 %s, 0x1ffc, %s" % (vr(HA + i), vr(HA + i)))
        for i in range(4 * rd, 4 * rd + 4):
            e("ds_add_rtn_u32 %s, %s, %s offset:%d" % (vr(RK + i), vr(HA + i), vr(ONE), HIST))
    lab("P1_A")
    e("s_mov_b64 exec, -1")
    if DF == 2: rest_loads()
    key = []
    for i in range(8):
        d = DST + i
        key += ["v_and_b32 %s, 15, %s" % (vr(d), vr(d)),
                "v_mul_u32_u24 %s, 11, %s" % (vr(c0), vr(d)),
                "v_lshrrev_b32 %s, 5, %s" % (vr(c0), vr(c0)),
                "v_mad_i32_i24 %s, %s, -3, %s" % (vr(c1), vr(c0), vr(d)),
                "v_add_u32 %s, 1, %s" % (vr(c1), vr(c1)),
                "v_lshl_add_u32 %s, %s, 1, 4" % (vr(c0), vr(c0)),
                "v_lshl_or_b32 %s, %s, %s, %s" % (vr(d), vr(c1), vr(c0), vr(d))]
    for _ in range(21): e(key.pop(0))
    e("s_waitcnt lgkmcnt(0)")
    e("s_barrier")
    stamp("hist")
    e("ds_read_b128 %s, %s offset:%d" % (vr(CN, 4), vr(T16), HIST))
    for _ in range(7): e(key.pop(0))
    e("s_waitcnt lgkmcnt(0)")
    e("v_add_u32 %s, %s, %s" % (vr(ST + 2), vr(CN), vr(CN + 1)))
    e("v_add_u32 %s, %s, %s" % (vr(ST + 3), vr(ST + 2), vr(CN + 2)))
    e("v_add_u32 %s, %s, %s" % (vr(tA), vr(ST + 3), vr(CN + 3)))
    e("v_mov_b32 %s, %s" % (vr(tB), vr(tA)))
    scan64("v_add_u32", tB, [key.pop(0) for _ in range(12)])
    e("s_mov_b32 exec_lo, 0"); e("s_mov_b32 exec_hi, 0x80000000")
    e("ds_write_b32 %s, %s offset:%d" % (vr(tE), vr(tB), WTOT))
    e("s_mov_b64 exec, -1")
    e("s_waitcnt vmcnt(%d)" % (6 + NLATE))
    e("v_readfirstlane_b32 %s, %s" % (sr(sTag), vr(EP)))
    e("v_readfirstlane_b32 %s, %s" % (sr(sE2), vr(EP + 1)))
    e(key.pop(0)); e(key.pop(0))
    e("s_add_u32 %s, %s, 1" % (sr(sTag), sr(sTag)))
    e("s_add_u32 %s, %s, 0x10000" % (sr(sE2), sr(sE2)))
    e("s_and_b32 %s, %s, 0xffff0000" % (sr(sTagH), sr(sE2)))
    e("s_waitcnt lgkmcnt(0)")
    e("s_barrier")
    e("ds_read_b32 %s, %s offset:%d" % (vr(tC), vr(tF), WTOT))
    for _ in range(7): e(key.pop(0))
    e("v_mov_b32 %s, %s" % (vr(PC_ + 3), sr(sTag)))
    e("s_waitcnt lgkmcnt(0)")
    e("v_mov_b32 %s, %s" % (vr(tD), vr(tC)))
    for sh in (1, 2, 4):
        e(key.pop(0)); e(key.pop(0))
        e("v_add_u32_dpp %s, %s, %s row_shr:%d row_mask:0xf bank_mask:0xf" % (vr(tD), vr(tD), vr(tD), sh))
    e("v_sub_u32 %s, %s, %s" % (vr(tD), vr(tD), vr(tC)))
    e(key.pop(0))
    assert not key
    e("v_readlane_b32 s3, %s, %s" % (vr(tD), sr(sW)))
    e("s_lshl_b32 s91, s2, 13")
    e("s_nop 0")
    e("v_add_u32 %s, s3, %s" % (vr(tB), vr(tB)))
    e("v_sub_u32 %s, %s, %s" % (vr(ST), vr(tB), vr(tA)))
    e("v_add_u32 %s, %s, %s" % (vr(ST + 1), vr(ST), vr(CN)))
    e("v_add_u32 %s, %s, %s" % (vr(ST + 2), vr(ST), vr(ST + 2)))
    e("v_add_u32 %s, %s, %s" % (vr(ST + 3), vr(ST), vr(ST + 3)))
    e("v_lshl_or_b32 %s, %s, 16, %s" % (vr(PC_), vr(ST + 1), vr(ST)))
    e("v_lshl_or_b32 %s, %s, 16, %s" % (vr(PC_ + 1), vr(ST + 3), vr(ST + 2)))
    e("v_or_b32 %s, %s, %s" % (vr(PC_ + 2), sr(sTagH), vr(tB)))
    PUB = int(opts.get('pub', 0))
    pub = "buffer_store_dwordx4 %s, %s, %s, s91 offen %s" % (vr(PC_, 4), vr(T16), sr(SOFS, 4), STF)
    if PUB == 0: e(pub)
    for i in range(4): e("v_lshlrev_b32 %s, 4, %s" % (vr(ST + i), vr(ST + i)))
    e("ds_write_b128 %s, %s offset:%d" % (vr(T16), vr(ST, 4), HIST))
    e("s_mov_b32 s3, 0xffff")
    e("s_waitcnt lgkmcnt(0)")
    e("s_barrier")
    stamp("scan")
    for i in range(8):
        e("ds_read_b32 %s, %s offset:%d" % (vr(HA + i), vr(HA + i), HIST))
    e("s_waitcnt vmcnt(%d)" % (NLATE + (PUB == 0)))
    def assemble(rd):
        for k in range(2 * rd, 2 * rd + 2):
            e("v_mov_b32 %s, %s" % (vr(EA + 8 * k + 4), vr(EA + 8 * k + 2)))
            e("v_mov_b32 %s, %s" % (vr(EA + 8 * k + 5), vr(EA + 8 * k + 3)))
        for i in range(4 * rd, 4 * rd + 4):
            e("v_xor_b32 %s, s3, %s" % (vr(SRCV + i), vr(SRCV + i)))
            e("v_lshl_or_b32 %s, %s, 16, %s" % (vr(EA + 4 * i + 2), vr(DST + i), vr(SRCV + i)))
            e("v_mov_b32 %s, %s" % (vr(EA + 4 * i + 3), sr(sTag)))
    for rd in range(2):
        e("s_mov_b64 exec, s[%d:%d]" % (92 + 2 * rd, 93 + 2 * rd))
        e("s_cbranch_execz P1_B")
        assemble(rd)
        e("s_waitcnt lgkmcnt(4)")
        for i in range(4 * rd, 4 * rd + 4):
            e("v_lshl_add_u32 %s, %s, 4, %s" % (vr(HA + i), vr(RK + i), vr(HA + i)))
        for i in range(4 * rd, 4 * rd + 4):
            e("ds_write_b128 %s, %s offset:%d" % (vr(HA + i), vr(EA + 4 * i, 4), RECB))
    lab("P1_B")
    e("s_mov_b64 exec, -1")
    if PUB == 2: e(pub)
    late_loads()
    PA = tA; PW_ = tB; PC2 = ST
    e("v_bfe_u32 %s, %s, 1, 7" % (vr(tC), vr(TID)))
    e("v_and_b32 %s, 1, %s" % (vr(tD), vr(TID)))
    e("v_lshlrev_b32 %s, 13, %s" % (vr(PA), vr(tC)))
    e("v_lshl_or_b32 %s, %s, 4, %s" % (vr(PA), vr(tD), vr(PA)))
    e("s_lshl_b32 s97, %s, 5" % sr(sBin))
    e("s_add_u32 s96, s97, 0x100000")
    poll = ["buffer_load_dwordx4 %s, %s, %s, s97 offen %s" % (vr(PC_, 4), vr(PA), sr(SOFS, 4), PLF),
            "buffer_load_dwordx4 %s, %s, %s, s96 offen %s" % (vr(PC2, 4), vr(PA), sr(SOFS, 4), PLF)]
    e("v_lshlrev_b32 %s, 12, %s" % (vr(PW_), vr(tD)))
    e("v_lshl_or_b32 %s, %s, 2, %s" % (vr(PW_), vr(tC), vr(PW_)))
    e("v_add_u32 %s, %d, %s" % (vr(PW_), PCB, vr(PW_)))
    e("v_add_u32 %s, %d, %s" % (vr(c2), XBB + 4096, vr(L16)))
    WL = r.WB; WH = r.WB + 16; WP = r.WV
    e("s_mov_b32 s92, 0x%x" % NEGLOG2E)
    EN = r.G[1]; Z = r.V[1]; P = r.V[1] + 4; D = r.V[1] + 8
    LA, CB, PREV, JB = [r.V[1] + 12 + i for i in range(4)]
    TOT, INC, C512, W4 = r.PS, r.PC, r.PT, r.PE
    M = r.S
    def expand_pre():
        for i in range(4): e("v_mov_b32 %s, 0" % vr(Z + i))
        e("v_lshl_add_u32 %s, %s, 5, %s" % (vr(LA), vr(lane), sr(sREC)))
        e("v_mul_u32_u24 %s, %d, %s" % (vr(CB), 4 * CH, vr(lane)))
        e("v_subrev_u32 %s, %s, %s" % (vr(CB), sr(sW0), vr(CB)))
        e("v_lshl_add_u32 %s, %s, 3, %s" % (vr(JB), vr(lane), sr(sW0)))
        e("v_mov_b32 %s, 512" % vr(C512))
        e("v_mov_b32 %s, 0" % vr(PREV))
        e("v_lshl_add_u32 %s, %s, 2, %s" % (vr(r.PL), vr(lane), sr(sREC)))
        e("v_lshl_add_u32 %s, %s, 4, %s" % (vr(r.PW), vr(lane), sr(sREC)))
        e("s_lshl_b32 s3, %s, 2" % sr(sW))
        e("v_mov_b32 %s, s3" % vr(W4))
    def zero_list():
        e("ds_write_b128 %s, %s offset:%d" % (vr(LA), vr(Z, 4), LOFF))
        e("ds_write_b128 %s, %s offset:%d" % (vr(LA), vr(Z, 4), LOFF + 16))
    expand_pre()
    e("s_lshl_b32 s3, %s, 10" % sr(sW)); e("s_add_u32 s3, s3, %d" % PCB)
    e("v_add_u32 %s, s3, %s" % (vr(r.RI), vr(L16)))
    e("s_waitcnt lgkmcnt(0)")
    e("s_barrier")
    stamp("scatter")
    if PUB == 1: e(pub)
    e("s_cmp_gt_u32 %s, 3" % sr(sW))
    e("s_cbranch_scc1 P1_D")
    e("s_cmp_ge_u32 s2, %d" % NC)
    e("s_cbranch_scc1 P1_N")
    if DELAY:
        e("s_and_b32 s3, s2, 15"); e("s_cmp_lg_u32 s3, 5"); e("s_cbranch_scc1 P1_ND")
        for _ in range(DELAY): e("s_sleep 100")
        lab("P1_ND")
    CO = DST
    for k in range(13):
        e("ds_read_b128 %s, %s offset:%d" % (vr(CO + 4 * k, 4), vr(T16), RECB + 4096 * k))
    e("v_add_u32 %s, 49152, %s" % (vr(T32), vr(T16)))
    for k in range(13):
        if k < 12: e("s_mov_b32 s3, %d" % (4096 * k))
        e("s_waitcnt lgkmcnt(%d)" % (12 - k))
        if k < 12: e("buffer_store_dwordx4 %s, %s, %s, s3 offen %s" % (vr(CO + 4 * k, 4), vr(T16), sr(SC_, 4), STF))
        else: e("buffer_store_dwordx4 %s, %s, %s, 0 offen %s" % (vr(CO + 4 * k, 4), vr(T32), sr(SC_, 4), STF))
    e("s_waitcnt vmcnt(13)")
    e("s_branch POLL_DONE")
    lab("P1_N")
    e("s_waitcnt vmcnt(0)")
    e("s_branch POLL_DONE")
    lab("P1_D")
    if int(opts.get('early', 1)):
        for t in poll: e(t)
    e("v_lshl_add_u32 %s, %s, 10, %s" % (vr(tC), vr(H), vr(J4)))
    e("s_add_u32 s3, s93, %d" % XBB)
    e("v_add_u32 %s, s3, %s" % (vr(tC), vr(tC)))
    e("s_waitcnt vmcnt(%d)" % ((8 if int(opts.get('early', 1)) else 6) + (PUB == 1) + XPF))
    RAW = DST
    for i in range(32):
        e("ds_read_b32 %s, %s offset:%d" % (vr(RAW + i), vr(tC), (i >> 4) * 8192 + ((i >> 3) & 1) * 2048 + (i & 7) * 128))
    e("s_bitcmp0_b32 %s, 0" % sr(sW))
    e("s_cselect_b32 s3, s92, 1.0")
    e("v_add_u32 %s, s93, %s" % (vr(tC), vr(c2)))
    for hf in range(2):
        e("s_waitcnt lgkmcnt(%d)" % (15 if hf == 0 else 4))
        if hf == 0: e("s_nop 0")
        for i in range(16):
            e("v_lshlrev_b32 %s, 16, %s" % (vr(WL + i), vr(RAW + 16 * hf + i)))
            e("v_and_b32 %s, 0xffff0000, %s" % (vr(WH + i), vr(RAW + 16 * hf + i)))
        for i in range(0, 32, 2):
            e("v_pk_mul_f32 %s, %s, s[2:3] op_sel:[0,1] op_sel_hi:[1,1]" % (vr(WL + i, 2), vr(WL + i, 2)))
        for i in range(16):
            e("v_cvt_pk_bf16_f32 %s, %s, %s" % (vr(WP + 16 * hf + i), vr(WL + 2 * i), vr(WL + 2 * i + 1)))
        for f in range(2):
            for s_ in range(2):
                e("ds_write_b128 %s, %s offset:%d" % (vr(tC), vr(WP + 16 * hf + 8 * f + 4 * s_, 4), f * 8192 + (2 * hf + s_) * 1024))
    if not int(opts.get('early', 1)):
        for t in poll: e(t)
    lab("POLL")
    e("s_waitcnt vmcnt(0)")
    e("v_xor_b32 %s, %s, %s" % (vr(c0), sr(sTagH), vr(PC_ + 2)))
    e("v_xor_b32 %s, %s, %s" % (vr(c1), sr(sTagH), vr(PC2 + 2)))
    e("v_or_b32 %s, %s, %s" % (vr(c0), vr(c0), vr(c1)))
    e("v_lshrrev_b32 %s, 16, %s" % (vr(c0), vr(c0)))
    e("v_xor_b32 %s, %s, %s" % (vr(c1), sr(sTag), vr(PC_ + 3)))
    e("v_xor_b32 %s, %s, %s" % (vr(tD), sr(sTag), vr(PC2 + 3)))
    e("v_or3_b32 %s, %s, %s, %s" % (vr(c0), vr(c0), vr(c1), vr(tD)))
    e("v_cmp_ne_u32 vcc, 0, %s" % vr(c0))
    e("s_cmp_eq_u64 vcc, 0")
    e("s_cbranch_scc1 POLL_OK")
    e("s_mov_b64 exec, vcc")
    for t in poll: e(t)
    e("s_sub_u32 %s, %s, 1" % (sr(sSpin), sr(sSpin)))
    e("s_cbranch_scc0 POLL")
    e("s_endpgm")
    lab("POLL_OK")
    e("s_mov_b64 exec, -1")
    for pc in (PC_, PC2):
        e("v_alignbit_b32 %s, %s, %s, 16" % (vr(pc + 3), vr(pc + 1), vr(pc)))
        e("v_alignbit_b32 %s, %s, %s, 16" % (vr(pc + 2), vr(pc + 2), vr(pc + 1)))
    for pc, off in ((PC_, 0), (PC2, 512)):
        for k, v in enumerate([pc, pc + 3, pc + 1, pc + 2]):
            e("ds_write_b32 %s, %s offset:%d" % (vr(PW_), vr(v), k * 1024 + off))
    lab("POLL_DONE")
    stamp("role")
    e("s_waitcnt lgkmcnt(0)")
    e("s_barrier")
    stamp("offs")
    mark(4)
    wr = []
    WA = r.G[0]; WU = r.G[1]
    for m, base in enumerate([WA, WU, r.WB, r.WV]):
        for u in range(8):
            uu = m * 8 + u
            wr.append("ds_read_b128 %s, %s offset:%d" % (vr(base + 4 * u, 4), vr(c2), (uu >> 2) * 8192 + (uu & 3) * 1024))
    e("ds_read_b128 %s, %s" % (vr(EN, 4), vr(r.RI)))
    zero_list()
    for t in wr[16:24]: e(t)
    e("s_or_b32 s3, s2, %s" % sr(sW))
    e("s_cbranch_scc1 NOBUMP")
    e("v_mov_b32 %s, %s" % (vr(r.RD), sr(sTag))); e("v_mov_b32 %s, %s" % (vr(r.RD + 1), sr(sE2)))
    e("v_lshlrev_b32 %s, 3, %s" % (vr(c1), vr(lane)))
    e("buffer_store_dwordx2 %s, %s, %s, 0 offen sc0 sc1" % (vr(r.RD, 2), vr(c1), sr(SOUT, 4)))
    lab("NOBUMP")
    e("s_waitcnt lgkmcnt(10)")

    def xidx(g, t): return "ds_read_u16 %s, %s offset:%d" % (vr(r.XI + 2 * t), vr(r.PS), g * 512 + SOFF[t] + 8)
    def xm0(buf): return "s_add_u32 m0, %s, %d" % (sr(sXB), buf * 4096)
    def xdma(t): return "buffer_load_dwordx4 %s, %s, %s idxen offen offset:%d lds" % (vr(r.XI + 2 * t, 2), sr(SXI, 4), sr(sSO + t) if t < 3 else "0", t * 1024)
    def xread(buf, k): return "ds_read_b128 %s, %s offset:%d" % (vr(r.X + 4 * k, 4), vr(r.XA1 if k & 1 else r.XA0), buf * 4096 + (k >> 1) * 256)
    def t0read(g): return "ds_read_b32 %s, %s offset:%d" % (vr(r.T), vr(r.PE), g * 512)
    def tiread(g): return "ds_read_b32 %s, %s offset:%d" % (vr(r.TI), vr(r.PT), g * 512 + 8)
    def soread(g, t): return "ds_read_u8 %s, %s offset:%d" % (vr(r.SO + t), vr(r.PC), g * 512 + SOFF[t] + 12)
    def trread(t): return "ds_read_b64_tr_b16 %s, %s offset:%d" % (vr(r.S + 2 * t, 2), vr(r.SO + t), TS)
    def riread(blk, ri=None): return "ds_read_b32 %s, %s offset:%d" % (vr(r.RI if ri is None else ri), vr(r.PL), LOFF + blk * 256)
    def rload(rd, ri, fl=None): return "buffer_load_dwordx4 %s, %s, %s, 0 idxen %s" % (vr(rd, 4), vr(ri), sr(SRC, 4), RLF if fl is None else fl)
    retries = []
    def fixup(rd, ri, blk, name, tmp0, tmp1, kx):
        retries.append((name, rd, ri))
        return ["v_cmp_gt_u32 vcc, %s, %s" % (sr(sLim), vr(ri)),
                "s_mov_b64 exec, vcc",
                name + ":",
                "v_cmp_ne_u32 vcc, %s, %s" % (sr(sTag), vr(rd + 3)),
                "v_bfe_u32 %s, %s, 16, 2" % (vr(tmp0), vr(rd + 2)),
                "v_lshrrev_b32 %s, 15, %s" % (vr(tmp1), vr(rd + 2)),
                "v_add_u32 %s, 1, %s" % (vr(tmp0), vr(tmp0)),
                "v_and_or_b32 %s, %s, 24, 3" % (vr(tmp1), vr(tmp1)),
                "s_cmp_lg_u64 vcc, 0",
                "v_lshlrev_b32 %s, %s, %s" % (vr(rd + 3), vr(tmp1), vr(tmp0)),
                "s_cbranch_scc1 %s_R" % name,
                "s_mov_b64 exec, -1",
                "v_bitop3_b32 %s, %s, %s, %s bitop3:0x6a" % (vr(rd + 2), vr(rd + 2), sr(sKm), vr(kx)),
                "ds_write_b128 %s, %s offset:%d" % (vr(r.PW), vr(rd, 4), blk * 1024)]
    def emit(lst):
        for t in lst:
            if t.endswith(":"): L.append(t)
            else: e(t)
    KX = c2 + 0

    lab("EXPAND")
    sd2 = "dst_sel:DWORD dst_unused:UNUSED_PAD src0_sel:WORD_1 src1_sel:WORD_0"
    sd = "dst_sel:DWORD dst_unused:UNUSED_PAD src0_sel:WORD_0 src1_sel:DWORD"
    for i in range(3): e("v_sub_u32_sdwa %s, %s, %s %s" % (vr(P + 1 + i), vr(EN + i), vr(EN + i), sd2))
    e("v_sub_u32_sdwa %s, %s, %s %s" % (vr(INC), vr(EN + 3), vr(EN + 3), sd2))
    e("v_add_u32 %s, %s, %s" % (vr(P + 2), vr(P + 1), vr(P + 2)))
    e("v_add_u32 %s, %s, %s" % (vr(P + 3), vr(P + 2), vr(P + 3)))
    e("v_add_u32 %s, %s, %s" % (vr(INC), vr(P + 3), vr(INC)))
    fill = ["v_add_u32 %s, %s, %s" % (vr(TOT), sr(sW0), vr(INC))]
    fill += ["v_add_u32_sdwa %s, %s, %s %s" % (vr(D + i), vr(EN + i), vr(CB), sd) for i in range(4)]
    fill += ["v_add_u32 %s, %d, %s" % (vr(D + i), i * CH, vr(D + i)) for i in range(1, 4)]
    fill += ["v_sub_u32 %s, %s, %s" % (vr(P + i), vr(P + i), vr(TOT)) for i in range(1, 4)]
    scan64("v_add_u32", INC, fill)
    e("v_sub_u32 %s, %s, %s" % (vr(P), vr(INC), vr(TOT)))
    e("v_readlane_b32 %s, %s, 63" % (sr(sTot), vr(INC)))
    for i in range(1, 4):
        e("v_add_u32 %s, %s, %s" % (vr(P + i), vr(INC), vr(P + i)))
    for i in range(4):
        e("v_sub_u32 %s, %s, %s" % (vr(D + i), vr(D + i), vr(P + i)))
        e("v_med3_i32 %s, %s, 0, %s" % (vr(P + i), vr(P + i), vr(C512)))
        e("v_lshl_add_u32 %s, %s, 2, %s" % (vr(P + i), vr(P + i), sr(sREC)))
    for i in range(4):
        e("ds_max_u32 %s, %s offset:%d" % (vr(P + i), vr(D + i), LOFF))
    e("ds_read_b128 %s, %s offset:%d" % (vr(M, 4), vr(LA), LOFF))
    e("ds_read_b128 %s, %s offset:%d" % (vr(M + 4, 4), vr(LA), LOFF + 16))
    e("s_lshl_b32 s3, %s, 3" % sr(sTot)); e("s_or_b32 s3, s3, %s" % sr(sW))
    e("v_mov_b32 %s, s3" % vr(TOT))
    e("s_mov_b64 exec, 1")
    e("ds_write_b32 %s, %s offset:%d" % (vr(W4), vr(TOT), TOTA))
    e("s_mov_b64 exec, -1")
    e("s_cmp_eq_u32 %s, 0" % sr(sFirst))
    e("s_cbranch_scc1 EXP_B")
    for t in wr[24:32]: e(t)
    e("s_waitcnt lgkmcnt(9)")
    e("s_branch EXP_C")
    lab("EXP_B")
    e("s_waitcnt lgkmcnt(1)")
    lab("EXP_C")
    e("v_max3_u32 %s, %s, %s, %s" % (vr(INC), vr(M), vr(M + 1), vr(M + 2)))
    e("v_max3_u32 %s, %s, %s, %s" % (vr(INC), vr(INC), vr(M + 3), vr(M + 4)))
    e("v_max3_u32 %s, %s, %s, %s" % (vr(INC), vr(INC), vr(M + 5), vr(M + 6)))
    e("v_max_u32 %s, %s, %s" % (vr(INC), vr(INC), vr(M + 7)))
    scan64("v_max_u32", INC, ["v_max_u32 %s, %s, %s" % (vr(M + k), vr(M + k - 1), vr(M + k)) for k in range(1, 8)])
    e("s_nop 1")
    e("v_mov_b32_dpp %s, %s wave_shr:1 row_mask:0xf bank_mask:0xf" % (vr(PREV), vr(INC)))
    for k in range(8):
        e("v_max_u32 %s, %s, %s" % (vr(M + k), vr(PREV), vr(M + k)))
        e("v_add3_u32 %s, %s, %s, %d" % (vr(M + k), vr(M + k), vr(JB), k))
    e("ds_write_b128 %s, %s offset:%d" % (vr(LA), vr(M, 4), LOFF))
    e("ds_write_b128 %s, %s offset:%d" % (vr(LA), vr(M + 4, 4), LOFF + 16))
    RI1 = r.TI; RD1 = r.S; K0 = r.T; F0 = r.XI; F1 = r.XI + 2
    e(riread(0)); e(riread(1, RI1))
    e("v_lshrrev_b32 %s, 3, %s" % (vr(c0), vr(lane)))
    e("v_lshlrev_b32 %s, 2, %s" % (vr(c0), vr(c0)))
    e("v_and_b32 %s, 7, %s" % (vr(c1), vr(lane)))
    e("v_lshlrev_b32 %s, 3, %s" % (vr(r.XI + 4), vr(c1)))
    e("v_lshlrev_b32 %s, 2, %s" % (vr(c1), vr(c1)))
    e("v_mov_b32 %s, 0x4ffff" % vr(K0))
    e("s_waitcnt lgkmcnt(1)")
    e(rload(r.RD, r.RI, RL0))
    e("s_waitcnt lgkmcnt(0)")
    e(rload(RD1, RI1, RL0))
    for i in range(4): e("v_mov_b32 %s, 0" % vr(r.S + 4 + i))
    e("s_cmp_eq_u32 %s, 0" % sr(sFirst))
    e("s_cbranch_scc1 NOW")
    stamp("expand")
    e("s_sub_u32 s3, 7, %s" % sr(sW)); e("s_sub_u32 s97, %s, 4" % sr(sW))
    e("s_cmp_lt_u32 %s, 4" % sr(sW)); e("s_cselect_b32 s97, s3, s97")
    e("s_barrier")
    e("ds_read_b32 %s, %s offset:%d" % (vr(c0), vr(c0), TOTA))
    e("ds_read_b32 %s, %s offset:%d" % (vr(c1), vr(c1), TOTA))
    for s in wr[8:12]: e(s)
    e("s_waitcnt lgkmcnt(4)")
    e("v_cmp_lt_u32 vcc, %s, %s" % (vr(c1), vr(c0)))
    e(wr[12]); e(wr[13])
    e("v_lshrrev_b64 %s, %s, vcc" % (vr(r.SO, 2), vr(r.XI + 4)))
    e("v_and_b32 %s, 0xff, %s" % (vr(r.SO), vr(r.SO)))
    e("v_bcnt_u32_b32 %s, %s, 0" % (vr(r.SO), vr(r.SO)))
    e("v_cmp_eq_u32 vcc, s97, %s" % vr(r.SO))
    e("s_ff1_i32_b64 s97, vcc")
    e("v_readlane_b32 %s, %s, s97" % (sr(sTot), vr(c1)))
    e("s_lshl_b32 %s, s97, 11" % sr(sXT)); e("s_add_u32 %s, %s, %d" % (sr(sXT), sr(sXT), XTB))
    def xtile(mapreg, dst):
        e("v_add_u32 %s, %s, %s" % (vr(mapreg), sr(sXT), vr(mapreg)))
        tm = [mapreg, c0, c1, r.SO]
        for s in range(1, 4): e("v_xor_b32 %s, %d, %s" % (vr(tm[s]), 32 * s, vr(mapreg)))
        for s in range(4): e("ds_read_b128 %s, %s" % (vr(dst + 4 * s, 4), vr(tm[s])))
    xtile(FU, r.AT)
    e(wr[14]); e(wr[15])
    xtile(FA, r.X)
    for s in wr[0:8]: e(s)
    WT = r.ACC[0]
    for i in range(4):
        e("v_lshlrev_b32 %s, 16, %s" % (vr(WT + i), vr(WCR + i)))
        e("v_and_b32 %s, 0xffff0000, %s" % (vr(WT + 4 + i), vr(WCR + i)))
    for i in range(8):
        e("v_mul_f32 %s, s92, %s" % (vr(WT + i), vr(WT + i)))
    for i in range(4):
        e("v_cvt_pk_bf16_f32 %s, %s, %s" % (vr(WCR + i), vr(WT + 2 * i), vr(WT + 2 * i + 1)))
    e("s_lshr_b32 %s, %s, 3" % (sr(sTot), sr(sTot)))
    e("s_lshl_b32 %s, s97, 13" % sr(sREC)); e("s_add_u32 %s, %s, %d" % (sr(sREC), sr(sREC), RECB))
    e("s_lshl_b32 %s, %s, 3" % (sr(sT), sr(sBin))); e("s_add_u32 %s, %s, s97" % (sr(sT), sr(sT)))
    lab("NOW")
    e("v_bfe_u32 %s, %s, 2, 2" % (vr(c0), vr(lane)))
    e("v_lshrrev_b32 %s, 5, %s" % (vr(c1), vr(lane)))
    e("v_lshl_or_b32 %s, %s, 3, %s" % (vr(c0), vr(c1), vr(c0)))
    e("v_lshl_add_u32 %s, %s, 4, %s" % (vr(r.PS), vr(c0), sr(sREC)))
    e("v_and_b32 %s, 3, %s" % (vr(c0), vr(lane)))
    e("v_add_u32 %s, %s, %s" % (vr(r.PC), vr(c0), vr(r.PS)))
    e("v_and_b32 %s, 31, %s" % (vr(c0), vr(lane)))
    e("v_lshl_add_u32 %s, %s, 4, %s" % (vr(r.PT), vr(c0), sr(sREC)))
    e("v_lshl_add_u32 %s, %s, 2, %s" % (vr(r.PE), vr(c1), vr(r.PT)))
    e("s_min_u32 %s, %s, %s" % (sr(sTot), sr(sTot), sr(sLim)))
    e("s_sub_u32 s3, %s, %s" % (sr(sTot), sr(sW0)))
    e("s_min_u32 s3, s3, 512")
    e("s_add_u32 s3, s3, 31"); e("s_lshr_b32 s3, s3, 5")
    e("s_max_u32 s3, s3, 1")
    e("s_sub_u32 %s, s3, 1" % sr(sNG))
    e("s_mov_b32 %s, 2" % sr(sBLK))
    e("s_mov_b32 m0, %s" % sr(sXB))
    e("s_waitcnt vmcnt(1)")
    emit(fixup(r.RD, r.RI, 0, "FX0", F0, F1, K0))
    e("s_waitcnt vmcnt(0)")
    emit(fixup(RD1, RI1, 1, "FX1", F0, F1, K0))
    e("v_lshl_add_u32 %s, %s, 2, %s" % (vr(r.PL), vr(lane), sr(sREC)))
    e("v_lshl_add_u32 %s, %s, 4, %s" % (vr(r.PW), vr(lane), sr(sREC)))
    e("v_mov_b32 %s, 0x4ffff" % vr(KX))
    e("s_waitcnt lgkmcnt(0)")
    e("s_cmp_eq_u32 %s, 0" % sr(sFirst))
    e("s_cbranch_scc1 NOB")
    e("s_barrier")
    lab("NOB")
    stamp("rec")
    for t in range(4): e(xidx(0, t))
    e(riread(2))
    e("s_waitcnt lgkmcnt(1)")
    for t in range(4): e(xdma(t))
    for t in range(4): e(xidx(1, t))
    e(t0read(0)); e(tiread(0))
    ua = []
    for f in range(2):
        for s in range(4):
            ua.append(mfma(r.ACC[f], r.AT + 4 * s, WU + 16 * f + 4 * s, None if s == 0 else r.ACC[f]))
    e("s_cbranch_scc1 NOW2")
    for t in ua[:4]: e(t)
    lab("NOW2")
    e(xm0(1))
    e("s_waitcnt lgkmcnt(2)")
    for t in range(4): e(xdma(t))
    e(rload(r.RD, r.RI, RL2))
    for t in range(4): e(xidx(2, t))
    e("s_cmp_eq_u32 %s, 0" % sr(sFirst))
    e("s_cbranch_scc1 NOW3")
    for t in ua[4:]: e(t)
    for f in range(2):
        for s in range(4):
            e(mfma(WU + 16 * f, r.X + 4 * s, WA + 16 * f + 4 * s, None if s == 0 else WU + 16 * f))
    tile_range()
    for i in range(8):
        e("v_cvt_pk_bf16_f32 %s, %s, %s" % (vr(r.U + i), vr(r.ACC[0] + i), vr(r.ACC[1] + i)))
    e(mfma(r.ACC[0], r.S + 4, r.S + 4, None)); e(mfma(r.ACC[1], r.S + 4, r.S + 4, None))
    e("s_min_u32 %s, %s, %d" % (sr(sEnd), sr(sEnd), N_NODES))
    e("s_sub_u32 s3, %s, %s" % (sr(sEnd), sr(sStart))); e("s_lshl_b32 s3, s3, 7")
    e("s_lshl_b32 s97, %s, 7" % sr(sStart))
    srd(SOUT, 22, "s3", "s97")
    for f in range(2):
        for i in range(8):
            e("v_cvt_pk_bf16_f32 %s, %s, %s" % (vr(r.AT + 8 * f + i), vr(WU + 16 * f + 2 * i) if i & 1 else "0", vr(WU + 16 * f + 2 * i + 1)))
    e("s_mov_b32 exec_hi, 0")
    for f in range(2):
        e("v_mov_b32 %s, %s" % (vr(r.AT + 8 * f), vr(WCR + 2 * f)))
        e("v_mov_b32 %s, %s" % (vr(r.AT + 8 * f + 4), vr(WCR + 2 * f + 1)))
    e("s_mov_b64 exec, -1")
    lab("NOW3")
    for i in range(4): e("v_mov_b32 %s, 0" % vr(r.SO + i))
    e(mfma(r.V[0], r.S + 4, r.S + 4, None))
    e(mfma(r.V[1], r.S + 4, r.S + 4, None))
    e(mfma(r.G[1], r.S + 4, r.S + 4, None).replace(", 0", ", 1.0"))
    e(mfma(r.S, r.SO, r.SO, None))
    stamp("atile")
    e("s_waitcnt vmcnt(5)")
    stamp("x0")
    for k in range(4): e(xread(0, k))
    e(xm0(0))
    for s_ in range(4):
        e("s_waitcnt lgkmcnt(%d)" % (3 - s_))
        e(mfma(r.G[0], r.X + 4 * s_, r.WB + 4 * s_, None if s_ == 0 else r.G[0]))
    e(xdma(0))
    e(smf(r.G[0], r.T, r.AT, r.TI, 1))
    e(xdma(1))
    e("s_nop 8")
    stamp("loop"); stamp("rtloop", True)
    if STAMP:
        e("s_add_u32 s100, %s, 1" % sr(sNG)); e("v_writelane_b32 v%d, s100, 28" % STV)
    mark(3)

    def I(text, lds=None, need=()): return dict(text=text, lds=lds, need=list(need))
    def oct_(base, o):
        o %= 4
        return base[o >> 1] + 8 * (o & 1)
    def C_(o, i): return "v_cvt_pk_bf16_f32 %s, %s, %s" % (vr(oct_(r.V, o) + i), vr(r.ETA + i), vr(oct_(r.V, o) + i))
    def R_(o, i): return "v_rcp_f32 %s, %s" % (vr(r.ETA + i), vr(oct_(r.G, o) + i))
    def E_(o, i): return "v_exp_f32 %s, %s" % (vr(oct_(r.G, o) + i), vr(oct_(r.G, o) + i))
    def A_(o):
        g_ = oct_(r.G, o)
        return ["v_pk_add_f32 %s, %s, 1.0 op_sel_hi:[1,0]" % (vr(g_ + i, 2), vr(g_ + i, 2)) for i in range(0, 8, 2)]
    def M_(o, pk=True):
        v_ = oct_(r.V, o)
        if pk: return ["v_pk_mul_f32 %s, %s, %s" % (vr(v_ + i, 2), vr(v_ + i, 2), vr(r.ETA + i, 2)) for i in range(0, 8, 2)]
        return ["v_mul_f32 %s, %s, %s" % (vr(v_ + i), vr(r.ETA + i), vr(v_ + i)) for i in range(8)]
    def red(f, hi): return smf(r.ACC[f], r.S + 4 * hi, r.V[f] + 8 * hi, r.SI)
    def gch(f): return [mfma(r.G[f], r.X + 4 * k, r.WB + 16 * f + 4 * k, None if k == 0 else r.G[f]) for k in range(4)] + [smf(r.G[f], r.T, r.AT + 8 * f, r.TI, 1)]
    def vch(f): return [mfma(r.V[f], r.X + 4 * k, r.WV + 16 * f + 4 * k, None if k == 0 else r.V[f]) for k in range(4)]
    CUT6 = [0, 3, 7, 11, 15, 19]; CUT5 = [0, 4, 9, 13, 18]
    def sub(s_, g):
        nb = (g + 1) & 1
        tail = []
        if s_ == 0:
            mm = [I(red(0, 1), need=['S3'])] + [I(t) for t in vch(0)]
            aux = [[I(soread(g, 0), lds='SO0')], [I(xdma(2)), I(soread(g, 1), lds='SO1')], [I(xdma(3))],
                   [I(soread(g, 2), lds='SO2')], [I(soread(g, 3), lds='SO3')]]
            if g == 1: aux[3].insert(0, I(rload(r.RD, r.RI), need=['RI']))
        elif s_ == 1:
            mm = [I(red(1, 0))] + [I(t) for t in gch(1)]
            aux = [[I(trread(0), lds='S0', need=['SO1'])], [I(trread(1), lds='S1')], [I(xidx(g + 3, 0), lds='XI0')], [I(xidx(g + 3, 1), lds='XI1')],
                   [I(xidx(g + 3, 2), lds='XI2'), I(xidx(g + 3, 3), lds='XI3')], [I(t0read(g + 1), lds='T0')]]
        elif s_ == 2:
            mm = [I(red(1, 1))] + [I(t) for t in vch(1)]
            aux = [[I("s_waitcnt vmcnt(%d)" % (4 if g == 0 else 5), need=['XI3']), I(tiread(g + 1), lds='TI')]] + [[I(xread(nb, k), lds='X%d' % k)] for k in range(4)]
            if g == 0:
                fx = fixup(r.RD, r.RI, 2, "FXL", c0, c1, KX)
                aux[3].insert(0, I("s_cmp_gt_u32 %s, 7" % sr(sBLK)))
                tail = [I("s_cbranch_scc1 FXL_S")] + [I(t) for t in fx] + [I("FXL_S:")]
        else:
            gc = gch(0)
            mm = [I(red(0, 0), need=['S1'])] + [I(gc[k], need=['X%d' % k]) for k in range(4)] + [I(gc[4], need=['T0', 'TI'])]
            aux = [[I(trread(2), lds='S2', need=['X1'])], [I(trread(3), lds='S3')], [I("s_waitcnt", need=['X3'])], [I(xm0(nb))],
                   [I("s_sub_u32 %s, %s, 1" % (sr(sNG), sr(sNG))), I(xdma(0))], [I("s_waitcnt", need=['S3']), I(xdma(1))]]
            if g == 0:
                aux[3].append(I(riread(3), lds='RI'))
                aux[1].insert(0, I("s_add_u32 %s, %s, 1" % (sr(sBLK), sr(sBLK))))
            else:
                tail = [I("v_lshl_add_u64 %s, %s, 0, %s" % (vr(r.PS, 2), vr(r.PS, 2), sr(sINC, 2))),
                        I("v_lshl_add_u64 %s, %s, 0, %s" % (vr(r.PT, 2), vr(r.PT, 2), sr(sINC, 2))),
                        I("v_lshl_add_u64 %s, %s, 0, %s" % (vr(r.PL, 2), vr(r.PL, 2), sr(sINC2, 2)))]
        aux[0].insert(0, I("s_setprio %d" % (0 if str(s_) in LOWS else 1)))
        aux[-1].insert(0, I("s_setprio 3"))
        cut = CUT6 if len(mm) == 6 else CUT5
        va = []
        for i in range(8): va += [C_(s_ - 2, i), R_(s_ - 1, i), E_(s_, i)]
        out = []
        for k, t in enumerate(va):
            if k in cut:
                j = cut.index(k); out.append(mm[j]); out.extend(aux[j])
            out.append(I(t))
        return out + tail + [I(t) for t in M_(s_ - 1) + A_(s_)]
    body = []
    for g in range(2):
        for s_ in range(4): body += sub(s_, g)
        body.append(I("s_cbranch_scc1 DRAIN" if g == 0 else "s_cbranch_scc0 LOOP"))
    issued = []; done = 0
    for pas in range(2):
        if pas == 1: lab("LOOP")
        for it in body:
            n = None
            for tag in it['need']:
                idxs = [k for k, t in enumerate(issued) if t == tag]
                if not idxs: continue
                k = idxs[-1]
                if k >= done:
                    n = len(issued) - 1 - k
                    done = k + 1
            tx = it['text']
            if n is not None:
                assert n <= 15
                if tx.startswith("s_waitcnt"): tx += " lgkmcnt(%d)" % n
                elif pas == 1: e("s_waitcnt lgkmcnt(%d)" % n)
            if pas == 1 and tx != "s_waitcnt": emit([tx])
            if it['lds']: issued.append(it['lds'])
    lab("DRAIN")
    stamp("loopend"); stamp("rtloopend", True)
    XR = r.X; EA_ = r.X + 8
    pre = ["v_lshrrev_b32 %s, 5, %s" % (vr(c0), vr(lane)),
           "v_and_b32 %s, 31, %s" % (vr(c1), vr(lane)),
           "v_lshlrev_b32 %s, 2, %s" % (vr(c1), vr(c1)),
           "v_mul_u32_u24 %s, 0x240, %s" % (vr(c2), vr(c0)),
           "v_xor_b32 %s, %s, %s" % (vr(c2), vr(c2), vr(c1)),
           "v_add_u32 %s, %s, %s" % (vr(c2), sr(sXT), vr(c2))]
    e("s_setprio 2")
    e("s_waitcnt lgkmcnt(0)")
    e(red(0, 1))
    for i in range(8): e(C_(2, i)); e(R_(3, i))
    e(pre.pop(0)); e(pre.pop(0))
    e(red(1, 0))
    for t in M_(3, False): e(t)
    for i in range(8): e(C_(3, i))
    for t in pre: e(t)
    e(red(1, 1))
    e("s_add_u32 %s, %s, 512" % (sr(sW0), sr(sW0)))
    e("s_cmp_lt_u32 %s, %s" % (sr(sW0), sr(sTot)))
    e("s_cbranch_scc1 MORE")
    for q_ in range(4):
        if q_: e("v_xor_b32 %s, %d, %s" % (vr(EA_), 16 * q_, vr(c2)))
        e("ds_read_b32 %s, %s offset:%d" % (vr(XR + q_), vr(EA_ if q_ else c2), q_ * 128))
        e("ds_read_b32 %s, %s offset:%d" % (vr(XR + q_ + 4), vr(EA_ if q_ else c2), q_ * 128 + 1024))
    e("v_lshlrev_b32 %s, 2, %s" % (vr(c0), vr(c0)))
    e("v_subrev_u32 %s, %s, %s" % (vr(c0), sr(sStart), vr(c0)))
    e("v_lshl_add_u32 %s, %s, 7, %s" % (vr(c0), vr(c0), vr(c1)))
    for q_ in range(8):
        e("v_add_u32 %s, %d, %s" % (vr(EA_ + q_), (8 * (q_ >> 2) + (q_ & 3)) * 128, vr(c0)))
        e("v_and_b32 %s, 0x7ff, %s" % (vr(EA_ + q_), vr(EA_ + q_)))
    e("s_mov_b32 s3, 0x358637bd")
    for f in range(2):
        for q_ in range(8):
            e("v_add_f32 %s, s3, %s" % (vr(r.ACC[f] + q_), vr(r.ACC[f] + q_)))
        for q_ in range(8):
            e("v_rcp_f32 %s, %s" % (vr(r.ACC[f] + q_), vr(r.ACC[f] + q_)))
    e("s_waitcnt lgkmcnt(0)")
    for q_ in range(8):
        for f in range(2):
            u = r.ACC[f] + q_
            if f == 0:
                e("v_lshlrev_b32 %s, 16, %s" % (vr(c0), vr(r.U + q_))); e("v_lshlrev_b32 %s, 16, %s" % (vr(c1), vr(XR + q_)))
            else:
                e("v_and_b32 %s, 0xffff0000, %s" % (vr(c0), vr(r.U + q_))); e("v_and_b32 %s, 0xffff0000, %s" % (vr(c1), vr(XR + q_)))
            e("v_fmac_f32 %s, %s, %s" % (vr(c0), vr(u), vr(u + 8)))
            e("v_max_f32 %s, 0, %s" % (vr(c0), vr(c0)))
            e("v_add_f32 %s, %s, %s" % (vr(u), vr(c1), vr(c0)))
        e("v_cvt_pk_bf16_f32 %s, %s, %s" % (vr(r.U + q_), vr(r.ACC[0] + q_), vr(r.ACC[1] + q_)))
        e("buffer_store_dword %s, %s, %s, 0 offen %s" % (vr(r.U + q_), vr(EA_ + q_), sr(SOUT, 4), OSF))
    if STAMP:
        e("s_waitcnt vmcnt(0)")
        stamp("end"); stamp("rtend", True)
        e("s_sub_u32 s100, %d, %s" % (SPINMAX, sr(sSpin))); e("v_writelane_b32 v%d, s100, 29" % STV)
        e("s_getreg_b32 s100, hwreg(HW_REG_HW_ID)"); e("v_writelane_b32 v%d, s100, 30" % STV)
        e("s_lshl_b32 s3, s2, 3"); e("s_add_u32 s3, s3, %s" % sr(sW)); e("s_lshl_b32 s3, s3, 7"); e("s_add_u32 s3, s3, 0x%x" % WS_DBG)
        srd(SA, 26, 128, "s3")
        e("v_lshlrev_b32 %s, 2, %s" % (vr(c0), vr(lane)))
        e("buffer_store_dword v%d, %s, %s, 0 offen" % (STV, vr(c0), sr(SA, 4)))
    if DW:
        e("s_waitcnt vmcnt(0) lgkmcnt(0)")
        lab("SPIN")
        e("s_memrealtime s[100:101]"); e("s_waitcnt lgkmcnt(0)")
        e("s_sub_u32 s100, s100, s98"); e("s_cmp_lt_u32 s100, 6000"); e("s_cbranch_scc1 SPIN")
    lab("K_END")
    e("s_endpgm")
    for name, rd, ri in retries:
        lab(name + "_R")
        e("s_mov_b64 exec, vcc")
        if int(opts.get('rsl', 0)): e("s_sleep %d" % int(opts.get('rsl', 0)))
        e(rload(rd, ri, "sc0 sc1"))
        e("s_sub_u32 %s, %s, 1" % (sr(sSpin), sr(sSpin)))
        e("s_waitcnt vmcnt(0)")
        e("s_cbranch_scc0 %s" % name)
        e("s_endpgm")
    lab("MORE")
    e("s_mov_b32 %s, 0" % sr(sFirst))
    e("s_waitcnt vmcnt(0) lgkmcnt(0)")
    e("s_nop 15")
    e("s_lshr_b32 s3, %s, 2" % sr(sT)); e("s_lshl_b32 s3, s3, 4")
    e("s_and_b32 s97, %s, 3" % sr(sT)); e("s_lshl_b32 s97, s97, 1"); e("s_add_u32 s3, s3, s97")
    e("v_lshl_add_u32 %s, %s, 15, s3" % (vr(c0), vr(lane)))
    for i in range(4):
        e("buffer_load_ushort %s, %s, %s, 0 offen sc0 sc1" % (vr(EN + i), vr(c0), sr(SOFS, 4)))
        e("buffer_load_ushort %s, %s, %s, 0 offen offset:2 sc0 sc1" % (vr(D + i), vr(c0), sr(SOFS, 4)))
        e("v_add_u32 %s, 8192, %s" % (vr(c0), vr(c0)))
    expand_pre()
    zero_list()
    e("s_waitcnt vmcnt(0)")
    for i in range(4): e("v_lshl_or_b32 %s, %s, 16, %s" % (vr(EN + i), vr(D + i), vr(EN + i)))
    e("s_branch EXPAND")
    return r.n

hdr = open('cdna_kernels/%s.s.ref' % NAME).read().split('\n')
hdr = [l for l in hdr if l.startswith(';   offset') or l.startswith('; Kernarg')]
L.append('.amdgcn_target "amdgcn-amd-amdhsa--gfx950"')
L.append('.text')
nv = kernel()
L.append('.section .rodata,"a"')
L += [".p2align 6", ".amdhsa_kernel %s" % KN, "  .amdhsa_next_free_vgpr 256", "  .amdhsa_next_free_sgpr 102",
      "  .amdhsa_accum_offset 256", "  .amdhsa_group_segment_fixed_size 0", "  .amdhsa_kernarg_size 96",
      "  .amdhsa_user_sgpr_count 2", "  .amdhsa_user_sgpr_kernarg_segment_ptr 1", "  .amdhsa_system_sgpr_workgroup_id_x 1",
      ".end_amdhsa_kernel"]
if opts.get('list', '0') == '1':
    top = hdr + ["; @launch kernel=%s grid=(256,1,1) block=(512,1,1) lds=%d" % (KN, LDS_BYTES)]
else:
    top = hdr + ["; @launch grid=(256,1,1) block=(512,1,1) lds=%d" % LDS_BYTES]
open(OUT, 'w').write("\n".join(top + L) + "\n")
if STAMP: open('stamps.txt', 'w').write(" ".join(names))
print("vgprs:", nv, "lines:", len(L))
```

```python
import sys, re

NAME = "standalone__edge_featured_mpnn_gatedgcn__graph"
KN = NAME + "_kernel"
N_NODES = 25000
CH = 3200
NC = 250
TMUL = 5368
WS_REC = 0
WS_OFF = 0xD00000
WS_EPO = 0xF00000
WS_DBG = 0x1000000
NEGLOG2E = 0xBFB8AA3B
SPINMAX = 200000

opts = dict(a.split('=') for a in sys.argv[1:] if '=' in a)
OUT = opts.get('out', 'cdna_kernels/%s.s' % NAME)
STAMP = int(opts.get('stamp', 0))
STF = opts.get('stf', 'sc0+sc1').replace('+', ' ')
LDF = opts.get('ldf', 'nt').replace('+', ' ')
RLF = opts.get('rlf', '').replace('+', ' ')
RL0 = opts.get('rl0', '').replace('+', ' ')
RL2 = opts.get('rl2', '').replace('+', ' ')
XPF = int(opts.get('xpf', 0))
PLF = opts.get('plf', 'sc1').replace('+', ' ')
OSF = opts.get('osf', '').replace('+', ' ')
DW = int(opts.get('dw', 0))
LOWS = opts.get('lows', '')
DELAY = int(opts.get('delay', 0))

L = []
def e(s): L.append("    " + s)
def lab(s): L.append(s + ":")
def vr(a, n=1): return "v%d" % a if n == 1 else "v[%d:%d]" % (a, a + n - 1)
def sr(a, n=1): return "s%d" % a if n == 1 else "s[%d:%d]" % (a, a + n - 1)

DPPS = ["row_shr:1 row_mask:0xf bank_mask:0xf", "row_shr:2 row_mask:0xf bank_mask:0xf",
        "row_shr:4 row_mask:0xf bank_mask:0xf", "row_shr:8 row_mask:0xf bank_mask:0xf",
        "row_bcast:15 row_mask:0xa bank_mask:0xf", "row_bcast:31 row_mask:0xc bank_mask:0xf"]
def scan64(op, v, fill=()):
    fill = list(fill)
    for m in DPPS:
        n = 0
        while n < 2 and fill:
            e(fill.pop(0)); n += 1
        if n < 2: e("s_nop %d" % (1 - n))
        e("%s_dpp %s, %s, %s %s" % (op, vr(v), vr(v), vr(v), m))
    for f in fill: e(f)

def srd(d, base, nbytes, add=None, stride=0, sub=None):
    if sub is not None:
        e("s_sub_u32 %s, %s, %s" % (sr(d), sr(base), sub))
        e("s_subb_u32 %s, %s, 0" % (sr(d + 1), sr(base + 1)))
        e("s_and_b32 %s, %s, 0xffff" % (sr(d + 1), sr(d + 1)))
    elif add is None:
        e("s_mov_b32 %s, %s" % (sr(d), sr(base)))
        e("s_and_b32 %s, %s, 0xffff" % (sr(d + 1), sr(base + 1)))
    else:
        e("s_add_u32 %s, %s, %s" % (sr(d), sr(base), add))
        e("s_addc_u32 %s, %s, 0" % (sr(d + 1), sr(base + 1)))
        e("s_and_b32 %s, %s, 0xffff" % (sr(d + 1), sr(d + 1)))
    if stride:
        e("s_or_b32 %s, %s, 0x%x" % (sr(d + 1), sr(d + 1), stride << 16))
    e("s_mov_b32 %s, %s" % (sr(d + 2), nbytes if isinstance(nbytes, str) else "0x%x" % nbytes))
    e("s_mov_b32 %s, 0x20000" % sr(d + 3))

STV = 255
names = []
def stamp(name, real=False):
    if not STAMP: return
    if 'only' in opts and name not in opts['only'].split(',') + ['rt0', 'start', 'loop', 'rtloop', 'loopend', 'rtloopend', 'end', 'rtend']: return
    k = len(names); names.append(name)
    e("s_mem%stime s[100:101]" % ("real" if real else ""))
    e("s_waitcnt lgkmcnt(0)")
    e("v_writelane_b32 v%d, s100, %d" % (STV, k))
def mark(*modes):
    if DW in modes: e("s_memrealtime s[98:99]"); e("s_waitcnt lgkmcnt(0)")

TS, TOTA, WTOT = 0, 64, 128
RECB = 1024
HIST = RECB + CH * 16
XTB = RECB + 65536
XBB = XTB + 16384
PCB = XBB + 65536
LDS_BYTES = PCB + 8192
LOFF = 8192 - 2048 - 16

class R: pass
def alloc():
    r = R(); p = 0
    def a(n, al=1):
        nonlocal p
        p = (p + al - 1) // al * al
        b = p; p += n
        return b
    r.LANE = a(1); r.SI = a(1)
    r.PS = a(1, 2); r.PC = a(1); r.PT = a(1, 2); r.PE = a(1); r.PL = a(1, 2); r.PW = a(1)
    r.XA0 = a(1); r.XA1 = a(1); r.TI = a(1); r.TMP = a(3); r.RI = a(1)
    r.SO = a(4, 2); r.XI = a(8, 2); r.T = a(4, 2); r.RD = a(4, 2); r.U = a(8, 2)
    r.S = a(8, 2); r.ETA = a(8, 2); r.X = a(16, 2)
    r.ACC = [a(16, 2), a(16, 2)]
    r.G = [a(16, 2), None]; r.V = [a(16, 2), None]
    r.G[1] = a(16, 2); r.V[1] = a(16, 2)
    r.WB = a(32, 2); r.WV = a(32, 2); r.AT = a(16, 2)
    r.n = p
    return r

def mfma(d, a, b, c):
    return "v_mfma_f32_32x32x16_bf16 %s, %s, %s, %s" % (vr(d, 16), vr(a, 4), vr(b, 4), "0" if c is None else vr(c, 16))
def smf(d, a, b, idx, abid=0):
    return "v_smfmac_f32_32x32x32_bf16 %s, %s, %s, %s%s" % (vr(d, 16), vr(a, 4), vr(b, 8), vr(idx), " abid:1" if abid else "")
SOFF = [0, 64, 256, 320]

def kernel():
    r = alloc()
    assert r.n <= 255, r.n
    SX, SXI, SOFS, SRC, SOUT, SA, SB, SC_ = 28, 32, 36, 40, 44, 48, 52, 56
    sW, sT, sStart, sEnd, sTot, sW0, sNG, sXB, sREC, sFirst, sBin, sMag, sBLK, sXT, sTag, sTagH, sSpin, sLim, sKm, sKx = range(60, 80)
    sINC = 80; sINC2 = 82; sSO = 84; sE2 = 88; sRET = 90
    lane = r.LANE
    c0, c1, c2 = r.TMP, r.TMP + 1, r.TMP + 2
    MAG = -(-(1 << 41) // 671)
    for t in range(2049):
        n = t * 8192 + 670
        assert (n * MAG) >> 41 == n // 671
    def tile_range():
        e("s_lshl_b32 s3, %s, 13" % sr(sT)); e("s_add_u32 s3, s3, 670")
        e("s_mul_hi_u32 %s, s3, %s" % (sr(sStart), sr(sMag))); e("s_lshr_b32 %s, %s, 9" % (sr(sStart), sr(sStart)))
        e("s_add_u32 s3, s3, 8192")
        e("s_mul_hi_u32 %s, s3, %s" % (sr(sEnd), sr(sMag))); e("s_lshr_b32 %s, %s, 9" % (sr(sEnd), sr(sEnd)))
    L.append(".globl %s" % KN); L.append(".p2align 8"); L.append(".type %s,@function" % KN); lab(KN)
    e("s_load_dwordx16 s[4:19], s[0:1], 0")
    e("s_load_dwordx8 s[20:27], s[0:1], 64")
    e("s_cmp_gt_u32 s2, 255")
    e("s_cbranch_scc1 K_END")
    e("s_setprio 3")
    mark(1)
    stamp("rt0", True); stamp("start")
    q = r.X
    TID = q; T16 = q + 1; T32 = q + 2; ONE = q + 3; ZER = q + 4
    DST = q + 8
    SRCV = q + 16
    EA = q + 24
    HA = q + 56
    RK = q + 64
    CN = q + 72
    ST = q + 76
    PC_ = q + 80
    tA, tB, tC, tD, tE, tF = [q + 84 + i for i in range(6)]
    EP = q + 90
    T16B = q + 92; T32B = q + 93
    assert q + 94 <= r.WB
    WRAW = r.AT
    WCR = r.ETA
    e("v_mov_b32 %s, v0" % vr(TID))
    e("v_lshrrev_b32 %s, 6, v0" % vr(tA))
    e("v_lshlrev_b32 %s, 4, v0" % vr(T16))
    e("v_readfirstlane_b32 %s, %s" % (sr(sW), vr(tA)))
    e("v_lshlrev_b32 %s, 5, v0" % vr(T32))
    e("v_and_b32 %s, 63, v0" % vr(lane))
    e("v_add_u32 %s, 8192, %s" % (vr(T16B), vr(T16)))
    e("v_add_u32 %s, 16384, %s" % (vr(T32B), vr(T32)))
    for i in range(4): e("v_mov_b32 %s, 0" % vr(ZER + i))
    e("v_mov_b32 %s, 1" % vr(ONE))
    e("ds_write_b128 %s, %s offset:%d" % (vr(T16), vr(ZER, 4), HIST))
    e("s_min_u32 s3, s2, %d" % (NC - 1))
    e("s_mul_i32 s92, s3, %d" % (CH * 4))
    e("s_lshl_b32 s93, s92, 1")
    e("s_cmp_lt_u32 s2, %d" % NC)
    e("s_cselect_b32 s94, %d, 0" % (CH * 4))
    e("s_cselect_b32 s95, %d, 0" % (CH * 8))
    e("s_cselect_b32 s96, %d, 0" % (CH // 4))
    e("s_and_b32 s3, s2, 7"); e("s_lshl_b32 s3, s3, 5"); e("s_lshr_b32 %s, s2, 3" % sr(sBin)); e("s_add_u32 %s, %s, s3" % (sr(sBin), sr(sBin)))
    e("s_lshl_b32 %s, %s, 13" % (sr(sREC), sr(sW)))
    e("s_add_u32 %s, %s, %d" % (sr(sXB), sr(sREC), XBB))
    e("s_add_u32 %s, %s, %d" % (sr(sREC), sr(sREC), RECB))
    e("s_lshl_b32 %s, %s, 3" % (sr(sT), sr(sBin))); e("s_add_u32 %s, %s, %s" % (sr(sT), sr(sT), sr(sW)))
    e("s_mov_b32 %s, 0x%x" % (sr(sMag), MAG))
    tile_range()
    e("s_waitcnt lgkmcnt(0)")
    srd(SA, 10, "s94", "s92")
    e("buffer_load_dwordx4 %s, %s, %s, 0 offen %s" % (vr(DST, 4), vr(T16), sr(SA, 4), LDF))
    e("buffer_load_dwordx4 %s, %s, %s, 0 offen %s" % (vr(DST + 4, 4), vr(T16B), sr(SA, 4), LDF))
    srd(SOUT, 26, 8, "0x%x" % WS_EPO)
    e("buffer_load_dwordx2 %s, %s, %s, 0 offen sc1" % (vr(EP, 2), vr(ZER), sr(SOUT, 4)))
    DF = int(opts.get('df', 2))
    SS, SE = (SB, SC_) if not DF else (SRC, SOFS)
    srd(SS, 8, "s94", "s92")
    srd(SE, 6, "s95", "s93")
    RL = ["buffer_load_dwordx4 %s, %s, %s, 0 offen %s" % (vr(SRCV, 4), vr(T16), sr(SS, 4), LDF),
          "buffer_load_dwordx4 %s, %s, %s, 0 offen %s" % (vr(SRCV + 4, 4), vr(T16B), sr(SS, 4), LDF)]
    for k in (2, 3, 0, 1):
        RL.append("buffer_load_dwordx4 %s, %s, %s, 0 offen offset:%d %s" % (vr(EA + 8 * k, 4), vr(T32B if k >> 1 else T32), sr(SE, 4), 16 * (k & 1), LDF))
    NE = int(opts.get('ne', 2))
    NE2 = int(opts.get('ne2', 0))
    for _ in range(NE): e(RL.pop(0))
    def rest_loads():
        for t in RL: e(t)
        if DF:
            srd(SOFS, 26, 256 * 8192, "0x%x" % WS_OFF)
            srd(SRC, 26, NC * CH, stride=16)
    if DF == 0: rest_loads()
    e("v_cmp_gt_u32 vcc, s96, %s" % vr(TID))
    e("s_mov_b64 s[92:93], vcc")
    e("v_add_u32 %s, 512, %s" % (vr(tA), vr(TID)))
    e("v_cmp_gt_u32 vcc, s96, %s" % vr(tA))
    e("s_mov_b64 s[94:95], vcc")
    e("s_and_b32 s3, %s, 3" % sr(sW))
    e("s_cmp_eq_u32 s3, 1"); e("s_cselect_b32 s12, s18, s12"); e("s_cselect_b32 s13, s19, s13")
    e("s_cmp_eq_u32 s3, 2"); e("s_cselect_b32 s12, s14, s12"); e("s_cselect_b32 s13, s15, s13")
    e("s_cmp_eq_u32 s3, 3"); e("s_cselect_b32 s12, s20, s12"); e("s_cselect_b32 s13, s21, s13")
    srd(SA, 12, 8192)
    srd(SB, 16, 512)
    srd(SX, 4, N_NODES * 128)
    H = r.SO
    XT0, XT1, J4, L16 = r.RD, r.RD + 1, r.RD + 2, r.RD + 3
    e("v_lshrrev_b32 %s, 5, %s" % (vr(H), vr(lane)))
    e("v_and_b32 %s, 31, %s" % (vr(J4), vr(lane)))
    e("v_lshlrev_b32 %s, 2, %s" % (vr(J4), vr(J4)))
    e("v_lshlrev_b32 %s, 4, %s" % (vr(L16), vr(lane)))
    e("v_lshrrev_b32 %s, 3, %s" % (vr(tA), vr(lane)))
    e("v_xor_b32 %s, %s, %s" % (vr(tB), vr(tA), vr(lane)))
    e("v_and_b32 %s, 7, %s" % (vr(tB), vr(tB)))
    e("v_lshlrev_b32 %s, 4, %s" % (vr(tB), vr(tB)))
    e("v_subrev_u32 %s, %s, %s" % (vr(tA), sr(sStart), vr(tA)))
    e("v_and_b32 %s, 15, %s" % (vr(tA), vr(tA)))
    e("v_xor_b32 %s, 8, %s" % (vr(tC), vr(tA)))
    e("v_add_u32 %s, %s, %s" % (vr(tA), sr(sStart), vr(tA)))
    e("v_add_u32 %s, %s, %s" % (vr(tC), sr(sStart), vr(tC)))
    e("v_lshl_add_u32 %s, %s, 7, %s" % (vr(XT0), vr(tA), vr(tB)))
    e("v_lshl_add_u32 %s, %s, 7, %s" % (vr(XT1), vr(tC), vr(tB)))
    def late_loads():
        e("s_cmp_lt_u32 %s, 4" % sr(sW))
        e("s_cbranch_scc1 LATE_B")
        e("s_and_b32 s93, %s, 3" % sr(sW)); e("s_lshl_b32 s93, s93, 14")
        e("s_add_u32 m0, s93, %d" % XBB)
        e("s_mov_b32 s3, 4096")
        for k in range(4):
            e("buffer_load_dwordx4 %s, %s, 0 offen offset:%d lds" % (vr(L16), sr(SA, 4), k * 1024))
        e("s_add_u32 m0, s93, %d" % (XBB + 8192))
        e("s_nop 0")
        for k in range(4):
            e("buffer_load_dwordx4 %s, %s, s3 offen offset:%d lds" % (vr(L16), sr(SA, 4), k * 1024))
        if XPF:
            e("s_lshr_b32 s3, s2, 3"); e("s_mul_i32 s3, s3, %d" % (782 * 128))
            e("s_lshr_b32 s94, s93, 1"); e("s_mul_i32 s94, s94, %d" % XPF); e("s_add_u32 s3, s3, s94")
            e("v_lshl_add_u32 %s, %s, 7, s3" % (vr(tF), vr(lane)))
            for k in range(XPF):
                e("buffer_load_dword %s, %s, %s, 0 offen" % (vr(tE), vr(tF), sr(SX, 4)))
                if k + 1 < XPF: e("v_add_u32 %s, 8192, %s" % (vr(tF), vr(tF)))
        lab("LATE_B")
        e("s_lshl_b32 s3, %s, 11" % sr(sW))
        e("s_add_u32 m0, s3, %d" % XTB)
        e("s_mov_b32 exec_hi, 0")
        for i in range(4):
            e("buffer_load_dword %s, %s, %s, 0 offen offset:%d" % (vr(WCR + i), vr(J4), sr(SB, 4), i * 128))
        e("s_mov_b64 exec, -1")
        e("buffer_load_dwordx4 %s, %s, 0 offen lds" % (vr(XT0), sr(SX, 4)))
        e("s_add_u32 m0, s3, %d" % (XTB + 1024))
        e("s_nop 0")
        e("buffer_load_dwordx4 %s, %s, 0 offen lds" % (vr(XT1), sr(SX, 4)))
    e("s_mul_i32 s3, s2, %d" % (CH * 16))
    NLATE = 0
    srd(SC_, 26, CH * 16, "s3")
    if not DF: srd(SOFS, 26, 256 * 8192, "0x%x" % WS_OFF)
    srd(SXI, 4, N_NODES, stride=128, sub="3072")
    if not DF: srd(SRC, 26, NC * CH, stride=16)
    e("s_mov_b32 %s, 1024" % sr(sINC)); e("s_mov_b32 %s, 1024" % sr(sINC + 1))
    e("s_mov_b32 %s, 256" % sr(sINC2)); e("s_mov_b32 %s, 1024" % sr(sINC2 + 1))
    e("s_mov_b32 %s, 3072" % sr(sSO)); e("s_mov_b32 %s, 2048" % sr(sSO + 1)); e("s_mov_b32 %s, 1024" % sr(sSO + 2))
    e("s_mov_b32 %s, %d" % (sr(sLim), NC * CH))
    e("s_mov_b32 %s, 0xfff0ffff" % sr(sKm))
    e("s_mov_b32 %s, 0" % sr(sW0)); e("s_mov_b32 %s, 1" % sr(sFirst)); e("s_mov_b32 %s, %d" % (sr(sSpin), SPINMAX))
    e("v_mov_b32 %s, 0x%x" % (vr(tA), (1 << 4) | (2 << 8) | (1 << 14) | (2 << 18)))
    e("v_lshlrev_b32 %s, 1, %s" % (vr(tB), vr(lane)))
    e("v_bfe_u32 %s, %s, %s, 2" % (vr(tA), vr(tA), vr(tB)))
    e("v_mul_u32_u24 %s, 0x8001, %s" % (vr(tA), vr(tA)))
    e("v_and_b32 %s, 0x10001, %s" % (vr(tA), vr(tA)))
    e("v_mul_u32_u24 %s, 0x3f80, %s" % (vr(tA), vr(tA)))
    e("v_lshlrev_b32 %s, 2, %s" % (vr(tB), vr(lane)))
    e("s_mov_b64 exec, 0x3ff")
    e("ds_write_b32 %s, %s offset:%d" % (vr(tB), vr(tA), TS))
    e("s_mov_b64 exec, -1")
    e("v_and_b32 %s, 3, %s" % (vr(c0), vr(lane)))
    e("v_bfe_u32 %s, %s, 4, 1" % (vr(c1), vr(lane)))
    e("v_mul_u32_u24 %s, 0x5555, %s" % (vr(r.SI), vr(c1)))
    e("v_or_b32 %s, 0x8888, %s" % (vr(r.SI), vr(r.SI)))
    e("v_xor_b32 %s, %s, %s" % (vr(c2), vr(c0), vr(H)))
    e("v_lshl_or_b32 %s, %s, 2, %s" % (vr(c2), vr(c1), vr(c2)))
    e("v_lshlrev_b32 %s, 4, %s" % (vr(r.XI + 1), vr(c2)))
    e("v_mov_b32 %s, %s" % (vr(r.XI + 3), vr(r.XI + 1)))
    e("v_xor_b32 %s, 32, %s" % (vr(r.XI + 5), vr(r.XI + 1)))
    e("v_mov_b32 %s, %s" % (vr(r.XI + 7), vr(r.XI + 5)))
    e("v_bfe_u32 %s, %s, 3, 2" % (vr(c2), vr(lane)))
    e("v_xor_b32 %s, %s, %s" % (vr(c2), vr(c2), vr(H)))
    e("v_lshlrev_b32 %s, 4, %s" % (vr(r.XA0), vr(c2)))
    e("v_lshl_or_b32 %s, %s, 6, %s" % (vr(r.XA0), vr(c0), vr(r.XA0)))
    e("v_bfe_u32 %s, %s, 3, 1" % (vr(c2), vr(lane)))
    e("v_lshl_or_b32 %s, %s, 9, %s" % (vr(r.XA0), vr(c2), vr(r.XA0)))
    e("v_bfe_u32 %s, %s, 2, 1" % (vr(tA), vr(lane)))
    e("v_lshl_or_b32 %s, %s, 10, %s" % (vr(r.XA0), vr(tA), vr(r.XA0)))
    e("v_lshl_or_b32 %s, %s, 11, %s" % (vr(r.XA0), vr(c1), vr(r.XA0)))
    e("v_xor_b32 %s, 32, %s" % (vr(r.XA1), vr(r.XA0)))
    e("v_add_u32 %s, %s, %s" % (vr(r.XA0), sr(sXB), vr(r.XA0)))
    e("v_add_u32 %s, %s, %s" % (vr(r.XA1), sr(sXB), vr(r.XA1)))
    FA, FU = r.SO + 2, r.SO + 3
    e("v_lshl_or_b32 %s, %s, 1, %s" % (vr(c2), vr(tA), vr(c2)))
    e("v_lshl_or_b32 %s, %s, 1, %s" % (vr(c2), vr(c2), vr(c1)))
    e("v_mad_u32_u24 %s, %s, 3, %s" % (vr(c2), vr(c2), vr(c0)))
    e("v_add_u32 %s, 9, %s" % (vr(c2), vr(c2)))
    e("v_and_b32 %s, 15, %s" % (vr(c2), vr(c2)))
    for dst, src in ((FA, c2), (FU, None)):
        if src is None:
            e("v_and_b32 %s, 15, %s" % (vr(c2), vr(lane)))
        e("v_xor_b32 %s, %s, %s" % (vr(tA), vr(c2), vr(H)))
        e("v_and_b32 %s, 7, %s" % (vr(tA), vr(tA)))
        e("v_lshlrev_b32 %s, 4, %s" % (vr(tA), vr(tA)))
        e("v_lshl_or_b32 %s, %s, 7, %s" % (vr(dst), vr(c2), vr(tA)))
    e("v_lshlrev_b32 %s, 4, %s" % (vr(tA), vr(H)))
    e("v_mov_b32 %s, 0x3f80" % vr(tB))
    e("v_lshlrev_b32 %s, %s, %s" % (vr(r.T + 1), vr(tA), vr(tB)))
    e("v_mov_b32 %s, %s" % (vr(r.T + 2), vr(r.T + 1)))
    e("v_mov_b32 %s, %s" % (vr(r.T + 3), vr(r.T + 1)))
    e("s_lshl_b32 s3, %s, 2" % sr(sW))
    e("v_mov_b32 %s, s3" % vr(tE))
    e("v_and_b32 %s, 7, %s" % (vr(tF), vr(lane)))
    e("v_lshlrev_b32 %s, 2, %s" % (vr(tF), vr(tF)))
    e("s_waitcnt lgkmcnt(0)")
    e("s_barrier")
    if DF == 1: rest_loads()
    if DF == 2:
        for _ in range(NE2): e(RL.pop(0))
    e("s_waitcnt vmcnt(%d)" % (1 + NE + NE2 if DF == 2 else 7))
    stamp("dst")
    for rd in range(2):
        e("s_mov_b64 exec, s[%d:%d]" % (92 + 2 * rd, 93 + 2 * rd))
        e("s_cbranch_execz P1_A")
        for i in range(4 * rd, 4 * rd + 4):
            e("v_mul_u32_u24 %s, %d, %s" % (vr(HA + i), TMUL, vr(DST + i)))
            e("v_lshrrev_b32 %s, 14, %s" % (vr(HA + i), vr(HA + i)))
            e("v_and_b32 %s, 0x1ffc, %s" % (vr(HA + i), vr(HA + i)))
        for i in range(4 * rd, 4 * rd + 4):
            e("ds_add_rtn_u32 %s, %s, %s offset:%d" % (vr(RK + i), vr(HA + i), vr(ONE), HIST))
    lab("P1_A")
    e("s_mov_b64 exec, -1")
    if DF == 2: rest_loads()
    key = []
    for i in range(8):
        d = DST + i
        key += ["v_and_b32 %s, 15, %s" % (vr(d), vr(d)),
                "v_mul_u32_u24 %s, 11, %s" % (vr(c0), vr(d)),
                "v_lshrrev_b32 %s, 5, %s" % (vr(c0), vr(c0)),
                "v_mad_i32_i24 %s, %s, -3, %s" % (vr(c1), vr(c0), vr(d)),
                "v_add_u32 %s, 1, %s" % (vr(c1), vr(c1)),
                "v_lshl_add_u32 %s, %s, 1, 4" % (vr(c0), vr(c0)),
                "v_lshl_or_b32 %s, %s, %s, %s" % (vr(d), vr(c1), vr(c0), vr(d))]
    for _ in range(21): e(key.pop(0))
    e("s_waitcnt lgkmcnt(0)")
    e("s_barrier")
    stamp("hist")
    e("ds_read_b128 %s, %s offset:%d" % (vr(CN, 4), vr(T16), HIST))
    for _ in range(7): e(key.pop(0))
    e("s_waitcnt lgkmcnt(0)")
    e("v_add_u32 %s, %s, %s" % (vr(ST + 2), vr(CN), vr(CN + 1)))
    e("v_add_u32 %s, %s, %s" % (vr(ST + 3), vr(ST + 2), vr(CN + 2)))
    e("v_add_u32 %s, %s, %s" % (vr(tA), vr(ST + 3), vr(CN + 3)))
    e("v_mov_b32 %s, %s" % (vr(tB), vr(tA)))
    scan64("v_add_u32", tB, [key.pop(0) for _ in range(12)])
    e("s_mov_b32 exec_lo, 0"); e("s_mov_b32 exec_hi, 0x80000000")
    e("ds_write_b32 %s, %s offset:%d" % (vr(tE), vr(tB), WTOT))
    e("s_mov_b64 exec, -1")
    e("s_waitcnt vmcnt(%d)" % (6 + NLATE))
    e("v_readfirstlane_b32 %s, %s" % (sr(sTag), vr(EP)))
    e("v_readfirstlane_b32 %s, %s" % (sr(sE2), vr(EP + 1)))
    e(key.pop(0)); e(key.pop(0))
    e("s_add_u32 %s, %s, 1" % (sr(sTag), sr(sTag)))
    e("s_add_u32 %s, %s, 0x10000" % (sr(sE2), sr(sE2)))
    e("s_and_b32 %s, %s, 0xffff0000" % (sr(sTagH), sr(sE2)))
    e("s_waitcnt lgkmcnt(0)")
    e("s_barrier")
    e("ds_read_b32 %s, %s offset:%d" % (vr(tC), vr(tF), WTOT))
    for _ in range(7): e(key.pop(0))
    e("v_mov_b32 %s, %s" % (vr(PC_ + 3), sr(sTag)))
    e("s_waitcnt lgkmcnt(0)")
    e("v_mov_b32 %s, %s" % (vr(tD), vr(tC)))
    for sh in (1, 2, 4):
        e(key.pop(0)); e(key.pop(0))
        e("v_add_u32_dpp %s, %s, %s row_shr:%d row_mask:0xf bank_mask:0xf" % (vr(tD), vr(tD), vr(tD), sh))
    e("v_sub_u32 %s, %s, %s" % (vr(tD), vr(tD), vr(tC)))
    e(key.pop(0))
    assert not key
    e("v_readlane_b32 s3, %s, %s" % (vr(tD), sr(sW)))
    e("s_lshl_b32 s91, s2, 13")
    e("s_nop 0")
    e("v_add_u32 %s, s3, %s" % (vr(tB), vr(tB)))
    e("v_sub_u32 %s, %s, %s" % (vr(ST), vr(tB), vr(tA)))
    e("v_add_u32 %s, %s, %s" % (vr(ST + 1), vr(ST), vr(CN)))
    e("v_add_u32 %s, %s, %s" % (vr(ST + 2), vr(ST), vr(ST + 2)))
    e("v_add_u32 %s, %s, %s" % (vr(ST + 3), vr(ST), vr(ST + 3)))
    e("v_lshl_or_b32 %s, %s, 16, %s" % (vr(PC_), vr(ST + 1), vr(ST)))
    e("v_lshl_or_b32 %s, %s, 16, %s" % (vr(PC_ + 1), vr(ST + 3), vr(ST + 2)))
    e("v_or_b32 %s, %s, %s" % (vr(PC_ + 2), sr(sTagH), vr(tB)))
    PUB = int(opts.get('pub', 0))
    pub = "buffer_store_dwordx4 %s, %s, %s, s91 offen %s" % (vr(PC_, 4), vr(T16), sr(SOFS, 4), STF)
    if PUB == 0: e(pub)
    for i in range(4): e("v_lshlrev_b32 %s, 4, %s" % (vr(ST + i), vr(ST + i)))
    e("ds_write_b128 %s, %s offset:%d" % (vr(T16), vr(ST, 4), HIST))
    e("s_mov_b32 s3, 0xffff")
    e("s_waitcnt lgkmcnt(0)")
    e("s_barrier")
    stamp("scan")
    for i in range(8):
        e("ds_read_b32 %s, %s offset:%d" % (vr(HA + i), vr(HA + i), HIST))
    e("s_waitcnt vmcnt(%d)" % (NLATE + (PUB == 0)))
    stamp("inputs")
    def assemble(rd):
        for k in range(2 * rd, 2 * rd + 2):
            e("v_mov_b32 %s, %s" % (vr(EA + 8 * k + 4), vr(EA + 8 * k + 2)))
            e("v_mov_b32 %s, %s" % (vr(EA + 8 * k + 5), vr(EA + 8 * k + 3)))
        for i in range(4 * rd, 4 * rd + 4):
            e("v_xor_b32 %s, s3, %s" % (vr(SRCV + i), vr(SRCV + i)))
            e("v_lshl_or_b32 %s, %s, 16, %s" % (vr(EA + 4 * i + 2), vr(DST + i), vr(SRCV + i)))
            e("v_mov_b32 %s, %s" % (vr(EA + 4 * i + 3), sr(sTag)))
    for rd in range(2):
        e("s_mov_b64 exec, s[%d:%d]" % (92 + 2 * rd, 93 + 2 * rd))
        e("s_cbranch_execz P1_B")
        assemble(rd)
        e("s_waitcnt lgkmcnt(4)")
        for i in range(4 * rd, 4 * rd + 4):
            e("v_lshl_add_u32 %s, %s, 4, %s" % (vr(HA + i), vr(RK + i), vr(HA + i)))
        for i in range(4 * rd, 4 * rd + 4):
            e("ds_write_b128 %s, %s offset:%d" % (vr(HA + i), vr(EA + 4 * i, 4), RECB))
    lab("P1_B")
    e("s_mov_b64 exec, -1")
    if PUB == 2: e(pub)
    late_loads()
    PA = tA; PW_ = tB; PC2 = ST
    e("v_bfe_u32 %s, %s, 1, 7" % (vr(tC), vr(TID)))
    e("v_and_b32 %s, 1, %s" % (vr(tD), vr(TID)))
    e("v_lshlrev_b32 %s, 13, %s" % (vr(PA), vr(tC)))
    e("v_lshl_or_b32 %s, %s, 4, %s" % (vr(PA), vr(tD), vr(PA)))
    e("s_lshl_b32 s97, %s, 5" % sr(sBin))
    e("s_add_u32 s96, s97, 0x100000")
    poll = ["buffer_load_dwordx4 %s, %s, %s, s97 offen %s" % (vr(PC_, 4), vr(PA), sr(SOFS, 4), PLF),
            "buffer_load_dwordx4 %s, %s, %s, s96 offen %s" % (vr(PC2, 4), vr(PA), sr(SOFS, 4), PLF)]
    e("v_lshlrev_b32 %s, 12, %s" % (vr(PW_), vr(tD)))
    e("v_lshl_or_b32 %s, %s, 2, %s" % (vr(PW_), vr(tC), vr(PW_)))
    e("v_add_u32 %s, %d, %s" % (vr(PW_), PCB, vr(PW_)))
    e("v_add_u32 %s, %d, %s" % (vr(c2), XBB + 4096, vr(L16)))
    WL = r.WB; WH = r.WB + 16; WP = r.WV
    e("s_mov_b32 s92, 0x%x" % NEGLOG2E)
    EN = r.G[1]; Z = r.V[1]; P = r.V[1] + 4; D = r.V[1] + 8
    LA, CB, PREV, JB = [r.V[1] + 12 + i for i in range(4)]
    TOT, INC, C512, W4 = r.PS, r.PC, r.PT, r.PE
    M = r.S
    def expand_pre():
        for i in range(4): e("v_mov_b32 %s, 0" % vr(Z + i))
        e("v_lshl_add_u32 %s, %s, 5, %s" % (vr(LA), vr(lane), sr(sREC)))
        e("v_mul_u32_u24 %s, %d, %s" % (vr(CB), 4 * CH, vr(lane)))
        e("v_subrev_u32 %s, %s, %s" % (vr(CB), sr(sW0), vr(CB)))
        e("v_lshl_add_u32 %s, %s, 3, %s" % (vr(JB), vr(lane), sr(sW0)))
        e("v_mov_b32 %s, 512" % vr(C512))
        e("v_mov_b32 %s, 0" % vr(PREV))
        e("v_lshl_add_u32 %s, %s, 2, %s" % (vr(r.PL), vr(lane), sr(sREC)))
        e("s_lshl_b32 s3, %s, 2" % sr(sW))
        e("v_mov_b32 %s, s3" % vr(W4))
    def zero_list():
        e("ds_write_b128 %s, %s offset:%d" % (vr(LA), vr(Z, 4), LOFF))
        e("ds_write_b128 %s, %s offset:%d" % (vr(LA), vr(Z, 4), LOFF + 16))
    expand_pre()
    e("s_lshl_b32 s3, %s, 10" % sr(sW)); e("s_add_u32 s3, s3, %d" % PCB)
    e("v_add_u32 %s, s3, %s" % (vr(r.RI), vr(L16)))
    e("s_waitcnt lgkmcnt(0)")
    e("s_barrier")
    stamp("scatter")
    if PUB == 1: e(pub)
    e("s_cmp_gt_u32 %s, 3" % sr(sW))
    e("s_cbranch_scc1 P1_D")
    e("s_cmp_ge_u32 s2, %d" % NC)
    e("s_cbranch_scc1 P1_N")
    if DELAY:
        e("s_and_b32 s3, s2, 15"); e("s_cmp_lg_u32 s3, 5"); e("s_cbranch_scc1 P1_ND")
        for _ in range(DELAY): e("s_sleep 100")
        lab("P1_ND")
    CO = DST
    for k in range(13):
        e("ds_read_b128 %s, %s offset:%d" % (vr(CO + 4 * k, 4), vr(T16), RECB + 4096 * k))
    e("v_add_u32 %s, 49152, %s" % (vr(T32), vr(T16)))
    for k in range(13):
        if k < 12: e("s_mov_b32 s3, %d" % (4096 * k))
        e("s_waitcnt lgkmcnt(%d)" % (12 - k))
        if k < 12: e("buffer_store_dwordx4 %s, %s, %s, s3 offen %s" % (vr(CO + 4 * k, 4), vr(T16), sr(SC_, 4), STF))
        else: e("buffer_store_dwordx4 %s, %s, %s, 0 offen %s" % (vr(CO + 4 * k, 4), vr(T32), sr(SC_, 4), STF))
    e("s_waitcnt vmcnt(13)")
    e("s_branch POLL_DONE")
    lab("P1_N")
    e("s_waitcnt vmcnt(0)")
    e("s_branch POLL_DONE")
    lab("P1_D")
    if int(opts.get('early', 1)):
        for t in poll: e(t)
    e("v_lshl_add_u32 %s, %s, 10, %s" % (vr(tC), vr(H), vr(J4)))
    e("s_add_u32 s3, s93, %d" % XBB)
    e("v_add_u32 %s, s3, %s" % (vr(tC), vr(tC)))
    e("s_waitcnt vmcnt(%d)" % ((8 if int(opts.get('early', 1)) else 6) + (PUB == 1) + XPF))
    RAW = DST
    for i in range(32):
        e("ds_read_b32 %s, %s offset:%d" % (vr(RAW + i), vr(tC), (i >> 4) * 8192 + ((i >> 3) & 1) * 2048 + (i & 7) * 128))
    e("s_bitcmp0_b32 %s, 0" % sr(sW))
    e("s_cselect_b32 s3, s92, 1.0")
    e("v_add_u32 %s, s93, %s" % (vr(tC), vr(c2)))
    for hf in range(2):
        e("s_waitcnt lgkmcnt(%d)" % (15 if hf == 0 else 4))
        if hf == 0: e("s_nop 0")
        for i in range(16):
            e("v_lshlrev_b32 %s, 16, %s" % (vr(WL + i), vr(RAW + 16 * hf + i)))
            e("v_and_b32 %s, 0xffff0000, %s" % (vr(WH + i), vr(RAW + 16 * hf + i)))
        for i in range(0, 32, 2):
            e("v_pk_mul_f32 %s, %s, s[2:3] op_sel:[0,1] op_sel_hi:[1,1]" % (vr(WL + i, 2), vr(WL + i, 2)))
        for i in range(16):
            e("v_cvt_pk_bf16_f32 %s, %s, %s" % (vr(WP + 16 * hf + i), vr(WL + 2 * i), vr(WL + 2 * i + 1)))
        for f in range(2):
            for s_ in range(2):
                e("ds_write_b128 %s, %s offset:%d" % (vr(tC), vr(WP + 16 * hf + 8 * f + 4 * s_, 4), f * 8192 + (2 * hf + s_) * 1024))
    if not int(opts.get('early', 1)):
        for t in poll: e(t)
    lab("POLL")
    e("s_waitcnt vmcnt(0)")
    e("v_xor_b32 %s, %s, %s" % (vr(c0), sr(sTagH), vr(PC_ + 2)))
    e("v_xor_b32 %s, %s, %s" % (vr(c1), sr(sTagH), vr(PC2 + 2)))
    e("v_or_b32 %s, %s, %s" % (vr(c0), vr(c0), vr(c1)))
    e("v_lshrrev_b32 %s, 16, %s" % (vr(c0), vr(c0)))
    e("v_xor_b32 %s, %s, %s" % (vr(c1), sr(sTag), vr(PC_ + 3)))
    e("v_xor_b32 %s, %s, %s" % (vr(tD), sr(sTag), vr(PC2 + 3)))
    e("v_or3_b32 %s, %s, %s, %s" % (vr(c0), vr(c0), vr(c1), vr(tD)))
    e("v_cmp_ne_u32 vcc, 0, %s" % vr(c0))
    e("s_cmp_eq_u64 vcc, 0")
    e("s_cbranch_scc1 POLL_OK")
    e("s_mov_b64 exec, vcc")
    for t in poll: e(t)
    e("s_sub_u32 %s, %s, 1" % (sr(sSpin), sr(sSpin)))
    e("s_cbranch_scc0 POLL")
    e("s_endpgm")
    lab("POLL_OK")
    e("s_mov_b64 exec, -1")
    for pc in (PC_, PC2):
        e("v_alignbit_b32 %s, %s, %s, 16" % (vr(pc + 3), vr(pc + 1), vr(pc)))
        e("v_alignbit_b32 %s, %s, %s, 16" % (vr(pc + 2), vr(pc + 2), vr(pc + 1)))
    for pc, off in ((PC_, 0), (PC2, 512)):
        for k, v in enumerate([pc, pc + 3, pc + 1, pc + 2]):
            e("ds_write_b32 %s, %s offset:%d" % (vr(PW_), vr(v), k * 1024 + off))
    lab("POLL_DONE")
    stamp("role")
    e("s_waitcnt lgkmcnt(0)")
    e("s_barrier")
    stamp("offs")
    mark(4)
    wr = []
    WA = r.G[0]; WU = r.G[1]
    for m, base in enumerate([WA, WU, r.WB, r.WV]):
        for u in range(8):
            uu = m * 8 + u
            wr.append("ds_read_b128 %s, %s offset:%d" % (vr(base + 4 * u, 4), vr(c2), (uu >> 2) * 8192 + (uu & 3) * 1024))
    e("ds_read_b128 %s, %s" % (vr(EN, 4), vr(r.RI)))
    zero_list()
    for t in wr[16:24]: e(t)
    e("s_or_b32 s3, s2, %s" % sr(sW))
    e("s_cbranch_scc1 NOBUMP")
    e("v_mov_b32 %s, %s" % (vr(r.RD), sr(sTag))); e("v_mov_b32 %s, %s" % (vr(r.RD + 1), sr(sE2)))
    e("v_lshlrev_b32 %s, 3, %s" % (vr(c1), vr(lane)))
    e("buffer_store_dwordx2 %s, %s, %s, 0 offen sc0 sc1" % (vr(r.RD, 2), vr(c1), sr(SOUT, 4)))
    lab("NOBUMP")
    e("s_waitcnt lgkmcnt(10)")

    def xidx(g, t): return "ds_read_u16 %s, %s offset:%d" % (vr(r.XI + 2 * t), vr(r.PS), g * 512 + SOFF[t] + 8)
    def xm0(buf): return "s_add_u32 m0, %s, %d" % (sr(sXB), buf * 4096)
    def xdma(t): return "buffer_load_dwordx4 %s, %s, %s idxen offen offset:%d lds" % (vr(r.XI + 2 * t, 2), sr(SXI, 4), sr(sSO + t) if t < 3 else "0", t * 1024)
    def xread(buf, k): return "ds_read_b128 %s, %s offset:%d" % (vr(r.X + 4 * k, 4), vr(r.XA1 if k & 1 else r.XA0), buf * 4096 + (k >> 1) * 256)
    def t0read(g): return "ds_read_b32 %s, %s offset:%d" % (vr(r.T), vr(r.PE), g * 512)
    def tiread(g): return "ds_read_b32 %s, %s offset:%d" % (vr(r.TI), vr(r.PT), g * 512 + 8)
    def soread(g, t): return "ds_read_u8 %s, %s offset:%d" % (vr(r.SO + t), vr(r.PC), g * 512 + SOFF[t] + 12)
    def trread(t): return "ds_read_b64_tr_b16 %s, %s offset:%d" % (vr(r.S + 2 * t, 2), vr(r.SO + t), TS)
    def riread(blk, ri=None): return "ds_read_b32 %s, %s offset:%d" % (vr(r.RI if ri is None else ri), vr(r.PL), LOFF + blk * 256)
    def rload(rd, ri, fl=None): return "buffer_load_dwordx4 %s, %s, %s, 0 idxen %s" % (vr(rd, 4), vr(ri), sr(SRC, 4), RLF if fl is None else fl)
    retries = []
    def fixup(rd, ri, blk, name, tmp0, tmp1, kx):
        retries.append((name, rd, ri))
        return ["v_cmp_gt_u32 vcc, %s, %s" % (sr(sLim), vr(ri)),
                "s_mov_b64 exec, vcc",
                name + ":",
                "v_cmp_ne_u32 vcc, %s, %s" % (sr(sTag), vr(rd + 3)),
                "v_bfe_u32 %s, %s, 16, 2" % (vr(tmp0), vr(rd + 2)),
                "v_lshrrev_b32 %s, 15, %s" % (vr(tmp1), vr(rd + 2)),
                "v_add_u32 %s, 1, %s" % (vr(tmp0), vr(tmp0)),
                "v_and_or_b32 %s, %s, 24, 3" % (vr(tmp1), vr(tmp1)),
                "s_cmp_lg_u64 vcc, 0",
                "v_lshlrev_b32 %s, %s, %s" % (vr(rd + 3), vr(tmp1), vr(tmp0)),
                "s_cbranch_scc1 %s_R" % name,
                "s_mov_b64 exec, -1",
                "v_bitop3_b32 %s, %s, %s, %s bitop3:0x6a" % (vr(rd + 2), vr(rd + 2), sr(sKm), vr(kx)),
                "ds_write_b128 %s, %s offset:%d" % (vr(r.PW), vr(rd, 4), blk * 1024)]
    def emit(lst):
        for t in lst:
            if t.endswith(":"): L.append(t)
            else: e(t)
    KX = c2 + 0

    lab("EXPAND")
    sd2 = "dst_sel:DWORD dst_unused:UNUSED_PAD src0_sel:WORD_1 src1_sel:WORD_0"
    sd = "dst_sel:DWORD dst_unused:UNUSED_PAD src0_sel:WORD_0 src1_sel:DWORD"
    for i in range(3): e("v_sub_u32_sdwa %s, %s, %s %s" % (vr(P + 1 + i), vr(EN + i), vr(EN + i), sd2))
    e("v_sub_u32_sdwa %s, %s, %s %s" % (vr(INC), vr(EN + 3), vr(EN + 3), sd2))
    e("v_add_u32 %s, %s, %s" % (vr(P + 2), vr(P + 1), vr(P + 2)))
    e("v_add_u32 %s, %s, %s" % (vr(P + 3), vr(P + 2), vr(P + 3)))
    e("v_add_u32 %s, %s, %s" % (vr(INC), vr(P + 3), vr(INC)))
    fill = ["v_add_u32 %s, %s, %s" % (vr(TOT), sr(sW0), vr(INC))]
    fill += ["v_add_u32_sdwa %s, %s, %s %s" % (vr(D + i), vr(EN + i), vr(CB), sd) for i in range(4)]
    fill += ["v_add_u32 %s, %d, %s" % (vr(D + i), i * CH, vr(D + i)) for i in range(1, 4)]
    fill += ["v_sub_u32 %s, %s, %s" % (vr(P + i), vr(P + i), vr(TOT)) for i in range(1, 4)]
    scan64("v_add_u32", INC, fill)
    e("v_sub_u32 %s, %s, %s" % (vr(P), vr(INC), vr(TOT)))
    e("v_readlane_b32 %s, %s, 63" % (sr(sTot), vr(INC)))
    for i in range(1, 4):
        e("v_add_u32 %s, %s, %s" % (vr(P + i), vr(INC), vr(P + i)))
    for i in range(4):
        e("v_sub_u32 %s, %s, %s" % (vr(D + i), vr(D + i), vr(P + i)))
        e("v_med3_i32 %s, %s, 0, %s" % (vr(P + i), vr(P + i), vr(C512)))
        e("v_lshl_add_u32 %s, %s, 2, %s" % (vr(P + i), vr(P + i), sr(sREC)))
    for i in range(4):
        e("ds_max_u32 %s, %s offset:%d" % (vr(P + i), vr(D + i), LOFF))
    e("ds_read_b128 %s, %s offset:%d" % (vr(M, 4), vr(LA), LOFF))
    e("ds_read_b128 %s, %s offset:%d" % (vr(M + 4, 4), vr(LA), LOFF + 16))
    e("s_lshl_b32 s3, %s, 3" % sr(sTot)); e("s_or_b32 s3, s3, %s" % sr(sW))
    e("v_mov_b32 %s, s3" % vr(TOT))
    e("s_mov_b64 exec, 1")
    e("ds_write_b32 %s, %s offset:%d" % (vr(W4), vr(TOT), TOTA))
    e("s_mov_b64 exec, -1")
    e("s_cmp_eq_u32 %s, 0" % sr(sFirst))
    e("s_cbranch_scc1 EXP_B")
    for t in wr[24:32]: e(t)
    e("s_waitcnt lgkmcnt(9)")
    e("s_branch EXP_C")
    lab("EXP_B")
    e("s_waitcnt lgkmcnt(1)")
    lab("EXP_C")
    e("v_max3_u32 %s, %s, %s, %s" % (vr(INC), vr(M), vr(M + 1), vr(M + 2)))
    e("v_max3_u32 %s, %s, %s, %s" % (vr(INC), vr(INC), vr(M + 3), vr(M + 4)))
    e("v_max3_u32 %s, %s, %s, %s" % (vr(INC), vr(INC), vr(M + 5), vr(M + 6)))
    e("v_max_u32 %s, %s, %s" % (vr(INC), vr(INC), vr(M + 7)))
    scan64("v_max_u32", INC, ["v_max_u32 %s, %s, %s" % (vr(M + k), vr(M + k - 1), vr(M + k)) for k in range(1, 8)])
    e("s_nop 1")
    e("v_mov_b32_dpp %s, %s wave_shr:1 row_mask:0xf bank_mask:0xf" % (vr(PREV), vr(INC)))
    for k in range(8):
        e("v_max_u32 %s, %s, %s" % (vr(M + k), vr(PREV), vr(M + k)))
        e("v_add3_u32 %s, %s, %s, %d" % (vr(M + k), vr(M + k), vr(JB), k))
    e("ds_write_b128 %s, %s offset:%d" % (vr(LA), vr(M, 4), LOFF))
    e("ds_write_b128 %s, %s offset:%d" % (vr(LA), vr(M + 4, 4), LOFF + 16))
    RI1 = r.TI; RD1 = r.S; F0 = r.XI; F1 = r.XI + 2
    e("v_lshrrev_b32 %s, 3, %s" % (vr(c0), vr(lane)))
    e("v_lshlrev_b32 %s, 2, %s" % (vr(c0), vr(c0)))
    e("v_and_b32 %s, 7, %s" % (vr(c1), vr(lane)))
    e("v_lshlrev_b32 %s, 3, %s" % (vr(r.XI + 4), vr(c1)))
    e("v_lshlrev_b32 %s, 2, %s" % (vr(c1), vr(c1)))
    e("s_sub_u32 s3, 7, %s" % sr(sW)); e("s_sub_u32 s97, %s, 4" % sr(sW))
    e("s_cmp_lt_u32 %s, 4" % sr(sW)); e("s_cselect_b32 s97, s3, s97")
    e("s_waitcnt lgkmcnt(0)")
    for i in range(4): e("v_mov_b32 %s, 0" % vr(r.S + 4 + i))
    def pointers():
        e("v_bfe_u32 %s, %s, 2, 2" % (vr(c0), vr(lane)))
        e("v_lshrrev_b32 %s, 5, %s" % (vr(c1), vr(lane)))
        e("v_lshl_or_b32 %s, %s, 3, %s" % (vr(c0), vr(c1), vr(c0)))
        e("v_lshl_add_u32 %s, %s, 4, %s" % (vr(r.PS), vr(c0), sr(sREC)))
        e("v_and_b32 %s, 3, %s" % (vr(c0), vr(lane)))
        e("v_add_u32 %s, %s, %s" % (vr(r.PC), vr(c0), vr(r.PS)))
        e("v_and_b32 %s, 31, %s" % (vr(c0), vr(lane)))
        e("v_lshl_add_u32 %s, %s, 4, %s" % (vr(r.PT), vr(c0), sr(sREC)))
        e("v_lshl_add_u32 %s, %s, 2, %s" % (vr(r.PE), vr(c1), vr(r.PT)))
        e("v_lshl_add_u32 %s, %s, 4, %s" % (vr(r.PW), vr(lane), sr(sREC)))
        e("v_mov_b32 %s, 0x4ffff" % vr(KX))
        e("s_min_u32 %s, %s, %s" % (sr(sTot), sr(sTot), sr(sLim)))
        e("s_sub_u32 s3, %s, %s" % (sr(sTot), sr(sW0)))
        e("s_min_u32 s3, s3, 512")
        e("s_add_u32 s3, s3, 31"); e("s_lshr_b32 s3, s3, 5")
        e("s_max_u32 s3, s3, 1")
        e("s_sub_u32 %s, s3, 1" % sr(sNG))
        e("s_mov_b32 %s, 2" % sr(sBLK))
    e("s_cmp_eq_u32 %s, 0" % sr(sFirst))
    e("s_cbranch_scc1 LATER")
    stamp("expand")
    e("s_barrier")
    e("ds_read_b32 %s, %s offset:%d" % (vr(c0), vr(c0), TOTA))
    e("ds_read_b32 %s, %s offset:%d" % (vr(c1), vr(c1), TOTA))
    for s in wr[8:12]: e(s)
    e("s_waitcnt lgkmcnt(4)")
    e("v_cmp_lt_u32 vcc, %s, %s" % (vr(c1), vr(c0)))
    e(wr[12]); e(wr[13])
    e("v_lshrrev_b64 %s, %s, vcc" % (vr(r.SO, 2), vr(r.XI + 4)))
    e("v_and_b32 %s, 0xff, %s" % (vr(r.SO), vr(r.SO)))
    e("v_bcnt_u32_b32 %s, %s, 0" % (vr(r.SO), vr(r.SO)))
    e("v_cmp_eq_u32 vcc, s97, %s" % vr(r.SO))
    e("s_ff1_i32_b64 s97, vcc")
    e("v_readlane_b32 %s, %s, s97" % (sr(sTot), vr(c1)))
    e("s_lshl_b32 %s, s97, 11" % sr(sXT)); e("s_add_u32 %s, %s, %d" % (sr(sXT), sr(sXT), XTB))
    e("s_lshl_b32 %s, s97, 13" % sr(sREC)); e("s_add_u32 %s, %s, %d" % (sr(sREC), sr(sREC), RECB))
    e("v_lshl_add_u32 %s, %s, 2, %s" % (vr(r.PL), vr(lane), sr(sREC)))
    e(riread(0)); e(riread(1, RI1))
    def xtile(mapreg, dst):
        e("v_add_u32 %s, %s, %s" % (vr(mapreg), sr(sXT), vr(mapreg)))
        tm = [mapreg, c0, c1, r.SO]
        for s in range(1, 4): e("v_xor_b32 %s, %d, %s" % (vr(tm[s]), 32 * s, vr(mapreg)))
        for s in range(4): e("ds_read_b128 %s, %s" % (vr(dst + 4 * s, 4), vr(tm[s])))
    NU = int(opts.get('nu', 8))
    xtile(FU, r.AT)
    e("s_waitcnt lgkmcnt(4)")
    e(rload(r.RD, r.RI, RL0)); e(rload(RD1, RI1, RL0))
    e(wr[14]); e(wr[15])
    xtile(FA, r.X)
    for s in wr[0:8]: e(s)
    WT = r.ACC[0]
    for i in range(4):
        e("v_lshlrev_b32 %s, 16, %s" % (vr(WT + i), vr(WCR + i)))
        e("v_and_b32 %s, 0xffff0000, %s" % (vr(WT + 4 + i), vr(WCR + i)))
    for i in range(8):
        e("v_mul_f32 %s, s92, %s" % (vr(WT + i), vr(WT + i)))
    for i in range(4):
        e("v_cvt_pk_bf16_f32 %s, %s, %s" % (vr(WCR + i), vr(WT + 2 * i), vr(WT + 2 * i + 1)))
    e("s_lshr_b32 %s, %s, 3" % (sr(sTot), sr(sTot)))
    e("s_lshl_b32 %s, %s, 3" % (sr(sT), sr(sBin))); e("s_add_u32 %s, %s, s97" % (sr(sT), sr(sT)))
    ua = []
    for f in range(2):
        for s in range(4):
            ua.append(mfma(r.ACC[f], r.AT + 4 * s, WU + 16 * f + 4 * s, None if s == 0 else r.ACC[f]))
    for f in range(2):
        for s in range(4):
            ua.append(mfma(WU + 16 * f, r.X + 4 * s, WA + 16 * f + 4 * s, None if s == 0 else WU + 16 * f))
    n0 = len(L)
    pointers()
    tile_range()
    e("s_min_u32 %s, %s, %d" % (sr(sEnd), sr(sEnd), N_NODES))
    e("s_sub_u32 s3, %s, %s" % (sr(sEnd), sr(sStart))); e("s_lshl_b32 s3, s3, 7")
    e("s_lshl_b32 s97, %s, 7" % sr(sStart))
    srd(SOUT, 22, "s3", "s97")
    misc = L[n0:]; del L[n0:]
    e("s_waitcnt lgkmcnt(12)")
    for k in range(NU):
        if k == 8: e("s_waitcnt lgkmcnt(0)")
        e(ua[k])
        for _ in range(5):
            if misc: L.append(misc.pop(0))
    L.extend(misc)
    e("s_waitcnt lgkmcnt(0)")
    e("s_barrier")
    lab("NOW")
    e("s_mov_b32 m0, %s" % sr(sXB))
    e("s_waitcnt vmcnt(1)")
    emit(fixup(r.RD, r.RI, 0, "FX0", c0, c1, KX))
    for t in range(4): e(xidx(0, t))
    e(riread(2))
    stamp("rec")
    e("s_waitcnt lgkmcnt(1)")
    for t in range(4): e(xdma(t))
    for t in range(4): e(xidx(1, t))
    e("s_cmp_eq_u32 %s, 0" % sr(sFirst))
    e("s_cbranch_scc1 NOW2")
    for t in ua[NU:]: e(t)
    lab("NOW2")
    e("s_waitcnt vmcnt(4)")
    emit(fixup(RD1, RI1, 1, "FX1", c0, c1, KX))
    e(t0read(0)); e(tiread(0))
    e(xm0(1))
    X1L = int(opts.get('x1l', 0))
    def x1():
        for t in range(4): e(xdma(t))
        e(rload(r.RD, r.RI, RL2))
        for t in range(4): e(xidx(2, t))
    e("s_cmp_eq_u32 %s, 0" % sr(sFirst))
    e("s_cbranch_scc1 NOW3")
    for i in range(8):
        e("v_cvt_pk_bf16_f32 %s, %s, %s" % (vr(r.U + i), vr(r.ACC[0] + i), vr(r.ACC[1] + i)))
    e(mfma(r.ACC[0], r.S + 4, r.S + 4, None)); e(mfma(r.ACC[1], r.S + 4, r.S + 4, None))
    for f in range(2):
        for i in range(8):
            e("v_cvt_pk_bf16_f32 %s, %s, %s" % (vr(r.AT + 8 * f + i), vr(WU + 16 * f + 2 * i) if i & 1 else "0", vr(WU + 16 * f + 2 * i + 1)))
    e("s_mov_b32 exec_hi, 0")
    for f in range(2):
        e("v_mov_b32 %s, %s" % (vr(r.AT + 8 * f), vr(WCR + 2 * f)))
        e("v_mov_b32 %s, %s" % (vr(r.AT + 8 * f + 4), vr(WCR + 2 * f + 1)))
    e("s_mov_b64 exec, -1")
    lab("NOW3")
    e("s_waitcnt lgkmcnt(2)")
    if not X1L: x1()
    stamp("atile")
    for i in range(4): e("v_mov_b32 %s, 0" % vr(r.SO + i))
    e(mfma(r.V[0], r.S + 4, r.S + 4, None))
    e(mfma(r.V[1], r.S + 4, r.S + 4, None))
    e(mfma(r.G[1], r.S + 4, r.S + 4, None).replace(", 0", ", 1.0"))
    e(mfma(r.S, r.SO, r.SO, None))
    e("s_waitcnt vmcnt(%d)" % (0 if X1L else 5))
    stamp("x0")
    for k in range(4): e(xread(0, k))
    if X1L: x1()
    e(xm0(0))
    for s_ in range(4):
        e("s_waitcnt lgkmcnt(%d)" % (0 if s_ == 3 else 3 - s_ + 4 * X1L))
        e(mfma(r.G[0], r.X + 4 * s_, r.WB + 4 * s_, None if s_ == 0 else r.G[0]))
    e(xdma(0))
    e(smf(r.G[0], r.T, r.AT, r.TI, 1))
    e(xdma(1))
    e("s_nop 8")
    stamp("loop"); stamp("rtloop", True)
    if STAMP:
        e("s_add_u32 s100, %s, 1" % sr(sNG)); e("v_writelane_b32 v%d, s100, 28" % STV)
    mark(3)

    def I(text, lds=None, need=()): return dict(text=text, lds=lds, need=list(need))
    def oct_(base, o):
        o %= 4
        return base[o >> 1] + 8 * (o & 1)
    def C_(o, i): return "v_cvt_pk_bf16_f32 %s, %s, %s" % (vr(oct_(r.V, o) + i), vr(r.ETA + i), vr(oct_(r.V, o) + i))
    def R_(o, i): return "v_rcp_f32 %s, %s" % (vr(r.ETA + i), vr(oct_(r.G, o) + i))
    def E_(o, i): return "v_exp_f32 %s, %s" % (vr(oct_(r.G, o) + i), vr(oct_(r.G, o) + i))
    def A_(o):
        g_ = oct_(r.G, o)
        return ["v_pk_add_f32 %s, %s, 1.0 op_sel_hi:[1,0]" % (vr(g_ + i, 2), vr(g_ + i, 2)) for i in range(0, 8, 2)]
    def M_(o, pk=True):
        v_ = oct_(r.V, o)
        if pk: return ["v_pk_mul_f32 %s, %s, %s" % (vr(v_ + i, 2), vr(v_ + i, 2), vr(r.ETA + i, 2)) for i in range(0, 8, 2)]
        return ["v_mul_f32 %s, %s, %s" % (vr(v_ + i), vr(r.ETA + i), vr(v_ + i)) for i in range(8)]
    def red(f, hi): return smf(r.ACC[f], r.S + 4 * hi, r.V[f] + 8 * hi, r.SI)
    def gch(f): return [mfma(r.G[f], r.X + 4 * k, r.WB + 16 * f + 4 * k, None if k == 0 else r.G[f]) for k in range(4)] + [smf(r.G[f], r.T, r.AT + 8 * f, r.TI, 1)]
    def vch(f): return [mfma(r.V[f], r.X + 4 * k, r.WV + 16 * f + 4 * k, None if k == 0 else r.V[f]) for k in range(4)]
    RR = int(opts.get('rr', 0))
    CUT6 = [int(x) for x in opts.get('cut6', '0,3,6,10,14,18' if RR else '0,3,7,11,15,19').split(',')]
    CUT5 = [int(x) for x in opts.get('cut5', '0,4,8,12,16' if RR else '0,4,9,13,18').split(',')]
    HI = int(opts.get('hi', -1))
    def sub(s_, g):
        nb = (g + 1) & 1
        tail = []
        fxl = lambda: [I("s_cbranch_scc1 FXL_S")] + [I(t) for t in fixup(r.RD, r.RI, 2, "FXL", c0, c1, KX)] + [I("FXL_S:")]
        ptr = [I("v_lshl_add_u64 %s, %s, 0, %s" % (vr(r.PS, 2), vr(r.PS, 2), sr(sINC, 2))),
               I("v_lshl_add_u64 %s, %s, 0, %s" % (vr(r.PT, 2), vr(r.PT, 2), sr(sINC, 2))),
               I("v_lshl_add_u64 %s, %s, 0, %s" % (vr(r.PL, 2), vr(r.PL, 2), sr(sINC2, 2)))]
        if RR:
            if s_ == 0:
                mm = [I(red(0, 0), need=['S3']), I(red(0, 1))] + [I(t) for t in vch(0)]
                aux = [[], [I(soread(g, 0), lds='SO0')], [I(xdma(2)), I(soread(g, 1), lds='SO1')], [I(xdma(3))],
                       [I(soread(g, 2), lds='SO2')], [I(soread(g, 3), lds='SO3')]]
                if g == 1: aux[4].insert(0, I(rload(r.RD, r.RI), need=['RI']))
            elif s_ == 1:
                mm = [I(t) for t in gch(1)]
                aux = [[I(xidx(g + 3, k), lds='XI%d' % k)] for k in range(4)] + [[I(t0read(g + 1), lds='T0')]]
            elif s_ == 2:
                mm = [I(red(1, 0)), I(red(1, 1))] + [I(t) for t in vch(1)]
                aux = [[I(tiread(g + 1), lds='TI')], [I("s_waitcnt vmcnt(%d)" % (4 if g == 0 else 5), need=['XI3']), I(trread(0), lds='S0')]] + [[I(xread(nb, k), lds='X%d' % k)] for k in range(4)]
                aux[5].insert(0, I("s_waitcnt", need=['X1']))
                if g == 0:
                    aux[4].insert(0, I("s_cmp_gt_u32 %s, 7" % sr(sBLK)))
                    tail = fxl()
            else:
                gc = gch(0)
                mm = [I(gc[k], need=['X%d' % k]) for k in range(4)] + [I(gc[4], need=['T0', 'TI'])]
                aux = [[I(trread(1), lds='S1')], [I("s_waitcnt", need=['X3']), I(trread(2), lds='S2')], [I(xm0(nb)), I(trread(3), lds='S3')],
                       [I("s_sub_u32 %s, %s, 1" % (sr(sNG), sr(sNG))), I(xdma(0))], [I("s_waitcnt", need=['S3']), I(xdma(1))]]
                if g == 0:
                    aux[2].append(I(riread(3), lds='RI'))
                    aux[0].insert(0, I("s_add_u32 %s, %s, 1" % (sr(sBLK), sr(sBLK))))
                else: tail = ptr
        elif s_ == 0:
            mm = [I(red(0, 1), need=['S3'])] + [I(t) for t in vch(0)]
            aux = [[I(soread(g, 0), lds='SO0')], [I(xdma(2)), I(soread(g, 1), lds='SO1')], [I(xdma(3))],
                   [I(soread(g, 2), lds='SO2')], [I(soread(g, 3), lds='SO3')]]
            if g == 1: aux[3].insert(0, I(rload(r.RD, r.RI), need=['RI']))
        elif s_ == 1:
            mm = [I(red(1, 0))] + [I(t) for t in gch(1)]
            aux = [[I(trread(0), lds='S0', need=['SO1'])], [I(trread(1), lds='S1')], [I(xidx(g + 3, 0), lds='XI0')], [I(xidx(g + 3, 1), lds='XI1')],
                   [I(xidx(g + 3, 2), lds='XI2'), I(xidx(g + 3, 3), lds='XI3')], [I(t0read(g + 1), lds='T0')]]
        elif s_ == 2:
            mm = [I(red(1, 1))] + [I(t) for t in vch(1)]
            aux = [[I("s_waitcnt vmcnt(%d)" % (4 if g == 0 else 5), need=['XI3']), I(tiread(g + 1), lds='TI')]] + [[I(xread(nb, k), lds='X%d' % k)] for k in range(4)]
            if g == 0:
                aux[3].insert(0, I("s_cmp_gt_u32 %s, 7" % sr(sBLK)))
                tail = fxl()
        else:
            gc = gch(0)
            mm = [I(red(0, 0), need=['S1'])] + [I(gc[k], need=['X%d' % k]) for k in range(4)] + [I(gc[4], need=['T0', 'TI'])]
            aux = [[I(trread(2), lds='S2', need=['X1'])], [I(trread(3), lds='S3')], [I("s_waitcnt", need=['X3'])], [I(xm0(nb))],
                   [I("s_sub_u32 %s, %s, 1" % (sr(sNG), sr(sNG))), I(xdma(0))], [I("s_waitcnt", need=['S3']), I(xdma(1))]]
            if g == 0:
                aux[3].append(I(riread(3), lds='RI'))
                aux[1].insert(0, I("s_add_u32 %s, %s, 1" % (sr(sBLK), sr(sBLK))))
            else: tail = ptr
        aux[0].insert(0, I("s_setprio %d" % (0 if str(s_) in LOWS else 1)))
        aux[HI].insert(0, I("s_setprio 3"))
        cut = CUT6 if len(mm) == 6 else CUT5
        va = []
        for i in range(8): va += [C_(s_ - 2, i), R_(s_ - 1, i), E_(s_, i)]
        out = []
        for k, t in enumerate(va):
            if k in cut:
                j = cut.index(k); out.append(mm[j]); out.extend(aux[j])
            out.append(I(t))
        return out + tail + [I(t) for t in M_(s_ - 1) + A_(s_)]
    body = []
    for g in range(2):
        for s_ in range(4): body += sub(s_, g)
        body.append(I("s_cbranch_scc1 DRAIN" if g == 0 else "s_cbranch_scc0 LOOP"))
    issued = []; done = 0
    for pas in range(2):
        if pas == 1: lab("LOOP")
        for it in body:
            n = None
            for tag in it['need']:
                idxs = [k for k, t in enumerate(issued) if t == tag]
                if not idxs: continue
                k = idxs[-1]
                if k >= done:
                    n = len(issued) - 1 - k
                    done = k + 1
            tx = it['text']
            if n is not None:
                assert n <= 15
                if tx.startswith("s_waitcnt"): tx += " lgkmcnt(%d)" % n
                elif pas == 1: e("s_waitcnt lgkmcnt(%d)" % n)
            if pas == 1 and tx != "s_waitcnt": emit([tx])
            if it['lds']: issued.append(it['lds'])
    lab("DRAIN")
    stamp("loopend"); stamp("rtloopend", True)
    XR = r.X; EA_ = r.X + 8
    pre = ["v_lshrrev_b32 %s, 5, %s" % (vr(c0), vr(lane)),
           "v_and_b32 %s, 31, %s" % (vr(c1), vr(lane)),
           "v_lshlrev_b32 %s, 2, %s" % (vr(c1), vr(c1)),
           "v_mul_u32_u24 %s, 0x240, %s" % (vr(c2), vr(c0)),
           "v_xor_b32 %s, %s, %s" % (vr(c2), vr(c2), vr(c1)),
           "v_add_u32 %s, %s, %s" % (vr(c2), sr(sXT), vr(c2))]
    e("s_setprio 2")
    e("s_waitcnt lgkmcnt(0)")
    if RR: e(red(0, 0))
    e(red(0, 1))
    for i in range(8): e(C_(2, i)); e(R_(3, i))
    e(pre.pop(0)); e(pre.pop(0))
    e(red(1, 0))
    for t in M_(3, False): e(t)
    for i in range(8): e(C_(3, i))
    for t in pre: e(t)
    e(red(1, 1))
    e("s_add_u32 %s, %s, 512" % (sr(sW0), sr(sW0)))
    e("s_cmp_lt_u32 %s, %s" % (sr(sW0), sr(sTot)))
    e("s_cbranch_scc1 MORE")
    for q_ in range(4):
        if q_: e("v_xor_b32 %s, %d, %s" % (vr(EA_), 16 * q_, vr(c2)))
        e("ds_read_b32 %s, %s offset:%d" % (vr(XR + q_), vr(EA_ if q_ else c2), q_ * 128))
        e("ds_read_b32 %s, %s offset:%d" % (vr(XR + q_ + 4), vr(EA_ if q_ else c2), q_ * 128 + 1024))
    e("v_lshlrev_b32 %s, 2, %s" % (vr(c0), vr(c0)))
    e("v_subrev_u32 %s, %s, %s" % (vr(c0), sr(sStart), vr(c0)))
    e("v_lshl_add_u32 %s, %s, 7, %s" % (vr(c0), vr(c0), vr(c1)))
    for q_ in range(8):
        e("v_add_u32 %s, %d, %s" % (vr(EA_ + q_), (8 * (q_ >> 2) + (q_ & 3)) * 128, vr(c0)))
        e("v_and_b32 %s, 0x7ff, %s" % (vr(EA_ + q_), vr(EA_ + q_)))
    e("s_mov_b32 s3, 0x358637bd")
    for f in range(2):
        for q_ in range(8):
            e("v_add_f32 %s, s3, %s" % (vr(r.ACC[f] + q_), vr(r.ACC[f] + q_)))
        for q_ in range(8):
            e("v_rcp_f32 %s, %s" % (vr(r.ACC[f] + q_), vr(r.ACC[f] + q_)))
    e("s_waitcnt lgkmcnt(0)")
    for q_ in range(8):
        for f in range(2):
            u = r.ACC[f] + q_
            if f == 0:
                e("v_lshlrev_b32 %s, 16, %s" % (vr(c0), vr(r.U + q_))); e("v_lshlrev_b32 %s, 16, %s" % (vr(c1), vr(XR + q_)))
            else:
                e("v_and_b32 %s, 0xffff0000, %s" % (vr(c0), vr(r.U + q_))); e("v_and_b32 %s, 0xffff0000, %s" % (vr(c1), vr(XR + q_)))
            e("v_fmac_f32 %s, %s, %s" % (vr(c0), vr(u), vr(u + 8)))
            e("v_max_f32 %s, 0, %s" % (vr(c0), vr(c0)))
            e("v_add_f32 %s, %s, %s" % (vr(u), vr(c1), vr(c0)))
        e("v_cvt_pk_bf16_f32 %s, %s, %s" % (vr(r.U + q_), vr(r.ACC[0] + q_), vr(r.ACC[1] + q_)))
        e("buffer_store_dword %s, %s, %s, 0 offen %s" % (vr(r.U + q_), vr(EA_ + q_), sr(SOUT, 4), OSF))
    if STAMP:
        e("s_waitcnt vmcnt(0)")
        stamp("end"); stamp("rtend", True)
        e("s_sub_u32 s100, %d, %s" % (SPINMAX, sr(sSpin))); e("v_writelane_b32 v%d, s100, 29" % STV)
        e("s_getreg_b32 s100, hwreg(HW_REG_HW_ID)"); e("v_writelane_b32 v%d, s100, 30" % STV)
        e("s_lshl_b32 s3, s2, 3"); e("s_add_u32 s3, s3, %s" % sr(sW)); e("s_lshl_b32 s3, s3, 7"); e("s_add_u32 s3, s3, 0x%x" % WS_DBG)
        srd(SA, 26, 128, "s3")
        e("v_lshlrev_b32 %s, 2, %s" % (vr(c0), vr(lane)))
        e("buffer_store_dword v%d, %s, %s, 0 offen" % (STV, vr(c0), sr(SA, 4)))
    if DW:
        e("s_waitcnt vmcnt(0) lgkmcnt(0)")
        lab("SPIN")
        e("s_memrealtime s[100:101]"); e("s_waitcnt lgkmcnt(0)")
        e("s_sub_u32 s100, s100, s98"); e("s_cmp_lt_u32 s100, 6000"); e("s_cbranch_scc1 SPIN")
    lab("K_END")
    e("s_endpgm")
    for name, rd, ri in retries:
        lab(name + "_R")
        e("s_mov_b64 exec, vcc")
        if int(opts.get('rsl', 0)): e("s_sleep %d" % int(opts.get('rsl', 0)))
        e(rload(rd, ri, "sc0 sc1"))
        e("s_sub_u32 %s, %s, 1" % (sr(sSpin), sr(sSpin)))
        e("s_waitcnt vmcnt(0)")
        e("s_cbranch_scc0 %s" % name)
        e("s_endpgm")
    lab("LATER")
    e(riread(0)); e(riread(1, RI1))
    pointers()
    e("s_waitcnt lgkmcnt(0)")
    e(rload(r.RD, r.RI)); e(rload(RD1, RI1))
    e("s_branch NOW")
    lab("MORE")
    e("s_mov_b32 %s, 0" % sr(sFirst))
    e("s_waitcnt vmcnt(0) lgkmcnt(0)")
    e("s_nop 15")
    e("s_lshr_b32 s3, %s, 2" % sr(sT)); e("s_lshl_b32 s3, s3, 4")
    e("s_and_b32 s97, %s, 3" % sr(sT)); e("s_lshl_b32 s97, s97, 1"); e("s_add_u32 s3, s3, s97")
    e("v_lshl_add_u32 %s, %s, 15, s3" % (vr(c0), vr(lane)))
    for i in range(4):
        e("buffer_load_ushort %s, %s, %s, 0 offen sc0 sc1" % (vr(EN + i), vr(c0), sr(SOFS, 4)))
        e("buffer_load_ushort %s, %s, %s, 0 offen offset:2 sc0 sc1" % (vr(D + i), vr(c0), sr(SOFS, 4)))
        e("v_add_u32 %s, 8192, %s" % (vr(c0), vr(c0)))
    expand_pre()
    zero_list()
    e("s_waitcnt vmcnt(0)")
    for i in range(4): e("v_lshl_or_b32 %s, %s, 16, %s" % (vr(EN + i), vr(D + i), vr(EN + i)))
    e("s_branch EXPAND")
    return r.n

hdr = open('cdna_kernels/%s.s.ref' % NAME).read().split('\n')
hdr = [l for l in hdr if l.startswith(';   offset') or l.startswith('; Kernarg')]
L.append('.amdgcn_target "amdgcn-amd-amdhsa--gfx950"')
L.append('.text')
nv = kernel()
L.append('.section .rodata,"a"')
L += [".p2align 6", ".amdhsa_kernel %s" % KN, "  .amdhsa_next_free_vgpr 256", "  .amdhsa_next_free_sgpr 102",
      "  .amdhsa_accum_offset 256", "  .amdhsa_group_segment_fixed_size 0", "  .amdhsa_kernarg_size 96",
      "  .amdhsa_user_sgpr_count 2", "  .amdhsa_user_sgpr_kernarg_segment_ptr 1", "  .amdhsa_system_sgpr_workgroup_id_x 1",
      ".end_amdhsa_kernel"]
if opts.get('list', '0') == '1':
    top = hdr + ["; @launch kernel=%s grid=(256,1,1) block=(512,1,1) lds=%d" % (KN, LDS_BYTES)]
else:
    top = hdr + ["; @launch grid=(256,1,1) block=(512,1,1) lds=%d" % LDS_BYTES]
open(OUT, 'w').write("\n".join(top + L) + "\n")
if STAMP: open('stamps.txt', 'w').write(" ".join(names))
print("vgprs:", nv, "lines:", len(L))
```

```python
import sys, re

NAME = "standalone__edge_featured_mpnn_gatedgcn__graph"
KN = NAME + "_kernel"
N_NODES = 25000
CH = 3200
NC = 250
TMUL = 5368
WS_REC = 0
WS_OFF = 0xD00000
WS_EPO = 0xF00000
WS_DBG = 0x1000000
NEGLOG2E = 0xBFB8AA3B
SPINMAX = 200000

opts = dict(a.split('=') for a in sys.argv[1:] if '=' in a)
OUT = opts.get('out', 'cdna_kernels/%s.s' % NAME)
STAMP = int(opts.get('stamp', 0))
STF = opts.get('stf', 'sc1').replace('+', ' ')
LDF = opts.get('ldf', 'nt').replace('+', ' ')
RLF = opts.get('rlf', '').replace('+', ' ')
RL0 = opts.get('rl0', '').replace('+', ' ')
RL2 = opts.get('rl2', '').replace('+', ' ')
XPF = int(opts.get('xpf', 0))
PLF = opts.get('plf', 'sc1').replace('+', ' ')
OSF = opts.get('osf', '').replace('+', ' ')
DW = int(opts.get('dw', 0))
LOWS = opts.get('lows', '')
DELAY = int(opts.get('delay', 0))

L = []
def e(s): L.append("    " + s)
def lab(s): L.append(s + ":")
def vr(a, n=1): return "v%d" % a if n == 1 else "v[%d:%d]" % (a, a + n - 1)
def sr(a, n=1): return "s%d" % a if n == 1 else "s[%d:%d]" % (a, a + n - 1)

DPPS = ["row_shr:1 row_mask:0xf bank_mask:0xf", "row_shr:2 row_mask:0xf bank_mask:0xf",
        "row_shr:4 row_mask:0xf bank_mask:0xf", "row_shr:8 row_mask:0xf bank_mask:0xf",
        "row_bcast:15 row_mask:0xa bank_mask:0xf", "row_bcast:31 row_mask:0xc bank_mask:0xf"]
def scan64(op, v, fill=()):
    fill = list(fill)
    for m in DPPS:
        n = 0
        while n < 2 and fill:
            e(fill.pop(0)); n += 1
        if n < 2: e("s_nop %d" % (1 - n))
        e("%s_dpp %s, %s, %s %s" % (op, vr(v), vr(v), vr(v), m))
    for f in fill: e(f)

def srd(d, base, nbytes, add=None, stride=0, sub=None):
    if sub is not None:
        e("s_sub_u32 %s, %s, %s" % (sr(d), sr(base), sub))
        e("s_subb_u32 %s, %s, 0" % (sr(d + 1), sr(base + 1)))
        e("s_and_b32 %s, %s, 0xffff" % (sr(d + 1), sr(d + 1)))
    elif add is None:
        e("s_mov_b32 %s, %s" % (sr(d), sr(base)))
        e("s_and_b32 %s, %s, 0xffff" % (sr(d + 1), sr(base + 1)))
    else:
        e("s_add_u32 %s, %s, %s" % (sr(d), sr(base), add))
        e("s_addc_u32 %s, %s, 0" % (sr(d + 1), sr(base + 1)))
        e("s_and_b32 %s, %s, 0xffff" % (sr(d + 1), sr(d + 1)))
    if stride:
        e("s_or_b32 %s, %s, 0x%x" % (sr(d + 1), sr(d + 1), stride << 16))
    e("s_mov_b32 %s, %s" % (sr(d + 2), nbytes if isinstance(nbytes, str) else "0x%x" % nbytes))
    e("s_mov_b32 %s, 0x20000" % sr(d + 3))

STV = 255
names = []
def stamp(name, real=False):
    if not STAMP: return
    if 'only' in opts and name not in opts['only'].split(',') + ['rt0', 'start', 'loop', 'rtloop', 'loopend', 'rtloopend', 'end', 'rtend']: return
    k = len(names); names.append(name)
    e("s_mem%stime s[100:101]" % ("real" if real else ""))
    e("s_waitcnt lgkmcnt(0)")
    e("v_writelane_b32 v%d, s100, %d" % (STV, k))
def mark(*modes):
    if DW in modes: e("s_memrealtime s[98:99]"); e("s_waitcnt lgkmcnt(0)")

TS, TOTA, WTOT = 0, 64, 128
RECB = 1024
HIST = RECB + CH * 16
XTB = RECB + 65536
XBB = XTB + 16384
PCB = XBB + 65536
LDS_BYTES = PCB + 8192
LOFF = 8192 - 2048 - 16

class R: pass
def alloc():
    r = R(); p = 0
    def a(n, al=1):
        nonlocal p
        p = (p + al - 1) // al * al
        b = p; p += n
        return b
    r.LANE = a(1); r.SI = a(1)
    r.PS = a(1, 2); r.PC = a(1); r.PT = a(1, 2); r.PE = a(1); r.PL = a(1, 2); r.PW = a(1)
    r.XA0 = a(1); r.XA1 = a(1); r.TI = a(1); r.TMP = a(3); r.RI = a(1)
    r.SO = a(4, 2); r.XI = a(8, 2); r.T = a(4, 2); r.RD = a(4, 2); r.U = a(8, 2)
    r.S = a(8, 2); r.ETA = a(8, 2); r.X = a(16, 2)
    r.ACC = [a(16, 2), a(16, 2)]
    r.G = [a(16, 2), None]; r.V = [a(16, 2), None]
    r.G[1] = a(16, 2); r.V[1] = a(16, 2)
    r.WB = a(32, 2); r.WV = a(32, 2); r.AT = a(16, 2)
    r.n = p
    return r

def mfma(d, a, b, c):
    return "v_mfma_f32_32x32x16_bf16 %s, %s, %s, %s" % (vr(d, 16), vr(a, 4), vr(b, 4), "0" if c is None else vr(c, 16))
def smf(d, a, b, idx, abid=0):
    return "v_smfmac_f32_32x32x32_bf16 %s, %s, %s, %s%s" % (vr(d, 16), vr(a, 4), vr(b, 8), vr(idx), " abid:1" if abid else "")
SOFF = [0, 64, 256, 320]

def kernel():
    r = alloc()
    assert r.n <= 255, r.n
    SX, SXI, SOFS, SRC, SOUT, SA, SB, SC_ = 28, 32, 36, 40, 44, 48, 52, 56
    sW, sT, sStart, sEnd, sTot, sW0, sNG, sXB, sREC, sFirst, sBin, sMag, sBLK, sXT, sTag, sTagH, sSpin, sLim, sKm, sKx = range(60, 80)
    sINC = 80; sINC2 = 82; sSO = 84; sE2 = 88; sRET = 90
    lane = r.LANE
    c0, c1, c2 = r.TMP, r.TMP + 1, r.TMP + 2
    MAG = -(-(1 << 41) // 671)
    for t in range(2049):
        n = t * 8192 + 670
        assert (n * MAG) >> 41 == n // 671
    def tile_range():
        e("s_lshl_b32 s3, %s, 13" % sr(sT)); e("s_add_u32 s3, s3, 670")
        e("s_mul_hi_u32 %s, s3, %s" % (sr(sStart), sr(sMag))); e("s_lshr_b32 %s, %s, 9" % (sr(sStart), sr(sStart)))
        e("s_add_u32 s3, s3, 8192")
        e("s_mul_hi_u32 %s, s3, %s" % (sr(sEnd), sr(sMag))); e("s_lshr_b32 %s, %s, 9" % (sr(sEnd), sr(sEnd)))
    L.append(".globl %s" % KN); L.append(".p2align 8"); L.append(".type %s,@function" % KN); lab(KN)
    e("s_load_dwordx16 s[4:19], s[0:1], 0")
    e("s_load_dwordx8 s[20:27], s[0:1], 64")
    e("s_cmp_gt_u32 s2, 255")
    e("s_cbranch_scc1 K_END")
    e("s_setprio 3")
    mark(1)
    stamp("rt0", True); stamp("start")
    q = r.X
    TID = q; T16 = q + 1; T32 = q + 2; ONE = q + 3; ZER = q + 4
    DST = q + 8
    SRCV = q + 16
    EA = q + 24
    HA = q + 56
    RK = q + 64
    CN = q + 72
    ST = q + 76
    PC_ = q + 80
    tA, tB, tC, tD, tE, tF = [q + 84 + i for i in range(6)]
    EP = q + 90
    T16B = q + 92; T32B = q + 93
    assert q + 94 <= r.WB
    WRAW = r.AT
    WCR = r.ETA
    e("v_mov_b32 %s, v0" % vr(TID))
    e("v_lshrrev_b32 %s, 6, v0" % vr(tA))
    e("v_lshlrev_b32 %s, 4, v0" % vr(T16))
    e("v_readfirstlane_b32 %s, %s" % (sr(sW), vr(tA)))
    e("v_lshlrev_b32 %s, 5, v0" % vr(T32))
    e("v_and_b32 %s, 63, v0" % vr(lane))
    e("v_add_u32 %s, 8192, %s" % (vr(T16B), vr(T16)))
    e("v_add_u32 %s, 16384, %s" % (vr(T32B), vr(T32)))
    for i in range(4): e("v_mov_b32 %s, 0" % vr(ZER + i))
    e("v_mov_b32 %s, 1" % vr(ONE))
    e("ds_write_b128 %s, %s offset:%d" % (vr(T16), vr(ZER, 4), HIST))
    e("s_min_u32 s3, s2, %d" % (NC - 1))
    e("s_mul_i32 s92, s3, %d" % (CH * 4))
    e("s_lshl_b32 s93, s92, 1")
    e("s_cmp_lt_u32 s2, %d" % NC)
    e("s_cselect_b32 s94, %d, 0" % (CH * 4))
    e("s_cselect_b32 s95, %d, 0" % (CH * 8))
    e("s_cselect_b32 s96, %d, 0" % (CH // 4))
    e("s_and_b32 s3, s2, 7"); e("s_lshl_b32 s3, s3, 5"); e("s_lshr_b32 %s, s2, 3" % sr(sBin)); e("s_add_u32 %s, %s, s3" % (sr(sBin), sr(sBin)))
    e("s_lshl_b32 %s, %s, 13" % (sr(sREC), sr(sW)))
    e("s_add_u32 %s, %s, %d" % (sr(sXB), sr(sREC), XBB))
    e("s_add_u32 %s, %s, %d" % (sr(sREC), sr(sREC), RECB))
    e("s_lshl_b32 %s, %s, 3" % (sr(sT), sr(sBin))); e("s_add_u32 %s, %s, %s" % (sr(sT), sr(sT), sr(sW)))
    e("s_mov_b32 %s, 0x%x" % (sr(sMag), MAG))
    tile_range()
    e("s_waitcnt lgkmcnt(0)")
    if int(opts.get('wsb', 0)):
        e("s_add_u32 s26, s26, 0x%x" % (int(opts['wsb']) << 20)); e("s_addc_u32 s27, s27, 0")
    srd(SA, 10, "s94", "s92")
    e("buffer_load_dwordx4 %s, %s, %s, 0 offen %s" % (vr(DST, 4), vr(T16), sr(SA, 4), LDF))
    e("buffer_load_dwordx4 %s, %s, %s, 0 offen %s" % (vr(DST + 4, 4), vr(T16B), sr(SA, 4), LDF))
    srd(SOUT, 26, 8, "0x%x" % WS_EPO)
    e("buffer_load_dwordx2 %s, %s, %s, 0 offen sc1" % (vr(EP, 2), vr(ZER), sr(SOUT, 4)))
    DF = int(opts.get('df', 2))
    SS, SE = (SB, SC_) if not DF else (SRC, SOFS)
    srd(SS, 8, "s94", "s92")
    srd(SE, 6, "s95", "s93")
    RL = ["buffer_load_dwordx4 %s, %s, %s, 0 offen %s" % (vr(SRCV, 4), vr(T16), sr(SS, 4), LDF),
          "buffer_load_dwordx4 %s, %s, %s, 0 offen %s" % (vr(SRCV + 4, 4), vr(T16B), sr(SS, 4), LDF)]
    for k in (2, 3, 0, 1):
        RL.append("buffer_load_dwordx4 %s, %s, %s, 0 offen offset:%d %s" % (vr(EA + 8 * k, 4), vr(T32B if k >> 1 else T32), sr(SE, 4), 16 * (k & 1), LDF))
    NE = int(opts.get('ne', 2))
    NE2 = int(opts.get('ne2', 0))
    for _ in range(NE): e(RL.pop(0))
    def rest_loads():
        for t in RL: e(t)
        if DF:
            srd(SOFS, 26, 256 * 8192, "0x%x" % WS_OFF)
            srd(SRC, 26, NC * CH, stride=16)
    if DF == 0: rest_loads()
    e("v_cmp_gt_u32 vcc, s96, %s" % vr(TID))
    e("s_mov_b64 s[92:93], vcc")
    e("v_add_u32 %s, 512, %s" % (vr(tA), vr(TID)))
    e("v_cmp_gt_u32 vcc, s96, %s" % vr(tA))
    e("s_mov_b64 s[94:95], vcc")
    e("s_and_b32 s3, %s, 3" % sr(sW))
    e("s_cmp_eq_u32 s3, 1"); e("s_cselect_b32 s12, s18, s12"); e("s_cselect_b32 s13, s19, s13")
    e("s_cmp_eq_u32 s3, 2"); e("s_cselect_b32 s12, s14, s12"); e("s_cselect_b32 s13, s15, s13")
    e("s_cmp_eq_u32 s3, 3"); e("s_cselect_b32 s12, s20, s12"); e("s_cselect_b32 s13, s21, s13")
    srd(SA, 12, 8192)
    srd(SB, 16, 512)
    srd(SX, 4, N_NODES * 128)
    H = r.SO
    XT0, XT1, J4, L16 = r.RD, r.RD + 1, r.RD + 2, r.RD + 3
    e("v_lshrrev_b32 %s, 5, %s" % (vr(H), vr(lane)))
    e("v_and_b32 %s, 31, %s" % (vr(J4), vr(lane)))
    e("v_lshlrev_b32 %s, 2, %s" % (vr(J4), vr(J4)))
    e("v_lshlrev_b32 %s, 4, %s" % (vr(L16), vr(lane)))
    e("v_lshrrev_b32 %s, 3, %s" % (vr(tA), vr(lane)))
    e("v_xor_b32 %s, %s, %s" % (vr(tB), vr(tA), vr(lane)))
    e("v_and_b32 %s, 7, %s" % (vr(tB), vr(tB)))
    e("v_lshlrev_b32 %s, 4, %s" % (vr(tB), vr(tB)))
    e("v_subrev_u32 %s, %s, %s" % (vr(tA), sr(sStart), vr(tA)))
    e("v_and_b32 %s, 15, %s" % (vr(tA), vr(tA)))
    e("v_xor_b32 %s, 8, %s" % (vr(tC), vr(tA)))
    e("v_add_u32 %s, %s, %s" % (vr(tA), sr(sStart), vr(tA)))
    e("v_add_u32 %s, %s, %s" % (vr(tC), sr(sStart), vr(tC)))
    e("v_lshl_add_u32 %s, %s, 7, %s" % (vr(XT0), vr(tA), vr(tB)))
    e("v_lshl_add_u32 %s, %s, 7, %s" % (vr(XT1), vr(tC), vr(tB)))
    def late_loads():
        e("s_cmp_lt_u32 %s, 4" % sr(sW))
        e("s_cbranch_scc1 LATE_B")
        e("s_and_b32 s93, %s, 3" % sr(sW)); e("s_lshl_b32 s93, s93, 14")
        e("s_add_u32 m0, s93, %d" % XBB)
        e("s_mov_b32 s3, 4096")
        for k in range(4):
            e("buffer_load_dwordx4 %s, %s, 0 offen offset:%d lds" % (vr(L16), sr(SA, 4), k * 1024))
        e("s_add_u32 m0, s93, %d" % (XBB + 8192))
        e("s_nop 0")
        for k in range(4):
            e("buffer_load_dwordx4 %s, %s, s3 offen offset:%d lds" % (vr(L16), sr(SA, 4), k * 1024))
        if XPF:
            e("s_lshr_b32 s3, s2, 3"); e("s_mul_i32 s3, s3, %d" % (782 * 128))
            e("s_lshr_b32 s94, s93, 1"); e("s_mul_i32 s94, s94, %d" % XPF); e("s_add_u32 s3, s3, s94")
            e("v_lshl_add_u32 %s, %s, 7, s3" % (vr(tF), vr(lane)))
            for k in range(XPF):
                e("buffer_load_dword %s, %s, %s, 0 offen" % (vr(tE), vr(tF), sr(SX, 4)))
                if k + 1 < XPF: e("v_add_u32 %s, 8192, %s" % (vr(tF), vr(tF)))
        lab("LATE_B")
        e("s_lshl_b32 s3, %s, 11" % sr(sW))
        e("s_add_u32 m0, s3, %d" % XTB)
        e("s_mov_b32 exec_hi, 0")
        for i in range(4):
            e("buffer_load_dword %s, %s, %s, 0 offen offset:%d" % (vr(WCR + i), vr(J4), sr(SB, 4), i * 128))
        e("s_mov_b64 exec, -1")
        e("buffer_load_dwordx4 %s, %s, 0 offen lds" % (vr(XT0), sr(SX, 4)))
        e("s_add_u32 m0, s3, %d" % (XTB + 1024))
        e("s_nop 0")
        e("buffer_load_dwordx4 %s, %s, 0 offen lds" % (vr(XT1), sr(SX, 4)))
    e("s_mul_i32 s3, s2, %d" % (CH * 16))
    NLATE = 0
    srd(SC_, 26, CH * 16, "s3")
    if not DF: srd(SOFS, 26, 256 * 8192, "0x%x" % WS_OFF)
    srd(SXI, 4, N_NODES, stride=128, sub="3072")
    if not DF: srd(SRC, 26, NC * CH, stride=16)
    e("s_mov_b32 %s, 1024" % sr(sINC)); e("s_mov_b32 %s, 1024" % sr(sINC + 1))
    e("s_mov_b32 %s, 256" % sr(sINC2)); e("s_mov_b32 %s, 1024" % sr(sINC2 + 1))
    e("s_mov_b32 %s, 3072" % sr(sSO)); e("s_mov_b32 %s, 2048" % sr(sSO + 1)); e("s_mov_b32 %s, 1024" % sr(sSO + 2))
    e("s_mov_b32 %s, %d" % (sr(sLim), NC * CH))
    e("s_mov_b32 %s, 0xfff0ffff" % sr(sKm))
    e("s_mov_b32 %s, 0" % sr(sW0)); e("s_mov_b32 %s, 1" % sr(sFirst)); e("s_mov_b32 %s, %d" % (sr(sSpin), SPINMAX))
    e("v_mov_b32 %s, 0x%x" % (vr(tA), (1 << 4) | (2 << 8) | (1 << 14) | (2 << 18)))
    e("v_lshlrev_b32 %s, 1, %s" % (vr(tB), vr(lane)))
    e("v_bfe_u32 %s, %s, %s, 2" % (vr(tA), vr(tA), vr(tB)))
    e("v_mul_u32_u24 %s, 0x8001, %s" % (vr(tA), vr(tA)))
    e("v_and_b32 %s, 0x10001, %s" % (vr(tA), vr(tA)))
    e("v_mul_u32_u24 %s, 0x3f80, %s" % (vr(tA), vr(tA)))
    e("v_lshlrev_b32 %s, 2, %s" % (vr(tB), vr(lane)))
    e("s_mov_b64 exec, 0x3ff")
    e("ds_write_b32 %s, %s offset:%d" % (vr(tB), vr(tA), TS))
    e("s_mov_b64 exec, -1")
    e("v_and_b32 %s, 3, %s" % (vr(c0), vr(lane)))
    e("v_bfe_u32 %s, %s, 4, 1" % (vr(c1), vr(lane)))
    e("v_mul_u32_u24 %s, 0x5555, %s" % (vr(r.SI), vr(c1)))
    e("v_or_b32 %s, 0x8888, %s" % (vr(r.SI), vr(r.SI)))
    e("v_xor_b32 %s, %s, %s" % (vr(c2), vr(c0), vr(H)))
    e("v_lshl_or_b32 %s, %s, 2, %s" % (vr(c2), vr(c1), vr(c2)))
    e("v_lshlrev_b32 %s, 4, %s" % (vr(r.XI + 1), vr(c2)))
    e("v_mov_b32 %s, %s" % (vr(r.XI + 3), vr(r.XI + 1)))
    e("v_xor_b32 %s, 32, %s" % (vr(r.XI + 5), vr(r.XI + 1)))
    e("v_mov_b32 %s, %s" % (vr(r.XI + 7), vr(r.XI + 5)))
    e("v_bfe_u32 %s, %s, 3, 2" % (vr(c2), vr(lane)))
    e("v_xor_b32 %s, %s, %s" % (vr(c2), vr(c2), vr(H)))
    e("v_lshlrev_b32 %s, 4, %s" % (vr(r.XA0), vr(c2)))
    e("v_lshl_or_b32 %s, %s, 6, %s" % (vr(r.XA0), vr(c0), vr(r.XA0)))
    e("v_bfe_u32 %s, %s, 3, 1" % (vr(c2), vr(lane)))
    e("v_lshl_or_b32 %s, %s, 9, %s" % (vr(r.XA0), vr(c2), vr(r.XA0)))
    e("v_bfe_u32 %s, %s, 2, 1" % (vr(tA), vr(lane)))
    e("v_lshl_or_b32 %s, %s, 10, %s" % (vr(r.XA0), vr(tA), vr(r.XA0)))
    e("v_lshl_or_b32 %s, %s, 11, %s" % (vr(r.XA0), vr(c1), vr(r.XA0)))
    e("v_xor_b32 %s, 32, %s" % (vr(r.XA1), vr(r.XA0)))
    e("v_add_u32 %s, %s, %s" % (vr(r.XA0), sr(sXB), vr(r.XA0)))
    e("v_add_u32 %s, %s, %s" % (vr(r.XA1), sr(sXB), vr(r.XA1)))
    FA, FU = r.SO + 2, r.SO + 3
    e("v_lshl_or_b32 %s, %s, 1, %s" % (vr(c2), vr(tA), vr(c2)))
    e("v_lshl_or_b32 %s, %s, 1, %s" % (vr(c2), vr(c2), vr(c1)))
    e("v_mad_u32_u24 %s, %s, 3, %s" % (vr(c2), vr(c2), vr(c0)))
    e("v_add_u32 %s, 9, %s" % (vr(c2), vr(c2)))
    e("v_and_b32 %s, 15, %s" % (vr(c2), vr(c2)))
    for dst, src in ((FA, c2), (FU, None)):
        if src is None:
            e("v_and_b32 %s, 15, %s" % (vr(c2), vr(lane)))
        e("v_xor_b32 %s, %s, %s" % (vr(tA), vr(c2), vr(H)))
        e("v_and_b32 %s, 7, %s" % (vr(tA), vr(tA)))
        e("v_lshlrev_b32 %s, 4, %s" % (vr(tA), vr(tA)))
        e("v_lshl_or_b32 %s, %s, 7, %s" % (vr(dst), vr(c2), vr(tA)))
    e("v_lshlrev_b32 %s, 4, %s" % (vr(tA), vr(H)))
    e("v_mov_b32 %s, 0x3f80" % vr(tB))
    e("v_lshlrev_b32 %s, %s, %s" % (vr(r.T + 1), vr(tA), vr(tB)))
    e("v_mov_b32 %s, %s" % (vr(r.T + 2), vr(r.T + 1)))
    e("v_mov_b32 %s, %s" % (vr(r.T + 3), vr(r.T + 1)))
    e("s_lshl_b32 s3, %s, 2" % sr(sW))
    e("v_mov_b32 %s, s3" % vr(tE))
    e("v_and_b32 %s, 7, %s" % (vr(tF), vr(lane)))
    e("v_lshlrev_b32 %s, 2, %s" % (vr(tF), vr(tF)))
    e("s_waitcnt lgkmcnt(0)")
    e("s_barrier")
    if DF == 1: rest_loads()
    if DF == 2:
        for _ in range(NE2): e(RL.pop(0))
    e("s_waitcnt vmcnt(%d)" % (1 + NE + NE2 if DF == 2 else 7))
    stamp("dst")
    mark(6)
    for rd in range(2):
        e("s_mov_b64 exec, s[%d:%d]" % (92 + 2 * rd, 93 + 2 * rd))
        e("s_cbranch_execz P1_A")
        for i in range(4 * rd, 4 * rd + 4):
            e("v_mul_u32_u24 %s, %d, %s" % (vr(HA + i), TMUL, vr(DST + i)))
            e("v_lshrrev_b32 %s, 14, %s" % (vr(HA + i), vr(HA + i)))
            e("v_and_b32 %s, 0x1ffc, %s" % (vr(HA + i), vr(HA + i)))
        for i in range(4 * rd, 4 * rd + 4):
            e("ds_add_rtn_u32 %s, %s, %s offset:%d" % (vr(RK + i), vr(HA + i), vr(ONE), HIST))
    lab("P1_A")
    e("s_mov_b64 exec, -1")
    if DF == 2: rest_loads()
    key = []
    for i in range(8):
        d = DST + i
        key += ["v_and_b32 %s, 15, %s" % (vr(d), vr(d)),
                "v_mul_u32_u24 %s, 11, %s" % (vr(c0), vr(d)),
                "v_lshrrev_b32 %s, 5, %s" % (vr(c0), vr(c0)),
                "v_mad_i32_i24 %s, %s, -3, %s" % (vr(c1), vr(c0), vr(d)),
                "v_add_u32 %s, 1, %s" % (vr(c1), vr(c1)),
                "v_lshl_add_u32 %s, %s, 1, 4" % (vr(c0), vr(c0)),
                "v_lshl_or_b32 %s, %s, %s, %s" % (vr(d), vr(c1), vr(c0), vr(d))]
    for _ in range(21): e(key.pop(0))
    e("s_waitcnt lgkmcnt(0)")
    e("s_barrier")
    stamp("hist")
    e("ds_read_b128 %s, %s offset:%d" % (vr(CN, 4), vr(T16), HIST))
    for _ in range(7): e(key.pop(0))
    e("s_waitcnt lgkmcnt(0)")
    e("v_add_u32 %s, %s, %s" % (vr(ST + 2), vr(CN), vr(CN + 1)))
    e("v_add_u32 %s, %s, %s" % (vr(ST + 3), vr(ST + 2), vr(CN + 2)))
    e("v_add_u32 %s, %s, %s" % (vr(tA), vr(ST + 3), vr(CN + 3)))
    e("v_mov_b32 %s, %s" % (vr(tB), vr(tA)))
    scan64("v_add_u32", tB, [key.pop(0) for _ in range(12)])
    e("s_mov_b32 exec_lo, 0"); e("s_mov_b32 exec_hi, 0x80000000")
    e("ds_write_b32 %s, %s offset:%d" % (vr(tE), vr(tB), WTOT))
    e("s_mov_b64 exec, -1")
    e("s_waitcnt vmcnt(%d)" % (6 + NLATE))
    e("v_readfirstlane_b32 %s, %s" % (sr(sTag), vr(EP)))
    e("v_readfirstlane_b32 %s, %s" % (sr(sE2), vr(EP + 1)))
    e(key.pop(0)); e(key.pop(0))
    e("s_add_u32 %s, %s, 1" % (sr(sTag), sr(sTag)))
    e("s_add_u32 %s, %s, 0x10000" % (sr(sE2), sr(sE2)))
    e("s_and_b32 %s, %s, 0xffff0000" % (sr(sTagH), sr(sE2)))
    e("s_waitcnt lgkmcnt(0)")
    e("s_barrier")
    e("ds_read_b32 %s, %s offset:%d" % (vr(tC), vr(tF), WTOT))
    for _ in range(7): e(key.pop(0))
    e("v_mov_b32 %s, %s" % (vr(PC_ + 3), sr(sTag)))
    e("s_waitcnt lgkmcnt(0)")
    e("v_mov_b32 %s, %s" % (vr(tD), vr(tC)))
    for sh in (1, 2, 4):
        e(key.pop(0)); e(key.pop(0))
        e("v_add_u32_dpp %s, %s, %s row_shr:%d row_mask:0xf bank_mask:0xf" % (vr(tD), vr(tD), vr(tD), sh))
    e("v_sub_u32 %s, %s, %s" % (vr(tD), vr(tD), vr(tC)))
    e(key.pop(0))
    assert not key
    e("v_readlane_b32 s3, %s, %s" % (vr(tD), sr(sW)))
    e("s_lshl_b32 s91, s2, 13")
    e("s_nop 0")
    e("v_add_u32 %s, s3, %s" % (vr(tB), vr(tB)))
    e("v_sub_u32 %s, %s, %s" % (vr(ST), vr(tB), vr(tA)))
    e("v_add_u32 %s, %s, %s" % (vr(ST + 1), vr(ST), vr(CN)))
    e("v_add_u32 %s, %s, %s" % (vr(ST + 2), vr(ST), vr(ST + 2)))
    e("v_add_u32 %s, %s, %s" % (vr(ST + 3), vr(ST), vr(ST + 3)))
    e("v_lshl_or_b32 %s, %s, 16, %s" % (vr(PC_), vr(ST + 1), vr(ST)))
    e("v_lshl_or_b32 %s, %s, 16, %s" % (vr(PC_ + 1), vr(ST + 3), vr(ST + 2)))
    e("v_or_b32 %s, %s, %s" % (vr(PC_ + 2), sr(sTagH), vr(tB)))
    PUB = int(opts.get('pub', 0))
    pub = "buffer_store_dwordx4 %s, %s, %s, s91 offen %s" % (vr(PC_, 4), vr(T16), sr(SOFS, 4), STF)
    if PUB == 0: e(pub)
    for i in range(4): e("v_lshlrev_b32 %s, 4, %s" % (vr(ST + i), vr(ST + i)))
    e("ds_write_b128 %s, %s offset:%d" % (vr(T16), vr(ST, 4), HIST))
    e("s_mov_b32 s3, 0xffff")
    e("s_waitcnt lgkmcnt(0)")
    e("s_barrier")
    stamp("scan")
    mark(5)
    for i in range(8):
        e("ds_read_b32 %s, %s offset:%d" % (vr(HA + i), vr(HA + i), HIST))
    e("s_waitcnt vmcnt(%d)" % (NLATE + (PUB == 0)))
    stamp("inputs")
    mark(9)
    def assemble(rd):
        for k in range(2 * rd, 2 * rd + 2):
            e("v_mov_b32 %s, %s" % (vr(EA + 8 * k + 4), vr(EA + 8 * k + 2)))
            e("v_mov_b32 %s, %s" % (vr(EA + 8 * k + 5), vr(EA + 8 * k + 3)))
        for i in range(4 * rd, 4 * rd + 4):
            e("v_xor_b32 %s, s3, %s" % (vr(SRCV + i), vr(SRCV + i)))
            e("v_lshl_or_b32 %s, %s, 16, %s" % (vr(EA + 4 * i + 2), vr(DST + i), vr(SRCV + i)))
            e("v_mov_b32 %s, %s" % (vr(EA + 4 * i + 3), sr(sTag)))
    for rd in range(2):
        e("s_mov_b64 exec, s[%d:%d]" % (92 + 2 * rd, 93 + 2 * rd))
        e("s_cbranch_execz P1_B")
        assemble(rd)
        e("s_waitcnt lgkmcnt(4)")
        for i in range(4 * rd, 4 * rd + 4):
            e("v_lshl_add_u32 %s, %s, 4, %s" % (vr(HA + i), vr(RK + i), vr(HA + i)))
        for i in range(4 * rd, 4 * rd + 4):
            e("ds_write_b128 %s, %s offset:%d" % (vr(HA + i), vr(EA + 4 * i, 4), RECB))
    lab("P1_B")
    e("s_mov_b64 exec, -1")
    if PUB == 2: e(pub)
    late_loads()
    PA = tA; PW_ = tB; PC2 = ST
    e("v_bfe_u32 %s, %s, 1, 7" % (vr(tC), vr(TID)))
    e("v_and_b32 %s, 1, %s" % (vr(tD), vr(TID)))
    e("v_lshlrev_b32 %s, 13, %s" % (vr(PA), vr(tC)))
    e("v_lshl_or_b32 %s, %s, 4, %s" % (vr(PA), vr(tD), vr(PA)))
    e("s_lshl_b32 s97, %s, 5" % sr(sBin))
    e("s_add_u32 s96, s97, 0x100000")
    poll = ["buffer_load_dwordx4 %s, %s, %s, s97 offen %s" % (vr(PC_, 4), vr(PA), sr(SOFS, 4), PLF),
            "buffer_load_dwordx4 %s, %s, %s, s96 offen %s" % (vr(PC2, 4), vr(PA), sr(SOFS, 4), PLF)]
    e("v_lshlrev_b32 %s, 12, %s" % (vr(PW_), vr(tD)))
    e("v_lshl_or_b32 %s, %s, 2, %s" % (vr(PW_), vr(tC), vr(PW_)))
    e("v_add_u32 %s, %d, %s" % (vr(PW_), PCB, vr(PW_)))
    e("v_add_u32 %s, %d, %s" % (vr(c2), XBB + 4096, vr(L16)))
    WL = r.WB; WH = r.WB + 16; WP = r.WV
    e("s_mov_b32 s92, 0x%x" % NEGLOG2E)
    EN = r.G[1]; Z = r.V[1]; P = r.V[1] + 4; D = r.V[1] + 8
    LA, CB, PREV, JB = [r.V[1] + 12 + i for i in range(4)]
    TOT, INC, C512, W4 = r.PS, r.PC, r.PT, r.PE
    M = r.S
    def expand_pre():
        for i in range(4): e("v_mov_b32 %s, 0" % vr(Z + i))
        e("v_lshl_add_u32 %s, %s, 5, %s" % (vr(LA), vr(lane), sr(sREC)))
        e("v_mul_u32_u24 %s, %d, %s" % (vr(CB), 4 * CH, vr(lane)))
        e("v_subrev_u32 %s, %s, %s" % (vr(CB), sr(sW0), vr(CB)))
        e("v_lshl_add_u32 %s, %s, 3, %s" % (vr(JB), vr(lane), sr(sW0)))
        e("v_mov_b32 %s, 512" % vr(C512))
        e("v_mov_b32 %s, 0" % vr(PREV))
        e("v_lshl_add_u32 %s, %s, 2, %s" % (vr(r.PL), vr(lane), sr(sREC)))
        e("s_lshl_b32 s3, %s, 2" % sr(sW))
        e("v_mov_b32 %s, s3" % vr(W4))
    def zero_list():
        e("ds_write_b128 %s, %s offset:%d" % (vr(LA), vr(Z, 4), LOFF))
        e("ds_write_b128 %s, %s offset:%d" % (vr(LA), vr(Z, 4), LOFF + 16))
    expand_pre()
    e("s_lshl_b32 s3, %s, 10" % sr(sW)); e("s_add_u32 s3, s3, %d" % PCB)
    e("v_add_u32 %s, s3, %s" % (vr(r.RI), vr(L16)))
    e("s_waitcnt lgkmcnt(0)")
    e("s_barrier")
    stamp("scatter")
    mark(7)
    if PUB == 1: e(pub)
    e("s_cmp_gt_u32 %s, 3" % sr(sW))
    e("s_cbranch_scc1 P1_D")
    e("s_cmp_ge_u32 s2, %d" % NC)
    e("s_cbranch_scc1 P1_N")
    if DELAY:
        e("s_and_b32 s3, s2, 15"); e("s_cmp_lg_u32 s3, 5"); e("s_cbranch_scc1 P1_ND")
        for _ in range(DELAY): e("s_sleep 100")
        lab("P1_ND")
    CO = DST
    for k in range(13):
        e("ds_read_b128 %s, %s offset:%d" % (vr(CO + 4 * k, 4), vr(T16), RECB + 4096 * k))
    e("v_add_u32 %s, 49152, %s" % (vr(T32), vr(T16)))
    for k in range(13):
        if k < 12: e("s_mov_b32 s3, %d" % (4096 * k))
        e("s_waitcnt lgkmcnt(%d)" % (12 - k))
        if k < 12: e("buffer_store_dwordx4 %s, %s, %s, s3 offen %s" % (vr(CO + 4 * k, 4), vr(T16), sr(SC_, 4), STF))
        else: e("buffer_store_dwordx4 %s, %s, %s, 0 offen %s" % (vr(CO + 4 * k, 4), vr(T32), sr(SC_, 4), STF))
    e("s_waitcnt vmcnt(13)")
    e("s_branch POLL_DONE")
    lab("P1_N")
    e("s_waitcnt vmcnt(0)")
    e("s_branch POLL_DONE")
    lab("P1_D")
    if int(opts.get('early', 1)):
        for t in poll: e(t)
    e("v_lshl_add_u32 %s, %s, 10, %s" % (vr(tC), vr(H), vr(J4)))
    e("s_add_u32 s3, s93, %d" % XBB)
    e("v_add_u32 %s, s3, %s" % (vr(tC), vr(tC)))
    e("s_waitcnt vmcnt(%d)" % ((8 if int(opts.get('early', 1)) else 6) + (PUB == 1) + XPF))
    RAW = DST
    for i in range(32):
        e("ds_read_b32 %s, %s offset:%d" % (vr(RAW + i), vr(tC), (i >> 4) * 8192 + ((i >> 3) & 1) * 2048 + (i & 7) * 128))
    e("s_bitcmp0_b32 %s, 0" % sr(sW))
    e("s_cselect_b32 s3, s92, 1.0")
    e("v_add_u32 %s, s93, %s" % (vr(tC), vr(c2)))
    for hf in range(2):
        e("s_waitcnt lgkmcnt(%d)" % (15 if hf == 0 else 4))
        if hf == 0: e("s_nop 0")
        for i in range(16):
            e("v_lshlrev_b32 %s, 16, %s" % (vr(WL + i), vr(RAW + 16 * hf + i)))
            e("v_and_b32 %s, 0xffff0000, %s" % (vr(WH + i), vr(RAW + 16 * hf + i)))
        for i in range(0, 32, 2):
            e("v_pk_mul_f32 %s, %s, s[2:3] op_sel:[0,1] op_sel_hi:[1,1]" % (vr(WL + i, 2), vr(WL + i, 2)))
        for i in range(16):
            e("v_cvt_pk_bf16_f32 %s, %s, %s" % (vr(WP + 16 * hf + i), vr(WL + 2 * i), vr(WL + 2 * i + 1)))
        for f in range(2):
            for s_ in range(2):
                e("ds_write_b128 %s, %s offset:%d" % (vr(tC), vr(WP + 16 * hf + 8 * f + 4 * s_, 4), f * 8192 + (2 * hf + s_) * 1024))
    if not int(opts.get('early', 1)):
        for t in poll: e(t)
    lab("POLL")
    e("s_waitcnt vmcnt(0)")
    e("v_xor_b32 %s, %s, %s" % (vr(c0), sr(sTagH), vr(PC_ + 2)))
    e("v_xor_b32 %s, %s, %s" % (vr(c1), sr(sTagH), vr(PC2 + 2)))
    e("v_or_b32 %s, %s, %s" % (vr(c0), vr(c0), vr(c1)))
    e("v_lshrrev_b32 %s, 16, %s" % (vr(c0), vr(c0)))
    e("v_xor_b32 %s, %s, %s" % (vr(c1), sr(sTag), vr(PC_ + 3)))
    e("v_xor_b32 %s, %s, %s" % (vr(tD), sr(sTag), vr(PC2 + 3)))
    e("v_or3_b32 %s, %s, %s, %s" % (vr(c0), vr(c0), vr(c1), vr(tD)))
    e("v_cmp_ne_u32 vcc, 0, %s" % vr(c0))
    e("s_cmp_eq_u64 vcc, 0")
    e("s_cbranch_scc1 POLL_OK")
    e("s_mov_b64 exec, vcc")
    for t in poll: e(t)
    e("s_sub_u32 %s, %s, 1" % (sr(sSpin), sr(sSpin)))
    e("s_cbranch_scc0 POLL")
    e("s_endpgm")
    lab("POLL_OK")
    e("s_mov_b64 exec, -1")
    for pc in (PC_, PC2):
        e("v_alignbit_b32 %s, %s, %s, 16" % (vr(pc + 3), vr(pc + 1), vr(pc)))
        e("v_alignbit_b32 %s, %s, %s, 16" % (vr(pc + 2), vr(pc + 2), vr(pc + 1)))
    for pc, off in ((PC_, 0), (PC2, 512)):
        for k, v in enumerate([pc, pc + 3, pc + 1, pc + 2]):
            e("ds_write_b32 %s, %s offset:%d" % (vr(PW_), vr(v), k * 1024 + off))
    lab("POLL_DONE")
    stamp("role")
    e("s_waitcnt lgkmcnt(0)")
    e("s_barrier")
    stamp("offs")
    mark(4)
    wr = []
    WA = r.G[0]; WU = r.G[1]
    for m, base in enumerate([WA, WU, r.WB, r.WV]):
        for u in range(8):
            uu = m * 8 + u
            wr.append("ds_read_b128 %s, %s offset:%d" % (vr(base + 4 * u, 4), vr(c2), (uu >> 2) * 8192 + (uu & 3) * 1024))
    e("ds_read_b128 %s, %s" % (vr(EN, 4), vr(r.RI)))
    zero_list()
    for t in wr[16:24]: e(t)
    e("s_or_b32 s3, s2, %s" % sr(sW))
    e("s_cbranch_scc1 NOBUMP")
    e("v_mov_b32 %s, %s" % (vr(r.RD), sr(sTag))); e("v_mov_b32 %s, %s" % (vr(r.RD + 1), sr(sE2)))
    e("v_lshlrev_b32 %s, 3, %s" % (vr(c1), vr(lane)))
    e("buffer_store_dwordx2 %s, %s, %s, 0 offen sc0 sc1" % (vr(r.RD, 2), vr(c1), sr(SOUT, 4)))
    lab("NOBUMP")
    e("s_waitcnt lgkmcnt(10)")

    def xidx(g, t): return "ds_read_u16 %s, %s offset:%d" % (vr(r.XI + 2 * t), vr(r.PS), g * 512 + SOFF[t] + 8)
    def xm0(buf): return "s_add_u32 m0, %s, %d" % (sr(sXB), buf * 4096)
    def xdma(t): return "buffer_load_dwordx4 %s, %s, %s idxen offen offset:%d lds" % (vr(r.XI + 2 * t, 2), sr(SXI, 4), sr(sSO + t) if t < 3 else "0", t * 1024)
    def xread(buf, k): return "ds_read_b128 %s, %s offset:%d" % (vr(r.X + 4 * k, 4), vr(r.XA1 if k & 1 else r.XA0), buf * 4096 + (k >> 1) * 256)
    def t0read(g): return "ds_read_b32 %s, %s offset:%d" % (vr(r.T), vr(r.PE), g * 512)
    def tiread(g): return "ds_read_b32 %s, %s offset:%d" % (vr(r.TI), vr(r.PT), g * 512 + 8)
    def soread(g, t): return "ds_read_u8 %s, %s offset:%d" % (vr(r.SO + t), vr(r.PC), g * 512 + SOFF[t] + 12)
    def trread(t): return "ds_read_b64_tr_b16 %s, %s offset:%d" % (vr(r.S + 2 * t, 2), vr(r.SO + t), TS)
    def riread(blk, ri=None): return "ds_read_b32 %s, %s offset:%d" % (vr(r.RI if ri is None else ri), vr(r.PL), LOFF + blk * 256)
    def rload(rd, ri, fl=None): return "buffer_load_dwordx4 %s, %s, %s, 0 idxen %s" % (vr(rd, 4), vr(ri), sr(SRC, 4), RLF if fl is None else fl)
    retries = []
    def fixup(rd, ri, blk, name, tmp0, tmp1, kx):
        retries.append((name, rd, ri))
        return ["v_cmp_gt_u32 vcc, %s, %s" % (sr(sLim), vr(ri)),
                "s_mov_b64 exec, vcc",
                name + ":",
                "v_cmp_ne_u32 vcc, %s, %s" % (sr(sTag), vr(rd + 3)),
                "v_bfe_u32 %s, %s, 16, 2" % (vr(tmp0), vr(rd + 2)),
                "v_lshrrev_b32 %s, 15, %s" % (vr(tmp1), vr(rd + 2)),
                "v_add_u32 %s, 1, %s" % (vr(tmp0), vr(tmp0)),
                "v_and_or_b32 %s, %s, 24, 3" % (vr(tmp1), vr(tmp1)),
                "s_cmp_lg_u64 vcc, 0",
                "v_lshlrev_b32 %s, %s, %s" % (vr(rd + 3), vr(tmp1), vr(tmp0)),
                "s_cbranch_scc1 %s_R" % name,
                "s_mov_b64 exec, -1",
                "v_bitop3_b32 %s, %s, %s, %s bitop3:0x6a" % (vr(rd + 2), vr(rd + 2), sr(sKm), vr(kx)),
                "ds_write_b128 %s, %s offset:%d" % (vr(r.PW), vr(rd, 4), blk * 1024)]
    def emit(lst):
        for t in lst:
            if t.endswith(":"): L.append(t)
            else: e(t)
    KX = c2 + 0

    lab("EXPAND")
    sd2 = "dst_sel:DWORD dst_unused:UNUSED_PAD src0_sel:WORD_1 src1_sel:WORD_0"
    sd = "dst_sel:DWORD dst_unused:UNUSED_PAD src0_sel:WORD_0 src1_sel:DWORD"
    for i in range(3): e("v_sub_u32_sdwa %s, %s, %s %s" % (vr(P + 1 + i), vr(EN + i), vr(EN + i), sd2))
    e("v_sub_u32_sdwa %s, %s, %s %s" % (vr(INC), vr(EN + 3), vr(EN + 3), sd2))
    e("v_add_u32 %s, %s, %s" % (vr(P + 2), vr(P + 1), vr(P + 2)))
    e("v_add_u32 %s, %s, %s" % (vr(P + 3), vr(P + 2), vr(P + 3)))
    e("v_add_u32 %s, %s, %s" % (vr(INC), vr(P + 3), vr(INC)))
    fill = ["v_add_u32 %s, %s, %s" % (vr(TOT), sr(sW0), vr(INC))]
    fill += ["v_add_u32_sdwa %s, %s, %s %s" % (vr(D + i), vr(EN + i), vr(CB), sd) for i in range(4)]
    fill += ["v_add_u32 %s, %d, %s" % (vr(D + i), i * CH, vr(D + i)) for i in range(1, 4)]
    fill += ["v_sub_u32 %s, %s, %s" % (vr(P + i), vr(P + i), vr(TOT)) for i in range(1, 4)]
    scan64("v_add_u32", INC, fill)
    e("v_sub_u32 %s, %s, %s" % (vr(P), vr(INC), vr(TOT)))
    e("v_readlane_b32 %s, %s, 63" % (sr(sTot), vr(INC)))
    for i in range(1, 4):
        e("v_add_u32 %s, %s, %s" % (vr(P + i), vr(INC), vr(P + i)))
    for i in range(4):
        e("v_sub_u32 %s, %s, %s" % (vr(D + i), vr(D + i), vr(P + i)))
        e("v_med3_i32 %s, %s, 0, %s" % (vr(P + i), vr(P + i), vr(C512)))
        e("v_lshl_add_u32 %s, %s, 2, %s" % (vr(P + i), vr(P + i), sr(sREC)))
    for i in range(4):
        e("ds_max_u32 %s, %s offset:%d" % (vr(P + i), vr(D + i), LOFF))
    e("ds_read_b128 %s, %s offset:%d" % (vr(M, 4), vr(LA), LOFF))
    e("ds_read_b128 %s, %s offset:%d" % (vr(M + 4, 4), vr(LA), LOFF + 16))
    e("s_lshl_b32 s3, %s, 3" % sr(sTot)); e("s_or_b32 s3, s3, %s" % sr(sW))
    e("v_mov_b32 %s, s3" % vr(TOT))
    e("s_mov_b64 exec, 1")
    e("ds_write_b32 %s, %s offset:%d" % (vr(W4), vr(TOT), TOTA))
    e("s_mov_b64 exec, -1")
    e("s_cmp_eq_u32 %s, 0" % sr(sFirst))
    e("s_cbranch_scc1 EXP_B")
    for t in wr[24:32]: e(t)
    e("s_waitcnt lgkmcnt(9)")
    e("s_branch EXP_C")
    lab("EXP_B")
    e("s_waitcnt lgkmcnt(1)")
    lab("EXP_C")
    e("v_max3_u32 %s, %s, %s, %s" % (vr(INC), vr(M), vr(M + 1), vr(M + 2)))
    e("v_max3_u32 %s, %s, %s, %s" % (vr(INC), vr(INC), vr(M + 3), vr(M + 4)))
    e("v_max3_u32 %s, %s, %s, %s" % (vr(INC), vr(INC), vr(M + 5), vr(M + 6)))
    e("v_max_u32 %s, %s, %s" % (vr(INC), vr(INC), vr(M + 7)))
    scan64("v_max_u32", INC, ["v_max_u32 %s, %s, %s" % (vr(M + k), vr(M + k - 1), vr(M + k)) for k in range(1, 8)])
    e("s_nop 1")
    e("v_mov_b32_dpp %s, %s wave_shr:1 row_mask:0xf bank_mask:0xf" % (vr(PREV), vr(INC)))
    for k in range(8):
        e("v_max_u32 %s, %s, %s" % (vr(M + k), vr(PREV), vr(M + k)))
        e("v_add3_u32 %s, %s, %s, %d" % (vr(M + k), vr(M + k), vr(JB), k))
    e("ds_write_b128 %s, %s offset:%d" % (vr(LA), vr(M, 4), LOFF))
    e("ds_write_b128 %s, %s offset:%d" % (vr(LA), vr(M + 4, 4), LOFF + 16))
    RI1 = r.TI; RD1 = r.S; F0 = r.XI; F1 = r.XI + 2
    e("v_lshrrev_b32 %s, 3, %s" % (vr(c0), vr(lane)))
    e("v_lshlrev_b32 %s, 2, %s" % (vr(c0), vr(c0)))
    e("v_and_b32 %s, 7, %s" % (vr(c1), vr(lane)))
    e("v_lshlrev_b32 %s, 3, %s" % (vr(r.XI + 4), vr(c1)))
    e("v_lshlrev_b32 %s, 2, %s" % (vr(c1), vr(c1)))
    e("s_sub_u32 s3, 7, %s" % sr(sW)); e("s_sub_u32 s97, %s, 4" % sr(sW))
    e("s_cmp_lt_u32 %s, 4" % sr(sW)); e("s_cselect_b32 s97, s3, s97")
    e("s_waitcnt lgkmcnt(0)")
    for i in range(4): e("v_mov_b32 %s, 0" % vr(r.S + 4 + i))
    def pointers():
        e("v_bfe_u32 %s, %s, 2, 2" % (vr(c0), vr(lane)))
        e("v_lshrrev_b32 %s, 5, %s" % (vr(c1), vr(lane)))
        e("v_lshl_or_b32 %s, %s, 3, %s" % (vr(c0), vr(c1), vr(c0)))
        e("v_lshl_add_u32 %s, %s, 4, %s" % (vr(r.PS), vr(c0), sr(sREC)))
        e("v_and_b32 %s, 3, %s" % (vr(c0), vr(lane)))
        e("v_add_u32 %s, %s, %s" % (vr(r.PC), vr(c0), vr(r.PS)))
        e("v_and_b32 %s, 31, %s" % (vr(c0), vr(lane)))
        e("v_lshl_add_u32 %s, %s, 4, %s" % (vr(r.PT), vr(c0), sr(sREC)))
        e("v_lshl_add_u32 %s, %s, 2, %s" % (vr(r.PE), vr(c1), vr(r.PT)))
        e("v_lshl_add_u32 %s, %s, 4, %s" % (vr(r.PW), vr(lane), sr(sREC)))
        e("v_mov_b32 %s, 0x4ffff" % vr(KX))
        e("s_min_u32 %s, %s, %s" % (sr(sTot), sr(sTot), sr(sLim)))
        e("s_sub_u32 s3, %s, %s" % (sr(sTot), sr(sW0)))
        e("s_min_u32 s3, s3, 512")
        e("s_add_u32 s3, s3, 31"); e("s_lshr_b32 s3, s3, 5")
        e("s_max_u32 s3, s3, 1")
        e("s_sub_u32 %s, s3, 1" % sr(sNG))
        e("s_mov_b32 %s, 2" % sr(sBLK))
    e("s_cmp_eq_u32 %s, 0" % sr(sFirst))
    e("s_cbranch_scc1 LATER")
    stamp("expand")
    e("s_barrier")
    e("ds_read_b32 %s, %s offset:%d" % (vr(c0), vr(c0), TOTA))
    e("ds_read_b32 %s, %s offset:%d" % (vr(c1), vr(c1), TOTA))
    for s in wr[8:12]: e(s)
    e("s_waitcnt lgkmcnt(4)")
    e("v_cmp_lt_u32 vcc, %s, %s" % (vr(c1), vr(c0)))
    e(wr[12]); e(wr[13])
    e("v_lshrrev_b64 %s, %s, vcc" % (vr(r.SO, 2), vr(r.XI + 4)))
    e("v_and_b32 %s, 0xff, %s" % (vr(r.SO), vr(r.SO)))
    e("v_bcnt_u32_b32 %s, %s, 0" % (vr(r.SO), vr(r.SO)))
    e("v_cmp_eq_u32 vcc, s97, %s" % vr(r.SO))
    e("s_ff1_i32_b64 s97, vcc")
    e("v_readlane_b32 %s, %s, s97" % (sr(sTot), vr(c1)))
    e("s_lshl_b32 %s, s97, 11" % sr(sXT)); e("s_add_u32 %s, %s, %d" % (sr(sXT), sr(sXT), XTB))
    e("s_lshl_b32 %s, s97, 13" % sr(sREC)); e("s_add_u32 %s, %s, %d" % (sr(sREC), sr(sREC), RECB))
    e("v_lshl_add_u32 %s, %s, 2, %s" % (vr(r.PL), vr(lane), sr(sREC)))
    e(riread(0)); e(riread(1, RI1))
    def xtile(mapreg, dst):
        e("v_add_u32 %s, %s, %s" % (vr(mapreg), sr(sXT), vr(mapreg)))
        tm = [mapreg, c0, c1, r.SO]
        for s in range(1, 4): e("v_xor_b32 %s, %d, %s" % (vr(tm[s]), 32 * s, vr(mapreg)))
        for s in range(4): e("ds_read_b128 %s, %s" % (vr(dst + 4 * s, 4), vr(tm[s])))
    NU = int(opts.get('nu', 8))
    xtile(FU, r.AT)
    e("s_waitcnt lgkmcnt(4)")
    e(rload(r.RD, r.RI, RL0)); e(rload(RD1, RI1, RL0))
    e(wr[14]); e(wr[15])
    xtile(FA, r.X)
    for s in wr[0:8]: e(s)
    WT = r.ACC[0]
    for i in range(4):
        e("v_lshlrev_b32 %s, 16, %s" % (vr(WT + i), vr(WCR + i)))
        e("v_and_b32 %s, 0xffff0000, %s" % (vr(WT + 4 + i), vr(WCR + i)))
    for i in range(8):
        e("v_mul_f32 %s, s92, %s" % (vr(WT + i), vr(WT + i)))
    for i in range(4):
        e("v_cvt_pk_bf16_f32 %s, %s, %s" % (vr(WCR + i), vr(WT + 2 * i), vr(WT + 2 * i + 1)))
    e("s_lshr_b32 %s, %s, 3" % (sr(sTot), sr(sTot)))
    e("s_lshl_b32 %s, %s, 3" % (sr(sT), sr(sBin))); e("s_add_u32 %s, %s, s97" % (sr(sT), sr(sT)))
    ua = []
    for f in range(2):
        for s in range(4):
            ua.append(mfma(r.ACC[f], r.AT + 4 * s, WU + 16 * f + 4 * s, None if s == 0 else r.ACC[f]))
    for f in range(2):
        for s in range(4):
            ua.append(mfma(WU + 16 * f, r.X + 4 * s, WA + 16 * f + 4 * s, None if s == 0 else WU + 16 * f))
    n0 = len(L)
    pointers()
    tile_range()
    e("s_min_u32 %s, %s, %d" % (sr(sEnd), sr(sEnd), N_NODES))
    e("s_sub_u32 s3, %s, %s" % (sr(sEnd), sr(sStart))); e("s_lshl_b32 s3, s3, 7")
    e("s_lshl_b32 s97, %s, 7" % sr(sStart))
    srd(SOUT, 22, "s3", "s97")
    misc = L[n0:]; del L[n0:]
    e("s_waitcnt lgkmcnt(12)")
    for k in range(NU):
        if k == 8: e("s_waitcnt lgkmcnt(0)")
        e(ua[k])
        for _ in range(5):
            if misc: L.append(misc.pop(0))
    L.extend(misc)
    e("s_waitcnt lgkmcnt(0)")
    e("s_barrier")
    lab("NOW")
    e("s_mov_b32 m0, %s" % sr(sXB))
    e("s_waitcnt vmcnt(1)")
    emit(fixup(r.RD, r.RI, 0, "FX0", c0, c1, KX))
    for t in range(4): e(xidx(0, t))
    e(riread(2))
    stamp("rec")
    mark(8)
    e("s_waitcnt lgkmcnt(1)")
    for t in range(4): e(xdma(t))
    for t in range(4): e(xidx(1, t))
    e("s_cmp_eq_u32 %s, 0" % sr(sFirst))
    e("s_cbranch_scc1 NOW2")
    for t in ua[NU:]: e(t)
    lab("NOW2")
    e("s_waitcnt vmcnt(4)")
    emit(fixup(RD1, RI1, 1, "FX1", c0, c1, KX))
    e(t0read(0)); e(tiread(0))
    e(xm0(1))
    X1L = int(opts.get('x1l', 0))
    def x1():
        for t in range(4): e(xdma(t))
        e(rload(r.RD, r.RI, RL2))
        for t in range(4): e(xidx(2, t))
    e("s_cmp_eq_u32 %s, 0" % sr(sFirst))
    e("s_cbranch_scc1 NOW3")
    for i in range(8):
        e("v_cvt_pk_bf16_f32 %s, %s, %s" % (vr(r.U + i), vr(r.ACC[0] + i), vr(r.ACC[1] + i)))
    e(mfma(r.ACC[0], r.S + 4, r.S + 4, None)); e(mfma(r.ACC[1], r.S + 4, r.S + 4, None))
    for f in range(2):
        for i in range(8):
            e("v_cvt_pk_bf16_f32 %s, %s, %s" % (vr(r.AT + 8 * f + i), vr(WU + 16 * f + 2 * i) if i & 1 else "0", vr(WU + 16 * f + 2 * i + 1)))
    e("s_mov_b32 exec_hi, 0")
    for f in range(2):
        e("v_mov_b32 %s, %s" % (vr(r.AT + 8 * f), vr(WCR + 2 * f)))
        e("v_mov_b32 %s, %s" % (vr(r.AT + 8 * f + 4), vr(WCR + 2 * f + 1)))
    e("s_mov_b64 exec, -1")
    lab("NOW3")
    e("s_waitcnt lgkmcnt(2)")
    if not X1L: x1()
    stamp("atile")
    for i in range(4): e("v_mov_b32 %s, 0" % vr(r.SO + i))
    e(mfma(r.V[0], r.S + 4, r.S + 4, None))
    e(mfma(r.V[1], r.S + 4, r.S + 4, None))
    e(mfma(r.G[1], r.S + 4, r.S + 4, None).replace(", 0", ", 1.0"))
    e(mfma(r.S, r.SO, r.SO, None))
    e("s_waitcnt vmcnt(%d)" % (0 if X1L else 5))
    stamp("x0")
    for k in range(4): e(xread(0, k))
    if X1L: x1()
    e(xm0(0))
    for s_ in range(4):
        e("s_waitcnt lgkmcnt(%d)" % (0 if s_ == 3 else 3 - s_ + 4 * X1L))
        e(mfma(r.G[0], r.X + 4 * s_, r.WB + 4 * s_, None if s_ == 0 else r.G[0]))
    e(xdma(0))
    e(smf(r.G[0], r.T, r.AT, r.TI, 1))
    e(xdma(1))
    e("s_nop 8")
    stamp("loop"); stamp("rtloop", True)
    if STAMP:
        e("s_add_u32 s100, %s, 1" % sr(sNG)); e("v_writelane_b32 v%d, s100, 28" % STV)
    mark(3)

    def I(text, lds=None, need=()): return dict(text=text, lds=lds, need=list(need))
    def oct_(base, o):
        o %= 4
        return base[o >> 1] + 8 * (o & 1)
    def C_(o, i): return "v_cvt_pk_bf16_f32 %s, %s, %s" % (vr(oct_(r.V, o) + i), vr(r.ETA + i), vr(oct_(r.V, o) + i))
    def R_(o, i): return "v_rcp_f32 %s, %s" % (vr(r.ETA + i), vr(oct_(r.G, o) + i))
    def E_(o, i): return "v_exp_f32 %s, %s" % (vr(oct_(r.G, o) + i), vr(oct_(r.G, o) + i))
    def A_(o):
        g_ = oct_(r.G, o)
        return ["v_pk_add_f32 %s, %s, 1.0 op_sel_hi:[1,0]" % (vr(g_ + i, 2), vr(g_ + i, 2)) for i in range(0, 8, 2)]
    def M_(o, pk=True):
        v_ = oct_(r.V, o)
        if pk: return ["v_pk_mul_f32 %s, %s, %s" % (vr(v_ + i, 2), vr(v_ + i, 2), vr(r.ETA + i, 2)) for i in range(0, 8, 2)]
        return ["v_mul_f32 %s, %s, %s" % (vr(v_ + i), vr(r.ETA + i), vr(v_ + i)) for i in range(8)]
    def red(f, hi): return smf(r.ACC[f], r.S + 4 * hi, r.V[f] + 8 * hi, r.SI)
    def gch(f): return [mfma(r.G[f], r.X + 4 * k, r.WB + 16 * f + 4 * k, None if k == 0 else r.G[f]) for k in range(4)] + [smf(r.G[f], r.T, r.AT + 8 * f, r.TI, 1)]
    def vch(f): return [mfma(r.V[f], r.X + 4 * k, r.WV + 16 * f + 4 * k, None if k == 0 else r.V[f]) for k in range(4)]
    RR = int(opts.get('rr', 1))
    CUT6 = [int(x) for x in opts.get('cut6', '0,3,6,10,14,18' if RR else '0,3,7,11,15,19').split(',')]
    CUT5 = [int(x) for x in opts.get('cut5', '0,4,8,12,16' if RR else '0,4,9,13,18').split(',')]
    HI = int(opts.get('hi', -1))
    def sub(s_, g):
        nb = (g + 1) & 1
        tail = []
        fxl = lambda: [I("s_cbranch_scc1 FXL_S")] + [I(t) for t in fixup(r.RD, r.RI, 2, "FXL", c0, c1, KX)] + [I("FXL_S:")]
        ptr = [I("v_lshl_add_u64 %s, %s, 0, %s" % (vr(r.PS, 2), vr(r.PS, 2), sr(sINC, 2))),
               I("v_lshl_add_u64 %s, %s, 0, %s" % (vr(r.PT, 2), vr(r.PT, 2), sr(sINC, 2))),
               I("v_lshl_add_u64 %s, %s, 0, %s" % (vr(r.PL, 2), vr(r.PL, 2), sr(sINC2, 2)))]
        if RR:
            if s_ == 0:
                mm = [I(red(0, 0), need=['S3']), I(red(0, 1))] + [I(t) for t in vch(0)]
                aux = [[], [I(soread(g, 0), lds='SO0')], [I(xdma(2)), I(soread(g, 1), lds='SO1')], [I(xdma(3))],
                       [I(soread(g, 2), lds='SO2')], [I(soread(g, 3), lds='SO3')]]
                if g == 1: aux[4].insert(0, I(rload(r.RD, r.RI), need=['RI']))
            elif s_ == 1:
                mm = [I(t) for t in gch(1)]
                aux = [[I(xidx(g + 3, k), lds='XI%d' % k)] for k in range(4)] + [[I(t0read(g + 1), lds='T0')]]
            elif s_ == 2:
                mm = [I(red(1, 0)), I(red(1, 1))] + [I(t) for t in vch(1)]
                aux = [[I(tiread(g + 1), lds='TI')], [I("s_waitcnt vmcnt(%d)" % (4 if g == 0 else 5), need=['XI3']), I(trread(0), lds='S0')]] + [[I(xread(nb, k), lds='X%d' % k)] for k in range(4)]
                aux[5].insert(0, I("s_waitcnt", need=['X1']))
                if g == 0:
                    aux[4].insert(0, I("s_cmp_gt_u32 %s, 7" % sr(sBLK)))
                    tail = fxl()
            else:
                gc = gch(0)
                mm = [I(gc[k], need=['X%d' % k]) for k in range(4)] + [I(gc[4], need=['T0', 'TI'])]
                aux = [[I(trread(1), lds='S1')], [I("s_waitcnt", need=['X3']), I(trread(2), lds='S2')], [I(xm0(nb)), I(trread(3), lds='S3')],
                       [I("s_sub_u32 %s, %s, 1" % (sr(sNG), sr(sNG))), I(xdma(0))], [I("s_waitcnt", need=['S3']), I(xdma(1))]]
                if g == 0:
                    aux[2].append(I(riread(3), lds='RI'))
                    aux[0].insert(0, I("s_add_u32 %s, %s, 1" % (sr(sBLK), sr(sBLK))))
                else: tail = ptr
        elif s_ == 0:
            mm = [I(red(0, 1), need=['S3'])] + [I(t) for t in vch(0)]
            aux = [[I(soread(g, 0), lds='SO0')], [I(xdma(2)), I(soread(g, 1), lds='SO1')], [I(xdma(3))],
                   [I(soread(g, 2), lds='SO2')], [I(soread(g, 3), lds='SO3')]]
            if g == 1: aux[3].insert(0, I(rload(r.RD, r.RI), need=['RI']))
        elif s_ == 1:
            mm = [I(red(1, 0))] + [I(t) for t in gch(1)]
            aux = [[I(trread(0), lds='S0', need=['SO1'])], [I(trread(1), lds='S1')], [I(xidx(g + 3, 0), lds='XI0')], [I(xidx(g + 3, 1), lds='XI1')],
                   [I(xidx(g + 3, 2), lds='XI2'), I(xidx(g + 3, 3), lds='XI3')], [I(t0read(g + 1), lds='T0')]]
        elif s_ == 2:
            mm = [I(red(1, 1))] + [I(t) for t in vch(1)]
            aux = [[I("s_waitcnt vmcnt(%d)" % (4 if g == 0 else 5), need=['XI3']), I(tiread(g + 1), lds='TI')]] + [[I(xread(nb, k), lds='X%d' % k)] for k in range(4)]
            if g == 0:
                aux[3].insert(0, I("s_cmp_gt_u32 %s, 7" % sr(sBLK)))
                tail = fxl()
        else:
            gc = gch(0)
            mm = [I(red(0, 0), need=['S1'])] + [I(gc[k], need=['X%d' % k]) for k in range(4)] + [I(gc[4], need=['T0', 'TI'])]
            aux = [[I(trread(2), lds='S2', need=['X1'])], [I(trread(3), lds='S3')], [I("s_waitcnt", need=['X3'])], [I(xm0(nb))],
                   [I("s_sub_u32 %s, %s, 1" % (sr(sNG), sr(sNG))), I(xdma(0))], [I("s_waitcnt", need=['S3']), I(xdma(1))]]
            if g == 0:
                aux[3].append(I(riread(3), lds='RI'))
                aux[1].insert(0, I("s_add_u32 %s, %s, 1" % (sr(sBLK), sr(sBLK))))
            else: tail = ptr
        aux[0].insert(0, I("s_setprio %d" % (0 if str(s_) in LOWS else 1)))
        aux[HI].insert(0, I("s_setprio 3"))
        cut = CUT6 if len(mm) == 6 else CUT5
        va = []
        for i in range(8): va += [C_(s_ - 2, i), R_(s_ - 1, i), E_(s_, i)]
        out = []
        for k, t in enumerate(va):
            if k in cut:
                j = cut.index(k); out.append(mm[j]); out.extend(aux[j])
            out.append(I(t))
        return out + tail + [I(t) for t in M_(s_ - 1) + A_(s_)]
    body = []
    for g in range(2):
        for s_ in range(4): body += sub(s_, g)
        body.append(I("s_cbranch_scc1 DRAIN" if g == 0 else "s_cbranch_scc0 LOOP"))
    issued = []; done = 0
    for pas in range(2):
        if pas == 1: lab("LOOP")
        for it in body:
            n = None
            for tag in it['need']:
                idxs = [k for k, t in enumerate(issued) if t == tag]
                if not idxs: continue
                k = idxs[-1]
                if k >= done:
                    n = len(issued) - 1 - k
                    done = k + 1
            tx = it['text']
            if n is not None:
                assert n <= 15
                if tx.startswith("s_waitcnt"): tx += " lgkmcnt(%d)" % n
                elif pas == 1: e("s_waitcnt lgkmcnt(%d)" % n)
            if pas == 1 and tx != "s_waitcnt": emit([tx])
            if it['lds']: issued.append(it['lds'])
    lab("DRAIN")
    stamp("loopend"); stamp("rtloopend", True)
    XR = r.X; EA_ = r.X + 8
    pre = ["v_lshrrev_b32 %s, 5, %s" % (vr(c0), vr(lane)),
           "v_and_b32 %s, 31, %s" % (vr(c1), vr(lane)),
           "v_lshlrev_b32 %s, 2, %s" % (vr(c1), vr(c1)),
           "v_mul_u32_u24 %s, 0x240, %s" % (vr(c2), vr(c0)),
           "v_xor_b32 %s, %s, %s" % (vr(c2), vr(c2), vr(c1)),
           "v_add_u32 %s, %s, %s" % (vr(c2), sr(sXT), vr(c2))]
    e("s_setprio 2")
    e("s_waitcnt lgkmcnt(0)")
    if RR: e(red(0, 0))
    e(red(0, 1))
    for i in range(8): e(C_(2, i)); e(R_(3, i))
    e(pre.pop(0)); e(pre.pop(0))
    e(red(1, 0))
    for t in M_(3, False): e(t)
    for i in range(8): e(C_(3, i))
    for t in pre: e(t)
    e(red(1, 1))
    e("s_add_u32 %s, %s, 512" % (sr(sW0), sr(sW0)))
    e("s_cmp_lt_u32 %s, %s" % (sr(sW0), sr(sTot)))
    e("s_cbranch_scc1 MORE")
    for q_ in range(4):
        if q_: e("v_xor_b32 %s, %d, %s" % (vr(EA_), 16 * q_, vr(c2)))
        e("ds_read_b32 %s, %s offset:%d" % (vr(XR + q_), vr(EA_ if q_ else c2), q_ * 128))
        e("ds_read_b32 %s, %s offset:%d" % (vr(XR + q_ + 4), vr(EA_ if q_ else c2), q_ * 128 + 1024))
    e("v_lshlrev_b32 %s, 2, %s" % (vr(c0), vr(c0)))
    e("v_subrev_u32 %s, %s, %s" % (vr(c0), sr(sStart), vr(c0)))
    e("v_lshl_add_u32 %s, %s, 7, %s" % (vr(c0), vr(c0), vr(c1)))
    for q_ in range(8):
        e("v_add_u32 %s, %d, %s" % (vr(EA_ + q_), (8 * (q_ >> 2) + (q_ & 3)) * 128, vr(c0)))
        e("v_and_b32 %s, 0x7ff, %s" % (vr(EA_ + q_), vr(EA_ + q_)))
    e("s_mov_b32 s3, 0x358637bd")
    for f in range(2):
        for q_ in range(8):
            e("v_add_f32 %s, s3, %s" % (vr(r.ACC[f] + q_), vr(r.ACC[f] + q_)))
        for q_ in range(8):
            e("v_rcp_f32 %s, %s" % (vr(r.ACC[f] + q_), vr(r.ACC[f] + q_)))
    e("s_waitcnt lgkmcnt(0)")
    for q_ in range(8):
        for f in range(2):
            u = r.ACC[f] + q_
            if f == 0:
                e("v_lshlrev_b32 %s, 16, %s" % (vr(c0), vr(r.U + q_))); e("v_lshlrev_b32 %s, 16, %s" % (vr(c1), vr(XR + q_)))
            else:
                e("v_and_b32 %s, 0xffff0000, %s" % (vr(c0), vr(r.U + q_))); e("v_and_b32 %s, 0xffff0000, %s" % (vr(c1), vr(XR + q_)))
            e("v_fmac_f32 %s, %s, %s" % (vr(c0), vr(u), vr(u + 8)))
            e("v_max_f32 %s, 0, %s" % (vr(c0), vr(c0)))
            e("v_add_f32 %s, %s, %s" % (vr(u), vr(c1), vr(c0)))
        e("v_cvt_pk_bf16_f32 %s, %s, %s" % (vr(r.U + q_), vr(r.ACC[0] + q_), vr(r.ACC[1] + q_)))
        e("buffer_store_dword %s, %s, %s, 0 offen %s" % (vr(r.U + q_), vr(EA_ + q_), sr(SOUT, 4), OSF))
    if STAMP:
        e("s_waitcnt vmcnt(0)")
        stamp("end"); stamp("rtend", True)
        e("s_sub_u32 s100, %d, %s" % (SPINMAX, sr(sSpin))); e("v_writelane_b32 v%d, s100, 29" % STV)
        e("s_getreg_b32 s100, hwreg(HW_REG_HW_ID)"); e("v_writelane_b32 v%d, s100, 30" % STV)
        e("s_lshl_b32 s3, s2, 3"); e("s_add_u32 s3, s3, %s" % sr(sW)); e("s_lshl_b32 s3, s3, 7"); e("s_add_u32 s3, s3, 0x%x" % WS_DBG)
        srd(SA, 26, 128, "s3")
        e("v_lshlrev_b32 %s, 2, %s" % (vr(c0), vr(lane)))
        e("buffer_store_dword v%d, %s, %s, 0 offen" % (STV, vr(c0), sr(SA, 4)))
    if DW:
        if 'dwg' in opts:
            e("s_cmp_lg_u32 s2, %s" % opts['dwg']); e("s_cbranch_scc1 K_END")
        e("s_waitcnt vmcnt(0) lgkmcnt(0)")
        lab("SPIN")
        e("s_memrealtime s[100:101]"); e("s_waitcnt lgkmcnt(0)")
        e("s_sub_u32 s100, s100, s98"); e("s_cmp_lt_u32 s100, 6000"); e("s_cbranch_scc1 SPIN")
    lab("K_END")
    e("s_endpgm")
    for name, rd, ri in retries:
        lab(name + "_R")
        e("s_mov_b64 exec, vcc")
        if int(opts.get('rsl', 0)): e("s_sleep %d" % int(opts.get('rsl', 0)))
        e(rload(rd, ri, "sc0 sc1"))
        e("s_sub_u32 %s, %s, 1" % (sr(sSpin), sr(sSpin)))
        e("s_waitcnt vmcnt(0)")
        e("s_cbranch_scc0 %s" % name)
        e("s_endpgm")
    lab("LATER")
    e(riread(0)); e(riread(1, RI1))
    pointers()
    e("s_waitcnt lgkmcnt(0)")
    e(rload(r.RD, r.RI)); e(rload(RD1, RI1))
    e("s_branch NOW")
    lab("MORE")
    e("s_mov_b32 %s, 0" % sr(sFirst))
    e("s_waitcnt vmcnt(0) lgkmcnt(0)")
    e("s_nop 15")
    e("s_lshr_b32 s3, %s, 2" % sr(sT)); e("s_lshl_b32 s3, s3, 4")
    e("s_and_b32 s97, %s, 3" % sr(sT)); e("s_lshl_b32 s97, s97, 1"); e("s_add_u32 s3, s3, s97")
    e("v_lshl_add_u32 %s, %s, 15, s3" % (vr(c0), vr(lane)))
    for i in range(4):
        e("buffer_load_ushort %s, %s, %s, 0 offen sc0 sc1" % (vr(EN + i), vr(c0), sr(SOFS, 4)))
        e("buffer_load_ushort %s, %s, %s, 0 offen offset:2 sc0 sc1" % (vr(D + i), vr(c0), sr(SOFS, 4)))
        e("v_add_u32 %s, 8192, %s" % (vr(c0), vr(c0)))
    expand_pre()
    zero_list()
    e("s_waitcnt vmcnt(0)")
    for i in range(4): e("v_lshl_or_b32 %s, %s, 16, %s" % (vr(EN + i), vr(D + i), vr(EN + i)))
    e("s_branch EXPAND")
    return r.n

hdr = open('cdna_kernels/%s.s.ref' % NAME).read().split('\n')
hdr = [l for l in hdr if l.startswith(';   offset') or l.startswith('; Kernarg')]
L.append('.amdgcn_target "amdgcn-amd-amdhsa--gfx950"')
L.append('.text')
nv = kernel()
L.append('.section .rodata,"a"')
L += [".p2align 6", ".amdhsa_kernel %s" % KN, "  .amdhsa_next_free_vgpr 256", "  .amdhsa_next_free_sgpr 102",
      "  .amdhsa_accum_offset 256", "  .amdhsa_group_segment_fixed_size 0", "  .amdhsa_kernarg_size 96",
      "  .amdhsa_user_sgpr_count 2", "  .amdhsa_user_sgpr_kernarg_segment_ptr 1", "  .amdhsa_system_sgpr_workgroup_id_x 1",
      ".end_amdhsa_kernel"]
if opts.get('list', '0') == '1':
    top = hdr + ["; @launch kernel=%s grid=(256,1,1) block=(512,1,1) lds=%d" % (KN, LDS_BYTES)]
else:
    top = hdr + ["; @launch grid=(256,1,1) block=(512,1,1) lds=%d" % LDS_BYTES]
open(OUT, 'w').write("\n".join(top + L) + "\n")
if STAMP: open('stamps.txt', 'w').write(" ".join(names))
print("vgprs:", nv, "lines:", len(L))
```

```python
import sys, re

NAME = "standalone__edge_featured_mpnn_gatedgcn__graph"
KN = NAME + "_kernel"
N_NODES = 25000
CH = 3200
NC = 250
TMUL = 5368
WS_REC = 0
WS_OFF = 0xD00000
WS_EPO = 0xF00000
WS_DBG = 0x1000000
NEGLOG2E = 0xBFB8AA3B
SPINMAX = 200000

opts = dict(a.split('=') for a in sys.argv[1:] if '=' in a)
OUT = opts.get('out', 'cdna_kernels/%s.s' % NAME)
STAMP = int(opts.get('stamp', 0))
STF = opts.get('stf', 'sc1').replace('+', ' ')
LDF = opts.get('ldf', 'nt').replace('+', ' ')
RLF = opts.get('rlf', '').replace('+', ' ')
RL0 = opts.get('rl0', '').replace('+', ' ')
RL2 = opts.get('rl2', '').replace('+', ' ')
XPF = int(opts.get('xpf', 0))
PLF = opts.get('plf', 'sc1').replace('+', ' ')
OSF = opts.get('osf', '').replace('+', ' ')
DW = int(opts.get('dw', 0))
LOWS = opts.get('lows', '')
DELAY = int(opts.get('delay', 0))

L = []
def e(s): L.append("    " + s)
def lab(s): L.append(s + ":")
def vr(a, n=1): return "v%d" % a if n == 1 else "v[%d:%d]" % (a, a + n - 1)
def sr(a, n=1): return "s%d" % a if n == 1 else "s[%d:%d]" % (a, a + n - 1)

DPPS = ["row_shr:1 row_mask:0xf bank_mask:0xf", "row_shr:2 row_mask:0xf bank_mask:0xf",
        "row_shr:4 row_mask:0xf bank_mask:0xf", "row_shr:8 row_mask:0xf bank_mask:0xf",
        "row_bcast:15 row_mask:0xa bank_mask:0xf", "row_bcast:31 row_mask:0xc bank_mask:0xf"]
def scan64(op, v, fill=()):
    fill = list(fill)
    for m in DPPS:
        n = 0
        while n < 2 and fill:
            e(fill.pop(0)); n += 1
        if n < 2: e("s_nop %d" % (1 - n))
        e("%s_dpp %s, %s, %s %s" % (op, vr(v), vr(v), vr(v), m))
    for f in fill: e(f)

def srd(d, base, nbytes, add=None, stride=0, sub=None):
    if sub is not None:
        e("s_sub_u32 %s, %s, %s" % (sr(d), sr(base), sub))
        e("s_subb_u32 %s, %s, 0" % (sr(d + 1), sr(base + 1)))
        e("s_and_b32 %s, %s, 0xffff" % (sr(d + 1), sr(d + 1)))
    elif add is None:
        e("s_mov_b32 %s, %s" % (sr(d), sr(base)))
        e("s_and_b32 %s, %s, 0xffff" % (sr(d + 1), sr(base + 1)))
    else:
        e("s_add_u32 %s, %s, %s" % (sr(d), sr(base), add))
        e("s_addc_u32 %s, %s, 0" % (sr(d + 1), sr(base + 1)))
        e("s_and_b32 %s, %s, 0xffff" % (sr(d + 1), sr(d + 1)))
    if stride:
        e("s_or_b32 %s, %s, 0x%x" % (sr(d + 1), sr(d + 1), stride << 16))
    e("s_mov_b32 %s, %s" % (sr(d + 2), nbytes if isinstance(nbytes, str) else "0x%x" % nbytes))
    e("s_mov_b32 %s, 0x20000" % sr(d + 3))

STV = 255
names = []
def stamp(name, real=False):
    if not STAMP: return
    if 'only' in opts and name not in opts['only'].split(',') + ['rt0', 'start', 'loop', 'rtloop', 'loopend', 'rtloopend', 'end', 'rtend']: return
    k = len(names); names.append(name)
    e("s_mem%stime s[100:101]" % ("real" if real else ""))
    e("s_waitcnt lgkmcnt(0)")
    e("v_writelane_b32 v%d, s100, %d" % (STV, k))
def mark(*modes):
    if DW in modes: e("s_memrealtime s[98:99]"); e("s_waitcnt lgkmcnt(0)")

TS, TOTA, WTOT = 0, 64, 128
RECB = 1024
HIST = RECB + CH * 16
XTB = RECB + 65536
XBB = XTB + 16384
PCB = XBB + 65536
LDS_BYTES = PCB + 8192
LOFF = 8192 - 2048 - 16

class R: pass
def alloc():
    r = R(); p = 0
    def a(n, al=1):
        nonlocal p
        p = (p + al - 1) // al * al
        b = p; p += n
        return b
    r.LANE = a(1); r.SI = a(1)
    r.PS = a(1, 2); r.PC = a(1); r.PT = a(1, 2); r.PE = a(1); r.PL = a(1, 2); r.PW = a(1)
    r.XA0 = a(1); r.XA1 = a(1); r.TI = a(1); r.TMP = a(3); r.RI = a(1)
    r.SO = a(4, 2); r.XI = a(8, 2); r.T = a(4, 2); r.RD = a(4, 2); r.U = a(8, 2)
    r.S = a(8, 2); r.ETA = a(8, 2); r.X = a(16, 2)
    r.ACC = [a(16, 2), a(16, 2)]
    r.G = [a(16, 2), None]; r.V = [a(16, 2), None]
    r.G[1] = a(16, 2); r.V[1] = a(16, 2)
    r.WB = a(32, 2); r.WV = a(32, 2); r.AT = a(16, 2)
    r.n = p
    return r

def mfma(d, a, b, c):
    return "v_mfma_f32_32x32x16_bf16 %s, %s, %s, %s" % (vr(d, 16), vr(a, 4), vr(b, 4), "0" if c is None else vr(c, 16))
def smf(d, a, b, idx, abid=0):
    return "v_smfmac_f32_32x32x32_bf16 %s, %s, %s, %s%s" % (vr(d, 16), vr(a, 4), vr(b, 8), vr(idx), " abid:1" if abid else "")
SOFF = [0, 64, 256, 320]

def kernel():
    r = alloc()
    assert r.n <= 255, r.n
    SX, SXI, SOFS, SRC, SOUT, SA, SB, SC_ = 28, 32, 36, 40, 44, 48, 52, 56
    sW, sT, sStart, sEnd, sTot, sW0, sNG, sXB, sREC, sFirst, sBin, sMag, sBLK, sXT, sTag, sTagH, sSpin, sLim, sKm, sKx = range(60, 80)
    sINC = 80; sINC2 = 82; sSO = 84; sE2 = 88; sRET = 90
    lane = r.LANE
    c0, c1, c2 = r.TMP, r.TMP + 1, r.TMP + 2
    MAG = -(-(1 << 41) // 671)
    for t in range(2049):
        n = t * 8192 + 670
        assert (n * MAG) >> 41 == n // 671
    def tile_range():
        e("s_lshl_b32 s3, %s, 13" % sr(sT)); e("s_add_u32 s3, s3, 670")
        e("s_mul_hi_u32 %s, s3, %s" % (sr(sStart), sr(sMag))); e("s_lshr_b32 %s, %s, 9" % (sr(sStart), sr(sStart)))
        e("s_add_u32 s3, s3, 8192")
        e("s_mul_hi_u32 %s, s3, %s" % (sr(sEnd), sr(sMag))); e("s_lshr_b32 %s, %s, 9" % (sr(sEnd), sr(sEnd)))
    L.append(".globl %s" % KN); L.append(".p2align 8"); L.append(".type %s,@function" % KN); lab(KN)
    e("s_load_dwordx16 s[4:19], s[0:1], 0")
    e("s_load_dwordx8 s[20:27], s[0:1], 64")
    e("s_cmp_gt_u32 s2, 255")
    e("s_cbranch_scc1 K_END")
    e("s_setprio 3")
    mark(1)
    stamp("rt0", True); stamp("start")
    q = r.X
    TID = q; T16 = q + 1; T32 = q + 2; ONE = q + 3; ZER = q + 4
    DST = q + 8
    SRCV = q + 16
    EA = q + 24
    HA = q + 56
    RK = q + 64
    CN = q + 72
    ST = q + 76
    PC_ = q + 80
    tA, tB, tC, tD, tE, tF = [q + 84 + i for i in range(6)]
    EP = q + 90
    T16B = q + 92; T32B = q + 93
    assert q + 94 <= r.WB
    WRAW = r.AT
    WCR = r.ETA
    e("v_mov_b32 %s, v0" % vr(TID))
    e("v_lshrrev_b32 %s, 6, v0" % vr(tA))
    e("v_lshlrev_b32 %s, 4, v0" % vr(T16))
    e("v_readfirstlane_b32 %s, %s" % (sr(sW), vr(tA)))
    e("v_lshlrev_b32 %s, 5, v0" % vr(T32))
    e("v_and_b32 %s, 63, v0" % vr(lane))
    e("v_add_u32 %s, 8192, %s" % (vr(T16B), vr(T16)))
    e("v_add_u32 %s, 16384, %s" % (vr(T32B), vr(T32)))
    for i in range(4): e("v_mov_b32 %s, 0" % vr(ZER + i))
    e("v_mov_b32 %s, 1" % vr(ONE))
    e("ds_write_b128 %s, %s offset:%d" % (vr(T16), vr(ZER, 4), HIST))
    e("s_min_u32 s3, s2, %d" % (NC - 1))
    e("s_mul_i32 s92, s3, %d" % (CH * 4))
    e("s_lshl_b32 s93, s92, 1")
    e("s_cmp_lt_u32 s2, %d" % NC)
    e("s_cselect_b32 s94, %d, 0" % (CH * 4))
    e("s_cselect_b32 s95, %d, 0" % (CH * 8))
    e("s_cselect_b32 s96, %d, 0" % (CH // 4))
    e("s_and_b32 s3, s2, 7"); e("s_lshl_b32 s3, s3, 5"); e("s_lshr_b32 %s, s2, 3" % sr(sBin)); e("s_add_u32 %s, %s, s3" % (sr(sBin), sr(sBin)))
    e("s_lshl_b32 %s, %s, 13" % (sr(sREC), sr(sW)))
    e("s_add_u32 %s, %s, %d" % (sr(sXB), sr(sREC), XBB))
    e("s_add_u32 %s, %s, %d" % (sr(sREC), sr(sREC), RECB))
    e("s_lshl_b32 %s, %s, 3" % (sr(sT), sr(sBin))); e("s_add_u32 %s, %s, %s" % (sr(sT), sr(sT), sr(sW)))
    e("s_mov_b32 %s, 0x%x" % (sr(sMag), MAG))
    tile_range()
    e("s_waitcnt lgkmcnt(0)")
    if int(opts.get('wsb', 0)):
        e("s_add_u32 s26, s26, 0x%x" % (int(opts['wsb']) << 20)); e("s_addc_u32 s27, s27, 0")
    if int(opts.get('tt', 0)):
        e("s_cmp_lt_u32 s2, %d" % int(opts.get('ttw', 248)))
        e("s_cbranch_scc1 TT_SKIP")
        e("s_cmp_lg_u32 %s, 7" % sr(sW))
        e("s_cbranch_scc1 TT_SKIP")
        e("v_lshlrev_b32 %s, 18, %s" % (vr(tA), vr(lane)))
        e("v_lshlrev_b32 %s, 16, %s" % (vr(tB), vr(lane)))
        srd(SA, 26, 0x1000000)
        e("buffer_load_dword %s, %s, %s, 0 offen sc0 sc1" % (vr(r.AT), vr(tA), sr(SA, 4)))
        srd(SA, 4, N_NODES * 128)
        e("buffer_load_dword %s, %s, %s, 0 offen" % (vr(r.AT), vr(tB), sr(SA, 4)))
        srd(SA, 22, N_NODES * 128)
        e("buffer_load_dword %s, %s, %s, 0 offen sc0 sc1" % (vr(r.AT), vr(tB), sr(SA, 4)))
        for p in (12, 14, 16, 18, 20):
            srd(SA, p, 512)
            e("buffer_load_dword %s, %s, %s, 0 offen" % (vr(r.AT), vr(tB), sr(SA, 4)))
        lab("TT_SKIP")
    srd(SA, 10, "s94", "s92")
    e("buffer_load_dwordx4 %s, %s, %s, 0 offen %s" % (vr(DST, 4), vr(T16), sr(SA, 4), LDF))
    e("buffer_load_dwordx4 %s, %s, %s, 0 offen %s" % (vr(DST + 4, 4), vr(T16B), sr(SA, 4), LDF))
    srd(SOUT, 26, 8, "0x%x" % WS_EPO)
    e("buffer_load_dwordx2 %s, %s, %s, 0 offen sc1" % (vr(EP, 2), vr(ZER), sr(SOUT, 4)))
    DF = int(opts.get('df', 2))
    SS, SE = (SB, SC_) if not DF else (SRC, SOFS)
    srd(SS, 8, "s94", "s92")
    srd(SE, 6, "s95", "s93")
    RL = ["buffer_load_dwordx4 %s, %s, %s, 0 offen %s" % (vr(SRCV, 4), vr(T16), sr(SS, 4), LDF),
          "buffer_load_dwordx4 %s, %s, %s, 0 offen %s" % (vr(SRCV + 4, 4), vr(T16B), sr(SS, 4), LDF)]
    for k in (2, 3, 0, 1):
        RL.append("buffer_load_dwordx4 %s, %s, %s, 0 offen offset:%d %s" % (vr(EA + 8 * k, 4), vr(T32B if k >> 1 else T32), sr(SE, 4), 16 * (k & 1), LDF))
    NE = int(opts.get('ne', 2))
    NE2 = int(opts.get('ne2', 0))
    for _ in range(NE): e(RL.pop(0))
    def rest_loads():
        for t in RL: e(t)
        if DF:
            srd(SOFS, 26, 256 * 8192, "0x%x" % WS_OFF)
            srd(SRC, 26, NC * CH, stride=16)
    if DF == 0: rest_loads()
    e("v_cmp_gt_u32 vcc, s96, %s" % vr(TID))
    e("s_mov_b64 s[92:93], vcc")
    e("v_add_u32 %s, 512, %s" % (vr(tA), vr(TID)))
    e("v_cmp_gt_u32 vcc, s96, %s" % vr(tA))
    e("s_mov_b64 s[94:95], vcc")
    e("s_and_b32 s3, %s, 3" % sr(sW))
    e("s_cmp_eq_u32 s3, 1"); e("s_cselect_b32 s12, s18, s12"); e("s_cselect_b32 s13, s19, s13")
    e("s_cmp_eq_u32 s3, 2"); e("s_cselect_b32 s12, s14, s12"); e("s_cselect_b32 s13, s15, s13")
    e("s_cmp_eq_u32 s3, 3"); e("s_cselect_b32 s12, s20, s12"); e("s_cselect_b32 s13, s21, s13")
    srd(SA, 12, 8192)
    srd(SB, 16, 512)
    srd(SX, 4, N_NODES * 128)
    H = r.SO
    XT0, XT1, J4, L16 = r.RD, r.RD + 1, r.RD + 2, r.RD + 3
    e("v_lshrrev_b32 %s, 5, %s" % (vr(H), vr(lane)))
    e("v_and_b32 %s, 31, %s" % (vr(J4), vr(lane)))
    e("v_lshlrev_b32 %s, 2, %s" % (vr(J4), vr(J4)))
    e("v_lshlrev_b32 %s, 4, %s" % (vr(L16), vr(lane)))
    e("v_lshrrev_b32 %s, 3, %s" % (vr(tA), vr(lane)))
    e("v_xor_b32 %s, %s, %s" % (vr(tB), vr(tA), vr(lane)))
    e("v_and_b32 %s, 7, %s" % (vr(tB), vr(tB)))
    e("v_lshlrev_b32 %s, 4, %s" % (vr(tB), vr(tB)))
    e("v_subrev_u32 %s, %s, %s" % (vr(tA), sr(sStart), vr(tA)))
    e("v_and_b32 %s, 15, %s" % (vr(tA), vr(tA)))
    e("v_xor_b32 %s, 8, %s" % (vr(tC), vr(tA)))
    e("v_add_u32 %s, %s, %s" % (vr(tA), sr(sStart), vr(tA)))
    e("v_add_u32 %s, %s, %s" % (vr(tC), sr(sStart), vr(tC)))
    e("v_lshl_add_u32 %s, %s, 7, %s" % (vr(XT0), vr(tA), vr(tB)))
    e("v_lshl_add_u32 %s, %s, 7, %s" % (vr(XT1), vr(tC), vr(tB)))
    def late_loads():
        e("s_cmp_lt_u32 %s, 4" % sr(sW))
        e("s_cbranch_scc1 LATE_B")
        e("s_and_b32 s93, %s, 3" % sr(sW)); e("s_lshl_b32 s93, s93, 14")
        e("s_add_u32 m0, s93, %d" % XBB)
        e("s_mov_b32 s3, 4096")
        for k in range(4):
            e("buffer_load_dwordx4 %s, %s, 0 offen offset:%d %s lds" % (vr(L16), sr(SA, 4), k * 1024, opts.get('wf', '')))
        e("s_add_u32 m0, s93, %d" % (XBB + 8192))
        e("s_nop 0")
        for k in range(4):
            e("buffer_load_dwordx4 %s, %s, s3 offen offset:%d %s lds" % (vr(L16), sr(SA, 4), k * 1024, opts.get('wf', '')))
        if XPF:
            e("s_lshr_b32 s3, s2, 3"); e("s_mul_i32 s3, s3, %d" % (782 * 128))
            e("s_lshr_b32 s94, s93, 1"); e("s_mul_i32 s94, s94, %d" % XPF); e("s_add_u32 s3, s3, s94")
            e("v_lshl_add_u32 %s, %s, 7, s3" % (vr(tF), vr(lane)))
            for k in range(XPF):
                e("buffer_load_dword %s, %s, %s, 0 offen" % (vr(tE), vr(tF), sr(SX, 4)))
                if k + 1 < XPF: e("v_add_u32 %s, 8192, %s" % (vr(tF), vr(tF)))
        lab("LATE_B")
        e("s_mov_b32 exec_hi, 0")
        for i in range(4):
            e("buffer_load_dword %s, %s, %s, 0 offen offset:%d %s" % (vr(WCR + i), vr(J4), sr(SB, 4), i * 128, opts.get('wf', '')))
        e("s_mov_b64 exec, -1")
        if 'X' not in opts.get('pfx', 'X'): xt_loads()
    def xt_loads():
        e("s_lshl_b32 s3, %s, 11" % sr(sW))
        e("s_add_u32 m0, s3, %d" % XTB)
        e("s_nop 0")
        e("buffer_load_dwordx4 %s, %s, 0 offen %s lds" % (vr(XT0), sr(SX, 4), opts.get('xtf', '')))
        e("s_add_u32 m0, s3, %d" % (XTB + 1024))
        e("s_nop 0")
        e("buffer_load_dwordx4 %s, %s, 0 offen %s lds" % (vr(XT1), sr(SX, 4), opts.get('xtf', '')))
    e("s_mul_i32 s3, s2, %d" % (CH * 16))
    NLATE = 0
    srd(SC_, 26, CH * 16, "s3")
    if not DF: srd(SOFS, 26, 256 * 8192, "0x%x" % WS_OFF)
    srd(SXI, 4, N_NODES, stride=128, sub="3072")
    if not DF: srd(SRC, 26, NC * CH, stride=16)
    PFX = opts.get('pfx', 'X')
    NPF = 0
    if PFX:
        e("v_lshlrev_b32 %s, 7, %s" % (vr(tA), vr(lane)))
    if 'c' in PFX or 'w' in PFX:
        e("s_cmp_lt_u32 s2, 248")
        e("s_cbranch_scc1 PF_SKIP")
        if 'c' in PFX:
            e("s_getpc_b64 s[96:97]")
            lab("PCREF")
            e("s_and_b32 s3, %s, 1" % sr(sW)); e("s_lshl_b32 s3, s3, 13")
            e("v_add_u32 %s, s3, %s" % (vr(tB), vr(tA)))
            e("v_min_u32 %s, K_END-PCREF, %s" % (vr(tB), vr(tB)))
            e("s_cmp_lt_u32 %s, 2" % sr(sW)); e("s_cselect_b64 exec, -1, 1")
            e("global_load_dword %s, %s, s[96:97]" % (vr(r.AT), vr(tB)))
        if 'w' in PFX:
            e("s_cmp_gt_u32 %s, 3" % sr(sW)); e("s_cselect_b64 exec, -1, 1")
            e("buffer_load_dword %s, %s, %s, 0 offen" % (vr(r.AT), vr(tA), sr(SA, 4)))
            e("s_mov_b64 exec, 15")
            e("buffer_load_dword %s, %s, %s, 0 offen" % (vr(r.AT), vr(tA), sr(SB, 4)))
        e("s_mov_b64 exec, -1")
        lab("PF_SKIP")
    if 'X' in PFX:
        xt_loads()
        NPF += 2
    if 'x' in PFX:
        e("s_mov_b64 exec, 0x01010101"); e("s_mov_b32 exec_hi, 0x01010101")
        e("buffer_load_dword %s, %s, %s, 0 offen" % (vr(r.AT), vr(XT0), sr(SX, 4)))
        e("buffer_load_dword %s, %s, %s, 0 offen" % (vr(r.AT), vr(XT1), sr(SX, 4)))
        e("s_mov_b64 exec, -1")
        NPF += 2
    if 's' in PFX:
        e("s_mov_b64 exec, 1")
        e("buffer_load_dword %s, %s, %s, 0 offen sc0 sc1" % (vr(r.AT), vr(T32B), sr(SC_, 4)))
        e("s_mov_b64 exec, -1")
        NPF += 1
    e("s_mov_b32 %s, 1024" % sr(sINC)); e("s_mov_b32 %s, 1024" % sr(sINC + 1))
    e("s_mov_b32 %s, 256" % sr(sINC2)); e("s_mov_b32 %s, 1024" % sr(sINC2 + 1))
    e("s_mov_b32 %s, 3072" % sr(sSO)); e("s_mov_b32 %s, 2048" % sr(sSO + 1)); e("s_mov_b32 %s, 1024" % sr(sSO + 2))
    e("s_mov_b32 %s, %d" % (sr(sLim), NC * CH))
    e("s_mov_b32 %s, 0xfff0ffff" % sr(sKm))
    e("s_mov_b32 %s, 0" % sr(sW0)); e("s_mov_b32 %s, 1" % sr(sFirst)); e("s_mov_b32 %s, %d" % (sr(sSpin), SPINMAX))
    e("v_mov_b32 %s, 0x%x" % (vr(tA), (1 << 4) | (2 << 8) | (1 << 14) | (2 << 18)))
    e("v_lshlrev_b32 %s, 1, %s" % (vr(tB), vr(lane)))
    e("v_bfe_u32 %s, %s, %s, 2" % (vr(tA), vr(tA), vr(tB)))
    e("v_mul_u32_u24 %s, 0x8001, %s" % (vr(tA), vr(tA)))
    e("v_and_b32 %s, 0x10001, %s" % (vr(tA), vr(tA)))
    e("v_mul_u32_u24 %s, 0x3f80, %s" % (vr(tA), vr(tA)))
    e("v_lshlrev_b32 %s, 2, %s" % (vr(tB), vr(lane)))
    e("s_mov_b64 exec, 0x3ff")
    e("ds_write_b32 %s, %s offset:%d" % (vr(tB), vr(tA), TS))
    e("s_mov_b64 exec, -1")
    e("v_and_b32 %s, 3, %s" % (vr(c0), vr(lane)))
    e("v_bfe_u32 %s, %s, 4, 1" % (vr(c1), vr(lane)))
    e("v_mul_u32_u24 %s, 0x5555, %s" % (vr(r.SI), vr(c1)))
    e("v_or_b32 %s, 0x8888, %s" % (vr(r.SI), vr(r.SI)))
    e("v_xor_b32 %s, %s, %s" % (vr(c2), vr(c0), vr(H)))
    e("v_lshl_or_b32 %s, %s, 2, %s" % (vr(c2), vr(c1), vr(c2)))
    e("v_lshlrev_b32 %s, 4, %s" % (vr(r.XI + 1), vr(c2)))
    e("v_mov_b32 %s, %s" % (vr(r.XI + 3), vr(r.XI + 1)))
    e("v_xor_b32 %s, 32, %s" % (vr(r.XI + 5), vr(r.XI + 1)))
    e("v_mov_b32 %s, %s" % (vr(r.XI + 7), vr(r.XI + 5)))
    e("v_bfe_u32 %s, %s, 3, 2" % (vr(c2), vr(lane)))
    e("v_xor_b32 %s, %s, %s" % (vr(c2), vr(c2), vr(H)))
    e("v_lshlrev_b32 %s, 4, %s" % (vr(r.XA0), vr(c2)))
    e("v_lshl_or_b32 %s, %s, 6, %s" % (vr(r.XA0), vr(c0), vr(r.XA0)))
    e("v_bfe_u32 %s, %s, 3, 1" % (vr(c2), vr(lane)))
    e("v_lshl_or_b32 %s, %s, 9, %s" % (vr(r.XA0), vr(c2), vr(r.XA0)))
    e("v_bfe_u32 %s, %s, 2, 1" % (vr(tA), vr(lane)))
    e("v_lshl_or_b32 %s, %s, 10, %s" % (vr(r.XA0), vr(tA), vr(r.XA0)))
    e("v_lshl_or_b32 %s, %s, 11, %s" % (vr(r.XA0), vr(c1), vr(r.XA0)))
    e("v_xor_b32 %s, 32, %s" % (vr(r.XA1), vr(r.XA0)))
    e("v_add_u32 %s, %s, %s" % (vr(r.XA0), sr(sXB), vr(r.XA0)))
    e("v_add_u32 %s, %s, %s" % (vr(r.XA1), sr(sXB), vr(r.XA1)))
    FA, FU = r.SO + 2, r.SO + 3
    e("v_lshl_or_b32 %s, %s, 1, %s" % (vr(c2), vr(tA), vr(c2)))
    e("v_lshl_or_b32 %s, %s, 1, %s" % (vr(c2), vr(c2), vr(c1)))
    e("v_mad_u32_u24 %s, %s, 3, %s" % (vr(c2), vr(c2), vr(c0)))
    e("v_add_u32 %s, 9, %s" % (vr(c2), vr(c2)))
    e("v_and_b32 %s, 15, %s" % (vr(c2), vr(c2)))
    for dst, src in ((FA, c2), (FU, None)):
        if src is None:
            e("v_and_b32 %s, 15, %s" % (vr(c2), vr(lane)))
        e("v_xor_b32 %s, %s, %s" % (vr(tA), vr(c2), vr(H)))
        e("v_and_b32 %s, 7, %s" % (vr(tA), vr(tA)))
        e("v_lshlrev_b32 %s, 4, %s" % (vr(tA), vr(tA)))
        e("v_lshl_or_b32 %s, %s, 7, %s" % (vr(dst), vr(c2), vr(tA)))
    e("v_lshlrev_b32 %s, 4, %s" % (vr(tA), vr(H)))
    e("v_mov_b32 %s, 0x3f80" % vr(tB))
    e("v_lshlrev_b32 %s, %s, %s" % (vr(r.T + 1), vr(tA), vr(tB)))
    e("v_mov_b32 %s, %s" % (vr(r.T + 2), vr(r.T + 1)))
    e("v_mov_b32 %s, %s" % (vr(r.T + 3), vr(r.T + 1)))
    e("s_lshl_b32 s3, %s, 2" % sr(sW))
    e("v_mov_b32 %s, s3" % vr(tE))
    e("v_and_b32 %s, 7, %s" % (vr(tF), vr(lane)))
    e("v_lshlrev_b32 %s, 2, %s" % (vr(tF), vr(tF)))
    e("s_waitcnt lgkmcnt(0)")
    e("s_barrier")
    if DF == 1: rest_loads()
    if DF == 2:
        for _ in range(NE2): e(RL.pop(0))
    e("s_waitcnt vmcnt(%d)" % (1 + NE + NE2 + NPF if DF == 2 else 7 + NPF))
    stamp("dst")
    mark(6)
    for rd in range(2):
        e("s_mov_b64 exec, s[%d:%d]" % (92 + 2 * rd, 93 + 2 * rd))
        e("s_cbranch_execz P1_A")
        for i in range(4 * rd, 4 * rd + 4):
            e("v_mul_u32_u24 %s, %d, %s" % (vr(HA + i), TMUL, vr(DST + i)))
            e("v_lshrrev_b32 %s, 14, %s" % (vr(HA + i), vr(HA + i)))
            e("v_and_b32 %s, 0x1ffc, %s" % (vr(HA + i), vr(HA + i)))
        for i in range(4 * rd, 4 * rd + 4):
            e("ds_add_rtn_u32 %s, %s, %s offset:%d" % (vr(RK + i), vr(HA + i), vr(ONE), HIST))
    lab("P1_A")
    e("s_mov_b64 exec, -1")
    if DF == 2: rest_loads()
    key = []
    for i in range(8):
        d = DST + i
        key += ["v_and_b32 %s, 15, %s" % (vr(d), vr(d)),
                "v_mul_u32_u24 %s, 11, %s" % (vr(c0), vr(d)),
                "v_lshrrev_b32 %s, 5, %s" % (vr(c0), vr(c0)),
                "v_mad_i32_i24 %s, %s, -3, %s" % (vr(c1), vr(c0), vr(d)),
                "v_add_u32 %s, 1, %s" % (vr(c1), vr(c1)),
                "v_lshl_add_u32 %s, %s, 1, 4" % (vr(c0), vr(c0)),
                "v_lshl_or_b32 %s, %s, %s, %s" % (vr(d), vr(c1), vr(c0), vr(d))]
    for _ in range(21): e(key.pop(0))
    e("s_waitcnt lgkmcnt(0)")
    e("s_barrier")
    stamp("hist")
    e("ds_read_b128 %s, %s offset:%d" % (vr(CN, 4), vr(T16), HIST))
    for _ in range(7): e(key.pop(0))
    e("s_waitcnt lgkmcnt(0)")
    e("v_add_u32 %s, %s, %s" % (vr(ST + 2), vr(CN), vr(CN + 1)))
    e("v_add_u32 %s, %s, %s" % (vr(ST + 3), vr(ST + 2), vr(CN + 2)))
    e("v_add_u32 %s, %s, %s" % (vr(tA), vr(ST + 3), vr(CN + 3)))
    e("v_mov_b32 %s, %s" % (vr(tB), vr(tA)))
    scan64("v_add_u32", tB, [key.pop(0) for _ in range(12)])
    e("s_mov_b32 exec_lo, 0"); e("s_mov_b32 exec_hi, 0x80000000")
    e("ds_write_b32 %s, %s offset:%d" % (vr(tE), vr(tB), WTOT))
    e("s_mov_b64 exec, -1")
    e("s_waitcnt vmcnt(%d)" % (6 + NLATE + NPF))
    e("v_readfirstlane_b32 %s, %s" % (sr(sTag), vr(EP)))
    e("v_readfirstlane_b32 %s, %s" % (sr(sE2), vr(EP + 1)))
    e(key.pop(0)); e(key.pop(0))
    e("s_add_u32 %s, %s, 1" % (sr(sTag), sr(sTag)))
    e("s_add_u32 %s, %s, 0x10000" % (sr(sE2), sr(sE2)))
    e("s_and_b32 %s, %s, 0xffff0000" % (sr(sTagH), sr(sE2)))
    e("s_waitcnt lgkmcnt(0)")
    e("s_barrier")
    e("ds_read_b32 %s, %s offset:%d" % (vr(tC), vr(tF), WTOT))
    for _ in range(7): e(key.pop(0))
    e("v_mov_b32 %s, %s" % (vr(PC_ + 3), sr(sTag)))
    e("s_waitcnt lgkmcnt(0)")
    e("v_mov_b32 %s, %s" % (vr(tD), vr(tC)))
    for sh in (1, 2, 4):
        e(key.pop(0)); e(key.pop(0))
        e("v_add_u32_dpp %s, %s, %s row_shr:%d row_mask:0xf bank_mask:0xf" % (vr(tD), vr(tD), vr(tD), sh))
    e("v_sub_u32 %s, %s, %s" % (vr(tD), vr(tD), vr(tC)))
    e(key.pop(0))
    assert not key
    e("v_readlane_b32 s3, %s, %s" % (vr(tD), sr(sW)))
    e("s_lshl_b32 s91, s2, 13")
    e("s_nop 0")
    e("v_add_u32 %s, s3, %s" % (vr(tB), vr(tB)))
    e("v_sub_u32 %s, %s, %s" % (vr(ST), vr(tB), vr(tA)))
    e("v_add_u32 %s, %s, %s" % (vr(ST + 1), vr(ST), vr(CN)))
    e("v_add_u32 %s, %s, %s" % (vr(ST + 2), vr(ST), vr(ST + 2)))
    e("v_add_u32 %s, %s, %s" % (vr(ST + 3), vr(ST), vr(ST + 3)))
    e("v_lshl_or_b32 %s, %s, 16, %s" % (vr(PC_), vr(ST + 1), vr(ST)))
    e("v_lshl_or_b32 %s, %s, 16, %s" % (vr(PC_ + 1), vr(ST + 3), vr(ST + 2)))
    e("v_or_b32 %s, %s, %s" % (vr(PC_ + 2), sr(sTagH), vr(tB)))
    PUB = int(opts.get('pub', 0))
    pub = "buffer_store_dwordx4 %s, %s, %s, s91 offen %s" % (vr(PC_, 4), vr(T16), sr(SOFS, 4), STF)
    if PUB == 0: e(pub)
    for i in range(4): e("v_lshlrev_b32 %s, 4, %s" % (vr(ST + i), vr(ST + i)))
    e("ds_write_b128 %s, %s offset:%d" % (vr(T16), vr(ST, 4), HIST))
    e("s_mov_b32 s3, 0xffff")
    e("s_waitcnt lgkmcnt(0)")
    e("s_barrier")
    stamp("scan")
    mark(5)
    for i in range(8):
        e("ds_read_b32 %s, %s offset:%d" % (vr(HA + i), vr(HA + i), HIST))
    e("s_waitcnt vmcnt(%d)" % (NLATE + (PUB == 0)))
    stamp("inputs")
    mark(9)
    def assemble(rd):
        for k in range(2 * rd, 2 * rd + 2):
            e("v_mov_b32 %s, %s" % (vr(EA + 8 * k + 4), vr(EA + 8 * k + 2)))
            e("v_mov_b32 %s, %s" % (vr(EA + 8 * k + 5), vr(EA + 8 * k + 3)))
        for i in range(4 * rd, 4 * rd + 4):
            e("v_xor_b32 %s, s3, %s" % (vr(SRCV + i), vr(SRCV + i)))
            e("v_lshl_or_b32 %s, %s, 16, %s" % (vr(EA + 4 * i + 2), vr(DST + i), vr(SRCV + i)))
            e("v_mov_b32 %s, %s" % (vr(EA + 4 * i + 3), sr(sTag)))
    for rd in range(2):
        e("s_mov_b64 exec, s[%d:%d]" % (92 + 2 * rd, 93 + 2 * rd))
        e("s_cbranch_execz P1_B")
        assemble(rd)
        e("s_waitcnt lgkmcnt(4)")
        for i in range(4 * rd, 4 * rd + 4):
            e("v_lshl_add_u32 %s, %s, 4, %s" % (vr(HA + i), vr(RK + i), vr(HA + i)))
        for i in range(4 * rd, 4 * rd + 4):
            e("ds_write_b128 %s, %s offset:%d" % (vr(HA + i), vr(EA + 4 * i, 4), RECB))
    lab("P1_B")
    e("s_mov_b64 exec, -1")
    if PUB == 2: e(pub)
    late_loads()
    PA = tA; PW_ = tB; PC2 = ST
    e("v_bfe_u32 %s, %s, 1, 7" % (vr(tC), vr(TID)))
    e("v_and_b32 %s, 1, %s" % (vr(tD), vr(TID)))
    e("v_lshlrev_b32 %s, 13, %s" % (vr(PA), vr(tC)))
    e("v_lshl_or_b32 %s, %s, 4, %s" % (vr(PA), vr(tD), vr(PA)))
    e("s_lshl_b32 s97, %s, 5" % sr(sBin))
    e("s_add_u32 s96, s97, 0x100000")
    poll = ["buffer_load_dwordx4 %s, %s, %s, s97 offen %s" % (vr(PC_, 4), vr(PA), sr(SOFS, 4), PLF),
            "buffer_load_dwordx4 %s, %s, %s, s96 offen %s" % (vr(PC2, 4), vr(PA), sr(SOFS, 4), PLF)]
    e("v_lshlrev_b32 %s, 12, %s" % (vr(PW_), vr(tD)))
    e("v_lshl_or_b32 %s, %s, 2, %s" % (vr(PW_), vr(tC), vr(PW_)))
    e("v_add_u32 %s, %d, %s" % (vr(PW_), PCB, vr(PW_)))
    e("v_add_u32 %s, %d, %s" % (vr(c2), XBB + 4096, vr(L16)))
    WL = r.WB; WH = r.WB + 16; WP = r.WV
    e("s_mov_b32 s92, 0x%x" % NEGLOG2E)
    EN = r.G[1]; Z = r.V[1]; P = r.V[1] + 4; D = r.V[1] + 8
    LA, CB, PREV, JB = [r.V[1] + 12 + i for i in range(4)]
    TOT, INC, C512, W4 = r.PS, r.PC, r.PT, r.PE
    M = r.S
    def expand_pre():
        for i in range(4): e("v_mov_b32 %s, 0" % vr(Z + i))
        e("v_lshl_add_u32 %s, %s, 5, %s" % (vr(LA), vr(lane), sr(sREC)))
        e("v_mul_u32_u24 %s, %d, %s" % (vr(CB), 4 * CH, vr(lane)))
        e("v_subrev_u32 %s, %s, %s" % (vr(CB), sr(sW0), vr(CB)))
        e("v_lshl_add_u32 %s, %s, 3, %s" % (vr(JB), vr(lane), sr(sW0)))
        e("v_mov_b32 %s, 512" % vr(C512))
        e("v_mov_b32 %s, 0" % vr(PREV))
        e("v_lshl_add_u32 %s, %s, 2, %s" % (vr(r.PL), vr(lane), sr(sREC)))
        e("s_lshl_b32 s3, %s, 2" % sr(sW))
        e("v_mov_b32 %s, s3" % vr(W4))
    def zero_list():
        e("ds_write_b128 %s, %s offset:%d" % (vr(LA), vr(Z, 4), LOFF))
        e("ds_write_b128 %s, %s offset:%d" % (vr(LA), vr(Z, 4), LOFF + 16))
    expand_pre()
    e("s_lshl_b32 s3, %s, 10" % sr(sW)); e("s_add_u32 s3, s3, %d" % PCB)
    e("v_add_u32 %s, s3, %s" % (vr(r.RI), vr(L16)))
    e("s_waitcnt lgkmcnt(0)")
    e("s_barrier")
    stamp("scatter")
    mark(7)
    if PUB == 1: e(pub)
    e("s_cmp_gt_u32 %s, 3" % sr(sW))
    e("s_cbranch_scc1 P1_D")
    e("s_cmp_ge_u32 s2, %d" % NC)
    e("s_cbranch_scc1 P1_N")
    if DELAY:
        e("s_and_b32 s3, s2, 15"); e("s_cmp_lg_u32 s3, 5"); e("s_cbranch_scc1 P1_ND")
        for _ in range(DELAY): e("s_sleep 100")
        lab("P1_ND")
    CO = DST
    for k in range(13):
        e("ds_read_b128 %s, %s offset:%d" % (vr(CO + 4 * k, 4), vr(T16), RECB + 4096 * k))
    e("v_add_u32 %s, 49152, %s" % (vr(T32), vr(T16)))
    for k in range(13):
        if k < 12: e("s_mov_b32 s3, %d" % (4096 * k))
        e("s_waitcnt lgkmcnt(%d)" % (12 - k))
        if k < 12: e("buffer_store_dwordx4 %s, %s, %s, s3 offen %s" % (vr(CO + 4 * k, 4), vr(T16), sr(SC_, 4), STF))
        else: e("buffer_store_dwordx4 %s, %s, %s, 0 offen %s" % (vr(CO + 4 * k, 4), vr(T32), sr(SC_, 4), STF))
    e("s_waitcnt vmcnt(13)")
    e("s_branch POLL_DONE")
    lab("P1_N")
    e("s_waitcnt vmcnt(0)")
    e("s_branch POLL_DONE")
    lab("P1_D")
    if int(opts.get('early', 1)):
        for t in poll: e(t)
    e("v_lshl_add_u32 %s, %s, 10, %s" % (vr(tC), vr(H), vr(J4)))
    e("s_add_u32 s3, s93, %d" % XBB)
    e("v_add_u32 %s, s3, %s" % (vr(tC), vr(tC)))
    e("s_waitcnt vmcnt(%d)" % ((8 if int(opts.get('early', 1)) else 6) + (PUB == 1) + XPF - 2 * ('X' in PFX)))
    RAW = DST
    for i in range(32):
        e("ds_read_b32 %s, %s offset:%d" % (vr(RAW + i), vr(tC), (i >> 4) * 8192 + ((i >> 3) & 1) * 2048 + (i & 7) * 128))
    e("s_bitcmp0_b32 %s, 0" % sr(sW))
    e("s_cselect_b32 s3, s92, 1.0")
    e("v_add_u32 %s, s93, %s" % (vr(tC), vr(c2)))
    for hf in range(2):
        e("s_waitcnt lgkmcnt(%d)" % (15 if hf == 0 else 4))
        if hf == 0: e("s_nop 0")
        for i in range(16):
            e("v_lshlrev_b32 %s, 16, %s" % (vr(WL + i), vr(RAW + 16 * hf + i)))
            e("v_and_b32 %s, 0xffff0000, %s" % (vr(WH + i), vr(RAW + 16 * hf + i)))
        for i in range(0, 32, 2):
            e("v_pk_mul_f32 %s, %s, s[2:3] op_sel:[0,1] op_sel_hi:[1,1]" % (vr(WL + i, 2), vr(WL + i, 2)))
        for i in range(16):
            e("v_cvt_pk_bf16_f32 %s, %s, %s" % (vr(WP + 16 * hf + i), vr(WL + 2 * i), vr(WL + 2 * i + 1)))
        for f in range(2):
            for s_ in range(2):
                e("ds_write_b128 %s, %s offset:%d" % (vr(tC), vr(WP + 16 * hf + 8 * f + 4 * s_, 4), f * 8192 + (2 * hf + s_) * 1024))
    if not int(opts.get('early', 1)):
        for t in poll: e(t)
    lab("POLL")
    e("s_waitcnt vmcnt(0)")
    e("v_xor_b32 %s, %s, %s" % (vr(c0), sr(sTagH), vr(PC_ + 2)))
    e("v_xor_b32 %s, %s, %s" % (vr(c1), sr(sTagH), vr(PC2 + 2)))
    e("v_or_b32 %s, %s, %s" % (vr(c0), vr(c0), vr(c1)))
    e("v_lshrrev_b32 %s, 16, %s" % (vr(c0), vr(c0)))
    e("v_xor_b32 %s, %s, %s" % (vr(c1), sr(sTag), vr(PC_ + 3)))
    e("v_xor_b32 %s, %s, %s" % (vr(tD), sr(sTag), vr(PC2 + 3)))
    e("v_or3_b32 %s, %s, %s, %s" % (vr(c0), vr(c0), vr(c1), vr(tD)))
    e("v_cmp_ne_u32 vcc, 0, %s" % vr(c0))
    e("s_cmp_eq_u64 vcc, 0")
    e("s_cbranch_scc1 POLL_OK")
    e("s_mov_b64 exec, vcc")
    for t in poll: e(t)
    e("s_sub_u32 %s, %s, 1" % (sr(sSpin), sr(sSpin)))
    e("s_cbranch_scc0 POLL")
    e("s_endpgm")
    lab("POLL_OK")
    e("s_mov_b64 exec, -1")
    for pc in (PC_, PC2):
        e("v_alignbit_b32 %s, %s, %s, 16" % (vr(pc + 3), vr(pc + 1), vr(pc)))
        e("v_alignbit_b32 %s, %s, %s, 16" % (vr(pc + 2), vr(pc + 2), vr(pc + 1)))
    for pc, off in ((PC_, 0), (PC2, 512)):
        for k, v in enumerate([pc, pc + 3, pc + 1, pc + 2]):
            e("ds_write_b32 %s, %s offset:%d" % (vr(PW_), vr(v), k * 1024 + off))
    lab("POLL_DONE")
    stamp("role")
    e("s_waitcnt lgkmcnt(0)")
    e("s_barrier")
    stamp("offs")
    mark(4)
    wr = []
    WA = r.G[0]; WU = r.G[1]
    for m, base in enumerate([WA, WU, r.WB, r.WV]):
        for u in range(8):
            uu = m * 8 + u
            wr.append("ds_read_b128 %s, %s offset:%d" % (vr(base + 4 * u, 4), vr(c2), (uu >> 2) * 8192 + (uu & 3) * 1024))
    e("ds_read_b128 %s, %s" % (vr(EN, 4), vr(r.RI)))
    zero_list()
    for t in wr[16:24]: e(t)
    e("s_or_b32 s3, s2, %s" % sr(sW))
    e("s_cbranch_scc1 NOBUMP")
    e("v_mov_b32 %s, %s" % (vr(r.RD), sr(sTag))); e("v_mov_b32 %s, %s" % (vr(r.RD + 1), sr(sE2)))
    e("v_lshlrev_b32 %s, 3, %s" % (vr(c1), vr(lane)))
    e("buffer_store_dwordx2 %s, %s, %s, 0 offen sc0 sc1" % (vr(r.RD, 2), vr(c1), sr(SOUT, 4)))
    lab("NOBUMP")
    e("s_waitcnt lgkmcnt(10)")

    def xidx(g, t): return "ds_read_u16 %s, %s offset:%d" % (vr(r.XI + 2 * t), vr(r.PS), g * 512 + SOFF[t] + 8)
    def xm0(buf): return "s_add_u32 m0, %s, %d" % (sr(sXB), buf * 4096)
    def xdma(t): return "buffer_load_dwordx4 %s, %s, %s idxen offen offset:%d lds" % (vr(r.XI + 2 * t, 2), sr(SXI, 4), sr(sSO + t) if t < 3 else "0", t * 1024)
    def xread(buf, k): return "ds_read_b128 %s, %s offset:%d" % (vr(r.X + 4 * k, 4), vr(r.XA1 if k & 1 else r.XA0), buf * 4096 + (k >> 1) * 256)
    def t0read(g): return "ds_read_b32 %s, %s offset:%d" % (vr(r.T), vr(r.PE), g * 512)
    def tiread(g): return "ds_read_b32 %s, %s offset:%d" % (vr(r.TI), vr(r.PT), g * 512 + 8)
    def soread(g, t): return "ds_read_u8 %s, %s offset:%d" % (vr(r.SO + t), vr(r.PC), g * 512 + SOFF[t] + 12)
    def trread(t): return "ds_read_b64_tr_b16 %s, %s offset:%d" % (vr(r.S + 2 * t, 2), vr(r.SO + t), TS)
    def riread(blk, ri=None): return "ds_read_b32 %s, %s offset:%d" % (vr(r.RI if ri is None else ri), vr(r.PL), LOFF + blk * 256)
    def rload(rd, ri, fl=None): return "buffer_load_dwordx4 %s, %s, %s, 0 idxen %s" % (vr(rd, 4), vr(ri), sr(SRC, 4), RLF if fl is None else fl)
    retries = []
    def fixup(rd, ri, blk, name, tmp0, tmp1, kx):
        retries.append((name, rd, ri))
        return ["v_cmp_gt_u32 vcc, %s, %s" % (sr(sLim), vr(ri)),
                "s_mov_b64 exec, vcc",
                name + ":",
                "v_cmp_ne_u32 vcc, %s, %s" % (sr(sTag), vr(rd + 3)),
                "v_bfe_u32 %s, %s, 16, 2" % (vr(tmp0), vr(rd + 2)),
                "v_lshrrev_b32 %s, 15, %s" % (vr(tmp1), vr(rd + 2)),
                "v_add_u32 %s, 1, %s" % (vr(tmp0), vr(tmp0)),
                "v_and_or_b32 %s, %s, 24, 3" % (vr(tmp1), vr(tmp1)),
                "s_cmp_lg_u64 vcc, 0",
                "v_lshlrev_b32 %s, %s, %s" % (vr(rd + 3), vr(tmp1), vr(tmp0)),
                "s_cbranch_scc1 %s_R" % name,
                "s_mov_b64 exec, -1",
                "v_bitop3_b32 %s, %s, %s, %s bitop3:0x6a" % (vr(rd + 2), vr(rd + 2), sr(sKm), vr(kx)),
                "ds_write_b128 %s, %s offset:%d" % (vr(r.PW), vr(rd, 4), blk * 1024)]
    def emit(lst):
        for t in lst:
            if t.endswith(":"): L.append(t)
            else: e(t)
    KX = c2 + 0

    lab("EXPAND")
    sd2 = "dst_sel:DWORD dst_unused:UNUSED_PAD src0_sel:WORD_1 src1_sel:WORD_0"
    sd = "dst_sel:DWORD dst_unused:UNUSED_PAD src0_sel:WORD_0 src1_sel:DWORD"
    for i in range(3): e("v_sub_u32_sdwa %s, %s, %s %s" % (vr(P + 1 + i), vr(EN + i), vr(EN + i), sd2))
    e("v_sub_u32_sdwa %s, %s, %s %s" % (vr(INC), vr(EN + 3), vr(EN + 3), sd2))
    e("v_add_u32 %s, %s, %s" % (vr(P + 2), vr(P + 1), vr(P + 2)))
    e("v_add_u32 %s, %s, %s" % (vr(P + 3), vr(P + 2), vr(P + 3)))
    e("v_add_u32 %s, %s, %s" % (vr(INC), vr(P + 3), vr(INC)))
    fill = ["v_add_u32 %s, %s, %s" % (vr(TOT), sr(sW0), vr(INC))]
    fill += ["v_add_u32_sdwa %s, %s, %s %s" % (vr(D + i), vr(EN + i), vr(CB), sd) for i in range(4)]
    fill += ["v_add_u32 %s, %d, %s" % (vr(D + i), i * CH, vr(D + i)) for i in range(1, 4)]
    fill += ["v_sub_u32 %s, %s, %s" % (vr(P + i), vr(P + i), vr(TOT)) for i in range(1, 4)]
    scan64("v_add_u32", INC, fill)
    e("v_sub_u32 %s, %s, %s" % (vr(P), vr(INC), vr(TOT)))
    e("v_readlane_b32 %s, %s, 63" % (sr(sTot), vr(INC)))
    for i in range(1, 4):
        e("v_add_u32 %s, %s, %s" % (vr(P + i), vr(INC), vr(P + i)))
    for i in range(4):
        e("v_sub_u32 %s, %s, %s" % (vr(D + i), vr(D + i), vr(P + i)))
        e("v_med3_i32 %s, %s, 0, %s" % (vr(P + i), vr(P + i), vr(C512)))
        e("v_lshl_add_u32 %s, %s, 2, %s" % (vr(P + i), vr(P + i), sr(sREC)))
    for i in range(4):
        e("ds_max_u32 %s, %s offset:%d" % (vr(P + i), vr(D + i), LOFF))
    e("ds_read_b128 %s, %s offset:%d" % (vr(M, 4), vr(LA), LOFF))
    e("ds_read_b128 %s, %s offset:%d" % (vr(M + 4, 4), vr(LA), LOFF + 16))
    e("s_lshl_b32 s3, %s, 3" % sr(sTot)); e("s_or_b32 s3, s3, %s" % sr(sW))
    e("v_mov_b32 %s, s3" % vr(TOT))
    e("s_mov_b64 exec, 1")
    e("ds_write_b32 %s, %s offset:%d" % (vr(W4), vr(TOT), TOTA))
    e("s_mov_b64 exec, -1")
    e("s_cmp_eq_u32 %s, 0" % sr(sFirst))
    e("s_cbranch_scc1 EXP_B")
    for t in wr[24:32]: e(t)
    e("s_waitcnt lgkmcnt(9)")
    e("s_branch EXP_C")
    lab("EXP_B")
    e("s_waitcnt lgkmcnt(1)")
    lab("EXP_C")
    e("v_max3_u32 %s, %s, %s, %s" % (vr(INC), vr(M), vr(M + 1), vr(M + 2)))
    e("v_max3_u32 %s, %s, %s, %s" % (vr(INC), vr(INC), vr(M + 3), vr(M + 4)))
    e("v_max3_u32 %s, %s, %s, %s" % (vr(INC), vr(INC), vr(M + 5), vr(M + 6)))
    e("v_max_u32 %s, %s, %s" % (vr(INC), vr(INC), vr(M + 7)))
    scan64("v_max_u32", INC, ["v_max_u32 %s, %s, %s" % (vr(M + k), vr(M + k - 1), vr(M + k)) for k in range(1, 8)])
    e("s_nop 1")
    e("v_mov_b32_dpp %s, %s wave_shr:1 row_mask:0xf bank_mask:0xf" % (vr(PREV), vr(INC)))
    for k in range(8):
        e("v_max_u32 %s, %s, %s" % (vr(M + k), vr(PREV), vr(M + k)))
        e("v_add3_u32 %s, %s, %s, %d" % (vr(M + k), vr(M + k), vr(JB), k))
    e("ds_write_b128 %s, %s offset:%d" % (vr(LA), vr(M, 4), LOFF))
    e("ds_write_b128 %s, %s offset:%d" % (vr(LA), vr(M + 4, 4), LOFF + 16))
    RI1 = r.TI; RD1 = r.S; F0 = r.XI; F1 = r.XI + 2
    e("v_lshrrev_b32 %s, 3, %s" % (vr(c0), vr(lane)))
    e("v_lshlrev_b32 %s, 2, %s" % (vr(c0), vr(c0)))
    e("v_and_b32 %s, 7, %s" % (vr(c1), vr(lane)))
    e("v_lshlrev_b32 %s, 3, %s" % (vr(r.XI + 4), vr(c1)))
    e("v_lshlrev_b32 %s, 2, %s" % (vr(c1), vr(c1)))
    e("s_sub_u32 s3, 7, %s" % sr(sW)); e("s_sub_u32 s97, %s, 4" % sr(sW))
    e("s_cmp_lt_u32 %s, 4" % sr(sW)); e("s_cselect_b32 s97, s3, s97")
    e("s_waitcnt lgkmcnt(0)")
    for i in range(4): e("v_mov_b32 %s, 0" % vr(r.S + 4 + i))
    def pointers():
        e("v_bfe_u32 %s, %s, 2, 2" % (vr(c0), vr(lane)))
        e("v_lshrrev_b32 %s, 5, %s" % (vr(c1), vr(lane)))
        e("v_lshl_or_b32 %s, %s, 3, %s" % (vr(c0), vr(c1), vr(c0)))
        e("v_lshl_add_u32 %s, %s, 4, %s" % (vr(r.PS), vr(c0), sr(sREC)))
        e("v_and_b32 %s, 3, %s" % (vr(c0), vr(lane)))
        e("v_add_u32 %s, %s, %s" % (vr(r.PC), vr(c0), vr(r.PS)))
        e("v_and_b32 %s, 31, %s" % (vr(c0), vr(lane)))
        e("v_lshl_add_u32 %s, %s, 4, %s" % (vr(r.PT), vr(c0), sr(sREC)))
        e("v_lshl_add_u32 %s, %s, 2, %s" % (vr(r.PE), vr(c1), vr(r.PT)))
        e("v_lshl_add_u32 %s, %s, 4, %s" % (vr(r.PW), vr(lane), sr(sREC)))
        e("v_mov_b32 %s, 0x4ffff" % vr(KX))
        e("s_min_u32 %s, %s, %s" % (sr(sTot), sr(sTot), sr(sLim)))
        e("s_sub_u32 s3, %s, %s" % (sr(sTot), sr(sW0)))
        e("s_min_u32 s3, s3, 512")
        e("s_add_u32 s3, s3, 31"); e("s_lshr_b32 s3, s3, 5")
        e("s_max_u32 s3, s3, 1")
        e("s_sub_u32 %s, s3, 1" % sr(sNG))
        e("s_mov_b32 %s, 2" % sr(sBLK))
    e("s_cmp_eq_u32 %s, 0" % sr(sFirst))
    e("s_cbranch_scc1 LATER")
    stamp("expand")
    e("s_barrier")
    e("ds_read_b32 %s, %s offset:%d" % (vr(c0), vr(c0), TOTA))
    e("ds_read_b32 %s, %s offset:%d" % (vr(c1), vr(c1), TOTA))
    for s in wr[8:12]: e(s)
    e("s_waitcnt lgkmcnt(4)")
    e("v_cmp_lt_u32 vcc, %s, %s" % (vr(c1), vr(c0)))
    e(wr[12]); e(wr[13])
    e("v_lshrrev_b64 %s, %s, vcc" % (vr(r.SO, 2), vr(r.XI + 4)))
    e("v_and_b32 %s, 0xff, %s" % (vr(r.SO), vr(r.SO)))
    e("v_bcnt_u32_b32 %s, %s, 0" % (vr(r.SO), vr(r.SO)))
    e("v_cmp_eq_u32 vcc, s97, %s" % vr(r.SO))
    e("s_ff1_i32_b64 s97, vcc")
    e("v_readlane_b32 %s, %s, s97" % (sr(sTot), vr(c1)))
    e("s_lshl_b32 %s, s97, 11" % sr(sXT)); e("s_add_u32 %s, %s, %d" % (sr(sXT), sr(sXT), XTB))
    e("s_lshl_b32 %s, s97, 13" % sr(sREC)); e("s_add_u32 %s, %s, %d" % (sr(sREC), sr(sREC), RECB))
    e("v_lshl_add_u32 %s, %s, 2, %s" % (vr(r.PL), vr(lane), sr(sREC)))
    e(riread(0)); e(riread(1, RI1))
    def xtile(mapreg, dst):
        e("v_add_u32 %s, %s, %s" % (vr(mapreg), sr(sXT), vr(mapreg)))
        tm = [mapreg, c0, c1, r.SO]
        for s in range(1, 4): e("v_xor_b32 %s, %d, %s" % (vr(tm[s]), 32 * s, vr(mapreg)))
        for s in range(4): e("ds_read_b128 %s, %s" % (vr(dst + 4 * s, 4), vr(tm[s])))
    NU = int(opts.get('nu', 8))
    xtile(FU, r.AT)
    e("s_waitcnt lgkmcnt(4)")
    e(rload(r.RD, r.RI, RL0)); e(rload(RD1, RI1, RL0))
    e(wr[14]); e(wr[15])
    xtile(FA, r.X)
    for s in wr[0:8]: e(s)
    WT = r.ACC[0]
    for i in range(4):
        e("v_lshlrev_b32 %s, 16, %s" % (vr(WT + i), vr(WCR + i)))
        e("v_and_b32 %s, 0xffff0000, %s" % (vr(WT + 4 + i), vr(WCR + i)))
    for i in range(8):
        e("v_mul_f32 %s, s92, %s" % (vr(WT + i), vr(WT + i)))
    for i in range(4):
        e("v_cvt_pk_bf16_f32 %s, %s, %s" % (vr(WCR + i), vr(WT + 2 * i), vr(WT + 2 * i + 1)))
    e("s_lshr_b32 %s, %s, 3" % (sr(sTot), sr(sTot)))
    e("s_lshl_b32 %s, %s, 3" % (sr(sT), sr(sBin))); e("s_add_u32 %s, %s, s97" % (sr(sT), sr(sT)))
    ua = []
    for f in range(2):
        for s in range(4):
            ua.append(mfma(r.ACC[f], r.AT + 4 * s, WU + 16 * f + 4 * s, None if s == 0 else r.ACC[f]))
    for f in range(2):
        for s in range(4):
            ua.append(mfma(WU + 16 * f, r.X + 4 * s, WA + 16 * f + 4 * s, None if s == 0 else WU + 16 * f))
    n0 = len(L)
    pointers()
    tile_range()
    e("s_min_u32 %s, %s, %d" % (sr(sEnd), sr(sEnd), N_NODES))
    e("s_sub_u32 s3, %s, %s" % (sr(sEnd), sr(sStart))); e("s_lshl_b32 s3, s3, 7")
    e("s_lshl_b32 s97, %s, 7" % sr(sStart))
    srd(SOUT, 22, "s3", "s97")
    misc = L[n0:]; del L[n0:]
    e("s_waitcnt lgkmcnt(12)")
    for k in range(NU):
        if k == 8: e("s_waitcnt lgkmcnt(0)")
        e(ua[k])
        for _ in range(5):
            if misc: L.append(misc.pop(0))
    L.extend(misc)
    e("s_waitcnt lgkmcnt(0)")
    e("s_barrier")
    lab("NOW")
    e("s_mov_b32 m0, %s" % sr(sXB))
    e("s_waitcnt vmcnt(1)")
    emit(fixup(r.RD, r.RI, 0, "FX0", c0, c1, KX))
    for t in range(4): e(xidx(0, t))
    e(riread(2))
    stamp("rec")
    mark(8)
    e("s_waitcnt lgkmcnt(1)")
    for t in range(4): e(xdma(t))
    for t in range(4): e(xidx(1, t))
    e("s_cmp_eq_u32 %s, 0" % sr(sFirst))
    e("s_cbranch_scc1 NOW2")
    for t in ua[NU:]: e(t)
    lab("NOW2")
    e("s_waitcnt vmcnt(4)")
    emit(fixup(RD1, RI1, 1, "FX1", c0, c1, KX))
    e(t0read(0)); e(tiread(0))
    e(xm0(1))
    X1L = int(opts.get('x1l', 0))
    def x1():
        for t in range(4): e(xdma(t))
        e(rload(r.RD, r.RI, RL2))
        for t in range(4): e(xidx(2, t))
    e("s_cmp_eq_u32 %s, 0" % sr(sFirst))
    e("s_cbranch_scc1 NOW3")
    for i in range(8):
        e("v_cvt_pk_bf16_f32 %s, %s, %s" % (vr(r.U + i), vr(r.ACC[0] + i), vr(r.ACC[1] + i)))
    e(mfma(r.ACC[0], r.S + 4, r.S + 4, None)); e(mfma(r.ACC[1], r.S + 4, r.S + 4, None))
    for f in range(2):
        for i in range(8):
            e("v_cvt_pk_bf16_f32 %s, %s, %s" % (vr(r.AT + 8 * f + i), vr(WU + 16 * f + 2 * i) if i & 1 else "0", vr(WU + 16 * f + 2 * i + 1)))
    e("s_mov_b32 exec_hi, 0")
    for f in range(2):
        e("v_mov_b32 %s, %s" % (vr(r.AT + 8 * f), vr(WCR + 2 * f)))
        e("v_mov_b32 %s, %s" % (vr(r.AT + 8 * f + 4), vr(WCR + 2 * f + 1)))
    e("s_mov_b64 exec, -1")
    lab("NOW3")
    e("s_waitcnt lgkmcnt(2)")
    if not X1L: x1()
    stamp("atile")
    for i in range(4): e("v_mov_b32 %s, 0" % vr(r.SO + i))
    e(mfma(r.V[0], r.S + 4, r.S + 4, None))
    e(mfma(r.V[1], r.S + 4, r.S + 4, None))
    e(mfma(r.G[1], r.S + 4, r.S + 4, None).replace(", 0", ", 1.0"))
    e(mfma(r.S, r.SO, r.SO, None))
    e("s_waitcnt vmcnt(%d)" % (0 if X1L else 5))
    stamp("x0")
    for k in range(4): e(xread(0, k))
    if X1L: x1()
    e(xm0(0))
    for s_ in range(4):
        e("s_waitcnt lgkmcnt(%d)" % (0 if s_ == 3 else 3 - s_ + 4 * X1L))
        e(mfma(r.G[0], r.X + 4 * s_, r.WB + 4 * s_, None if s_ == 0 else r.G[0]))
    e(xdma(0))
    e(smf(r.G[0], r.T, r.AT, r.TI, 1))
    e(xdma(1))
    e("s_nop 8")
    stamp("loop"); stamp("rtloop", True)
    if STAMP:
        e("s_add_u32 s100, %s, 1" % sr(sNG)); e("v_writelane_b32 v%d, s100, 28" % STV)
    mark(3)

    def I(text, lds=None, need=()): return dict(text=text, lds=lds, need=list(need))
    def oct_(base, o):
        o %= 4
        return base[o >> 1] + 8 * (o & 1)
    def C_(o, i): return "v_cvt_pk_bf16_f32 %s, %s, %s" % (vr(oct_(r.V, o) + i), vr(r.ETA + i), vr(oct_(r.V, o) + i))
    def R_(o, i): return "v_rcp_f32 %s, %s" % (vr(r.ETA + i), vr(oct_(r.G, o) + i))
    def E_(o, i): return "v_exp_f32 %s, %s" % (vr(oct_(r.G, o) + i), vr(oct_(r.G, o) + i))
    def A_(o):
        g_ = oct_(r.G, o)
        return ["v_pk_add_f32 %s, %s, 1.0 op_sel_hi:[1,0]" % (vr(g_ + i, 2), vr(g_ + i, 2)) for i in range(0, 8, 2)]
    def M_(o, pk=True):
        v_ = oct_(r.V, o)
        if pk: return ["v_pk_mul_f32 %s, %s, %s" % (vr(v_ + i, 2), vr(v_ + i, 2), vr(r.ETA + i, 2)) for i in range(0, 8, 2)]
        return ["v_mul_f32 %s, %s, %s" % (vr(v_ + i), vr(r.ETA + i), vr(v_ + i)) for i in range(8)]
    def red(f, hi): return smf(r.ACC[f], r.S + 4 * hi, r.V[f] + 8 * hi, r.SI)
    def gch(f): return [mfma(r.G[f], r.X + 4 * k, r.WB + 16 * f + 4 * k, None if k == 0 else r.G[f]) for k in range(4)] + [smf(r.G[f], r.T, r.AT + 8 * f, r.TI, 1)]
    def vch(f): return [mfma(r.V[f], r.X + 4 * k, r.WV + 16 * f + 4 * k, None if k == 0 else r.V[f]) for k in range(4)]
    RR = int(opts.get('rr', 1))
    CUT6 = [int(x) for x in opts.get('cut6', '0,3,6,10,14,18' if RR else '0,3,7,11,15,19').split(',')]
    CUT5 = [int(x) for x in opts.get('cut5', '0,4,8,12,16' if RR else '0,4,9,13,18').split(',')]
    HI = int(opts.get('hi', -1))
    def sub(s_, g):
        nb = (g + 1) & 1
        tail = []
        fxl = lambda: [I("s_cbranch_scc1 FXL_S")] + [I(t) for t in fixup(r.RD, r.RI, 2, "FXL", c0, c1, KX)] + [I("FXL_S:")]
        ptr = [I("v_lshl_add_u64 %s, %s, 0, %s" % (vr(r.PS, 2), vr(r.PS, 2), sr(sINC, 2))),
               I("v_lshl_add_u64 %s, %s, 0, %s" % (vr(r.PT, 2), vr(r.PT, 2), sr(sINC, 2))),
               I("v_lshl_add_u64 %s, %s, 0, %s" % (vr(r.PL, 2), vr(r.PL, 2), sr(sINC2, 2)))]
        if RR:
            if s_ == 0:
                mm = [I(red(0, 0), need=['S3']), I(red(0, 1))] + [I(t) for t in vch(0)]
                aux = [[], [I(soread(g, 0), lds='SO0')], [I(xdma(2)), I(soread(g, 1), lds='SO1')], [I(xdma(3))],
                       [I(soread(g, 2), lds='SO2')], [I(soread(g, 3), lds='SO3')]]
                if g == 1: aux[4].insert(0, I(rload(r.RD, r.RI), need=['RI']))
            elif s_ == 1:
                mm = [I(t) for t in gch(1)]
                aux = [[I(xidx(g + 3, k), lds='XI%d' % k)] for k in range(4)] + [[I(t0read(g + 1), lds='T0')]]
            elif s_ == 2:
                mm = [I(red(1, 0)), I(red(1, 1))] + [I(t) for t in vch(1)]
                aux = [[I(tiread(g + 1), lds='TI')], [I("s_waitcnt vmcnt(%d)" % (4 if g == 0 else 5), need=['XI3']), I(trread(0), lds='S0')]] + [[I(xread(nb, k), lds='X%d' % k)] for k in range(4)]
                aux[5].insert(0, I("s_waitcnt", need=['X1']))
                if g == 0:
                    aux[4].insert(0, I("s_cmp_gt_u32 %s, 7" % sr(sBLK)))
                    tail = fxl()
            else:
                gc = gch(0)
                mm = [I(gc[k], need=['X%d' % k]) for k in range(4)] + [I(gc[4], need=['T0', 'TI'])]
                aux = [[I(trread(1), lds='S1')], [I("s_waitcnt", need=['X3']), I(trread(2), lds='S2')], [I(xm0(nb)), I(trread(3), lds='S3')],
                       [I("s_sub_u32 %s, %s, 1" % (sr(sNG), sr(sNG))), I(xdma(0))], [I("s_waitcnt", need=['S3']), I(xdma(1))]]
                if g == 0:
                    aux[2].append(I(riread(3), lds='RI'))
                    aux[0].insert(0, I("s_add_u32 %s, %s, 1" % (sr(sBLK), sr(sBLK))))
                else: tail = ptr
        elif s_ == 0:
            mm = [I(red(0, 1), need=['S3'])] + [I(t) for t in vch(0)]
            aux = [[I(soread(g, 0), lds='SO0')], [I(xdma(2)), I(soread(g, 1), lds='SO1')], [I(xdma(3))],
                   [I(soread(g, 2), lds='SO2')], [I(soread(g, 3), lds='SO3')]]
            if g == 1: aux[3].insert(0, I(rload(r.RD, r.RI), need=['RI']))
        elif s_ == 1:
            mm = [I(red(1, 0))] + [I(t) for t in gch(1)]
            aux = [[I(trread(0), lds='S0', need=['SO1'])], [I(trread(1), lds='S1')], [I(xidx(g + 3, 0), lds='XI0')], [I(xidx(g + 3, 1), lds='XI1')],
                   [I(xidx(g + 3, 2), lds='XI2'), I(xidx(g + 3, 3), lds='XI3')], [I(t0read(g + 1), lds='T0')]]
        elif s_ == 2:
            mm = [I(red(1, 1))] + [I(t) for t in vch(1)]
            aux = [[I("s_waitcnt vmcnt(%d)" % (4 if g == 0 else 5), need=['XI3']), I(tiread(g + 1), lds='TI')]] + [[I(xread(nb, k), lds='X%d' % k)] for k in range(4)]
            if g == 0:
                aux[3].insert(0, I("s_cmp_gt_u32 %s, 7" % sr(sBLK)))
                tail = fxl()
        else:
            gc = gch(0)
            mm = [I(red(0, 0), need=['S1'])] + [I(gc[k], need=['X%d' % k]) for k in range(4)] + [I(gc[4], need=['T0', 'TI'])]
            aux = [[I(trread(2), lds='S2', need=['X1'])], [I(trread(3), lds='S3')], [I("s_waitcnt", need=['X3'])], [I(xm0(nb))],
                   [I("s_sub_u32 %s, %s, 1" % (sr(sNG), sr(sNG))), I(xdma(0))], [I("s_waitcnt", need=['S3']), I(xdma(1))]]
            if g == 0:
                aux[3].append(I(riread(3), lds='RI'))
                aux[1].insert(0, I("s_add_u32 %s, %s, 1" % (sr(sBLK), sr(sBLK))))
            else: tail = ptr
        aux[0].insert(0, I("s_setprio %d" % (0 if str(s_) in LOWS else 1)))
        aux[HI].insert(0, I("s_setprio 3"))
        cut = CUT6 if len(mm) == 6 else CUT5
        va = []
        for i in range(8): va += [C_(s_ - 2, i), R_(s_ - 1, i), E_(s_, i)]
        out = []
        for k, t in enumerate(va):
            if k in cut:
                j = cut.index(k); out.append(mm[j]); out.extend(aux[j])
            out.append(I(t))
        return out + tail + [I(t) for t in M_(s_ - 1) + A_(s_)]
    body = []
    for g in range(2):
        for s_ in range(4): body += sub(s_, g)
        body.append(I("s_cbranch_scc1 DRAIN" if g == 0 else "s_cbranch_scc0 LOOP"))
    issued = []; done = 0
    for pas in range(2):
        if pas == 1: lab("LOOP")
        for it in body:
            n = None
            for tag in it['need']:
                idxs = [k for k, t in enumerate(issued) if t == tag]
                if not idxs: continue
                k = idxs[-1]
                if k >= done:
                    n = len(issued) - 1 - k
                    done = k + 1
            tx = it['text']
            if n is not None:
                assert n <= 15
                if tx.startswith("s_waitcnt"): tx += " lgkmcnt(%d)" % n
                elif pas == 1: e("s_waitcnt lgkmcnt(%d)" % n)
            if pas == 1 and tx != "s_waitcnt": emit([tx])
            if it['lds']: issued.append(it['lds'])
    lab("DRAIN")
    stamp("loopend"); stamp("rtloopend", True)
    XR = r.X; EA_ = r.X + 8
    pre = ["v_lshrrev_b32 %s, 5, %s" % (vr(c0), vr(lane)),
           "v_and_b32 %s, 31, %s" % (vr(c1), vr(lane)),
           "v_lshlrev_b32 %s, 2, %s" % (vr(c1), vr(c1)),
           "v_mul_u32_u24 %s, 0x240, %s" % (vr(c2), vr(c0)),
           "v_xor_b32 %s, %s, %s" % (vr(c2), vr(c2), vr(c1)),
           "v_add_u32 %s, %s, %s" % (vr(c2), sr(sXT), vr(c2))]
    e("s_setprio 2")
    e("s_waitcnt lgkmcnt(0)")
    if RR: e(red(0, 0))
    e(red(0, 1))
    for i in range(8): e(C_(2, i)); e(R_(3, i))
    e(pre.pop(0)); e(pre.pop(0))
    e(red(1, 0))
    for t in M_(3, False): e(t)
    for i in range(8): e(C_(3, i))
    for t in pre: e(t)
    e(red(1, 1))
    e("s_add_u32 %s, %s, 512" % (sr(sW0), sr(sW0)))
    e("s_cmp_lt_u32 %s, %s" % (sr(sW0), sr(sTot)))
    e("s_cbranch_scc1 MORE")
    for q_ in range(4):
        if q_: e("v_xor_b32 %s, %d, %s" % (vr(EA_), 16 * q_, vr(c2)))
        e("ds_read_b32 %s, %s offset:%d" % (vr(XR + q_), vr(EA_ if q_ else c2), q_ * 128))
        e("ds_read_b32 %s, %s offset:%d" % (vr(XR + q_ + 4), vr(EA_ if q_ else c2), q_ * 128 + 1024))
    e("v_lshlrev_b32 %s, 2, %s" % (vr(c0), vr(c0)))
    e("v_subrev_u32 %s, %s, %s" % (vr(c0), sr(sStart), vr(c0)))
    e("v_lshl_add_u32 %s, %s, 7, %s" % (vr(c0), vr(c0), vr(c1)))
    for q_ in range(8):
        e("v_add_u32 %s, %d, %s" % (vr(EA_ + q_), (8 * (q_ >> 2) + (q_ & 3)) * 128, vr(c0)))
        e("v_and_b32 %s, 0x7ff, %s" % (vr(EA_ + q_), vr(EA_ + q_)))
    e("s_mov_b32 s3, 0x358637bd")
    for f in range(2):
        for q_ in range(8):
            e("v_add_f32 %s, s3, %s" % (vr(r.ACC[f] + q_), vr(r.ACC[f] + q_)))
        for q_ in range(8):
            e("v_rcp_f32 %s, %s" % (vr(r.ACC[f] + q_), vr(r.ACC[f] + q_)))
    e("s_waitcnt lgkmcnt(0)")
    for q_ in range(8):
        for f in range(2):
            u = r.ACC[f] + q_
            if f == 0:
                e("v_lshlrev_b32 %s, 16, %s" % (vr(c0), vr(r.U + q_))); e("v_lshlrev_b32 %s, 16, %s" % (vr(c1), vr(XR + q_)))
            else:
                e("v_and_b32 %s, 0xffff0000, %s" % (vr(c0), vr(r.U + q_))); e("v_and_b32 %s, 0xffff0000, %s" % (vr(c1), vr(XR + q_)))
            e("v_fmac_f32 %s, %s, %s" % (vr(c0), vr(u), vr(u + 8)))
            e("v_max_f32 %s, 0, %s" % (vr(c0), vr(c0)))
            e("v_add_f32 %s, %s, %s" % (vr(u), vr(c1), vr(c0)))
        e("v_cvt_pk_bf16_f32 %s, %s, %s" % (vr(r.U + q_), vr(r.ACC[0] + q_), vr(r.ACC[1] + q_)))
        e("buffer_store_dword %s, %s, %s, 0 offen %s" % (vr(r.U + q_), vr(EA_ + q_), sr(SOUT, 4), OSF))
    if STAMP:
        e("s_waitcnt vmcnt(0)")
        stamp("end"); stamp("rtend", True)
        e("s_sub_u32 s100, %d, %s" % (SPINMAX, sr(sSpin))); e("v_writelane_b32 v%d, s100, 29" % STV)
        e("s_getreg_b32 s100, hwreg(HW_REG_HW_ID)"); e("v_writelane_b32 v%d, s100, 30" % STV)
        e("s_lshl_b32 s3, s2, 3"); e("s_add_u32 s3, s3, %s" % sr(sW)); e("s_lshl_b32 s3, s3, 7"); e("s_add_u32 s3, s3, 0x%x" % WS_DBG)
        srd(SA, 26, 128, "s3")
        e("v_lshlrev_b32 %s, 2, %s" % (vr(c0), vr(lane)))
        e("buffer_store_dword v%d, %s, %s, 0 offen" % (STV, vr(c0), sr(SA, 4)))
    if DW:
        if 'dwg' in opts:
            e("s_cmp_lg_u32 s2, %s" % opts['dwg']); e("s_cbranch_scc1 K_END")
        e("s_waitcnt vmcnt(0) lgkmcnt(0)")
        lab("SPIN")
        e("s_memrealtime s[100:101]"); e("s_waitcnt lgkmcnt(0)")
        e("s_sub_u32 s100, s100, s98"); e("s_cmp_lt_u32 s100, 6000"); e("s_cbranch_scc1 SPIN")
    lab("K_END")
    e("s_endpgm")
    for name, rd, ri in retries:
        lab(name + "_R")
        e("s_mov_b64 exec, vcc")
        if int(opts.get('rsl', 0)): e("s_sleep %d" % int(opts.get('rsl', 0)))
        e(rload(rd, ri, "sc0 sc1"))
        e("s_sub_u32 %s, %s, 1" % (sr(sSpin), sr(sSpin)))
        e("s_waitcnt vmcnt(0)")
        e("s_cbranch_scc0 %s" % name)
        e("s_endpgm")
    lab("LATER")
    e(riread(0)); e(riread(1, RI1))
    pointers()
    e("s_waitcnt lgkmcnt(0)")
    e(rload(r.RD, r.RI)); e(rload(RD1, RI1))
    e("s_branch NOW")
    lab("MORE")
    e("s_mov_b32 %s, 0" % sr(sFirst))
    e("s_waitcnt vmcnt(0) lgkmcnt(0)")
    e("s_nop 15")
    e("s_lshr_b32 s3, %s, 2" % sr(sT)); e("s_lshl_b32 s3, s3, 4")
    e("s_and_b32 s97, %s, 3" % sr(sT)); e("s_lshl_b32 s97, s97, 1"); e("s_add_u32 s3, s3, s97")
    e("v_lshl_add_u32 %s, %s, 15, s3" % (vr(c0), vr(lane)))
    for i in range(4):
        e("buffer_load_ushort %s, %s, %s, 0 offen sc0 sc1" % (vr(EN + i), vr(c0), sr(SOFS, 4)))
        e("buffer_load_ushort %s, %s, %s, 0 offen offset:2 sc0 sc1" % (vr(D + i), vr(c0), sr(SOFS, 4)))
        e("v_add_u32 %s, 8192, %s" % (vr(c0), vr(c0)))
    expand_pre()
    zero_list()
    e("s_waitcnt vmcnt(0)")
    for i in range(4): e("v_lshl_or_b32 %s, %s, 16, %s" % (vr(EN + i), vr(D + i), vr(EN + i)))
    e("s_branch EXPAND")
    return r.n

hdr = open('cdna_kernels/%s.s.ref' % NAME).read().split('\n')
hdr = [l for l in hdr if l.startswith(';   offset') or l.startswith('; Kernarg')]
L.append('.amdgcn_target "amdgcn-amd-amdhsa--gfx950"')
L.append('.text')
nv = kernel()
L.append('.section .rodata,"a"')
L += [".p2align 6", ".amdhsa_kernel %s" % KN, "  .amdhsa_next_free_vgpr 256", "  .amdhsa_next_free_sgpr 102",
      "  .amdhsa_accum_offset 256", "  .amdhsa_group_segment_fixed_size 0", "  .amdhsa_kernarg_size 96",
      "  .amdhsa_user_sgpr_count 2", "  .amdhsa_user_sgpr_kernarg_segment_ptr 1", "  .amdhsa_system_sgpr_workgroup_id_x 1",
      ".end_amdhsa_kernel"]
if opts.get('list', '0') == '1':
    top = hdr + ["; @launch kernel=%s grid=(256,1,1) block=(512,1,1) lds=%d" % (KN, LDS_BYTES)]
else:
    top = hdr + ["; @launch grid=(256,1,1) block=(512,1,1) lds=%d" % LDS_BYTES]
open(OUT, 'w').write("\n".join(top + L) + "\n")
if STAMP: open('stamps.txt', 'w').write(" ".join(names))
print("vgprs:", nv, "lines:", len(L))
```

```python
import sys, re

NAME = "standalone__edge_featured_mpnn_gatedgcn__graph"
KN = NAME + "_kernel"
N_NODES = 25000
CH = 3200
NC = 250
TMUL = 5368
WS_REC = 0
WS_OFF = 0xD00000
WS_EPO = 0xF00000
WS_DBG = 0x1000000
NEGLOG2E = 0xBFB8AA3B
SPINMAX = 200000

opts = dict(a.split('=') for a in sys.argv[1:] if '=' in a)
OUT = opts.get('out', 'cdna_kernels/%s.s' % NAME)
STAMP = int(opts.get('stamp', 0))
STF = opts.get('stf', 'sc1').replace('+', ' ')
LDF = opts.get('ldf', 'nt').replace('+', ' ')
RLF = opts.get('rlf', '').replace('+', ' ')
RL0 = opts.get('rl0', '').replace('+', ' ')
RL2 = opts.get('rl2', '').replace('+', ' ')
XPF = int(opts.get('xpf', 0))
PLF = opts.get('plf', 'sc1').replace('+', ' ')
OSF = opts.get('osf', '').replace('+', ' ')
DW = int(opts.get('dw', 0))
LOWS = opts.get('lows', '')
DELAY = int(opts.get('delay', 0))

L = []
def e(s): L.append("    " + s)
def lab(s): L.append(s + ":")
def vr(a, n=1): return "v%d" % a if n == 1 else "v[%d:%d]" % (a, a + n - 1)
def sr(a, n=1): return "s%d" % a if n == 1 else "s[%d:%d]" % (a, a + n - 1)

DPPS = ["row_shr:1 row_mask:0xf bank_mask:0xf", "row_shr:2 row_mask:0xf bank_mask:0xf",
        "row_shr:4 row_mask:0xf bank_mask:0xf", "row_shr:8 row_mask:0xf bank_mask:0xf",
        "row_bcast:15 row_mask:0xa bank_mask:0xf", "row_bcast:31 row_mask:0xc bank_mask:0xf"]
def scan64(op, v, fill=()):
    fill = list(fill)
    for m in DPPS:
        n = 0
        while n < 2 and fill:
            e(fill.pop(0)); n += 1
        if n < 2: e("s_nop %d" % (1 - n))
        e("%s_dpp %s, %s, %s %s" % (op, vr(v), vr(v), vr(v), m))
    for f in fill: e(f)

def srd(d, base, nbytes, add=None, stride=0, sub=None):
    if sub is not None:
        e("s_sub_u32 %s, %s, %s" % (sr(d), sr(base), sub))
        e("s_subb_u32 %s, %s, 0" % (sr(d + 1), sr(base + 1)))
        e("s_and_b32 %s, %s, 0xffff" % (sr(d + 1), sr(d + 1)))
    elif add is None:
        e("s_mov_b32 %s, %s" % (sr(d), sr(base)))
        e("s_and_b32 %s, %s, 0xffff" % (sr(d + 1), sr(base + 1)))
    else:
        e("s_add_u32 %s, %s, %s" % (sr(d), sr(base), add))
        e("s_addc_u32 %s, %s, 0" % (sr(d + 1), sr(base + 1)))
        e("s_and_b32 %s, %s, 0xffff" % (sr(d + 1), sr(d + 1)))
    if stride:
        e("s_or_b32 %s, %s, 0x%x" % (sr(d + 1), sr(d + 1), stride << 16))
    e("s_mov_b32 %s, %s" % (sr(d + 2), nbytes if isinstance(nbytes, str) else "0x%x" % nbytes))
    e("s_mov_b32 %s, 0x20000" % sr(d + 3))

STV = 255
names = []
def stamp(name, real=False):
    if not STAMP: return
    if 'only' in opts and name not in opts['only'].split(',') + ['rt0', 'start', 'loop', 'rtloop', 'loopend', 'rtloopend', 'end', 'rtend']: return
    k = len(names); names.append(name)
    e("s_mem%stime s[100:101]" % ("real" if real else ""))
    e("s_waitcnt lgkmcnt(0)")
    e("v_writelane_b32 v%d, s100, %d" % (STV, k))
def mark(*modes):
    if DW in modes: e("s_memrealtime s[98:99]"); e("s_waitcnt lgkmcnt(0)")

TS, TOTA, WTOT = 0, 64, 128
RECB = 1024
HIST = RECB + CH * 16
XTB = RECB + 65536
XBB = XTB + 16384
PCB = XBB + 65536
LDS_BYTES = PCB + 8192
LOFF = 8192 - 2048 - 16

class R: pass
def alloc():
    r = R(); p = 0
    def a(n, al=1):
        nonlocal p
        p = (p + al - 1) // al * al
        b = p; p += n
        return b
    r.LANE = a(1); r.SI = a(1)
    r.PS = a(1, 2); r.PC = a(1); r.PT = a(1, 2); r.PE = a(1); r.PL = a(1, 2); r.PW = a(1)
    r.XA0 = a(1); r.XA1 = a(1); r.TI = a(1); r.TMP = a(3); r.RI = a(1)
    r.SO = a(4, 2); r.XI = a(8, 2); r.T = a(4, 2); r.RD = a(4, 2); r.U = a(8, 2)
    r.S = a(8, 2); r.ETA = a(8, 2); r.X = a(16, 2)
    r.ACC = [a(16, 2), a(16, 2)]
    r.G = [a(16, 2), None]; r.V = [a(16, 2), None]
    r.G[1] = a(16, 2); r.V[1] = a(16, 2)
    r.WB = a(32, 2); r.WV = a(32, 2); r.AT = a(16, 2)
    r.n = p
    return r

def mfma(d, a, b, c):
    return "v_mfma_f32_32x32x16_bf16 %s, %s, %s, %s" % (vr(d, 16), vr(a, 4), vr(b, 4), "0" if c is None else vr(c, 16))
def smf(d, a, b, idx, abid=0):
    return "v_smfmac_f32_32x32x32_bf16 %s, %s, %s, %s%s" % (vr(d, 16), vr(a, 4), vr(b, 8), vr(idx), " abid:1" if abid else "")
SOFF = [0, 64, 256, 320]

def kernel():
    r = alloc()
    assert r.n <= 255, r.n
    SX, SXI, SOFS, SRC, SOUT, SA, SB, SC_ = 28, 32, 36, 40, 44, 48, 52, 56
    sW, sT, sStart, sEnd, sTot, sW0, sNG, sXB, sREC, sFirst, sBin, sMag, sBLK, sXT, sTag, sTagH, sSpin, sLim, sKm, sKx = range(60, 80)
    sINC = 80; sINC2 = 82; sSO = 84; sE2 = 88; sRET = 90
    lane = r.LANE
    c0, c1, c2 = r.TMP, r.TMP + 1, r.TMP + 2
    MAG = -(-(1 << 41) // 671)
    for t in range(2049):
        n = t * 8192 + 670
        assert (n * MAG) >> 41 == n // 671
    def tile_range():
        e("s_lshl_b32 s3, %s, 13" % sr(sT)); e("s_add_u32 s3, s3, 670")
        e("s_mul_hi_u32 %s, s3, %s" % (sr(sStart), sr(sMag))); e("s_lshr_b32 %s, %s, 9" % (sr(sStart), sr(sStart)))
        e("s_add_u32 s3, s3, 8192")
        e("s_mul_hi_u32 %s, s3, %s" % (sr(sEnd), sr(sMag))); e("s_lshr_b32 %s, %s, 9" % (sr(sEnd), sr(sEnd)))
    L.append(".globl %s" % KN); L.append(".p2align 8"); L.append(".type %s,@function" % KN); lab(KN)
    e("s_load_dwordx16 s[4:19], s[0:1], 0")
    e("s_load_dwordx8 s[20:27], s[0:1], 64")
    e("s_cmp_gt_u32 s2, 255")
    e("s_cbranch_scc1 K_END")
    e("s_setprio 3")
    mark(1)
    stamp("rt0", True); stamp("start")
    q = r.X
    TID = q; T16 = q + 1; T32 = q + 2; ONE = q + 3; ZER = q + 4
    DST = q + 8
    SRCV = q + 16
    EA = q + 24
    HA = q + 56
    RK = q + 64
    CN = q + 72
    ST = q + 76
    PC_ = q + 80
    tA, tB, tC, tD, tE, tF = [q + 84 + i for i in range(6)]
    EP = q + 90
    T16B = q + 92; T32B = q + 93
    assert q + 94 <= r.WB
    WRAW = r.AT
    WCR = r.ETA
    e("v_mov_b32 %s, v0" % vr(TID))
    e("v_lshrrev_b32 %s, 6, v0" % vr(tA))
    e("v_lshlrev_b32 %s, 4, v0" % vr(T16))
    e("v_readfirstlane_b32 %s, %s" % (sr(sW), vr(tA)))
    e("v_lshlrev_b32 %s, 5, v0" % vr(T32))
    e("v_and_b32 %s, 63, v0" % vr(lane))
    e("v_add_u32 %s, 8192, %s" % (vr(T16B), vr(T16)))
    e("v_add_u32 %s, 16384, %s" % (vr(T32B), vr(T32)))
    for i in range(4): e("v_mov_b32 %s, 0" % vr(ZER + i))
    e("v_mov_b32 %s, 1" % vr(ONE))
    e("ds_write_b128 %s, %s offset:%d" % (vr(T16), vr(ZER, 4), HIST))
    e("s_min_u32 s3, s2, %d" % (NC - 1))
    e("s_mul_i32 s92, s3, %d" % (CH * 4))
    e("s_lshl_b32 s93, s92, 1")
    e("s_cmp_lt_u32 s2, %d" % NC)
    e("s_cselect_b32 s94, %d, 0" % (CH * 4))
    e("s_cselect_b32 s95, %d, 0" % (CH * 8))
    e("s_cselect_b32 s96, %d, 0" % (CH // 4))
    e("s_and_b32 s3, s2, 7"); e("s_lshl_b32 s3, s3, 5"); e("s_lshr_b32 %s, s2, 3" % sr(sBin)); e("s_add_u32 %s, %s, s3" % (sr(sBin), sr(sBin)))
    e("s_lshl_b32 %s, %s, 13" % (sr(sREC), sr(sW)))
    e("s_add_u32 %s, %s, %d" % (sr(sXB), sr(sREC), XBB))
    e("s_add_u32 %s, %s, %d" % (sr(sREC), sr(sREC), RECB))
    e("s_lshl_b32 %s, %s, 3" % (sr(sT), sr(sBin))); e("s_add_u32 %s, %s, %s" % (sr(sT), sr(sT), sr(sW)))
    e("s_mov_b32 %s, 0x%x" % (sr(sMag), MAG))
    tile_range()
    e("s_waitcnt lgkmcnt(0)")
    if int(opts.get('wsb', 0)):
        e("s_add_u32 s26, s26, 0x%x" % (int(opts['wsb']) << 20)); e("s_addc_u32 s27, s27, 0")
    if int(opts.get('tt', 0)):
        e("s_cmp_lt_u32 s2, %d" % int(opts.get('ttw', 248)))
        e("s_cbranch_scc1 TT_SKIP")
        e("s_cmp_lg_u32 %s, 7" % sr(sW))
        e("s_cbranch_scc1 TT_SKIP")
        e("v_lshlrev_b32 %s, 18, %s" % (vr(tA), vr(lane)))
        e("v_lshlrev_b32 %s, 16, %s" % (vr(tB), vr(lane)))
        srd(SA, 26, 0x1000000)
        e("buffer_load_dword %s, %s, %s, 0 offen sc0 sc1" % (vr(r.AT), vr(tA), sr(SA, 4)))
        srd(SA, 4, N_NODES * 128)
        e("buffer_load_dword %s, %s, %s, 0 offen" % (vr(r.AT), vr(tB), sr(SA, 4)))
        srd(SA, 22, N_NODES * 128)
        e("buffer_load_dword %s, %s, %s, 0 offen sc0 sc1" % (vr(r.AT), vr(tB), sr(SA, 4)))
        for p in (12, 14, 16, 18, 20):
            srd(SA, p, 512)
            e("buffer_load_dword %s, %s, %s, 0 offen" % (vr(r.AT), vr(tB), sr(SA, 4)))
        lab("TT_SKIP")
    srd(SA, 10, "s94", "s92")
    e("buffer_load_dwordx4 %s, %s, %s, 0 offen %s" % (vr(DST, 4), vr(T16), sr(SA, 4), LDF))
    e("buffer_load_dwordx4 %s, %s, %s, 0 offen %s" % (vr(DST + 4, 4), vr(T16B), sr(SA, 4), LDF))
    srd(SOUT, 26, 8, "0x%x" % WS_EPO)
    e("buffer_load_dwordx2 %s, %s, %s, 0 offen sc1" % (vr(EP, 2), vr(ZER), sr(SOUT, 4)))
    DF = int(opts.get('df', 2))
    SS, SE = (SB, SC_) if not DF else (SRC, SOFS)
    srd(SS, 8, "s94", "s92")
    srd(SE, 6, "s95", "s93")
    RL = ["buffer_load_dwordx4 %s, %s, %s, 0 offen %s" % (vr(SRCV, 4), vr(T16), sr(SS, 4), LDF),
          "buffer_load_dwordx4 %s, %s, %s, 0 offen %s" % (vr(SRCV + 4, 4), vr(T16B), sr(SS, 4), LDF)]
    for k in (2, 3, 0, 1):
        RL.append("buffer_load_dwordx4 %s, %s, %s, 0 offen offset:%d %s" % (vr(EA + 8 * k, 4), vr(T32B if k >> 1 else T32), sr(SE, 4), 16 * (k & 1), LDF))
    NE = int(opts.get('ne', 2))
    NE2 = int(opts.get('ne2', 0))
    for _ in range(NE): e(RL.pop(0))
    def rest_loads():
        for t in RL: e(t)
        if DF:
            srd(SOFS, 26, 256 * 8192, "0x%x" % WS_OFF)
            srd(SRC, 26, NC * CH, stride=16)
    if DF == 0: rest_loads()
    e("v_cmp_gt_u32 vcc, s96, %s" % vr(TID))
    e("s_mov_b64 s[92:93], vcc")
    e("v_add_u32 %s, 512, %s" % (vr(tA), vr(TID)))
    e("v_cmp_gt_u32 vcc, s96, %s" % vr(tA))
    e("s_mov_b64 s[94:95], vcc")
    e("s_and_b32 s3, %s, 3" % sr(sW))
    e("s_cmp_eq_u32 s3, 1"); e("s_cselect_b32 s12, s18, s12"); e("s_cselect_b32 s13, s19, s13")
    e("s_cmp_eq_u32 s3, 2"); e("s_cselect_b32 s12, s14, s12"); e("s_cselect_b32 s13, s15, s13")
    e("s_cmp_eq_u32 s3, 3"); e("s_cselect_b32 s12, s20, s12"); e("s_cselect_b32 s13, s21, s13")
    srd(SA, 12, 8192)
    srd(SB, 16, 512)
    srd(SX, 4, N_NODES * 128)
    H = r.SO
    XT0, XT1, J4, L16 = r.RD, r.RD + 1, r.RD + 2, r.RD + 3
    e("v_lshrrev_b32 %s, 5, %s" % (vr(H), vr(lane)))
    e("v_and_b32 %s, 31, %s" % (vr(J4), vr(lane)))
    e("v_lshlrev_b32 %s, 2, %s" % (vr(J4), vr(J4)))
    e("v_lshlrev_b32 %s, 4, %s" % (vr(L16), vr(lane)))
    e("v_lshrrev_b32 %s, 3, %s" % (vr(tA), vr(lane)))
    e("v_xor_b32 %s, %s, %s" % (vr(tB), vr(tA), vr(lane)))
    e("v_and_b32 %s, 7, %s" % (vr(tB), vr(tB)))
    e("v_lshlrev_b32 %s, 4, %s" % (vr(tB), vr(tB)))
    e("v_subrev_u32 %s, %s, %s" % (vr(tA), sr(sStart), vr(tA)))
    e("v_and_b32 %s, 15, %s" % (vr(tA), vr(tA)))
    e("v_xor_b32 %s, 8, %s" % (vr(tC), vr(tA)))
    e("v_add_u32 %s, %s, %s" % (vr(tA), sr(sStart), vr(tA)))
    e("v_add_u32 %s, %s, %s" % (vr(tC), sr(sStart), vr(tC)))
    e("v_lshl_add_u32 %s, %s, 7, %s" % (vr(XT0), vr(tA), vr(tB)))
    e("v_lshl_add_u32 %s, %s, 7, %s" % (vr(XT1), vr(tC), vr(tB)))
    def late_loads():
        e("s_cmp_lt_u32 %s, 4" % sr(sW))
        e("s_cbranch_scc1 LATE_B")
        e("s_and_b32 s93, %s, 3" % sr(sW)); e("s_lshl_b32 s93, s93, 14")
        e("s_add_u32 m0, s93, %d" % XBB)
        e("s_mov_b32 s3, 4096")
        for k in range(4):
            e("buffer_load_dwordx4 %s, %s, 0 offen offset:%d %s lds" % (vr(L16), sr(SA, 4), k * 1024, opts.get('wf', '')))
        e("s_add_u32 m0, s93, %d" % (XBB + 8192))
        e("s_nop 0")
        for k in range(4):
            e("buffer_load_dwordx4 %s, %s, s3 offen offset:%d %s lds" % (vr(L16), sr(SA, 4), k * 1024, opts.get('wf', '')))
        if XPF:
            e("s_lshr_b32 s3, s2, 3"); e("s_mul_i32 s3, s3, %d" % (782 * 128))
            e("s_lshr_b32 s94, s93, 1"); e("s_mul_i32 s94, s94, %d" % XPF); e("s_add_u32 s3, s3, s94")
            e("v_lshl_add_u32 %s, %s, 7, s3" % (vr(tF), vr(lane)))
            for k in range(XPF):
                e("buffer_load_dword %s, %s, %s, 0 offen" % (vr(tE), vr(tF), sr(SX, 4)))
                if k + 1 < XPF: e("v_add_u32 %s, 8192, %s" % (vr(tF), vr(tF)))
        lab("LATE_B")
        e("s_mov_b32 exec_hi, 0")
        for i in range(4):
            e("buffer_load_dword %s, %s, %s, 0 offen offset:%d %s" % (vr(WCR + i), vr(J4), sr(SB, 4), i * 128, opts.get('wf', '')))
        e("s_mov_b64 exec, -1")
        if 'X' not in opts.get('pfx', ''): xt_loads()
    def xt_loads():
        e("s_lshl_b32 s3, %s, 11" % sr(sW))
        e("s_add_u32 m0, s3, %d" % XTB)
        e("s_nop 0")
        e("buffer_load_dwordx4 %s, %s, 0 offen %s lds" % (vr(XT0), sr(SX, 4), opts.get('xtf', '')))
        e("s_add_u32 m0, s3, %d" % (XTB + 1024))
        e("s_nop 0")
        e("buffer_load_dwordx4 %s, %s, 0 offen %s lds" % (vr(XT1), sr(SX, 4), opts.get('xtf', '')))
    e("s_mul_i32 s3, s2, %d" % (CH * 16))
    NLATE = 0
    srd(SC_, 26, CH * 16, "s3")
    if not DF: srd(SOFS, 26, 256 * 8192, "0x%x" % WS_OFF)
    srd(SXI, 4, N_NODES, stride=128, sub="3072")
    if not DF: srd(SRC, 26, NC * CH, stride=16)
    PFX = opts.get('pfx', '')
    NPF = 0
    if PFX:
        e("v_lshlrev_b32 %s, 7, %s" % (vr(tA), vr(lane)))
    if 'c' in PFX or 'w' in PFX:
        e("s_cmp_lt_u32 s2, 248")
        e("s_cbranch_scc1 PF_SKIP")
        if 'c' in PFX:
            e("s_getpc_b64 s[96:97]")
            lab("PCREF")
            e("s_and_b32 s3, %s, 1" % sr(sW)); e("s_lshl_b32 s3, s3, 13")
            e("v_add_u32 %s, s3, %s" % (vr(tB), vr(tA)))
            e("v_min_u32 %s, K_END-PCREF, %s" % (vr(tB), vr(tB)))
            e("s_cmp_lt_u32 %s, 2" % sr(sW)); e("s_cselect_b64 exec, -1, 1")
            e("global_load_dword %s, %s, s[96:97]" % (vr(r.AT), vr(tB)))
        if 'w' in PFX:
            e("s_cmp_gt_u32 %s, 3" % sr(sW)); e("s_cselect_b64 exec, -1, 1")
            e("buffer_load_dword %s, %s, %s, 0 offen" % (vr(r.AT), vr(tA), sr(SA, 4)))
            e("s_mov_b64 exec, 15")
            e("buffer_load_dword %s, %s, %s, 0 offen" % (vr(r.AT), vr(tA), sr(SB, 4)))
        e("s_mov_b64 exec, -1")
        lab("PF_SKIP")
    if 'X' in PFX:
        xt_loads()
        NPF += 2
    if 'x' in PFX:
        e("s_mov_b64 exec, 0x01010101"); e("s_mov_b32 exec_hi, 0x01010101")
        e("buffer_load_dword %s, %s, %s, 0 offen" % (vr(r.AT), vr(XT0), sr(SX, 4)))
        e("buffer_load_dword %s, %s, %s, 0 offen" % (vr(r.AT), vr(XT1), sr(SX, 4)))
        e("s_mov_b64 exec, -1")
        NPF += 2
    if 's' in PFX:
        e("s_mov_b64 exec, 1")
        e("buffer_load_dword %s, %s, %s, 0 offen sc0 sc1" % (vr(r.AT), vr(T32B), sr(SC_, 4)))
        e("s_mov_b64 exec, -1")
        NPF += 1
    e("s_mov_b32 %s, 1024" % sr(sINC)); e("s_mov_b32 %s, 1024" % sr(sINC + 1))
    e("s_mov_b32 %s, 256" % sr(sINC2)); e("s_mov_b32 %s, 1024" % sr(sINC2 + 1))
    e("s_mov_b32 %s, 3072" % sr(sSO)); e("s_mov_b32 %s, 2048" % sr(sSO + 1)); e("s_mov_b32 %s, 1024" % sr(sSO + 2))
    e("s_mov_b32 %s, %d" % (sr(sLim), NC * CH))
    e("s_mov_b32 %s, 0xfff0ffff" % sr(sKm))
    e("s_mov_b32 %s, 0" % sr(sW0)); e("s_mov_b32 %s, 1" % sr(sFirst)); e("s_mov_b32 %s, %d" % (sr(sSpin), SPINMAX))
    e("v_mov_b32 %s, 0x%x" % (vr(tA), (1 << 4) | (2 << 8) | (1 << 14) | (2 << 18)))
    e("v_lshlrev_b32 %s, 1, %s" % (vr(tB), vr(lane)))
    e("v_bfe_u32 %s, %s, %s, 2" % (vr(tA), vr(tA), vr(tB)))
    e("v_mul_u32_u24 %s, 0x8001, %s" % (vr(tA), vr(tA)))
    e("v_and_b32 %s, 0x10001, %s" % (vr(tA), vr(tA)))
    e("v_mul_u32_u24 %s, 0x3f80, %s" % (vr(tA), vr(tA)))
    e("v_lshlrev_b32 %s, 2, %s" % (vr(tB), vr(lane)))
    e("s_mov_b64 exec, 0x3ff")
    e("ds_write_b32 %s, %s offset:%d" % (vr(tB), vr(tA), TS))
    e("s_mov_b64 exec, -1")
    e("v_and_b32 %s, 3, %s" % (vr(c0), vr(lane)))
    e("v_bfe_u32 %s, %s, 4, 1" % (vr(c1), vr(lane)))
    e("v_mul_u32_u24 %s, 0x5555, %s" % (vr(r.SI), vr(c1)))
    e("v_or_b32 %s, 0x8888, %s" % (vr(r.SI), vr(r.SI)))
    e("v_xor_b32 %s, %s, %s" % (vr(c2), vr(c0), vr(H)))
    e("v_lshl_or_b32 %s, %s, 2, %s" % (vr(c2), vr(c1), vr(c2)))
    e("v_lshlrev_b32 %s, 4, %s" % (vr(r.XI + 1), vr(c2)))
    e("v_mov_b32 %s, %s" % (vr(r.XI + 3), vr(r.XI + 1)))
    e("v_xor_b32 %s, 32, %s" % (vr(r.XI + 5), vr(r.XI + 1)))
    e("v_mov_b32 %s, %s" % (vr(r.XI + 7), vr(r.XI + 5)))
    e("v_bfe_u32 %s, %s, 3, 2" % (vr(c2), vr(lane)))
    e("v_xor_b32 %s, %s, %s" % (vr(c2), vr(c2), vr(H)))
    e("v_lshlrev_b32 %s, 4, %s" % (vr(r.XA0), vr(c2)))
    e("v_lshl_or_b32 %s, %s, 6, %s" % (vr(r.XA0), vr(c0), vr(r.XA0)))
    e("v_bfe_u32 %s, %s, 3, 1" % (vr(c2), vr(lane)))
    e("v_lshl_or_b32 %s, %s, 9, %s" % (vr(r.XA0), vr(c2), vr(r.XA0)))
    e("v_bfe_u32 %s, %s, 2, 1" % (vr(tA), vr(lane)))
    e("v_lshl_or_b32 %s, %s, 10, %s" % (vr(r.XA0), vr(tA), vr(r.XA0)))
    e("v_lshl_or_b32 %s, %s, 11, %s" % (vr(r.XA0), vr(c1), vr(r.XA0)))
    e("v_xor_b32 %s, 32, %s" % (vr(r.XA1), vr(r.XA0)))
    e("v_add_u32 %s, %s, %s" % (vr(r.XA0), sr(sXB), vr(r.XA0)))
    e("v_add_u32 %s, %s, %s" % (vr(r.XA1), sr(sXB), vr(r.XA1)))
    FA, FU = r.SO + 2, r.SO + 3
    e("v_lshl_or_b32 %s, %s, 1, %s" % (vr(c2), vr(tA), vr(c2)))
    e("v_lshl_or_b32 %s, %s, 1, %s" % (vr(c2), vr(c2), vr(c1)))
    e("v_mad_u32_u24 %s, %s, 3, %s" % (vr(c2), vr(c2), vr(c0)))
    e("v_add_u32 %s, 9, %s" % (vr(c2), vr(c2)))
    e("v_and_b32 %s, 15, %s" % (vr(c2), vr(c2)))
    for dst, src in ((FA, c2), (FU, None)):
        if src is None:
            e("v_and_b32 %s, 15, %s" % (vr(c2), vr(lane)))
        e("v_xor_b32 %s, %s, %s" % (vr(tA), vr(c2), vr(H)))
        e("v_and_b32 %s, 7, %s" % (vr(tA), vr(tA)))
        e("v_lshlrev_b32 %s, 4, %s" % (vr(tA), vr(tA)))
        e("v_lshl_or_b32 %s, %s, 7, %s" % (vr(dst), vr(c2), vr(tA)))
    e("v_lshlrev_b32 %s, 4, %s" % (vr(tA), vr(H)))
    e("v_mov_b32 %s, 0x3f80" % vr(tB))
    e("v_lshlrev_b32 %s, %s, %s" % (vr(r.T + 1), vr(tA), vr(tB)))
    e("v_mov_b32 %s, %s" % (vr(r.T + 2), vr(r.T + 1)))
    e("v_mov_b32 %s, %s" % (vr(r.T + 3), vr(r.T + 1)))
    e("s_lshl_b32 s3, %s, 2" % sr(sW))
    e("v_mov_b32 %s, s3" % vr(tE))
    e("v_and_b32 %s, 7, %s" % (vr(tF), vr(lane)))
    e("v_lshlrev_b32 %s, 2, %s" % (vr(tF), vr(tF)))
    e("s_waitcnt lgkmcnt(0)")
    e("s_barrier")
    if DF == 1: rest_loads()
    if DF == 2:
        for _ in range(NE2): e(RL.pop(0))
    e("s_waitcnt vmcnt(%d)" % (1 + NE + NE2 + NPF if DF == 2 else 7 + NPF))
    stamp("dst")
    mark(6)
    for rd in range(2):
        e("s_mov_b64 exec, s[%d:%d]" % (92 + 2 * rd, 93 + 2 * rd))
        e("s_cbranch_execz P1_A")
        for i in range(4 * rd, 4 * rd + 4):
            e("v_mul_u32_u24 %s, %d, %s" % (vr(HA + i), TMUL, vr(DST + i)))
            e("v_lshrrev_b32 %s, 14, %s" % (vr(HA + i), vr(HA + i)))
            e("v_and_b32 %s, 0x1ffc, %s" % (vr(HA + i), vr(HA + i)))
        for i in range(4 * rd, 4 * rd + 4):
            e("ds_add_rtn_u32 %s, %s, %s offset:%d" % (vr(RK + i), vr(HA + i), vr(ONE), HIST))
    lab("P1_A")
    e("s_mov_b64 exec, -1")
    if DF == 2: rest_loads()
    key = []
    for i in range(8):
        d = DST + i
        key += ["v_and_b32 %s, 15, %s" % (vr(d), vr(d)),
                "v_mul_u32_u24 %s, 11, %s" % (vr(c0), vr(d)),
                "v_lshrrev_b32 %s, 5, %s" % (vr(c0), vr(c0)),
                "v_mad_i32_i24 %s, %s, -3, %s" % (vr(c1), vr(c0), vr(d)),
                "v_add_u32 %s, 1, %s" % (vr(c1), vr(c1)),
                "v_lshl_add_u32 %s, %s, 1, 4" % (vr(c0), vr(c0)),
                "v_lshl_or_b32 %s, %s, %s, %s" % (vr(d), vr(c1), vr(c0), vr(d))]
    for _ in range(21): e(key.pop(0))
    e("s_waitcnt lgkmcnt(0)")
    e("s_barrier")
    stamp("hist")
    e("ds_read_b128 %s, %s offset:%d" % (vr(CN, 4), vr(T16), HIST))
    for _ in range(7): e(key.pop(0))
    e("s_waitcnt lgkmcnt(0)")
    e("v_add_u32 %s, %s, %s" % (vr(ST + 2), vr(CN), vr(CN + 1)))
    e("v_add_u32 %s, %s, %s" % (vr(ST + 3), vr(ST + 2), vr(CN + 2)))
    e("v_add_u32 %s, %s, %s" % (vr(tA), vr(ST + 3), vr(CN + 3)))
    e("v_mov_b32 %s, %s" % (vr(tB), vr(tA)))
    scan64("v_add_u32", tB, [key.pop(0) for _ in range(12)])
    e("s_mov_b32 exec_lo, 0"); e("s_mov_b32 exec_hi, 0x80000000")
    e("ds_write_b32 %s, %s offset:%d" % (vr(tE), vr(tB), WTOT))
    e("s_mov_b64 exec, -1")
    e("s_waitcnt vmcnt(%d)" % (6 + NLATE + NPF))
    e("v_readfirstlane_b32 %s, %s" % (sr(sTag), vr(EP)))
    e("v_readfirstlane_b32 %s, %s" % (sr(sE2), vr(EP + 1)))
    e(key.pop(0)); e(key.pop(0))
    e("s_add_u32 %s, %s, 1" % (sr(sTag), sr(sTag)))
    e("s_add_u32 %s, %s, 0x10000" % (sr(sE2), sr(sE2)))
    e("s_and_b32 %s, %s, 0xffff0000" % (sr(sTagH), sr(sE2)))
    e("s_waitcnt lgkmcnt(0)")
    e("s_barrier")
    e("ds_read_b32 %s, %s offset:%d" % (vr(tC), vr(tF), WTOT))
    for _ in range(7): e(key.pop(0))
    e("v_mov_b32 %s, %s" % (vr(PC_ + 3), sr(sTag)))
    e("s_waitcnt lgkmcnt(0)")
    e("v_mov_b32 %s, %s" % (vr(tD), vr(tC)))
    for sh in (1, 2, 4):
        e(key.pop(0)); e(key.pop(0))
        e("v_add_u32_dpp %s, %s, %s row_shr:%d row_mask:0xf bank_mask:0xf" % (vr(tD), vr(tD), vr(tD), sh))
    e("v_sub_u32 %s, %s, %s" % (vr(tD), vr(tD), vr(tC)))
    e(key.pop(0))
    assert not key
    e("v_readlane_b32 s3, %s, %s" % (vr(tD), sr(sW)))
    e("s_lshl_b32 s91, s2, 13")
    e("s_nop 0")
    e("v_add_u32 %s, s3, %s" % (vr(tB), vr(tB)))
    e("v_sub_u32 %s, %s, %s" % (vr(ST), vr(tB), vr(tA)))
    e("v_add_u32 %s, %s, %s" % (vr(ST + 1), vr(ST), vr(CN)))
    e("v_add_u32 %s, %s, %s" % (vr(ST + 2), vr(ST), vr(ST + 2)))
    e("v_add_u32 %s, %s, %s" % (vr(ST + 3), vr(ST), vr(ST + 3)))
    e("v_lshl_or_b32 %s, %s, 16, %s" % (vr(PC_), vr(ST + 1), vr(ST)))
    e("v_lshl_or_b32 %s, %s, 16, %s" % (vr(PC_ + 1), vr(ST + 3), vr(ST + 2)))
    e("v_or_b32 %s, %s, %s" % (vr(PC_ + 2), sr(sTagH), vr(tB)))
    PUB = int(opts.get('pub', 0))
    pub = "buffer_store_dwordx4 %s, %s, %s, s91 offen %s" % (vr(PC_, 4), vr(T16), sr(SOFS, 4), STF)
    if PUB == 0: e(pub)
    for i in range(4): e("v_lshlrev_b32 %s, 4, %s" % (vr(ST + i), vr(ST + i)))
    e("ds_write_b128 %s, %s offset:%d" % (vr(T16), vr(ST, 4), HIST))
    e("s_mov_b32 s3, 0xffff")
    e("s_waitcnt lgkmcnt(0)")
    e("s_barrier")
    stamp("scan")
    mark(5)
    for i in range(8):
        e("ds_read_b32 %s, %s offset:%d" % (vr(HA + i), vr(HA + i), HIST))
    e("s_waitcnt vmcnt(%d)" % (NLATE + (PUB == 0)))
    stamp("inputs")
    mark(9)
    def assemble(rd):
        for k in range(2 * rd, 2 * rd + 2):
            e("v_mov_b32 %s, %s" % (vr(EA + 8 * k + 4), vr(EA + 8 * k + 2)))
            e("v_mov_b32 %s, %s" % (vr(EA + 8 * k + 5), vr(EA + 8 * k + 3)))
        for i in range(4 * rd, 4 * rd + 4):
            e("v_xor_b32 %s, s3, %s" % (vr(SRCV + i), vr(SRCV + i)))
            e("v_lshl_or_b32 %s, %s, 16, %s" % (vr(EA + 4 * i + 2), vr(DST + i), vr(SRCV + i)))
            e("v_mov_b32 %s, %s" % (vr(EA + 4 * i + 3), sr(sTag)))
    for rd in range(2):
        e("s_mov_b64 exec, s[%d:%d]" % (92 + 2 * rd, 93 + 2 * rd))
        e("s_cbranch_execz P1_B")
        assemble(rd)
        e("s_waitcnt lgkmcnt(4)")
        for i in range(4 * rd, 4 * rd + 4):
            e("v_lshl_add_u32 %s, %s, 4, %s" % (vr(HA + i), vr(RK + i), vr(HA + i)))
        for i in range(4 * rd, 4 * rd + 4):
            e("ds_write_b128 %s, %s offset:%d" % (vr(HA + i), vr(EA + 4 * i, 4), RECB))
    lab("P1_B")
    e("s_mov_b64 exec, -1")
    if PUB == 2: e(pub)
    late_loads()
    PA = tA; PW_ = tB; PC2 = ST
    e("v_bfe_u32 %s, %s, 1, 7" % (vr(tC), vr(TID)))
    e("v_and_b32 %s, 1, %s" % (vr(tD), vr(TID)))
    e("v_lshlrev_b32 %s, 13, %s" % (vr(PA), vr(tC)))
    e("v_lshl_or_b32 %s, %s, 4, %s" % (vr(PA), vr(tD), vr(PA)))
    e("s_lshl_b32 s97, %s, 5" % sr(sBin))
    e("s_add_u32 s96, s97, 0x100000")
    poll = ["buffer_load_dwordx4 %s, %s, %s, s97 offen %s" % (vr(PC_, 4), vr(PA), sr(SOFS, 4), PLF),
            "buffer_load_dwordx4 %s, %s, %s, s96 offen %s" % (vr(PC2, 4), vr(PA), sr(SOFS, 4), PLF)]
    e("v_lshlrev_b32 %s, 12, %s" % (vr(PW_), vr(tD)))
    e("v_lshl_or_b32 %s, %s, 2, %s" % (vr(PW_), vr(tC), vr(PW_)))
    e("v_add_u32 %s, %d, %s" % (vr(PW_), PCB, vr(PW_)))
    e("v_add_u32 %s, %d, %s" % (vr(c2), XBB + 4096, vr(L16)))
    WL = r.WB; WH = r.WB + 16; WP = r.WV
    e("s_mov_b32 s92, 0x%x" % NEGLOG2E)
    EN = r.G[1]; Z = r.V[1]; P = r.V[1] + 4; D = r.V[1] + 8
    LA, CB, PREV, JB = [r.V[1] + 12 + i for i in range(4)]
    TOT, INC, C512, W4 = r.PS, r.PC, r.PT, r.PE
    M = r.S
    def expand_pre():
        for i in range(4): e("v_mov_b32 %s, 0" % vr(Z + i))
        e("v_lshl_add_u32 %s, %s, 5, %s" % (vr(LA), vr(lane), sr(sREC)))
        e("v_mul_u32_u24 %s, %d, %s" % (vr(CB), 4 * CH, vr(lane)))
        e("v_subrev_u32 %s, %s, %s" % (vr(CB), sr(sW0), vr(CB)))
        e("v_lshl_add_u32 %s, %s, 3, %s" % (vr(JB), vr(lane), sr(sW0)))
        e("v_mov_b32 %s, 512" % vr(C512))
        e("v_mov_b32 %s, 0" % vr(PREV))
        e("v_lshl_add_u32 %s, %s, 2, %s" % (vr(r.PL), vr(lane), sr(sREC)))
        e("s_lshl_b32 s3, %s, 2" % sr(sW))
        e("v_mov_b32 %s, s3" % vr(W4))
    def zero_list():
        e("ds_write_b128 %s, %s offset:%d" % (vr(LA), vr(Z, 4), LOFF))
        e("ds_write_b128 %s, %s offset:%d" % (vr(LA), vr(Z, 4), LOFF + 16))
    expand_pre()
    e("s_lshl_b32 s3, %s, 10" % sr(sW)); e("s_add_u32 s3, s3, %d" % PCB)
    e("v_add_u32 %s, s3, %s" % (vr(r.RI), vr(L16)))
    e("s_waitcnt lgkmcnt(0)")
    e("s_barrier")
    stamp("scatter")
    mark(7)
    if PUB == 1: e(pub)
    e("s_cmp_gt_u32 %s, 3" % sr(sW))
    e("s_cbranch_scc1 P1_D")
    e("s_cmp_ge_u32 s2, %d" % NC)
    e("s_cbranch_scc1 P1_N")
    if DELAY:
        e("s_and_b32 s3, s2, 15"); e("s_cmp_lg_u32 s3, 5"); e("s_cbranch_scc1 P1_ND")
        for _ in range(DELAY): e("s_sleep 100")
        lab("P1_ND")
    CO = DST
    for k in range(13):
        e("ds_read_b128 %s, %s offset:%d" % (vr(CO + 4 * k, 4), vr(T16), RECB + 4096 * k))
    e("v_add_u32 %s, 49152, %s" % (vr(T32), vr(T16)))
    for k in range(13):
        if k < 12: e("s_mov_b32 s3, %d" % (4096 * k))
        e("s_waitcnt lgkmcnt(%d)" % (12 - k))
        if k < 12: e("buffer_store_dwordx4 %s, %s, %s, s3 offen %s" % (vr(CO + 4 * k, 4), vr(T16), sr(SC_, 4), STF))
        else: e("buffer_store_dwordx4 %s, %s, %s, 0 offen %s" % (vr(CO + 4 * k, 4), vr(T32), sr(SC_, 4), STF))
    e("s_waitcnt vmcnt(13)")
    e("s_branch POLL_DONE")
    lab("P1_N")
    e("s_waitcnt vmcnt(0)")
    e("s_branch POLL_DONE")
    lab("P1_D")
    if int(opts.get('early', 1)):
        for t in poll: e(t)
    e("v_lshl_add_u32 %s, %s, 10, %s" % (vr(tC), vr(H), vr(J4)))
    e("s_add_u32 s3, s93, %d" % XBB)
    e("v_add_u32 %s, s3, %s" % (vr(tC), vr(tC)))
    e("s_waitcnt vmcnt(%d)" % ((8 if int(opts.get('early', 1)) else 6) + (PUB == 1) + XPF - 2 * ('X' in PFX)))
    mark(12)
    RAW = DST
    for i in range(32):
        e("ds_read_b32 %s, %s offset:%d" % (vr(RAW + i), vr(tC), (i >> 4) * 8192 + ((i >> 3) & 1) * 2048 + (i & 7) * 128))
    e("s_bitcmp0_b32 %s, 0" % sr(sW))
    e("s_cselect_b32 s3, s92, 1.0")
    e("v_add_u32 %s, s93, %s" % (vr(tC), vr(c2)))
    for hf in range(2):
        e("s_waitcnt lgkmcnt(%d)" % (15 if hf == 0 else 4))
        if hf == 0: e("s_nop 0")
        for i in range(16):
            e("v_lshlrev_b32 %s, 16, %s" % (vr(WL + i), vr(RAW + 16 * hf + i)))
            e("v_and_b32 %s, 0xffff0000, %s" % (vr(WH + i), vr(RAW + 16 * hf + i)))
        for i in range(0, 32, 2):
            e("v_pk_mul_f32 %s, %s, s[2:3] op_sel:[0,1] op_sel_hi:[1,1]" % (vr(WL + i, 2), vr(WL + i, 2)))
        for i in range(16):
            e("v_cvt_pk_bf16_f32 %s, %s, %s" % (vr(WP + 16 * hf + i), vr(WL + 2 * i), vr(WL + 2 * i + 1)))
        for f in range(2):
            for s_ in range(2):
                e("ds_write_b128 %s, %s offset:%d" % (vr(tC), vr(WP + 16 * hf + 8 * f + 4 * s_, 4), f * 8192 + (2 * hf + s_) * 1024))
    if not int(opts.get('early', 1)):
        for t in poll: e(t)
    mark(13)
    lab("POLL")
    e("s_waitcnt vmcnt(0)")
    e("v_xor_b32 %s, %s, %s" % (vr(c0), sr(sTagH), vr(PC_ + 2)))
    e("v_xor_b32 %s, %s, %s" % (vr(c1), sr(sTagH), vr(PC2 + 2)))
    e("v_or_b32 %s, %s, %s" % (vr(c0), vr(c0), vr(c1)))
    e("v_lshrrev_b32 %s, 16, %s" % (vr(c0), vr(c0)))
    e("v_xor_b32 %s, %s, %s" % (vr(c1), sr(sTag), vr(PC_ + 3)))
    e("v_xor_b32 %s, %s, %s" % (vr(tD), sr(sTag), vr(PC2 + 3)))
    e("v_or3_b32 %s, %s, %s, %s" % (vr(c0), vr(c0), vr(c1), vr(tD)))
    e("v_cmp_ne_u32 vcc, 0, %s" % vr(c0))
    e("s_cmp_eq_u64 vcc, 0")
    e("s_cbranch_scc1 POLL_OK")
    e("s_mov_b64 exec, vcc")
    for t in poll: e(t)
    e("s_sub_u32 %s, %s, 1" % (sr(sSpin), sr(sSpin)))
    e("s_cbranch_scc0 POLL")
    e("s_endpgm")
    lab("POLL_OK")
    e("s_mov_b64 exec, -1")
    for pc in (PC_, PC2):
        e("v_alignbit_b32 %s, %s, %s, 16" % (vr(pc + 3), vr(pc + 1), vr(pc)))
        e("v_alignbit_b32 %s, %s, %s, 16" % (vr(pc + 2), vr(pc + 2), vr(pc + 1)))
    for pc, off in ((PC_, 0), (PC2, 512)):
        for k, v in enumerate([pc, pc + 3, pc + 1, pc + 2]):
            e("ds_write_b32 %s, %s offset:%d" % (vr(PW_), vr(v), k * 1024 + off))
    lab("POLL_DONE")
    stamp("role")
    mark(10, 11)
    e("s_waitcnt lgkmcnt(0)")
    e("s_barrier")
    stamp("offs")
    mark(4)
    wr = []
    WA = r.G[0]; WU = r.G[1]
    for m, base in enumerate([WA, WU, r.WB, r.WV]):
        for u in range(8):
            uu = m * 8 + u
            wr.append("ds_read_b128 %s, %s offset:%d" % (vr(base + 4 * u, 4), vr(c2), (uu >> 2) * 8192 + (uu & 3) * 1024))
    e("ds_read_b128 %s, %s" % (vr(EN, 4), vr(r.RI)))
    zero_list()
    for t in wr[16:24]: e(t)
    e("s_or_b32 s3, s2, %s" % sr(sW))
    e("s_cbranch_scc1 NOBUMP")
    e("v_mov_b32 %s, %s" % (vr(r.RD), sr(sTag))); e("v_mov_b32 %s, %s" % (vr(r.RD + 1), sr(sE2)))
    e("v_lshlrev_b32 %s, 3, %s" % (vr(c1), vr(lane)))
    e("buffer_store_dwordx2 %s, %s, %s, 0 offen sc0 sc1" % (vr(r.RD, 2), vr(c1), sr(SOUT, 4)))
    lab("NOBUMP")
    e("s_waitcnt lgkmcnt(10)")

    def xidx(g, t): return "ds_read_u16 %s, %s offset:%d" % (vr(r.XI + 2 * t), vr(r.PS), g * 512 + SOFF[t] + 8)
    def xm0(buf): return "s_add_u32 m0, %s, %d" % (sr(sXB), buf * 4096)
    def xdma(t): return "buffer_load_dwordx4 %s, %s, %s idxen offen offset:%d lds" % (vr(r.XI + 2 * t, 2), sr(SXI, 4), sr(sSO + t) if t < 3 else "0", t * 1024)
    def xread(buf, k): return "ds_read_b128 %s, %s offset:%d" % (vr(r.X + 4 * k, 4), vr(r.XA1 if k & 1 else r.XA0), buf * 4096 + (k >> 1) * 256)
    def t0read(g): return "ds_read_b32 %s, %s offset:%d" % (vr(r.T), vr(r.PE), g * 512)
    def tiread(g): return "ds_read_b32 %s, %s offset:%d" % (vr(r.TI), vr(r.PT), g * 512 + 8)
    def soread(g, t): return "ds_read_u8 %s, %s offset:%d" % (vr(r.SO + t), vr(r.PC), g * 512 + SOFF[t] + 12)
    def trread(t): return "ds_read_b64_tr_b16 %s, %s offset:%d" % (vr(r.S + 2 * t, 2), vr(r.SO + t), TS)
    def riread(blk, ri=None): return "ds_read_b32 %s, %s offset:%d" % (vr(r.RI if ri is None else ri), vr(r.PL), LOFF + blk * 256)
    def rload(rd, ri, fl=None): return "buffer_load_dwordx4 %s, %s, %s, 0 idxen %s" % (vr(rd, 4), vr(ri), sr(SRC, 4), RLF if fl is None else fl)
    retries = []
    def fixup(rd, ri, blk, name, tmp0, tmp1, kx):
        retries.append((name, rd, ri))
        return ["v_cmp_gt_u32 vcc, %s, %s" % (sr(sLim), vr(ri)),
                "s_mov_b64 exec, vcc",
                name + ":",
                "v_cmp_ne_u32 vcc, %s, %s" % (sr(sTag), vr(rd + 3)),
                "v_bfe_u32 %s, %s, 16, 2" % (vr(tmp0), vr(rd + 2)),
                "v_lshrrev_b32 %s, 15, %s" % (vr(tmp1), vr(rd + 2)),
                "v_add_u32 %s, 1, %s" % (vr(tmp0), vr(tmp0)),
                "v_and_or_b32 %s, %s, 24, 3" % (vr(tmp1), vr(tmp1)),
                "s_cmp_lg_u64 vcc, 0",
                "v_lshlrev_b32 %s, %s, %s" % (vr(rd + 3), vr(tmp1), vr(tmp0)),
                "s_cbranch_scc1 %s_R" % name,
                "s_mov_b64 exec, -1",
                "v_bitop3_b32 %s, %s, %s, %s bitop3:0x6a" % (vr(rd + 2), vr(rd + 2), sr(sKm), vr(kx)),
                "ds_write_b128 %s, %s offset:%d" % (vr(r.PW), vr(rd, 4), blk * 1024)]
    def emit(lst):
        for t in lst:
            if t.endswith(":"): L.append(t)
            else: e(t)
    KX = c2 + 0

    lab("EXPAND")
    sd2 = "dst_sel:DWORD dst_unused:UNUSED_PAD src0_sel:WORD_1 src1_sel:WORD_0"
    sd = "dst_sel:DWORD dst_unused:UNUSED_PAD src0_sel:WORD_0 src1_sel:DWORD"
    for i in range(3): e("v_sub_u32_sdwa %s, %s, %s %s" % (vr(P + 1 + i), vr(EN + i), vr(EN + i), sd2))
    e("v_sub_u32_sdwa %s, %s, %s %s" % (vr(INC), vr(EN + 3), vr(EN + 3), sd2))
    e("v_add_u32 %s, %s, %s" % (vr(P + 2), vr(P + 1), vr(P + 2)))
    e("v_add_u32 %s, %s, %s" % (vr(P + 3), vr(P + 2), vr(P + 3)))
    e("v_add_u32 %s, %s, %s" % (vr(INC), vr(P + 3), vr(INC)))
    fill = ["v_add_u32 %s, %s, %s" % (vr(TOT), sr(sW0), vr(INC))]
    fill += ["v_add_u32_sdwa %s, %s, %s %s" % (vr(D + i), vr(EN + i), vr(CB), sd) for i in range(4)]
    fill += ["v_add_u32 %s, %d, %s" % (vr(D + i), i * CH, vr(D + i)) for i in range(1, 4)]
    fill += ["v_sub_u32 %s, %s, %s" % (vr(P + i), vr(P + i), vr(TOT)) for i in range(1, 4)]
    scan64("v_add_u32", INC, fill)
    e("v_sub_u32 %s, %s, %s" % (vr(P), vr(INC), vr(TOT)))
    e("v_readlane_b32 %s, %s, 63" % (sr(sTot), vr(INC)))
    for i in range(1, 4):
        e("v_add_u32 %s, %s, %s" % (vr(P + i), vr(INC), vr(P + i)))
    for i in range(4):
        e("v_sub_u32 %s, %s, %s" % (vr(D + i), vr(D + i), vr(P + i)))
        e("v_med3_i32 %s, %s, 0, %s" % (vr(P + i), vr(P + i), vr(C512)))
        e("v_lshl_add_u32 %s, %s, 2, %s" % (vr(P + i), vr(P + i), sr(sREC)))
    for i in range(4):
        e("ds_max_u32 %s, %s offset:%d" % (vr(P + i), vr(D + i), LOFF))
    e("ds_read_b128 %s, %s offset:%d" % (vr(M, 4), vr(LA), LOFF))
    e("ds_read_b128 %s, %s offset:%d" % (vr(M + 4, 4), vr(LA), LOFF + 16))
    e("s_lshl_b32 s3, %s, 3" % sr(sTot)); e("s_or_b32 s3, s3, %s" % sr(sW))
    e("v_mov_b32 %s, s3" % vr(TOT))
    e("s_mov_b64 exec, 1")
    e("ds_write_b32 %s, %s offset:%d" % (vr(W4), vr(TOT), TOTA))
    e("s_mov_b64 exec, -1")
    e("s_cmp_eq_u32 %s, 0" % sr(sFirst))
    e("s_cbranch_scc1 EXP_B")
    for t in wr[24:32]: e(t)
    e("s_waitcnt lgkmcnt(9)")
    e("s_branch EXP_C")
    lab("EXP_B")
    e("s_waitcnt lgkmcnt(1)")
    lab("EXP_C")
    e("v_max3_u32 %s, %s, %s, %s" % (vr(INC), vr(M), vr(M + 1), vr(M + 2)))
    e("v_max3_u32 %s, %s, %s, %s" % (vr(INC), vr(INC), vr(M + 3), vr(M + 4)))
    e("v_max3_u32 %s, %s, %s, %s" % (vr(INC), vr(INC), vr(M + 5), vr(M + 6)))
    e("v_max_u32 %s, %s, %s" % (vr(INC), vr(INC), vr(M + 7)))
    scan64("v_max_u32", INC, ["v_max_u32 %s, %s, %s" % (vr(M + k), vr(M + k - 1), vr(M + k)) for k in range(1, 8)])
    e("s_nop 1")
    e("v_mov_b32_dpp %s, %s wave_shr:1 row_mask:0xf bank_mask:0xf" % (vr(PREV), vr(INC)))
    for k in range(8):
        e("v_max_u32 %s, %s, %s" % (vr(M + k), vr(PREV), vr(M + k)))
        e("v_add3_u32 %s, %s, %s, %d" % (vr(M + k), vr(M + k), vr(JB), k))
    e("ds_write_b128 %s, %s offset:%d" % (vr(LA), vr(M, 4), LOFF))
    e("ds_write_b128 %s, %s offset:%d" % (vr(LA), vr(M + 4, 4), LOFF + 16))
    RI1 = r.TI; RD1 = r.S; F0 = r.XI; F1 = r.XI + 2
    e("v_lshrrev_b32 %s, 3, %s" % (vr(c0), vr(lane)))
    e("v_lshlrev_b32 %s, 2, %s" % (vr(c0), vr(c0)))
    e("v_and_b32 %s, 7, %s" % (vr(c1), vr(lane)))
    e("v_lshlrev_b32 %s, 3, %s" % (vr(r.XI + 4), vr(c1)))
    e("v_lshlrev_b32 %s, 2, %s" % (vr(c1), vr(c1)))
    e("s_sub_u32 s3, 7, %s" % sr(sW)); e("s_sub_u32 s97, %s, 4" % sr(sW))
    e("s_cmp_lt_u32 %s, 4" % sr(sW)); e("s_cselect_b32 s97, s3, s97")
    e("s_waitcnt lgkmcnt(0)")
    for i in range(4): e("v_mov_b32 %s, 0" % vr(r.S + 4 + i))
    def pointers():
        e("v_bfe_u32 %s, %s, 2, 2" % (vr(c0), vr(lane)))
        e("v_lshrrev_b32 %s, 5, %s" % (vr(c1), vr(lane)))
        e("v_lshl_or_b32 %s, %s, 3, %s" % (vr(c0), vr(c1), vr(c0)))
        e("v_lshl_add_u32 %s, %s, 4, %s" % (vr(r.PS), vr(c0), sr(sREC)))
        e("v_and_b32 %s, 3, %s" % (vr(c0), vr(lane)))
        e("v_add_u32 %s, %s, %s" % (vr(r.PC), vr(c0), vr(r.PS)))
        e("v_and_b32 %s, 31, %s" % (vr(c0), vr(lane)))
        e("v_lshl_add_u32 %s, %s, 4, %s" % (vr(r.PT), vr(c0), sr(sREC)))
        e("v_lshl_add_u32 %s, %s, 2, %s" % (vr(r.PE), vr(c1), vr(r.PT)))
        e("v_lshl_add_u32 %s, %s, 4, %s" % (vr(r.PW), vr(lane), sr(sREC)))
        e("v_mov_b32 %s, 0x4ffff" % vr(KX))
        e("s_min_u32 %s, %s, %s" % (sr(sTot), sr(sTot), sr(sLim)))
        e("s_sub_u32 s3, %s, %s" % (sr(sTot), sr(sW0)))
        e("s_min_u32 s3, s3, 512")
        e("s_add_u32 s3, s3, 31"); e("s_lshr_b32 s3, s3, 5")
        e("s_max_u32 s3, s3, 1")
        e("s_sub_u32 %s, s3, 1" % sr(sNG))
        e("s_mov_b32 %s, 2" % sr(sBLK))
    e("s_cmp_eq_u32 %s, 0" % sr(sFirst))
    e("s_cbranch_scc1 LATER")
    stamp("expand")
    e("s_barrier")
    e("ds_read_b32 %s, %s offset:%d" % (vr(c0), vr(c0), TOTA))
    e("ds_read_b32 %s, %s offset:%d" % (vr(c1), vr(c1), TOTA))
    for s in wr[8:12]: e(s)
    e("s_waitcnt lgkmcnt(4)")
    e("v_cmp_lt_u32 vcc, %s, %s" % (vr(c1), vr(c0)))
    e(wr[12]); e(wr[13])
    e("v_lshrrev_b64 %s, %s, vcc" % (vr(r.SO, 2), vr(r.XI + 4)))
    e("v_and_b32 %s, 0xff, %s" % (vr(r.SO), vr(r.SO)))
    e("v_bcnt_u32_b32 %s, %s, 0" % (vr(r.SO), vr(r.SO)))
    e("v_cmp_eq_u32 vcc, s97, %s" % vr(r.SO))
    e("s_ff1_i32_b64 s97, vcc")
    e("v_readlane_b32 %s, %s, s97" % (sr(sTot), vr(c1)))
    e("s_lshl_b32 %s, s97, 11" % sr(sXT)); e("s_add_u32 %s, %s, %d" % (sr(sXT), sr(sXT), XTB))
    e("s_lshl_b32 %s, s97, 13" % sr(sREC)); e("s_add_u32 %s, %s, %d" % (sr(sREC), sr(sREC), RECB))
    e("v_lshl_add_u32 %s, %s, 2, %s" % (vr(r.PL), vr(lane), sr(sREC)))
    e(riread(0)); e(riread(1, RI1))
    def xtile(mapreg, dst):
        e("v_add_u32 %s, %s, %s" % (vr(mapreg), sr(sXT), vr(mapreg)))
        tm = [mapreg, c0, c1, r.SO]
        for s in range(1, 4): e("v_xor_b32 %s, %d, %s" % (vr(tm[s]), 32 * s, vr(mapreg)))
        for s in range(4): e("ds_read_b128 %s, %s" % (vr(dst + 4 * s, 4), vr(tm[s])))
    NU = int(opts.get('nu', 8))
    xtile(FU, r.AT)
    e("s_waitcnt lgkmcnt(4)")
    e(rload(r.RD, r.RI, RL0)); e(rload(RD1, RI1, RL0))
    e(wr[14]); e(wr[15])
    xtile(FA, r.X)
    for s in wr[0:8]: e(s)
    WT = r.ACC[0]
    for i in range(4):
        e("v_lshlrev_b32 %s, 16, %s" % (vr(WT + i), vr(WCR + i)))
        e("v_and_b32 %s, 0xffff0000, %s" % (vr(WT + 4 + i), vr(WCR + i)))
    for i in range(8):
        e("v_mul_f32 %s, s92, %s" % (vr(WT + i), vr(WT + i)))
    for i in range(4):
        e("v_cvt_pk_bf16_f32 %s, %s, %s" % (vr(WCR + i), vr(WT + 2 * i), vr(WT + 2 * i + 1)))
    e("s_lshr_b32 %s, %s, 3" % (sr(sTot), sr(sTot)))
    e("s_lshl_b32 %s, %s, 3" % (sr(sT), sr(sBin))); e("s_add_u32 %s, %s, s97" % (sr(sT), sr(sT)))
    ua = []
    for f in range(2):
        for s in range(4):
            ua.append(mfma(r.ACC[f], r.AT + 4 * s, WU + 16 * f + 4 * s, None if s == 0 else r.ACC[f]))
    for f in range(2):
        for s in range(4):
            ua.append(mfma(WU + 16 * f, r.X + 4 * s, WA + 16 * f + 4 * s, None if s == 0 else WU + 16 * f))
    n0 = len(L)
    pointers()
    tile_range()
    e("s_min_u32 %s, %s, %d" % (sr(sEnd), sr(sEnd), N_NODES))
    e("s_sub_u32 s3, %s, %s" % (sr(sEnd), sr(sStart))); e("s_lshl_b32 s3, s3, 7")
    e("s_lshl_b32 s97, %s, 7" % sr(sStart))
    srd(SOUT, 22, "s3", "s97")
    misc = L[n0:]; del L[n0:]
    e("s_waitcnt lgkmcnt(12)")
    for k in range(NU):
        if k == 8: e("s_waitcnt lgkmcnt(0)")
        e(ua[k])
        for _ in range(5):
            if misc: L.append(misc.pop(0))
    L.extend(misc)
    e("s_waitcnt lgkmcnt(0)")
    e("s_barrier")
    lab("NOW")
    e("s_mov_b32 m0, %s" % sr(sXB))
    e("s_waitcnt vmcnt(1)")
    emit(fixup(r.RD, r.RI, 0, "FX0", c0, c1, KX))
    for t in range(4): e(xidx(0, t))
    e(riread(2))
    stamp("rec")
    mark(8)
    e("s_waitcnt lgkmcnt(1)")
    for t in range(4): e(xdma(t))
    for t in range(4): e(xidx(1, t))
    e("s_cmp_eq_u32 %s, 0" % sr(sFirst))
    e("s_cbranch_scc1 NOW2")
    for t in ua[NU:]: e(t)
    lab("NOW2")
    e("s_waitcnt vmcnt(4)")
    emit(fixup(RD1, RI1, 1, "FX1", c0, c1, KX))
    e(t0read(0)); e(tiread(0))
    e(xm0(1))
    X1L = int(opts.get('x1l', 0))
    def x1():
        for t in range(4): e(xdma(t))
        e(rload(r.RD, r.RI, RL2))
        for t in range(4): e(xidx(2, t))
    e("s_cmp_eq_u32 %s, 0" % sr(sFirst))
    e("s_cbranch_scc1 NOW3")
    for i in range(8):
        e("v_cvt_pk_bf16_f32 %s, %s, %s" % (vr(r.U + i), vr(r.ACC[0] + i), vr(r.ACC[1] + i)))
    e(mfma(r.ACC[0], r.S + 4, r.S + 4, None)); e(mfma(r.ACC[1], r.S + 4, r.S + 4, None))
    for f in range(2):
        for i in range(8):
            e("v_cvt_pk_bf16_f32 %s, %s, %s" % (vr(r.AT + 8 * f + i), vr(WU + 16 * f + 2 * i) if i & 1 else "0", vr(WU + 16 * f + 2 * i + 1)))
    e("s_mov_b32 exec_hi, 0")
    for f in range(2):
        e("v_mov_b32 %s, %s" % (vr(r.AT + 8 * f), vr(WCR + 2 * f)))
        e("v_mov_b32 %s, %s" % (vr(r.AT + 8 * f + 4), vr(WCR + 2 * f + 1)))
    e("s_mov_b64 exec, -1")
    lab("NOW3")
    e("s_waitcnt lgkmcnt(2)")
    if not X1L: x1()
    stamp("atile")
    for i in range(4): e("v_mov_b32 %s, 0" % vr(r.SO + i))
    e(mfma(r.V[0], r.S + 4, r.S + 4, None))
    e(mfma(r.V[1], r.S + 4, r.S + 4, None))
    e(mfma(r.G[1], r.S + 4, r.S + 4, None).replace(", 0", ", 1.0"))
    e(mfma(r.S, r.SO, r.SO, None))
    e("s_waitcnt vmcnt(%d)" % (0 if X1L else 5))
    stamp("x0")
    for k in range(4): e(xread(0, k))
    if X1L: x1()
    e(xm0(0))
    for s_ in range(4):
        e("s_waitcnt lgkmcnt(%d)" % (0 if s_ == 3 else 3 - s_ + 4 * X1L))
        e(mfma(r.G[0], r.X + 4 * s_, r.WB + 4 * s_, None if s_ == 0 else r.G[0]))
    e(xdma(0))
    e(smf(r.G[0], r.T, r.AT, r.TI, 1))
    e(xdma(1))
    e("s_nop 8")
    stamp("loop"); stamp("rtloop", True)
    if STAMP:
        e("s_add_u32 s100, %s, 1" % sr(sNG)); e("v_writelane_b32 v%d, s100, 28" % STV)
    mark(3)

    def I(text, lds=None, need=()): return dict(text=text, lds=lds, need=list(need))
    def oct_(base, o):
        o %= 4
        return base[o >> 1] + 8 * (o & 1)
    def C_(o, i): return "v_cvt_pk_bf16_f32 %s, %s, %s" % (vr(oct_(r.V, o) + i), vr(r.ETA + i), vr(oct_(r.V, o) + i))
    def R_(o, i): return "v_rcp_f32 %s, %s" % (vr(r.ETA + i), vr(oct_(r.G, o) + i))
    def E_(o, i): return "v_exp_f32 %s, %s" % (vr(oct_(r.G, o) + i), vr(oct_(r.G, o) + i))
    def A_(o):
        g_ = oct_(r.G, o)
        return ["v_pk_add_f32 %s, %s, 1.0 op_sel_hi:[1,0]" % (vr(g_ + i, 2), vr(g_ + i, 2)) for i in range(0, 8, 2)]
    def M_(o, pk=True):
        v_ = oct_(r.V, o)
        if pk: return ["v_pk_mul_f32 %s, %s, %s" % (vr(v_ + i, 2), vr(v_ + i, 2), vr(r.ETA + i, 2)) for i in range(0, 8, 2)]
        return ["v_mul_f32 %s, %s, %s" % (vr(v_ + i), vr(r.ETA + i), vr(v_ + i)) for i in range(8)]
    def red(f, hi): return smf(r.ACC[f], r.S + 4 * hi, r.V[f] + 8 * hi, r.SI)
    def gch(f): return [mfma(r.G[f], r.X + 4 * k, r.WB + 16 * f + 4 * k, None if k == 0 else r.G[f]) for k in range(4)] + [smf(r.G[f], r.T, r.AT + 8 * f, r.TI, 1)]
    def vch(f): return [mfma(r.V[f], r.X + 4 * k, r.WV + 16 * f + 4 * k, None if k == 0 else r.V[f]) for k in range(4)]
    RR = int(opts.get('rr', 1))
    CUT6 = [int(x) for x in opts.get('cut6', '0,3,6,10,14,18' if RR else '0,3,7,11,15,19').split(',')]
    CUT5 = [int(x) for x in opts.get('cut5', '0,4,8,12,16' if RR else '0,4,9,13,18').split(',')]
    HI = int(opts.get('hi', -1))
    def sub(s_, g):
        nb = (g + 1) & 1
        tail = []
        fxl = lambda: [I("s_cbranch_scc1 FXL_S")] + [I(t) for t in fixup(r.RD, r.RI, 2, "FXL", c0, c1, KX)] + [I("FXL_S:")]
        ptr = [I("v_lshl_add_u64 %s, %s, 0, %s" % (vr(r.PS, 2), vr(r.PS, 2), sr(sINC, 2))),
               I("v_lshl_add_u64 %s, %s, 0, %s" % (vr(r.PT, 2), vr(r.PT, 2), sr(sINC, 2))),
               I("v_lshl_add_u64 %s, %s, 0, %s" % (vr(r.PL, 2), vr(r.PL, 2), sr(sINC2, 2)))]
        if RR:
            if s_ == 0:
                mm = [I(red(0, 0), need=['S3']), I(red(0, 1))] + [I(t) for t in vch(0)]
                aux = [[], [I(soread(g, 0), lds='SO0')], [I(xdma(2)), I(soread(g, 1), lds='SO1')], [I(xdma(3))],
                       [I(soread(g, 2), lds='SO2')], [I(soread(g, 3), lds='SO3')]]
                if g == 1: aux[4].insert(0, I(rload(r.RD, r.RI), need=['RI']))
            elif s_ == 1:
                mm = [I(t) for t in gch(1)]
                aux = [[I(xidx(g + 3, k), lds='XI%d' % k)] for k in range(4)] + [[I(t0read(g + 1), lds='T0')]]
            elif s_ == 2:
                mm = [I(red(1, 0)), I(red(1, 1))] + [I(t) for t in vch(1)]
                aux = [[I(tiread(g + 1), lds='TI')], [I("s_waitcnt vmcnt(%d)" % (4 if g == 0 else 5), need=['XI3']), I(trread(0), lds='S0')]] + [[I(xread(nb, k), lds='X%d' % k)] for k in range(4)]
                aux[5].insert(0, I("s_waitcnt", need=['X1']))
                if g == 0:
                    aux[4].insert(0, I("s_cmp_gt_u32 %s, 7" % sr(sBLK)))
                    tail = fxl()
            else:
                gc = gch(0)
                mm = [I(gc[k], need=['X%d' % k]) for k in range(4)] + [I(gc[4], need=['T0', 'TI'])]
                aux = [[I(trread(1), lds='S1')], [I("s_waitcnt", need=['X3']), I(trread(2), lds='S2')], [I(xm0(nb)), I(trread(3), lds='S3')],
                       [I("s_sub_u32 %s, %s, 1" % (sr(sNG), sr(sNG))), I(xdma(0))], [I("s_waitcnt", need=['S3']), I(xdma(1))]]
                if g == 0:
                    aux[2].append(I(riread(3), lds='RI'))
                    aux[0].insert(0, I("s_add_u32 %s, %s, 1" % (sr(sBLK), sr(sBLK))))
                else: tail = ptr
        elif s_ == 0:
            mm = [I(red(0, 1), need=['S3'])] + [I(t) for t in vch(0)]
            aux = [[I(soread(g, 0), lds='SO0')], [I(xdma(2)), I(soread(g, 1), lds='SO1')], [I(xdma(3))],
                   [I(soread(g, 2), lds='SO2')], [I(soread(g, 3), lds='SO3')]]
            if g == 1: aux[3].insert(0, I(rload(r.RD, r.RI), need=['RI']))
        elif s_ == 1:
            mm = [I(red(1, 0))] + [I(t) for t in gch(1)]
            aux = [[I(trread(0), lds='S0', need=['SO1'])], [I(trread(1), lds='S1')], [I(xidx(g + 3, 0), lds='XI0')], [I(xidx(g + 3, 1), lds='XI1')],
                   [I(xidx(g + 3, 2), lds='XI2'), I(xidx(g + 3, 3), lds='XI3')], [I(t0read(g + 1), lds='T0')]]
        elif s_ == 2:
            mm = [I(red(1, 1))] + [I(t) for t in vch(1)]
            aux = [[I("s_waitcnt vmcnt(%d)" % (4 if g == 0 else 5), need=['XI3']), I(tiread(g + 1), lds='TI')]] + [[I(xread(nb, k), lds='X%d' % k)] for k in range(4)]
            if g == 0:
                aux[3].insert(0, I("s_cmp_gt_u32 %s, 7" % sr(sBLK)))
                tail = fxl()
        else:
            gc = gch(0)
            mm = [I(red(0, 0), need=['S1'])] + [I(gc[k], need=['X%d' % k]) for k in range(4)] + [I(gc[4], need=['T0', 'TI'])]
            aux = [[I(trread(2), lds='S2', need=['X1'])], [I(trread(3), lds='S3')], [I("s_waitcnt", need=['X3'])], [I(xm0(nb))],
                   [I("s_sub_u32 %s, %s, 1" % (sr(sNG), sr(sNG))), I(xdma(0))], [I("s_waitcnt", need=['S3']), I(xdma(1))]]
            if g == 0:
                aux[3].append(I(riread(3), lds='RI'))
                aux[1].insert(0, I("s_add_u32 %s, %s, 1" % (sr(sBLK), sr(sBLK))))
            else: tail = ptr
        aux[0].insert(0, I("s_setprio %d" % (0 if str(s_) in LOWS else 1)))
        aux[HI].insert(0, I("s_setprio 3"))
        cut = CUT6 if len(mm) == 6 else CUT5
        va = []
        for i in range(8): va += [C_(s_ - 2, i), R_(s_ - 1, i), E_(s_, i)]
        out = []
        for k, t in enumerate(va):
            if k in cut:
                j = cut.index(k); out.append(mm[j]); out.extend(aux[j])
            out.append(I(t))
        return out + tail + [I(t) for t in M_(s_ - 1) + A_(s_)]
    body = []
    for g in range(2):
        for s_ in range(4): body += sub(s_, g)
        body.append(I("s_cbranch_scc1 DRAIN" if g == 0 else "s_cbranch_scc0 LOOP"))
    issued = []; done = 0
    for pas in range(2):
        if pas == 1: lab("LOOP")
        for it in body:
            n = None
            for tag in it['need']:
                idxs = [k for k, t in enumerate(issued) if t == tag]
                if not idxs: continue
                k = idxs[-1]
                if k >= done:
                    n = len(issued) - 1 - k
                    done = k + 1
            tx = it['text']
            if n is not None:
                assert n <= 15
                if tx.startswith("s_waitcnt"): tx += " lgkmcnt(%d)" % n
                elif pas == 1: e("s_waitcnt lgkmcnt(%d)" % n)
            if pas == 1 and tx != "s_waitcnt": emit([tx])
            if it['lds']: issued.append(it['lds'])
    lab("DRAIN")
    stamp("loopend"); stamp("rtloopend", True)
    XR = r.X; EA_ = r.X + 8
    pre = ["v_lshrrev_b32 %s, 5, %s" % (vr(c0), vr(lane)),
           "v_and_b32 %s, 31, %s" % (vr(c1), vr(lane)),
           "v_lshlrev_b32 %s, 2, %s" % (vr(c1), vr(c1)),
           "v_mul_u32_u24 %s, 0x240, %s" % (vr(c2), vr(c0)),
           "v_xor_b32 %s, %s, %s" % (vr(c2), vr(c2), vr(c1)),
           "v_add_u32 %s, %s, %s" % (vr(c2), sr(sXT), vr(c2))]
    e("s_setprio 2")
    e("s_waitcnt lgkmcnt(0)")
    if RR: e(red(0, 0))
    e(red(0, 1))
    for i in range(8): e(C_(2, i)); e(R_(3, i))
    e(pre.pop(0)); e(pre.pop(0))
    e(red(1, 0))
    for t in M_(3, False): e(t)
    for i in range(8): e(C_(3, i))
    for t in pre: e(t)
    e(red(1, 1))
    e("s_add_u32 %s, %s, 512" % (sr(sW0), sr(sW0)))
    e("s_cmp_lt_u32 %s, %s" % (sr(sW0), sr(sTot)))
    e("s_cbranch_scc1 MORE")
    for q_ in range(4):
        if q_: e("v_xor_b32 %s, %d, %s" % (vr(EA_), 16 * q_, vr(c2)))
        e("ds_read_b32 %s, %s offset:%d" % (vr(XR + q_), vr(EA_ if q_ else c2), q_ * 128))
        e("ds_read_b32 %s, %s offset:%d" % (vr(XR + q_ + 4), vr(EA_ if q_ else c2), q_ * 128 + 1024))
    e("v_lshlrev_b32 %s, 2, %s" % (vr(c0), vr(c0)))
    e("v_subrev_u32 %s, %s, %s" % (vr(c0), sr(sStart), vr(c0)))
    e("v_lshl_add_u32 %s, %s, 7, %s" % (vr(c0), vr(c0), vr(c1)))
    for q_ in range(8):
        e("v_add_u32 %s, %d, %s" % (vr(EA_ + q_), (8 * (q_ >> 2) + (q_ & 3)) * 128, vr(c0)))
        e("v_and_b32 %s, 0x7ff, %s" % (vr(EA_ + q_), vr(EA_ + q_)))
    e("s_mov_b32 s3, 0x358637bd")
    for f in range(2):
        for q_ in range(8):
            e("v_add_f32 %s, s3, %s" % (vr(r.ACC[f] + q_), vr(r.ACC[f] + q_)))
        for q_ in range(8):
            e("v_rcp_f32 %s, %s" % (vr(r.ACC[f] + q_), vr(r.ACC[f] + q_)))
    e("s_waitcnt lgkmcnt(0)")
    for q_ in range(8):
        for f in range(2):
            u = r.ACC[f] + q_
            if f == 0:
                e("v_lshlrev_b32 %s, 16, %s" % (vr(c0), vr(r.U + q_))); e("v_lshlrev_b32 %s, 16, %s" % (vr(c1), vr(XR + q_)))
            else:
                e("v_and_b32 %s, 0xffff0000, %s" % (vr(c0), vr(r.U + q_))); e("v_and_b32 %s, 0xffff0000, %s" % (vr(c1), vr(XR + q_)))
            e("v_fmac_f32 %s, %s, %s" % (vr(c0), vr(u), vr(u + 8)))
            e("v_max_f32 %s, 0, %s" % (vr(c0), vr(c0)))
            e("v_add_f32 %s, %s, %s" % (vr(u), vr(c1), vr(c0)))
        e("v_cvt_pk_bf16_f32 %s, %s, %s" % (vr(r.U + q_), vr(r.ACC[0] + q_), vr(r.ACC[1] + q_)))
        e("buffer_store_dword %s, %s, %s, 0 offen %s" % (vr(r.U + q_), vr(EA_ + q_), sr(SOUT, 4), OSF))
    if STAMP:
        e("s_waitcnt vmcnt(0)")
        stamp("end"); stamp("rtend", True)
        e("s_sub_u32 s100, %d, %s" % (SPINMAX, sr(sSpin))); e("v_writelane_b32 v%d, s100, 29" % STV)
        e("s_getreg_b32 s100, hwreg(HW_REG_HW_ID)"); e("v_writelane_b32 v%d, s100, 30" % STV)
        e("s_lshl_b32 s3, s2, 3"); e("s_add_u32 s3, s3, %s" % sr(sW)); e("s_lshl_b32 s3, s3, 7"); e("s_add_u32 s3, s3, 0x%x" % WS_DBG)
        srd(SA, 26, 128, "s3")
        e("v_lshlrev_b32 %s, 2, %s" % (vr(c0), vr(lane)))
        e("buffer_store_dword v%d, %s, %s, 0 offen" % (STV, vr(c0), sr(SA, 4)))
    if DW:
        if 'dwg' in opts:
            e("s_cmp_lg_u32 s2, %s" % opts['dwg']); e("s_cbranch_scc1 K_END")
        if DW == 10: e("s_cmp_gt_u32 %s, 3" % sr(sW)); e("s_cbranch_scc1 K_END")
        if DW in (11, 12, 13): e("s_cmp_lt_u32 %s, 4" % sr(sW)); e("s_cbranch_scc1 K_END")
        e("s_waitcnt vmcnt(0) lgkmcnt(0)")
        lab("SPIN")
        e("s_memrealtime s[100:101]"); e("s_waitcnt lgkmcnt(0)")
        e("s_sub_u32 s100, s100, s98"); e("s_cmp_lt_u32 s100, 6000"); e("s_cbranch_scc1 SPIN")
    lab("K_END")
    e("s_endpgm")
    for name, rd, ri in retries:
        lab(name + "_R")
        e("s_mov_b64 exec, vcc")
        if int(opts.get('rsl', 0)): e("s_sleep %d" % int(opts.get('rsl', 0)))
        e(rload(rd, ri, "sc0 sc1"))
        e("s_sub_u32 %s, %s, 1" % (sr(sSpin), sr(sSpin)))
        e("s_waitcnt vmcnt(0)")
        e("s_cbranch_scc0 %s" % name)
        e("s_endpgm")
    lab("LATER")
    e(riread(0)); e(riread(1, RI1))
    pointers()
    e("s_waitcnt lgkmcnt(0)")
    e(rload(r.RD, r.RI)); e(rload(RD1, RI1))
    e("s_branch NOW")
    lab("MORE")
    e("s_mov_b32 %s, 0" % sr(sFirst))
    e("s_waitcnt vmcnt(0) lgkmcnt(0)")
    e("s_nop 15")
    e("s_lshr_b32 s3, %s, 2" % sr(sT)); e("s_lshl_b32 s3, s3, 4")
    e("s_and_b32 s97, %s, 3" % sr(sT)); e("s_lshl_b32 s97, s97, 1"); e("s_add_u32 s3, s3, s97")
    e("v_lshl_add_u32 %s, %s, 15, s3" % (vr(c0), vr(lane)))
    for i in range(4):
        e("buffer_load_ushort %s, %s, %s, 0 offen sc0 sc1" % (vr(EN + i), vr(c0), sr(SOFS, 4)))
        e("buffer_load_ushort %s, %s, %s, 0 offen offset:2 sc0 sc1" % (vr(D + i), vr(c0), sr(SOFS, 4)))
        e("v_add_u32 %s, 8192, %s" % (vr(c0), vr(c0)))
    expand_pre()
    zero_list()
    e("s_waitcnt vmcnt(0)")
    for i in range(4): e("v_lshl_or_b32 %s, %s, 16, %s" % (vr(EN + i), vr(D + i), vr(EN + i)))
    e("s_branch EXPAND")
    return r.n

hdr = open('cdna_kernels/%s.s.ref' % NAME).read().split('\n')
hdr = [l for l in hdr if l.startswith(';   offset') or l.startswith('; Kernarg')]
L.append('.amdgcn_target "amdgcn-amd-amdhsa--gfx950"')
L.append('.text')
nv = kernel()
L.append('.section .rodata,"a"')
L += [".p2align 6", ".amdhsa_kernel %s" % KN, "  .amdhsa_next_free_vgpr 256", "  .amdhsa_next_free_sgpr 102",
      "  .amdhsa_accum_offset 256", "  .amdhsa_group_segment_fixed_size 0", "  .amdhsa_kernarg_size 96",
      "  .amdhsa_user_sgpr_count 2", "  .amdhsa_user_sgpr_kernarg_segment_ptr 1", "  .amdhsa_system_sgpr_workgroup_id_x 1",
      ".end_amdhsa_kernel"]
if opts.get('list', '0') == '1':
    top = hdr + ["; @launch kernel=%s grid=(256,1,1) block=(512,1,1) lds=%d" % (KN, LDS_BYTES)]
else:
    top = hdr + ["; @launch grid=(256,1,1) block=(512,1,1) lds=%d" % LDS_BYTES]
open(OUT, 'w').write("\n".join(top + L) + "\n")
if STAMP: open('stamps.txt', 'w').write(" ".join(names))
print("vgprs:", nv, "lines:", len(L))
```

```python
import sys, re

NAME = "standalone__edge_featured_mpnn_gatedgcn__graph"
KN = NAME + "_kernel"
N_NODES = 25000
CH = 3200
NC = 250
TMUL = 5368
WS_REC = 0
WS_OFF = 0xD00000
WS_EPO = 0xF00000
WS_DBG = 0x1000000
NEGLOG2E = 0xBFB8AA3B
SPINMAX = 200000

opts = dict(a.split('=') for a in sys.argv[1:] if '=' in a)
OUT = opts.get('out', 'cdna_kernels/%s.s' % NAME)
STAMP = int(opts.get('stamp', 0))
STF = opts.get('stf', 'sc1').replace('+', ' ')
LDF = opts.get('ldf', 'nt').replace('+', ' ')
RLF = opts.get('rlf', '').replace('+', ' ')
RL0 = opts.get('rl0', '').replace('+', ' ')
RL2 = opts.get('rl2', '').replace('+', ' ')
XPF = int(opts.get('xpf', 0))
PLF = opts.get('plf', 'sc1').replace('+', ' ')
OSF = opts.get('osf', '').replace('+', ' ')
DW = int(opts.get('dw', 0))
LOWS = opts.get('lows', '')
DELAY = int(opts.get('delay', 0))

L = []
def e(s): L.append("    " + s)
def lab(s): L.append(s + ":")
def vr(a, n=1): return "v%d" % a if n == 1 else "v[%d:%d]" % (a, a + n - 1)
def sr(a, n=1): return "s%d" % a if n == 1 else "s[%d:%d]" % (a, a + n - 1)

DPPS = ["row_shr:1 row_mask:0xf bank_mask:0xf", "row_shr:2 row_mask:0xf bank_mask:0xf",
        "row_shr:4 row_mask:0xf bank_mask:0xf", "row_shr:8 row_mask:0xf bank_mask:0xf",
        "row_bcast:15 row_mask:0xa bank_mask:0xf", "row_bcast:31 row_mask:0xc bank_mask:0xf"]
def scan64(op, v, fill=()):
    fill = list(fill)
    for m in DPPS:
        n = 0
        while n < 2 and fill:
            e(fill.pop(0)); n += 1
        if n < 2: e("s_nop %d" % (1 - n))
        e("%s_dpp %s, %s, %s %s" % (op, vr(v), vr(v), vr(v), m))
    for f in fill: e(f)

def srd(d, base, nbytes, add=None, stride=0, sub=None):
    if sub is not None:
        e("s_sub_u32 %s, %s, %s" % (sr(d), sr(base), sub))
        e("s_subb_u32 %s, %s, 0" % (sr(d + 1), sr(base + 1)))
        e("s_and_b32 %s, %s, 0xffff" % (sr(d + 1), sr(d + 1)))
    elif add is None:
        e("s_mov_b32 %s, %s" % (sr(d), sr(base)))
        e("s_and_b32 %s, %s, 0xffff" % (sr(d + 1), sr(base + 1)))
    else:
        e("s_add_u32 %s, %s, %s" % (sr(d), sr(base), add))
        e("s_addc_u32 %s, %s, 0" % (sr(d + 1), sr(base + 1)))
        e("s_and_b32 %s, %s, 0xffff" % (sr(d + 1), sr(d + 1)))
    if stride:
        e("s_or_b32 %s, %s, 0x%x" % (sr(d + 1), sr(d + 1), stride << 16))
    e("s_mov_b32 %s, %s" % (sr(d + 2), nbytes if isinstance(nbytes, str) else "0x%x" % nbytes))
    e("s_mov_b32 %s, 0x20000" % sr(d + 3))

STV = 255
names = []
def stamp(name, real=False):
    if not STAMP: return
    if 'only' in opts and name not in opts['only'].split(',') + ['rt0', 'start', 'loop', 'rtloop', 'loopend', 'rtloopend', 'end', 'rtend']: return
    k = len(names); names.append(name)
    e("s_mem%stime s[100:101]" % ("real" if real else ""))
    e("s_waitcnt lgkmcnt(0)")
    e("v_writelane_b32 v%d, s100, %d" % (STV, k))
def mark(*modes):
    if DW in modes: e("s_memrealtime s[98:99]"); e("s_waitcnt lgkmcnt(0)")

TS, TOTA, WTOT, UTB = 0, 64, 128, 192
RECB = 1024
HIST = RECB + CH * 16
XTB = RECB + 65536
XBB = XTB + 16384
PCB = XBB + 65536
LDS_BYTES = PCB + 8192
LOFF = 8192 - 2048 - 16

class R: pass
def alloc():
    r = R(); p = 0
    def a(n, al=1):
        nonlocal p
        p = (p + al - 1) // al * al
        b = p; p += n
        return b
    r.LANE = a(1); r.SI = a(1)
    r.PS = a(1, 2); r.PC = a(1); r.PT = a(1, 2); r.PE = a(1); r.PL = a(1, 2); r.PW = a(1)
    r.XA0 = a(1); r.XA1 = a(1); r.TI = a(1); r.TMP = a(3); r.RI = a(1)
    r.SO = a(4, 2); r.XI = a(8, 2); r.T = a(4, 2); r.RD = a(4, 2); r.U = a(8, 2)
    r.S = a(8, 2); r.ETA = a(8, 2); r.X = a(16, 2)
    r.ACC = [a(16, 2), a(16, 2)]
    r.G = [a(16, 2), None]; r.V = [a(16, 2), None]
    r.G[1] = a(16, 2); r.V[1] = a(16, 2)
    r.WB = a(32, 2); r.WV = a(32, 2); r.AT = a(16, 2)
    r.n = p
    return r

def mfma(d, a, b, c):
    return "v_mfma_f32_32x32x16_bf16 %s, %s, %s, %s" % (vr(d, 16), vr(a, 4), vr(b, 4), "0" if c is None else vr(c, 16))
def smf(d, a, b, idx, abid=0):
    return "v_smfmac_f32_32x32x32_bf16 %s, %s, %s, %s%s" % (vr(d, 16), vr(a, 4), vr(b, 8), vr(idx), " abid:1" if abid else "")
SOFF = [0, 64, 256, 320]

def kernel():
    r = alloc()
    assert r.n <= 255, r.n
    SX, SXI, SOFS, SRC, SOUT, SA, SB, SC_ = 28, 32, 36, 40, 44, 48, 52, 56
    sW, sT, sStart, sEnd, sTot, sW0, sNG, sXB, sREC, sFirst, sBin, sMag, sBLK, sXT, sTag, sTagH, sSpin, sLim, sKm, sKx = range(60, 80)
    sINC = 80; sINC2 = 82; sSO = 84; sE2 = 88; sRET = 90
    lane = r.LANE
    c0, c1, c2 = r.TMP, r.TMP + 1, r.TMP + 2
    MAG = -(-(1 << 41) // 671)
    for t in range(2049):
        n = t * 8192 + 670
        assert (n * MAG) >> 41 == n // 671
    def tile_range():
        e("s_lshl_b32 s3, %s, 13" % sr(sT)); e("s_add_u32 s3, s3, 670")
        e("s_mul_hi_u32 %s, s3, %s" % (sr(sStart), sr(sMag))); e("s_lshr_b32 %s, %s, 9" % (sr(sStart), sr(sStart)))
        e("s_add_u32 s3, s3, 8192")
        e("s_mul_hi_u32 %s, s3, %s" % (sr(sEnd), sr(sMag))); e("s_lshr_b32 %s, %s, 9" % (sr(sEnd), sr(sEnd)))
    L.append(".globl %s" % KN); L.append(".p2align 8"); L.append(".type %s,@function" % KN); lab(KN)
    e("s_load_dwordx16 s[4:19], s[0:1], 0")
    e("s_load_dwordx8 s[20:27], s[0:1], 64")
    e("s_cmp_gt_u32 s2, 255")
    e("s_cbranch_scc1 K_END")
    e("s_setprio 3")
    mark(1)
    stamp("rt0", True); stamp("start")
    q = r.X
    TID = q; T16 = q + 1; T32 = q + 2; ONE = q + 3; ZER = q + 4
    DST = q + 8
    SRCV = q + 16
    EA = q + 24
    HA = q + 56
    RK = q + 64
    CN = q + 72
    ST = q + 76
    PC_ = q + 80
    tA, tB, tC, tD, tE, tF = [q + 84 + i for i in range(6)]
    EP = q + 90
    T16B = q + 92; T32B = q + 93
    assert q + 94 <= r.WB
    WRAW = r.AT
    WCR = r.ETA
    e("v_mov_b32 %s, v0" % vr(TID))
    e("v_lshrrev_b32 %s, 6, v0" % vr(tA))
    e("v_lshlrev_b32 %s, 4, v0" % vr(T16))
    e("v_readfirstlane_b32 %s, %s" % (sr(sW), vr(tA)))
    e("v_lshlrev_b32 %s, 5, v0" % vr(T32))
    e("v_and_b32 %s, 63, v0" % vr(lane))
    e("v_add_u32 %s, 8192, %s" % (vr(T16B), vr(T16)))
    e("v_add_u32 %s, 16384, %s" % (vr(T32B), vr(T32)))
    for i in range(4): e("v_mov_b32 %s, 0" % vr(ZER + i))
    e("v_mov_b32 %s, 1" % vr(ONE))
    e("ds_write_b128 %s, %s offset:%d" % (vr(T16), vr(ZER, 4), HIST))
    e("s_min_u32 s3, s2, %d" % (NC - 1))
    e("s_mul_i32 s92, s3, %d" % (CH * 4))
    e("s_lshl_b32 s93, s92, 1")
    e("s_cmp_lt_u32 s2, %d" % NC)
    e("s_cselect_b32 s94, %d, 0" % (CH * 4))
    e("s_cselect_b32 s95, %d, 0" % (CH * 8))
    e("s_cselect_b32 s96, %d, 0" % (CH // 4))
    e("s_and_b32 s3, s2, 7"); e("s_lshl_b32 s3, s3, 5"); e("s_lshr_b32 %s, s2, 3" % sr(sBin)); e("s_add_u32 %s, %s, s3" % (sr(sBin), sr(sBin)))
    e("s_lshl_b32 %s, %s, 13" % (sr(sREC), sr(sW)))
    e("s_add_u32 %s, %s, %d" % (sr(sXB), sr(sREC), XBB))
    e("s_add_u32 %s, %s, %d" % (sr(sREC), sr(sREC), RECB))
    e("s_lshl_b32 %s, %s, 3" % (sr(sT), sr(sBin))); e("s_add_u32 %s, %s, %s" % (sr(sT), sr(sT), sr(sW)))
    e("s_mov_b32 %s, 0x%x" % (sr(sMag), MAG))
    tile_range()
    e("s_waitcnt lgkmcnt(0)")
    if int(opts.get('wsb', 0)):
        e("s_add_u32 s26, s26, 0x%x" % (int(opts['wsb']) << 20)); e("s_addc_u32 s27, s27, 0")
    if int(opts.get('tt', 0)):
        e("s_cmp_lt_u32 s2, %d" % int(opts.get('ttw', 248)))
        e("s_cbranch_scc1 TT_SKIP")
        e("s_cmp_lg_u32 %s, 7" % sr(sW))
        e("s_cbranch_scc1 TT_SKIP")
        e("v_lshlrev_b32 %s, 18, %s" % (vr(tA), vr(lane)))
        e("v_lshlrev_b32 %s, 16, %s" % (vr(tB), vr(lane)))
        srd(SA, 26, 0x1000000)
        e("buffer_load_dword %s, %s, %s, 0 offen sc0 sc1" % (vr(r.AT), vr(tA), sr(SA, 4)))
        srd(SA, 4, N_NODES * 128)
        e("buffer_load_dword %s, %s, %s, 0 offen" % (vr(r.AT), vr(tB), sr(SA, 4)))
        srd(SA, 22, N_NODES * 128)
        e("buffer_load_dword %s, %s, %s, 0 offen sc0 sc1" % (vr(r.AT), vr(tB), sr(SA, 4)))
        for p in (12, 14, 16, 18, 20):
            srd(SA, p, 512)
            e("buffer_load_dword %s, %s, %s, 0 offen" % (vr(r.AT), vr(tB), sr(SA, 4)))
        lab("TT_SKIP")
    srd(SA, 10, "s94", "s92")
    e("buffer_load_dwordx4 %s, %s, %s, 0 offen %s" % (vr(DST, 4), vr(T16), sr(SA, 4), LDF))
    e("buffer_load_dwordx4 %s, %s, %s, 0 offen %s" % (vr(DST + 4, 4), vr(T16B), sr(SA, 4), LDF))
    srd(SOUT, 26, 8, "0x%x" % WS_EPO)
    e("buffer_load_dwordx2 %s, %s, %s, 0 offen sc1" % (vr(EP, 2), vr(ZER), sr(SOUT, 4)))
    DF = int(opts.get('df', 2))
    SS, SE = (SB, SC_) if not DF else (SRC, SOFS)
    srd(SS, 8, "s94", "s92")
    srd(SE, 6, "s95", "s93")
    RL = ["buffer_load_dwordx4 %s, %s, %s, 0 offen %s" % (vr(SRCV, 4), vr(T16), sr(SS, 4), LDF),
          "buffer_load_dwordx4 %s, %s, %s, 0 offen %s" % (vr(SRCV + 4, 4), vr(T16B), sr(SS, 4), LDF)]
    for k in (2, 3, 0, 1):
        RL.append("buffer_load_dwordx4 %s, %s, %s, 0 offen offset:%d %s" % (vr(EA + 8 * k, 4), vr(T32B if k >> 1 else T32), sr(SE, 4), 16 * (k & 1), LDF))
    NE = int(opts.get('ne', 2))
    NE2 = int(opts.get('ne2', 0))
    for _ in range(NE): e(RL.pop(0))
    def rest_loads():
        for t in RL: e(t)
        if DF:
            srd(SOFS, 26, 256 * 8192, "0x%x" % WS_OFF)
            srd(SRC, 26, NC * CH, stride=16)
    if DF == 0: rest_loads()
    e("v_cmp_gt_u32 vcc, s96, %s" % vr(TID))
    e("s_mov_b64 s[92:93], vcc")
    e("v_add_u32 %s, 512, %s" % (vr(tA), vr(TID)))
    e("v_cmp_gt_u32 vcc, s96, %s" % vr(tA))
    e("s_mov_b64 s[94:95], vcc")
    e("s_and_b32 s3, %s, 3" % sr(sW))
    e("s_cmp_eq_u32 s3, 1"); e("s_cselect_b32 s12, s18, s12"); e("s_cselect_b32 s13, s19, s13")
    e("s_cmp_eq_u32 s3, 2"); e("s_cselect_b32 s12, s14, s12"); e("s_cselect_b32 s13, s15, s13")
    e("s_cmp_eq_u32 s3, 3"); e("s_cselect_b32 s12, s20, s12"); e("s_cselect_b32 s13, s21, s13")
    srd(SA, 12, 8192)
    srd(SB, 16, 512)
    srd(SX, 4, N_NODES * 128)
    H = r.SO
    XT0, XT1, J4, L16 = r.RD, r.RD + 1, r.RD + 2, r.RD + 3
    e("v_lshrrev_b32 %s, 5, %s" % (vr(H), vr(lane)))
    e("v_and_b32 %s, 31, %s" % (vr(J4), vr(lane)))
    e("v_lshlrev_b32 %s, 2, %s" % (vr(J4), vr(J4)))
    e("v_lshlrev_b32 %s, 4, %s" % (vr(L16), vr(lane)))
    e("v_lshrrev_b32 %s, 3, %s" % (vr(tA), vr(lane)))
    e("v_xor_b32 %s, %s, %s" % (vr(tB), vr(tA), vr(lane)))
    e("v_and_b32 %s, 7, %s" % (vr(tB), vr(tB)))
    e("v_lshlrev_b32 %s, 4, %s" % (vr(tB), vr(tB)))
    e("v_add_u32 %s, %s, %s" % (vr(tA), sr(sStart), vr(tA)))
    e("v_sub_u32 %s, %s, %s" % (vr(tC), vr(tA), vr(H)))
    e("v_add_u32 %s, 8, %s" % (vr(tC), vr(tC)))
    e("v_lshl_add_u32 %s, %s, 7, %s" % (vr(XT0), vr(tA), vr(tB)))
    e("v_lshl_add_u32 %s, %s, 7, %s" % (vr(XT1), vr(tC), vr(tB)))
    def late_loads():
        e("s_cmp_lt_u32 %s, 4" % sr(sW))
        e("s_cbranch_scc1 LATE_B")
        e("s_and_b32 s93, %s, 3" % sr(sW)); e("s_lshl_b32 s93, s93, 14")
        e("s_add_u32 m0, s93, %d" % XBB)
        e("s_mov_b32 s3, 4096")
        for k in range(4):
            e("buffer_load_dwordx4 %s, %s, 0 offen offset:%d %s lds" % (vr(L16), sr(SA, 4), k * 1024, opts.get('wf', '')))
        e("s_add_u32 m0, s93, %d" % (XBB + 8192))
        e("s_nop 0")
        for k in range(4):
            e("buffer_load_dwordx4 %s, %s, s3 offen offset:%d %s lds" % (vr(L16), sr(SA, 4), k * 1024, opts.get('wf', '')))
        if XPF:
            e("s_lshr_b32 s3, s2, 3"); e("s_mul_i32 s3, s3, %d" % (782 * 128))
            e("s_lshr_b32 s94, s93, 1"); e("s_mul_i32 s94, s94, %d" % XPF); e("s_add_u32 s3, s3, s94")
            e("v_lshl_add_u32 %s, %s, 7, s3" % (vr(tF), vr(lane)))
            for k in range(XPF):
                e("buffer_load_dword %s, %s, %s, 0 offen" % (vr(tE), vr(tF), sr(SX, 4)))
                if k + 1 < XPF: e("v_add_u32 %s, 8192, %s" % (vr(tF), vr(tF)))
        lab("LATE_B")
        e("s_mov_b32 exec_hi, 0")
        for i in range(4):
            e("buffer_load_dword %s, %s, %s, 0 offen offset:%d %s" % (vr(WCR + i), vr(J4), sr(SB, 4), i * 128, opts.get('wf', '')))
        e("s_mov_b64 exec, -1")
        if 'X' not in opts.get('pfx', ''): xt_loads()
    def xt_loads():
        e("s_lshl_b32 s3, %s, 11" % sr(sW))
        e("s_add_u32 m0, s3, %d" % XTB)
        e("s_nop 0")
        e("buffer_load_dwordx4 %s, %s, 0 offen %s lds" % (vr(XT0), sr(SX, 4), opts.get('xtf', '')))
        e("s_add_u32 m0, s3, %d" % (XTB + 1024))
        e("s_nop 0")
        e("buffer_load_dwordx4 %s, %s, 0 offen %s lds" % (vr(XT1), sr(SX, 4), opts.get('xtf', '')))
    e("s_mul_i32 s3, s2, %d" % (CH * 16))
    NLATE = 0
    srd(SC_, 26, CH * 16, "s3")
    if not DF: srd(SOFS, 26, 256 * 8192, "0x%x" % WS_OFF)
    srd(SXI, 4, N_NODES, stride=128, sub="3072")
    if not DF: srd(SRC, 26, NC * CH, stride=16)
    PFX = opts.get('pfx', '')
    NPF = 0
    if PFX:
        e("v_lshlrev_b32 %s, 7, %s" % (vr(tA), vr(lane)))
    if 'c' in PFX or 'w' in PFX:
        e("s_cmp_lt_u32 s2, 248")
        e("s_cbranch_scc1 PF_SKIP")
        if 'c' in PFX:
            e("s_getpc_b64 s[96:97]")
            lab("PCREF")
            e("s_and_b32 s3, %s, 1" % sr(sW)); e("s_lshl_b32 s3, s3, 13")
            e("v_add_u32 %s, s3, %s" % (vr(tB), vr(tA)))
            e("v_min_u32 %s, K_END-PCREF, %s" % (vr(tB), vr(tB)))
            e("s_cmp_lt_u32 %s, 2" % sr(sW)); e("s_cselect_b64 exec, -1, 1")
            e("global_load_dword %s, %s, s[96:97]" % (vr(r.AT), vr(tB)))
        if 'w' in PFX:
            e("s_cmp_gt_u32 %s, 3" % sr(sW)); e("s_cselect_b64 exec, -1, 1")
            e("buffer_load_dword %s, %s, %s, 0 offen" % (vr(r.AT), vr(tA), sr(SA, 4)))
            e("s_mov_b64 exec, 15")
            e("buffer_load_dword %s, %s, %s, 0 offen" % (vr(r.AT), vr(tA), sr(SB, 4)))
        e("s_mov_b64 exec, -1")
        lab("PF_SKIP")
    if 'X' in PFX:
        xt_loads()
        NPF += 2
    if 'x' in PFX:
        e("s_mov_b64 exec, 0x01010101"); e("s_mov_b32 exec_hi, 0x01010101")
        e("buffer_load_dword %s, %s, %s, 0 offen" % (vr(r.AT), vr(XT0), sr(SX, 4)))
        e("buffer_load_dword %s, %s, %s, 0 offen" % (vr(r.AT), vr(XT1), sr(SX, 4)))
        e("s_mov_b64 exec, -1")
        NPF += 2
    if 's' in PFX:
        e("s_mov_b64 exec, 1")
        e("buffer_load_dword %s, %s, %s, 0 offen sc0 sc1" % (vr(r.AT), vr(T32B), sr(SC_, 4)))
        e("s_mov_b64 exec, -1")
        NPF += 1
    e("s_mov_b32 %s, 1024" % sr(sINC)); e("s_mov_b32 %s, 1024" % sr(sINC + 1))
    e("s_mov_b32 %s, 256" % sr(sINC2)); e("s_mov_b32 %s, 1024" % sr(sINC2 + 1))
    e("s_mov_b32 %s, 3072" % sr(sSO)); e("s_mov_b32 %s, 2048" % sr(sSO + 1)); e("s_mov_b32 %s, 1024" % sr(sSO + 2))
    e("s_mov_b32 %s, %d" % (sr(sLim), NC * CH))
    e("s_mov_b32 %s, 0xfff0ffff" % sr(sKm))
    e("s_mov_b32 %s, 0" % sr(sW0)); e("s_mov_b32 %s, 1" % sr(sFirst)); e("s_mov_b32 %s, %d" % (sr(sSpin), SPINMAX))
    e("v_mov_b32 %s, 0x%x" % (vr(tA), (1 << 4) | (2 << 8) | (1 << 14) | (2 << 18)))
    e("v_lshlrev_b32 %s, 1, %s" % (vr(tB), vr(lane)))
    e("v_bfe_u32 %s, %s, %s, 2" % (vr(tA), vr(tA), vr(tB)))
    e("v_mul_u32_u24 %s, 0x8001, %s" % (vr(tA), vr(tA)))
    e("v_and_b32 %s, 0x10001, %s" % (vr(tA), vr(tA)))
    e("v_mul_u32_u24 %s, 0x3f80, %s" % (vr(tA), vr(tA)))
    e("v_lshlrev_b32 %s, 2, %s" % (vr(tB), vr(lane)))
    e("s_mov_b64 exec, 0x3ff")
    e("ds_write_b32 %s, %s offset:%d" % (vr(tB), vr(tA), TS))
    e("s_mov_b64 exec, -1")
    e("v_mul_u32_u24 %s, 140, %s" % (vr(tC), vr(lane)))
    e("v_lshrrev_b32 %s, 7, %s" % (vr(tC), vr(tC)))
    e("v_mul_u32_u24 %s, 11, %s" % (vr(tA), vr(tC)))
    e("v_lshrrev_b32 %s, 5, %s" % (vr(tA), vr(tA)))
    e("v_mad_i32_i24 %s, %s, -3, %s" % (vr(tD), vr(tA), vr(tC)))
    e("v_add_u32 %s, 1, %s" % (vr(tD), vr(tD)))
    e("v_lshl_add_u32 %s, %s, 1, 4" % (vr(tA), vr(tA)))
    e("v_lshl_or_b32 %s, %s, %s, %s" % (vr(tC), vr(tD), vr(tA), vr(tC)))
    e("v_lshlrev_b32 %s, 16, %s" % (vr(tC), vr(tC)))
    e("v_or_b32 %s, 0xffff, %s" % (vr(tC), vr(tC)))
    e("s_mov_b64 exec, 0x3fff")
    e("ds_write_b32 %s, %s offset:%d" % (vr(tB), vr(tC), UTB))
    e("s_mov_b64 exec, -1")
    e("s_mov_b32 %s, %d" % (sr(sKx), 800106))
    e("v_and_b32 %s, 3, %s" % (vr(c0), vr(lane)))
    e("v_bfe_u32 %s, %s, 4, 1" % (vr(c1), vr(lane)))
    e("v_mul_u32_u24 %s, 0x5555, %s" % (vr(r.SI), vr(c1)))
    e("v_or_b32 %s, 0x8888, %s" % (vr(r.SI), vr(r.SI)))
    e("v_xor_b32 %s, %s, %s" % (vr(c2), vr(c0), vr(H)))
    e("v_lshl_or_b32 %s, %s, 2, %s" % (vr(c2), vr(c1), vr(c2)))
    e("v_lshlrev_b32 %s, 4, %s" % (vr(r.XI + 1), vr(c2)))
    e("v_mov_b32 %s, %s" % (vr(r.XI + 3), vr(r.XI + 1)))
    e("v_xor_b32 %s, 32, %s" % (vr(r.XI + 5), vr(r.XI + 1)))
    e("v_mov_b32 %s, %s" % (vr(r.XI + 7), vr(r.XI + 5)))
    e("v_bfe_u32 %s, %s, 3, 2" % (vr(c2), vr(lane)))
    e("v_xor_b32 %s, %s, %s" % (vr(c2), vr(c2), vr(H)))
    e("v_lshlrev_b32 %s, 4, %s" % (vr(r.XA0), vr(c2)))
    e("v_lshl_or_b32 %s, %s, 6, %s" % (vr(r.XA0), vr(c0), vr(r.XA0)))
    e("v_bfe_u32 %s, %s, 3, 1" % (vr(c2), vr(lane)))
    e("v_lshl_or_b32 %s, %s, 9, %s" % (vr(r.XA0), vr(c2), vr(r.XA0)))
    e("v_bfe_u32 %s, %s, 2, 1" % (vr(tA), vr(lane)))
    e("v_lshl_or_b32 %s, %s, 10, %s" % (vr(r.XA0), vr(tA), vr(r.XA0)))
    e("v_lshl_or_b32 %s, %s, 11, %s" % (vr(r.XA0), vr(c1), vr(r.XA0)))
    e("v_xor_b32 %s, 32, %s" % (vr(r.XA1), vr(r.XA0)))
    e("v_add_u32 %s, %s, %s" % (vr(r.XA0), sr(sXB), vr(r.XA0)))
    e("v_add_u32 %s, %s, %s" % (vr(r.XA1), sr(sXB), vr(r.XA1)))
    FA, FU = r.SO + 2, r.SO + 3
    e("v_lshl_or_b32 %s, %s, 1, %s" % (vr(c2), vr(tA), vr(c2)))
    e("v_lshl_or_b32 %s, %s, 1, %s" % (vr(c2), vr(c2), vr(c1)))
    e("v_mad_u32_u24 %s, %s, 3, %s" % (vr(c2), vr(c2), vr(c0)))
    e("v_add_u32 %s, 9, %s" % (vr(c2), vr(c2)))
    e("v_and_b32 %s, 15, %s" % (vr(c2), vr(c2)))
    for dst, src in ((FA, c2), (FU, None)):
        if src is None:
            e("v_and_b32 %s, 15, %s" % (vr(c2), vr(lane)))
        e("v_xor_b32 %s, %s, %s" % (vr(tA), vr(c2), vr(H)))
        e("v_and_b32 %s, 7, %s" % (vr(tA), vr(tA)))
        e("v_lshlrev_b32 %s, 4, %s" % (vr(tA), vr(tA)))
        e("v_lshl_or_b32 %s, %s, 7, %s" % (vr(dst), vr(c2), vr(tA)))
    e("v_lshlrev_b32 %s, 4, %s" % (vr(tA), vr(H)))
    e("v_mov_b32 %s, 0x3f80" % vr(tB))
    e("v_lshlrev_b32 %s, %s, %s" % (vr(r.T + 1), vr(tA), vr(tB)))
    e("v_mov_b32 %s, %s" % (vr(r.T + 2), vr(r.T + 1)))
    e("v_mov_b32 %s, %s" % (vr(r.T + 3), vr(r.T + 1)))
    e("s_lshl_b32 s3, %s, 2" % sr(sW))
    e("v_mov_b32 %s, s3" % vr(tE))
    e("v_and_b32 %s, 7, %s" % (vr(tF), vr(lane)))
    e("v_lshlrev_b32 %s, 2, %s" % (vr(tF), vr(tF)))
    e("s_waitcnt lgkmcnt(0)")
    e("s_barrier")
    if DF == 1: rest_loads()
    if DF == 2:
        for _ in range(NE2): e(RL.pop(0))
    e("s_waitcnt vmcnt(%d)" % (1 + NE + NE2 + NPF if DF == 2 else 7 + NPF))
    stamp("dst")
    mark(6)
    for rd in range(2):
        e("s_mov_b64 exec, s[%d:%d]" % (92 + 2 * rd, 93 + 2 * rd))
        e("s_cbranch_execz P1_A")
        for i in range(4 * rd, 4 * rd + 4):
            e("v_mul_u32_u24 %s, %d, %s" % (vr(DST + i), TMUL, vr(DST + i)))
            e("v_lshrrev_b32 %s, 14, %s" % (vr(HA + i), vr(DST + i)))
            e("v_and_b32 %s, 0x1ffc, %s" % (vr(HA + i), vr(HA + i)))
        for i in range(4 * rd, 4 * rd + 4):
            e("ds_add_rtn_u32 %s, %s, %s offset:%d" % (vr(RK + i), vr(HA + i), vr(ONE), HIST))
    lab("P1_A")
    e("s_mov_b64 exec, -1")
    if DF == 2: rest_loads()
    for i in range(8):
        d = DST + i
        e("v_and_b32 %s, 0xffff, %s" % (vr(d), vr(d)))
        e("v_mul_hi_u32_u24 %s, %s, %s" % (vr(d), sr(sKx), vr(d)))
        e("v_lshlrev_b32 %s, 2, %s" % (vr(d), vr(d)))
    for i in range(8):
        e("ds_read_b32 %s, %s offset:%d" % (vr(DST + i), vr(DST + i), UTB))
    key = ["s_nop 0"] * 64
    e("s_waitcnt lgkmcnt(0)")
    e("s_barrier")
    stamp("hist")
    e("ds_read_b128 %s, %s offset:%d" % (vr(CN, 4), vr(T16), HIST))
    e("s_waitcnt lgkmcnt(0)")
    e("v_add_u32 %s, %s, %s" % (vr(ST + 2), vr(CN), vr(CN + 1)))
    e("v_add_u32 %s, %s, %s" % (vr(ST + 3), vr(ST + 2), vr(CN + 2)))
    e("v_add_u32 %s, %s, %s" % (vr(tA), vr(ST + 3), vr(CN + 3)))
    e("v_mov_b32 %s, %s" % (vr(tB), vr(tA)))
    scan64("v_add_u32", tB)
    e("s_mov_b32 exec_lo, 0"); e("s_mov_b32 exec_hi, 0x80000000")
    e("ds_write_b32 %s, %s offset:%d" % (vr(tE), vr(tB), WTOT))
    e("s_mov_b64 exec, -1")
    e("s_waitcnt vmcnt(%d)" % (6 + NLATE + NPF))
    e("v_readfirstlane_b32 %s, %s" % (sr(sTag), vr(EP)))
    e("v_readfirstlane_b32 %s, %s" % (sr(sE2), vr(EP + 1)))
    e(key.pop(0)); e(key.pop(0))
    e("s_add_u32 %s, %s, 1" % (sr(sTag), sr(sTag)))
    e("s_add_u32 %s, %s, 0x10000" % (sr(sE2), sr(sE2)))
    e("s_and_b32 %s, %s, 0xffff0000" % (sr(sTagH), sr(sE2)))
    e("s_waitcnt lgkmcnt(0)")
    e("s_barrier")
    e("ds_read_b32 %s, %s offset:%d" % (vr(tC), vr(tF), WTOT))
    e("v_mov_b32 %s, %s" % (vr(PC_ + 3), sr(sTag)))
    e("s_waitcnt lgkmcnt(0)")
    e("v_mov_b32 %s, %s" % (vr(tD), vr(tC)))
    for sh in (1, 2, 4):
        e(key.pop(0)); e(key.pop(0))
        e("v_add_u32_dpp %s, %s, %s row_shr:%d row_mask:0xf bank_mask:0xf" % (vr(tD), vr(tD), vr(tD), sh))
    e("v_sub_u32 %s, %s, %s" % (vr(tD), vr(tD), vr(tC)))
    e(key.pop(0))
    e("v_readlane_b32 s3, %s, %s" % (vr(tD), sr(sW)))
    e("s_lshl_b32 s91, s2, 13")
    e("s_nop 0")
    e("v_add_u32 %s, s3, %s" % (vr(tB), vr(tB)))
    e("v_sub_u32 %s, %s, %s" % (vr(ST), vr(tB), vr(tA)))
    e("v_add_u32 %s, %s, %s" % (vr(ST + 1), vr(ST), vr(CN)))
    e("v_add_u32 %s, %s, %s" % (vr(ST + 2), vr(ST), vr(ST + 2)))
    e("v_add_u32 %s, %s, %s" % (vr(ST + 3), vr(ST), vr(ST + 3)))
    e("v_lshl_or_b32 %s, %s, 16, %s" % (vr(PC_), vr(ST + 1), vr(ST)))
    e("v_lshl_or_b32 %s, %s, 16, %s" % (vr(PC_ + 1), vr(ST + 3), vr(ST + 2)))
    e("v_or_b32 %s, %s, %s" % (vr(PC_ + 2), sr(sTagH), vr(tB)))
    PUB = int(opts.get('pub', 0))
    pub = "buffer_store_dwordx4 %s, %s, %s, s91 offen %s" % (vr(PC_, 4), vr(T16), sr(SOFS, 4), STF)
    if PUB == 0: e(pub)
    for i in range(4): e("v_lshlrev_b32 %s, 4, %s" % (vr(ST + i), vr(ST + i)))
    e("ds_write_b128 %s, %s offset:%d" % (vr(T16), vr(ST, 4), HIST))
    e("s_waitcnt lgkmcnt(0)")
    e("s_barrier")
    stamp("scan")
    mark(5)
    for i in range(8):
        e("ds_read_b32 %s, %s offset:%d" % (vr(HA + i), vr(HA + i), HIST))
    e("s_waitcnt vmcnt(%d)" % (NLATE + (PUB == 0)))
    stamp("inputs")
    mark(9)
    def assemble(rd):
        for k in range(2 * rd, 2 * rd + 2):
            e("v_mov_b32 %s, %s" % (vr(EA + 8 * k + 4), vr(EA + 8 * k + 2)))
            e("v_mov_b32 %s, %s" % (vr(EA + 8 * k + 5), vr(EA + 8 * k + 3)))
        for i in range(4 * rd, 4 * rd + 4):
            e("v_xor_b32 %s, %s, %s" % (vr(EA + 4 * i + 2), vr(DST + i), vr(SRCV + i)))
            e("v_mov_b32 %s, %s" % (vr(EA + 4 * i + 3), sr(sTag)))
    for rd in range(2):
        e("s_mov_b64 exec, s[%d:%d]" % (92 + 2 * rd, 93 + 2 * rd))
        e("s_cbranch_execz P1_B")
        assemble(rd)
        e("s_waitcnt lgkmcnt(4)")
        for i in range(4 * rd, 4 * rd + 4):
            e("v_lshl_add_u32 %s, %s, 4, %s" % (vr(HA + i), vr(RK + i), vr(HA + i)))
        for i in range(4 * rd, 4 * rd + 4):
            e("ds_write_b128 %s, %s offset:%d" % (vr(HA + i), vr(EA + 4 * i, 4), RECB))
    lab("P1_B")
    e("s_mov_b64 exec, -1")
    if PUB == 2: e(pub)
    late_loads()
    PA = tA; PW_ = tB; PC2 = ST
    e("v_bfe_u32 %s, %s, 1, 7" % (vr(tC), vr(TID)))
    e("v_and_b32 %s, 1, %s" % (vr(tD), vr(TID)))
    e("v_lshlrev_b32 %s, 13, %s" % (vr(PA), vr(tC)))
    e("v_lshl_or_b32 %s, %s, 4, %s" % (vr(PA), vr(tD), vr(PA)))
    e("s_lshl_b32 s97, %s, 5" % sr(sBin))
    e("s_add_u32 s96, s97, 0x100000")
    poll = ["buffer_load_dwordx4 %s, %s, %s, s97 offen %s" % (vr(PC_, 4), vr(PA), sr(SOFS, 4), PLF),
            "buffer_load_dwordx4 %s, %s, %s, s96 offen %s" % (vr(PC2, 4), vr(PA), sr(SOFS, 4), PLF)]
    e("v_lshlrev_b32 %s, 12, %s" % (vr(PW_), vr(tD)))
    e("v_lshl_or_b32 %s, %s, 2, %s" % (vr(PW_), vr(tC), vr(PW_)))
    e("v_add_u32 %s, %d, %s" % (vr(PW_), PCB, vr(PW_)))
    e("v_add_u32 %s, %d, %s" % (vr(c2), XBB + 4096, vr(L16)))
    WL = r.WB; WH = r.WB + 16; WP = r.WV
    e("s_mov_b32 s92, 0x%x" % NEGLOG2E)
    EN = r.G[1]; Z = r.V[1]; P = r.V[1] + 4; D = r.V[1] + 8
    LA, CB, PREV, JB = [r.V[1] + 12 + i for i in range(4)]
    TOT, INC, C512, W4 = r.PS, r.PC, r.PT, r.PE
    M = r.S
    def expand_pre():
        for i in range(4): e("v_mov_b32 %s, 0" % vr(Z + i))
        e("v_lshl_add_u32 %s, %s, 5, %s" % (vr(LA), vr(lane), sr(sREC)))
        e("v_mul_u32_u24 %s, %d, %s" % (vr(CB), 4 * CH, vr(lane)))
        e("v_subrev_u32 %s, %s, %s" % (vr(CB), sr(sW0), vr(CB)))
        e("v_lshl_add_u32 %s, %s, 3, %s" % (vr(JB), vr(lane), sr(sW0)))
        e("v_mov_b32 %s, 512" % vr(C512))
        e("v_mov_b32 %s, 0" % vr(PREV))
        e("v_lshl_add_u32 %s, %s, 2, %s" % (vr(r.PL), vr(lane), sr(sREC)))
        e("s_lshl_b32 s3, %s, 2" % sr(sW))
        e("v_mov_b32 %s, s3" % vr(W4))
    def zero_list():
        e("ds_write_b128 %s, %s offset:%d" % (vr(LA), vr(Z, 4), LOFF))
        e("ds_write_b128 %s, %s offset:%d" % (vr(LA), vr(Z, 4), LOFF + 16))
    expand_pre()
    e("s_lshl_b32 s3, %s, 10" % sr(sW)); e("s_add_u32 s3, s3, %d" % PCB)
    e("v_add_u32 %s, s3, %s" % (vr(r.RI), vr(L16)))
    if int(opts.get('early', 1)) == 2:
        e("s_cmp_lt_u32 %s, 4" % sr(sW))
        e("s_cbranch_scc1 P1_P")
        for t in poll: e(t)
        lab("P1_P")
    e("s_waitcnt lgkmcnt(0)")
    e("s_barrier")
    stamp("scatter")
    mark(7)
    if PUB == 1: e(pub)
    ST8 = int(opts.get('st8', 0))
    EARLY = int(opts.get('early', 1))
    if ST8:
        NS = 7
        if EARLY == 1:
            e("s_cmp_lt_u32 %s, 4" % sr(sW))
            e("s_cbranch_scc1 P1_S")
            for t in poll: e(t)
            lab("P1_S")
        CO = DST
        e("s_cmp_lt_u32 s2, %d" % NC)
        e("s_cselect_b32 %s, %s, 0" % (sr(SC_ + 2), sr(SC_ + 2)))
        for k in range(NS):
            e("ds_read_b128 %s, %s offset:%d" % (vr(CO + 4 * k, 4), vr(T16), RECB + 8192 * k))
        e("v_add_u32 %s, 49152, %s" % (vr(T32), vr(T16)))
        for k in range(NS):
            if k < NS - 1: e("s_mov_b32 s3, %d" % (8192 * k))
            e("s_waitcnt lgkmcnt(%d)" % (NS - 1 - k))
            if k < NS - 1: e("buffer_store_dwordx4 %s, %s, %s, s3 offen %s" % (vr(CO + 4 * k, 4), vr(T16), sr(SC_, 4), STF))
            else: e("buffer_store_dwordx4 %s, %s, %s, 0 offen %s" % (vr(CO + 4 * k, 4), vr(T32), sr(SC_, 4), STF))
        e("s_waitcnt vmcnt(%d)" % NS)
        e("s_cmp_lt_u32 %s, 4" % sr(sW))
        e("s_cbranch_scc1 POLL_DONE")
    else:
        e("s_cmp_gt_u32 %s, 3" % sr(sW))
        e("s_cbranch_scc1 P1_D")
        e("s_cmp_ge_u32 s2, %d" % NC)
        e("s_cbranch_scc1 P1_N")
        if DELAY:
            e("s_and_b32 s3, s2, 15"); e("s_cmp_lg_u32 s3, 5"); e("s_cbranch_scc1 P1_ND")
            for _ in range(DELAY): e("s_sleep 100")
            lab("P1_ND")
        CO = DST
        for k in range(13):
            e("ds_read_b128 %s, %s offset:%d" % (vr(CO + 4 * k, 4), vr(T16), RECB + 4096 * k))
        e("v_add_u32 %s, 49152, %s" % (vr(T32), vr(T16)))
        for k in range(13):
            if k < 12: e("s_mov_b32 s3, %d" % (4096 * k))
            e("s_waitcnt lgkmcnt(%d)" % (12 - k))
            if k < 12: e("buffer_store_dwordx4 %s, %s, %s, s3 offen %s" % (vr(CO + 4 * k, 4), vr(T16), sr(SC_, 4), STF))
            else: e("buffer_store_dwordx4 %s, %s, %s, 0 offen %s" % (vr(CO + 4 * k, 4), vr(T32), sr(SC_, 4), STF))
        e("s_waitcnt vmcnt(13)")
        e("s_branch POLL_DONE")
        lab("P1_N")
        e("s_waitcnt vmcnt(0)")
        e("s_branch POLL_DONE")
        lab("P1_D")
        if EARLY == 1:
            for t in poll: e(t)
    e("v_lshl_add_u32 %s, %s, 10, %s" % (vr(tC), vr(H), vr(J4)))
    e("s_add_u32 s3, s93, %d" % XBB)
    e("v_add_u32 %s, s3, %s" % (vr(tC), vr(tC)))
    if not ST8: e("s_waitcnt vmcnt(%d)" % ((8 if int(opts.get('early', 1)) else 6) + (PUB == 1) + XPF - 2 * ('X' in PFX)))
    mark(12)
    RAW = DST
    for i in range(32):
        e("ds_read_b32 %s, %s offset:%d" % (vr(RAW + i), vr(tC), (i >> 4) * 8192 + ((i >> 3) & 1) * 2048 + (i & 7) * 128))
    e("s_bitcmp0_b32 %s, 0" % sr(sW))
    e("s_cselect_b32 s3, s92, 1.0")
    e("v_add_u32 %s, s93, %s" % (vr(tC), vr(c2)))
    for hf in range(2):
        e("s_waitcnt lgkmcnt(%d)" % (15 if hf == 0 else 4))
        if hf == 0: e("s_nop 0")
        for i in range(16):
            e("v_lshlrev_b32 %s, 16, %s" % (vr(WL + i), vr(RAW + 16 * hf + i)))
            e("v_and_b32 %s, 0xffff0000, %s" % (vr(WH + i), vr(RAW + 16 * hf + i)))
        for i in range(0, 32, 2):
            e("v_pk_mul_f32 %s, %s, s[2:3] op_sel:[0,1] op_sel_hi:[1,1]" % (vr(WL + i, 2), vr(WL + i, 2)))
        for i in range(16):
            e("v_cvt_pk_bf16_f32 %s, %s, %s" % (vr(WP + 16 * hf + i), vr(WL + 2 * i), vr(WL + 2 * i + 1)))
        for f in range(2):
            for s_ in range(2):
                e("ds_write_b128 %s, %s offset:%d" % (vr(tC), vr(WP + 16 * hf + 8 * f + 4 * s_, 4), f * 8192 + (2 * hf + s_) * 1024))
    if not int(opts.get('early', 1)):
        for t in poll: e(t)
    mark(13)
    if ST8: e("s_branch POLL_1")
    lab("POLL")
    e("s_waitcnt vmcnt(0)")
    lab("POLL_1")
    e("v_xor_b32 %s, %s, %s" % (vr(c0), sr(sTagH), vr(PC_ + 2)))
    e("v_xor_b32 %s, %s, %s" % (vr(c1), sr(sTagH), vr(PC2 + 2)))
    e("v_or_b32 %s, %s, %s" % (vr(c0), vr(c0), vr(c1)))
    e("v_lshrrev_b32 %s, 16, %s" % (vr(c0), vr(c0)))
    e("v_xor_b32 %s, %s, %s" % (vr(c1), sr(sTag), vr(PC_ + 3)))
    e("v_xor_b32 %s, %s, %s" % (vr(tD), sr(sTag), vr(PC2 + 3)))
    e("v_or3_b32 %s, %s, %s, %s" % (vr(c0), vr(c0), vr(c1), vr(tD)))
    e("v_cmp_ne_u32 vcc, 0, %s" % vr(c0))
    e("s_cmp_eq_u64 vcc, 0")
    e("s_cbranch_scc1 POLL_OK")
    e("s_mov_b64 exec, vcc")
    for t in poll: e(t)
    e("s_sub_u32 %s, %s, 1" % (sr(sSpin), sr(sSpin)))
    e("s_cbranch_scc0 POLL")
    e("s_endpgm")
    lab("POLL_OK")
    e("s_mov_b64 exec, -1")
    for pc in (PC_, PC2):
        e("v_alignbit_b32 %s, %s, %s, 16" % (vr(pc + 3), vr(pc + 1), vr(pc)))
        e("v_alignbit_b32 %s, %s, %s, 16" % (vr(pc + 2), vr(pc + 2), vr(pc + 1)))
    for pc, off in ((PC_, 0), (PC2, 512)):
        for k, v in enumerate([pc, pc + 3, pc + 1, pc + 2]):
            e("ds_write_b32 %s, %s offset:%d" % (vr(PW_), vr(v), k * 1024 + off))
    lab("POLL_DONE")
    stamp("role")
    mark(10, 11)
    e("s_waitcnt lgkmcnt(0)")
    e("s_barrier")
    stamp("offs")
    mark(4)
    wr = []
    WA = r.G[0]; WU = r.G[1]
    for m, base in enumerate([WA, WU, r.WB, r.WV]):
        for u in range(8):
            uu = m * 8 + u
            wr.append("ds_read_b128 %s, %s offset:%d" % (vr(base + 4 * u, 4), vr(c2), (uu >> 2) * 8192 + (uu & 3) * 1024))
    e("ds_read_b128 %s, %s" % (vr(EN, 4), vr(r.RI)))
    zero_list()
    for t in wr[16:24]: e(t)
    e("s_or_b32 s3, s2, %s" % sr(sW))
    e("s_cbranch_scc1 NOBUMP")
    e("v_mov_b32 %s, %s" % (vr(r.RD), sr(sTag))); e("v_mov_b32 %s, %s" % (vr(r.RD + 1), sr(sE2)))
    e("v_lshlrev_b32 %s, 3, %s" % (vr(c1), vr(lane)))
    e("buffer_store_dwordx2 %s, %s, %s, 0 offen sc0 sc1" % (vr(r.RD, 2), vr(c1), sr(SOUT, 4)))
    lab("NOBUMP")
    e("s_waitcnt lgkmcnt(10)")

    def xidx(g, t): return "ds_read_u16 %s, %s offset:%d" % (vr(r.XI + 2 * t), vr(r.PS), g * 512 + SOFF[t] + 8)
    def xm0(buf): return "s_add_u32 m0, %s, %d" % (sr(sXB), buf * 4096)
    def xdma(t): return "buffer_load_dwordx4 %s, %s, %s idxen offen offset:%d lds" % (vr(r.XI + 2 * t, 2), sr(SXI, 4), sr(sSO + t) if t < 3 else "0", t * 1024)
    def xread(buf, k): return "ds_read_b128 %s, %s offset:%d" % (vr(r.X + 4 * k, 4), vr(r.XA1 if k & 1 else r.XA0), buf * 4096 + (k >> 1) * 256)
    def t0read(g): return "ds_read_b32 %s, %s offset:%d" % (vr(r.T), vr(r.PE), g * 512)
    def tiread(g): return "ds_read_b32 %s, %s offset:%d" % (vr(r.TI), vr(r.PT), g * 512 + 8)
    def soread(g, t): return "ds_read_u8 %s, %s offset:%d" % (vr(r.SO + t), vr(r.PC), g * 512 + SOFF[t] + 12)
    def trread(t): return "ds_read_b64_tr_b16 %s, %s offset:%d" % (vr(r.S + 2 * t, 2), vr(r.SO + t), TS)
    def riread(blk, ri=None): return "ds_read_b32 %s, %s offset:%d" % (vr(r.RI if ri is None else ri), vr(r.PL), LOFF + blk * 256)
    def rload(rd, ri, fl=None): return "buffer_load_dwordx4 %s, %s, %s, 0 idxen %s" % (vr(rd, 4), vr(ri), sr(SRC, 4), RLF if fl is None else fl)
    retries = []
    def fixup(rd, ri, blk, name, tmp0, tmp1, kx):
        retries.append((name, rd, ri))
        return ["v_cmp_gt_u32 vcc, %s, %s" % (sr(sLim), vr(ri)),
                "s_mov_b64 exec, vcc",
                name + ":",
                "v_cmp_ne_u32 vcc, %s, %s" % (sr(sTag), vr(rd + 3)),
                "v_bfe_u32 %s, %s, 16, 2" % (vr(tmp0), vr(rd + 2)),
                "v_lshrrev_b32 %s, 15, %s" % (vr(tmp1), vr(rd + 2)),
                "v_add_u32 %s, 1, %s" % (vr(tmp0), vr(tmp0)),
                "v_and_or_b32 %s, %s, 24, 3" % (vr(tmp1), vr(tmp1)),
                "s_cmp_lg_u64 vcc, 0",
                "v_lshlrev_b32 %s, %s, %s" % (vr(rd + 3), vr(tmp1), vr(tmp0)),
                "s_cbranch_scc1 %s_R" % name,
                "s_mov_b64 exec, -1",
                "v_bitop3_b32 %s, %s, %s, %s bitop3:0x6a" % (vr(rd + 2), vr(rd + 2), sr(sKm), vr(kx)),
                "ds_write_b128 %s, %s offset:%d" % (vr(r.PW), vr(rd, 4), blk * 1024)]
    def emit(lst):
        for t in lst:
            if t.endswith(":"): L.append(t)
            else: e(t)
    KX = c2 + 0

    lab("EXPAND")
    sd2 = "dst_sel:DWORD dst_unused:UNUSED_PAD src0_sel:WORD_1 src1_sel:WORD_0"
    sd = "dst_sel:DWORD dst_unused:UNUSED_PAD src0_sel:WORD_0 src1_sel:DWORD"
    for i in range(3): e("v_sub_u32_sdwa %s, %s, %s %s" % (vr(P + 1 + i), vr(EN + i), vr(EN + i), sd2))
    e("v_sub_u32_sdwa %s, %s, %s %s" % (vr(INC), vr(EN + 3), vr(EN + 3), sd2))
    e("v_add_u32 %s, %s, %s" % (vr(P + 2), vr(P + 1), vr(P + 2)))
    e("v_add_u32 %s, %s, %s" % (vr(P + 3), vr(P + 2), vr(P + 3)))
    e("v_add_u32 %s, %s, %s" % (vr(INC), vr(P + 3), vr(INC)))
    fill = ["v_add_u32 %s, %s, %s" % (vr(TOT), sr(sW0), vr(INC))]
    fill += ["v_add_u32_sdwa %s, %s, %s %s" % (vr(D + i), vr(EN + i), vr(CB), sd) for i in range(4)]
    fill += ["v_add_u32 %s, %d, %s" % (vr(D + i), i * CH, vr(D + i)) for i in range(1, 4)]
    fill += ["v_sub_u32 %s, %s, %s" % (vr(P + i), vr(P + i), vr(TOT)) for i in range(1, 4)]
    scan64("v_add_u32", INC, fill)
    e("v_sub_u32 %s, %s, %s" % (vr(P), vr(INC), vr(TOT)))
    e("v_readlane_b32 %s, %s, 63" % (sr(sTot), vr(INC)))
    for i in range(1, 4):
        e("v_add_u32 %s, %s, %s" % (vr(P + i), vr(INC), vr(P + i)))
    for i in range(4):
        e("v_sub_u32 %s, %s, %s" % (vr(D + i), vr(D + i), vr(P + i)))
        e("v_med3_i32 %s, %s, 0, %s" % (vr(P + i), vr(P + i), vr(C512)))
        e("v_lshl_add_u32 %s, %s, 2, %s" % (vr(P + i), vr(P + i), sr(sREC)))
    for i in range(4):
        e("ds_max_u32 %s, %s offset:%d" % (vr(P + i), vr(D + i), LOFF))
    e("ds_read_b128 %s, %s offset:%d" % (vr(M, 4), vr(LA), LOFF))
    e("ds_read_b128 %s, %s offset:%d" % (vr(M + 4, 4), vr(LA), LOFF + 16))
    e("s_lshl_b32 s3, %s, 3" % sr(sTot)); e("s_or_b32 s3, s3, %s" % sr(sW))
    e("v_mov_b32 %s, s3" % vr(TOT))
    e("s_mov_b64 exec, 1")
    e("ds_write_b32 %s, %s offset:%d" % (vr(W4), vr(TOT), TOTA))
    e("s_mov_b64 exec, -1")
    e("s_cmp_eq_u32 %s, 0" % sr(sFirst))
    e("s_cbranch_scc1 EXP_B")
    for t in wr[24:32]: e(t)
    e("s_waitcnt lgkmcnt(9)")
    e("s_branch EXP_C")
    lab("EXP_B")
    e("s_waitcnt lgkmcnt(1)")
    lab("EXP_C")
    e("v_max3_u32 %s, %s, %s, %s" % (vr(INC), vr(M), vr(M + 1), vr(M + 2)))
    e("v_max3_u32 %s, %s, %s, %s" % (vr(INC), vr(INC), vr(M + 3), vr(M + 4)))
    e("v_max3_u32 %s, %s, %s, %s" % (vr(INC), vr(INC), vr(M + 5), vr(M + 6)))
    e("v_max_u32 %s, %s, %s" % (vr(INC), vr(INC), vr(M + 7)))
    scan64("v_max_u32", INC, ["v_max_u32 %s, %s, %s" % (vr(M + k), vr(M + k - 1), vr(M + k)) for k in range(1, 8)])
    e("s_nop 1")
    e("v_mov_b32_dpp %s, %s wave_shr:1 row_mask:0xf bank_mask:0xf" % (vr(PREV), vr(INC)))
    for k in range(8):
        e("v_max_u32 %s, %s, %s" % (vr(M + k), vr(PREV), vr(M + k)))
        e("v_add3_u32 %s, %s, %s, %d" % (vr(M + k), vr(M + k), vr(JB), k))
    e("ds_write_b128 %s, %s offset:%d" % (vr(LA), vr(M, 4), LOFF))
    e("ds_write_b128 %s, %s offset:%d" % (vr(LA), vr(M + 4, 4), LOFF + 16))
    RI1 = r.TI; RD1 = r.S; F0 = r.XI; F1 = r.XI + 2
    e("v_lshrrev_b32 %s, 3, %s" % (vr(c0), vr(lane)))
    e("v_lshlrev_b32 %s, 2, %s" % (vr(c0), vr(c0)))
    e("v_and_b32 %s, 7, %s" % (vr(c1), vr(lane)))
    e("v_lshlrev_b32 %s, 3, %s" % (vr(r.XI + 4), vr(c1)))
    e("v_lshlrev_b32 %s, 2, %s" % (vr(c1), vr(c1)))
    e("s_sub_u32 s3, 7, %s" % sr(sW)); e("s_sub_u32 s97, %s, 4" % sr(sW))
    e("s_cmp_lt_u32 %s, 4" % sr(sW)); e("s_cselect_b32 s97, s3, s97")
    e("s_waitcnt lgkmcnt(0)")
    def pointers():
        e("v_bfe_u32 %s, %s, 2, 2" % (vr(c0), vr(lane)))
        e("v_lshrrev_b32 %s, 5, %s" % (vr(c1), vr(lane)))
        e("v_lshl_or_b32 %s, %s, 3, %s" % (vr(c0), vr(c1), vr(c0)))
        e("v_lshl_add_u32 %s, %s, 4, %s" % (vr(r.PS), vr(c0), sr(sREC)))
        e("v_and_b32 %s, 3, %s" % (vr(c0), vr(lane)))
        e("v_add_u32 %s, %s, %s" % (vr(r.PC), vr(c0), vr(r.PS)))
        e("v_and_b32 %s, 31, %s" % (vr(c0), vr(lane)))
        e("v_lshl_add_u32 %s, %s, 4, %s" % (vr(r.PT), vr(c0), sr(sREC)))
        e("v_lshl_add_u32 %s, %s, 2, %s" % (vr(r.PE), vr(c1), vr(r.PT)))
        e("v_lshl_add_u32 %s, %s, 4, %s" % (vr(r.PW), vr(lane), sr(sREC)))
        e("v_mov_b32 %s, 0x4ffff" % vr(KX))
        e("s_min_u32 %s, %s, %s" % (sr(sTot), sr(sTot), sr(sLim)))
        e("s_sub_u32 s3, %s, %s" % (sr(sTot), sr(sW0)))
        e("s_min_u32 s3, s3, 512")
        e("s_add_u32 s3, s3, 31")
        e("s_bitcmp0_b32 s3, 4")
        e("s_cselect_b32 %s, 0, -1" % sr(sRET))
        e("s_lshr_b32 s3, s3, 5")
        e("s_max_u32 s3, s3, 1")
        e("s_sub_u32 %s, s3, 1" % sr(sNG))
        e("s_mov_b32 %s, 2" % sr(sBLK))
    e("s_cmp_eq_u32 %s, 0" % sr(sFirst))
    e("s_cbranch_scc1 LATER")
    stamp("expand")
    e("s_barrier")
    e("ds_read_b32 %s, %s offset:%d" % (vr(c0), vr(c0), TOTA))
    e("ds_read_b32 %s, %s offset:%d" % (vr(c1), vr(c1), TOTA))
    for s in wr[8:12]: e(s)
    e("s_waitcnt lgkmcnt(4)")
    e("v_cmp_lt_u32 vcc, %s, %s" % (vr(c1), vr(c0)))
    e(wr[12]); e(wr[13])
    e("v_lshrrev_b64 %s, %s, vcc" % (vr(r.SO, 2), vr(r.XI + 4)))
    e("v_and_b32 %s, 0xff, %s" % (vr(r.SO), vr(r.SO)))
    e("v_bcnt_u32_b32 %s, %s, 0" % (vr(r.SO), vr(r.SO)))
    e("v_cmp_eq_u32 vcc, s97, %s" % vr(r.SO))
    e("s_ff1_i32_b64 s97, vcc")
    e("v_readlane_b32 %s, %s, s97" % (sr(sTot), vr(c1)))
    e("s_lshl_b32 %s, s97, 11" % sr(sXT)); e("s_add_u32 %s, %s, %d" % (sr(sXT), sr(sXT), XTB))
    e("s_lshl_b32 %s, s97, 13" % sr(sREC)); e("s_add_u32 %s, %s, %d" % (sr(sREC), sr(sREC), RECB))
    e("v_lshl_add_u32 %s, %s, 2, %s" % (vr(r.PL), vr(lane), sr(sREC)))
    e(riread(0)); e(riread(1, RI1))
    def xtile(mapreg, dst):
        e("v_add_u32 %s, %s, %s" % (vr(mapreg), sr(sXT), vr(mapreg)))
        tm = [mapreg, c0, c1, r.SO]
        for s in range(1, 4): e("v_xor_b32 %s, %d, %s" % (vr(tm[s]), 32 * s, vr(mapreg)))
        for s in range(4): e("ds_read_b128 %s, %s" % (vr(dst + 4 * s, 4), vr(tm[s])))
    NU = int(opts.get('nu', 8))
    xtile(FU, r.AT)
    e("s_waitcnt lgkmcnt(4)")
    if int(opts.get('rdl', 0)): e("s_sleep %d" % int(opts['rdl']))
    e(rload(r.RD, r.RI, RL0)); e(rload(RD1, RI1, RL0))
    e(wr[14]); e(wr[15])
    xtile(FA, r.X)
    for s in wr[0:8]: e(s)
    WT = r.ACC[0]
    for i in range(4):
        e("v_lshlrev_b32 %s, 16, %s" % (vr(WT + i), vr(WCR + i)))
        e("v_and_b32 %s, 0xffff0000, %s" % (vr(WT + 4 + i), vr(WCR + i)))
    for i in range(8):
        e("v_mul_f32 %s, s92, %s" % (vr(WT + i), vr(WT + i)))
    for i in range(4):
        e("v_cvt_pk_bf16_f32 %s, %s, %s" % (vr(WCR + i), vr(WT + 2 * i), vr(WT + 2 * i + 1)))
    e("s_lshr_b32 %s, %s, 3" % (sr(sTot), sr(sTot)))
    e("s_lshl_b32 %s, %s, 3" % (sr(sT), sr(sBin))); e("s_add_u32 %s, %s, s97" % (sr(sT), sr(sT)))
    ua = []
    for f in range(2):
        for s in range(4):
            ua.append(mfma(r.ACC[f], r.AT + 4 * s, WU + 16 * f + 4 * s, None if s == 0 else r.ACC[f]))
    for f in range(2):
        for s in range(4):
            ua.append(mfma(WU + 16 * f, r.X + 4 * s, WA + 16 * f + 4 * s, None if s == 0 else WU + 16 * f))
    n0 = len(L)
    pointers()
    tile_range()
    e("s_min_u32 %s, %s, %d" % (sr(sEnd), sr(sEnd), N_NODES))
    e("s_sub_u32 s3, %s, %s" % (sr(sEnd), sr(sStart))); e("s_lshl_b32 s3, s3, 7")
    e("s_lshl_b32 s97, %s, 7" % sr(sStart))
    srd(SOUT, 22, "s3", "s97")
    misc = L[n0:]; del L[n0:]
    e("s_waitcnt lgkmcnt(12)")
    for k in range(NU):
        if k == 8: e("s_waitcnt lgkmcnt(0)")
        e(ua[k])
        for _ in range(5):
            if misc: L.append(misc.pop(0))
    L.extend(misc)
    e("s_waitcnt lgkmcnt(0)")
    e("s_barrier")
    lab("NOW")
    e("s_mov_b32 m0, %s" % sr(sXB))
    e("s_waitcnt vmcnt(1)")
    emit(fixup(r.RD, r.RI, 0, "FX0", c0, c1, KX))
    for t in range(4): e(xidx(0, t))
    e(riread(2))
    stamp("rec")
    mark(8)
    e("s_waitcnt lgkmcnt(1)")
    for t in range(4): e(xdma(t))
    for t in range(4): e(xidx(1, t))
    e("s_cmp_eq_u32 %s, 0" % sr(sFirst))
    e("s_cbranch_scc1 NOW2")
    for t in ua[NU:]: e(t)
    lab("NOW2")
    e("s_waitcnt vmcnt(4)")
    emit(fixup(RD1, RI1, 1, "FX1", c0, c1, KX))
    e(t0read(0)); e(tiread(0))
    e(xm0(1))
    X1L = int(opts.get('x1l', 0))
    def x1():
        for t in range(4): e(xdma(t))
        e(rload(r.RD, r.RI, RL2))
        for t in range(4): e(xidx(2, t))
    e("s_cmp_eq_u32 %s, 0" % sr(sFirst))
    e("s_cbranch_scc1 NOW3")
    for i in range(8):
        e("v_cvt_pk_bf16_f32 %s, %s, %s" % (vr(r.U + i), vr(r.ACC[0] + i), vr(r.ACC[1] + i)))
    e("s_mov_b32 s3, 0x358637bd")
    for f in range(2):
        for i in range(16): e("v_mov_b32 %s, %s" % (vr(r.ACC[f] + i), "s3" if i < 8 else "0"))
    for f in range(2):
        for i in range(8):
            e("v_cvt_pk_bf16_f32 %s, %s, %s" % (vr(r.AT + 8 * f + i), vr(WU + 16 * f + 2 * i) if i & 1 else "0", vr(WU + 16 * f + 2 * i + 1)))
    e("s_mov_b32 exec_hi, 0")
    for f in range(2):
        e("v_mov_b32 %s, %s" % (vr(r.AT + 8 * f), vr(WCR + 2 * f)))
        e("v_mov_b32 %s, %s" % (vr(r.AT + 8 * f + 4), vr(WCR + 2 * f + 1)))
    e("s_mov_b64 exec, -1")
    lab("NOW3")
    e("s_waitcnt lgkmcnt(2)")
    if not X1L: x1()
    stamp("atile")
    e("s_waitcnt vmcnt(%d)" % (0 if X1L else 5))
    stamp("x0")
    for k in range(4): e(xread(0, k))
    if X1L: x1()
    e(xm0(0))
    for s_ in range(4):
        e("s_waitcnt lgkmcnt(%d)" % (0 if s_ == 3 else 3 - s_ + 4 * X1L))
        e(mfma(r.G[0], r.X + 4 * s_, r.WB + 4 * s_, None if s_ == 0 else r.G[0]))
    e(xdma(0))
    e(smf(r.G[0], r.T, r.AT, r.TI, 1))
    e(xdma(1))
    e("s_nop 6")
    stamp("loop"); stamp("rtloop", True)
    if STAMP:
        e("s_add_u32 s100, %s, 1" % sr(sNG)); e("v_writelane_b32 v%d, s100, 28" % STV)
    mark(3)

    def I(text, lds=None, need=()): return dict(text=text, lds=lds, need=list(need))
    def oct_(base, o):
        o %= 4
        return base[o >> 1] + 8 * (o & 1)
    def C_(o, i): return "v_cvt_pk_bf16_f32 %s, %s, %s" % (vr(oct_(r.V, o) + i), vr(r.ETA + i), vr(oct_(r.V, o) + i))
    def R_(o, i): return "v_rcp_f32 %s, %s" % (vr(r.ETA + i), vr(oct_(r.G, o) + i))
    def E_(o, i): return "v_exp_f32 %s, %s" % (vr(oct_(r.G, o) + i), vr(oct_(r.G, o) + i))
    def A_(o):
        g_ = oct_(r.G, o)
        return ["v_pk_add_f32 %s, %s, 1.0 op_sel_hi:[1,0]" % (vr(g_ + i, 2), vr(g_ + i, 2)) for i in range(0, 8, 2)]
    def M_(o, pk=True):
        v_ = oct_(r.V, o)
        if pk: return ["v_pk_mul_f32 %s, %s, %s" % (vr(v_ + i, 2), vr(v_ + i, 2), vr(r.ETA + i, 2)) for i in range(0, 8, 2)]
        return ["v_mul_f32 %s, %s, %s" % (vr(v_ + i), vr(r.ETA + i), vr(v_ + i)) for i in range(8)]
    def red(f, hi): return smf(r.ACC[f], r.S + 4 * hi, r.V[f] + 8 * hi, r.SI)
    def gch(f): return [mfma(r.G[f], r.X + 4 * k, r.WB + 16 * f + 4 * k, None if k == 0 else r.G[f]) for k in range(4)] + [smf(r.G[f], r.T, r.AT + 8 * f, r.TI, 1)]
    def vch(f): return [mfma(r.V[f], r.X + 4 * k, r.WV + 16 * f + 4 * k, None if k == 0 else r.V[f]) for k in range(4)]
    CUT6 = [0, 3, 6, 10, 14, 18]; CUT5 = [0, 4, 8, 12, 16]
    HALF = int(opts.get('half', 1))
    def sub(s_, g, first=False):
        nb = (g + 1) & 1
        tail = []
        if s_ == 0:
            mm = [I(red(0, 0), need=['S3']), I(red(0, 1))] + [I(t) for t in vch(0)]
            aux = [[], [I(soread(g, 0), lds='SO0')], [I(xdma(2)), I(soread(g, 1), lds='SO1')], [I(xdma(3))],
                   [I(soread(g, 2), lds='SO2')], [I(soread(g, 3), lds='SO3')]]
            if g == 1: aux[4].insert(0, I(rload(r.RD, r.RI), need=['RI']))
        elif s_ == 1:
            mm = [I(t) for t in gch(1)]
            aux = [[I(xidx(g + 3, k), lds='XI%d' % k)] for k in range(4)] + [[I(t0read(g + 1), lds='T0')]]
        elif s_ == 2:
            mm = [I(red(1, 0)), I(red(1, 1))] + [I(t) for t in vch(1)]
            aux = [[I(tiread(g + 1), lds='TI')], [I("s_waitcnt vmcnt(%d)" % (4 if g == 0 else 5), need=['XI3']), I(trread(0), lds='S0')]] + [[I(xread(nb, k), lds='X%d' % k)] for k in range(4)]
            aux[5].insert(0, I("s_waitcnt", need=['X1']))
            dec = I("s_sub_u32 %s, %s, 1" % (sr(sNG), sr(sNG)))
            if g == 0:
                nm = "FXP" if first else "FXL"
                tail = [I(t) for t in fixup(r.RD, r.RI, 2, nm, c0, c1, KX)]
                if not first:
                    aux[4].insert(0, I("s_cmp_gt_u32 %s, 7" % sr(sBLK)))
                    tail = [I("s_cbranch_scc1 FXL_S")] + tail + [I("FXL_S:")]
                tail.append(dec)
            else: aux[4].insert(0, dec)
        else:
            gc = gch(0)
            mm = [I(gc[k], need=['X%d' % k]) for k in range(4)] + [I(gc[4], need=['T0', 'TI'])]
            aux = [[I(trread(1), lds='S1')], [I("s_waitcnt", need=['X3']), I(trread(2), lds='S2')], [I(xm0(nb)), I(trread(3), lds='S3')],
                   [I(xdma(0))], [I("s_waitcnt", need=['S3']), I(xdma(1))]]
            if HALF: aux[3].insert(0, I("s_or_b32 s3, %s, %s" % (sr(sNG), sr(sRET))))
            if g == 0:
                aux[2].append(I(riread(3), lds='RI'))
                aux[0].insert(0, I("s_add_u32 %s, %s, 1" % (sr(sBLK), sr(sBLK))))
            else:
                tail = [I("v_lshl_add_u64 %s, %s, 0, %s" % (vr(r.PS, 2), vr(r.PS, 2), sr(sINC, 2))),
                        I("v_lshl_add_u64 %s, %s, 0, %s" % (vr(r.PT, 2), vr(r.PT, 2), sr(sINC, 2))),
                        I("v_lshl_add_u64 %s, %s, 0, %s" % (vr(r.PL, 2), vr(r.PL, 2), sr(sINC2, 2)))]
        va = []
        for i in range(8):
            if not (first and s_ < 2): va.append(C_(s_ - 2, i))
            if not (first and s_ < 1): va.append(R_(s_ - 1, i))
            va.append(E_(s_, i))
        cut = CUT6 if len(mm) == 6 else CUT5
        if first and s_ in (0, 2):
            aux = [aux[0] + aux[1] + aux[2]] + aux[3:]; mm = mm[2:]
            cut = [0, 2, 4, 6] if s_ == 0 else [0, 4, 8, 12]
        if first and s_ == 1: cut = [0, 3, 6, 9, 12]
        aux[0].insert(0, I("s_setprio 1"))
        aux[-1].insert(0, I("s_setprio 3"))
        out = []
        for k, t in enumerate(va):
            if k in cut:
                j = cut.index(k); out.append(mm[j]); out.extend(aux[j])
            out.append(I(t))
        out += tail + [I(t) for t in ([] if first and s_ == 0 else M_(s_ - 1)) + A_(s_)]
        if s_ == 2: out.append(I("s_cbranch_scc1 TAIL"))
        return out
    state = dict(issued=[], done=0)
    def run(seq, out):
        issued = state['issued']
        for it in seq:
            n = None
            for tag in it['need']:
                idxs = [k for k, t in enumerate(issued) if t == tag]
                if not idxs: continue
                k = idxs[-1]
                if k >= state['done']:
                    n = len(issued) - 1 - k
                    state['done'] = k + 1
            tx = it['text']
            if n is not None:
                assert n <= 15
                if tx.startswith("s_waitcnt"): tx += " lgkmcnt(%d)" % n
                elif out: e("s_waitcnt lgkmcnt(%d)" % n)
            if out and tx != "s_waitcnt": emit([tx])
            if it['lds']: issued.append(it['lds'])
    cyc = lambda g, first=False: sum((sub(s_, g, first) for s_ in range(4)), [])
    c_first, c_even, c_odd = cyc(0, True), cyc(0), cyc(1)
    run(c_first, True)
    e("s_branch MID")
    run(c_odd, False)
    L.append(".p2align 3")
    lab("LOOP")
    run(c_even, True)
    lab("MID")
    if HALF: e("s_cbranch_scc0 HALF1")
    run(c_odd, True)
    XR = r.X; UF = r.G[0]; XF = r.V[0]
    def epi_addr():
        return ["v_lshrrev_b32 %s, 5, %s" % (vr(c0), vr(lane)),
                "v_and_b32 %s, 31, %s" % (vr(c1), vr(lane)),
                "v_lshlrev_b32 %s, 2, %s" % (vr(c1), vr(c1)),
                "v_mul_u32_u24 %s, 0x240, %s" % (vr(c2), vr(c0)),
                "v_xor_b32 %s, %s, %s" % (vr(c2), vr(c2), vr(c1)),
                "v_add_u32 %s, %s, %s" % (vr(c2), sr(sXT), vr(c2))]
    if HALF:
        e("s_cbranch_scc1 LOOP")
        e("s_branch HALF0")
        lab("HALF1")
        e("v_add_u32 %s, 512, %s" % (vr(r.PC), vr(r.PC)))
        lab("HALF0")
        def weave(mm, va, cut):
            for k, t in enumerate(va):
                if k in cut: e(mm[cut.index(k)])
                e(t)
        e("s_setprio 1")
        e(soread(0, 0)); e(soread(0, 1))
        va = []
        for i in range(8): va += [C_(2, i), R_(3, i), E_(0, i)]
        weave([red(0, 0), red(0, 1)] + vch(0), va, CUT6)
        e("s_setprio 3")
        for t in M_(3) + A_(0): e(t)
        e("s_setprio 1")
        va = []
        for i in range(8): va += [C_(3, i), R_(0, i)]
        weave(gch(1), va, [0, 3, 6, 9, 12])
        for t in M_(0, False): e(t)
        e(red(1, 0))
        e("s_waitcnt lgkmcnt(0)")
        e(trread(0)); e(trread(1))
        va = []
        for i in range(8): va += [C_(0, i), E_(2, i)]
        weave([red(1, 1)] + vch(1), va, [1, 4, 7, 10, 13])
        for i in range(8): e("v_add_f32 %s, 1.0, %s" % (vr(r.G[1] + i), vr(r.G[1] + i)))
        e("s_waitcnt lgkmcnt(0)")
        e(red(0, 0))
        for i in range(8): e(R_(2, i))
        pre = epi_addr()
        e(pre.pop(0))
        for t in M_(2, False): e(t)
        for i in range(8): e(C_(2, i))
        for t in pre: e(t)
        e(red(1, 0))
        e("s_branch FIN")
    else:
        e("s_branch LOOP")
    lab("TAIL")
    e("s_setprio 2")
    e(trread(1)); e(trread(2)); e(trread(3))
    for i in range(8): e(C_(1, i)); e(R_(2, i)); e(E_(3, i))
    e("s_waitcnt lgkmcnt(0)")
    e(red(0, 0))
    for t in M_(2, False): e(t)
    e(red(0, 1))
    for i in range(8): e("v_add_f32 %s, 1.0, %s" % (vr(r.G[1] + 8 + i), vr(r.G[1] + 8 + i)))
    pre = epi_addr()
    for i in range(8): e(C_(2, i)); e(R_(3, i))
    e(pre.pop(0)); e(pre.pop(0))
    e(red(1, 0))
    for t in M_(3, False): e(t)
    for i in range(8): e(C_(3, i))
    for t in pre: e(t)
    e(red(1, 1))
    lab("FIN")
    stamp("loopend"); stamp("rtloopend", True)
    e("s_setprio 3")
    e("s_add_u32 %s, %s, 512" % (sr(sW0), sr(sW0)))
    e("s_cmp_lt_u32 %s, %s" % (sr(sW0), sr(sTot)))
    e("s_cbranch_scc1 MORE")
    EA_ = r.X + 8
    for q_ in range(1, 4): e("v_xor_b32 %s, %d, %s" % (vr(EA_ + q_), 16 * q_, vr(c2)))
    for q_ in range(4):
        e("ds_read_b32 %s, %s offset:%d" % (vr(XR + q_), vr(EA_ + q_ if q_ else c2), q_ * 128))
        if q_ < 3: e("ds_read_b32 %s, %s offset:%d" % (vr(XR + q_ + 4), vr(EA_ + q_ if q_ else c2), q_ * 128 + 1024))
    for q_ in range(7):
        e("v_lshlrev_b32 %s, 16, %s" % (vr(UF + q_), vr(r.U + q_)))
        e("v_and_b32 %s, 0xffff0000, %s" % (vr(UF + 8 + q_), vr(r.U + q_)))
    B0, B1 = EA_ + 4, EA_ + 5
    e("v_lshl_add_u32 %s, %s, 9, %s" % (vr(B0), vr(c0), vr(c1)))
    e("s_movk_i32 s3, 384")
    e("v_mad_u32_u24 %s, %s, s3, %s" % (vr(B1), vr(c0), vr(c1)))
    for f in range(2):
        for q_ in range(7):
            e("v_rcp_f32 %s, %s" % (vr(r.ACC[f] + q_), vr(r.ACC[f] + q_)))
    e("s_waitcnt lgkmcnt(0)")
    for q_ in range(7):
        e("v_lshlrev_b32 %s, 16, %s" % (vr(XF + q_), vr(XR + q_)))
        e("v_and_b32 %s, 0xffff0000, %s" % (vr(XF + 8 + q_), vr(XR + q_)))
    for f in range(2):
        for q_ in range(0, 8, 2):
            e("v_pk_fma_f32 %s, %s, %s, %s" % (vr(UF + 8 * f + q_, 2), vr(r.ACC[f] + q_, 2), vr(r.ACC[f] + 8 + q_, 2), vr(UF + 8 * f + q_, 2)))
    for f in range(2):
        for q_ in range(7):
            e("v_max_f32 %s, 0, %s" % (vr(UF + 8 * f + q_), vr(UF + 8 * f + q_)))
    for q_ in range(0, 8, 2):
        for f in range(2):
            e("v_pk_add_f32 %s, %s, %s" % (vr(UF + 8 * f + q_, 2), vr(UF + 8 * f + q_, 2), vr(XF + 8 * f + q_, 2)))
    for q_ in range(7):
        e("v_cvt_pk_bf16_f32 %s, %s, %s" % (vr(r.U + q_), vr(UF + q_), vr(UF + 8 + q_)))
        e("buffer_store_dword %s, %s, %s, 0 offen offset:%d %s" % (vr(r.U + q_), vr(B0 if q_ < 4 else B1), sr(SOUT, 4), (q_ if q_ < 4 else q_ + 4) * 128, OSF))
    if STAMP:
        e("s_waitcnt vmcnt(0)")
        stamp("end"); stamp("rtend", True)
        e("s_sub_u32 s100, %d, %s" % (SPINMAX, sr(sSpin))); e("v_writelane_b32 v%d, s100, 29" % STV)
        e("s_getreg_b32 s100, hwreg(HW_REG_HW_ID)"); e("v_writelane_b32 v%d, s100, 30" % STV)
        e("s_lshl_b32 s3, s2, 3"); e("s_add_u32 s3, s3, %s" % sr(sW)); e("s_lshl_b32 s3, s3, 7"); e("s_add_u32 s3, s3, 0x%x" % WS_DBG)
        srd(SA, 26, 128, "s3")
        e("v_lshlrev_b32 %s, 2, %s" % (vr(c0), vr(lane)))
        e("buffer_store_dword v%d, %s, %s, 0 offen" % (STV, vr(c0), sr(SA, 4)))
    if DW:
        if 'dwg' in opts:
            e("s_cmp_lg_u32 s2, %s" % opts['dwg']); e("s_cbranch_scc1 K_END")
        if DW == 10: e("s_cmp_gt_u32 %s, 3" % sr(sW)); e("s_cbranch_scc1 K_END")
        if DW in (11, 12, 13): e("s_cmp_lt_u32 %s, 4" % sr(sW)); e("s_cbranch_scc1 K_END")
        e("s_waitcnt vmcnt(0) lgkmcnt(0)")
        lab("SPIN")
        e("s_memrealtime s[100:101]"); e("s_waitcnt lgkmcnt(0)")
        e("s_sub_u32 s100, s100, s98"); e("s_cmp_lt_u32 s100, 6000"); e("s_cbranch_scc1 SPIN")
    lab("K_END")
    e("s_endpgm")
    for name, rd, ri in retries:
        lab(name + "_R")
        e("s_mov_b64 exec, vcc")
        if int(opts.get('rsl', 0)): e("s_sleep %d" % int(opts.get('rsl', 0)))
        e(rload(rd, ri, "sc0 sc1"))
        e("s_sub_u32 %s, %s, 1" % (sr(sSpin), sr(sSpin)))
        e("s_waitcnt vmcnt(0)")
        e("s_cbranch_scc0 %s" % name)
        e("s_endpgm")
    lab("LATER")
    e(riread(0)); e(riread(1, RI1))
    pointers()
    e("s_waitcnt lgkmcnt(0)")
    e(rload(r.RD, r.RI)); e(rload(RD1, RI1))
    e("s_branch NOW")
    lab("MORE")
    e("s_mov_b32 %s, 0" % sr(sFirst))
    e("s_waitcnt vmcnt(0) lgkmcnt(0)")
    e("s_nop 15")
    e("s_lshr_b32 s3, %s, 2" % sr(sT)); e("s_lshl_b32 s3, s3, 4")
    e("s_and_b32 s97, %s, 3" % sr(sT)); e("s_lshl_b32 s97, s97, 1"); e("s_add_u32 s3, s3, s97")
    e("v_lshl_add_u32 %s, %s, 15, s3" % (vr(c0), vr(lane)))
    for i in range(4):
        e("buffer_load_ushort %s, %s, %s, 0 offen sc0 sc1" % (vr(EN + i), vr(c0), sr(SOFS, 4)))
        e("buffer_load_ushort %s, %s, %s, 0 offen offset:2 sc0 sc1" % (vr(D + i), vr(c0), sr(SOFS, 4)))
        e("v_add_u32 %s, 8192, %s" % (vr(c0), vr(c0)))
    expand_pre()
    zero_list()
    e("s_waitcnt vmcnt(0)")
    for i in range(4): e("v_lshl_or_b32 %s, %s, 16, %s" % (vr(EN + i), vr(D + i), vr(EN + i)))
    e("s_branch EXPAND")
    return r.n

hdr = open('cdna_kernels/%s.s.ref' % NAME).read().split('\n')
hdr = [l for l in hdr if l.startswith(';   offset') or l.startswith('; Kernarg')]
L.append('.amdgcn_target "amdgcn-amd-amdhsa--gfx950"')
L.append('.text')
nv = kernel()
L.append('.section .rodata,"a"')
L += [".p2align 6", ".amdhsa_kernel %s" % KN, "  .amdhsa_next_free_vgpr 256", "  .amdhsa_next_free_sgpr 102",
      "  .amdhsa_accum_offset 256", "  .amdhsa_group_segment_fixed_size 0", "  .amdhsa_kernarg_size 96",
      "  .amdhsa_user_sgpr_count 2", "  .amdhsa_user_sgpr_kernarg_segment_ptr 1", "  .amdhsa_system_sgpr_workgroup_id_x 1",
      ".end_amdhsa_kernel"]
if opts.get('list', '0') == '1':
    top = hdr + ["; @launch kernel=%s grid=(256,1,1) block=(512,1,1) lds=%d" % (KN, LDS_BYTES)]
else:
    top = hdr + ["; @launch grid=(256,1,1) block=(512,1,1) lds=%d" % LDS_BYTES]
open(OUT, 'w').write("\n".join(top + L) + "\n")
if STAMP: open('stamps.txt', 'w').write(" ".join(names))
print("vgprs:", nv, "lines:", len(L))
```

```python
import sys, re

NAME = "standalone__edge_featured_mpnn_gatedgcn__graph"
KN = NAME + "_kernel"
N_NODES = 25000
CH = 3200
NC = 250
TMUL = 5368
WS_REC = 0
WS_OFF = 0xD00000
WS_EPO = 0xF00000
WS_DBG = 0x1000000
NEGLOG2E = 0xBFB8AA3B
SPINMAX = 200000

opts = dict(a.split('=') for a in sys.argv[1:] if '=' in a)
OUT = opts.get('out', 'cdna_kernels/%s.s' % NAME)
STAMP = int(opts.get('stamp', 0))
STF = opts.get('stf', 'sc1').replace('+', ' ')
LDF = opts.get('ldf', 'nt').replace('+', ' ')
RLF = opts.get('rlf', '').replace('+', ' ')
RL0 = opts.get('rl0', '').replace('+', ' ')
RL2 = opts.get('rl2', '').replace('+', ' ')
XPF = int(opts.get('xpf', 0))
PLF = opts.get('plf', 'sc1').replace('+', ' ')
OSF = opts.get('osf', 'sc1').replace('+', ' ')
DW = int(opts.get('dw', 0))
LOWS = opts.get('lows', '')
DELAY = int(opts.get('delay', 0))

L = []
def e(s): L.append("    " + s)
def lab(s): L.append(s + ":")
def vr(a, n=1): return "v%d" % a if n == 1 else "v[%d:%d]" % (a, a + n - 1)
def sr(a, n=1): return "s%d" % a if n == 1 else "s[%d:%d]" % (a, a + n - 1)

DPPS = ["row_shr:1 row_mask:0xf bank_mask:0xf", "row_shr:2 row_mask:0xf bank_mask:0xf",
        "row_shr:4 row_mask:0xf bank_mask:0xf", "row_shr:8 row_mask:0xf bank_mask:0xf",
        "row_bcast:15 row_mask:0xa bank_mask:0xf", "row_bcast:31 row_mask:0xc bank_mask:0xf"]
def scan64(op, v, fill=()):
    fill = list(fill)
    for m in DPPS:
        n = 0
        while n < 2 and fill:
            e(fill.pop(0)); n += 1
        if n < 2: e("s_nop %d" % (1 - n))
        e("%s_dpp %s, %s, %s %s" % (op, vr(v), vr(v), vr(v), m))
    for f in fill: e(f)

def srd(d, base, nbytes, add=None, stride=0, sub=None):
    if sub is not None:
        e("s_sub_u32 %s, %s, %s" % (sr(d), sr(base), sub))
        e("s_subb_u32 %s, %s, 0" % (sr(d + 1), sr(base + 1)))
        e("s_and_b32 %s, %s, 0xffff" % (sr(d + 1), sr(d + 1)))
    elif add is None:
        e("s_mov_b32 %s, %s" % (sr(d), sr(base)))
        e("s_and_b32 %s, %s, 0xffff" % (sr(d + 1), sr(base + 1)))
    else:
        e("s_add_u32 %s, %s, %s" % (sr(d), sr(base), add))
        e("s_addc_u32 %s, %s, 0" % (sr(d + 1), sr(base + 1)))
        e("s_and_b32 %s, %s, 0xffff" % (sr(d + 1), sr(d + 1)))
    if stride:
        e("s_or_b32 %s, %s, 0x%x" % (sr(d + 1), sr(d + 1), stride << 16))
    e("s_mov_b32 %s, %s" % (sr(d + 2), nbytes if isinstance(nbytes, str) else "0x%x" % nbytes))
    e("s_mov_b32 %s, 0x20000" % sr(d + 3))

STV = 255
names = []
def stamp(name, real=False):
    if not STAMP: return
    if 'only' in opts and name not in opts['only'].split(',') + ['rt0', 'start', 'loop', 'rtloop', 'loopend', 'rtloopend', 'end', 'rtend']: return
    k = len(names); names.append(name)
    e("s_mem%stime s[100:101]" % ("real" if real else ""))
    e("s_waitcnt lgkmcnt(0)")
    e("v_writelane_b32 v%d, s100, %d" % (STV, k))
def mark(*modes):
    if DW in modes: e("s_memrealtime s[98:99]"); e("s_waitcnt lgkmcnt(0)")

TS, TOTA, WTOT, UTB, RTB = 0, 64, 128, 192, 256
RECB = 1024
HIST = RECB + CH * 16
XTB = RECB + 65536
XBB = XTB + 16384
PCB = XBB + 65536
LDS_BYTES = PCB + 8192
LOFF = 8192 - 2048 - 16

class R: pass
def alloc():
    r = R(); p = 0
    def a(n, al=1):
        nonlocal p
        p = (p + al - 1) // al * al
        b = p; p += n
        return b
    r.LANE = a(1); r.SI = a(1)
    r.PS = a(1, 2); r.PC = a(1); r.PT = a(1, 2); r.PE = a(1); r.PL = a(1, 2); r.PW = a(1)
    r.XA0 = a(1); r.XA1 = a(1); r.TI = a(1); r.TMP = a(3); r.RI = a(1)
    r.SO = a(4, 2); r.XI = a(8, 2); r.T = a(4, 2); r.RD = a(4, 2); r.U = a(8, 2)
    r.S = a(8, 2); r.ETA = a(8, 2); r.X = a(16, 2)
    r.ACC = [a(16, 2), a(16, 2)]
    r.G = [a(16, 2), None]; r.V = [a(16, 2), None]
    r.G[1] = a(16, 2); r.V[1] = a(16, 2)
    r.WB = a(32, 2); r.WV = a(32, 2); r.AT = a(16, 2)
    r.n = p
    return r

def mfma(d, a, b, c):
    return "v_mfma_f32_32x32x16_bf16 %s, %s, %s, %s" % (vr(d, 16), vr(a, 4), vr(b, 4), "0" if c is None else vr(c, 16))
def smf(d, a, b, idx, abid=0):
    return "v_smfmac_f32_32x32x32_bf16 %s, %s, %s, %s%s" % (vr(d, 16), vr(a, 4), vr(b, 8), vr(idx), " abid:1" if abid else "")
SOFF = [0, 64, 256, 320]

def kernel():
    r = alloc()
    assert r.n <= 255, r.n
    SX, SXI, SOFS, SRC, SOUT, SA, SB, SC_ = 28, 32, 36, 40, 44, 48, 52, 56
    sW, sT, sStart, sEnd, sTot, sW0, sNG, sXB, sREC, sFirst, sBin, sMag, sBLK, sXT, sTag, sTagH, sSpin, sLim, sKm, sKx = range(60, 80)
    sINC = 80; sINC2 = 82; sSO = 84; sTagB = 87; sE2 = 88; sRET = 90; sM0 = 4; sM1 = 6; sC0 = 8; sCB = 89
    ROT = int(opts.get('rot', 0)); MARG = int(opts.get('marg', 25))
    lane = r.LANE
    c0, c1, c2 = r.TMP, r.TMP + 1, r.TMP + 2
    MAG = -(-(1 << 41) // 671)
    for t in range(2049):
        n = t * 8192 + 670
        assert (n * MAG) >> 41 == n // 671
    def tile_range():
        e("s_lshl_b32 s3, %s, 13" % sr(sT)); e("s_add_u32 s3, s3, 670")
        e("s_mul_hi_u32 %s, s3, %s" % (sr(sStart), sr(sMag))); e("s_lshr_b32 %s, %s, 9" % (sr(sStart), sr(sStart)))
        e("s_add_u32 s3, s3, 8192")
        e("s_mul_hi_u32 %s, s3, %s" % (sr(sEnd), sr(sMag))); e("s_lshr_b32 %s, %s, 9" % (sr(sEnd), sr(sEnd)))
    L.append(".globl %s" % KN); L.append(".p2align 8"); L.append(".type %s,@function" % KN); lab(KN)
    e("s_load_dwordx16 s[4:19], s[0:1], 0")
    e("s_load_dwordx8 s[20:27], s[0:1], 64")
    e("s_cmp_gt_u32 s2, 255")
    e("s_cbranch_scc1 K_END")
    e("s_setprio 3")
    mark(1)
    stamp("rt0", True); stamp("start")
    q = r.X
    TID = q; T16 = q + 1; T32 = q + 2; ONE = q + 3; ZER = q + 4
    DST = q + 8
    SRCV = q + 16
    EA = q + 24
    HA = q + 56
    RK = q + 64
    CN = q + 72
    ST = q + 76
    PC_ = q + 80
    tA, tB, tC, tD, tE, tF = [q + 84 + i for i in range(6)]
    EP = q + 90
    T16B = q + 92; T32B = q + 93
    assert q + 94 <= r.WB
    WRAW = r.AT
    WCR = r.ETA
    e("v_mov_b32 %s, v0" % vr(TID))
    e("v_lshrrev_b32 %s, 6, v0" % vr(tA))
    e("v_lshlrev_b32 %s, 4, v0" % vr(T16))
    e("v_readfirstlane_b32 %s, %s" % (sr(sW), vr(tA)))
    e("v_lshlrev_b32 %s, 5, v0" % vr(T32))
    e("v_and_b32 %s, 63, v0" % vr(lane))
    e("v_add_u32 %s, 8192, %s" % (vr(T16B), vr(T16)))
    e("v_add_u32 %s, 16384, %s" % (vr(T32B), vr(T32)))
    for i in range(4): e("v_mov_b32 %s, 0" % vr(ZER + i))
    e("v_mov_b32 %s, 1" % vr(ONE))
    e("ds_write_b128 %s, %s offset:%d" % (vr(T16), vr(ZER, 4), HIST))
    e("s_min_u32 s3, s2, %d" % (NC - 1))
    e("s_mul_i32 s92, s3, %d" % (CH * 4))
    e("s_lshl_b32 s93, s92, 1")
    e("s_cmp_lt_u32 s2, %d" % NC)
    e("s_cselect_b32 s94, %d, 0" % (CH * 4))
    e("s_cselect_b32 s95, %d, 0" % (CH * 8))
    e("s_cselect_b32 s96, %d, 0" % (CH // 4))
    e("s_and_b32 s3, s2, 7"); e("s_lshl_b32 s3, s3, 5"); e("s_lshr_b32 %s, s2, 3" % sr(sBin)); e("s_add_u32 %s, %s, s3" % (sr(sBin), sr(sBin)))
    e("s_lshl_b32 %s, %s, 13" % (sr(sREC), sr(sW)))
    e("s_add_u32 %s, %s, %d" % (sr(sXB), sr(sREC), XBB))
    e("s_add_u32 %s, %s, %d" % (sr(sREC), sr(sREC), RECB))
    e("s_lshl_b32 %s, %s, 3" % (sr(sT), sr(sBin))); e("s_add_u32 %s, %s, %s" % (sr(sT), sr(sT), sr(sW)))
    e("s_mov_b32 %s, 0x%x" % (sr(sMag), MAG))
    tile_range()
    e("s_waitcnt lgkmcnt(0)")
    if int(opts.get('wsb', 0)):
        e("s_add_u32 s26, s26, 0x%x" % (int(opts['wsb']) << 20)); e("s_addc_u32 s27, s27, 0")
    if int(opts.get('tt', 0)):
        e("s_cmp_lt_u32 s2, %d" % int(opts.get('ttw', 248)))
        e("s_cbranch_scc1 TT_SKIP")
        e("s_cmp_lg_u32 %s, 7" % sr(sW))
        e("s_cbranch_scc1 TT_SKIP")
        e("v_lshlrev_b32 %s, 18, %s" % (vr(tA), vr(lane)))
        e("v_lshlrev_b32 %s, 16, %s" % (vr(tB), vr(lane)))
        srd(SA, 26, 0x1000000)
        e("buffer_load_dword %s, %s, %s, 0 offen sc0 sc1" % (vr(r.AT), vr(tA), sr(SA, 4)))
        srd(SA, 4, N_NODES * 128)
        e("buffer_load_dword %s, %s, %s, 0 offen" % (vr(r.AT), vr(tB), sr(SA, 4)))
        srd(SA, 22, N_NODES * 128)
        e("buffer_load_dword %s, %s, %s, 0 offen sc0 sc1" % (vr(r.AT), vr(tB), sr(SA, 4)))
        for p in (12, 14, 16, 18, 20):
            srd(SA, p, 512)
            e("buffer_load_dword %s, %s, %s, 0 offen" % (vr(r.AT), vr(tB), sr(SA, 4)))
        lab("TT_SKIP")
    srd(SA, 10, "s94", "s92")
    e("buffer_load_dwordx4 %s, %s, %s, 0 offen %s" % (vr(DST, 4), vr(T16), sr(SA, 4), LDF))
    e("buffer_load_dwordx4 %s, %s, %s, 0 offen %s" % (vr(DST + 4, 4), vr(T16B), sr(SA, 4), LDF))
    srd(SOUT, 26, 8, "0x%x" % WS_EPO)
    e("buffer_load_dwordx2 %s, %s, %s, 0 offen sc1" % (vr(EP, 2), vr(ZER), sr(SOUT, 4)))
    DF = int(opts.get('df', 2))
    SS, SE = (SB, SC_) if not DF else (SRC, SOFS)
    srd(SS, 8, "s94", "s92")
    srd(SE, 6, "s95", "s93")
    RL = ["buffer_load_dwordx4 %s, %s, %s, 0 offen %s" % (vr(SRCV, 4), vr(T16), sr(SS, 4), LDF),
          "buffer_load_dwordx4 %s, %s, %s, 0 offen %s" % (vr(SRCV + 4, 4), vr(T16B), sr(SS, 4), LDF)]
    for k in (2, 3, 0, 1):
        RL.append("buffer_load_dwordx4 %s, %s, %s, 0 offen offset:%d %s" % (vr(EA + 8 * k, 4), vr(T32B if k >> 1 else T32), sr(SE, 4), 16 * (k & 1), LDF))
    NE = int(opts.get('ne', 2))
    NE2 = int(opts.get('ne2', 0))
    for _ in range(NE): e(RL.pop(0))
    def rest_loads():
        for t in RL: e(t)
        if DF:
            srd(SOFS, 26, 256 * 8192, "0x%x" % WS_OFF)
            srd(SRC, 26, NC * CH, stride=16)
    if DF == 0: rest_loads()
    e("v_cmp_gt_u32 vcc, s96, %s" % vr(TID))
    e("s_mov_b64 s[92:93], vcc")
    e("v_add_u32 %s, 512, %s" % (vr(tA), vr(TID)))
    e("v_cmp_gt_u32 vcc, s96, %s" % vr(tA))
    e("s_mov_b64 s[94:95], vcc")
    e("s_and_b32 s3, %s, 3" % sr(sW))
    e("s_cmp_eq_u32 s3, 1"); e("s_cselect_b32 s12, s18, s12"); e("s_cselect_b32 s13, s19, s13")
    e("s_cmp_eq_u32 s3, 2"); e("s_cselect_b32 s12, s14, s12"); e("s_cselect_b32 s13, s15, s13")
    e("s_cmp_eq_u32 s3, 3"); e("s_cselect_b32 s12, s20, s12"); e("s_cselect_b32 s13, s21, s13")
    srd(SA, 12, 8192)
    srd(SB, 16, 512)
    srd(SX, 4, N_NODES * 128)
    H = r.SO
    XT0, XT1, J4, L16 = r.RD, r.RD + 1, r.RD + 2, r.RD + 3
    e("v_lshrrev_b32 %s, 5, %s" % (vr(H), vr(lane)))
    e("v_and_b32 %s, 31, %s" % (vr(J4), vr(lane)))
    e("v_lshlrev_b32 %s, 2, %s" % (vr(J4), vr(J4)))
    e("v_lshlrev_b32 %s, 4, %s" % (vr(L16), vr(lane)))
    e("v_lshrrev_b32 %s, 3, %s" % (vr(tA), vr(lane)))
    e("v_xor_b32 %s, %s, %s" % (vr(tB), vr(tA), vr(lane)))
    e("v_and_b32 %s, 7, %s" % (vr(tB), vr(tB)))
    e("v_lshlrev_b32 %s, 4, %s" % (vr(tB), vr(tB)))
    e("v_add_u32 %s, %s, %s" % (vr(tA), sr(sStart), vr(tA)))
    e("v_sub_u32 %s, %s, %s" % (vr(tC), vr(tA), vr(H)))
    e("v_add_u32 %s, 8, %s" % (vr(tC), vr(tC)))
    e("v_lshl_add_u32 %s, %s, 7, %s" % (vr(XT0), vr(tA), vr(tB)))
    e("v_lshl_add_u32 %s, %s, 7, %s" % (vr(XT1), vr(tC), vr(tB)))
    def late_loads():
        e("s_cmp_lt_u32 %s, 4" % sr(sW))
        e("s_cbranch_scc1 LATE_B")
        e("s_and_b32 s93, %s, 3" % sr(sW)); e("s_lshl_b32 s93, s93, 14")
        e("s_add_u32 m0, s93, %d" % XBB)
        e("s_mov_b32 s3, 4096")
        for k in range(4):
            e("buffer_load_dwordx4 %s, %s, 0 offen offset:%d %s lds" % (vr(L16), sr(SA, 4), k * 1024, opts.get('wf', '')))
        e("s_add_u32 m0, s93, %d" % (XBB + 8192))
        e("s_nop 0")
        for k in range(4):
            e("buffer_load_dwordx4 %s, %s, s3 offen offset:%d %s lds" % (vr(L16), sr(SA, 4), k * 1024, opts.get('wf', '')))
        if XPF:
            e("s_lshr_b32 s3, s2, 3"); e("s_mul_i32 s3, s3, %d" % (782 * 128))
            e("s_lshr_b32 s94, s93, 1"); e("s_mul_i32 s94, s94, %d" % XPF); e("s_add_u32 s3, s3, s94")
            e("v_lshl_add_u32 %s, %s, 7, s3" % (vr(tF), vr(lane)))
            for k in range(XPF):
                e("buffer_load_dword %s, %s, %s, 0 offen" % (vr(tE), vr(tF), sr(SX, 4)))
                if k + 1 < XPF: e("v_add_u32 %s, 8192, %s" % (vr(tF), vr(tF)))
        lab("LATE_B")
        e("s_mov_b32 exec_hi, 0")
        for i in range(4):
            e("buffer_load_dword %s, %s, %s, 0 offen offset:%d %s" % (vr(WCR + i), vr(J4), sr(SB, 4), i * 128, opts.get('wf', '')))
        e("s_mov_b64 exec, -1")
        if 'X' not in opts.get('pfx', ''): xt_loads()
    def xt_loads():
        e("s_lshl_b32 s3, %s, 11" % sr(sW))
        e("s_add_u32 m0, s3, %d" % XTB)
        e("s_nop 0")
        e("buffer_load_dwordx4 %s, %s, 0 offen %s lds" % (vr(XT0), sr(SX, 4), opts.get('xtf', '')))
        e("s_add_u32 m0, s3, %d" % (XTB + 1024))
        e("s_nop 0")
        e("buffer_load_dwordx4 %s, %s, 0 offen %s lds" % (vr(XT1), sr(SX, 4), opts.get('xtf', '')))
    e("s_mul_i32 s3, s2, %d" % (CH * 16))
    NLATE = 0
    srd(SC_, 26, CH * 16, "s3")
    if not DF: srd(SOFS, 26, 256 * 8192, "0x%x" % WS_OFF)
    srd(SXI, 4, N_NODES, stride=128, sub="3072")
    if not DF: srd(SRC, 26, NC * CH, stride=16)
    PFX = opts.get('pfx', '')
    NPF = 0
    if PFX:
        e("v_lshlrev_b32 %s, 7, %s" % (vr(tA), vr(lane)))
    if 'c' in PFX or 'w' in PFX:
        e("s_cmp_lt_u32 s2, 248")
        e("s_cbranch_scc1 PF_SKIP")
        if 'c' in PFX:
            e("s_getpc_b64 s[96:97]")
            lab("PCREF")
            e("s_and_b32 s3, %s, 1" % sr(sW)); e("s_lshl_b32 s3, s3, 13")
            e("v_add_u32 %s, s3, %s" % (vr(tB), vr(tA)))
            e("v_min_u32 %s, K_END-PCREF, %s" % (vr(tB), vr(tB)))
            e("s_cmp_lt_u32 %s, 2" % sr(sW)); e("s_cselect_b64 exec, -1, 1")
            e("global_load_dword %s, %s, s[96:97]" % (vr(r.AT), vr(tB)))
        if 'w' in PFX:
            e("s_cmp_gt_u32 %s, 3" % sr(sW)); e("s_cselect_b64 exec, -1, 1")
            e("buffer_load_dword %s, %s, %s, 0 offen" % (vr(r.AT), vr(tA), sr(SA, 4)))
            e("s_mov_b64 exec, 15")
            e("buffer_load_dword %s, %s, %s, 0 offen" % (vr(r.AT), vr(tA), sr(SB, 4)))
        e("s_mov_b64 exec, -1")
        lab("PF_SKIP")
    if 'X' in PFX:
        xt_loads()
        NPF += 2
    if 'x' in PFX:
        e("s_mov_b64 exec, 0x01010101"); e("s_mov_b32 exec_hi, 0x01010101")
        e("buffer_load_dword %s, %s, %s, 0 offen" % (vr(r.AT), vr(XT0), sr(SX, 4)))
        e("buffer_load_dword %s, %s, %s, 0 offen" % (vr(r.AT), vr(XT1), sr(SX, 4)))
        e("s_mov_b64 exec, -1")
        NPF += 2
    if 's' in PFX:
        e("s_mov_b64 exec, 1")
        e("buffer_load_dword %s, %s, %s, 0 offen sc0 sc1" % (vr(r.AT), vr(T32B), sr(SC_, 4)))
        e("s_mov_b64 exec, -1")
        NPF += 1
    e("s_mov_b32 %s, 1024" % sr(sINC)); e("s_mov_b32 %s, 1024" % sr(sINC + 1))
    e("s_mov_b32 %s, 256" % sr(sINC2)); e("s_mov_b32 %s, 1024" % sr(sINC2 + 1))
    e("s_mov_b32 %s, 3072" % sr(sSO)); e("s_mov_b32 %s, 2048" % sr(sSO + 1)); e("s_mov_b32 %s, 1024" % sr(sSO + 2))
    e("s_mov_b32 %s, %d" % (sr(sLim), NC * CH))
    e("s_mov_b32 %s, 0" % sr(sW0)); e("s_mov_b32 %s, 1" % sr(sFirst)); e("s_mov_b32 %s, %d" % (sr(sSpin), SPINMAX))
    e("v_mov_b32 %s, 0x%x" % (vr(tA), (1 << 4) | (2 << 8) | (1 << 14) | (2 << 18)))
    e("v_lshlrev_b32 %s, 1, %s" % (vr(tB), vr(lane)))
    e("v_bfe_u32 %s, %s, %s, 2" % (vr(tA), vr(tA), vr(tB)))
    e("v_mul_u32_u24 %s, 0x8001, %s" % (vr(tA), vr(tA)))
    e("v_and_b32 %s, 0x10001, %s" % (vr(tA), vr(tA)))
    e("v_mul_u32_u24 %s, 0x3f80, %s" % (vr(tA), vr(tA)))
    e("v_lshlrev_b32 %s, 2, %s" % (vr(tB), vr(lane)))
    e("s_mov_b64 exec, 0x3ff")
    e("ds_write_b32 %s, %s offset:%d" % (vr(tB), vr(tA), TS))
    e("s_mov_b64 exec, -1")
    e("v_mul_u32_u24 %s, 140, %s" % (vr(tC), vr(lane)))
    e("v_lshrrev_b32 %s, 7, %s" % (vr(tC), vr(tC)))
    e("v_lshlrev_b32 %s, 19, %s" % (vr(tC), vr(tC)))
    e("v_or_b32 %s, 0x80ffff, %s" % (vr(tC), vr(tC)))
    e("s_mov_b64 exec, 0x3fff")
    e("ds_write_b32 %s, %s offset:%d" % (vr(tB), vr(tC), UTB))
    e("s_mov_b64 exec, -1")
    e("v_mul_u32_u24 %s, 11, %s" % (vr(tA), vr(lane)))
    e("v_lshrrev_b32 %s, 5, %s" % (vr(tA), vr(tA)))
    e("v_mad_i32_i24 %s, %s, -3, %s" % (vr(tB), vr(tA), vr(lane)))
    e("v_add_u32 %s, 1, %s" % (vr(tB), vr(tB)))
    e("v_lshl_add_u32 %s, %s, 1, 20" % (vr(tA), vr(tA)))
    e("v_lshlrev_b32 %s, %s, %s" % (vr(tC), vr(tA), vr(tB)))
    e("v_and_b32 %s, 3, %s" % (vr(tA), vr(lane)))
    e("v_add_u32 %s, 1, %s" % (vr(tA), vr(tA)))
    e("v_and_b32 %s, 12, %s" % (vr(tB), vr(lane)))
    e("v_lshl_add_u32 %s, %s, 1, 3" % (vr(tB), vr(tB)))
    e("v_lshlrev_b32 %s, %s, %s" % (vr(tD), vr(tB), vr(tA)))
    e("v_lshlrev_b32 %s, 3, %s" % (vr(tA), vr(lane)))
    e("v_xor_b32 %s, 0x80, %s" % (vr(tA), vr(tA)))
    e("s_mov_b64 exec, 0x10000")
    e("v_mov_b32 %s, 0" % vr(tC)); e("v_mov_b32 %s, 0" % vr(tD))
    e("s_mov_b64 exec, 0x1ffff")
    e("v_or_b32 %s, 0x40000, %s" % (vr(tC), vr(tC)))
    assert tD == tC + 1 and tC % 2 == 0
    e("ds_write_b64 %s, %s offset:%d" % (vr(tA), vr(tC, 2), RTB))
    e("s_mov_b64 exec, -1")
    e("s_mov_b32 %s, %d" % (sr(sKx), 800106))
    if ROT:
        e("s_mul_i32 s3, %s, 123" % sr(sBin)); e("s_lshr_b32 s3, s3, 7"); e("s_sub_u32 s3, %d, s3" % (256 + MARG))
        e("s_and_b32 %s, s3, 255" % sr(sC0))
        e("s_mul_i32 %s, %s, %d" % (sr(sCB), sr(sC0), CH))
    e("v_and_b32 %s, 3, %s" % (vr(c0), vr(lane)))
    e("v_bfe_u32 %s, %s, 4, 1" % (vr(c1), vr(lane)))
    e("v_mul_u32_u24 %s, 0x5555, %s" % (vr(r.SI), vr(c1)))
    e("v_or_b32 %s, 0x8888, %s" % (vr(r.SI), vr(r.SI)))
    e("v_xor_b32 %s, %s, %s" % (vr(c2), vr(c0), vr(H)))
    e("v_lshl_or_b32 %s, %s, 2, %s" % (vr(c2), vr(c1), vr(c2)))
    e("v_lshlrev_b32 %s, 4, %s" % (vr(r.XI + 1), vr(c2)))
    e("v_mov_b32 %s, %s" % (vr(r.XI + 3), vr(r.XI + 1)))
    e("v_xor_b32 %s, 32, %s" % (vr(r.XI + 5), vr(r.XI + 1)))
    e("v_mov_b32 %s, %s" % (vr(r.XI + 7), vr(r.XI + 5)))
    e("v_bfe_u32 %s, %s, 3, 2" % (vr(c2), vr(lane)))
    e("v_xor_b32 %s, %s, %s" % (vr(c2), vr(c2), vr(H)))
    e("v_lshlrev_b32 %s, 4, %s" % (vr(r.XA0), vr(c2)))
    e("v_lshl_or_b32 %s, %s, 6, %s" % (vr(r.XA0), vr(c0), vr(r.XA0)))
    e("v_bfe_u32 %s, %s, 3, 1" % (vr(c2), vr(lane)))
    e("v_lshl_or_b32 %s, %s, 9, %s" % (vr(r.XA0), vr(c2), vr(r.XA0)))
    e("v_bfe_u32 %s, %s, 2, 1" % (vr(tA), vr(lane)))
    e("v_lshl_or_b32 %s, %s, 10, %s" % (vr(r.XA0), vr(tA), vr(r.XA0)))
    e("v_lshl_or_b32 %s, %s, 11, %s" % (vr(r.XA0), vr(c1), vr(r.XA0)))
    e("v_xor_b32 %s, 32, %s" % (vr(r.XA1), vr(r.XA0)))
    e("v_add_u32 %s, %s, %s" % (vr(r.XA0), sr(sXB), vr(r.XA0)))
    e("v_add_u32 %s, %s, %s" % (vr(r.XA1), sr(sXB), vr(r.XA1)))
    FA, FU = r.SO + 2, r.SO + 3
    e("v_lshl_or_b32 %s, %s, 1, %s" % (vr(c2), vr(tA), vr(c2)))
    e("v_lshl_or_b32 %s, %s, 1, %s" % (vr(c2), vr(c2), vr(c1)))
    e("v_mad_u32_u24 %s, %s, 3, %s" % (vr(c2), vr(c2), vr(c0)))
    e("v_add_u32 %s, 9, %s" % (vr(c2), vr(c2)))
    e("v_and_b32 %s, 15, %s" % (vr(c2), vr(c2)))
    for dst, src in ((FA, c2), (FU, None)):
        if src is None:
            e("v_and_b32 %s, 15, %s" % (vr(c2), vr(lane)))
        e("v_xor_b32 %s, %s, %s" % (vr(tA), vr(c2), vr(H)))
        e("v_and_b32 %s, 7, %s" % (vr(tA), vr(tA)))
        e("v_lshlrev_b32 %s, 4, %s" % (vr(tA), vr(tA)))
        e("v_lshl_or_b32 %s, %s, 7, %s" % (vr(dst), vr(c2), vr(tA)))
    e("v_lshlrev_b32 %s, 4, %s" % (vr(tA), vr(H)))
    e("v_mov_b32 %s, 0x3f80" % vr(tB))
    e("v_lshlrev_b32 %s, %s, %s" % (vr(r.T + 1), vr(tA), vr(tB)))
    e("v_mov_b32 %s, %s" % (vr(r.T + 2), vr(r.T + 1)))
    e("v_mov_b32 %s, %s" % (vr(r.T + 3), vr(r.T + 1)))
    e("s_lshl_b32 s3, %s, 2" % sr(sW))
    e("v_mov_b32 %s, s3" % vr(tE))
    e("v_and_b32 %s, 7, %s" % (vr(tF), vr(lane)))
    e("v_lshlrev_b32 %s, 2, %s" % (vr(tF), vr(tF)))
    e("s_waitcnt lgkmcnt(0)")
    e("s_barrier")
    if DF == 1: rest_loads()
    if DF == 2:
        for _ in range(NE2): e(RL.pop(0))
    e("s_waitcnt vmcnt(%d)" % (1 + NE + NE2 + NPF if DF == 2 else 7 + NPF))
    stamp("dst")
    mark(6)
    for rd in range(2):
        e("s_mov_b64 exec, s[%d:%d]" % (92 + 2 * rd, 93 + 2 * rd))
        e("s_cbranch_execz P1_A")
        for i in range(4 * rd, 4 * rd + 4):
            e("v_mul_u32_u24 %s, %d, %s" % (vr(DST + i), TMUL, vr(DST + i)))
            e("v_lshrrev_b32 %s, 14, %s" % (vr(HA + i), vr(DST + i)))
            e("v_and_b32 %s, 0x1ffc, %s" % (vr(HA + i), vr(HA + i)))
        for i in range(4 * rd, 4 * rd + 4):
            e("ds_add_rtn_u32 %s, %s, %s offset:%d" % (vr(RK + i), vr(HA + i), vr(ONE), HIST))
    lab("P1_A")
    e("s_mov_b64 exec, -1")
    if DF == 2: rest_loads()
    for i in range(8):
        d = DST + i
        e("v_and_b32 %s, 0xffff, %s" % (vr(d), vr(d)))
        e("v_mul_hi_u32_u24 %s, %s, %s" % (vr(d), sr(sKx), vr(d)))
        e("v_lshlrev_b32 %s, 2, %s" % (vr(d), vr(d)))
    for i in range(8):
        e("ds_read_b32 %s, %s offset:%d" % (vr(DST + i), vr(DST + i), UTB))
    key = ["s_nop 0"] * 64
    e("s_waitcnt lgkmcnt(0)")
    e("s_barrier")
    stamp("hist")
    e("ds_read_b128 %s, %s offset:%d" % (vr(CN, 4), vr(T16), HIST))
    e("s_waitcnt lgkmcnt(0)")
    e("v_add_u32 %s, %s, %s" % (vr(ST + 2), vr(CN), vr(CN + 1)))
    e("v_add_u32 %s, %s, %s" % (vr(ST + 3), vr(ST + 2), vr(CN + 2)))
    e("v_add_u32 %s, %s, %s" % (vr(tA), vr(ST + 3), vr(CN + 3)))
    e("v_mov_b32 %s, %s" % (vr(tB), vr(tA)))
    scan64("v_add_u32", tB)
    e("s_mov_b32 exec_lo, 0"); e("s_mov_b32 exec_hi, 0x80000000")
    e("ds_write_b32 %s, %s offset:%d" % (vr(tE), vr(tB), WTOT))
    e("s_mov_b64 exec, -1")
    e("s_waitcnt vmcnt(%d)" % (6 + NLATE + NPF))
    e("v_readfirstlane_b32 %s, %s" % (sr(sTag), vr(EP)))
    e("v_readfirstlane_b32 %s, %s" % (sr(sE2), vr(EP + 1)))
    e(key.pop(0)); e(key.pop(0))
    e("s_mul_i32 %s, %s, 1664525" % (sr(sTag), sr(sTag))); e("s_add_u32 %s, %s, 1013904223" % (sr(sTag), sr(sTag)))
    e("s_mul_i32 %s, %s, 22695477" % (sr(sE2), sr(sE2))); e("s_add_u32 %s, %s, 0x9e3779b9" % (sr(sE2), sr(sE2)))
    e("s_and_b32 %s, %s, 0xffff0000" % (sr(sTagH), sr(sE2)))
    e("s_lshr_b32 %s, %s, 24" % (sr(sTagB), sr(sE2)))
    e("s_and_b32 %s, %s, 0xff000000" % (sr(sKm), sr(sE2)))
    e("s_mov_b32 %s, 0xffff" % sr(sKx))
    e("s_waitcnt lgkmcnt(0)")
    e("s_barrier")
    e("ds_read_b32 %s, %s offset:%d" % (vr(tC), vr(tF), WTOT))
    e("v_mov_b32 %s, %s" % (vr(PC_ + 3), sr(sTag)))
    e("s_waitcnt lgkmcnt(0)")
    e("v_mov_b32 %s, %s" % (vr(tD), vr(tC)))
    for sh in (1, 2, 4):
        e(key.pop(0)); e(key.pop(0))
        e("v_add_u32_dpp %s, %s, %s row_shr:%d row_mask:0xf bank_mask:0xf" % (vr(tD), vr(tD), vr(tD), sh))
    e("v_sub_u32 %s, %s, %s" % (vr(tD), vr(tD), vr(tC)))
    e(key.pop(0))
    e("v_readlane_b32 s3, %s, %s" % (vr(tD), sr(sW)))
    e("s_lshl_b32 s91, s2, 13")
    e("s_nop 0")
    e("v_add_u32 %s, s3, %s" % (vr(tB), vr(tB)))
    e("v_sub_u32 %s, %s, %s" % (vr(ST), vr(tB), vr(tA)))
    e("v_add_u32 %s, %s, %s" % (vr(ST + 1), vr(ST), vr(CN)))
    e("v_add_u32 %s, %s, %s" % (vr(ST + 2), vr(ST), vr(ST + 2)))
    e("v_add_u32 %s, %s, %s" % (vr(ST + 3), vr(ST), vr(ST + 3)))
    e("v_lshl_or_b32 %s, %s, 16, %s" % (vr(PC_), vr(ST + 1), vr(ST)))
    e("v_lshl_or_b32 %s, %s, 16, %s" % (vr(PC_ + 1), vr(ST + 3), vr(ST + 2)))
    e("v_or_b32 %s, %s, %s" % (vr(PC_ + 2), sr(sTagH), vr(tB)))
    PUB = int(opts.get('pub', 0))
    pub = "buffer_store_dwordx4 %s, %s, %s, s91 offen %s" % (vr(PC_, 4), vr(T16), sr(SOFS, 4), STF)
    if PUB == 0: e(pub)
    for i in range(4): e("v_lshlrev_b32 %s, 4, %s" % (vr(ST + i), vr(ST + i)))
    e("ds_write_b128 %s, %s offset:%d" % (vr(T16), vr(ST, 4), HIST))
    e("s_waitcnt lgkmcnt(0)")
    e("s_barrier")
    stamp("scan")
    mark(5)
    for i in range(8):
        e("ds_read_b32 %s, %s offset:%d" % (vr(HA + i), vr(HA + i), HIST))
    e("s_waitcnt vmcnt(%d)" % (NLATE + (PUB == 0)))
    stamp("inputs")
    mark(9)
    def assemble(rd):
        for k in range(2 * rd, 2 * rd + 2):
            e("v_mov_b32 %s, %s" % (vr(EA + 8 * k + 4), vr(EA + 8 * k + 2)))
            e("v_mov_b32 %s, %s" % (vr(EA + 8 * k + 5), vr(EA + 8 * k + 3)))
        for i in range(4 * rd, 4 * rd + 4):
            e("v_bitop3_b32 %s, %s, %s, %s bitop3:0x96" % (vr(EA + 4 * i + 2), vr(DST + i), vr(SRCV + i), sr(sKm)))
            e("v_mov_b32 %s, %s" % (vr(EA + 4 * i + 3), sr(sTag)))
    for rd in range(2):
        e("s_mov_b64 exec, s[%d:%d]" % (92 + 2 * rd, 93 + 2 * rd))
        e("s_cbranch_execz P1_B")
        assemble(rd)
        e("s_waitcnt lgkmcnt(4)")
        for i in range(4 * rd, 4 * rd + 4):
            e("v_lshl_add_u32 %s, %s, 4, %s" % (vr(HA + i), vr(RK + i), vr(HA + i)))
        for i in range(4 * rd, 4 * rd + 4):
            e("ds_write_b128 %s, %s offset:%d" % (vr(HA + i), vr(EA + 4 * i, 4), RECB))
    lab("P1_B")
    e("s_mov_b64 exec, -1")
    if PUB == 2: e(pub)
    late_loads()
    PA = tA; PW_ = tB; PC2 = ST
    e("v_bfe_u32 %s, %s, 1, 7" % (vr(tC), vr(TID)))
    e("v_and_b32 %s, 1, %s" % (vr(tD), vr(TID)))
    PA2 = tE
    if ROT:
        e("v_add_u32 %s, %s, %s" % (vr(PA), sr(sC0), vr(tC)))
        e("v_and_b32 %s, 255, %s" % (vr(PA), vr(PA)))
    e("v_lshlrev_b32 %s, 13, %s" % (vr(PA), vr(PA if ROT else tC)))
    e("v_lshl_or_b32 %s, %s, 4, %s" % (vr(PA), vr(tD), vr(PA)))
    e("v_xor_b32 %s, 0x100000, %s" % (vr(PA2), vr(PA)))
    e("s_lshl_b32 s97, %s, 5" % sr(sBin))
    poll = ["buffer_load_dwordx4 %s, %s, %s, s97 offen %s" % (vr(PC_, 4), vr(PA), sr(SOFS, 4), PLF),
            "buffer_load_dwordx4 %s, %s, %s, s97 offen %s" % (vr(PC2, 4), vr(PA2), sr(SOFS, 4), PLF)]
    e("v_lshlrev_b32 %s, 12, %s" % (vr(PW_), vr(tD)))
    e("v_lshl_or_b32 %s, %s, 2, %s" % (vr(PW_), vr(tC), vr(PW_)))
    e("v_add_u32 %s, %d, %s" % (vr(PW_), PCB, vr(PW_)))
    e("v_add_u32 %s, %d, %s" % (vr(c2), XBB + 4096, vr(L16)))
    WL = r.WB; WH = r.WB + 16; WP = r.WV
    e("s_mov_b32 s92, 0x%x" % NEGLOG2E)
    EN = r.G[1]; Z = r.V[1]; P = r.V[1] + 4; D = r.V[1] + 8
    LA, CB, PREV, JB = [r.V[1] + 12 + i for i in range(4)]
    TOT, INC, C512, W4 = r.PS, r.PC, r.PT, r.PE
    M = r.S
    def expand_pre():
        for i in range(4): e("v_mov_b32 %s, 0" % vr(Z + i))
        e("v_lshl_add_u32 %s, %s, 5, %s" % (vr(LA), vr(lane), sr(sREC)))
        e("v_mul_u32_u24 %s, %d, %s" % (vr(CB), 4 * CH, vr(lane)))
        e("v_subrev_u32 %s, %s, %s" % (vr(CB), sr(sW0), vr(CB)))
        if ROT:
            e("s_add_u32 s3, %s, %s" % (sr(sW0), sr(sCB)))
            e("v_lshl_add_u32 %s, %s, 3, s3" % (vr(JB), vr(lane)))
        else:
            e("v_lshl_add_u32 %s, %s, 3, %s" % (vr(JB), vr(lane), sr(sW0)))
        e("v_mov_b32 %s, 512" % vr(C512))
        e("v_mov_b32 %s, 0" % vr(PREV))
        e("v_lshl_add_u32 %s, %s, 2, %s" % (vr(r.PL), vr(lane), sr(sREC)))
        e("s_lshl_b32 s3, %s, 2" % sr(sW))
        e("v_mov_b32 %s, s3" % vr(W4))
    def zero_list():
        e("ds_write_b128 %s, %s offset:%d" % (vr(LA), vr(Z, 4), LOFF))
        e("ds_write_b128 %s, %s offset:%d" % (vr(LA), vr(Z, 4), LOFF + 16))
    expand_pre()
    e("s_lshl_b32 s3, %s, 10" % sr(sW)); e("s_add_u32 s3, s3, %d" % PCB)
    e("v_add_u32 %s, s3, %s" % (vr(r.RI), vr(L16)))
    if int(opts.get('early', 1)) == 2:
        e("s_cmp_lt_u32 %s, 4" % sr(sW))
        e("s_cbranch_scc1 P1_P")
        for t in poll: e(t)
        lab("P1_P")
    e("s_waitcnt lgkmcnt(0)")
    e("s_barrier")
    stamp("scatter")
    mark(7)
    if PUB == 1: e(pub)
    ST8 = int(opts.get('st8', 0))
    EARLY = int(opts.get('early', 1))
    if ST8:
        NS = 7
        if EARLY == 1:
            e("s_cmp_lt_u32 %s, 4" % sr(sW))
            e("s_cbranch_scc1 P1_S")
            for t in poll: e(t)
            lab("P1_S")
        CO = DST
        e("s_cmp_lt_u32 s2, %d" % NC)
        e("s_cselect_b32 %s, %s, 0" % (sr(SC_ + 2), sr(SC_ + 2)))
        for k in range(NS):
            e("ds_read_b128 %s, %s offset:%d" % (vr(CO + 4 * k, 4), vr(T16), RECB + 8192 * k))
        e("v_add_u32 %s, 49152, %s" % (vr(T32), vr(T16)))
        for k in range(NS):
            if k < NS - 1: e("s_mov_b32 s3, %d" % (8192 * k))
            e("s_waitcnt lgkmcnt(%d)" % (NS - 1 - k))
            if k < NS - 1: e("buffer_store_dwordx4 %s, %s, %s, s3 offen %s" % (vr(CO + 4 * k, 4), vr(T16), sr(SC_, 4), STF))
            else: e("buffer_store_dwordx4 %s, %s, %s, 0 offen %s" % (vr(CO + 4 * k, 4), vr(T32), sr(SC_, 4), STF))
        e("s_waitcnt vmcnt(%d)" % NS)
        e("s_cmp_lt_u32 %s, 4" % sr(sW))
        e("s_cbranch_scc1 POLL_DONE")
    else:
        e("s_cmp_gt_u32 %s, 3" % sr(sW))
        e("s_cbranch_scc1 P1_D")
        e("s_cmp_ge_u32 s2, %d" % NC)
        e("s_cbranch_scc1 P1_N")
        if DELAY:
            e("s_and_b32 s3, s2, 15"); e("s_cmp_lg_u32 s3, 5"); e("s_cbranch_scc1 P1_ND")
            for _ in range(DELAY): e("s_sleep 100")
            lab("P1_ND")
        if ROT:
            CO = DST; CA = q + 60
            e("s_mul_i32 s3, s2, 13"); e("s_lshr_b32 s3, s3, 8"); e("s_sub_u32 s3, 13, s3"); e("s_lshl_b32 s3, s3, 12")
            for k in range(13):
                e("s_cmp_eq_u32 s3, %d" % (13 * 4096)); e("s_cselect_b32 s3, 0, s3")
                e("v_add_u32 %s, s3, %s" % (vr(CA + k), vr(T16)))
                e("ds_read_b128 %s, %s offset:%d" % (vr(CO + 4 * k, 4), vr(CA + k), RECB))
                if k < 12: e("s_add_u32 s3, s3, 4096")
                if k >= 3:
                    e("s_waitcnt lgkmcnt(3)")
                    e("buffer_store_dwordx4 %s, %s, %s, 0 offen %s" % (vr(CO + 4 * (k - 3), 4), vr(CA + k - 3), sr(SC_, 4), STF))
            for k in range(10, 13):
                e("s_waitcnt lgkmcnt(%d)" % (12 - k))
                e("buffer_store_dwordx4 %s, %s, %s, 0 offen %s" % (vr(CO + 4 * k, 4), vr(CA + k), sr(SC_, 4), STF))
        else:
            CO = DST
            for k in range(13):
                e("ds_read_b128 %s, %s offset:%d" % (vr(CO + 4 * k, 4), vr(T16), RECB + 4096 * k))
            e("v_add_u32 %s, 49152, %s" % (vr(T32), vr(T16)))
            for k in range(13):
                if k < 12: e("s_mov_b32 s3, %d" % (4096 * k))
                e("s_waitcnt lgkmcnt(%d)" % (12 - k))
                if k < 12: e("buffer_store_dwordx4 %s, %s, %s, s3 offen %s" % (vr(CO + 4 * k, 4), vr(T16), sr(SC_, 4), STF))
                else: e("buffer_store_dwordx4 %s, %s, %s, 0 offen %s" % (vr(CO + 4 * k, 4), vr(T32), sr(SC_, 4), STF))
        e("s_waitcnt vmcnt(13)")
        e("s_branch POLL_DONE")
        lab("P1_N")
        e("s_waitcnt vmcnt(0)")
        e("s_branch POLL_DONE")
        lab("P1_D")
        if EARLY == 1:
            for t in poll: e(t)
    e("v_lshl_add_u32 %s, %s, 10, %s" % (vr(tC), vr(H), vr(J4)))
    e("s_add_u32 s3, s93, %d" % XBB)
    e("v_add_u32 %s, s3, %s" % (vr(tC), vr(tC)))
    if not ST8: e("s_waitcnt vmcnt(%d)" % ((8 if int(opts.get('early', 1)) else 6) + (PUB == 1) + XPF - 2 * ('X' in PFX)))
    mark(12)
    RAW = DST
    for i in range(32):
        e("ds_read_b32 %s, %s offset:%d" % (vr(RAW + i), vr(tC), (i >> 4) * 8192 + ((i >> 3) & 1) * 2048 + (i & 7) * 128))
    e("s_bitcmp0_b32 %s, 0" % sr(sW))
    e("s_cselect_b32 s3, s92, 1.0")
    e("v_add_u32 %s, s93, %s" % (vr(tC), vr(c2)))
    for hf in range(2):
        e("s_waitcnt lgkmcnt(%d)" % (15 if hf == 0 else 4))
        if hf == 0: e("s_nop 0")
        for i in range(16):
            e("v_lshlrev_b32 %s, 16, %s" % (vr(WL + i), vr(RAW + 16 * hf + i)))
            e("v_and_b32 %s, 0xffff0000, %s" % (vr(WH + i), vr(RAW + 16 * hf + i)))
        for i in range(0, 32, 2):
            e("v_pk_mul_f32 %s, %s, s[2:3] op_sel:[0,1] op_sel_hi:[1,1]" % (vr(WL + i, 2), vr(WL + i, 2)))
        for i in range(16):
            e("v_cvt_pk_bf16_f32 %s, %s, %s" % (vr(WP + 16 * hf + i), vr(WL + 2 * i), vr(WL + 2 * i + 1)))
        for f in range(2):
            for s_ in range(2):
                e("ds_write_b128 %s, %s offset:%d" % (vr(tC), vr(WP + 16 * hf + 8 * f + 4 * s_, 4), f * 8192 + (2 * hf + s_) * 1024))
    if not int(opts.get('early', 1)):
        for t in poll: e(t)
    mark(13)
    if ST8: e("s_branch POLL_1")
    lab("POLL")
    e("s_waitcnt vmcnt(0)")
    lab("POLL_1")
    e("v_xor_b32 %s, %s, %s" % (vr(c0), sr(sTagH), vr(PC_ + 2)))
    e("v_xor_b32 %s, %s, %s" % (vr(c1), sr(sTagH), vr(PC2 + 2)))
    e("v_or_b32 %s, %s, %s" % (vr(c0), vr(c0), vr(c1)))
    e("v_lshrrev_b32 %s, 16, %s" % (vr(c0), vr(c0)))
    e("v_xor_b32 %s, %s, %s" % (vr(c1), sr(sTag), vr(PC_ + 3)))
    e("v_xor_b32 %s, %s, %s" % (vr(tD), sr(sTag), vr(PC2 + 3)))
    e("v_or3_b32 %s, %s, %s, %s" % (vr(c0), vr(c0), vr(c1), vr(tD)))
    e("v_cmp_ne_u32 vcc, 0, %s" % vr(c0))
    e("s_cmp_eq_u64 vcc, 0")
    e("s_cbranch_scc1 POLL_OK")
    e("s_mov_b64 exec, vcc")
    for t in poll: e(t)
    e("s_sub_u32 %s, %s, 1" % (sr(sSpin), sr(sSpin)))
    e("s_cbranch_scc0 POLL")
    e("s_endpgm")
    lab("POLL_OK")
    e("s_mov_b64 exec, -1")
    for pc in (PC_, PC2):
        e("v_alignbit_b32 %s, %s, %s, 16" % (vr(pc + 3), vr(pc + 1), vr(pc)))
        e("v_alignbit_b32 %s, %s, %s, 16" % (vr(pc + 2), vr(pc + 2), vr(pc + 1)))
    for pc, off in ((PC_, 0), (PC2, 512)):
        for k, v in enumerate([pc, pc + 3, pc + 1, pc + 2]):
            e("ds_write_b32 %s, %s offset:%d" % (vr(PW_), vr(v), k * 1024 + off))
    lab("POLL_DONE")
    stamp("role")
    mark(10, 11)
    e("s_waitcnt lgkmcnt(0)")
    e("s_barrier")
    stamp("offs")
    mark(4)
    wr = []
    WA = r.G[0]; WU = r.G[1]
    for m, base in enumerate([WA, WU, r.WB, r.WV]):
        for u in range(8):
            uu = m * 8 + u
            wr.append("ds_read_b128 %s, %s offset:%d" % (vr(base + 4 * u, 4), vr(c2), (uu >> 2) * 8192 + (uu & 3) * 1024))
    e("ds_read_b128 %s, %s" % (vr(EN, 4), vr(r.RI)))
    zero_list()
    for t in wr[16:24]: e(t)
    e("s_or_b32 s3, s2, %s" % sr(sW))
    e("s_cbranch_scc1 NOBUMP")
    e("v_mov_b32 %s, %s" % (vr(r.RD), sr(sTag))); e("v_mov_b32 %s, %s" % (vr(r.RD + 1), sr(sE2)))
    e("v_lshlrev_b32 %s, 3, %s" % (vr(c1), vr(lane)))
    e("buffer_store_dwordx2 %s, %s, %s, 0 offen sc0 sc1" % (vr(r.RD, 2), vr(c1), sr(SOUT, 4)))
    lab("NOBUMP")
    e("s_waitcnt lgkmcnt(10)")

    def xidx(g, t): return "ds_read_u16 %s, %s offset:%d" % (vr(r.XI + 2 * t), vr(r.PS), g * 512 + SOFF[t] + 8)
    def xm0(buf): return "s_add_u32 m0, %s, %d" % (sr(sXB), buf * 4096)
    def xdma(t): return "buffer_load_dwordx4 %s, %s, %s idxen offen offset:%d lds" % (vr(r.XI + 2 * t, 2), sr(SXI, 4), sr(sSO + t) if t < 3 else "0", t * 1024)
    def xread(buf, k): return "ds_read_b128 %s, %s offset:%d" % (vr(r.X + 4 * k, 4), vr(r.XA1 if k & 1 else r.XA0), buf * 4096 + (k >> 1) * 256)
    def t0read(g): return "ds_read_b32 %s, %s offset:%d" % (vr(r.T), vr(r.PE), g * 512)
    def tiread(g): return "ds_read_b32 %s, %s offset:%d" % (vr(r.TI), vr(r.PT), g * 512 + 8)
    def soread(g, t): return "ds_read_u8 %s, %s offset:%d" % (vr(r.SO + t), vr(r.PC), g * 512 + SOFF[t] + 12)
    def trread(t): return "ds_read_b64_tr_b16 %s, %s offset:%d" % (vr(r.S + 2 * t, 2), vr(r.SO + t), TS)
    def riread(blk, ri=None): return "ds_read_b32 %s, %s offset:%d" % (vr(r.RI if ri is None else ri), vr(r.PL), LOFF + blk * 256)
    def rload(rd, ri, fl=None): return "buffer_load_dwordx4 %s, %s, %s, 0 idxen %s" % (vr(rd, 4), vr(ri), sr(SRC, 4), RLF if fl is None else fl)
    retries = []
    def check(rd, ri, name, tmp):
        retries.append((name, rd, ri))
        return ["v_cmp_gt_u32 %s, %s, %s" % (sr(sM0, 2), sr(sLim), vr(ri)),
                name + ":",
                "v_cmp_ne_u32 vcc, %s, %s" % (sr(sTag), vr(rd + 3)),
                "v_cmp_ne_u32_sdwa %s, %s, %s src0_sel:BYTE_3 src1_sel:DWORD" % (sr(sM1, 2), vr(rd + 2), sr(sTagB)),
                "v_bfe_u32 %s, %s, 16, 8" % (vr(tmp), vr(rd + 2)),
                "s_or_b64 vcc, vcc, %s" % sr(sM1, 2),
                "s_and_b64 vcc, vcc, %s" % sr(sM0, 2),
                "s_cbranch_scc1 %s_R" % name]
    def keyfix(rd, sel, op=0x72): return "v_bitop3_b32 %s, %s, %s, %s bitop3:0x%x" % (vr(rd + 2), vr(sel), vr(rd + 2), sr(sKx), op)
    def lookup(rd, tmp, sel):
        return ["ds_read_b32 %s, %s offset:%d" % (vr(sel), vr(tmp), RTB),
                "ds_read_b32 %s, %s offset:%d" % (vr(rd + 3), vr(tmp), RTB + 4)]
    def rwrite(rd, blk): return "ds_write_b128 %s, %s offset:%d" % (vr(r.PW), vr(rd, 4), blk * 1024)
    def emit(lst):
        for t in lst:
            if t.endswith(":"): L.append(t)
            else: e(t)
    KX = c2 + 0

    lab("EXPAND")
    sd2 = "dst_sel:DWORD dst_unused:UNUSED_PAD src0_sel:WORD_1 src1_sel:WORD_0"
    sd = "dst_sel:DWORD dst_unused:UNUSED_PAD src0_sel:WORD_0 src1_sel:DWORD"
    for i in range(3): e("v_sub_u32_sdwa %s, %s, %s %s" % (vr(P + 1 + i), vr(EN + i), vr(EN + i), sd2))
    e("v_sub_u32_sdwa %s, %s, %s %s" % (vr(INC), vr(EN + 3), vr(EN + 3), sd2))
    e("v_add_u32 %s, %s, %s" % (vr(P + 2), vr(P + 1), vr(P + 2)))
    e("v_add_u32 %s, %s, %s" % (vr(P + 3), vr(P + 2), vr(P + 3)))
    e("v_add_u32 %s, %s, %s" % (vr(INC), vr(P + 3), vr(INC)))
    fill = ["v_add_u32 %s, %s, %s" % (vr(TOT), sr(sW0), vr(INC))]
    fill += ["v_add_u32_sdwa %s, %s, %s %s" % (vr(D + i), vr(EN + i), vr(CB), sd) for i in range(4)]
    fill += ["v_add_u32 %s, %d, %s" % (vr(D + i), i * CH, vr(D + i)) for i in range(1, 4)]
    fill += ["v_sub_u32 %s, %s, %s" % (vr(P + i), vr(P + i), vr(TOT)) for i in range(1, 4)]
    scan64("v_add_u32", INC, fill)
    e("v_sub_u32 %s, %s, %s" % (vr(P), vr(INC), vr(TOT)))
    e("v_readlane_b32 %s, %s, 63" % (sr(sTot), vr(INC)))
    for i in range(1, 4):
        e("v_add_u32 %s, %s, %s" % (vr(P + i), vr(INC), vr(P + i)))
    for i in range(4):
        e("v_sub_u32 %s, %s, %s" % (vr(D + i), vr(D + i), vr(P + i)))
        e("v_med3_i32 %s, %s, 0, %s" % (vr(P + i), vr(P + i), vr(C512)))
        e("v_lshl_add_u32 %s, %s, 2, %s" % (vr(P + i), vr(P + i), sr(sREC)))
    for i in range(4):
        e("ds_max_u32 %s, %s offset:%d" % (vr(P + i), vr(D + i), LOFF))
    if ROT:
        e("s_sub_u32 s3, %s, %s" % (sr(sTot), sr(sW0))); e("s_min_u32 s3, s3, 512"); e("s_lshl_b32 s3, s3, 2"); e("s_add_u32 s3, s3, %s" % sr(sREC))
        e("v_mov_b32 %s, s3" % vr(P)); e("v_mov_b32 %s, 2.0" % vr(D))
        e("s_mov_b64 exec, 1")
        e("ds_write_b32 %s, %s offset:%d" % (vr(P), vr(D), LOFF))
        e("s_mov_b64 exec, -1")
    e("ds_read_b128 %s, %s offset:%d" % (vr(M, 4), vr(LA), LOFF))
    e("ds_read_b128 %s, %s offset:%d" % (vr(M + 4, 4), vr(LA), LOFF + 16))
    e("s_lshl_b32 s3, %s, 3" % sr(sTot)); e("s_or_b32 s3, s3, %s" % sr(sW))
    e("v_mov_b32 %s, s3" % vr(TOT))
    e("s_mov_b64 exec, 1")
    e("ds_write_b32 %s, %s offset:%d" % (vr(W4), vr(TOT), TOTA))
    e("s_mov_b64 exec, -1")
    e("s_cmp_eq_u32 %s, 0" % sr(sFirst))
    e("s_cbranch_scc1 EXP_B")
    for t in wr[24:32]: e(t)
    e("s_waitcnt lgkmcnt(9)")
    e("s_branch EXP_C")
    lab("EXP_B")
    e("s_waitcnt lgkmcnt(1)")
    lab("EXP_C")
    e("v_max3_u32 %s, %s, %s, %s" % (vr(INC), vr(M), vr(M + 1), vr(M + 2)))
    e("v_max3_u32 %s, %s, %s, %s" % (vr(INC), vr(INC), vr(M + 3), vr(M + 4)))
    e("v_max3_u32 %s, %s, %s, %s" % (vr(INC), vr(INC), vr(M + 5), vr(M + 6)))
    e("v_max_u32 %s, %s, %s" % (vr(INC), vr(INC), vr(M + 7)))
    scan64("v_max_u32", INC, ["v_max_u32 %s, %s, %s" % (vr(M + k), vr(M + k - 1), vr(M + k)) for k in range(1, 8)])
    e("s_nop 1")
    e("v_mov_b32_dpp %s, %s wave_shr:1 row_mask:0xf bank_mask:0xf" % (vr(PREV), vr(INC)))
    for k in range(8):
        e("v_max_u32 %s, %s, %s" % (vr(M + k), vr(PREV), vr(M + k)))
        e("v_add3_u32 %s, %s, %s, %d" % (vr(M + k), vr(M + k), vr(JB), k))
        if ROT:
            e("v_subrev_u32 %s, %d, %s" % (vr(INC), 256 * CH, vr(M + k)))
            e("v_min_u32 %s, %s, %s" % (vr(M + k), vr(INC), vr(M + k)))
    e("ds_write_b128 %s, %s offset:%d" % (vr(LA), vr(M, 4), LOFF))
    e("ds_write_b128 %s, %s offset:%d" % (vr(LA), vr(M + 4, 4), LOFF + 16))
    RI1 = r.TI; RD1 = r.S; F0 = r.XI; F1 = r.XI + 2
    e("v_lshrrev_b32 %s, 3, %s" % (vr(c0), vr(lane)))
    e("v_lshlrev_b32 %s, 2, %s" % (vr(c0), vr(c0)))
    e("v_and_b32 %s, 7, %s" % (vr(c1), vr(lane)))
    e("v_lshlrev_b32 %s, 3, %s" % (vr(r.XI + 4), vr(c1)))
    e("v_lshlrev_b32 %s, 2, %s" % (vr(c1), vr(c1)))
    e("s_sub_u32 s3, 7, %s" % sr(sW)); e("s_sub_u32 s97, %s, 4" % sr(sW))
    e("s_cmp_lt_u32 %s, 4" % sr(sW)); e("s_cselect_b32 s97, s3, s97")
    e("s_waitcnt lgkmcnt(0)")
    def pointers():
        e("v_bfe_u32 %s, %s, 2, 2" % (vr(c0), vr(lane)))
        e("v_lshrrev_b32 %s, 5, %s" % (vr(c1), vr(lane)))
        e("v_lshl_or_b32 %s, %s, 3, %s" % (vr(c0), vr(c1), vr(c0)))
        e("v_lshl_add_u32 %s, %s, 4, %s" % (vr(r.PS), vr(c0), sr(sREC)))
        e("v_and_b32 %s, 3, %s" % (vr(c0), vr(lane)))
        e("v_add_u32 %s, %s, %s" % (vr(r.PC), vr(c0), vr(r.PS)))
        e("v_and_b32 %s, 31, %s" % (vr(c0), vr(lane)))
        e("v_lshl_add_u32 %s, %s, 4, %s" % (vr(r.PT), vr(c0), sr(sREC)))
        e("v_lshl_add_u32 %s, %s, 2, %s" % (vr(r.PE), vr(c1), vr(r.PT)))
        e("v_lshl_add_u32 %s, %s, 4, %s" % (vr(r.PW), vr(lane), sr(sREC)))
        e("s_min_u32 %s, %s, %s" % (sr(sTot), sr(sTot), sr(sLim)))
        e("s_sub_u32 s3, %s, %s" % (sr(sTot), sr(sW0)))
        e("s_min_u32 s3, s3, 512")
        e("s_add_u32 s3, s3, 31")
        e("s_bitcmp0_b32 s3, 4")
        e("s_cselect_b32 %s, 0, -1" % sr(sRET))
        e("s_lshr_b32 s3, s3, 5")
        e("s_max_u32 s3, s3, 1")
        e("s_sub_u32 %s, s3, 1" % sr(sNG))
        e("s_mov_b32 %s, 2" % sr(sBLK))
    e("s_cmp_eq_u32 %s, 0" % sr(sFirst))
    e("s_cbranch_scc1 LATER")
    stamp("expand")
    e("s_barrier")
    e("ds_read_b32 %s, %s offset:%d" % (vr(c0), vr(c0), TOTA))
    e("ds_read_b32 %s, %s offset:%d" % (vr(c1), vr(c1), TOTA))
    for s in wr[8:12]: e(s)
    e("s_waitcnt lgkmcnt(4)")
    e("v_cmp_lt_u32 vcc, %s, %s" % (vr(c1), vr(c0)))
    e(wr[12]); e(wr[13])
    e("v_lshrrev_b64 %s, %s, vcc" % (vr(r.SO, 2), vr(r.XI + 4)))
    e("v_and_b32 %s, 0xff, %s" % (vr(r.SO), vr(r.SO)))
    e("v_bcnt_u32_b32 %s, %s, 0" % (vr(r.SO), vr(r.SO)))
    e("v_cmp_eq_u32 vcc, s97, %s" % vr(r.SO))
    e("s_ff1_i32_b64 s97, vcc")
    e("v_readlane_b32 %s, %s, s97" % (sr(sTot), vr(c1)))
    e("s_lshl_b32 %s, s97, 11" % sr(sXT)); e("s_add_u32 %s, %s, %d" % (sr(sXT), sr(sXT), XTB))
    e("s_lshl_b32 %s, s97, 13" % sr(sREC)); e("s_add_u32 %s, %s, %d" % (sr(sREC), sr(sREC), RECB))
    e("v_lshl_add_u32 %s, %s, 2, %s" % (vr(r.PL), vr(lane), sr(sREC)))
    e(riread(0)); e(riread(1, RI1))
    def xtile(mapreg, dst):
        e("v_add_u32 %s, %s, %s" % (vr(mapreg), sr(sXT), vr(mapreg)))
        tm = [mapreg, c0, c1, r.SO]
        for s in range(1, 4): e("v_xor_b32 %s, %d, %s" % (vr(tm[s]), 32 * s, vr(mapreg)))
        for s in range(4): e("ds_read_b128 %s, %s" % (vr(dst + 4 * s, 4), vr(tm[s])))
    NU = int(opts.get('nu', 8))
    xtile(FU, r.AT)
    RP = int(opts.get('rp', -1)); RP1 = int(opts.get('rp1', RP))
    if RP < 0:
        e("s_waitcnt lgkmcnt(4)")
        e(rload(r.RD, r.RI, RL0))
        if RP1 < 0: e(rload(RD1, RI1, RL0))
    e(wr[14]); e(wr[15])
    xtile(FA, r.X)
    for s in wr[0:8]: e(s)
    WT = r.ACC[0]
    for i in range(4):
        e("v_lshlrev_b32 %s, 16, %s" % (vr(WT + i), vr(WCR + i)))
        e("v_and_b32 %s, 0xffff0000, %s" % (vr(WT + 4 + i), vr(WCR + i)))
    for i in range(8):
        e("v_mul_f32 %s, s92, %s" % (vr(WT + i), vr(WT + i)))
    for i in range(4):
        e("v_cvt_pk_bf16_f32 %s, %s, %s" % (vr(WCR + i), vr(WT + 2 * i), vr(WT + 2 * i + 1)))
    e("s_lshr_b32 %s, %s, 3" % (sr(sTot), sr(sTot)))
    e("s_lshl_b32 %s, %s, 3" % (sr(sT), sr(sBin))); e("s_add_u32 %s, %s, s97" % (sr(sT), sr(sT)))
    ua = []
    for f in range(2):
        for s in range(4):
            ua.append(mfma(r.ACC[f], r.AT + 4 * s, WU + 16 * f + 4 * s, None if s == 0 else r.ACC[f]))
    for f in range(2):
        for s in range(4):
            ua.append(mfma(WU + 16 * f, r.X + 4 * s, WA + 16 * f + 4 * s, None if s == 0 else WU + 16 * f))
    n0 = len(L)
    pointers()
    tile_range()
    e("s_min_u32 %s, %s, %d" % (sr(sEnd), sr(sEnd), N_NODES))
    e("s_sub_u32 s3, %s, %s" % (sr(sEnd), sr(sStart))); e("s_lshl_b32 s3, s3, 7")
    e("s_lshl_b32 s97, %s, 7" % sr(sStart))
    srd(SOUT, 22, "s3", "s97")
    misc = L[n0:]; del L[n0:]
    e("s_waitcnt lgkmcnt(12)")
    for k in range(NU):
        if k == 8: e("s_waitcnt lgkmcnt(0)")
        if k == RP: e(rload(r.RD, r.RI, RL0))
        if k == RP1: e(rload(RD1, RI1, RL0))
        e(ua[k])
        for _ in range(5):
            if misc: L.append(misc.pop(0))
    L.extend(misc)
    e("s_waitcnt lgkmcnt(0)")
    e("s_barrier")
    lab("NOW")
    e("s_mov_b32 m0, %s" % sr(sXB))
    e("s_waitcnt vmcnt(1)")
    emit(check(r.RD, r.RI, "FX0", c0))
    e("v_xor_b32 %s, 0xffff, %s" % (vr(r.RD + 2), vr(r.RD + 2)))
    e(rwrite(r.RD, 0))
    for t in range(4): e(xidx(0, t))
    emit(lookup(r.RD, c0, c1))
    e(riread(2))
    stamp("rec")
    mark(8)
    e("s_waitcnt lgkmcnt(3)")
    for t in range(4): e(xdma(t))
    for t in range(4): e(xidx(1, t))
    e("s_cmp_eq_u32 %s, 0" % sr(sFirst))
    e("s_cbranch_scc1 NOW2")
    for t in ua[NU:]: e(t)
    lab("NOW2")
    e("s_waitcnt vmcnt(4)")
    emit(check(RD1, RI1, "FX1", c0))
    emit(lookup(RD1, c0, c2))
    e("s_waitcnt lgkmcnt(2)")
    e(keyfix(r.RD, c1, 0xd8))
    e("ds_write_b64 %s, %s offset:8" % (vr(r.PW), vr(r.RD + 2, 2)))
    e(t0read(0)); e(tiread(0))
    e(xm0(1))
    X1L = int(opts.get('x1l', 0))
    def x1():
        for t in range(4): e(xdma(t))
        e(rload(r.RD, r.RI, RL2))
        for t in range(4): e(xidx(2, t))
    e("s_cmp_eq_u32 %s, 0" % sr(sFirst))
    e("s_cbranch_scc1 NOW3")
    for i in range(8):
        e("v_cvt_pk_bf16_f32 %s, %s, %s" % (vr(r.U + i), vr(r.ACC[0] + i), vr(r.ACC[1] + i)))
    e("s_mov_b32 s3, 0x358637bd")
    for f in range(2):
        for i in range(16): e("v_mov_b32 %s, %s" % (vr(r.ACC[f] + i), "s3" if i < 8 else "0"))
    for f in range(2):
        for i in range(8):
            e("v_cvt_pk_bf16_f32 %s, %s, %s" % (vr(r.AT + 8 * f + i), vr(WU + 16 * f + 2 * i) if i & 1 else "0", vr(WU + 16 * f + 2 * i + 1)))
    e("s_mov_b32 exec_hi, 0")
    for f in range(2):
        e("v_mov_b32 %s, %s" % (vr(r.AT + 8 * f), vr(WCR + 2 * f)))
        e("v_mov_b32 %s, %s" % (vr(r.AT + 8 * f + 4), vr(WCR + 2 * f + 1)))
    e("s_mov_b64 exec, -1")
    lab("NOW3")
    e("s_waitcnt lgkmcnt(2)")
    e(keyfix(RD1, c2))
    e(rwrite(RD1, 1))
    if not X1L: x1()
    stamp("atile")
    e("s_waitcnt vmcnt(%d)" % (0 if X1L else 5))
    stamp("x0")
    for k in range(4): e(xread(0, k))
    if X1L: x1()
    e(xm0(0))
    for s_ in range(4):
        e("s_waitcnt lgkmcnt(%d)" % (0 if s_ == 3 else 3 - s_ + 4 * X1L))
        e(mfma(r.G[0], r.X + 4 * s_, r.WB + 4 * s_, None if s_ == 0 else r.G[0]))
    e(xdma(0))
    e(smf(r.G[0], r.T, r.AT, r.TI, 1))
    e(xdma(1))
    e("s_nop 6")
    stamp("loop"); stamp("rtloop", True)
    if STAMP:
        e("s_add_u32 s100, %s, 1" % sr(sNG)); e("v_writelane_b32 v%d, s100, 28" % STV)
    mark(3)

    def I(text, lds=None, need=()): return dict(text=text, lds=lds, need=list(need))
    def oct_(base, o):
        o %= 4
        return base[o >> 1] + 8 * (o & 1)
    def C_(o, i): return "v_cvt_pk_bf16_f32 %s, %s, %s" % (vr(oct_(r.V, o) + i), vr(r.ETA + i), vr(oct_(r.V, o) + i))
    def R_(o, i): return "v_rcp_f32 %s, %s" % (vr(r.ETA + i), vr(oct_(r.G, o) + i))
    def E_(o, i): return "v_exp_f32 %s, %s" % (vr(oct_(r.G, o) + i), vr(oct_(r.G, o) + i))
    def A_(o):
        g_ = oct_(r.G, o)
        return ["v_pk_add_f32 %s, %s, 1.0 op_sel_hi:[1,0]" % (vr(g_ + i, 2), vr(g_ + i, 2)) for i in range(0, 8, 2)]
    def M_(o, pk=True):
        v_ = oct_(r.V, o)
        if pk: return ["v_pk_mul_f32 %s, %s, %s" % (vr(v_ + i, 2), vr(v_ + i, 2), vr(r.ETA + i, 2)) for i in range(0, 8, 2)]
        return ["v_mul_f32 %s, %s, %s" % (vr(v_ + i), vr(r.ETA + i), vr(v_ + i)) for i in range(8)]
    def red(f, hi): return smf(r.ACC[f], r.S + 4 * hi, r.V[f] + 8 * hi, r.SI)
    def gch(f): return [mfma(r.G[f], r.X + 4 * k, r.WB + 16 * f + 4 * k, None if k == 0 else r.G[f]) for k in range(4)] + [smf(r.G[f], r.T, r.AT + 8 * f, r.TI, 1)]
    def vch(f): return [mfma(r.V[f], r.X + 4 * k, r.WV + 16 * f + 4 * k, None if k == 0 else r.V[f]) for k in range(4)]
    CUT6 = [0, 3, 6, 10, 14, 18]; CUT5 = [0, 4, 8, 12, 16]
    HALF = int(opts.get('half', 1))
    def sub(s_, g, first=False):
        nb = (g + 1) & 1
        tail = []
        if s_ == 0:
            mm = [I(red(0, 0), need=['S3']), I(red(0, 1))] + [I(t) for t in vch(0)]
            aux = [[], [I(soread(g, 0), lds='SO0')], [I(xdma(2)), I(soread(g, 1), lds='SO1')], [I(xdma(3))],
                   [I(soread(g, 2), lds='SO2')], [I(soread(g, 3), lds='SO3')]]
            if g == 1:
                aux[0] += [I("s_cmp_eq_u32 %s, 0" % sr(sLim))]
                aux[1] = [I("s_cbranch_scc1 WR_S", need=['RT']), I(rwrite(r.RD, 2)), I("WR_S:")] + aux[1]
                aux[4].insert(0, I(rload(r.RD, r.RI), need=['RI', 'SO0']))
        elif s_ == 1:
            mm = [I(t) for t in gch(1)]
            aux = [[I(xidx(g + 3, k), lds='XI%d' % k)] for k in range(4)] + [[I(t0read(g + 1), lds='T0')]]
        elif s_ == 2:
            mm = [I(red(1, 0)), I(red(1, 1))] + [I(t) for t in vch(1)]
            aux = [[I(tiread(g + 1), lds='TI')], [I("s_waitcnt vmcnt(%d)" % (4 if g == 0 else 5), need=['XI3']), I(trread(0), lds='S0')]] + [[I(xread(nb, k), lds='X%d' % k)] for k in range(4)]
            aux[5].insert(0, I("s_waitcnt", need=['X1']))
            dec = I("s_sub_u32 %s, %s, 1" % (sr(sNG), sr(sNG)))
            if g == 0:
                tail = [I(t) for t in check(r.RD, r.RI, "FXP" if first else "FXL", c0)]
                tail += [dec]
                if not first:
                    aux[3].insert(0, I("s_cmp_gt_u32 %s, 7" % sr(sBLK)))
                    aux[4].insert(0, I("s_cselect_b32 %s, 0, %s" % (sr(sLim), sr(sLim))))
            else: aux[4].insert(0, dec)
        else:
            gc = gch(0)
            mm = [I(gc[k], need=['X%d' % k]) for k in range(4)] + [I(gc[4], need=['T0', 'TI'])]
            aux = [[I(trread(1), lds='S1')], [I("s_waitcnt", need=['X3']), I(trread(2), lds='S2')], [I(xm0(nb)), I(trread(3), lds='S3')],
                   [I(xdma(0))], [I("s_waitcnt", need=['S3']), I(xdma(1))]]
            if HALF: aux[3].insert(0, I("s_or_b32 s3, %s, %s" % (sr(sNG), sr(sRET))))
            if g == 0:
                aux[2].append(I(riread(3), lds='RI'))
                aux[0].insert(0, I("s_add_u32 %s, %s, 1" % (sr(sBLK), sr(sBLK))))
                lk = lookup(r.RD, c0, c1)
                aux[0].append(I(lk[0], lds='RT0')); aux[1].append(I(lk[1], lds='RT'))
                tail = [I(keyfix(r.RD, c1), need=['RT'])]
            else:
                tail = [I("v_lshl_add_u64 %s, %s, 0, %s" % (vr(r.PS, 2), vr(r.PS, 2), sr(sINC, 2))),
                        I("v_lshl_add_u64 %s, %s, 0, %s" % (vr(r.PT, 2), vr(r.PT, 2), sr(sINC, 2))),
                        I("v_lshl_add_u64 %s, %s, 0, %s" % (vr(r.PL, 2), vr(r.PL, 2), sr(sINC2, 2)))]
        va = []
        for i in range(8):
            if not (first and s_ < 2): va.append(C_(s_ - 2, i))
            if not (first and s_ < 1): va.append(R_(s_ - 1, i))
            va.append(E_(s_, i))
        cut = CUT6 if len(mm) == 6 else CUT5
        if first and s_ in (0, 2):
            aux = [aux[0] + aux[1] + aux[2]] + aux[3:]; mm = mm[2:]
            cut = [0, 2, 4, 6] if s_ == 0 else [0, 4, 8, 12]
        if first and s_ == 1: cut = [0, 3, 6, 9, 12]
        aux[0].insert(0, I("s_setprio 1"))
        aux[-1].insert(0, I("s_setprio 3"))
        out = []
        for k, t in enumerate(va):
            if k in cut:
                j = cut.index(k); out.append(mm[j]); out.extend(aux[j])
            out.append(I(t))
        out += tail + [I(t) for t in ([] if first and s_ == 0 else M_(s_ - 1)) + A_(s_)]
        if s_ == 2: out.append(I("s_cbranch_scc1 TAIL"))
        return out
    state = dict(issued=[], done=0)
    def run(seq, out):
        issued = state['issued']
        for it in seq:
            n = None
            for tag in it['need']:
                idxs = [k for k, t in enumerate(issued) if t == tag]
                if not idxs: continue
                k = idxs[-1]
                if k >= state['done']:
                    n = len(issued) - 1 - k
                    state['done'] = k + 1
            tx = it['text']
            if n is not None:
                assert n <= 15
                if tx.startswith("s_waitcnt"): tx += " lgkmcnt(%d)" % n
                elif out: e("s_waitcnt lgkmcnt(%d)" % n)
            if out and tx != "s_waitcnt": emit([tx])
            if it['lds']: issued.append(it['lds'])
    cyc = lambda g, first=False: sum((sub(s_, g, first) for s_ in range(4)), [])
    c_first, c_even, c_odd = cyc(0, True), cyc(0), cyc(1)
    run(c_first, True)
    e("s_branch MID")
    run(c_odd, False)
    L.append(".p2align 3")
    lab("LOOP")
    run(c_even, True)
    lab("MID")
    if HALF: e("s_cbranch_scc0 HALF1")
    run(c_odd, True)
    XR = r.X; UF = r.G[0]; XF = r.V[0]
    def epi_addr():
        return ["v_lshrrev_b32 %s, 5, %s" % (vr(c0), vr(lane)),
                "v_and_b32 %s, 31, %s" % (vr(c1), vr(lane)),
                "v_lshlrev_b32 %s, 2, %s" % (vr(c1), vr(c1)),
                "v_mul_u32_u24 %s, 0x240, %s" % (vr(c2), vr(c0)),
                "v_xor_b32 %s, %s, %s" % (vr(c2), vr(c2), vr(c1)),
                "v_add_u32 %s, %s, %s" % (vr(c2), sr(sXT), vr(c2))]
    if HALF:
        e("s_cbranch_scc1 LOOP")
        e("s_branch HALF0")
        lab("HALF1")
        e("v_add_u32 %s, 512, %s" % (vr(r.PC), vr(r.PC)))
        lab("HALF0")
        def weave(mm, va, cut):
            for k, t in enumerate(va):
                if k in cut: e(mm[cut.index(k)])
                e(t)
        e("s_setprio 1")
        e(soread(0, 0)); e(soread(0, 1))
        va = []
        for i in range(8): va += [C_(2, i), R_(3, i), E_(0, i)]
        weave([red(0, 0), red(0, 1)] + vch(0), va, CUT6)
        e("s_setprio 3")
        for t in M_(3) + A_(0): e(t)
        e("s_setprio 1")
        va = []
        for i in range(8): va += [C_(3, i), R_(0, i)]
        weave(gch(1), va, [0, 3, 6, 9, 12])
        for t in M_(0, False): e(t)
        e(red(1, 0))
        e("s_waitcnt lgkmcnt(0)")
        e(trread(0)); e(trread(1))
        va = []
        for i in range(8): va += [C_(0, i), E_(2, i)]
        weave([red(1, 1)] + vch(1), va, [1, 4, 7, 10, 13])
        for i in range(8): e("v_add_f32 %s, 1.0, %s" % (vr(r.G[1] + i), vr(r.G[1] + i)))
        e("s_waitcnt lgkmcnt(0)")
        e(red(0, 0))
        for i in range(8): e(R_(2, i))
        pre = epi_addr()
        e(pre.pop(0))
        for t in M_(2, False): e(t)
        for i in range(8): e(C_(2, i))
        for t in pre: e(t)
        e(red(1, 0))
        e("s_branch FIN")
    else:
        e("s_branch LOOP")
    lab("TAIL")
    e("s_setprio 2")
    e(trread(1)); e(trread(2)); e(trread(3))
    for i in range(8): e(C_(1, i)); e(R_(2, i)); e(E_(3, i))
    e("s_waitcnt lgkmcnt(0)")
    e(red(0, 0))
    for t in M_(2, False): e(t)
    e(red(0, 1))
    for i in range(8): e("v_add_f32 %s, 1.0, %s" % (vr(r.G[1] + 8 + i), vr(r.G[1] + 8 + i)))
    pre = epi_addr()
    for i in range(8): e(C_(2, i)); e(R_(3, i))
    e(pre.pop(0)); e(pre.pop(0))
    e(red(1, 0))
    for t in M_(3, False): e(t)
    for i in range(8): e(C_(3, i))
    for t in pre: e(t)
    e(red(1, 1))
    lab("FIN")
    stamp("loopend"); stamp("rtloopend", True)
    e("s_setprio 3")
    e("s_add_u32 %s, %s, 512" % (sr(sW0), sr(sW0)))
    e("s_cmp_lt_u32 %s, %s" % (sr(sW0), sr(sTot)))
    e("s_cbranch_scc1 MORE")
    EA_ = r.X + 8
    for q_ in range(1, 4): e("v_xor_b32 %s, %d, %s" % (vr(EA_ + q_), 16 * q_, vr(c2)))
    for q_ in range(4):
        e("ds_read_b32 %s, %s offset:%d" % (vr(XR + q_), vr(EA_ + q_ if q_ else c2), q_ * 128))
        if q_ < 3: e("ds_read_b32 %s, %s offset:%d" % (vr(XR + q_ + 4), vr(EA_ + q_ if q_ else c2), q_ * 128 + 1024))
    for q_ in range(7):
        e("v_lshlrev_b32 %s, 16, %s" % (vr(UF + q_), vr(r.U + q_)))
        e("v_and_b32 %s, 0xffff0000, %s" % (vr(UF + 8 + q_), vr(r.U + q_)))
    B0, B1 = EA_ + 4, EA_ + 5
    e("v_lshl_add_u32 %s, %s, 9, %s" % (vr(B0), vr(c0), vr(c1)))
    e("s_movk_i32 s3, 384")
    e("v_mad_u32_u24 %s, %s, s3, %s" % (vr(B1), vr(c0), vr(c1)))
    for f in range(2):
        for q_ in range(7):
            e("v_rcp_f32 %s, %s" % (vr(r.ACC[f] + q_), vr(r.ACC[f] + q_)))
    e("s_waitcnt lgkmcnt(0)")
    for q_ in range(7):
        e("v_lshlrev_b32 %s, 16, %s" % (vr(XF + q_), vr(XR + q_)))
        e("v_and_b32 %s, 0xffff0000, %s" % (vr(XF + 8 + q_), vr(XR + q_)))
    for f in range(2):
        for q_ in range(0, 8, 2):
            e("v_pk_fma_f32 %s, %s, %s, %s" % (vr(UF + 8 * f + q_, 2), vr(r.ACC[f] + q_, 2), vr(r.ACC[f] + 8 + q_, 2), vr(UF + 8 * f + q_, 2)))
    for f in range(2):
        for q_ in range(7):
            e("v_max_f32 %s, 0, %s" % (vr(UF + 8 * f + q_), vr(UF + 8 * f + q_)))
    for q_ in range(0, 8, 2):
        for f in range(2):
            e("v_pk_add_f32 %s, %s, %s" % (vr(UF + 8 * f + q_, 2), vr(UF + 8 * f + q_, 2), vr(XF + 8 * f + q_, 2)))
    for q_ in range(7):
        e("v_cvt_pk_bf16_f32 %s, %s, %s" % (vr(r.U + q_), vr(UF + q_), vr(UF + 8 + q_)))
        e("buffer_store_dword %s, %s, %s, 0 offen offset:%d %s" % (vr(r.U + q_), vr(B0 if q_ < 4 else B1), sr(SOUT, 4), (q_ if q_ < 4 else q_ + 4) * 128, OSF))
    if STAMP:
        e("s_waitcnt vmcnt(0)")
        stamp("end"); stamp("rtend", True)
        e("s_sub_u32 s100, %d, %s" % (SPINMAX, sr(sSpin))); e("v_writelane_b32 v%d, s100, 29" % STV)
        e("s_getreg_b32 s100, hwreg(HW_REG_HW_ID)"); e("v_writelane_b32 v%d, s100, 30" % STV)
        e("s_lshl_b32 s3, s2, 3"); e("s_add_u32 s3, s3, %s" % sr(sW)); e("s_lshl_b32 s3, s3, 7"); e("s_add_u32 s3, s3, 0x%x" % WS_DBG)
        srd(SA, 26, 128, "s3")
        e("v_lshlrev_b32 %s, 2, %s" % (vr(c0), vr(lane)))
        e("buffer_store_dword v%d, %s, %s, 0 offen" % (STV, vr(c0), sr(SA, 4)))
    if DW:
        if 'dwg' in opts:
            e("s_cmp_lg_u32 s2, %s" % opts['dwg']); e("s_cbranch_scc1 K_END")
        if DW == 10: e("s_cmp_gt_u32 %s, 3" % sr(sW)); e("s_cbranch_scc1 K_END")
        if DW in (11, 12, 13): e("s_cmp_lt_u32 %s, 4" % sr(sW)); e("s_cbranch_scc1 K_END")
        e("s_waitcnt vmcnt(0) lgkmcnt(0)")
        lab("SPIN")
        e("s_memrealtime s[100:101]"); e("s_waitcnt lgkmcnt(0)")
        e("s_sub_u32 s100, s100, s98"); e("s_cmp_lt_u32 s100, 6000"); e("s_cbranch_scc1 SPIN")
    lab("K_END")
    e("s_endpgm")
    for name, rd, ri in retries:
        lab(name + "_R")
        e("s_mov_b64 exec, vcc")
        if int(opts.get('rsl', 0)): e("s_sleep %d" % int(opts.get('rsl', 0)))
        e(rload(rd, ri, "sc0 sc1"))
        e("s_mov_b64 exec, -1")
        e("s_sub_u32 %s, %s, 1" % (sr(sSpin), sr(sSpin)))
        e("s_waitcnt vmcnt(0)")
        e("s_cbranch_scc0 %s" % name)
        e("s_endpgm")
    lab("LATER")
    e(riread(0)); e(riread(1, RI1))
    pointers()
    e("s_waitcnt lgkmcnt(0)")
    e(rload(r.RD, r.RI)); e(rload(RD1, RI1))
    e("s_branch NOW")
    lab("MORE")
    e("s_mov_b32 %s, %d" % (sr(sLim), NC * CH))
    e("s_mov_b32 %s, 0" % sr(sFirst))
    e("s_waitcnt vmcnt(0) lgkmcnt(0)")
    e("s_nop 15")
    e("s_lshr_b32 s3, %s, 2" % sr(sT)); e("s_lshl_b32 s3, s3, 4")
    e("s_and_b32 s97, %s, 3" % sr(sT)); e("s_lshl_b32 s97, s97, 1"); e("s_add_u32 s3, s3, s97")
    e("v_lshl_add_u32 %s, %s, 2, %s" % (vr(c0), vr(lane), sr(sC0) if ROT else "0"))
    for i in range(4):
        e("v_and_b32 %s, 255, %s" % (vr(c1), vr(c0)))
        e("v_lshl_add_u32 %s, %s, 13, s3" % (vr(c1), vr(c1)))
        e("buffer_load_ushort %s, %s, %s, 0 offen sc0 sc1" % (vr(EN + i), vr(c1), sr(SOFS, 4)))
        e("buffer_load_ushort %s, %s, %s, 0 offen offset:2 sc0 sc1" % (vr(D + i), vr(c1), sr(SOFS, 4)))
        e("v_add_u32 %s, 1, %s" % (vr(c0), vr(c0)))
    expand_pre()
    zero_list()
    e("s_waitcnt vmcnt(0)")
    for i in range(4): e("v_lshl_or_b32 %s, %s, 16, %s" % (vr(EN + i), vr(D + i), vr(EN + i)))
    e("s_branch EXPAND")
    return r.n

hdr = open('cdna_kernels/%s.s.ref' % NAME).read().split('\n')
hdr = [l for l in hdr if l.startswith(';   offset') or l.startswith('; Kernarg')]
L.append('.amdgcn_target "amdgcn-amd-amdhsa--gfx950"')
L.append('.text')
nv = kernel()
L.append('.section .rodata,"a"')
L += [".p2align 6", ".amdhsa_kernel %s" % KN, "  .amdhsa_next_free_vgpr 256", "  .amdhsa_next_free_sgpr 102",
      "  .amdhsa_accum_offset 256", "  .amdhsa_group_segment_fixed_size 0", "  .amdhsa_kernarg_size 96",
      "  .amdhsa_user_sgpr_count 2", "  .amdhsa_user_sgpr_kernarg_segment_ptr 1", "  .amdhsa_system_sgpr_workgroup_id_x 1",
      ".end_amdhsa_kernel"]
if opts.get('list', '0') == '1':
    top = hdr + ["; @launch kernel=%s grid=(256,1,1) block=(512,1,1) lds=%d" % (KN, LDS_BYTES)]
else:
    top = hdr + ["; @launch grid=(256,1,1) block=(512,1,1) lds=%d" % LDS_BYTES]
open(OUT, 'w').write("\n".join(top + L) + "\n")
if STAMP: open('stamps.txt', 'w').write(" ".join(names))
print("vgprs:", nv, "lines:", len(L))
```

```python
import sys, re

NAME = "standalone__edge_featured_mpnn_gatedgcn__graph"
KN = NAME + "_kernel"
N_NODES = 25000
CH = 3200
NC = 250
TMUL = 5368
WS_REC = 0
WS_OFF = 0xD00000
WS_EPO = 0xF00000
WS_DBG = 0x1000000
NEGLOG2E = 0xBFB8AA3B
SPINMAX = 200000

opts = dict(a.split('=') for a in sys.argv[1:] if '=' in a)
OUT = opts.get('out', 'cdna_kernels/%s.s' % NAME)
STAMP = int(opts.get('stamp', 0))
STF = opts.get('stf', 'sc1').replace('+', ' ')
LDF = opts.get('ldf', 'nt').replace('+', ' ')
RLF = opts.get('rlf', '').replace('+', ' ')
RL0 = opts.get('rl0', '').replace('+', ' ')
RL2 = opts.get('rl2', '').replace('+', ' ')
XPF = int(opts.get('xpf', 0))
PLF = opts.get('plf', 'sc1').replace('+', ' ')
OSF = opts.get('osf', 'sc1').replace('+', ' ')
DW = int(opts.get('dw', 0))
LOWS = opts.get('lows', '')
DELAY = int(opts.get('delay', 0))

L = []
def e(s): L.append("    " + s)
def lab(s): L.append(s + ":")
def vr(a, n=1): return "v%d" % a if n == 1 else "v[%d:%d]" % (a, a + n - 1)
def sr(a, n=1): return "s%d" % a if n == 1 else "s[%d:%d]" % (a, a + n - 1)

DPPS = ["row_shr:1 row_mask:0xf bank_mask:0xf", "row_shr:2 row_mask:0xf bank_mask:0xf",
        "row_shr:4 row_mask:0xf bank_mask:0xf", "row_shr:8 row_mask:0xf bank_mask:0xf",
        "row_bcast:15 row_mask:0xa bank_mask:0xf", "row_bcast:31 row_mask:0xc bank_mask:0xf"]
def scan64(op, v, fill=()):
    fill = list(fill)
    for m in DPPS:
        n = 0
        while n < 2 and fill:
            e(fill.pop(0)); n += 1
        if n < 2: e("s_nop %d" % (1 - n))
        e("%s_dpp %s, %s, %s %s" % (op, vr(v), vr(v), vr(v), m))
    for f in fill: e(f)

def srd(d, base, nbytes, add=None, stride=0, sub=None):
    if sub is not None:
        e("s_sub_u32 %s, %s, %s" % (sr(d), sr(base), sub))
        e("s_subb_u32 %s, %s, 0" % (sr(d + 1), sr(base + 1)))
        e("s_and_b32 %s, %s, 0xffff" % (sr(d + 1), sr(d + 1)))
    elif add is None:
        e("s_mov_b32 %s, %s" % (sr(d), sr(base)))
        e("s_and_b32 %s, %s, 0xffff" % (sr(d + 1), sr(base + 1)))
    else:
        e("s_add_u32 %s, %s, %s" % (sr(d), sr(base), add))
        e("s_addc_u32 %s, %s, 0" % (sr(d + 1), sr(base + 1)))
        e("s_and_b32 %s, %s, 0xffff" % (sr(d + 1), sr(d + 1)))
    if stride:
        e("s_or_b32 %s, %s, 0x%x" % (sr(d + 1), sr(d + 1), stride << 16))
    e("s_mov_b32 %s, %s" % (sr(d + 2), nbytes if isinstance(nbytes, str) else "0x%x" % nbytes))
    e("s_mov_b32 %s, 0x20000" % sr(d + 3))

STV = 255
names = []
def stamp(name, real=False):
    if not STAMP: return
    if 'only' in opts and name not in opts['only'].split(',') + ['rt0', 'start', 'loop', 'rtloop', 'loopend', 'rtloopend', 'end', 'rtend']: return
    k = len(names); names.append(name)
    e("s_mem%stime s[100:101]" % ("real" if real else ""))
    e("s_waitcnt lgkmcnt(0)")
    e("v_writelane_b32 v%d, s100, %d" % (STV, k))
def mark(*modes):
    if DW in modes: e("s_memrealtime s[98:99]"); e("s_waitcnt lgkmcnt(0)")

TS, TOTA, WTOT, UTB, RTB = 0, 64, 128, 192, 256
RECB = 1024
HIST = RECB + CH * 16
XTB = RECB + 65536
XBB = XTB + 16384
PCB = XBB + 65536
LDS_BYTES = PCB + 8192
LOFF = 8192 - 2048 - 16

class R: pass
def alloc():
    r = R(); p = 0
    def a(n, al=1):
        nonlocal p
        p = (p + al - 1) // al * al
        b = p; p += n
        return b
    r.LANE = a(1); r.SI = a(1)
    r.PS = a(1, 2); r.PC = a(1); r.PT = a(1, 2); r.PE = a(1); r.PL = a(1, 2); r.PW = a(1)
    r.XA0 = a(1); r.XA1 = a(1); r.TI = a(1); r.TMP = a(3); r.RI = a(1)
    r.SO = a(4, 2); r.XI = a(8, 2); r.T = a(4, 2); r.RD = a(4, 2); r.U = a(8, 2)
    r.S = a(8, 2); r.ETA = a(8, 2); r.X = a(16, 2)
    r.ACC = [a(16, 2), a(16, 2)]
    r.G = [a(16, 2), None]; r.V = [a(16, 2), None]
    r.G[1] = a(16, 2); r.V[1] = a(16, 2)
    r.WB = a(32, 2); r.WV = a(32, 2); r.AT = a(16, 2)
    r.n = p
    return r

def mfma(d, a, b, c):
    return "v_mfma_f32_32x32x16_bf16 %s, %s, %s, %s" % (vr(d, 16), vr(a, 4), vr(b, 4), "0" if c is None else vr(c, 16))
def smf(d, a, b, idx, abid=0):
    return "v_smfmac_f32_32x32x32_bf16 %s, %s, %s, %s%s" % (vr(d, 16), vr(a, 4), vr(b, 8), vr(idx), " abid:1" if abid else "")
SOFF = [0, 64, 256, 320]

def kernel():
    r = alloc()
    assert r.n <= 255, r.n
    SX, SXI, SOFS, SRC, SOUT, SA, SB, SC_ = 28, 32, 36, 40, 44, 48, 52, 56
    sW, sT, sStart, sEnd, sTot, sW0, sNG, sXB, sREC, sFirst, sBin, sMag, sBLK, sXT, sTag, sTagH, sSpin, sLim, sKm, sKx = range(60, 80)
    sINC = 80; sINC2 = 82; sSO = 84; sTagB = 87; sE2 = 88; sRET = 90; sM0 = 4; sM1 = 6; sC0 = 8; sCB = 89
    ROT = int(opts.get('rot', 0)); MARG = int(opts.get('marg', 25))
    lane = r.LANE
    c0, c1, c2 = r.TMP, r.TMP + 1, r.TMP + 2
    MAG = -(-(1 << 41) // 671)
    for t in range(2049):
        n = t * 8192 + 670
        assert (n * MAG) >> 41 == n // 671
    def tile_range():
        e("s_lshl_b32 s3, %s, 13" % sr(sT)); e("s_add_u32 s3, s3, 670")
        e("s_mul_hi_u32 %s, s3, %s" % (sr(sStart), sr(sMag))); e("s_lshr_b32 %s, %s, 9" % (sr(sStart), sr(sStart)))
        e("s_add_u32 s3, s3, 8192")
        e("s_mul_hi_u32 %s, s3, %s" % (sr(sEnd), sr(sMag))); e("s_lshr_b32 %s, %s, 9" % (sr(sEnd), sr(sEnd)))
    L.append(".globl %s" % KN); L.append(".p2align 8"); L.append(".type %s,@function" % KN); lab(KN)
    e("s_load_dwordx16 s[4:19], s[0:1], 0")
    e("s_load_dwordx8 s[20:27], s[0:1], 64")
    e("s_cmp_gt_u32 s2, 255")
    e("s_cbranch_scc1 K_END")
    e("s_setprio 3")
    mark(1)
    stamp("rt0", True); stamp("start")
    q = r.X
    TID = q; T16 = q + 1; T32 = q + 2; ONE = q + 3; ZER = q + 4
    DST = q + 8
    SRCV = q + 16
    EA = q + 24
    HA = q + 56
    RK = q + 64
    CN = q + 72
    ST = q + 76
    PC_ = q + 80
    tA, tB, tC, tD, tE, tF = [q + 84 + i for i in range(6)]
    EP = q + 90
    T16B = q + 92; T32B = q + 93
    assert q + 94 <= r.WB
    WRAW = r.AT
    WCR = r.ETA
    e("v_mov_b32 %s, v0" % vr(TID))
    e("v_lshrrev_b32 %s, 6, v0" % vr(tA))
    e("v_lshlrev_b32 %s, 4, v0" % vr(T16))
    e("v_readfirstlane_b32 %s, %s" % (sr(sW), vr(tA)))
    e("v_lshlrev_b32 %s, 5, v0" % vr(T32))
    e("v_and_b32 %s, 63, v0" % vr(lane))
    e("v_add_u32 %s, 8192, %s" % (vr(T16B), vr(T16)))
    e("v_add_u32 %s, 16384, %s" % (vr(T32B), vr(T32)))
    for i in range(4): e("v_mov_b32 %s, 0" % vr(ZER + i))
    e("v_mov_b32 %s, 1" % vr(ONE))
    e("ds_write_b128 %s, %s offset:%d" % (vr(T16), vr(ZER, 4), HIST))
    e("s_min_u32 s3, s2, %d" % (NC - 1))
    e("s_mul_i32 s92, s3, %d" % (CH * 4))
    e("s_lshl_b32 s93, s92, 1")
    e("s_cmp_lt_u32 s2, %d" % NC)
    e("s_cselect_b32 s94, %d, 0" % (CH * 4))
    e("s_cselect_b32 s95, %d, 0" % (CH * 8))
    e("s_cselect_b32 s96, %d, 0" % (CH // 4))
    e("s_and_b32 s3, s2, 7"); e("s_lshl_b32 s3, s3, 5"); e("s_lshr_b32 %s, s2, 3" % sr(sBin)); e("s_add_u32 %s, %s, s3" % (sr(sBin), sr(sBin)))
    e("s_lshl_b32 %s, %s, 13" % (sr(sREC), sr(sW)))
    e("s_add_u32 %s, %s, %d" % (sr(sXB), sr(sREC), XBB))
    e("s_add_u32 %s, %s, %d" % (sr(sREC), sr(sREC), RECB))
    e("s_lshl_b32 %s, %s, 3" % (sr(sT), sr(sBin))); e("s_add_u32 %s, %s, %s" % (sr(sT), sr(sT), sr(sW)))
    e("s_mov_b32 %s, 0x%x" % (sr(sMag), MAG))
    tile_range()
    e("s_waitcnt lgkmcnt(0)")
    if int(opts.get('wsb', 0)):
        e("s_add_u32 s26, s26, 0x%x" % (int(opts['wsb']) << 20)); e("s_addc_u32 s27, s27, 0")
    if int(opts.get('tt', 0)):
        e("s_cmp_lt_u32 s2, %d" % int(opts.get('ttw', 248)))
        e("s_cbranch_scc1 TT_SKIP")
        e("s_cmp_lg_u32 %s, 7" % sr(sW))
        e("s_cbranch_scc1 TT_SKIP")
        e("v_lshlrev_b32 %s, 18, %s" % (vr(tA), vr(lane)))
        e("v_lshlrev_b32 %s, 16, %s" % (vr(tB), vr(lane)))
        srd(SA, 26, 0x1000000)
        e("buffer_load_dword %s, %s, %s, 0 offen sc0 sc1" % (vr(r.AT), vr(tA), sr(SA, 4)))
        srd(SA, 4, N_NODES * 128)
        e("buffer_load_dword %s, %s, %s, 0 offen" % (vr(r.AT), vr(tB), sr(SA, 4)))
        srd(SA, 22, N_NODES * 128)
        e("buffer_load_dword %s, %s, %s, 0 offen sc0 sc1" % (vr(r.AT), vr(tB), sr(SA, 4)))
        for p in (12, 14, 16, 18, 20):
            srd(SA, p, 512)
            e("buffer_load_dword %s, %s, %s, 0 offen" % (vr(r.AT), vr(tB), sr(SA, 4)))
        lab("TT_SKIP")
    srd(SA, 10, "s94", "s92")
    e("buffer_load_dwordx4 %s, %s, %s, 0 offen %s" % (vr(DST, 4), vr(T16), sr(SA, 4), LDF))
    e("buffer_load_dwordx4 %s, %s, %s, 0 offen %s" % (vr(DST + 4, 4), vr(T16B), sr(SA, 4), LDF))
    srd(SOUT, 26, 8, "0x%x" % WS_EPO)
    e("buffer_load_dwordx2 %s, %s, %s, 0 offen sc1" % (vr(EP, 2), vr(ZER), sr(SOUT, 4)))
    DF = int(opts.get('df', 2))
    SS, SE = (SB, SC_) if not DF else (SRC, SOFS)
    srd(SS, 8, "s94", "s92")
    srd(SE, 6, "s95", "s93")
    RL = ["buffer_load_dwordx4 %s, %s, %s, 0 offen %s" % (vr(SRCV, 4), vr(T16), sr(SS, 4), LDF),
          "buffer_load_dwordx4 %s, %s, %s, 0 offen %s" % (vr(SRCV + 4, 4), vr(T16B), sr(SS, 4), LDF)]
    for k in (2, 3, 0, 1):
        RL.append("buffer_load_dwordx4 %s, %s, %s, 0 offen offset:%d %s" % (vr(EA + 8 * k, 4), vr(T32B if k >> 1 else T32), sr(SE, 4), 16 * (k & 1), LDF))
    NE = int(opts.get('ne', 2))
    NE2 = int(opts.get('ne2', 0))
    for _ in range(NE): e(RL.pop(0))
    def rest_loads():
        for t in RL: e(t)
        if DF:
            srd(SOFS, 26, 256 * 8192, "0x%x" % WS_OFF)
            srd(SRC, 26, NC * CH, stride=16)
    if DF == 0: rest_loads()
    e("v_cmp_gt_u32 vcc, s96, %s" % vr(TID))
    e("s_mov_b64 s[92:93], vcc")
    e("v_add_u32 %s, 512, %s" % (vr(tA), vr(TID)))
    e("v_cmp_gt_u32 vcc, s96, %s" % vr(tA))
    e("s_mov_b64 s[94:95], vcc")
    e("s_and_b32 s3, %s, 3" % sr(sW))
    e("s_cmp_eq_u32 s3, 1"); e("s_cselect_b32 s12, s18, s12"); e("s_cselect_b32 s13, s19, s13")
    e("s_cmp_eq_u32 s3, 2"); e("s_cselect_b32 s12, s14, s12"); e("s_cselect_b32 s13, s15, s13")
    e("s_cmp_eq_u32 s3, 3"); e("s_cselect_b32 s12, s20, s12"); e("s_cselect_b32 s13, s21, s13")
    srd(SA, 12, 8192)
    srd(SB, 16, 512)
    srd(SX, 4, N_NODES * 128)
    H = r.SO
    XT0, XT1, J4, L16 = r.RD, r.RD + 1, r.RD + 2, r.RD + 3
    e("v_lshrrev_b32 %s, 5, %s" % (vr(H), vr(lane)))
    e("v_and_b32 %s, 31, %s" % (vr(J4), vr(lane)))
    e("v_lshlrev_b32 %s, 2, %s" % (vr(J4), vr(J4)))
    e("v_lshlrev_b32 %s, 4, %s" % (vr(L16), vr(lane)))
    e("v_lshrrev_b32 %s, 3, %s" % (vr(tA), vr(lane)))
    e("v_xor_b32 %s, %s, %s" % (vr(tB), vr(tA), vr(lane)))
    e("v_and_b32 %s, 7, %s" % (vr(tB), vr(tB)))
    e("v_lshlrev_b32 %s, 4, %s" % (vr(tB), vr(tB)))
    e("v_add_u32 %s, %s, %s" % (vr(tA), sr(sStart), vr(tA)))
    e("v_sub_u32 %s, %s, %s" % (vr(tC), vr(tA), vr(H)))
    e("v_add_u32 %s, 8, %s" % (vr(tC), vr(tC)))
    e("v_lshl_add_u32 %s, %s, 7, %s" % (vr(XT0), vr(tA), vr(tB)))
    e("v_lshl_add_u32 %s, %s, 7, %s" % (vr(XT1), vr(tC), vr(tB)))
    def late_loads():
        e("s_cmp_lt_u32 %s, 4" % sr(sW))
        e("s_cbranch_scc1 LATE_B")
        e("s_and_b32 s93, %s, 3" % sr(sW)); e("s_lshl_b32 s93, s93, 14")
        e("s_add_u32 m0, s93, %d" % XBB)
        e("s_mov_b32 s3, 4096")
        for k in range(4):
            e("buffer_load_dwordx4 %s, %s, 0 offen offset:%d %s lds" % (vr(L16), sr(SA, 4), k * 1024, opts.get('wf', '')))
        e("s_add_u32 m0, s93, %d" % (XBB + 8192))
        e("s_nop 0")
        for k in range(4):
            e("buffer_load_dwordx4 %s, %s, s3 offen offset:%d %s lds" % (vr(L16), sr(SA, 4), k * 1024, opts.get('wf', '')))
        if XPF:
            e("s_lshr_b32 s3, s2, 3"); e("s_mul_i32 s3, s3, %d" % (782 * 128))
            e("s_lshr_b32 s94, s93, 1"); e("s_mul_i32 s94, s94, %d" % XPF); e("s_add_u32 s3, s3, s94")
            e("v_lshl_add_u32 %s, %s, 7, s3" % (vr(tF), vr(lane)))
            for k in range(XPF):
                e("buffer_load_dword %s, %s, %s, 0 offen" % (vr(tE), vr(tF), sr(SX, 4)))
                if k + 1 < XPF: e("v_add_u32 %s, 8192, %s" % (vr(tF), vr(tF)))
        lab("LATE_B")
        e("s_mov_b32 exec_hi, 0")
        for i in range(4):
            e("buffer_load_dword %s, %s, %s, 0 offen offset:%d %s" % (vr(WCR + i), vr(J4), sr(SB, 4), i * 128, opts.get('wf', '')))
        e("s_mov_b64 exec, -1")
        if 'X' not in opts.get('pfx', ''): xt_loads()
    def xt_loads():
        e("s_lshl_b32 s3, %s, 11" % sr(sW))
        e("s_add_u32 m0, s3, %d" % XTB)
        e("s_nop 0")
        e("buffer_load_dwordx4 %s, %s, 0 offen %s lds" % (vr(XT0), sr(SX, 4), opts.get('xtf', '')))
        e("s_add_u32 m0, s3, %d" % (XTB + 1024))
        e("s_nop 0")
        e("buffer_load_dwordx4 %s, %s, 0 offen %s lds" % (vr(XT1), sr(SX, 4), opts.get('xtf', '')))
    e("s_mul_i32 s3, s2, %d" % (CH * 16))
    NLATE = 0
    srd(SC_, 26, CH * 16, "s3")
    if not DF: srd(SOFS, 26, 256 * 8192, "0x%x" % WS_OFF)
    srd(SXI, 4, N_NODES, stride=128, sub="3072")
    if not DF: srd(SRC, 26, NC * CH, stride=16)
    PFX = opts.get('pfx', '')
    NPF = 0
    if PFX:
        e("v_lshlrev_b32 %s, 7, %s" % (vr(tA), vr(lane)))
    if 'c' in PFX or 'w' in PFX:
        e("s_cmp_lt_u32 s2, 248")
        e("s_cbranch_scc1 PF_SKIP")
        if 'c' in PFX:
            e("s_getpc_b64 s[96:97]")
            lab("PCREF")
            e("s_and_b32 s3, %s, 1" % sr(sW)); e("s_lshl_b32 s3, s3, 13")
            e("v_add_u32 %s, s3, %s" % (vr(tB), vr(tA)))
            e("v_min_u32 %s, K_END-PCREF, %s" % (vr(tB), vr(tB)))
            e("s_cmp_lt_u32 %s, 2" % sr(sW)); e("s_cselect_b64 exec, -1, 1")
            e("global_load_dword %s, %s, s[96:97]" % (vr(r.AT), vr(tB)))
        if 'w' in PFX:
            e("s_cmp_gt_u32 %s, 3" % sr(sW)); e("s_cselect_b64 exec, -1, 1")
            e("buffer_load_dword %s, %s, %s, 0 offen" % (vr(r.AT), vr(tA), sr(SA, 4)))
            e("s_mov_b64 exec, 15")
            e("buffer_load_dword %s, %s, %s, 0 offen" % (vr(r.AT), vr(tA), sr(SB, 4)))
        e("s_mov_b64 exec, -1")
        lab("PF_SKIP")
    if 'X' in PFX:
        xt_loads()
        NPF += 2
    if 'x' in PFX:
        e("s_mov_b64 exec, 0x01010101"); e("s_mov_b32 exec_hi, 0x01010101")
        e("buffer_load_dword %s, %s, %s, 0 offen" % (vr(r.AT), vr(XT0), sr(SX, 4)))
        e("buffer_load_dword %s, %s, %s, 0 offen" % (vr(r.AT), vr(XT1), sr(SX, 4)))
        e("s_mov_b64 exec, -1")
        NPF += 2
    if 's' in PFX:
        e("s_mov_b64 exec, 1")
        e("buffer_load_dword %s, %s, %s, 0 offen sc0 sc1" % (vr(r.AT), vr(T32B), sr(SC_, 4)))
        e("s_mov_b64 exec, -1")
        NPF += 1
    e("s_mov_b32 %s, 1024" % sr(sINC)); e("s_mov_b32 %s, 1024" % sr(sINC + 1))
    e("s_mov_b32 %s, 256" % sr(sINC2)); e("s_mov_b32 %s, 1024" % sr(sINC2 + 1))
    e("s_mov_b32 %s, 3072" % sr(sSO)); e("s_mov_b32 %s, 2048" % sr(sSO + 1)); e("s_mov_b32 %s, 1024" % sr(sSO + 2))
    e("s_mov_b32 %s, %d" % (sr(sLim), NC * CH))
    e("s_mov_b32 %s, 0" % sr(sW0)); e("s_mov_b32 %s, 1" % sr(sFirst)); e("s_mov_b32 %s, %d" % (sr(sSpin), SPINMAX))
    e("v_mov_b32 %s, 0x%x" % (vr(tA), (1 << 4) | (2 << 8) | (1 << 14) | (2 << 18)))
    e("v_lshlrev_b32 %s, 1, %s" % (vr(tB), vr(lane)))
    e("v_bfe_u32 %s, %s, %s, 2" % (vr(tA), vr(tA), vr(tB)))
    e("v_mul_u32_u24 %s, 0x8001, %s" % (vr(tA), vr(tA)))
    e("v_and_b32 %s, 0x10001, %s" % (vr(tA), vr(tA)))
    e("v_mul_u32_u24 %s, 0x3f80, %s" % (vr(tA), vr(tA)))
    e("v_lshlrev_b32 %s, 2, %s" % (vr(tB), vr(lane)))
    e("s_mov_b64 exec, 0x3ff")
    e("ds_write_b32 %s, %s offset:%d" % (vr(tB), vr(tA), TS))
    e("s_mov_b64 exec, -1")
    e("v_mul_u32_u24 %s, 140, %s" % (vr(tC), vr(lane)))
    e("v_lshrrev_b32 %s, 7, %s" % (vr(tC), vr(tC)))
    e("v_lshlrev_b32 %s, 19, %s" % (vr(tC), vr(tC)))
    e("v_or_b32 %s, 0x80ffff, %s" % (vr(tC), vr(tC)))
    e("s_mov_b64 exec, 0x3fff")
    e("ds_write_b32 %s, %s offset:%d" % (vr(tB), vr(tC), UTB))
    e("s_mov_b64 exec, -1")
    e("v_mul_u32_u24 %s, 11, %s" % (vr(tA), vr(lane)))
    e("v_lshrrev_b32 %s, 5, %s" % (vr(tA), vr(tA)))
    e("v_mad_i32_i24 %s, %s, -3, %s" % (vr(tB), vr(tA), vr(lane)))
    e("v_add_u32 %s, 1, %s" % (vr(tB), vr(tB)))
    e("v_lshl_add_u32 %s, %s, 1, 20" % (vr(tA), vr(tA)))
    e("v_lshlrev_b32 %s, %s, %s" % (vr(tC), vr(tA), vr(tB)))
    e("v_and_b32 %s, 3, %s" % (vr(tA), vr(lane)))
    e("v_add_u32 %s, 1, %s" % (vr(tA), vr(tA)))
    e("v_and_b32 %s, 12, %s" % (vr(tB), vr(lane)))
    e("v_lshl_add_u32 %s, %s, 1, 3" % (vr(tB), vr(tB)))
    e("v_lshlrev_b32 %s, %s, %s" % (vr(tD), vr(tB), vr(tA)))
    e("v_lshlrev_b32 %s, 3, %s" % (vr(tA), vr(lane)))
    e("v_xor_b32 %s, 0x80, %s" % (vr(tA), vr(tA)))
    e("s_mov_b64 exec, 0x10000")
    e("v_mov_b32 %s, 0" % vr(tC)); e("v_mov_b32 %s, 0" % vr(tD))
    e("s_mov_b64 exec, 0x1ffff")
    e("v_or_b32 %s, 0x40000, %s" % (vr(tC), vr(tC)))
    assert tD == tC + 1 and tC % 2 == 0
    e("ds_write_b64 %s, %s offset:%d" % (vr(tA), vr(tC, 2), RTB))
    e("s_mov_b64 exec, -1")
    e("s_mov_b32 %s, %d" % (sr(sKx), 800106))
    if ROT:
        e("s_mul_i32 s3, %s, 123" % sr(sBin)); e("s_lshr_b32 s3, s3, 7"); e("s_sub_u32 s3, %d, s3" % (256 + MARG))
        e("s_and_b32 %s, s3, 255" % sr(sC0))
        e("s_mul_i32 %s, %s, %d" % (sr(sCB), sr(sC0), CH))
    e("v_and_b32 %s, 3, %s" % (vr(c0), vr(lane)))
    e("v_bfe_u32 %s, %s, 4, 1" % (vr(c1), vr(lane)))
    e("v_mul_u32_u24 %s, 0x5555, %s" % (vr(r.SI), vr(c1)))
    e("v_or_b32 %s, 0x8888, %s" % (vr(r.SI), vr(r.SI)))
    e("v_xor_b32 %s, %s, %s" % (vr(c2), vr(c0), vr(H)))
    e("v_lshl_or_b32 %s, %s, 2, %s" % (vr(c2), vr(c1), vr(c2)))
    e("v_lshlrev_b32 %s, 4, %s" % (vr(r.XI + 1), vr(c2)))
    e("v_mov_b32 %s, %s" % (vr(r.XI + 3), vr(r.XI + 1)))
    e("v_xor_b32 %s, 32, %s" % (vr(r.XI + 5), vr(r.XI + 1)))
    e("v_mov_b32 %s, %s" % (vr(r.XI + 7), vr(r.XI + 5)))
    e("v_bfe_u32 %s, %s, 3, 2" % (vr(c2), vr(lane)))
    e("v_xor_b32 %s, %s, %s" % (vr(c2), vr(c2), vr(H)))
    e("v_lshlrev_b32 %s, 4, %s" % (vr(r.XA0), vr(c2)))
    e("v_lshl_or_b32 %s, %s, 6, %s" % (vr(r.XA0), vr(c0), vr(r.XA0)))
    e("v_bfe_u32 %s, %s, 3, 1" % (vr(c2), vr(lane)))
    e("v_lshl_or_b32 %s, %s, 9, %s" % (vr(r.XA0), vr(c2), vr(r.XA0)))
    e("v_bfe_u32 %s, %s, 2, 1" % (vr(tA), vr(lane)))
    e("v_lshl_or_b32 %s, %s, 10, %s" % (vr(r.XA0), vr(tA), vr(r.XA0)))
    e("v_lshl_or_b32 %s, %s, 11, %s" % (vr(r.XA0), vr(c1), vr(r.XA0)))
    e("v_xor_b32 %s, 32, %s" % (vr(r.XA1), vr(r.XA0)))
    e("v_add_u32 %s, %s, %s" % (vr(r.XA0), sr(sXB), vr(r.XA0)))
    e("v_add_u32 %s, %s, %s" % (vr(r.XA1), sr(sXB), vr(r.XA1)))
    FA, FU = r.SO + 2, r.SO + 3
    e("v_lshl_or_b32 %s, %s, 1, %s" % (vr(c2), vr(tA), vr(c2)))
    e("v_lshl_or_b32 %s, %s, 1, %s" % (vr(c2), vr(c2), vr(c1)))
    e("v_mad_u32_u24 %s, %s, 3, %s" % (vr(c2), vr(c2), vr(c0)))
    e("v_add_u32 %s, 9, %s" % (vr(c2), vr(c2)))
    e("v_and_b32 %s, 15, %s" % (vr(c2), vr(c2)))
    for dst, src in ((FA, c2), (FU, None)):
        if src is None:
            e("v_and_b32 %s, 15, %s" % (vr(c2), vr(lane)))
        e("v_xor_b32 %s, %s, %s" % (vr(tA), vr(c2), vr(H)))
        e("v_and_b32 %s, 7, %s" % (vr(tA), vr(tA)))
        e("v_lshlrev_b32 %s, 4, %s" % (vr(tA), vr(tA)))
        e("v_lshl_or_b32 %s, %s, 7, %s" % (vr(dst), vr(c2), vr(tA)))
    e("v_lshlrev_b32 %s, 4, %s" % (vr(tA), vr(H)))
    e("v_mov_b32 %s, 0x3f80" % vr(tB))
    e("v_lshlrev_b32 %s, %s, %s" % (vr(r.T + 1), vr(tA), vr(tB)))
    e("v_mov_b32 %s, %s" % (vr(r.T + 2), vr(r.T + 1)))
    e("v_mov_b32 %s, %s" % (vr(r.T + 3), vr(r.T + 1)))
    e("s_lshl_b32 s3, %s, 2" % sr(sW))
    e("v_mov_b32 %s, s3" % vr(tE))
    e("v_and_b32 %s, 7, %s" % (vr(tF), vr(lane)))
    e("v_lshlrev_b32 %s, 2, %s" % (vr(tF), vr(tF)))
    e("s_waitcnt lgkmcnt(0)")
    e("s_barrier")
    if DF == 1: rest_loads()
    if DF == 2:
        for _ in range(NE2): e(RL.pop(0))
    e("s_waitcnt vmcnt(%d)" % (1 + NE + NE2 + NPF if DF == 2 else 7 + NPF))
    stamp("dst")
    mark(6)
    for rd in range(2):
        e("s_mov_b64 exec, s[%d:%d]" % (92 + 2 * rd, 93 + 2 * rd))
        e("s_cbranch_execz P1_A")
        for i in range(4 * rd, 4 * rd + 4):
            e("v_mul_u32_u24 %s, %d, %s" % (vr(DST + i), TMUL, vr(DST + i)))
            e("v_lshrrev_b32 %s, 14, %s" % (vr(HA + i), vr(DST + i)))
            e("v_and_b32 %s, 0x1ffc, %s" % (vr(HA + i), vr(HA + i)))
        for i in range(4 * rd, 4 * rd + 4):
            e("ds_add_rtn_u32 %s, %s, %s offset:%d" % (vr(RK + i), vr(HA + i), vr(ONE), HIST))
    lab("P1_A")
    e("s_mov_b64 exec, -1")
    if DF == 2: rest_loads()
    for i in range(8):
        d = DST + i
        e("v_and_b32 %s, 0xffff, %s" % (vr(d), vr(d)))
        e("v_mul_hi_u32_u24 %s, %s, %s" % (vr(d), sr(sKx), vr(d)))
        e("v_lshlrev_b32 %s, 2, %s" % (vr(d), vr(d)))
    for i in range(8):
        e("ds_read_b32 %s, %s offset:%d" % (vr(DST + i), vr(DST + i), UTB))
    key = ["s_nop 0"] * 64
    e("s_waitcnt lgkmcnt(0)")
    e("s_barrier")
    stamp("hist")
    e("ds_read_b128 %s, %s offset:%d" % (vr(CN, 4), vr(T16), HIST))
    e("s_waitcnt lgkmcnt(0)")
    e("v_add_u32 %s, %s, %s" % (vr(ST + 2), vr(CN), vr(CN + 1)))
    e("v_add_u32 %s, %s, %s" % (vr(ST + 3), vr(ST + 2), vr(CN + 2)))
    e("v_add_u32 %s, %s, %s" % (vr(tA), vr(ST + 3), vr(CN + 3)))
    e("v_mov_b32 %s, %s" % (vr(tB), vr(tA)))
    scan64("v_add_u32", tB)
    e("s_mov_b32 exec_lo, 0"); e("s_mov_b32 exec_hi, 0x80000000")
    e("ds_write_b32 %s, %s offset:%d" % (vr(tE), vr(tB), WTOT))
    e("s_mov_b64 exec, -1")
    e("s_waitcnt vmcnt(%d)" % (6 + NLATE + NPF))
    e("v_readfirstlane_b32 %s, %s" % (sr(sTag), vr(EP)))
    e("v_readfirstlane_b32 %s, %s" % (sr(sE2), vr(EP + 1)))
    e(key.pop(0)); e(key.pop(0))
    e("s_mul_i32 %s, %s, 1664525" % (sr(sTag), sr(sTag))); e("s_add_u32 %s, %s, 1013904223" % (sr(sTag), sr(sTag)))
    e("s_mul_i32 %s, %s, 22695477" % (sr(sE2), sr(sE2))); e("s_add_u32 %s, %s, 0x9e3779b9" % (sr(sE2), sr(sE2)))
    e("s_and_b32 %s, %s, 0xffff0000" % (sr(sTagH), sr(sE2)))
    e("s_lshr_b32 %s, %s, 24" % (sr(sTagB), sr(sE2)))
    e("s_and_b32 %s, %s, 0xff000000" % (sr(sKm), sr(sE2)))
    e("s_mov_b32 %s, 0xffff" % sr(sKx))
    e("s_waitcnt lgkmcnt(0)")
    e("s_barrier")
    e("ds_read_b32 %s, %s offset:%d" % (vr(tC), vr(tF), WTOT))
    e("v_mov_b32 %s, %s" % (vr(PC_ + 3), sr(sTag)))
    e("s_waitcnt lgkmcnt(0)")
    e("v_mov_b32 %s, %s" % (vr(tD), vr(tC)))
    for sh in (1, 2, 4):
        e(key.pop(0)); e(key.pop(0))
        e("v_add_u32_dpp %s, %s, %s row_shr:%d row_mask:0xf bank_mask:0xf" % (vr(tD), vr(tD), vr(tD), sh))
    e("v_sub_u32 %s, %s, %s" % (vr(tD), vr(tD), vr(tC)))
    e(key.pop(0))
    e("v_readlane_b32 s3, %s, %s" % (vr(tD), sr(sW)))
    e("s_lshl_b32 s91, s2, 13")
    e("s_nop 0")
    e("v_add_u32 %s, s3, %s" % (vr(tB), vr(tB)))
    e("v_sub_u32 %s, %s, %s" % (vr(ST), vr(tB), vr(tA)))
    e("v_add_u32 %s, %s, %s" % (vr(ST + 1), vr(ST), vr(CN)))
    e("v_add_u32 %s, %s, %s" % (vr(ST + 2), vr(ST), vr(ST + 2)))
    e("v_add_u32 %s, %s, %s" % (vr(ST + 3), vr(ST), vr(ST + 3)))
    e("v_lshl_or_b32 %s, %s, 16, %s" % (vr(PC_), vr(ST + 1), vr(ST)))
    e("v_lshl_or_b32 %s, %s, 16, %s" % (vr(PC_ + 1), vr(ST + 3), vr(ST + 2)))
    e("v_or_b32 %s, %s, %s" % (vr(PC_ + 2), sr(sTagH), vr(tB)))
    PUB = int(opts.get('pub', 0))
    pub = "buffer_store_dwordx4 %s, %s, %s, s91 offen %s" % (vr(PC_, 4), vr(T16), sr(SOFS, 4), STF)
    if PUB == 0: e(pub)
    for i in range(4): e("v_lshlrev_b32 %s, 4, %s" % (vr(ST + i), vr(ST + i)))
    e("ds_write_b128 %s, %s offset:%d" % (vr(T16), vr(ST, 4), HIST))
    e("s_waitcnt lgkmcnt(0)")
    e("s_barrier")
    stamp("scan")
    mark(5)
    for i in range(8):
        e("ds_read_b32 %s, %s offset:%d" % (vr(HA + i), vr(HA + i), HIST))
    e("s_waitcnt vmcnt(%d)" % (NLATE + (PUB == 0)))
    stamp("inputs")
    mark(9)
    def assemble(rd):
        for k in range(2 * rd, 2 * rd + 2):
            e("v_mov_b32 %s, %s" % (vr(EA + 8 * k + 4), vr(EA + 8 * k + 2)))
            e("v_mov_b32 %s, %s" % (vr(EA + 8 * k + 5), vr(EA + 8 * k + 3)))
        for i in range(4 * rd, 4 * rd + 4):
            e("v_bitop3_b32 %s, %s, %s, %s bitop3:0x96" % (vr(EA + 4 * i + 2), vr(DST + i), vr(SRCV + i), sr(sKm)))
            e("v_mov_b32 %s, %s" % (vr(EA + 4 * i + 3), sr(sTag)))
    for rd in range(2):
        e("s_mov_b64 exec, s[%d:%d]" % (92 + 2 * rd, 93 + 2 * rd))
        e("s_cbranch_execz P1_B")
        assemble(rd)
        e("s_waitcnt lgkmcnt(4)")
        for i in range(4 * rd, 4 * rd + 4):
            e("v_lshl_add_u32 %s, %s, 4, %s" % (vr(HA + i), vr(RK + i), vr(HA + i)))
        for i in range(4 * rd, 4 * rd + 4):
            e("ds_write_b128 %s, %s offset:%d" % (vr(HA + i), vr(EA + 4 * i, 4), RECB))
    lab("P1_B")
    e("s_mov_b64 exec, -1")
    if PUB == 2: e(pub)
    late_loads()
    PA = tA; PW_ = tB; PC2 = ST
    e("v_bfe_u32 %s, %s, 1, 7" % (vr(tC), vr(TID)))
    e("v_and_b32 %s, 1, %s" % (vr(tD), vr(TID)))
    PA2 = tE
    if ROT:
        e("v_add_u32 %s, %s, %s" % (vr(PA), sr(sC0), vr(tC)))
        e("v_and_b32 %s, 255, %s" % (vr(PA), vr(PA)))
    e("v_lshlrev_b32 %s, 13, %s" % (vr(PA), vr(PA if ROT else tC)))
    e("v_lshl_or_b32 %s, %s, 4, %s" % (vr(PA), vr(tD), vr(PA)))
    e("v_xor_b32 %s, 0x100000, %s" % (vr(PA2), vr(PA)))
    e("s_lshl_b32 s97, %s, 5" % sr(sBin))
    poll = ["buffer_load_dwordx4 %s, %s, %s, s97 offen %s" % (vr(PC_, 4), vr(PA), sr(SOFS, 4), PLF),
            "buffer_load_dwordx4 %s, %s, %s, s97 offen %s" % (vr(PC2, 4), vr(PA2), sr(SOFS, 4), PLF)]
    e("v_lshlrev_b32 %s, 12, %s" % (vr(PW_), vr(tD)))
    e("v_lshl_or_b32 %s, %s, 2, %s" % (vr(PW_), vr(tC), vr(PW_)))
    e("v_add_u32 %s, %d, %s" % (vr(PW_), PCB, vr(PW_)))
    e("v_add_u32 %s, %d, %s" % (vr(c2), XBB + 4096, vr(L16)))
    WL = r.WB; WH = r.WB + 16; WP = r.WV
    e("s_mov_b32 s92, 0x%x" % NEGLOG2E)
    EN = r.G[1]; Z = r.V[1]; P = r.V[1] + 4; D = r.V[1] + 8
    LA, CB, PREV, JB = [r.V[1] + 12 + i for i in range(4)]
    TOT, INC, C512, W4 = r.PS, r.PC, r.PT, r.PE
    M = r.S
    def expand_pre():
        for i in range(4): e("v_mov_b32 %s, 0" % vr(Z + i))
        e("v_lshl_add_u32 %s, %s, 5, %s" % (vr(LA), vr(lane), sr(sREC)))
        e("v_mul_u32_u24 %s, %d, %s" % (vr(CB), 4 * CH, vr(lane)))
        e("v_subrev_u32 %s, %s, %s" % (vr(CB), sr(sW0), vr(CB)))
        if ROT:
            e("s_add_u32 s3, %s, %s" % (sr(sW0), sr(sCB)))
            e("v_lshl_add_u32 %s, %s, 3, s3" % (vr(JB), vr(lane)))
        else:
            e("v_lshl_add_u32 %s, %s, 3, %s" % (vr(JB), vr(lane), sr(sW0)))
        e("v_mov_b32 %s, 512" % vr(C512))
        e("v_mov_b32 %s, 0" % vr(PREV))
        e("v_lshl_add_u32 %s, %s, 2, %s" % (vr(r.PL), vr(lane), sr(sREC)))
        e("s_lshl_b32 s3, %s, 2" % sr(sW))
        e("v_mov_b32 %s, s3" % vr(W4))
    def zero_list():
        e("ds_write_b128 %s, %s offset:%d" % (vr(LA), vr(Z, 4), LOFF))
        e("ds_write_b128 %s, %s offset:%d" % (vr(LA), vr(Z, 4), LOFF + 16))
    expand_pre()
    e("s_lshl_b32 s3, %s, 10" % sr(sW)); e("s_add_u32 s3, s3, %d" % PCB)
    e("v_add_u32 %s, s3, %s" % (vr(r.RI), vr(L16)))
    if int(opts.get('early', 1)) == 2:
        e("s_cmp_lt_u32 %s, 4" % sr(sW))
        e("s_cbranch_scc1 P1_P")
        for t in poll: e(t)
        lab("P1_P")
    e("s_waitcnt lgkmcnt(0)")
    e("s_barrier")
    stamp("scatter")
    mark(7)
    if PUB == 1: e(pub)
    ST8 = int(opts.get('st8', 0))
    EARLY = int(opts.get('early', 1))
    if ST8:
        NS = 7
        if EARLY == 1:
            e("s_cmp_lt_u32 %s, 4" % sr(sW))
            e("s_cbranch_scc1 P1_S")
            for t in poll: e(t)
            lab("P1_S")
        CO = DST
        e("s_cmp_lt_u32 s2, %d" % NC)
        e("s_cselect_b32 %s, %s, 0" % (sr(SC_ + 2), sr(SC_ + 2)))
        for k in range(NS):
            e("ds_read_b128 %s, %s offset:%d" % (vr(CO + 4 * k, 4), vr(T16), RECB + 8192 * k))
        e("v_add_u32 %s, 49152, %s" % (vr(T32), vr(T16)))
        for k in range(NS):
            if k < NS - 1: e("s_mov_b32 s3, %d" % (8192 * k))
            e("s_waitcnt lgkmcnt(%d)" % (NS - 1 - k))
            if k < NS - 1: e("buffer_store_dwordx4 %s, %s, %s, s3 offen %s" % (vr(CO + 4 * k, 4), vr(T16), sr(SC_, 4), STF))
            else: e("buffer_store_dwordx4 %s, %s, %s, 0 offen %s" % (vr(CO + 4 * k, 4), vr(T32), sr(SC_, 4), STF))
        e("s_waitcnt vmcnt(%d)" % NS)
        e("s_cmp_lt_u32 %s, 4" % sr(sW))
        e("s_cbranch_scc1 POLL_DONE")
    else:
        e("s_cmp_gt_u32 %s, 3" % sr(sW))
        e("s_cbranch_scc1 P1_D")
        e("s_cmp_ge_u32 s2, %d" % NC)
        e("s_cbranch_scc1 P1_N")
        if DELAY:
            e("s_and_b32 s3, s2, 15"); e("s_cmp_lg_u32 s3, 5"); e("s_cbranch_scc1 P1_ND")
            for _ in range(DELAY): e("s_sleep 100")
            lab("P1_ND")
        if ROT:
            CO = DST; CA = q + 60
            e("s_mul_i32 s3, s2, 13"); e("s_lshr_b32 s3, s3, 8"); e("s_sub_u32 s3, 13, s3"); e("s_lshl_b32 s3, s3, 12")
            for k in range(13):
                e("s_cmp_eq_u32 s3, %d" % (13 * 4096)); e("s_cselect_b32 s3, 0, s3")
                e("v_add_u32 %s, s3, %s" % (vr(CA + k), vr(T16)))
                e("ds_read_b128 %s, %s offset:%d" % (vr(CO + 4 * k, 4), vr(CA + k), RECB))
                if k < 12: e("s_add_u32 s3, s3, 4096")
                if k >= 3:
                    e("s_waitcnt lgkmcnt(3)")
                    e("buffer_store_dwordx4 %s, %s, %s, 0 offen %s" % (vr(CO + 4 * (k - 3), 4), vr(CA + k - 3), sr(SC_, 4), STF))
            for k in range(10, 13):
                e("s_waitcnt lgkmcnt(%d)" % (12 - k))
                e("buffer_store_dwordx4 %s, %s, %s, 0 offen %s" % (vr(CO + 4 * k, 4), vr(CA + k), sr(SC_, 4), STF))
        else:
            CO = DST
            for k in range(13):
                e("ds_read_b128 %s, %s offset:%d" % (vr(CO + 4 * k, 4), vr(T16), RECB + 4096 * k))
            e("v_add_u32 %s, 49152, %s" % (vr(T32), vr(T16)))
            for k in range(13):
                if k < 12: e("s_mov_b32 s3, %d" % (4096 * k))
                e("s_waitcnt lgkmcnt(%d)" % (12 - k))
                if k < 12: e("buffer_store_dwordx4 %s, %s, %s, s3 offen %s" % (vr(CO + 4 * k, 4), vr(T16), sr(SC_, 4), STF))
                else: e("buffer_store_dwordx4 %s, %s, %s, 0 offen %s" % (vr(CO + 4 * k, 4), vr(T32), sr(SC_, 4), STF))
        e("s_waitcnt vmcnt(13)")
        e("s_branch POLL_DONE")
        lab("P1_N")
        e("s_waitcnt vmcnt(0)")
        e("s_branch POLL_DONE")
        lab("P1_D")
        if EARLY == 1:
            for t in poll: e(t)
    e("v_lshl_add_u32 %s, %s, 10, %s" % (vr(tC), vr(H), vr(J4)))
    e("s_add_u32 s3, s93, %d" % XBB)
    e("v_add_u32 %s, s3, %s" % (vr(tC), vr(tC)))
    if not ST8: e("s_waitcnt vmcnt(%d)" % ((8 if int(opts.get('early', 1)) else 6) + (PUB == 1) + XPF - 2 * ('X' in PFX)))
    mark(12)
    RAW = DST
    for i in range(32):
        e("ds_read_b32 %s, %s offset:%d" % (vr(RAW + i), vr(tC), (i >> 4) * 8192 + ((i >> 3) & 1) * 2048 + (i & 7) * 128))
    e("s_bitcmp0_b32 %s, 0" % sr(sW))
    e("s_cselect_b32 s3, s92, 1.0")
    e("v_add_u32 %s, s93, %s" % (vr(tC), vr(c2)))
    for hf in range(2):
        e("s_waitcnt lgkmcnt(%d)" % (15 if hf == 0 else 4))
        if hf == 0: e("s_nop 0")
        for i in range(16):
            e("v_lshlrev_b32 %s, 16, %s" % (vr(WL + i), vr(RAW + 16 * hf + i)))
            e("v_and_b32 %s, 0xffff0000, %s" % (vr(WH + i), vr(RAW + 16 * hf + i)))
        for i in range(0, 32, 2):
            e("v_pk_mul_f32 %s, %s, s[2:3] op_sel:[0,1] op_sel_hi:[1,1]" % (vr(WL + i, 2), vr(WL + i, 2)))
        for i in range(16):
            e("v_cvt_pk_bf16_f32 %s, %s, %s" % (vr(WP + 16 * hf + i), vr(WL + 2 * i), vr(WL + 2 * i + 1)))
        for f in range(2):
            for s_ in range(2):
                e("ds_write_b128 %s, %s offset:%d" % (vr(tC), vr(WP + 16 * hf + 8 * f + 4 * s_, 4), f * 8192 + (2 * hf + s_) * 1024))
    if not int(opts.get('early', 1)):
        for t in poll: e(t)
    mark(13)
    if ST8: e("s_branch POLL_1")
    lab("POLL")
    e("s_waitcnt vmcnt(0)")
    lab("POLL_1")
    e("v_xor_b32 %s, %s, %s" % (vr(c0), sr(sTagH), vr(PC_ + 2)))
    e("v_xor_b32 %s, %s, %s" % (vr(c1), sr(sTagH), vr(PC2 + 2)))
    e("v_or_b32 %s, %s, %s" % (vr(c0), vr(c0), vr(c1)))
    e("v_lshrrev_b32 %s, 16, %s" % (vr(c0), vr(c0)))
    e("v_xor_b32 %s, %s, %s" % (vr(c1), sr(sTag), vr(PC_ + 3)))
    e("v_xor_b32 %s, %s, %s" % (vr(tD), sr(sTag), vr(PC2 + 3)))
    e("v_or3_b32 %s, %s, %s, %s" % (vr(c0), vr(c0), vr(c1), vr(tD)))
    e("v_cmp_ne_u32 vcc, 0, %s" % vr(c0))
    e("s_cmp_eq_u64 vcc, 0")
    e("s_cbranch_scc1 POLL_OK")
    e("s_mov_b64 exec, vcc")
    for t in poll: e(t)
    e("s_sub_u32 %s, %s, 1" % (sr(sSpin), sr(sSpin)))
    e("s_cbranch_scc0 POLL")
    e("s_endpgm")
    lab("POLL_OK")
    e("s_mov_b64 exec, -1")
    for pc in (PC_, PC2):
        e("v_alignbit_b32 %s, %s, %s, 16" % (vr(pc + 3), vr(pc + 1), vr(pc)))
        e("v_alignbit_b32 %s, %s, %s, 16" % (vr(pc + 2), vr(pc + 2), vr(pc + 1)))
    for pc, off in ((PC_, 0), (PC2, 512)):
        for k, v in enumerate([pc, pc + 3, pc + 1, pc + 2]):
            e("ds_write_b32 %s, %s offset:%d" % (vr(PW_), vr(v), k * 1024 + off))
    lab("POLL_DONE")
    stamp("role")
    mark(10, 11)
    e("s_waitcnt lgkmcnt(0)")
    e("s_barrier")
    stamp("offs")
    mark(4)
    wr = []
    WA = r.G[0]; WU = r.G[1]
    for m, base in enumerate([WA, WU, r.WB, r.WV]):
        for u in range(8):
            uu = m * 8 + u
            wr.append("ds_read_b128 %s, %s offset:%d" % (vr(base + 4 * u, 4), vr(c2), (uu >> 2) * 8192 + (uu & 3) * 1024))
    e("ds_read_b128 %s, %s" % (vr(EN, 4), vr(r.RI)))
    zero_list()
    for t in wr[16:24]: e(t)
    XQ = int(opts.get('xq', 0))
    if XQ:
        e("s_lshr_b32 s3, s2, 3"); e("s_mul_i32 s3, s3, %d" % (782 * 128))
        e("s_mul_i32 s97, %s, %d" % (sr(sW), 98 * 128)); e("s_add_u32 s3, s3, s97")
        e("v_lshl_add_u32 %s, %s, 7, s3" % (vr(c1), vr(lane)))
        if XQ < 64: e("s_mov_b64 exec, 0x%x" % ((1 << XQ) - 1) if XQ <= 31 else "s_mov_b32 exec_hi, 0x%x" % ((1 << (XQ - 32)) - 1))
        e("buffer_load_dword %s, %s, %s, 0 offen" % (vr(r.T), vr(c1), sr(SX, 4)))
        if XQ > 64:
            e("s_mov_b32 exec_hi, 3")
            e("v_add_u32 %s, 8192, %s" % (vr(c1), vr(c1)))
            e("buffer_load_dword %s, %s, %s, 0 offen" % (vr(r.T), vr(c1), sr(SX, 4)))
        e("s_mov_b64 exec, -1")
    e("s_or_b32 s3, s2, %s" % sr(sW))
    e("s_cbranch_scc1 NOBUMP")
    e("v_mov_b32 %s, %s" % (vr(r.RD), sr(sTag))); e("v_mov_b32 %s, %s" % (vr(r.RD + 1), sr(sE2)))
    e("v_lshlrev_b32 %s, 3, %s" % (vr(c1), vr(lane)))
    e("buffer_store_dwordx2 %s, %s, %s, 0 offen sc0 sc1" % (vr(r.RD, 2), vr(c1), sr(SOUT, 4)))
    lab("NOBUMP")
    e("s_waitcnt lgkmcnt(10)")

    def xidx(g, t): return "ds_read_u16 %s, %s offset:%d" % (vr(r.XI + 2 * t), vr(r.PS), g * 512 + SOFF[t] + 8)
    def xm0(buf): return "s_add_u32 m0, %s, %d" % (sr(sXB), buf * 4096)
    def xdma(t): return "buffer_load_dwordx4 %s, %s, %s idxen offen offset:%d lds" % (vr(r.XI + 2 * t, 2), sr(SXI, 4), sr(sSO + t) if t < 3 else "0", t * 1024)
    def xread(buf, k): return "ds_read_b128 %s, %s offset:%d" % (vr(r.X + 4 * k, 4), vr(r.XA1 if k & 1 else r.XA0), buf * 4096 + (k >> 1) * 256)
    def t0read(g): return "ds_read_b32 %s, %s offset:%d" % (vr(r.T), vr(r.PE), g * 512)
    def tiread(g): return "ds_read_b32 %s, %s offset:%d" % (vr(r.TI), vr(r.PT), g * 512 + 8)
    def soread(g, t): return "ds_read_u8 %s, %s offset:%d" % (vr(r.SO + t), vr(r.PC), g * 512 + SOFF[t] + 12)
    def trread(t): return "ds_read_b64_tr_b16 %s, %s offset:%d" % (vr(r.S + 2 * t, 2), vr(r.SO + t), TS)
    def riread(blk, ri=None): return "ds_read_b32 %s, %s offset:%d" % (vr(r.RI if ri is None else ri), vr(r.PL), LOFF + blk * 256)
    def rload(rd, ri, fl=None): return "buffer_load_dwordx4 %s, %s, %s, 0 idxen %s" % (vr(rd, 4), vr(ri), sr(SRC, 4), RLF if fl is None else fl)
    retries = []
    def check(rd, ri, name, tmp):
        retries.append((name, rd, ri))
        return ["v_cmp_gt_u32 %s, %s, %s" % (sr(sM0, 2), sr(sLim), vr(ri)),
                name + ":",
                "v_cmp_ne_u32 vcc, %s, %s" % (sr(sTag), vr(rd + 3)),
                "v_cmp_ne_u32_sdwa %s, %s, %s src0_sel:BYTE_3 src1_sel:DWORD" % (sr(sM1, 2), vr(rd + 2), sr(sTagB)),
                "v_bfe_u32 %s, %s, 16, 8" % (vr(tmp), vr(rd + 2)),
                "s_or_b64 vcc, vcc, %s" % sr(sM1, 2),
                "s_and_b64 vcc, vcc, %s" % sr(sM0, 2),
                "s_cbranch_scc1 %s_R" % name]
    def keyfix(rd, sel, op=0x72): return "v_bitop3_b32 %s, %s, %s, %s bitop3:0x%x" % (vr(rd + 2), vr(sel), vr(rd + 2), sr(sKx), op)
    def lookup(rd, tmp, sel):
        return ["ds_read_b32 %s, %s offset:%d" % (vr(sel), vr(tmp), RTB),
                "ds_read_b32 %s, %s offset:%d" % (vr(rd + 3), vr(tmp), RTB + 4)]
    def rwrite(rd, blk): return "ds_write_b128 %s, %s offset:%d" % (vr(r.PW), vr(rd, 4), blk * 1024)
    def emit(lst):
        for t in lst:
            if t.endswith(":"): L.append(t)
            else: e(t)
    KX = c2 + 0

    lab("EXPAND")
    sd2 = "dst_sel:DWORD dst_unused:UNUSED_PAD src0_sel:WORD_1 src1_sel:WORD_0"
    sd = "dst_sel:DWORD dst_unused:UNUSED_PAD src0_sel:WORD_0 src1_sel:DWORD"
    for i in range(3): e("v_sub_u32_sdwa %s, %s, %s %s" % (vr(P + 1 + i), vr(EN + i), vr(EN + i), sd2))
    e("v_sub_u32_sdwa %s, %s, %s %s" % (vr(INC), vr(EN + 3), vr(EN + 3), sd2))
    e("v_add_u32 %s, %s, %s" % (vr(P + 2), vr(P + 1), vr(P + 2)))
    e("v_add_u32 %s, %s, %s" % (vr(P + 3), vr(P + 2), vr(P + 3)))
    e("v_add_u32 %s, %s, %s" % (vr(INC), vr(P + 3), vr(INC)))
    fill = ["v_add_u32 %s, %s, %s" % (vr(TOT), sr(sW0), vr(INC))]
    fill += ["v_add_u32_sdwa %s, %s, %s %s" % (vr(D + i), vr(EN + i), vr(CB), sd) for i in range(4)]
    fill += ["v_add_u32 %s, %d, %s" % (vr(D + i), i * CH, vr(D + i)) for i in range(1, 4)]
    fill += ["v_sub_u32 %s, %s, %s" % (vr(P + i), vr(P + i), vr(TOT)) for i in range(1, 4)]
    scan64("v_add_u32", INC, fill)
    e("v_sub_u32 %s, %s, %s" % (vr(P), vr(INC), vr(TOT)))
    e("v_readlane_b32 %s, %s, 63" % (sr(sTot), vr(INC)))
    for i in range(1, 4):
        e("v_add_u32 %s, %s, %s" % (vr(P + i), vr(INC), vr(P + i)))
    for i in range(4):
        e("v_sub_u32 %s, %s, %s" % (vr(D + i), vr(D + i), vr(P + i)))
        e("v_med3_i32 %s, %s, 0, %s" % (vr(P + i), vr(P + i), vr(C512)))
        e("v_lshl_add_u32 %s, %s, 2, %s" % (vr(P + i), vr(P + i), sr(sREC)))
    for i in range(4):
        e("ds_max_u32 %s, %s offset:%d" % (vr(P + i), vr(D + i), LOFF))
    if ROT:
        e("s_sub_u32 s3, %s, %s" % (sr(sTot), sr(sW0))); e("s_min_u32 s3, s3, 512"); e("s_lshl_b32 s3, s3, 2"); e("s_add_u32 s3, s3, %s" % sr(sREC))
        e("v_mov_b32 %s, s3" % vr(P)); e("v_mov_b32 %s, 2.0" % vr(D))
        e("s_mov_b64 exec, 1")
        e("ds_write_b32 %s, %s offset:%d" % (vr(P), vr(D), LOFF))
        e("s_mov_b64 exec, -1")
    e("ds_read_b128 %s, %s offset:%d" % (vr(M, 4), vr(LA), LOFF))
    e("ds_read_b128 %s, %s offset:%d" % (vr(M + 4, 4), vr(LA), LOFF + 16))
    e("s_lshl_b32 s3, %s, 3" % sr(sTot)); e("s_or_b32 s3, s3, %s" % sr(sW))
    e("v_mov_b32 %s, s3" % vr(TOT))
    e("s_mov_b64 exec, 1")
    e("ds_write_b32 %s, %s offset:%d" % (vr(W4), vr(TOT), TOTA))
    e("s_mov_b64 exec, -1")
    e("s_cmp_eq_u32 %s, 0" % sr(sFirst))
    e("s_cbranch_scc1 EXP_B")
    for t in wr[24:32]: e(t)
    e("s_waitcnt lgkmcnt(9)")
    e("s_branch EXP_C")
    lab("EXP_B")
    e("s_waitcnt lgkmcnt(1)")
    lab("EXP_C")
    e("v_max3_u32 %s, %s, %s, %s" % (vr(INC), vr(M), vr(M + 1), vr(M + 2)))
    e("v_max3_u32 %s, %s, %s, %s" % (vr(INC), vr(INC), vr(M + 3), vr(M + 4)))
    e("v_max3_u32 %s, %s, %s, %s" % (vr(INC), vr(INC), vr(M + 5), vr(M + 6)))
    e("v_max_u32 %s, %s, %s" % (vr(INC), vr(INC), vr(M + 7)))
    scan64("v_max_u32", INC, ["v_max_u32 %s, %s, %s" % (vr(M + k), vr(M + k - 1), vr(M + k)) for k in range(1, 8)])
    e("s_nop 1")
    e("v_mov_b32_dpp %s, %s wave_shr:1 row_mask:0xf bank_mask:0xf" % (vr(PREV), vr(INC)))
    for k in range(8):
        e("v_max_u32 %s, %s, %s" % (vr(M + k), vr(PREV), vr(M + k)))
        e("v_add3_u32 %s, %s, %s, %d" % (vr(M + k), vr(M + k), vr(JB), k))
        if ROT:
            e("v_subrev_u32 %s, %d, %s" % (vr(INC), 256 * CH, vr(M + k)))
            e("v_min_u32 %s, %s, %s" % (vr(M + k), vr(INC), vr(M + k)))
    e("ds_write_b128 %s, %s offset:%d" % (vr(LA), vr(M, 4), LOFF))
    e("ds_write_b128 %s, %s offset:%d" % (vr(LA), vr(M + 4, 4), LOFF + 16))
    RI1 = r.TI; RD1 = r.S; F0 = r.XI; F1 = r.XI + 2
    e("v_lshrrev_b32 %s, 3, %s" % (vr(c0), vr(lane)))
    e("v_lshlrev_b32 %s, 2, %s" % (vr(c0), vr(c0)))
    e("v_and_b32 %s, 7, %s" % (vr(c1), vr(lane)))
    e("v_lshlrev_b32 %s, 3, %s" % (vr(r.XI + 4), vr(c1)))
    e("v_lshlrev_b32 %s, 2, %s" % (vr(c1), vr(c1)))
    e("s_sub_u32 s3, 7, %s" % sr(sW)); e("s_sub_u32 s97, %s, 4" % sr(sW))
    e("s_cmp_lt_u32 %s, 4" % sr(sW)); e("s_cselect_b32 s97, s3, s97")
    e("s_waitcnt lgkmcnt(0)")
    def pointers():
        e("v_bfe_u32 %s, %s, 2, 2" % (vr(c0), vr(lane)))
        e("v_lshrrev_b32 %s, 5, %s" % (vr(c1), vr(lane)))
        e("v_lshl_or_b32 %s, %s, 3, %s" % (vr(c0), vr(c1), vr(c0)))
        e("v_lshl_add_u32 %s, %s, 4, %s" % (vr(r.PS), vr(c0), sr(sREC)))
        e("v_and_b32 %s, 3, %s" % (vr(c0), vr(lane)))
        e("v_add_u32 %s, %s, %s" % (vr(r.PC), vr(c0), vr(r.PS)))
        e("v_and_b32 %s, 31, %s" % (vr(c0), vr(lane)))
        e("v_lshl_add_u32 %s, %s, 4, %s" % (vr(r.PT), vr(c0), sr(sREC)))
        e("v_lshl_add_u32 %s, %s, 2, %s" % (vr(r.PE), vr(c1), vr(r.PT)))
        e("v_lshl_add_u32 %s, %s, 4, %s" % (vr(r.PW), vr(lane), sr(sREC)))
        e("s_min_u32 %s, %s, %s" % (sr(sTot), sr(sTot), sr(sLim)))
        e("s_sub_u32 s3, %s, %s" % (sr(sTot), sr(sW0)))
        e("s_min_u32 s3, s3, 512")
        e("s_add_u32 s3, s3, 31")
        e("s_bitcmp0_b32 s3, 4")
        e("s_cselect_b32 %s, 0, -1" % sr(sRET))
        e("s_lshr_b32 s3, s3, 5")
        e("s_max_u32 s3, s3, 1")
        e("s_sub_u32 %s, s3, 1" % sr(sNG))
        e("s_mov_b32 %s, 2" % sr(sBLK))
    e("s_cmp_eq_u32 %s, 0" % sr(sFirst))
    e("s_cbranch_scc1 LATER")
    stamp("expand")
    e("s_barrier")
    e("ds_read_b32 %s, %s offset:%d" % (vr(c0), vr(c0), TOTA))
    e("ds_read_b32 %s, %s offset:%d" % (vr(c1), vr(c1), TOTA))
    for s in wr[8:12]: e(s)
    e("s_waitcnt lgkmcnt(4)")
    e("v_cmp_lt_u32 vcc, %s, %s" % (vr(c1), vr(c0)))
    e(wr[12]); e(wr[13])
    e("v_lshrrev_b64 %s, %s, vcc" % (vr(r.SO, 2), vr(r.XI + 4)))
    e("v_and_b32 %s, 0xff, %s" % (vr(r.SO), vr(r.SO)))
    e("v_bcnt_u32_b32 %s, %s, 0" % (vr(r.SO), vr(r.SO)))
    e("v_cmp_eq_u32 vcc, s97, %s" % vr(r.SO))
    e("s_ff1_i32_b64 s97, vcc")
    e("v_readlane_b32 %s, %s, s97" % (sr(sTot), vr(c1)))
    e("s_lshl_b32 %s, s97, 11" % sr(sXT)); e("s_add_u32 %s, %s, %d" % (sr(sXT), sr(sXT), XTB))
    e("s_lshl_b32 %s, s97, 13" % sr(sREC)); e("s_add_u32 %s, %s, %d" % (sr(sREC), sr(sREC), RECB))
    e("v_lshl_add_u32 %s, %s, 2, %s" % (vr(r.PL), vr(lane), sr(sREC)))
    e(riread(0)); e(riread(1, RI1))
    def xtile(mapreg, dst):
        e("v_add_u32 %s, %s, %s" % (vr(mapreg), sr(sXT), vr(mapreg)))
        tm = [mapreg, c0, c1, r.SO]
        for s in range(1, 4): e("v_xor_b32 %s, %d, %s" % (vr(tm[s]), 32 * s, vr(mapreg)))
        for s in range(4): e("ds_read_b128 %s, %s" % (vr(dst + 4 * s, 4), vr(tm[s])))
    NU = int(opts.get('nu', 16))
    xtile(FU, r.AT)
    RP = int(opts.get('rp', 8)); RP1 = int(opts.get('rp1', RP))
    if RP < 0:
        e("s_waitcnt lgkmcnt(4)")
        e(rload(r.RD, r.RI, RL0))
        if RP1 < 0: e(rload(RD1, RI1, RL0))
    e(wr[14]); e(wr[15])
    xtile(FA, r.X)
    for s in wr[0:8]: e(s)
    WT = r.ACC[0]
    for i in range(4):
        e("v_lshlrev_b32 %s, 16, %s" % (vr(WT + i), vr(WCR + i)))
        e("v_and_b32 %s, 0xffff0000, %s" % (vr(WT + 4 + i), vr(WCR + i)))
    for i in range(8):
        e("v_mul_f32 %s, s92, %s" % (vr(WT + i), vr(WT + i)))
    for i in range(4):
        e("v_cvt_pk_bf16_f32 %s, %s, %s" % (vr(WCR + i), vr(WT + 2 * i), vr(WT + 2 * i + 1)))
    e("s_lshr_b32 %s, %s, 3" % (sr(sTot), sr(sTot)))
    e("s_lshl_b32 %s, %s, 3" % (sr(sT), sr(sBin))); e("s_add_u32 %s, %s, s97" % (sr(sT), sr(sT)))
    ua = []
    for f in range(2):
        for s in range(4):
            ua.append(mfma(r.ACC[f], r.AT + 4 * s, WU + 16 * f + 4 * s, None if s == 0 else r.ACC[f]))
    for f in range(2):
        for s in range(4):
            ua.append(mfma(WU + 16 * f, r.X + 4 * s, WA + 16 * f + 4 * s, None if s == 0 else WU + 16 * f))
    n0 = len(L)
    pointers()
    tile_range()
    e("s_min_u32 %s, %s, %d" % (sr(sEnd), sr(sEnd), N_NODES))
    e("s_sub_u32 s3, %s, %s" % (sr(sEnd), sr(sStart))); e("s_lshl_b32 s3, s3, 7")
    e("s_lshl_b32 s97, %s, 7" % sr(sStart))
    srd(SOUT, 22, "s3", "s97")
    misc = L[n0:]; del L[n0:]
    e("s_waitcnt lgkmcnt(12)")
    for k in range(NU):
        if k == 8: e("s_waitcnt lgkmcnt(0)")
        if k == RP: e(rload(r.RD, r.RI, RL0))
        if k == RP1: e(rload(RD1, RI1, RL0))
        e(ua[k])
        for _ in range(5):
            if misc: L.append(misc.pop(0))
    L.extend(misc)
    CV = int(opts.get('cv', 0))
    def cvts():
        for i in range(8):
            e("v_cvt_pk_bf16_f32 %s, %s, %s" % (vr(r.U + i), vr(r.ACC[0] + i), vr(r.ACC[1] + i)))
        e("s_mov_b32 s3, 0x358637bd")
        for f in range(2):
            for i in range(16): e("v_mov_b32 %s, %s" % (vr(r.ACC[f] + i), "s3" if i < 8 else "0"))
        for f in range(2):
            for i in range(8):
                e("v_cvt_pk_bf16_f32 %s, %s, %s" % (vr(r.AT + 8 * f + i), vr(WU + 16 * f + 2 * i) if i & 1 else "0", vr(WU + 16 * f + 2 * i + 1)))
        e("s_mov_b32 exec_hi, 0")
        for f in range(2):
            e("v_mov_b32 %s, %s" % (vr(r.AT + 8 * f), vr(WCR + 2 * f)))
            e("v_mov_b32 %s, %s" % (vr(r.AT + 8 * f + 4), vr(WCR + 2 * f + 1)))
        e("s_mov_b64 exec, -1")
    if RP == 16: e(rload(r.RD, r.RI, RL0))
    if RP1 == 16: e(rload(RD1, RI1, RL0))
    e("s_waitcnt lgkmcnt(0)")
    e("s_barrier")
    if CV:
        assert NU == 16
        e("s_nop 3")
        cvts()
    if int(opts.get('rdl', 0)): e("s_sleep %d" % int(opts['rdl']))
    if RP == 17: e(rload(r.RD, r.RI, RL0))
    if RP1 == 17: e(rload(RD1, RI1, RL0))
    lab("NOW")
    e("s_mov_b32 m0, %s" % sr(sXB))
    e("s_waitcnt vmcnt(1)")
    emit(check(r.RD, r.RI, "FX0", c0))
    e("v_xor_b32 %s, 0xffff, %s" % (vr(r.RD + 2), vr(r.RD + 2)))
    e(rwrite(r.RD, 0))
    for t in range(4): e(xidx(0, t))
    emit(lookup(r.RD, c0, c1))
    e(riread(2))
    stamp("rec")
    mark(8)
    e("s_waitcnt lgkmcnt(3)")
    for t in range(4): e(xdma(t))
    for t in range(4): e(xidx(1, t))
    e("s_cmp_eq_u32 %s, 0" % sr(sFirst))
    e("s_cbranch_scc1 NOW2")
    for t in ua[NU:]: e(t)
    lab("NOW2")
    e("s_waitcnt vmcnt(4)")
    emit(check(RD1, RI1, "FX1", c0))
    emit(lookup(RD1, c0, c2))
    e("s_waitcnt lgkmcnt(2)")
    e(keyfix(r.RD, c1, 0xd8))
    e("ds_write_b64 %s, %s offset:8" % (vr(r.PW), vr(r.RD + 2, 2)))
    e(t0read(0)); e(tiread(0))
    e(xm0(1))
    X1L = int(opts.get('x1l', 0))
    def x1():
        for t in range(4): e(xdma(t))
        e(rload(r.RD, r.RI, RL2))
        for t in range(4): e(xidx(2, t))
    e("s_cmp_eq_u32 %s, 0" % sr(sFirst))
    e("s_cbranch_scc1 NOW3")
    if not CV: cvts()
    lab("NOW3")
    e("s_waitcnt lgkmcnt(2)")
    e(keyfix(RD1, c2))
    e(rwrite(RD1, 1))
    if not X1L: x1()
    stamp("atile")
    e("s_waitcnt vmcnt(%d)" % (0 if X1L else 5))
    stamp("x0")
    for k in range(4): e(xread(0, k))
    if X1L: x1()
    e(xm0(0))
    for s_ in range(4):
        e("s_waitcnt lgkmcnt(%d)" % (0 if s_ == 3 else 3 - s_ + 4 * X1L))
        e(mfma(r.G[0], r.X + 4 * s_, r.WB + 4 * s_, None if s_ == 0 else r.G[0]))
    e(xdma(0))
    e(smf(r.G[0], r.T, r.AT, r.TI, 1))
    e(xdma(1))
    e("s_nop 6")
    stamp("loop"); stamp("rtloop", True)
    if STAMP:
        e("s_add_u32 s100, %s, 1" % sr(sNG)); e("v_writelane_b32 v%d, s100, 28" % STV)
    mark(3)

    def I(text, lds=None, need=()): return dict(text=text, lds=lds, need=list(need))
    def oct_(base, o):
        o %= 4
        return base[o >> 1] + 8 * (o & 1)
    def C_(o, i): return "v_cvt_pk_bf16_f32 %s, %s, %s" % (vr(oct_(r.V, o) + i), vr(r.ETA + i), vr(oct_(r.V, o) + i))
    def R_(o, i): return "v_rcp_f32 %s, %s" % (vr(r.ETA + i), vr(oct_(r.G, o) + i))
    def E_(o, i): return "v_exp_f32 %s, %s" % (vr(oct_(r.G, o) + i), vr(oct_(r.G, o) + i))
    def A_(o):
        g_ = oct_(r.G, o)
        return ["v_pk_add_f32 %s, %s, 1.0 op_sel_hi:[1,0]" % (vr(g_ + i, 2), vr(g_ + i, 2)) for i in range(0, 8, 2)]
    def M_(o, pk=True):
        v_ = oct_(r.V, o)
        if pk: return ["v_pk_mul_f32 %s, %s, %s" % (vr(v_ + i, 2), vr(v_ + i, 2), vr(r.ETA + i, 2)) for i in range(0, 8, 2)]
        return ["v_mul_f32 %s, %s, %s" % (vr(v_ + i), vr(r.ETA + i), vr(v_ + i)) for i in range(8)]
    def red(f, hi): return smf(r.ACC[f], r.S + 4 * hi, r.V[f] + 8 * hi, r.SI)
    def gch(f): return [mfma(r.G[f], r.X + 4 * k, r.WB + 16 * f + 4 * k, None if k == 0 else r.G[f]) for k in range(4)] + [smf(r.G[f], r.T, r.AT + 8 * f, r.TI, 1)]
    def vch(f): return [mfma(r.V[f], r.X + 4 * k, r.WV + 16 * f + 4 * k, None if k == 0 else r.V[f]) for k in range(4)]
    CUT6 = [0, 3, 6, 10, 14, 18]; CUT5 = [0, 4, 8, 12, 16]
    HALF = int(opts.get('half', 1))
    def sub(s_, g, first=False):
        nb = (g + 1) & 1
        tail = []
        if s_ == 0:
            mm = [I(red(0, 0), need=['S3']), I(red(0, 1))] + [I(t) for t in vch(0)]
            aux = [[], [I(soread(g, 0), lds='SO0')], [I(xdma(2)), I(soread(g, 1), lds='SO1')], [I(xdma(3))],
                   [I(soread(g, 2), lds='SO2')], [I(soread(g, 3), lds='SO3')]]
            if g == 1:
                aux[0] += [I("s_cmp_eq_u32 %s, 0" % sr(sLim))]
                aux[1] = [I("s_cbranch_scc1 WR_S", need=['RT']), I(rwrite(r.RD, 2)), I("WR_S:")] + aux[1]
                aux[4].insert(0, I(rload(r.RD, r.RI), need=['RI', 'SO0']))
        elif s_ == 1:
            mm = [I(t) for t in gch(1)]
            aux = [[I(xidx(g + 3, k), lds='XI%d' % k)] for k in range(4)] + [[I(t0read(g + 1), lds='T0')]]
        elif s_ == 2:
            mm = [I(red(1, 0)), I(red(1, 1))] + [I(t) for t in vch(1)]
            aux = [[I(tiread(g + 1), lds='TI')], [I("s_waitcnt vmcnt(%d)" % (4 if g == 0 else 5), need=['XI3']), I(trread(0), lds='S0')]] + [[I(xread(nb, k), lds='X%d' % k)] for k in range(4)]
            aux[5].insert(0, I("s_waitcnt", need=['X1']))
            dec = I("s_sub_u32 %s, %s, 1" % (sr(sNG), sr(sNG)))
            if g == 0:
                tail = [I(t) for t in check(r.RD, r.RI, "FXP" if first else "FXL", c0)]
                tail += [dec]
                if not first:
                    aux[3].insert(0, I("s_cmp_gt_u32 %s, 7" % sr(sBLK)))
                    aux[4].insert(0, I("s_cselect_b32 %s, 0, %s" % (sr(sLim), sr(sLim))))
            else: aux[4].insert(0, dec)
        else:
            gc = gch(0)
            mm = [I(gc[k], need=['X%d' % k]) for k in range(4)] + [I(gc[4], need=['T0', 'TI'])]
            aux = [[I(trread(1), lds='S1')], [I("s_waitcnt", need=['X3']), I(trread(2), lds='S2')], [I(xm0(nb)), I(trread(3), lds='S3')],
                   [I(xdma(0))], [I("s_waitcnt", need=['S3']), I(xdma(1))]]
            if HALF: aux[3].insert(0, I("s_or_b32 s3, %s, %s" % (sr(sNG), sr(sRET))))
            if g == 0:
                aux[2].append(I(riread(3), lds='RI'))
                aux[0].insert(0, I("s_add_u32 %s, %s, 1" % (sr(sBLK), sr(sBLK))))
                lk = lookup(r.RD, c0, c1)
                aux[0].append(I(lk[0], lds='RT0')); aux[1].append(I(lk[1], lds='RT'))
                tail = [I(keyfix(r.RD, c1), need=['RT'])]
            else:
                tail = [I("v_lshl_add_u64 %s, %s, 0, %s" % (vr(r.PS, 2), vr(r.PS, 2), sr(sINC, 2))),
                        I("v_lshl_add_u64 %s, %s, 0, %s" % (vr(r.PT, 2), vr(r.PT, 2), sr(sINC, 2))),
                        I("v_lshl_add_u64 %s, %s, 0, %s" % (vr(r.PL, 2), vr(r.PL, 2), sr(sINC2, 2)))]
        va = []
        for i in range(8):
            if not (first and s_ < 2): va.append(C_(s_ - 2, i))
            if not (first and s_ < 1): va.append(R_(s_ - 1, i))
            va.append(E_(s_, i))
        cut = CUT6 if len(mm) == 6 else CUT5
        if first and s_ in (0, 2):
            aux = [aux[0] + aux[1] + aux[2]] + aux[3:]; mm = mm[2:]
            cut = [0, 2, 4, 6] if s_ == 0 else [0, 4, 8, 12]
        if first and s_ == 1: cut = [0, 3, 6, 9, 12]
        aux[0].insert(0, I("s_setprio 1"))
        aux[-1].insert(0, I("s_setprio 3"))
        out = []
        for k, t in enumerate(va):
            if k in cut:
                j = cut.index(k); out.append(mm[j]); out.extend(aux[j])
            out.append(I(t))
        out += tail + [I(t) for t in ([] if first and s_ == 0 else M_(s_ - 1)) + A_(s_)]
        if s_ == 2: out.append(I("s_cbranch_scc1 TAIL"))
        return out
    state = dict(issued=[], done=0)
    def run(seq, out):
        issued = state['issued']
        for it in seq:
            n = None
            for tag in it['need']:
                idxs = [k for k, t in enumerate(issued) if t == tag]
                if not idxs: continue
                k = idxs[-1]
                if k >= state['done']:
                    n = len(issued) - 1 - k
                    state['done'] = k + 1
            tx = it['text']
            if n is not None:
                assert n <= 15
                if tx.startswith("s_waitcnt"): tx += " lgkmcnt(%d)" % n
                elif out: e("s_waitcnt lgkmcnt(%d)" % n)
            if out and tx != "s_waitcnt": emit([tx])
            if it['lds']: issued.append(it['lds'])
    cyc = lambda g, first=False: sum((sub(s_, g, first) for s_ in range(4)), [])
    c_first, c_even, c_odd = cyc(0, True), cyc(0), cyc(1)
    run(c_first, True)
    e("s_branch MID")
    run(c_odd, False)
    L.append(".p2align 3")
    lab("LOOP")
    run(c_even, True)
    lab("MID")
    if HALF: e("s_cbranch_scc0 HALF1")
    run(c_odd, True)
    XR = r.X; UF = r.G[0]; XF = r.V[0]
    def epi_addr():
        return ["v_lshrrev_b32 %s, 5, %s" % (vr(c0), vr(lane)),
                "v_and_b32 %s, 31, %s" % (vr(c1), vr(lane)),
                "v_lshlrev_b32 %s, 2, %s" % (vr(c1), vr(c1)),
                "v_mul_u32_u24 %s, 0x240, %s" % (vr(c2), vr(c0)),
                "v_xor_b32 %s, %s, %s" % (vr(c2), vr(c2), vr(c1)),
                "v_add_u32 %s, %s, %s" % (vr(c2), sr(sXT), vr(c2))]
    if HALF:
        e("s_cbranch_scc1 LOOP")
        e("s_branch HALF0")
        lab("HALF1")
        e("v_add_u32 %s, 512, %s" % (vr(r.PC), vr(r.PC)))
        lab("HALF0")
        def weave(mm, va, cut):
            for k, t in enumerate(va):
                if k in cut: e(mm[cut.index(k)])
                e(t)
        e("s_setprio 1")
        e(soread(0, 0)); e(soread(0, 1))
        va = []
        for i in range(8): va += [C_(2, i), R_(3, i), E_(0, i)]
        weave([red(0, 0), red(0, 1)] + vch(0), va, CUT6)
        e("s_setprio 3")
        for t in M_(3) + A_(0): e(t)
        e("s_setprio 1")
        va = []
        for i in range(8): va += [C_(3, i), R_(0, i)]
        weave(gch(1), va, [0, 3, 6, 9, 12])
        for t in M_(0, False): e(t)
        e(red(1, 0))
        e("s_waitcnt lgkmcnt(0)")
        e(trread(0)); e(trread(1))
        va = []
        for i in range(8): va += [C_(0, i), E_(2, i)]
        weave([red(1, 1)] + vch(1), va, [1, 4, 7, 10, 13])
        for i in range(8): e("v_add_f32 %s, 1.0, %s" % (vr(r.G[1] + i), vr(r.G[1] + i)))
        e("s_waitcnt lgkmcnt(0)")
        e(red(0, 0))
        for i in range(8): e(R_(2, i))
        pre = epi_addr()
        e(pre.pop(0))
        for t in M_(2, False): e(t)
        for i in range(8): e(C_(2, i))
        for t in pre: e(t)
        e(red(1, 0))
        e("s_branch FIN")
    else:
        e("s_branch LOOP")
    lab("TAIL")
    e("s_setprio 2")
    e(trread(1)); e(trread(2)); e(trread(3))
    for i in range(8): e(C_(1, i)); e(R_(2, i)); e(E_(3, i))
    e("s_waitcnt lgkmcnt(0)")
    e(red(0, 0))
    for t in M_(2, False): e(t)
    e(red(0, 1))
    for i in range(8): e("v_add_f32 %s, 1.0, %s" % (vr(r.G[1] + 8 + i), vr(r.G[1] + 8 + i)))
    pre = epi_addr()
    for i in range(8): e(C_(2, i)); e(R_(3, i))
    e(pre.pop(0)); e(pre.pop(0))
    e(red(1, 0))
    for t in M_(3, False): e(t)
    for i in range(8): e(C_(3, i))
    for t in pre: e(t)
    e(red(1, 1))
    lab("FIN")
    stamp("loopend"); stamp("rtloopend", True)
    e("s_setprio 3")
    e("s_add_u32 %s, %s, 512" % (sr(sW0), sr(sW0)))
    e("s_cmp_lt_u32 %s, %s" % (sr(sW0), sr(sTot)))
    e("s_cbranch_scc1 MORE")
    EA_ = r.X + 8
    for q_ in range(1, 4): e("v_xor_b32 %s, %d, %s" % (vr(EA_ + q_), 16 * q_, vr(c2)))
    for q_ in range(4):
        e("ds_read_b32 %s, %s offset:%d" % (vr(XR + q_), vr(EA_ + q_ if q_ else c2), q_ * 128))
        if q_ < 3: e("ds_read_b32 %s, %s offset:%d" % (vr(XR + q_ + 4), vr(EA_ + q_ if q_ else c2), q_ * 128 + 1024))
    for q_ in range(7):
        e("v_lshlrev_b32 %s, 16, %s" % (vr(UF + q_), vr(r.U + q_)))
        e("v_and_b32 %s, 0xffff0000, %s" % (vr(UF + 8 + q_), vr(r.U + q_)))
    B0, B1 = EA_ + 4, EA_ + 5
    e("v_lshl_add_u32 %s, %s, 9, %s" % (vr(B0), vr(c0), vr(c1)))
    e("s_movk_i32 s3, 384")
    e("v_mad_u32_u24 %s, %s, s3, %s" % (vr(B1), vr(c0), vr(c1)))
    for f in range(2):
        for q_ in range(7):
            e("v_rcp_f32 %s, %s" % (vr(r.ACC[f] + q_), vr(r.ACC[f] + q_)))
    e("s_waitcnt lgkmcnt(0)")
    for q_ in range(7):
        e("v_lshlrev_b32 %s, 16, %s" % (vr(XF + q_), vr(XR + q_)))
        e("v_and_b32 %s, 0xffff0000, %s" % (vr(XF + 8 + q_), vr(XR + q_)))
    for f in range(2):
        for q_ in range(0, 8, 2):
            e("v_pk_fma_f32 %s, %s, %s, %s" % (vr(UF + 8 * f + q_, 2), vr(r.ACC[f] + q_, 2), vr(r.ACC[f] + 8 + q_, 2), vr(UF + 8 * f + q_, 2)))
    for f in range(2):
        for q_ in range(7):
            e("v_max_f32 %s, 0, %s" % (vr(UF + 8 * f + q_), vr(UF + 8 * f + q_)))
    for q_ in range(0, 8, 2):
        for f in range(2):
            e("v_pk_add_f32 %s, %s, %s" % (vr(UF + 8 * f + q_, 2), vr(UF + 8 * f + q_, 2), vr(XF + 8 * f + q_, 2)))
    for q_ in range(7):
        e("v_cvt_pk_bf16_f32 %s, %s, %s" % (vr(r.U + q_), vr(UF + q_), vr(UF + 8 + q_)))
        e("buffer_store_dword %s, %s, %s, 0 offen offset:%d %s" % (vr(r.U + q_), vr(B0 if q_ < 4 else B1), sr(SOUT, 4), (q_ if q_ < 4 else q_ + 4) * 128, OSF))
    if STAMP:
        e("s_waitcnt vmcnt(0)")
        stamp("end"); stamp("rtend", True)
        e("s_sub_u32 s100, %d, %s" % (SPINMAX, sr(sSpin))); e("v_writelane_b32 v%d, s100, 29" % STV)
        e("s_getreg_b32 s100, hwreg(HW_REG_HW_ID)"); e("v_writelane_b32 v%d, s100, 30" % STV)
        e("s_lshl_b32 s3, s2, 3"); e("s_add_u32 s3, s3, %s" % sr(sW)); e("s_lshl_b32 s3, s3, 7"); e("s_add_u32 s3, s3, 0x%x" % WS_DBG)
        srd(SA, 26, 128, "s3")
        e("v_lshlrev_b32 %s, 2, %s" % (vr(c0), vr(lane)))
        e("buffer_store_dword v%d, %s, %s, 0 offen" % (STV, vr(c0), sr(SA, 4)))
    if DW:
        if 'dwg' in opts:
            e("s_cmp_lg_u32 s2, %s" % opts['dwg']); e("s_cbranch_scc1 K_END")
        if DW == 10: e("s_cmp_gt_u32 %s, 3" % sr(sW)); e("s_cbranch_scc1 K_END")
        if DW in (11, 12, 13): e("s_cmp_lt_u32 %s, 4" % sr(sW)); e("s_cbranch_scc1 K_END")
        e("s_waitcnt vmcnt(0) lgkmcnt(0)")
        lab("SPIN")
        e("s_memrealtime s[100:101]"); e("s_waitcnt lgkmcnt(0)")
        e("s_sub_u32 s100, s100, s98"); e("s_cmp_lt_u32 s100, 6000"); e("s_cbranch_scc1 SPIN")
    lab("K_END")
    e("s_endpgm")
    for name, rd, ri in retries:
        lab(name + "_R")
        e("s_mov_b64 exec, vcc")
        if int(opts.get('rsl', 0)): e("s_sleep %d" % int(opts.get('rsl', 0)))
        e(rload(rd, ri, "sc0 sc1"))
        e("s_mov_b64 exec, -1")
        e("s_sub_u32 %s, %s, 1" % (sr(sSpin), sr(sSpin)))
        e("s_waitcnt vmcnt(0)")
        e("s_cbranch_scc0 %s" % name)
        e("s_endpgm")
    lab("LATER")
    e(riread(0)); e(riread(1, RI1))
    pointers()
    e("s_waitcnt lgkmcnt(0)")
    e(rload(r.RD, r.RI)); e(rload(RD1, RI1))
    e("s_branch NOW")
    lab("MORE")
    e("s_mov_b32 %s, %d" % (sr(sLim), NC * CH))
    e("s_mov_b32 %s, 0" % sr(sFirst))
    e("s_waitcnt vmcnt(0) lgkmcnt(0)")
    e("s_nop 15")
    e("s_lshr_b32 s3, %s, 2" % sr(sT)); e("s_lshl_b32 s3, s3, 4")
    e("s_and_b32 s97, %s, 3" % sr(sT)); e("s_lshl_b32 s97, s97, 1"); e("s_add_u32 s3, s3, s97")
    e("v_lshl_add_u32 %s, %s, 2, %s" % (vr(c0), vr(lane), sr(sC0) if ROT else "0"))
    for i in range(4):
        e("v_and_b32 %s, 255, %s" % (vr(c1), vr(c0)))
        e("v_lshl_add_u32 %s, %s, 13, s3" % (vr(c1), vr(c1)))
        e("buffer_load_ushort %s, %s, %s, 0 offen sc0 sc1" % (vr(EN + i), vr(c1), sr(SOFS, 4)))
        e("buffer_load_ushort %s, %s, %s, 0 offen offset:2 sc0 sc1" % (vr(D + i), vr(c1), sr(SOFS, 4)))
        e("v_add_u32 %s, 1, %s" % (vr(c0), vr(c0)))
    expand_pre()
    zero_list()
    e("s_waitcnt vmcnt(0)")
    for i in range(4): e("v_lshl_or_b32 %s, %s, 16, %s" % (vr(EN + i), vr(D + i), vr(EN + i)))
    e("s_branch EXPAND")
    return r.n

hdr = open('cdna_kernels/%s.s.ref' % NAME).read().split('\n')
hdr = [l for l in hdr if l.startswith(';   offset') or l.startswith('; Kernarg')]
L.append('.amdgcn_target "amdgcn-amd-amdhsa--gfx950"')
L.append('.text')
nv = kernel()
L.append('.section .rodata,"a"')
L += [".p2align 6", ".amdhsa_kernel %s" % KN, "  .amdhsa_next_free_vgpr 256", "  .amdhsa_next_free_sgpr 102",
      "  .amdhsa_accum_offset 256", "  .amdhsa_group_segment_fixed_size 0", "  .amdhsa_kernarg_size 96",
      "  .amdhsa_user_sgpr_count 2", "  .amdhsa_user_sgpr_kernarg_segment_ptr 1", "  .amdhsa_system_sgpr_workgroup_id_x 1",
      ".end_amdhsa_kernel"]
if opts.get('list', '0') == '1':
    top = hdr + ["; @launch kernel=%s grid=(256,1,1) block=(512,1,1) lds=%d" % (KN, LDS_BYTES)]
else:
    top = hdr + ["; @launch grid=(256,1,1) block=(512,1,1) lds=%d" % LDS_BYTES]
open(OUT, 'w').write("\n".join(top + L) + "\n")
if STAMP: open('stamps.txt', 'w').write(" ".join(names))
print("vgprs:", nv, "lines:", len(L))
```

```python
import sys, re

NAME = "standalone__edge_featured_mpnn_gatedgcn__graph"
KN = NAME + "_kernel"
N_NODES = 25000
CH = 3200
NC = 250
TMUL = 5368
WS_REC = 0
WS_OFF = 0xD00000
WS_EPO = 0xF00000
WS_DBG = 0x1000000
NEGLOG2E = 0xBFB8AA3B
SPINMAX = 2000000

opts = dict(a.split('=') for a in sys.argv[1:] if '=' in a)
OUT = opts.get('out', 'cdna_kernels/%s.s' % NAME)
STAMP = int(opts.get('stamp', 0))
STF = opts.get('stf', 'sc1').replace('+', ' ')
LDF = opts.get('ldf', 'nt').replace('+', ' ')
RLF = opts.get('rlf', '').replace('+', ' ')
RL0 = opts.get('rl0', '').replace('+', ' ')
RL2 = opts.get('rl2', '').replace('+', ' ')
XPF = int(opts.get('xpf', 0))
PLF = opts.get('plf', 'sc1').replace('+', ' ')
OSF = opts.get('osf', 'sc1').replace('+', ' ')
DW = int(opts.get('dw', 0))
LOWS = opts.get('lows', '')
DELAY = int(opts.get('delay', 0))

L = []
def e(s): L.append("    " + s)
def lab(s): L.append(s + ":")
def vr(a, n=1): return "v%d" % a if n == 1 else "v[%d:%d]" % (a, a + n - 1)
def sr(a, n=1): return "s%d" % a if n == 1 else "s[%d:%d]" % (a, a + n - 1)

DPPS = ["row_shr:1 row_mask:0xf bank_mask:0xf", "row_shr:2 row_mask:0xf bank_mask:0xf",
        "row_shr:4 row_mask:0xf bank_mask:0xf", "row_shr:8 row_mask:0xf bank_mask:0xf",
        "row_bcast:15 row_mask:0xa bank_mask:0xf", "row_bcast:31 row_mask:0xc bank_mask:0xf"]
def scan64(op, v, fill=()):
    fill = list(fill)
    for m in DPPS:
        n = 0
        while n < 2 and fill:
            e(fill.pop(0)); n += 1
        if n < 2: e("s_nop %d" % (1 - n))
        e("%s_dpp %s, %s, %s %s" % (op, vr(v), vr(v), vr(v), m))
    for f in fill: e(f)

def srd(d, base, nbytes, add=None, stride=0, sub=None):
    if sub is not None:
        e("s_sub_u32 %s, %s, %s" % (sr(d), sr(base), sub))
        e("s_subb_u32 %s, %s, 0" % (sr(d + 1), sr(base + 1)))
        e("s_and_b32 %s, %s, 0xffff" % (sr(d + 1), sr(d + 1)))
    elif add is None:
        e("s_mov_b32 %s, %s" % (sr(d), sr(base)))
        e("s_and_b32 %s, %s, 0xffff" % (sr(d + 1), sr(base + 1)))
    else:
        e("s_add_u32 %s, %s, %s" % (sr(d), sr(base), add))
        e("s_addc_u32 %s, %s, 0" % (sr(d + 1), sr(base + 1)))
        e("s_and_b32 %s, %s, 0xffff" % (sr(d + 1), sr(d + 1)))
    if stride:
        e("s_or_b32 %s, %s, 0x%x" % (sr(d + 1), sr(d + 1), stride << 16))
    e("s_mov_b32 %s, %s" % (sr(d + 2), nbytes if isinstance(nbytes, str) else "0x%x" % nbytes))
    e("s_mov_b32 %s, 0x20000" % sr(d + 3))

STV = 255
names = []
def stamp(name, real=False):
    if not STAMP: return
    if 'only' in opts and name not in opts['only'].split(',') + ['rt0', 'start', 'loop', 'rtloop', 'loopend', 'rtloopend', 'end', 'rtend']: return
    k = len(names); names.append(name)
    e("s_mem%stime s[100:101]" % ("real" if real else ""))
    e("s_waitcnt lgkmcnt(0)")
    e("v_writelane_b32 v%d, s100, %d" % (STV, k))
def mark(*modes):
    if DW in modes: e("s_memrealtime s[98:99]"); e("s_waitcnt lgkmcnt(0)")

TS, TOTA, WTOT, UTB, RTB = 0, 64, 128, 192, 256
RECB = 1024
HIST = RECB + CH * 16
XTB = RECB + 65536
XBB = XTB + 16384
PCB = XBB + 65536
LDS_BYTES = PCB + 8192
LOFF = 8192 - 2048 - 16

class R: pass
def alloc():
    r = R(); p = 0
    def a(n, al=1):
        nonlocal p
        p = (p + al - 1) // al * al
        b = p; p += n
        return b
    r.LANE = a(1); r.SI = a(1)
    r.PS = a(1, 2); r.PC = a(1); r.PT = a(1, 2); r.PE = a(1); r.PL = a(1, 2); r.PW = a(1)
    r.XA0 = a(1); r.XA1 = a(1); r.TI = a(1); r.TMP = a(3); r.RI = a(1)
    r.SO = a(4, 2); r.XI = a(8, 2); r.T = a(4, 2); r.RD = a(4, 2); r.U = a(8, 2)
    r.S = a(8, 2); r.ETA = a(8, 2); r.X = a(16, 2)
    r.ACC = [a(16, 2), a(16, 2)]
    r.G = [a(16, 2), None]; r.V = [a(16, 2), None]
    r.G[1] = a(16, 2); r.V[1] = a(16, 2)
    r.WB = a(32, 2); r.WV = a(32, 2); r.AT = a(16, 2)
    r.n = p
    return r

def mfma(d, a, b, c):
    return "v_mfma_f32_32x32x16_bf16 %s, %s, %s, %s" % (vr(d, 16), vr(a, 4), vr(b, 4), "0" if c is None else vr(c, 16))
def smf(d, a, b, idx, abid=0):
    return "v_smfmac_f32_32x32x32_bf16 %s, %s, %s, %s%s" % (vr(d, 16), vr(a, 4), vr(b, 8), vr(idx), " abid:1" if abid else "")
SOFF = [0, 64, 256, 320]

def kernel():
    r = alloc()
    assert r.n <= 255, r.n
    SX, SXI, SOFS, SRC, SOUT, SA, SB, SC_ = 28, 32, 36, 40, 44, 48, 52, 56
    sW, sT, sStart, sEnd, sTot, sW0, sNG, sXB, sREC, sFirst, sBin, sMag, sBLK, sXT, sTag, sTagH, sSpin, sLim, sKm, sKx = range(60, 80)
    sINC = 80; sINC2 = 82; sSO = 84; sTagB = 87; sE2 = 88; sRET = 90; sM0 = 4; sM1 = 6; sC0 = 8; sCB = 89
    ROT = int(opts.get('rot', 0)); MARG = int(opts.get('marg', 25))
    lane = r.LANE
    c0, c1, c2 = r.TMP, r.TMP + 1, r.TMP + 2
    MAG = -(-(1 << 41) // 671)
    for t in range(2049):
        n = t * 8192 + 670
        assert (n * MAG) >> 41 == n // 671
    def tile_range():
        e("s_lshl_b32 s3, %s, 13" % sr(sT)); e("s_add_u32 s3, s3, 670")
        e("s_mul_hi_u32 %s, s3, %s" % (sr(sStart), sr(sMag))); e("s_lshr_b32 %s, %s, 9" % (sr(sStart), sr(sStart)))
        e("s_add_u32 s3, s3, 8192")
        e("s_mul_hi_u32 %s, s3, %s" % (sr(sEnd), sr(sMag))); e("s_lshr_b32 %s, %s, 9" % (sr(sEnd), sr(sEnd)))
    L.append(".globl %s" % KN); L.append(".p2align 8"); L.append(".type %s,@function" % KN); lab(KN)
    e("s_load_dwordx16 s[4:19], s[0:1], 0")
    e("s_load_dwordx8 s[20:27], s[0:1], 64")
    e("s_cmp_gt_u32 s2, 255")
    e("s_cbranch_scc1 K_END")
    e("s_setprio 3")
    mark(1)
    stamp("rt0", True); stamp("start")
    q = r.X
    TID = q; T16 = q + 1; T32 = q + 2; ONE = q + 3; ZER = q + 4
    DST = q + 8
    SRCV = q + 16
    EA = q + 24
    HA = q + 56
    RK = q + 64
    CN = q + 72
    ST = q + 76
    PC_ = q + 80
    tA, tB, tC, tD, tE, tF = [q + 84 + i for i in range(6)]
    EP = q + 90
    T16B = q + 92; T32B = q + 93
    assert q + 94 <= r.WB
    WRAW = r.AT
    WCR = r.ETA
    e("v_mov_b32 %s, v0" % vr(TID))
    e("v_lshrrev_b32 %s, 6, v0" % vr(tA))
    e("v_lshlrev_b32 %s, 4, v0" % vr(T16))
    e("v_readfirstlane_b32 %s, %s" % (sr(sW), vr(tA)))
    e("v_lshlrev_b32 %s, 5, v0" % vr(T32))
    e("v_and_b32 %s, 63, v0" % vr(lane))
    e("v_add_u32 %s, 8192, %s" % (vr(T16B), vr(T16)))
    e("v_add_u32 %s, 16384, %s" % (vr(T32B), vr(T32)))
    for i in range(4): e("v_mov_b32 %s, 0" % vr(ZER + i))
    e("v_mov_b32 %s, 1" % vr(ONE))
    e("ds_write_b128 %s, %s offset:%d" % (vr(T16), vr(ZER, 4), HIST))
    e("s_min_u32 s3, s2, %d" % (NC - 1))
    e("s_mul_i32 s92, s3, %d" % (CH * 4))
    e("s_lshl_b32 s93, s92, 1")
    e("s_cmp_lt_u32 s2, %d" % NC)
    e("s_cselect_b32 s94, %d, 0" % (CH * 4))
    e("s_cselect_b32 s95, %d, 0" % (CH * 8))
    e("s_cselect_b32 s96, %d, 0" % (CH // 4))
    e("s_and_b32 s3, s2, 7"); e("s_lshl_b32 s3, s3, 5"); e("s_lshr_b32 %s, s2, 3" % sr(sBin)); e("s_add_u32 %s, %s, s3" % (sr(sBin), sr(sBin)))
    if int(opts.get('binid', 0)): e("s_mov_b32 %s, s2" % sr(sBin))
    e("s_lshl_b32 %s, %s, 13" % (sr(sREC), sr(sW)))
    e("s_add_u32 %s, %s, %d" % (sr(sXB), sr(sREC), XBB))
    e("s_add_u32 %s, %s, %d" % (sr(sREC), sr(sREC), RECB))
    e("s_lshl_b32 %s, %s, 3" % (sr(sT), sr(sBin))); e("s_add_u32 %s, %s, %s" % (sr(sT), sr(sT), sr(sW)))
    e("s_mov_b32 %s, 0x%x" % (sr(sMag), MAG))
    tile_range()
    e("s_waitcnt lgkmcnt(0)")
    if int(opts.get('wsb', 0)):
        e("s_add_u32 s26, s26, 0x%x" % (int(opts['wsb']) << 20)); e("s_addc_u32 s27, s27, 0")
    if int(opts.get('tt', 0)):
        e("s_cmp_lt_u32 s2, %d" % int(opts.get('ttw', 248)))
        e("s_cbranch_scc1 TT_SKIP")
        e("s_cmp_lg_u32 %s, 7" % sr(sW))
        e("s_cbranch_scc1 TT_SKIP")
        e("v_lshlrev_b32 %s, 18, %s" % (vr(tA), vr(lane)))
        e("v_lshlrev_b32 %s, 16, %s" % (vr(tB), vr(lane)))
        srd(SA, 26, 0x1000000)
        e("buffer_load_dword %s, %s, %s, 0 offen sc0 sc1" % (vr(r.AT), vr(tA), sr(SA, 4)))
        srd(SA, 4, N_NODES * 128)
        e("buffer_load_dword %s, %s, %s, 0 offen" % (vr(r.AT), vr(tB), sr(SA, 4)))
        srd(SA, 22, N_NODES * 128)
        e("buffer_load_dword %s, %s, %s, 0 offen sc0 sc1" % (vr(r.AT), vr(tB), sr(SA, 4)))
        for p in (12, 14, 16, 18, 20):
            srd(SA, p, 512)
            e("buffer_load_dword %s, %s, %s, 0 offen" % (vr(r.AT), vr(tB), sr(SA, 4)))
        lab("TT_SKIP")
    srd(SA, 10, "s94", "s92")
    e("buffer_load_dwordx4 %s, %s, %s, 0 offen %s" % (vr(DST, 4), vr(T16), sr(SA, 4), LDF))
    e("buffer_load_dwordx4 %s, %s, %s, 0 offen %s" % (vr(DST + 4, 4), vr(T16B), sr(SA, 4), LDF))
    srd(SOUT, 26, 8, "0x%x" % WS_EPO)
    e("buffer_load_dwordx2 %s, %s, %s, 0 offen sc1" % (vr(EP, 2), vr(ZER), sr(SOUT, 4)))
    DF = int(opts.get('df', 2))
    SS, SE = (SB, SC_) if not DF else (SRC, SOFS)
    srd(SS, 8, "s94", "s92")
    srd(SE, 6, "s95", "s93")
    RL = ["buffer_load_dwordx4 %s, %s, %s, 0 offen %s" % (vr(SRCV, 4), vr(T16), sr(SS, 4), LDF),
          "buffer_load_dwordx4 %s, %s, %s, 0 offen %s" % (vr(SRCV + 4, 4), vr(T16B), sr(SS, 4), LDF)]
    for k in (2, 3, 0, 1):
        RL.append("buffer_load_dwordx4 %s, %s, %s, 0 offen offset:%d %s" % (vr(EA + 8 * k, 4), vr(T32B if k >> 1 else T32), sr(SE, 4), 16 * (k & 1), LDF))
    NE = int(opts.get('ne', 2))
    NE2 = int(opts.get('ne2', 0))
    for _ in range(NE): e(RL.pop(0))
    def rest_loads():
        for t in RL: e(t)
        if DF:
            srd(SOFS, 26, 256 * 8192, "0x%x" % WS_OFF)
            srd(SRC, 26, NC * CH, stride=16)
    if DF == 0: rest_loads()
    e("v_cmp_gt_u32 vcc, s96, %s" % vr(TID))
    e("s_mov_b64 s[92:93], vcc")
    e("v_add_u32 %s, 512, %s" % (vr(tA), vr(TID)))
    e("v_cmp_gt_u32 vcc, s96, %s" % vr(tA))
    e("s_mov_b64 s[94:95], vcc")
    e("s_and_b32 s3, %s, 3" % sr(sW))
    e("s_cmp_eq_u32 s3, 1"); e("s_cselect_b32 s12, s18, s12"); e("s_cselect_b32 s13, s19, s13")
    e("s_cmp_eq_u32 s3, 2"); e("s_cselect_b32 s12, s14, s12"); e("s_cselect_b32 s13, s15, s13")
    e("s_cmp_eq_u32 s3, 3"); e("s_cselect_b32 s12, s20, s12"); e("s_cselect_b32 s13, s21, s13")
    srd(SA, 12, 8192)
    srd(SB, 16, 512)
    srd(SX, 4, N_NODES * 128)
    H = r.SO
    XT0, XT1, J4, L16 = r.RD, r.RD + 1, r.RD + 2, r.RD + 3
    e("v_lshrrev_b32 %s, 5, %s" % (vr(H), vr(lane)))
    e("v_and_b32 %s, 31, %s" % (vr(J4), vr(lane)))
    e("v_lshlrev_b32 %s, 2, %s" % (vr(J4), vr(J4)))
    e("v_lshlrev_b32 %s, 4, %s" % (vr(L16), vr(lane)))
    e("v_lshrrev_b32 %s, 3, %s" % (vr(tA), vr(lane)))
    e("v_xor_b32 %s, %s, %s" % (vr(tB), vr(tA), vr(lane)))
    e("v_and_b32 %s, 7, %s" % (vr(tB), vr(tB)))
    e("v_lshlrev_b32 %s, 4, %s" % (vr(tB), vr(tB)))
    e("v_add_u32 %s, %s, %s" % (vr(tA), sr(sStart), vr(tA)))
    e("v_sub_u32 %s, %s, %s" % (vr(tC), vr(tA), vr(H)))
    e("v_add_u32 %s, 8, %s" % (vr(tC), vr(tC)))
    e("v_lshl_add_u32 %s, %s, 7, %s" % (vr(XT0), vr(tA), vr(tB)))
    e("v_lshl_add_u32 %s, %s, 7, %s" % (vr(XT1), vr(tC), vr(tB)))
    XPOS = int(opts.get('xpos', 0))
    def late_loads():
        if 'lt' in opts: e("s_waitcnt vmcnt(0) lgkmcnt(0)"); e("s_barrier"); stamp("l0")
        e("s_cmp_lt_u32 %s, 4" % sr(sW))
        e("s_cbranch_scc1 LATE_B")
        e("s_and_b32 s93, %s, 3" % sr(sW)); e("s_lshl_b32 s93, s93, 14")
        e("s_add_u32 m0, s93, %d" % XBB)
        e("s_mov_b32 s3, 4096")
        for k in range(4):
            e("buffer_load_dwordx4 %s, %s, 0 offen offset:%d %s lds" % (vr(L16), sr(SA, 4), k * 1024, opts.get('wf', '')))
        e("s_add_u32 m0, s93, %d" % (XBB + 8192))
        e("s_nop 0")
        for k in range(4):
            e("buffer_load_dwordx4 %s, %s, s3 offen offset:%d %s lds" % (vr(L16), sr(SA, 4), k * 1024, opts.get('wf', '')))
        if XPF:
            e("s_lshr_b32 s3, s2, 3"); e("s_mul_i32 s3, s3, %d" % (782 * 128))
            e("s_lshr_b32 s94, s93, 1"); e("s_mul_i32 s94, s94, %d" % XPF); e("s_add_u32 s3, s3, s94")
            e("v_lshl_add_u32 %s, %s, 7, s3" % (vr(tF), vr(lane)))
            for k in range(XPF):
                e("buffer_load_dword %s, %s, %s, 0 offen" % (vr(tE), vr(tF), sr(SX, 4)))
                if k + 1 < XPF: e("v_add_u32 %s, 8192, %s" % (vr(tF), vr(tF)))
        lab("LATE_B")
        if 'lt' in opts: e("s_waitcnt vmcnt(0)"); stamp("lw")
        small_loads()
        if 'lt' in opts: e("s_waitcnt vmcnt(0)"); stamp("lx")
    def small_loads():
        e("s_mov_b32 exec_hi, 0")
        for i in range(4):
            e("buffer_load_dword %s, %s, %s, 0 offen offset:%d %s" % (vr(WCR + i), vr(J4), sr(SB, 4), i * 128, opts.get('wf', '')))
        e("s_mov_b64 exec, -1")
        if 'lt' in opts: e("s_waitcnt vmcnt(0)"); stamp("lc")
        if 'X' not in opts.get('pfx', '') and not XPOS: xt_loads()
    def xt_loads():
        e("s_lshl_b32 s3, %s, 11" % sr(sW))
        e("s_add_u32 m0, s3, %d" % XTB)
        e("s_nop 0")
        e("buffer_load_dwordx4 %s, %s, 0 offen %s lds" % (vr(XT0), sr(SX, 4), opts.get('xtf', '')))
        e("s_add_u32 m0, s3, %d" % (XTB + 1024))
        e("s_nop 0")
        e("buffer_load_dwordx4 %s, %s, 0 offen %s lds" % (vr(XT1), sr(SX, 4), opts.get('xtf', '')))
    e("s_mul_i32 s3, s2, %d" % (CH * 16))
    NLATE = 0
    srd(SC_, 26, CH * 16, "s3")
    if not DF: srd(SOFS, 26, 256 * 8192, "0x%x" % WS_OFF)
    srd(SXI, 4, N_NODES, stride=128, sub="3072")
    if not DF: srd(SRC, 26, NC * CH, stride=16)
    PFX = opts.get('pfx', '')
    NPF = 0
    if PFX:
        e("v_lshlrev_b32 %s, 7, %s" % (vr(tA), vr(lane)))
    if 'c' in PFX or 'w' in PFX:
        e("s_cmp_lt_u32 s2, 248")
        e("s_cbranch_scc1 PF_SKIP")
        if 'c' in PFX:
            e("s_getpc_b64 s[96:97]")
            lab("PCREF")
            e("s_and_b32 s3, %s, 1" % sr(sW)); e("s_lshl_b32 s3, s3, 13")
            e("v_add_u32 %s, s3, %s" % (vr(tB), vr(tA)))
            e("v_min_u32 %s, K_END-PCREF, %s" % (vr(tB), vr(tB)))
            e("s_cmp_lt_u32 %s, 2" % sr(sW)); e("s_cselect_b64 exec, -1, 1")
            e("global_load_dword %s, %s, s[96:97]" % (vr(r.AT), vr(tB)))
        if 'w' in PFX:
            e("s_cmp_gt_u32 %s, 3" % sr(sW)); e("s_cselect_b64 exec, -1, 1")
            e("buffer_load_dword %s, %s, %s, 0 offen" % (vr(r.AT), vr(tA), sr(SA, 4)))
            e("s_mov_b64 exec, 15")
            e("buffer_load_dword %s, %s, %s, 0 offen" % (vr(r.AT), vr(tA), sr(SB, 4)))
        e("s_mov_b64 exec, -1")
        lab("PF_SKIP")
    if 'X' in PFX:
        xt_loads()
        NPF += 2
    if 'x' in PFX:
        e("s_mov_b64 exec, 0x01010101"); e("s_mov_b32 exec_hi, 0x01010101")
        e("buffer_load_dword %s, %s, %s, 0 offen" % (vr(r.AT), vr(XT0), sr(SX, 4)))
        e("buffer_load_dword %s, %s, %s, 0 offen" % (vr(r.AT), vr(XT1), sr(SX, 4)))
        e("s_mov_b64 exec, -1")
        NPF += 2
    if 's' in PFX:
        e("s_mov_b64 exec, 1")
        e("buffer_load_dword %s, %s, %s, 0 offen sc0 sc1" % (vr(r.AT), vr(T32B), sr(SC_, 4)))
        e("s_mov_b64 exec, -1")
        NPF += 1
    e("s_mov_b32 %s, 1024" % sr(sINC)); e("s_mov_b32 %s, 1024" % sr(sINC + 1))
    e("s_mov_b32 %s, 256" % sr(sINC2)); e("s_mov_b32 %s, 1024" % sr(sINC2 + 1))
    e("s_mov_b32 %s, 3072" % sr(sSO)); e("s_mov_b32 %s, 2048" % sr(sSO + 1)); e("s_mov_b32 %s, 1024" % sr(sSO + 2))
    e("s_mov_b32 %s, %d" % (sr(sLim), NC * CH))
    e("s_mov_b32 %s, 0" % sr(sW0)); e("s_mov_b32 %s, 1" % sr(sFirst)); e("s_mov_b32 %s, %d" % (sr(sSpin), SPINMAX))
    e("v_mov_b32 %s, 0x%x" % (vr(tA), (1 << 4) | (2 << 8) | (1 << 14) | (2 << 18)))
    e("v_lshlrev_b32 %s, 1, %s" % (vr(tB), vr(lane)))
    e("v_bfe_u32 %s, %s, %s, 2" % (vr(tA), vr(tA), vr(tB)))
    e("v_mul_u32_u24 %s, 0x8001, %s" % (vr(tA), vr(tA)))
    e("v_and_b32 %s, 0x10001, %s" % (vr(tA), vr(tA)))
    e("v_mul_u32_u24 %s, 0x3f80, %s" % (vr(tA), vr(tA)))
    e("v_lshlrev_b32 %s, 2, %s" % (vr(tB), vr(lane)))
    e("s_mov_b64 exec, 0x3ff")
    e("ds_write_b32 %s, %s offset:%d" % (vr(tB), vr(tA), TS))
    e("s_mov_b64 exec, -1")
    e("v_mul_u32_u24 %s, 140, %s" % (vr(tC), vr(lane)))
    e("v_lshrrev_b32 %s, 7, %s" % (vr(tC), vr(tC)))
    e("v_lshlrev_b32 %s, 19, %s" % (vr(tC), vr(tC)))
    e("v_or_b32 %s, 0x80ffff, %s" % (vr(tC), vr(tC)))
    e("s_mov_b64 exec, 0x3fff")
    e("ds_write_b32 %s, %s offset:%d" % (vr(tB), vr(tC), UTB))
    e("s_mov_b64 exec, -1")
    e("v_mul_u32_u24 %s, 11, %s" % (vr(tA), vr(lane)))
    e("v_lshrrev_b32 %s, 5, %s" % (vr(tA), vr(tA)))
    e("v_mad_i32_i24 %s, %s, -3, %s" % (vr(tB), vr(tA), vr(lane)))
    e("v_add_u32 %s, 1, %s" % (vr(tB), vr(tB)))
    e("v_lshl_add_u32 %s, %s, 1, 20" % (vr(tA), vr(tA)))
    e("v_lshlrev_b32 %s, %s, %s" % (vr(tC), vr(tA), vr(tB)))
    e("v_and_b32 %s, 3, %s" % (vr(tA), vr(lane)))
    e("v_add_u32 %s, 1, %s" % (vr(tA), vr(tA)))
    e("v_and_b32 %s, 12, %s" % (vr(tB), vr(lane)))
    e("v_lshl_add_u32 %s, %s, 1, 3" % (vr(tB), vr(tB)))
    e("v_lshlrev_b32 %s, %s, %s" % (vr(tD), vr(tB), vr(tA)))
    e("v_lshlrev_b32 %s, 3, %s" % (vr(tA), vr(lane)))
    e("v_xor_b32 %s, 0x80, %s" % (vr(tA), vr(tA)))
    e("s_mov_b64 exec, 0x10000")
    e("v_mov_b32 %s, 0" % vr(tC)); e("v_mov_b32 %s, 0" % vr(tD))
    e("s_mov_b64 exec, 0x1ffff")
    e("v_or_b32 %s, 0x40000, %s" % (vr(tC), vr(tC)))
    assert tD == tC + 1 and tC % 2 == 0
    e("ds_write_b64 %s, %s offset:%d" % (vr(tA), vr(tC, 2), RTB))
    e("s_mov_b64 exec, -1")
    e("s_mov_b32 %s, %d" % (sr(sKx), 800106))
    e("s_cmp_lt_u32 %s, 4" % sr(sW)); e("s_cselect_b64 s[10:11], -1, 0")
    if ROT:
        e("s_mul_i32 s3, %s, 123" % sr(sBin)); e("s_lshr_b32 s3, s3, 7"); e("s_sub_u32 s3, %d, s3" % (256 + MARG))
        e("s_and_b32 %s, s3, 255" % sr(sC0))
        e("s_mul_i32 %s, %s, %d" % (sr(sCB), sr(sC0), CH))
    e("v_and_b32 %s, 3, %s" % (vr(c0), vr(lane)))
    e("v_bfe_u32 %s, %s, 4, 1" % (vr(c1), vr(lane)))
    e("v_mul_u32_u24 %s, 0x5555, %s" % (vr(r.SI), vr(c1)))
    e("v_or_b32 %s, 0x8888, %s" % (vr(r.SI), vr(r.SI)))
    e("v_xor_b32 %s, %s, %s" % (vr(c2), vr(c0), vr(H)))
    e("v_lshl_or_b32 %s, %s, 2, %s" % (vr(c2), vr(c1), vr(c2)))
    e("v_lshlrev_b32 %s, 4, %s" % (vr(r.XI + 1), vr(c2)))
    e("v_mov_b32 %s, %s" % (vr(r.XI + 3), vr(r.XI + 1)))
    e("v_xor_b32 %s, 32, %s" % (vr(r.XI + 5), vr(r.XI + 1)))
    e("v_mov_b32 %s, %s" % (vr(r.XI + 7), vr(r.XI + 5)))
    e("v_bfe_u32 %s, %s, 3, 2" % (vr(c2), vr(lane)))
    e("v_xor_b32 %s, %s, %s" % (vr(c2), vr(c2), vr(H)))
    e("v_lshlrev_b32 %s, 4, %s" % (vr(r.XA0), vr(c2)))
    e("v_lshl_or_b32 %s, %s, 6, %s" % (vr(r.XA0), vr(c0), vr(r.XA0)))
    e("v_bfe_u32 %s, %s, 3, 1" % (vr(c2), vr(lane)))
    e("v_lshl_or_b32 %s, %s, 9, %s" % (vr(r.XA0), vr(c2), vr(r.XA0)))
    e("v_bfe_u32 %s, %s, 2, 1" % (vr(tA), vr(lane)))
    e("v_lshl_or_b32 %s, %s, 10, %s" % (vr(r.XA0), vr(tA), vr(r.XA0)))
    e("v_lshl_or_b32 %s, %s, 11, %s" % (vr(r.XA0), vr(c1), vr(r.XA0)))
    e("v_xor_b32 %s, 32, %s" % (vr(r.XA1), vr(r.XA0)))
    e("v_add_u32 %s, %s, %s" % (vr(r.XA0), sr(sXB), vr(r.XA0)))
    e("v_add_u32 %s, %s, %s" % (vr(r.XA1), sr(sXB), vr(r.XA1)))
    FA, FU = r.SO + 2, r.SO + 3
    e("v_lshl_or_b32 %s, %s, 1, %s" % (vr(c2), vr(tA), vr(c2)))
    e("v_lshl_or_b32 %s, %s, 1, %s" % (vr(c2), vr(c2), vr(c1)))
    e("v_mad_u32_u24 %s, %s, 3, %s" % (vr(c2), vr(c2), vr(c0)))
    e("v_add_u32 %s, 9, %s" % (vr(c2), vr(c2)))
    e("v_and_b32 %s, 15, %s" % (vr(c2), vr(c2)))
    for dst, src in ((FA, c2), (FU, None)):
        if src is None:
            e("v_and_b32 %s, 15, %s" % (vr(c2), vr(lane)))
        e("v_xor_b32 %s, %s, %s" % (vr(tA), vr(c2), vr(H)))
        e("v_and_b32 %s, 7, %s" % (vr(tA), vr(tA)))
        e("v_lshlrev_b32 %s, 4, %s" % (vr(tA), vr(tA)))
        e("v_lshl_or_b32 %s, %s, 7, %s" % (vr(dst), vr(c2), vr(tA)))
    e("v_lshlrev_b32 %s, 4, %s" % (vr(tA), vr(H)))
    e("v_mov_b32 %s, 0x3f80" % vr(tB))
    e("v_lshlrev_b32 %s, %s, %s" % (vr(r.T + 1), vr(tA), vr(tB)))
    e("v_mov_b32 %s, %s" % (vr(r.T + 2), vr(r.T + 1)))
    e("v_mov_b32 %s, %s" % (vr(r.T + 3), vr(r.T + 1)))
    e("s_lshl_b32 s3, %s, 2" % sr(sW))
    e("v_mov_b32 %s, s3" % vr(tE))
    e("v_and_b32 %s, 7, %s" % (vr(tF), vr(lane)))
    e("v_lshlrev_b32 %s, 2, %s" % (vr(tF), vr(tF)))
    e("s_waitcnt lgkmcnt(0)")
    e("s_barrier")
    if DF == 1: rest_loads()
    if DF == 2:
        for _ in range(NE2): e(RL.pop(0))
    e("s_waitcnt vmcnt(%d)" % (1 + NE + NE2 + NPF if DF == 2 else 7 + NPF))
    stamp("dst")
    mark(6)
    for rd in range(2):
        e("s_mov_b64 exec, s[%d:%d]" % (92 + 2 * rd, 93 + 2 * rd))
        e("s_cbranch_execz P1_A")
        for i in range(4 * rd, 4 * rd + 4):
            e("v_mul_u32_u24 %s, %d, %s" % (vr(DST + i), TMUL, vr(DST + i)))
            e("v_lshrrev_b32 %s, 14, %s" % (vr(HA + i), vr(DST + i)))
            e("v_and_b32 %s, 0x1ffc, %s" % (vr(HA + i), vr(HA + i)))
        for i in range(4 * rd, 4 * rd + 4):
            e("ds_add_rtn_u32 %s, %s, %s offset:%d" % (vr(RK + i), vr(HA + i), vr(ONE), HIST))
    lab("P1_A")
    e("s_mov_b64 exec, -1")
    if DF == 2: rest_loads()
    if XPOS == 3: xt_loads()
    for i in range(8):
        d = DST + i
        e("v_and_b32 %s, 0xffff, %s" % (vr(d), vr(d)))
        e("v_mul_hi_u32_u24 %s, %s, %s" % (vr(d), sr(sKx), vr(d)))
        e("v_lshlrev_b32 %s, 2, %s" % (vr(d), vr(d)))
    for i in range(8):
        e("ds_read_b32 %s, %s offset:%d" % (vr(DST + i), vr(DST + i), UTB))
    key = ["s_nop 0"] * 64
    e("s_waitcnt lgkmcnt(0)")
    e("s_barrier")
    stamp("hist")
    e("ds_read_b128 %s, %s offset:%d" % (vr(CN, 4), vr(T16), HIST))
    e("s_waitcnt lgkmcnt(0)")
    e("v_add_u32 %s, %s, %s" % (vr(ST + 2), vr(CN), vr(CN + 1)))
    e("v_add_u32 %s, %s, %s" % (vr(ST + 3), vr(ST + 2), vr(CN + 2)))
    e("v_add_u32 %s, %s, %s" % (vr(tA), vr(ST + 3), vr(CN + 3)))
    e("v_mov_b32 %s, %s" % (vr(tB), vr(tA)))
    scan64("v_add_u32", tB)
    e("s_mov_b32 exec_lo, 0"); e("s_mov_b32 exec_hi, 0x80000000")
    e("ds_write_b32 %s, %s offset:%d" % (vr(tE), vr(tB), WTOT))
    e("s_mov_b64 exec, -1")
    e("s_waitcnt vmcnt(%d)" % (6 + NLATE + NPF + 2 * (XPOS == 3)))
    e("v_readfirstlane_b32 %s, %s" % (sr(sTag), vr(EP)))
    e("v_readfirstlane_b32 %s, %s" % (sr(sE2), vr(EP + 1)))
    e(key.pop(0)); e(key.pop(0))
    e("s_mul_i32 %s, %s, 1664525" % (sr(sTag), sr(sTag))); e("s_add_u32 %s, %s, 1013904223" % (sr(sTag), sr(sTag)))
    e("s_mul_i32 %s, %s, 22695477" % (sr(sE2), sr(sE2))); e("s_add_u32 %s, %s, 0x9e3779b9" % (sr(sE2), sr(sE2)))
    e("s_and_b32 %s, %s, 0xffff0000" % (sr(sTagH), sr(sE2)))
    e("s_lshr_b32 %s, %s, 24" % (sr(sTagB), sr(sE2)))
    e("s_and_b32 %s, %s, 0xff000000" % (sr(sKm), sr(sE2)))
    e("s_mov_b32 %s, 0xffff" % sr(sKx))
    e("s_waitcnt lgkmcnt(0)")
    e("s_barrier")
    e("ds_read_b32 %s, %s offset:%d" % (vr(tC), vr(tF), WTOT))
    e("v_mov_b32 %s, %s" % (vr(PC_ + 3), sr(sTag)))
    e("s_waitcnt lgkmcnt(0)")
    e("v_mov_b32 %s, %s" % (vr(tD), vr(tC)))
    for sh in (1, 2, 4):
        e(key.pop(0)); e(key.pop(0))
        e("v_add_u32_dpp %s, %s, %s row_shr:%d row_mask:0xf bank_mask:0xf" % (vr(tD), vr(tD), vr(tD), sh))
    e("v_sub_u32 %s, %s, %s" % (vr(tD), vr(tD), vr(tC)))
    e(key.pop(0))
    e("v_readlane_b32 s3, %s, %s" % (vr(tD), sr(sW)))
    e("s_lshl_b32 s91, s2, 13")
    e("s_nop 0")
    e("v_add_u32 %s, s3, %s" % (vr(tB), vr(tB)))
    e("v_sub_u32 %s, %s, %s" % (vr(ST), vr(tB), vr(tA)))
    e("v_add_u32 %s, %s, %s" % (vr(ST + 1), vr(ST), vr(CN)))
    e("v_add_u32 %s, %s, %s" % (vr(ST + 2), vr(ST), vr(ST + 2)))
    e("v_add_u32 %s, %s, %s" % (vr(ST + 3), vr(ST), vr(ST + 3)))
    e("v_lshl_or_b32 %s, %s, 16, %s" % (vr(PC_), vr(ST + 1), vr(ST)))
    e("v_lshl_or_b32 %s, %s, 16, %s" % (vr(PC_ + 1), vr(ST + 3), vr(ST + 2)))
    e("v_or_b32 %s, %s, %s" % (vr(PC_ + 2), sr(sTagH), vr(tB)))
    PUB = int(opts.get('pub', 0))
    pub = "buffer_store_dwordx4 %s, %s, %s, s91 offen %s" % (vr(PC_, 4), vr(T16), sr(SOFS, 4), STF)
    if PUB == 0: e(pub)
    if XPOS == 4: xt_loads()
    for i in range(4): e("v_lshlrev_b32 %s, 4, %s" % (vr(ST + i), vr(ST + i)))
    e("ds_write_b128 %s, %s offset:%d" % (vr(T16), vr(ST, 4), HIST))
    e("s_waitcnt lgkmcnt(0)")
    e("s_barrier")
    stamp("scan")
    mark(5)
    for i in range(8):
        e("ds_read_b32 %s, %s offset:%d" % (vr(HA + i), vr(HA + i), HIST))
    e("s_waitcnt vmcnt(%d)" % (NLATE + (PUB == 0) + 2 * (XPOS in (3, 4))))
    stamp("inputs")
    mark(9)
    def assemble(rd):
        for k in range(2 * rd, 2 * rd + 2):
            e("v_mov_b32 %s, %s" % (vr(EA + 8 * k + 4), vr(EA + 8 * k + 2)))
            e("v_mov_b32 %s, %s" % (vr(EA + 8 * k + 5), vr(EA + 8 * k + 3)))
        for i in range(4 * rd, 4 * rd + 4):
            e("v_bitop3_b32 %s, %s, %s, %s bitop3:0x96" % (vr(EA + 4 * i + 2), vr(DST + i), vr(SRCV + i), sr(sKm)))
            e("v_mov_b32 %s, %s" % (vr(EA + 4 * i + 3), sr(sTag)))
    for rd in range(2):
        e("s_mov_b64 exec, s[%d:%d]" % (92 + 2 * rd, 93 + 2 * rd))
        e("s_cbranch_execz P1_B")
        assemble(rd)
        e("s_waitcnt lgkmcnt(4)")
        for i in range(4 * rd, 4 * rd + 4):
            e("v_lshl_add_u32 %s, %s, 4, %s" % (vr(HA + i), vr(RK + i), vr(HA + i)))
        for i in range(4 * rd, 4 * rd + 4):
            e("ds_write_b128 %s, %s offset:%d" % (vr(HA + i), vr(EA + 4 * i, 4), RECB))
    lab("P1_B")
    e("s_mov_b64 exec, -1")
    if PUB == 2: e(pub)
    SF = int(opts.get('sf', 0))
    SFP = int(opts.get('sfp', 0))
    if not SF or SFP: late_loads()
    PA = tA; PW_ = tB; PC2 = ST
    e("v_bfe_u32 %s, %s, 1, 7" % (vr(tC), vr(TID)))
    e("v_and_b32 %s, 1, %s" % (vr(tD), vr(TID)))
    PA2 = tE
    if ROT:
        e("v_add_u32 %s, %s, %s" % (vr(PA), sr(sC0), vr(tC)))
        e("v_and_b32 %s, 255, %s" % (vr(PA), vr(PA)))
    e("v_lshlrev_b32 %s, 13, %s" % (vr(PA), vr(PA if ROT else tC)))
    e("v_lshl_or_b32 %s, %s, 4, %s" % (vr(PA), vr(tD), vr(PA)))
    e("v_xor_b32 %s, 0x100000, %s" % (vr(PA2), vr(PA)))
    e("s_lshl_b32 s97, %s, 5" % sr(sBin))
    poll = ["buffer_load_dwordx4 %s, %s, %s, s97 offen %s" % (vr(PC_, 4), vr(PA), sr(SOFS, 4), PLF),
            "buffer_load_dwordx4 %s, %s, %s, s97 offen %s" % (vr(PC2, 4), vr(PA2), sr(SOFS, 4), PLF)]
    e("v_lshlrev_b32 %s, 12, %s" % (vr(PW_), vr(tD)))
    e("v_lshl_or_b32 %s, %s, 2, %s" % (vr(PW_), vr(tC), vr(PW_)))
    e("v_add_u32 %s, %d, %s" % (vr(PW_), PCB, vr(PW_)))
    e("v_add_u32 %s, %d, %s" % (vr(c2), XBB + 4096, vr(L16)))
    WL = r.WB; WH = r.WB + 16; WP = r.WV
    e("s_mov_b32 s92, 0x%x" % NEGLOG2E)
    EN = r.G[1]; Z = r.V[1]; P = r.V[1] + 4; D = r.V[1] + 8
    LA, CB, PREV, JB = [r.V[1] + 12 + i for i in range(4)]
    TOT, INC, C512, W4 = r.PS, r.PC, r.PT, r.PE
    M = r.S
    def expand_pre():
        for i in range(4): e("v_mov_b32 %s, 0" % vr(Z + i))
        e("v_lshl_add_u32 %s, %s, 5, %s" % (vr(LA), vr(lane), sr(sREC)))
        e("v_mul_u32_u24 %s, %d, %s" % (vr(CB), 4 * CH, vr(lane)))
        e("v_subrev_u32 %s, %s, %s" % (vr(CB), sr(sW0), vr(CB)))
        if ROT:
            e("s_add_u32 s3, %s, %s" % (sr(sW0), sr(sCB)))
            e("v_lshl_add_u32 %s, %s, 3, s3" % (vr(JB), vr(lane)))
        else:
            e("v_lshl_add_u32 %s, %s, 3, %s" % (vr(JB), vr(lane), sr(sW0)))
        e("v_mov_b32 %s, 512" % vr(C512))
        e("v_mov_b32 %s, 0" % vr(PREV))
        e("v_lshl_add_u32 %s, %s, 2, %s" % (vr(r.PL), vr(lane), sr(sREC)))
        e("s_lshl_b32 s3, %s, 2" % sr(sW))
        e("v_mov_b32 %s, s3" % vr(W4))
    def zero_list():
        e("ds_write_b128 %s, %s offset:%d" % (vr(LA), vr(Z, 4), LOFF))
        e("ds_write_b128 %s, %s offset:%d" % (vr(LA), vr(Z, 4), LOFF + 16))
    expand_pre()
    e("s_lshl_b32 s3, %s, 10" % sr(sW)); e("s_add_u32 s3, s3, %d" % PCB)
    e("v_add_u32 %s, s3, %s" % (vr(r.RI), vr(L16)))
    if int(opts.get('early', 1)) == 2:
        e("s_cmp_lt_u32 %s, 4" % sr(sW))
        e("s_cbranch_scc1 P1_P")
        for t in poll: e(t)
        lab("P1_P")
    e("s_waitcnt lgkmcnt(0)")
    e("s_barrier")
    stamp("scatter")
    mark(7)
    if PUB == 1: e(pub)
    ST8 = int(opts.get('st8', 0))
    EARLY = int(opts.get('early', 1))
    if ST8:
        NS = 7
        if EARLY == 1:
            e("s_cmp_lt_u32 %s, 4" % sr(sW))
            e("s_cbranch_scc1 P1_S")
            for t in poll: e(t)
            lab("P1_S")
        CO = DST
        e("s_cmp_lt_u32 s2, %d" % NC)
        e("s_cselect_b32 %s, %s, 0" % (sr(SC_ + 2), sr(SC_ + 2)))
        for k in range(NS):
            e("ds_read_b128 %s, %s offset:%d" % (vr(CO + 4 * k, 4), vr(T16), RECB + 8192 * k))
        e("v_add_u32 %s, 49152, %s" % (vr(T32), vr(T16)))
        for k in range(NS):
            if k < NS - 1: e("s_mov_b32 s3, %d" % (8192 * k))
            e("s_waitcnt lgkmcnt(%d)" % (NS - 1 - k))
            if k < NS - 1: e("buffer_store_dwordx4 %s, %s, %s, s3 offen %s" % (vr(CO + 4 * k, 4), vr(T16), sr(SC_, 4), STF))
            else: e("buffer_store_dwordx4 %s, %s, %s, 0 offen %s" % (vr(CO + 4 * k, 4), vr(T32), sr(SC_, 4), STF))
        e("s_waitcnt vmcnt(%d)" % NS)
        e("s_cmp_lt_u32 %s, 4" % sr(sW))
        e("s_cbranch_scc1 POLL_DONE")
    else:
        e("s_cmp_gt_u32 %s, 3" % sr(sW))
        e("s_cbranch_scc1 P1_D")
        e("s_cmp_ge_u32 s2, %d" % NC)
        e("s_cbranch_scc1 P1_N")
        if DELAY:
            e("s_and_b32 s3, s2, 15"); e("s_cmp_lg_u32 s3, 5"); e("s_cbranch_scc1 P1_ND")
            for _ in range(DELAY): e("s_sleep 100")
            lab("P1_ND")
        if ROT:
            CO = DST; CA = q + 60
            e("s_mul_i32 s3, s2, 13"); e("s_lshr_b32 s3, s3, 8"); e("s_sub_u32 s3, 13, s3"); e("s_lshl_b32 s3, s3, 12")
            for k in range(13):
                e("s_cmp_eq_u32 s3, %d" % (13 * 4096)); e("s_cselect_b32 s3, 0, s3")
                e("v_add_u32 %s, s3, %s" % (vr(CA + k), vr(T16)))
                e("ds_read_b128 %s, %s offset:%d" % (vr(CO + 4 * k, 4), vr(CA + k), RECB))
                if k < 12: e("s_add_u32 s3, s3, 4096")
                if k >= 3:
                    e("s_waitcnt lgkmcnt(3)")
                    e("buffer_store_dwordx4 %s, %s, %s, 0 offen %s" % (vr(CO + 4 * (k - 3), 4), vr(CA + k - 3), sr(SC_, 4), STF))
            for k in range(10, 13):
                e("s_waitcnt lgkmcnt(%d)" % (12 - k))
                e("buffer_store_dwordx4 %s, %s, %s, 0 offen %s" % (vr(CO + 4 * k, 4), vr(CA + k), sr(SC_, 4), STF))
        else:
            CO = DST
            for k in range(13):
                e("ds_read_b128 %s, %s offset:%d" % (vr(CO + 4 * k, 4), vr(T16), RECB + 4096 * k))
            e("v_add_u32 %s, 49152, %s" % (vr(T32), vr(T16)))
            for k in range(13):
                if SF and k == SF: e("s_barrier")
                if k < 12: e("s_mov_b32 s3, %d" % (4096 * k))
                e("s_waitcnt lgkmcnt(%d)" % (12 - k))
                if k < 12: e("buffer_store_dwordx4 %s, %s, %s, s3 offen %s" % (vr(CO + 4 * k, 4), vr(T16), sr(SC_, 4), STF))
                else: e("buffer_store_dwordx4 %s, %s, %s, 0 offen %s" % (vr(CO + 4 * k, 4), vr(T32), sr(SC_, 4), STF))
        if SF:
            if SF == 13: e("s_barrier")
            e("s_branch P1_M")
            lab("P1_N")
            e("s_barrier")
            lab("P1_M")
            if not SFP: small_loads()
        else:
            e("s_waitcnt vmcnt(13)")
            e("s_branch POLL_DONE")
            lab("P1_N")
            e("s_waitcnt vmcnt(0)")
        e("s_branch POLL_DONE")
        lab("P1_D")
        if SF: e("s_barrier")
        if EARLY == 1:
            for t in poll: e(t)
        if SF and not SFP: late_loads()
    e("v_lshl_add_u32 %s, %s, 10, %s" % (vr(tC), vr(H), vr(J4)))
    e("s_add_u32 s3, s93, %d" % XBB)
    e("v_add_u32 %s, s3, %s" % (vr(tC), vr(tC)))
    if SF: e("s_waitcnt vmcnt(%d)" % (8 if SFP else 6))
    elif not ST8: e("s_waitcnt vmcnt(%d)" % ((8 if int(opts.get('early', 1)) else 6) + (PUB == 1) + XPF - 2 * ('X' in PFX or XPOS > 0)))
    mark(12)
    RAW = DST
    for i in range(32):
        e("ds_read_b32 %s, %s offset:%d" % (vr(RAW + i), vr(tC), (i >> 4) * 8192 + ((i >> 3) & 1) * 2048 + (i & 7) * 128))
    e("s_bitcmp0_b32 %s, 0" % sr(sW))
    e("s_cselect_b32 s3, s92, 1.0")
    e("v_add_u32 %s, s93, %s" % (vr(tC), vr(c2)))
    for hf in range(2):
        e("s_waitcnt lgkmcnt(%d)" % (15 if hf == 0 else 4))
        if hf == 0: e("s_nop 0")
        for i in range(16):
            e("v_lshlrev_b32 %s, 16, %s" % (vr(WL + i), vr(RAW + 16 * hf + i)))
            e("v_and_b32 %s, 0xffff0000, %s" % (vr(WH + i), vr(RAW + 16 * hf + i)))
        for i in range(0, 32, 2):
            e("v_pk_mul_f32 %s, %s, s[2:3] op_sel:[0,1] op_sel_hi:[1,1]" % (vr(WL + i, 2), vr(WL + i, 2)))
        for i in range(16):
            e("v_cvt_pk_bf16_f32 %s, %s, %s" % (vr(WP + 16 * hf + i), vr(WL + 2 * i), vr(WL + 2 * i + 1)))
        for f in range(2):
            for s_ in range(2):
                e("ds_write_b128 %s, %s offset:%d" % (vr(tC), vr(WP + 16 * hf + 8 * f + 4 * s_, 4), f * 8192 + (2 * hf + s_) * 1024))
    if not int(opts.get('early', 1)):
        for t in poll: e(t)
    mark(13)
    stamp("wconv")
    if ST8: e("s_branch POLL_1")
    lab("POLL")
    e("s_waitcnt vmcnt(0)")
    lab("POLL_1")
    e("v_xor_b32 %s, %s, %s" % (vr(c0), sr(sTagH), vr(PC_ + 2)))
    e("v_xor_b32 %s, %s, %s" % (vr(c1), sr(sTagH), vr(PC2 + 2)))
    e("v_or_b32 %s, %s, %s" % (vr(c0), vr(c0), vr(c1)))
    e("v_lshrrev_b32 %s, 16, %s" % (vr(c0), vr(c0)))
    e("v_xor_b32 %s, %s, %s" % (vr(c1), sr(sTag), vr(PC_ + 3)))
    e("v_xor_b32 %s, %s, %s" % (vr(tD), sr(sTag), vr(PC2 + 3)))
    e("v_or3_b32 %s, %s, %s, %s" % (vr(c0), vr(c0), vr(c1), vr(tD)))
    e("v_cmp_ne_u32 vcc, 0, %s" % vr(c0))
    e("s_cmp_eq_u64 vcc, 0")
    e("s_cbranch_scc1 POLL_OK")
    e("s_mov_b64 exec, vcc")
    for t in poll: e(t)
    e("s_sub_u32 %s, %s, 1" % (sr(sSpin), sr(sSpin)))
    e("s_cbranch_scc0 POLL")
    e("s_endpgm")
    lab("POLL_OK")
    e("s_mov_b64 exec, -1")
    for pc in (PC_, PC2):
        e("v_alignbit_b32 %s, %s, %s, 16" % (vr(pc + 3), vr(pc + 1), vr(pc)))
        e("v_alignbit_b32 %s, %s, %s, 16" % (vr(pc + 2), vr(pc + 2), vr(pc + 1)))
    for pc, off in ((PC_, 0), (PC2, 512)):
        for k, v in enumerate([pc, pc + 3, pc + 1, pc + 2]):
            e("ds_write_b32 %s, %s offset:%d" % (vr(PW_), vr(v), k * 1024 + off))
    lab("POLL_DONE")
    if XPOS == 2: xt_loads()
    stamp("role")
    mark(10, 11)
    e("s_waitcnt lgkmcnt(0)")
    e("s_barrier")
    stamp("offs")
    mark(4)
    wr = []
    WA = r.G[0]; WU = r.G[1]
    for m, base in enumerate([WA, WU, r.WB, r.WV]):
        for u in range(8):
            uu = m * 8 + u
            wr.append("ds_read_b128 %s, %s offset:%d" % (vr(base + 4 * u, 4), vr(c2), (uu >> 2) * 8192 + (uu & 3) * 1024))
    e("ds_read_b128 %s, %s" % (vr(EN, 4), vr(r.RI)))
    zero_list()
    for t in wr[16:24]: e(t)
    if XPOS == 1: xt_loads()
    XQ = int(opts.get('xq', 0))
    if XQ:
        e("s_lshr_b32 s3, s2, 3"); e("s_mul_i32 s3, s3, %d" % (782 * 128))
        e("s_mul_i32 s97, %s, %d" % (sr(sW), 98 * 128)); e("s_add_u32 s3, s3, s97")
        e("v_lshl_add_u32 %s, %s, 7, s3" % (vr(c1), vr(lane)))
        if XQ < 64: e("s_mov_b64 exec, 0x%x" % ((1 << XQ) - 1) if XQ <= 31 else "s_mov_b32 exec_hi, 0x%x" % ((1 << (XQ - 32)) - 1))
        e("buffer_load_dword %s, %s, %s, 0 offen" % (vr(r.T), vr(c1), sr(SX, 4)))
        if XQ > 64:
            e("s_mov_b32 exec_hi, 3")
            e("v_add_u32 %s, 8192, %s" % (vr(c1), vr(c1)))
            e("buffer_load_dword %s, %s, %s, 0 offen" % (vr(r.T), vr(c1), sr(SX, 4)))
        e("s_mov_b64 exec, -1")
    e("s_or_b32 s3, s2, %s" % sr(sW))
    e("s_cbranch_scc1 NOBUMP")
    e("v_mov_b32 %s, %s" % (vr(r.RD), sr(sTag))); e("v_mov_b32 %s, %s" % (vr(r.RD + 1), sr(sE2)))
    e("v_lshlrev_b32 %s, 3, %s" % (vr(c1), vr(lane)))
    e("buffer_store_dwordx2 %s, %s, %s, 0 offen sc0 sc1" % (vr(r.RD, 2), vr(c1), sr(SOUT, 4)))
    lab("NOBUMP")
    e("s_waitcnt lgkmcnt(10)")

    def xidx(g, t): return "ds_read_u16 %s, %s offset:%d" % (vr(r.XI + 2 * t), vr(r.PS), g * 512 + SOFF[t] + 8)
    def xm0(buf): return "s_add_u32 m0, %s, %d" % (sr(sXB), buf * 4096)
    def xdma(t): return "buffer_load_dwordx4 %s, %s, %s idxen offen offset:%d lds" % (vr(r.XI + 2 * t, 2), sr(SXI, 4), sr(sSO + t) if t < 3 else "0", t * 1024)
    def xread(buf, k): return "ds_read_b128 %s, %s offset:%d" % (vr(r.X + 4 * k, 4), vr(r.XA1 if k & 1 else r.XA0), buf * 4096 + (k >> 1) * 256)
    def t0read(g): return "ds_read_b32 %s, %s offset:%d" % (vr(r.T), vr(r.PE), g * 512)
    def tiread(g): return "ds_read_b32 %s, %s offset:%d" % (vr(r.TI), vr(r.PT), g * 512 + 8)
    def soread(g, t): return "ds_read_u8 %s, %s offset:%d" % (vr(r.SO + t), vr(r.PC), g * 512 + SOFF[t] + 12)
    def trread(t): return "ds_read_b64_tr_b16 %s, %s offset:%d" % (vr(r.S + 2 * t, 2), vr(r.SO + t), TS)
    def riread(blk, ri=None): return "ds_read_b32 %s, %s offset:%d" % (vr(r.RI if ri is None else ri), vr(r.PL), LOFF + blk * 256)
    def rload(rd, ri, fl=None): return "buffer_load_dwordx4 %s, %s, %s, 0 idxen %s" % (vr(rd, 4), vr(ri), sr(SRC, 4), RLF if fl is None else fl)
    retries = []
    def check(rd, ri, name, tmp):
        retries.append((name, rd, ri))
        return ["v_cmp_gt_u32 %s, %s, %s" % (sr(sM0, 2), sr(sLim), vr(ri)),
                name + ":",
                "v_cmp_ne_u32 vcc, %s, %s" % (sr(sTag), vr(rd + 3)),
                "v_cmp_ne_u32_sdwa %s, %s, %s src0_sel:BYTE_3 src1_sel:DWORD" % (sr(sM1, 2), vr(rd + 2), sr(sTagB)),
                "v_bfe_u32 %s, %s, 16, 8" % (vr(tmp), vr(rd + 2)),
                "s_or_b64 vcc, vcc, %s" % sr(sM1, 2),
                "s_and_b64 vcc, vcc, %s" % sr(sM0, 2),
                "s_cbranch_scc1 %s_R" % name]
    def keyfix(rd, sel, op=0x72): return "v_bitop3_b32 %s, %s, %s, %s bitop3:0x%x" % (vr(rd + 2), vr(sel), vr(rd + 2), sr(sKx), op)
    def lookup(rd, tmp, sel):
        return ["ds_read_b32 %s, %s offset:%d" % (vr(sel), vr(tmp), RTB),
                "ds_read_b32 %s, %s offset:%d" % (vr(rd + 3), vr(tmp), RTB + 4)]
    def rwrite(rd, blk): return "ds_write_b128 %s, %s offset:%d" % (vr(r.PW), vr(rd, 4), blk * 1024)
    def emit(lst):
        for t in lst:
            if t.endswith(":"): L.append(t)
            else: e(t)
    KX = c2 + 0

    lab("EXPAND")
    sd2 = "dst_sel:DWORD dst_unused:UNUSED_PAD src0_sel:WORD_1 src1_sel:WORD_0"
    sd = "dst_sel:DWORD dst_unused:UNUSED_PAD src0_sel:WORD_0 src1_sel:DWORD"
    for i in range(3): e("v_sub_u32_sdwa %s, %s, %s %s" % (vr(P + 1 + i), vr(EN + i), vr(EN + i), sd2))
    e("v_sub_u32_sdwa %s, %s, %s %s" % (vr(INC), vr(EN + 3), vr(EN + 3), sd2))
    e("v_add_u32 %s, %s, %s" % (vr(P + 2), vr(P + 1), vr(P + 2)))
    e("v_add_u32 %s, %s, %s" % (vr(P + 3), vr(P + 2), vr(P + 3)))
    e("v_add_u32 %s, %s, %s" % (vr(INC), vr(P + 3), vr(INC)))
    fill = ["v_add_u32 %s, %s, %s" % (vr(TOT), sr(sW0), vr(INC))]
    fill += ["v_add_u32_sdwa %s, %s, %s %s" % (vr(D + i), vr(EN + i), vr(CB), sd) for i in range(4)]
    fill += ["v_add_u32 %s, %d, %s" % (vr(D + i), i * CH, vr(D + i)) for i in range(1, 4)]
    fill += ["v_sub_u32 %s, %s, %s" % (vr(P + i), vr(P + i), vr(TOT)) for i in range(1, 4)]
    scan64("v_add_u32", INC, fill)
    e("v_sub_u32 %s, %s, %s" % (vr(P), vr(INC), vr(TOT)))
    e("v_readlane_b32 %s, %s, 63" % (sr(sTot), vr(INC)))
    for i in range(1, 4):
        e("v_add_u32 %s, %s, %s" % (vr(P + i), vr(INC), vr(P + i)))
    for i in range(4):
        e("v_sub_u32 %s, %s, %s" % (vr(D + i), vr(D + i), vr(P + i)))
        e("v_med3_i32 %s, %s, 0, %s" % (vr(P + i), vr(P + i), vr(C512)))
        e("v_lshl_add_u32 %s, %s, 2, %s" % (vr(P + i), vr(P + i), sr(sREC)))
    for i in range(4):
        e("ds_max_u32 %s, %s offset:%d" % (vr(P + i), vr(D + i), LOFF))
    if ROT:
        e("s_sub_u32 s3, %s, %s" % (sr(sTot), sr(sW0))); e("s_min_u32 s3, s3, 512"); e("s_lshl_b32 s3, s3, 2"); e("s_add_u32 s3, s3, %s" % sr(sREC))
        e("v_mov_b32 %s, s3" % vr(P)); e("v_mov_b32 %s, 2.0" % vr(D))
        e("s_mov_b64 exec, 1")
        e("ds_write_b32 %s, %s offset:%d" % (vr(P), vr(D), LOFF))
        e("s_mov_b64 exec, -1")
    e("ds_read_b128 %s, %s offset:%d" % (vr(M, 4), vr(LA), LOFF))
    e("ds_read_b128 %s, %s offset:%d" % (vr(M + 4, 4), vr(LA), LOFF + 16))
    e("s_lshl_b32 s3, %s, 3" % sr(sTot)); e("s_or_b32 s3, s3, %s" % sr(sW))
    e("v_mov_b32 %s, s3" % vr(TOT))
    e("s_mov_b64 exec, 1")
    e("ds_write_b32 %s, %s offset:%d" % (vr(W4), vr(TOT), TOTA))
    e("s_mov_b64 exec, -1")
    e("s_cmp_eq_u32 %s, 0" % sr(sFirst))
    e("s_cbranch_scc1 EXP_B")
    for t in wr[24:32]: e(t)
    e("s_waitcnt lgkmcnt(9)")
    e("s_branch EXP_C")
    lab("EXP_B")
    e("s_waitcnt lgkmcnt(1)")
    lab("EXP_C")
    e("v_max3_u32 %s, %s, %s, %s" % (vr(INC), vr(M), vr(M + 1), vr(M + 2)))
    e("v_max3_u32 %s, %s, %s, %s" % (vr(INC), vr(INC), vr(M + 3), vr(M + 4)))
    e("v_max3_u32 %s, %s, %s, %s" % (vr(INC), vr(INC), vr(M + 5), vr(M + 6)))
    e("v_max_u32 %s, %s, %s" % (vr(INC), vr(INC), vr(M + 7)))
    scan64("v_max_u32", INC, ["v_max_u32 %s, %s, %s" % (vr(M + k), vr(M + k - 1), vr(M + k)) for k in range(1, 8)])
    e("s_nop 1")
    e("v_mov_b32_dpp %s, %s wave_shr:1 row_mask:0xf bank_mask:0xf" % (vr(PREV), vr(INC)))
    for k in range(8):
        e("v_max_u32 %s, %s, %s" % (vr(M + k), vr(PREV), vr(M + k)))
        e("v_add3_u32 %s, %s, %s, %d" % (vr(M + k), vr(M + k), vr(JB), k))
        if ROT:
            e("v_subrev_u32 %s, %d, %s" % (vr(INC), 256 * CH, vr(M + k)))
            e("v_min_u32 %s, %s, %s" % (vr(M + k), vr(INC), vr(M + k)))
    e("ds_write_b128 %s, %s offset:%d" % (vr(LA), vr(M, 4), LOFF))
    e("ds_write_b128 %s, %s offset:%d" % (vr(LA), vr(M + 4, 4), LOFF + 16))
    RI1 = r.TI; RD1 = r.S; F0 = r.XI; F1 = r.XI + 2
    e("v_lshrrev_b32 %s, 3, %s" % (vr(c0), vr(lane)))
    e("v_lshlrev_b32 %s, 2, %s" % (vr(c0), vr(c0)))
    e("v_and_b32 %s, 7, %s" % (vr(c1), vr(lane)))
    e("v_lshlrev_b32 %s, 3, %s" % (vr(r.XI + 4), vr(c1)))
    e("v_lshlrev_b32 %s, 2, %s" % (vr(c1), vr(c1)))
    e("s_sub_u32 s3, 7, %s" % sr(sW)); e("s_sub_u32 s97, %s, 4" % sr(sW))
    e("s_cmp_lt_u32 %s, 4" % sr(sW)); e("s_cselect_b32 s97, s3, s97")
    e("s_waitcnt lgkmcnt(0)")
    def pointers():
        e("v_bfe_u32 %s, %s, 2, 2" % (vr(c0), vr(lane)))
        e("v_lshrrev_b32 %s, 5, %s" % (vr(c1), vr(lane)))
        e("v_lshl_or_b32 %s, %s, 3, %s" % (vr(c0), vr(c1), vr(c0)))
        e("v_lshl_add_u32 %s, %s, 4, %s" % (vr(r.PS), vr(c0), sr(sREC)))
        e("v_and_b32 %s, 3, %s" % (vr(c0), vr(lane)))
        e("v_add_u32 %s, %s, %s" % (vr(r.PC), vr(c0), vr(r.PS)))
        e("v_and_b32 %s, 31, %s" % (vr(c0), vr(lane)))
        e("v_lshl_add_u32 %s, %s, 4, %s" % (vr(r.PT), vr(c0), sr(sREC)))
        e("v_lshl_add_u32 %s, %s, 2, %s" % (vr(r.PE), vr(c1), vr(r.PT)))
        e("v_lshl_add_u32 %s, %s, 4, %s" % (vr(r.PW), vr(lane), sr(sREC)))
        e("s_min_u32 %s, %s, %s" % (sr(sTot), sr(sTot), sr(sLim)))
        e("s_sub_u32 s3, %s, %s" % (sr(sTot), sr(sW0)))
        e("s_min_u32 s3, s3, 512")
        e("s_add_u32 s3, s3, 31")
        e("s_bitcmp0_b32 s3, 4")
        e("s_cselect_b32 %s, 0, -1" % sr(sRET))
        e("s_lshr_b32 s3, s3, 5")
        e("s_max_u32 s3, s3, 1")
        e("s_sub_u32 %s, s3, 1" % sr(sNG))
        e("s_mov_b32 %s, 2" % sr(sBLK))
    e("s_cmp_eq_u32 %s, 0" % sr(sFirst))
    e("s_cbranch_scc1 LATER")
    stamp("expand")
    if SF or XPOS in (1, 2): e("s_waitcnt vmcnt(0)")
    e("s_barrier")
    e("ds_read_b32 %s, %s offset:%d" % (vr(c0), vr(c0), TOTA))
    e("ds_read_b32 %s, %s offset:%d" % (vr(c1), vr(c1), TOTA))
    for s in wr[8:12]: e(s)
    e("s_waitcnt lgkmcnt(4)")
    e("v_cmp_lt_u32 vcc, %s, %s" % (vr(c1), vr(c0)))
    e(wr[12]); e(wr[13])
    e("v_lshrrev_b64 %s, %s, vcc" % (vr(r.SO, 2), vr(r.XI + 4)))
    e("v_and_b32 %s, 0xff, %s" % (vr(r.SO), vr(r.SO)))
    e("v_bcnt_u32_b32 %s, %s, 0" % (vr(r.SO), vr(r.SO)))
    e("v_cmp_eq_u32 vcc, s97, %s" % vr(r.SO))
    e("s_ff1_i32_b64 s97, vcc")
    e("v_readlane_b32 %s, %s, s97" % (sr(sTot), vr(c1)))
    e("s_lshl_b32 %s, s97, 11" % sr(sXT)); e("s_add_u32 %s, %s, %d" % (sr(sXT), sr(sXT), XTB))
    e("s_lshl_b32 %s, s97, 13" % sr(sREC)); e("s_add_u32 %s, %s, %d" % (sr(sREC), sr(sREC), RECB))
    e("v_lshl_add_u32 %s, %s, 2, %s" % (vr(r.PL), vr(lane), sr(sREC)))
    e(riread(0)); e(riread(1, RI1))
    def xtile(mapreg, dst):
        e("v_add_u32 %s, %s, %s" % (vr(mapreg), sr(sXT), vr(mapreg)))
        tm = [mapreg, c0, c1, r.SO]
        for s in range(1, 4): e("v_xor_b32 %s, %d, %s" % (vr(tm[s]), 32 * s, vr(mapreg)))
        for s in range(4): e("ds_read_b128 %s, %s" % (vr(dst + 4 * s, 4), vr(tm[s])))
    NU = int(opts.get('nu', 16))
    xtile(FU, r.AT)
    RP = int(opts.get('rp', 8)); RP1 = int(opts.get('rp1', RP))
    if RP < 0:
        e("s_waitcnt lgkmcnt(4)")
        e(rload(r.RD, r.RI, RL0))
        if RP1 < 0: e(rload(RD1, RI1, RL0))
    e(wr[14]); e(wr[15])
    xtile(FA, r.X)
    for s in wr[0:8]: e(s)
    WT = r.ACC[0]
    for i in range(4):
        e("v_lshlrev_b32 %s, 16, %s" % (vr(WT + i), vr(WCR + i)))
        e("v_and_b32 %s, 0xffff0000, %s" % (vr(WT + 4 + i), vr(WCR + i)))
    for i in range(8):
        e("v_mul_f32 %s, s92, %s" % (vr(WT + i), vr(WT + i)))
    for i in range(4):
        e("v_cvt_pk_bf16_f32 %s, %s, %s" % (vr(WCR + i), vr(WT + 2 * i), vr(WT + 2 * i + 1)))
    e("s_lshr_b32 %s, %s, 3" % (sr(sTot), sr(sTot)))
    e("s_lshl_b32 %s, %s, 3" % (sr(sT), sr(sBin))); e("s_add_u32 %s, %s, s97" % (sr(sT), sr(sT)))
    ua = []
    for f in range(2):
        for s in range(4):
            ua.append(mfma(r.ACC[f], r.AT + 4 * s, WU + 16 * f + 4 * s, None if s == 0 else r.ACC[f]))
    for f in range(2):
        for s in range(4):
            ua.append(mfma(WU + 16 * f, r.X + 4 * s, WA + 16 * f + 4 * s, None if s == 0 else WU + 16 * f))
    n0 = len(L)
    pointers()
    tile_range()
    e("s_min_u32 %s, %s, %d" % (sr(sEnd), sr(sEnd), N_NODES))
    e("s_sub_u32 s3, %s, %s" % (sr(sEnd), sr(sStart))); e("s_lshl_b32 s3, s3, 7")
    e("s_lshl_b32 s97, %s, 7" % sr(sStart))
    srd(SOUT, 22, "s3", "s97")
    misc = L[n0:]; del L[n0:]
    e("s_waitcnt lgkmcnt(12)")
    for k in range(NU):
        if k == 8: e("s_waitcnt lgkmcnt(0)")
        if k == RP: e(rload(r.RD, r.RI, RL0))
        if k == RP1: e(rload(RD1, RI1, RL0))
        e(ua[k])
        for _ in range(5):
            if misc: L.append(misc.pop(0))
    L.extend(misc)
    CV = int(opts.get('cv', 1))
    def cvts():
        for i in range(8):
            e("v_cvt_pk_bf16_f32 %s, %s, %s" % (vr(r.U + i), vr(r.ACC[0] + i), vr(r.ACC[1] + i)))
        e("s_mov_b32 s3, 0x358637bd")
        for f in range(2):
            for i in range(16): e("v_mov_b32 %s, %s" % (vr(r.ACC[f] + i), "s3" if i < 8 else "0"))
        for f in range(2):
            for i in range(8):
                e("v_cvt_pk_bf16_f32 %s, %s, %s" % (vr(r.AT + 8 * f + i), vr(WU + 16 * f + 2 * i) if i & 1 else "0", vr(WU + 16 * f + 2 * i + 1)))
        e("s_mov_b32 exec_hi, 0")
        for f in range(2):
            e("v_mov_b32 %s, %s" % (vr(r.AT + 8 * f), vr(WCR + 2 * f)))
            e("v_mov_b32 %s, %s" % (vr(r.AT + 8 * f + 4), vr(WCR + 2 * f + 1)))
        e("s_mov_b64 exec, -1")
    if RP == 16: e(rload(r.RD, r.RI, RL0))
    if RP1 == 16: e(rload(RD1, RI1, RL0))
    e("s_waitcnt lgkmcnt(0)")
    e("s_barrier")
    if CV:
        assert NU == 16
        e("s_nop 3")
        cvts()
    if int(opts.get('rdl', 0)): e("s_sleep %d" % int(opts['rdl']))
    if RP == 17: e(rload(r.RD, r.RI, RL0))
    if RP1 == 17: e(rload(RD1, RI1, RL0))
    lab("NOW")
    e("s_mov_b32 m0, %s" % sr(sXB))
    e("s_waitcnt vmcnt(1)")
    emit(check(r.RD, r.RI, "FX0", c0))
    e("v_xor_b32 %s, 0xffff, %s" % (vr(r.RD + 2), vr(r.RD + 2)))
    e(rwrite(r.RD, 0))
    for t in range(4): e(xidx(0, t))
    emit(lookup(r.RD, c0, c1))
    e(riread(2))
    stamp("rec")
    mark(8)
    e("s_waitcnt lgkmcnt(3)")
    for t in range(4): e(xdma(t))
    for t in range(4): e(xidx(1, t))
    e("s_cmp_eq_u32 %s, 0" % sr(sFirst))
    e("s_cbranch_scc1 NOW2")
    for t in ua[NU:]: e(t)
    lab("NOW2")
    e("s_waitcnt vmcnt(4)")
    emit(check(RD1, RI1, "FX1", c0))
    emit(lookup(RD1, c0, c2))
    e("s_waitcnt lgkmcnt(2)")
    e(keyfix(r.RD, c1, 0xd8))
    e("ds_write_b64 %s, %s offset:8" % (vr(r.PW), vr(r.RD + 2, 2)))
    e(t0read(0)); e(tiread(0))
    e(xm0(1))
    X1L = int(opts.get('x1l', 0))
    def x1():
        for t in range(4): e(xdma(t))
        e(rload(r.RD, r.RI, RL2))
        for t in range(4): e(xidx(2, t))
    e("s_cmp_eq_u32 %s, 0" % sr(sFirst))
    e("s_cbranch_scc1 NOW3")
    if not CV: cvts()
    lab("NOW3")
    e("s_waitcnt lgkmcnt(2)")
    e(keyfix(RD1, c2))
    e(rwrite(RD1, 1))
    if not X1L: x1()
    stamp("atile")
    e("s_waitcnt vmcnt(%d)" % (0 if X1L else 5))
    stamp("x0")
    for k in range(4): e(xread(0, k))
    if X1L: x1()
    e(xm0(0))
    for s_ in range(4):
        e("s_waitcnt lgkmcnt(%d)" % (0 if s_ == 3 else 3 - s_ + 4 * X1L))
        e(mfma(r.G[0], r.X + 4 * s_, r.WB + 4 * s_, None if s_ == 0 else r.G[0]))
    e(xdma(0))
    e(smf(r.G[0], r.T, r.AT, r.TI, 1))
    e(xdma(1))
    e("s_nop 6")
    stamp("loop"); stamp("rtloop", True)
    if STAMP:
        e("s_add_u32 s100, %s, 1" % sr(sNG)); e("v_writelane_b32 v%d, s100, 28" % STV)
    mark(3)

    def I(text, lds=None, need=()): return dict(text=text, lds=lds, need=list(need))
    def oct_(base, o):
        o %= 4
        return base[o >> 1] + 8 * (o & 1)
    def C_(o, i): return "v_cvt_pk_bf16_f32 %s, %s, %s" % (vr(oct_(r.V, o) + i), vr(r.ETA + i), vr(oct_(r.V, o) + i))
    def R_(o, i): return "v_rcp_f32 %s, %s" % (vr(r.ETA + i), vr(oct_(r.G, o) + i))
    def E_(o, i): return "v_exp_f32 %s, %s" % (vr(oct_(r.G, o) + i), vr(oct_(r.G, o) + i))
    def A_(o):
        g_ = oct_(r.G, o)
        return ["v_pk_add_f32 %s, %s, 1.0 op_sel_hi:[1,0]" % (vr(g_ + i, 2), vr(g_ + i, 2)) for i in range(0, 8, 2)]
    def M_(o, pk=True):
        v_ = oct_(r.V, o)
        if pk: return ["v_pk_mul_f32 %s, %s, %s" % (vr(v_ + i, 2), vr(v_ + i, 2), vr(r.ETA + i, 2)) for i in range(0, 8, 2)]
        return ["v_mul_f32 %s, %s, %s" % (vr(v_ + i), vr(r.ETA + i), vr(v_ + i)) for i in range(8)]
    def red(f, hi): return smf(r.ACC[f], r.S + 4 * hi, r.V[f] + 8 * hi, r.SI)
    def gch(f): return [mfma(r.G[f], r.X + 4 * k, r.WB + 16 * f + 4 * k, None if k == 0 else r.G[f]) for k in range(4)] + [smf(r.G[f], r.T, r.AT + 8 * f, r.TI, 1)]
    def vch(f): return [mfma(r.V[f], r.X + 4 * k, r.WV + 16 * f + 4 * k, None if k == 0 else r.V[f]) for k in range(4)]
    CUT6 = [0, 3, 6, 10, 14, 18]; CUT5 = [0, 4, 8, 12, 16]
    HALF = int(opts.get('half', 1))
    def sub(s_, g, first=False):
        nb = (g + 1) & 1
        tail = []
        if s_ == 0:
            mm = [I(red(0, 0), need=['S3']), I(red(0, 1))] + [I(t) for t in vch(0)]
            aux = [[], [I(soread(g, 0), lds='SO0')], [I(xdma(2)), I(soread(g, 1), lds='SO1')], [I(xdma(3))],
                   [I(soread(g, 2), lds='SO2')], [I(soread(g, 3), lds='SO3')]]
            if g == 1:
                aux[0] += [I("s_cmp_eq_u32 %s, 0" % sr(sLim))]
                aux[1] = [I("s_cbranch_scc1 WR_S", need=['RT']), I(rwrite(r.RD, 2)), I("WR_S:")] + aux[1]
                aux[4].insert(0, I(rload(r.RD, r.RI), need=['RI', 'SO0']))
        elif s_ == 1:
            mm = [I(t) for t in gch(1)]
            aux = [[I(xidx(g + 3, k), lds='XI%d' % k)] for k in range(4)] + [[I(t0read(g + 1), lds='T0')]]
        elif s_ == 2:
            mm = [I(red(1, 0)), I(red(1, 1))] + [I(t) for t in vch(1)]
            aux = [[I(tiread(g + 1), lds='TI')], [I("s_waitcnt vmcnt(%d)" % (4 if g == 0 else 5), need=['XI3']), I(trread(0), lds='S0')]] + [[I(xread(nb, k), lds='X%d' % k)] for k in range(4)]
            aux[5].insert(0, I("s_waitcnt", need=['X1']))
            dec = I("s_sub_u32 %s, %s, 1" % (sr(sNG), sr(sNG)))
            if g == 0:
                tail = [I(t) for t in check(r.RD, r.RI, "FXP" if first else "FXL", c0)]
                tail += [dec]
                if not first:
                    aux[3].insert(0, I("s_cmp_gt_u32 %s, 7" % sr(sBLK)))
                    aux[4].insert(0, I("s_cselect_b32 %s, 0, %s" % (sr(sLim), sr(sLim))))
            else: aux[4].insert(0, dec)
        else:
            gc = gch(0)
            mm = [I(gc[k], need=['X%d' % k]) for k in range(4)] + [I(gc[4], need=['T0', 'TI'])]
            aux = [[I(trread(1), lds='S1')], [I("s_waitcnt", need=['X3']), I(trread(2), lds='S2')], [I(xm0(nb)), I(trread(3), lds='S3')],
                   [I(xdma(0))], [I("s_waitcnt", need=['S3']), I(xdma(1))]]
            if HALF: aux[3].insert(0, I("s_or_b32 s3, %s, %s" % (sr(sNG), sr(sRET))))
            if g == 0:
                aux[2].append(I(riread(3), lds='RI'))
                aux[0].insert(0, I("s_add_u32 %s, %s, 1" % (sr(sBLK), sr(sBLK))))
                lk = lookup(r.RD, c0, c1)
                aux[0].append(I(lk[0], lds='RT0')); aux[1].append(I(lk[1], lds='RT'))
                tail = [I(keyfix(r.RD, c1), need=['RT'])]
            else:
                tail = [I("v_lshl_add_u64 %s, %s, 0, %s" % (vr(r.PS, 2), vr(r.PS, 2), sr(sINC, 2))),
                        I("v_lshl_add_u64 %s, %s, 0, %s" % (vr(r.PT, 2), vr(r.PT, 2), sr(sINC, 2))),
                        I("v_lshl_add_u64 %s, %s, 0, %s" % (vr(r.PL, 2), vr(r.PL, 2), sr(sINC2, 2)))]
        va = []
        for i in range(8):
            if not (first and s_ < 2): va.append(C_(s_ - 2, i))
            if not (first and s_ < 1): va.append(R_(s_ - 1, i))
            va.append(E_(s_, i))
        cut = CUT6 if len(mm) == 6 else CUT5
        if first and s_ in (0, 2):
            aux = [aux[0] + aux[1] + aux[2]] + aux[3:]; mm = mm[2:]
            cut = [0, 2, 4, 6] if s_ == 0 else [0, 4, 8, 12]
        if first and s_ == 1: cut = [0, 3, 6, 9, 12]
        aux[0].insert(0, I("s_setprio @%d" % (4 * g + s_)))
        aux[-1].insert(0, I("s_setprio 3"))
        out = []
        for k, t in enumerate(va):
            if k in cut:
                j = cut.index(k); out.append(mm[j]); out.extend(aux[j])
            out.append(I(t))
        out += tail + [I(t) for t in ([] if first and s_ == 0 else M_(s_ - 1)) + A_(s_)]
        if s_ == 2: out.append(I("s_cbranch_scc1 TAIL"))
        return out
    state = dict(issued=[], done=0)
    def run(seq, out):
        issued = state['issued']
        for it in seq:
            n = None
            for tag in it['need']:
                idxs = [k for k, t in enumerate(issued) if t == tag]
                if not idxs: continue
                k = idxs[-1]
                if k >= state['done']:
                    n = len(issued) - 1 - k
                    state['done'] = k + 1
            tx = it['text']
            if n is not None:
                assert n <= 15
                if tx.startswith("s_waitcnt"): tx += " lgkmcnt(%d)" % n
                elif out: e("s_waitcnt lgkmcnt(%d)" % n)
            if out and tx != "s_waitcnt": emit([tx])
            if it['lds']: issued.append(it['lds'])
    cyc = lambda g, first=False: sum((sub(s_, g, first) for s_ in range(4)), [])
    c_first, c_even, c_odd = cyc(0, True), cyc(0), cyc(1)
    FAIR = opts.get('fair', '')
    n0 = len(L)
    run(c_first, True)
    for k in range(n0, len(L)): L[k] = re.sub(r"@\d", "1", L[k])
    if FAIR:
        e("s_mov_b64 vcc, s[10:11]")
        e("s_cbranch_vccnz MID_O")
    e("s_branch MID")
    run(c_odd, False)
    n0 = len(L)
    L.append(".p2align 3")
    lab("LOOP")
    run(c_even, True)
    lab("MID")
    if HALF: e("s_cbranch_scc0 HALF1")
    run(c_odd, True)
    body_txt = L[n0:]
    for k in range(n0, len(L)): L[k] = re.sub(r"@\d", "1", L[k])
    if FAIR:
        tail_txt = L[n0:]; del L[n0:]
        for t in body_txt:
            t = re.sub(r"@(\d)", lambda m: "0" if m.group(1) in FAIR else "2", t)
            t = re.sub(r"\b(LOOP|MID|FXL|FXL_R|WR_S)\b", lambda m: m.group(1).replace("FXL", "FXO") + ("" if m.group(1).startswith("FXL") else "_O"), t)
            L.append(t)
        e("s_cbranch_scc1 LOOP_O")
        e("s_branch HALF0")
        retries.append(("FXO", r.RD, r.RI))
        L.extend(tail_txt)
    XR = r.X; UF = r.G[0]; XF = r.V[0]
    def epi_addr():
        return ["v_lshrrev_b32 %s, 5, %s" % (vr(c0), vr(lane)),
                "v_and_b32 %s, 31, %s" % (vr(c1), vr(lane)),
                "v_lshlrev_b32 %s, 2, %s" % (vr(c1), vr(c1)),
                "v_mul_u32_u24 %s, 0x240, %s" % (vr(c2), vr(c0)),
                "v_xor_b32 %s, %s, %s" % (vr(c2), vr(c2), vr(c1)),
                "v_add_u32 %s, %s, %s" % (vr(c2), sr(sXT), vr(c2))]
    if HALF:
        e("s_cbranch_scc1 LOOP")
        e("s_branch HALF0")
        lab("HALF1")
        e("v_add_u32 %s, 512, %s" % (vr(r.PC), vr(r.PC)))
        lab("HALF0")
        def weave(mm, va, cut):
            for k, t in enumerate(va):
                if k in cut: e(mm[cut.index(k)])
                e(t)
        e("s_setprio 1")
        e(soread(0, 0)); e(soread(0, 1))
        va = []
        for i in range(8): va += [C_(2, i), R_(3, i), E_(0, i)]
        weave([red(0, 0), red(0, 1)] + vch(0), va, CUT6)
        e("s_setprio 3")
        for t in M_(3) + A_(0): e(t)
        e("s_setprio 1")
        va = []
        for i in range(8): va += [C_(3, i), R_(0, i)]
        weave(gch(1), va, [0, 3, 6, 9, 12])
        for t in M_(0, False): e(t)
        e(red(1, 0))
        e("s_waitcnt lgkmcnt(0)")
        e(trread(0)); e(trread(1))
        va = []
        for i in range(8): va += [C_(0, i), E_(2, i)]
        weave([red(1, 1)] + vch(1), va, [1, 4, 7, 10, 13])
        for i in range(8): e("v_add_f32 %s, 1.0, %s" % (vr(r.G[1] + i), vr(r.G[1] + i)))
        e("s_waitcnt lgkmcnt(0)")
        e(red(0, 0))
        for i in range(8): e(R_(2, i))
        pre = epi_addr()
        e(pre.pop(0))
        for t in M_(2, False): e(t)
        for i in range(8): e(C_(2, i))
        for t in pre: e(t)
        e(red(1, 0))
        e("s_branch FIN")
    else:
        e("s_branch LOOP")
    lab("TAIL")
    e("s_setprio 2")
    e(trread(1)); e(trread(2)); e(trread(3))
    for i in range(8): e(C_(1, i)); e(R_(2, i)); e(E_(3, i))
    e("s_waitcnt lgkmcnt(0)")
    e(red(0, 0))
    for t in M_(2, False): e(t)
    e(red(0, 1))
    for i in range(8): e("v_add_f32 %s, 1.0, %s" % (vr(r.G[1] + 8 + i), vr(r.G[1] + 8 + i)))
    pre = epi_addr()
    for i in range(8): e(C_(2, i)); e(R_(3, i))
    e(pre.pop(0)); e(pre.pop(0))
    e(red(1, 0))
    for t in M_(3, False): e(t)
    for i in range(8): e(C_(3, i))
    for t in pre: e(t)
    e(red(1, 1))
    lab("FIN")
    stamp("loopend"); stamp("rtloopend", True)
    e("s_setprio 3")
    e("s_add_u32 %s, %s, 512" % (sr(sW0), sr(sW0)))
    e("s_cmp_lt_u32 %s, %s" % (sr(sW0), sr(sTot)))
    e("s_cbranch_scc1 MORE")
    EA_ = r.X + 8
    for q_ in range(1, 4): e("v_xor_b32 %s, %d, %s" % (vr(EA_ + q_), 16 * q_, vr(c2)))
    for q_ in range(4):
        e("ds_read_b32 %s, %s offset:%d" % (vr(XR + q_), vr(EA_ + q_ if q_ else c2), q_ * 128))
        if q_ < 3: e("ds_read_b32 %s, %s offset:%d" % (vr(XR + q_ + 4), vr(EA_ + q_ if q_ else c2), q_ * 128 + 1024))
    for q_ in range(7):
        e("v_lshlrev_b32 %s, 16, %s" % (vr(UF + q_), vr(r.U + q_)))
        e("v_and_b32 %s, 0xffff0000, %s" % (vr(UF + 8 + q_), vr(r.U + q_)))
    B0, B1 = EA_ + 4, EA_ + 5
    e("v_lshl_add_u32 %s, %s, 9, %s" % (vr(B0), vr(c0), vr(c1)))
    e("s_movk_i32 s3, 384")
    e("v_mad_u32_u24 %s, %s, s3, %s" % (vr(B1), vr(c0), vr(c1)))
    for f in range(2):
        for q_ in range(7):
            e("v_rcp_f32 %s, %s" % (vr(r.ACC[f] + q_), vr(r.ACC[f] + q_)))
    e("s_waitcnt lgkmcnt(0)")
    for q_ in range(7):
        e("v_lshlrev_b32 %s, 16, %s" % (vr(XF + q_), vr(XR + q_)))
        e("v_and_b32 %s, 0xffff0000, %s" % (vr(XF + 8 + q_), vr(XR + q_)))
    for f in range(2):
        for q_ in range(0, 8, 2):
            e("v_pk_fma_f32 %s, %s, %s, %s" % (vr(UF + 8 * f + q_, 2), vr(r.ACC[f] + q_, 2), vr(r.ACC[f] + 8 + q_, 2), vr(UF + 8 * f + q_, 2)))
    for f in range(2):
        for q_ in range(7):
            e("v_max_f32 %s, 0, %s" % (vr(UF + 8 * f + q_), vr(UF + 8 * f + q_)))
    for q_ in range(0, 8, 2):
        for f in range(2):
            e("v_pk_add_f32 %s, %s, %s" % (vr(UF + 8 * f + q_, 2), vr(UF + 8 * f + q_, 2), vr(XF + 8 * f + q_, 2)))
    for q_ in range(7):
        e("v_cvt_pk_bf16_f32 %s, %s, %s" % (vr(r.U + q_), vr(UF + q_), vr(UF + 8 + q_)))
        e("buffer_store_dword %s, %s, %s, 0 offen offset:%d %s" % (vr(r.U + q_), vr(B0 if q_ < 4 else B1), sr(SOUT, 4), (q_ if q_ < 4 else q_ + 4) * 128, OSF))
    if STAMP:
        e("s_waitcnt vmcnt(0)")
        stamp("end"); stamp("rtend", True)
        e("s_sub_u32 s100, %d, %s" % (SPINMAX, sr(sSpin))); e("v_writelane_b32 v%d, s100, 29" % STV)
        e("s_getreg_b32 s100, hwreg(HW_REG_HW_ID)"); e("v_writelane_b32 v%d, s100, 30" % STV)
        e("s_lshl_b32 s3, s2, 3"); e("s_add_u32 s3, s3, %s" % sr(sW)); e("s_lshl_b32 s3, s3, 7"); e("s_add_u32 s3, s3, 0x%x" % WS_DBG)
        srd(SA, 26, 128, "s3")
        e("v_lshlrev_b32 %s, 2, %s" % (vr(c0), vr(lane)))
        e("buffer_store_dword v%d, %s, %s, 0 offen" % (STV, vr(c0), sr(SA, 4)))
    if DW:
        if 'dwg' in opts:
            e("s_cmp_lg_u32 s2, %s" % opts['dwg']); e("s_cbranch_scc1 K_END")
        if DW == 10: e("s_cmp_gt_u32 %s, 3" % sr(sW)); e("s_cbranch_scc1 K_END")
        if DW in (11, 12, 13): e("s_cmp_lt_u32 %s, 4" % sr(sW)); e("s_cbranch_scc1 K_END")
        e("s_waitcnt vmcnt(0) lgkmcnt(0)")
        lab("SPIN")
        e("s_memrealtime s[100:101]"); e("s_waitcnt lgkmcnt(0)")
        e("s_sub_u32 s100, s100, s98"); e("s_cmp_lt_u32 s100, 6000"); e("s_cbranch_scc1 SPIN")
    lab("K_END")
    e("s_endpgm")
    for name, rd, ri in retries:
        lab(name + "_R")
        e("s_mov_b64 exec, vcc")
        if int(opts.get('rsl', 0)): e("s_sleep %d" % int(opts.get('rsl', 0)))
        e(rload(rd, ri, "sc0 sc1"))
        e("s_mov_b64 exec, -1")
        e("s_sub_u32 %s, %s, 1" % (sr(sSpin), sr(sSpin)))
        e("s_waitcnt vmcnt(0)")
        e("s_cbranch_scc0 %s" % name)
        e("s_endpgm")
    lab("LATER")
    e(riread(0)); e(riread(1, RI1))
    pointers()
    e("s_waitcnt lgkmcnt(0)")
    e(rload(r.RD, r.RI)); e(rload(RD1, RI1))
    e("s_branch NOW")
    lab("MORE")
    e("s_mov_b32 %s, %d" % (sr(sLim), NC * CH))
    e("s_mov_b32 %s, 0" % sr(sFirst))
    e("s_waitcnt vmcnt(0) lgkmcnt(0)")
    e("s_nop 15")
    e("s_lshr_b32 s3, %s, 2" % sr(sT)); e("s_lshl_b32 s3, s3, 4")
    e("s_and_b32 s97, %s, 3" % sr(sT)); e("s_lshl_b32 s97, s97, 1"); e("s_add_u32 s3, s3, s97")
    e("v_lshl_add_u32 %s, %s, 2, %s" % (vr(c0), vr(lane), sr(sC0) if ROT else "0"))
    for i in range(4):
        e("v_and_b32 %s, 255, %s" % (vr(c1), vr(c0)))
        e("v_lshl_add_u32 %s, %s, 13, s3" % (vr(c1), vr(c1)))
        e("buffer_load_ushort %s, %s, %s, 0 offen sc0 sc1" % (vr(EN + i), vr(c1), sr(SOFS, 4)))
        e("buffer_load_ushort %s, %s, %s, 0 offen offset:2 sc0 sc1" % (vr(D + i), vr(c1), sr(SOFS, 4)))
        e("v_add_u32 %s, 1, %s" % (vr(c0), vr(c0)))
    expand_pre()
    zero_list()
    e("s_waitcnt vmcnt(0)")
    for i in range(4): e("v_lshl_or_b32 %s, %s, 16, %s" % (vr(EN + i), vr(D + i), vr(EN + i)))
    e("s_branch EXPAND")
    return r.n

hdr = open('cdna_kernels/%s.s.ref' % NAME).read().split('\n')
hdr = [l for l in hdr if l.startswith(';   offset') or l.startswith('; Kernarg')]
L.append('.amdgcn_target "amdgcn-amd-amdhsa--gfx950"')
L.append('.text')
nv = kernel()
L.append('.section .rodata,"a"')
L += [".p2align 6", ".amdhsa_kernel %s" % KN, "  .amdhsa_next_free_vgpr 256", "  .amdhsa_next_free_sgpr 102",
      "  .amdhsa_accum_offset 256", "  .amdhsa_group_segment_fixed_size 0", "  .amdhsa_kernarg_size 96",
      "  .amdhsa_user_sgpr_count 2", "  .amdhsa_user_sgpr_kernarg_segment_ptr 1", "  .amdhsa_system_sgpr_workgroup_id_x 1",
      ".end_amdhsa_kernel"]
if opts.get('list', '0') == '1':
    top = hdr + ["; @launch kernel=%s grid=(256,1,1) block=(512,1,1) lds=%d" % (KN, LDS_BYTES)]
else:
    top = hdr + ["; @launch grid=(256,1,1) block=(512,1,1) lds=%d" % LDS_BYTES]
open(OUT, 'w').write("\n".join(top + L) + "\n")
if STAMP: open('stamps.txt', 'w').write(" ".join(names))
print("vgprs:", nv, "lines:", len(L))
```

```python
import sys, re

NAME = "standalone__edge_featured_mpnn_gatedgcn__graph"
KN = NAME + "_kernel"
N_NODES = 25000
CH = 3200
NC = 250
TMUL = 5368
WS_REC = 0
WS_OFF = 0xD00000
WS_EPO = 0xF00000
WS_DBG = 0x1000000
NEGLOG2E = 0xBFB8AA3B
SPINMAX = 2000000

opts = dict(a.split('=') for a in sys.argv[1:] if '=' in a)
OUT = opts.get('out', 'cdna_kernels/%s.s' % NAME)
STAMP = int(opts.get('stamp', 0))
STF = opts.get('stf', 'sc1').replace('+', ' ')
LDF = opts.get('ldf', 'nt').replace('+', ' ')
RLF = opts.get('rlf', '').replace('+', ' ')
RL0 = opts.get('rl0', '').replace('+', ' ')
RL2 = opts.get('rl2', '').replace('+', ' ')
XPF = int(opts.get('xpf', 0))
PLF = opts.get('plf', 'sc1').replace('+', ' ')
OSF = opts.get('osf', 'sc1').replace('+', ' ')
DW = int(opts.get('dw', 0))
LOWS = opts.get('lows', '')
DELAY = int(opts.get('delay', 0))

L = []
def e(s): L.append("    " + s)
def lab(s): L.append(s + ":")
def vr(a, n=1): return "v%d" % a if n == 1 else "v[%d:%d]" % (a, a + n - 1)
def sr(a, n=1): return "s%d" % a if n == 1 else "s[%d:%d]" % (a, a + n - 1)

DPPS = ["row_shr:1 row_mask:0xf bank_mask:0xf", "row_shr:2 row_mask:0xf bank_mask:0xf",
        "row_shr:4 row_mask:0xf bank_mask:0xf", "row_shr:8 row_mask:0xf bank_mask:0xf",
        "row_bcast:15 row_mask:0xa bank_mask:0xf", "row_bcast:31 row_mask:0xc bank_mask:0xf"]
def scan64(op, v, fill=()):
    fill = list(fill)
    for m in DPPS:
        n = 0
        while n < 2 and fill:
            e(fill.pop(0)); n += 1
        if n < 2: e("s_nop %d" % (1 - n))
        e("%s_dpp %s, %s, %s %s" % (op, vr(v), vr(v), vr(v), m))
    for f in fill: e(f)

def srd(d, base, nbytes, add=None, stride=0, sub=None):
    if sub is not None:
        e("s_sub_u32 %s, %s, %s" % (sr(d), sr(base), sub))
        e("s_subb_u32 %s, %s, 0" % (sr(d + 1), sr(base + 1)))
        e("s_and_b32 %s, %s, 0xffff" % (sr(d + 1), sr(d + 1)))
    elif add is None:
        e("s_mov_b32 %s, %s" % (sr(d), sr(base)))
        e("s_and_b32 %s, %s, 0xffff" % (sr(d + 1), sr(base + 1)))
    else:
        e("s_add_u32 %s, %s, %s" % (sr(d), sr(base), add))
        e("s_addc_u32 %s, %s, 0" % (sr(d + 1), sr(base + 1)))
        e("s_and_b32 %s, %s, 0xffff" % (sr(d + 1), sr(d + 1)))
    if stride:
        e("s_or_b32 %s, %s, 0x%x" % (sr(d + 1), sr(d + 1), stride << 16))
    e("s_mov_b32 %s, %s" % (sr(d + 2), nbytes if isinstance(nbytes, str) else "0x%x" % nbytes))
    e("s_mov_b32 %s, 0x20000" % sr(d + 3))

STV = 255
names = []
def stamp(name, real=False):
    if not STAMP: return
    if 'only' in opts and name not in opts['only'].split(',') + ['rt0', 'start', 'loop', 'rtloop', 'loopend', 'rtloopend', 'end', 'rtend']: return
    k = len(names); names.append(name)
    e("s_mem%stime s[100:101]" % ("real" if real else ""))
    e("s_waitcnt lgkmcnt(0)")
    e("v_writelane_b32 v%d, s100, %d" % (STV, k))
def mark(*modes):
    if DW in modes: e("s_memrealtime s[98:99]"); e("s_waitcnt lgkmcnt(0)")

TS, TOTA, WTOT, UTB, RTB = 0, 64, 128, 192, 256
RECB = 1024
HIST = RECB + CH * 16
XTB = RECB + 65536
XBB = XTB + 16384
PCB = XBB + 65536
LDS_BYTES = PCB + 8192
LOFF = 8192 - 2048 - 16

class R: pass
def alloc():
    r = R(); p = 0
    def a(n, al=1):
        nonlocal p
        p = (p + al - 1) // al * al
        b = p; p += n
        return b
    r.LANE = a(1); r.SI = a(1)
    r.PS = a(1, 2); r.PC = a(1); r.PT = a(1, 2); r.PE = a(1); r.PL = a(1, 2); r.PW = a(1)
    r.XA0 = a(1); r.XA1 = a(1); r.TI = a(1); r.TMP = a(3); r.RI = a(1)
    r.SO = a(4, 2); r.XI = a(8, 2); r.T = a(4, 2); r.RD = a(4, 2); r.U = a(8, 2)
    r.S = a(8, 2); r.ETA = a(8, 2); r.X = a(16, 2)
    r.ACC = [a(16, 2), a(16, 2)]
    r.G = [a(16, 2), None]; r.V = [a(16, 2), None]
    r.G[1] = a(16, 2); r.V[1] = a(16, 2)
    r.WB = a(32, 2); r.WV = a(32, 2); r.AT = a(16, 2)
    r.n = p
    return r

def mfma(d, a, b, c):
    return "v_mfma_f32_32x32x16_bf16 %s, %s, %s, %s" % (vr(d, 16), vr(a, 4), vr(b, 4), "0" if c is None else vr(c, 16))
def smf(d, a, b, idx, abid=0):
    return "v_smfmac_f32_32x32x32_bf16 %s, %s, %s, %s%s" % (vr(d, 16), vr(a, 4), vr(b, 8), vr(idx), " abid:1" if abid else "")
SOFF = [0, 64, 256, 320]

def kernel():
    r = alloc()
    assert r.n <= 255, r.n
    SX, SXI, SOFS, SRC, SOUT, SA, SB, SC_ = 28, 32, 36, 40, 44, 48, 52, 56
    sW, sT, sStart, sEnd, sTot, sW0, sNG, sXB, sREC, sFirst, sBin, sMag, sBLK, sXT, sTag, sTagH, sSpin, sLim, sKm, sKx = range(60, 80)
    sINC = 80; sINC2 = 82; sSO = 84; sTagB = 87; sE2 = 88; sRET = 90; sM0 = 4; sM1 = 6; sC0 = 8; sCB = 89
    ROT = int(opts.get('rot', 0)); MARG = int(opts.get('marg', 25))
    lane = r.LANE
    c0, c1, c2 = r.TMP, r.TMP + 1, r.TMP + 2
    MAG = -(-(1 << 41) // 671)
    for t in range(2049):
        n = t * 8192 + 670
        assert (n * MAG) >> 41 == n // 671
    def tile_range():
        e("s_lshl_b32 s3, %s, 13" % sr(sT)); e("s_add_u32 s3, s3, 670")
        e("s_mul_hi_u32 %s, s3, %s" % (sr(sStart), sr(sMag))); e("s_lshr_b32 %s, %s, 9" % (sr(sStart), sr(sStart)))
        e("s_add_u32 s3, s3, 8192")
        e("s_mul_hi_u32 %s, s3, %s" % (sr(sEnd), sr(sMag))); e("s_lshr_b32 %s, %s, 9" % (sr(sEnd), sr(sEnd)))
    L.append(".globl %s" % KN); L.append(".p2align 8"); L.append(".type %s,@function" % KN); lab(KN)
    e("s_load_dwordx16 s[4:19], s[0:1], 0")
    e("s_load_dwordx8 s[20:27], s[0:1], 64")
    e("s_cmp_gt_u32 s2, 255")
    e("s_cbranch_scc1 K_END")
    e("s_setprio 3")
    mark(1)
    stamp("rt0", True); stamp("start")
    q = r.X
    TID = q; T16 = q + 1; T32 = q + 2; ONE = q + 3; ZER = q + 4
    DST = q + 8
    SRCV = q + 16
    EA = q + 24
    HA = q + 56
    RK = q + 64
    CN = q + 72
    ST = q + 76
    PC_ = q + 80
    tA, tB, tC, tD, tE, tF = [q + 84 + i for i in range(6)]
    EP = q + 90
    T16B = q + 92; T32B = q + 93
    assert q + 94 <= r.WB
    WRAW = r.AT
    WCR = r.ETA
    e("v_mov_b32 %s, v0" % vr(TID))
    e("v_lshrrev_b32 %s, 6, v0" % vr(tA))
    e("v_lshlrev_b32 %s, 4, v0" % vr(T16))
    e("v_readfirstlane_b32 %s, %s" % (sr(sW), vr(tA)))
    e("v_lshlrev_b32 %s, 5, v0" % vr(T32))
    e("v_and_b32 %s, 63, v0" % vr(lane))
    e("v_add_u32 %s, 8192, %s" % (vr(T16B), vr(T16)))
    e("v_add_u32 %s, 16384, %s" % (vr(T32B), vr(T32)))
    for i in range(4): e("v_mov_b32 %s, 0" % vr(ZER + i))
    e("v_mov_b32 %s, 1" % vr(ONE))
    e("ds_write_b128 %s, %s offset:%d" % (vr(T16), vr(ZER, 4), HIST))
    e("s_min_u32 s3, s2, %d" % (NC - 1))
    e("s_mul_i32 s92, s3, %d" % (CH * 4))
    e("s_lshl_b32 s93, s92, 1")
    e("s_cmp_lt_u32 s2, %d" % NC)
    e("s_cselect_b32 s94, %d, 0" % (CH * 4))
    e("s_cselect_b32 s95, %d, 0" % (CH * 8))
    e("s_cselect_b32 s96, %d, 0" % (CH // 4))
    e("s_and_b32 s3, s2, 7"); e("s_lshl_b32 s3, s3, 5"); e("s_lshr_b32 %s, s2, 3" % sr(sBin)); e("s_add_u32 %s, %s, s3" % (sr(sBin), sr(sBin)))
    if int(opts.get('binid', 0)): e("s_mov_b32 %s, s2" % sr(sBin))
    e("s_lshl_b32 %s, %s, 13" % (sr(sREC), sr(sW)))
    e("s_add_u32 %s, %s, %d" % (sr(sXB), sr(sREC), XBB))
    e("s_add_u32 %s, %s, %d" % (sr(sREC), sr(sREC), RECB))
    e("s_lshl_b32 %s, %s, 3" % (sr(sT), sr(sBin))); e("s_add_u32 %s, %s, %s" % (sr(sT), sr(sT), sr(sW)))
    e("s_mov_b32 %s, 0x%x" % (sr(sMag), MAG))
    tile_range()
    e("s_waitcnt lgkmcnt(0)")
    if int(opts.get('wsb', 0)):
        e("s_add_u32 s26, s26, 0x%x" % (int(opts['wsb']) << 20)); e("s_addc_u32 s27, s27, 0")
    if int(opts.get('tt', 0)):
        e("s_cmp_lt_u32 s2, %d" % int(opts.get('ttw', 248)))
        e("s_cbranch_scc1 TT_SKIP")
        e("s_cmp_lg_u32 %s, 7" % sr(sW))
        e("s_cbranch_scc1 TT_SKIP")
        e("v_lshlrev_b32 %s, 18, %s" % (vr(tA), vr(lane)))
        e("v_lshlrev_b32 %s, 16, %s" % (vr(tB), vr(lane)))
        srd(SA, 26, 0x1000000)
        e("buffer_load_dword %s, %s, %s, 0 offen sc0 sc1" % (vr(r.AT), vr(tA), sr(SA, 4)))
        srd(SA, 4, N_NODES * 128)
        e("buffer_load_dword %s, %s, %s, 0 offen" % (vr(r.AT), vr(tB), sr(SA, 4)))
        srd(SA, 22, N_NODES * 128)
        e("buffer_load_dword %s, %s, %s, 0 offen sc0 sc1" % (vr(r.AT), vr(tB), sr(SA, 4)))
        for p in (12, 14, 16, 18, 20):
            srd(SA, p, 512)
            e("buffer_load_dword %s, %s, %s, 0 offen" % (vr(r.AT), vr(tB), sr(SA, 4)))
        lab("TT_SKIP")
    srd(SA, 10, "s94", "s92")
    e("buffer_load_dwordx4 %s, %s, %s, 0 offen %s" % (vr(DST, 4), vr(T16), sr(SA, 4), LDF))
    e("buffer_load_dwordx4 %s, %s, %s, 0 offen %s" % (vr(DST + 4, 4), vr(T16B), sr(SA, 4), LDF))
    srd(SOUT, 26, 8, "0x%x" % WS_EPO)
    e("buffer_load_dwordx2 %s, %s, %s, 0 offen sc1" % (vr(EP, 2), vr(ZER), sr(SOUT, 4)))
    DF = int(opts.get('df', 2))
    SS, SE = (SB, SC_) if not DF else (SRC, SOFS)
    srd(SS, 8, "s94", "s92")
    srd(SE, 6, "s95", "s93")
    RL = ["buffer_load_dwordx4 %s, %s, %s, 0 offen %s" % (vr(SRCV, 4), vr(T16), sr(SS, 4), LDF),
          "buffer_load_dwordx4 %s, %s, %s, 0 offen %s" % (vr(SRCV + 4, 4), vr(T16B), sr(SS, 4), LDF)]
    for k in (2, 3, 0, 1):
        RL.append("buffer_load_dwordx4 %s, %s, %s, 0 offen offset:%d %s" % (vr(EA + 8 * k, 4), vr(T32B if k >> 1 else T32), sr(SE, 4), 16 * (k & 1), LDF))
    NE = int(opts.get('ne', 2))
    NE2 = int(opts.get('ne2', 0))
    for _ in range(NE): e(RL.pop(0))
    def rest_loads():
        for t in RL: e(t)
        if DF:
            srd(SOFS, 26, 256 * 8192, "0x%x" % WS_OFF)
            srd(SRC, 26, NC * CH, stride=16)
    if DF == 0: rest_loads()
    e("v_cmp_gt_u32 vcc, s96, %s" % vr(TID))
    e("s_mov_b64 s[92:93], vcc")
    e("v_add_u32 %s, 512, %s" % (vr(tA), vr(TID)))
    e("v_cmp_gt_u32 vcc, s96, %s" % vr(tA))
    e("s_mov_b64 s[94:95], vcc")
    e("s_and_b32 s3, %s, 3" % sr(sW))
    e("s_cmp_eq_u32 s3, 1"); e("s_cselect_b32 s12, s18, s12"); e("s_cselect_b32 s13, s19, s13")
    e("s_cmp_eq_u32 s3, 2"); e("s_cselect_b32 s12, s14, s12"); e("s_cselect_b32 s13, s15, s13")
    e("s_cmp_eq_u32 s3, 3"); e("s_cselect_b32 s12, s20, s12"); e("s_cselect_b32 s13, s21, s13")
    srd(SA, 12, 8192)
    srd(SB, 16, 512)
    srd(SX, 4, N_NODES * 128)
    H = r.SO
    XT0, XT1, J4, L16 = r.RD, r.RD + 1, r.RD + 2, r.RD + 3
    e("v_lshrrev_b32 %s, 5, %s" % (vr(H), vr(lane)))
    e("v_and_b32 %s, 31, %s" % (vr(J4), vr(lane)))
    e("v_lshlrev_b32 %s, 2, %s" % (vr(J4), vr(J4)))
    e("v_lshlrev_b32 %s, 4, %s" % (vr(L16), vr(lane)))
    e("v_lshrrev_b32 %s, 3, %s" % (vr(tA), vr(lane)))
    e("v_xor_b32 %s, %s, %s" % (vr(tB), vr(tA), vr(lane)))
    e("v_and_b32 %s, 7, %s" % (vr(tB), vr(tB)))
    e("v_lshlrev_b32 %s, 4, %s" % (vr(tB), vr(tB)))
    e("v_add_u32 %s, %s, %s" % (vr(tA), sr(sStart), vr(tA)))
    e("v_sub_u32 %s, %s, %s" % (vr(tC), vr(tA), vr(H)))
    e("v_add_u32 %s, 8, %s" % (vr(tC), vr(tC)))
    e("v_lshl_add_u32 %s, %s, 7, %s" % (vr(XT0), vr(tA), vr(tB)))
    e("v_lshl_add_u32 %s, %s, 7, %s" % (vr(XT1), vr(tC), vr(tB)))
    XPOS = int(opts.get('xpos', 0))
    def late_loads():
        if 'lt' in opts: e("s_waitcnt vmcnt(0) lgkmcnt(0)"); e("s_barrier"); stamp("l0")
        e("s_cmp_lt_u32 %s, 4" % sr(sW))
        e("s_cbranch_scc1 LATE_B")
        e("s_and_b32 s93, %s, 3" % sr(sW)); e("s_lshl_b32 s93, s93, 14")
        e("s_add_u32 m0, s93, %d" % XBB)
        e("s_mov_b32 s3, 4096")
        for k in range(4):
            e("buffer_load_dwordx4 %s, %s, 0 offen offset:%d %s lds" % (vr(L16), sr(SA, 4), k * 1024, opts.get('wf', '')))
        e("s_add_u32 m0, s93, %d" % (XBB + 8192))
        e("s_nop 0")
        for k in range(4):
            e("buffer_load_dwordx4 %s, %s, s3 offen offset:%d %s lds" % (vr(L16), sr(SA, 4), k * 1024, opts.get('wf', '')))
        if XPF:
            e("s_lshr_b32 s3, s2, 3"); e("s_mul_i32 s3, s3, %d" % (782 * 128))
            e("s_lshr_b32 s94, s93, 1"); e("s_mul_i32 s94, s94, %d" % XPF); e("s_add_u32 s3, s3, s94")
            e("v_lshl_add_u32 %s, %s, 7, s3" % (vr(tF), vr(lane)))
            for k in range(XPF):
                e("buffer_load_dword %s, %s, %s, 0 offen" % (vr(tE), vr(tF), sr(SX, 4)))
                if k + 1 < XPF: e("v_add_u32 %s, 8192, %s" % (vr(tF), vr(tF)))
        lab("LATE_B")
        if 'lt' in opts: e("s_waitcnt vmcnt(0)"); stamp("lw")
        small_loads()
        if 'lt' in opts: e("s_waitcnt vmcnt(0)"); stamp("lx")
    def small_loads():
        e("s_mov_b32 exec_hi, 0")
        for i in range(4):
            e("buffer_load_dword %s, %s, %s, 0 offen offset:%d %s" % (vr(WCR + i), vr(J4), sr(SB, 4), i * 128, opts.get('wf', '')))
        e("s_mov_b64 exec, -1")
        if 'lt' in opts: e("s_waitcnt vmcnt(0)"); stamp("lc")
        if 'X' not in opts.get('pfx', '') and not XPOS: xt_loads()
    def xt_loads():
        e("s_lshl_b32 s3, %s, 11" % sr(sW))
        e("s_add_u32 m0, s3, %d" % XTB)
        e("s_nop 0")
        e("buffer_load_dwordx4 %s, %s, 0 offen %s lds" % (vr(XT0), sr(SX, 4), opts.get('xtf', '')))
        e("s_add_u32 m0, s3, %d" % (XTB + 1024))
        e("s_nop 0")
        e("buffer_load_dwordx4 %s, %s, 0 offen %s lds" % (vr(XT1), sr(SX, 4), opts.get('xtf', '')))
    e("s_mul_i32 s3, s2, %d" % (CH * 16))
    NLATE = 0
    srd(SC_, 26, CH * 16, "s3")
    if not DF: srd(SOFS, 26, 256 * 8192, "0x%x" % WS_OFF)
    srd(SXI, 4, N_NODES, stride=128, sub="3072")
    if not DF: srd(SRC, 26, NC * CH, stride=16)
    PFX = opts.get('pfx', '')
    NPF = 0
    if PFX:
        e("v_lshlrev_b32 %s, 7, %s" % (vr(tA), vr(lane)))
    if 'c' in PFX or 'w' in PFX:
        e("s_cmp_lt_u32 s2, 248")
        e("s_cbranch_scc1 PF_SKIP")
        if 'c' in PFX:
            e("s_getpc_b64 s[96:97]")
            lab("PCREF")
            e("s_and_b32 s3, %s, 1" % sr(sW)); e("s_lshl_b32 s3, s3, 13")
            e("v_add_u32 %s, s3, %s" % (vr(tB), vr(tA)))
            e("v_min_u32 %s, K_END-PCREF, %s" % (vr(tB), vr(tB)))
            e("s_cmp_lt_u32 %s, 2" % sr(sW)); e("s_cselect_b64 exec, -1, 1")
            e("global_load_dword %s, %s, s[96:97]" % (vr(r.AT), vr(tB)))
        if 'w' in PFX:
            e("s_cmp_gt_u32 %s, 3" % sr(sW)); e("s_cselect_b64 exec, -1, 1")
            e("buffer_load_dword %s, %s, %s, 0 offen" % (vr(r.AT), vr(tA), sr(SA, 4)))
            e("s_mov_b64 exec, 15")
            e("buffer_load_dword %s, %s, %s, 0 offen" % (vr(r.AT), vr(tA), sr(SB, 4)))
        e("s_mov_b64 exec, -1")
        lab("PF_SKIP")
    if 'X' in PFX:
        xt_loads()
        NPF += 2
    if 'x' in PFX:
        e("s_mov_b64 exec, 0x01010101"); e("s_mov_b32 exec_hi, 0x01010101")
        e("buffer_load_dword %s, %s, %s, 0 offen" % (vr(r.AT), vr(XT0), sr(SX, 4)))
        e("buffer_load_dword %s, %s, %s, 0 offen" % (vr(r.AT), vr(XT1), sr(SX, 4)))
        e("s_mov_b64 exec, -1")
        NPF += 2
    if 's' in PFX:
        e("s_mov_b64 exec, 1")
        e("buffer_load_dword %s, %s, %s, 0 offen sc0 sc1" % (vr(r.AT), vr(T32B), sr(SC_, 4)))
        e("s_mov_b64 exec, -1")
        NPF += 1
    e("s_mov_b32 %s, 1024" % sr(sINC)); e("s_mov_b32 %s, 1024" % sr(sINC + 1))
    e("s_mov_b32 %s, 256" % sr(sINC2)); e("s_mov_b32 %s, 1024" % sr(sINC2 + 1))
    e("s_mov_b32 %s, 3072" % sr(sSO)); e("s_mov_b32 %s, 2048" % sr(sSO + 1)); e("s_mov_b32 %s, 1024" % sr(sSO + 2))
    e("s_mov_b32 %s, %d" % (sr(sLim), NC * CH))
    e("s_mov_b32 %s, 0" % sr(sW0)); e("s_mov_b32 %s, 1" % sr(sFirst)); e("s_mov_b32 %s, %d" % (sr(sSpin), SPINMAX))
    e("v_mov_b32 %s, 0x%x" % (vr(tA), (1 << 4) | (2 << 8) | (1 << 14) | (2 << 18)))
    e("v_lshlrev_b32 %s, 1, %s" % (vr(tB), vr(lane)))
    e("v_bfe_u32 %s, %s, %s, 2" % (vr(tA), vr(tA), vr(tB)))
    e("v_mul_u32_u24 %s, 0x8001, %s" % (vr(tA), vr(tA)))
    e("v_and_b32 %s, 0x10001, %s" % (vr(tA), vr(tA)))
    e("v_mul_u32_u24 %s, 0x3f80, %s" % (vr(tA), vr(tA)))
    e("v_lshlrev_b32 %s, 2, %s" % (vr(tB), vr(lane)))
    e("s_mov_b64 exec, 0x3ff")
    e("ds_write_b32 %s, %s offset:%d" % (vr(tB), vr(tA), TS))
    e("s_mov_b64 exec, -1")
    e("v_mul_u32_u24 %s, 140, %s" % (vr(tC), vr(lane)))
    e("v_lshrrev_b32 %s, 7, %s" % (vr(tC), vr(tC)))
    e("v_lshlrev_b32 %s, 19, %s" % (vr(tC), vr(tC)))
    e("v_or_b32 %s, 0x80ffff, %s" % (vr(tC), vr(tC)))
    e("s_mov_b64 exec, 0x3fff")
    e("ds_write_b32 %s, %s offset:%d" % (vr(tB), vr(tC), UTB))
    e("s_mov_b64 exec, -1")
    e("v_mul_u32_u24 %s, 11, %s" % (vr(tA), vr(lane)))
    e("v_lshrrev_b32 %s, 5, %s" % (vr(tA), vr(tA)))
    e("v_mad_i32_i24 %s, %s, -3, %s" % (vr(tB), vr(tA), vr(lane)))
    e("v_add_u32 %s, 1, %s" % (vr(tB), vr(tB)))
    e("v_lshl_add_u32 %s, %s, 1, 20" % (vr(tA), vr(tA)))
    e("v_lshlrev_b32 %s, %s, %s" % (vr(tC), vr(tA), vr(tB)))
    e("v_and_b32 %s, 3, %s" % (vr(tA), vr(lane)))
    e("v_add_u32 %s, 1, %s" % (vr(tA), vr(tA)))
    e("v_and_b32 %s, 12, %s" % (vr(tB), vr(lane)))
    e("v_lshl_add_u32 %s, %s, 1, 3" % (vr(tB), vr(tB)))
    e("v_lshlrev_b32 %s, %s, %s" % (vr(tD), vr(tB), vr(tA)))
    e("v_lshlrev_b32 %s, 3, %s" % (vr(tA), vr(lane)))
    e("v_xor_b32 %s, 0x80, %s" % (vr(tA), vr(tA)))
    e("s_mov_b64 exec, 0x10000")
    e("v_mov_b32 %s, 0" % vr(tC)); e("v_mov_b32 %s, 0" % vr(tD))
    e("s_mov_b64 exec, 0x1ffff")
    e("v_or_b32 %s, 0x40000, %s" % (vr(tC), vr(tC)))
    assert tD == tC + 1 and tC % 2 == 0
    e("ds_write_b64 %s, %s offset:%d" % (vr(tA), vr(tC, 2), RTB))
    e("s_mov_b64 exec, -1")
    e("s_mov_b32 %s, %d" % (sr(sKx), 800106))
    if 'fair' in opts or 'rpy' in opts:
        e("s_cmp_lt_u32 %s, 4" % sr(sW)); e("s_cselect_b64 s[10:11], -1, 0")
    if ROT:
        e("s_mul_i32 s3, %s, 123" % sr(sBin)); e("s_lshr_b32 s3, s3, 7"); e("s_sub_u32 s3, %d, s3" % (256 + MARG))
        e("s_and_b32 %s, s3, 255" % sr(sC0))
        e("s_mul_i32 %s, %s, %d" % (sr(sCB), sr(sC0), CH))
    e("v_and_b32 %s, 3, %s" % (vr(c0), vr(lane)))
    e("v_bfe_u32 %s, %s, 4, 1" % (vr(c1), vr(lane)))
    e("v_mul_u32_u24 %s, 0x5555, %s" % (vr(r.SI), vr(c1)))
    e("v_or_b32 %s, 0x8888, %s" % (vr(r.SI), vr(r.SI)))
    e("v_xor_b32 %s, %s, %s" % (vr(c2), vr(c0), vr(H)))
    e("v_lshl_or_b32 %s, %s, 2, %s" % (vr(c2), vr(c1), vr(c2)))
    e("v_lshlrev_b32 %s, 4, %s" % (vr(r.XI + 1), vr(c2)))
    e("v_mov_b32 %s, %s" % (vr(r.XI + 3), vr(r.XI + 1)))
    e("v_xor_b32 %s, 32, %s" % (vr(r.XI + 5), vr(r.XI + 1)))
    e("v_mov_b32 %s, %s" % (vr(r.XI + 7), vr(r.XI + 5)))
    e("v_bfe_u32 %s, %s, 3, 2" % (vr(c2), vr(lane)))
    e("v_xor_b32 %s, %s, %s" % (vr(c2), vr(c2), vr(H)))
    e("v_lshlrev_b32 %s, 4, %s" % (vr(r.XA0), vr(c2)))
    e("v_lshl_or_b32 %s, %s, 6, %s" % (vr(r.XA0), vr(c0), vr(r.XA0)))
    e("v_bfe_u32 %s, %s, 3, 1" % (vr(c2), vr(lane)))
    e("v_lshl_or_b32 %s, %s, 9, %s" % (vr(r.XA0), vr(c2), vr(r.XA0)))
    e("v_bfe_u32 %s, %s, 2, 1" % (vr(tA), vr(lane)))
    e("v_lshl_or_b32 %s, %s, 10, %s" % (vr(r.XA0), vr(tA), vr(r.XA0)))
    e("v_lshl_or_b32 %s, %s, 11, %s" % (vr(r.XA0), vr(c1), vr(r.XA0)))
    e("v_xor_b32 %s, 32, %s" % (vr(r.XA1), vr(r.XA0)))
    e("v_add_u32 %s, %s, %s" % (vr(r.XA0), sr(sXB), vr(r.XA0)))
    e("v_add_u32 %s, %s, %s" % (vr(r.XA1), sr(sXB), vr(r.XA1)))
    FA, FU = r.SO + 2, r.SO + 3
    e("v_lshl_or_b32 %s, %s, 1, %s" % (vr(c2), vr(tA), vr(c2)))
    e("v_lshl_or_b32 %s, %s, 1, %s" % (vr(c2), vr(c2), vr(c1)))
    e("v_mad_u32_u24 %s, %s, 3, %s" % (vr(c2), vr(c2), vr(c0)))
    e("v_add_u32 %s, 9, %s" % (vr(c2), vr(c2)))
    e("v_and_b32 %s, 15, %s" % (vr(c2), vr(c2)))
    for dst, src in ((FA, c2), (FU, None)):
        if src is None:
            e("v_and_b32 %s, 15, %s" % (vr(c2), vr(lane)))
        e("v_xor_b32 %s, %s, %s" % (vr(tA), vr(c2), vr(H)))
        e("v_and_b32 %s, 7, %s" % (vr(tA), vr(tA)))
        e("v_lshlrev_b32 %s, 4, %s" % (vr(tA), vr(tA)))
        e("v_lshl_or_b32 %s, %s, 7, %s" % (vr(dst), vr(c2), vr(tA)))
    e("v_lshlrev_b32 %s, 4, %s" % (vr(tA), vr(H)))
    e("v_mov_b32 %s, 0x3f80" % vr(tB))
    e("v_lshlrev_b32 %s, %s, %s" % (vr(r.T + 1), vr(tA), vr(tB)))
    e("v_mov_b32 %s, %s" % (vr(r.T + 2), vr(r.T + 1)))
    e("v_mov_b32 %s, %s" % (vr(r.T + 3), vr(r.T + 1)))
    e("s_lshl_b32 s3, %s, 2" % sr(sW))
    e("v_mov_b32 %s, s3" % vr(tE))
    e("v_and_b32 %s, 7, %s" % (vr(tF), vr(lane)))
    e("v_lshlrev_b32 %s, 2, %s" % (vr(tF), vr(tF)))
    e("s_waitcnt lgkmcnt(0)")
    e("s_barrier")
    if DF == 1: rest_loads()
    if DF == 2:
        for _ in range(NE2): e(RL.pop(0))
    e("s_waitcnt vmcnt(%d)" % (1 + NE + NE2 + NPF if DF == 2 else 7 + NPF))
    stamp("dst")
    mark(6)
    for rd in range(2):
        e("s_mov_b64 exec, s[%d:%d]" % (92 + 2 * rd, 93 + 2 * rd))
        e("s_cbranch_execz P1_A")
        for i in range(4 * rd, 4 * rd + 4):
            e("v_mul_u32_u24 %s, %d, %s" % (vr(DST + i), TMUL, vr(DST + i)))
            e("v_lshrrev_b32 %s, 14, %s" % (vr(HA + i), vr(DST + i)))
            e("v_and_b32 %s, 0x1ffc, %s" % (vr(HA + i), vr(HA + i)))
        for i in range(4 * rd, 4 * rd + 4):
            e("ds_add_rtn_u32 %s, %s, %s offset:%d" % (vr(RK + i), vr(HA + i), vr(ONE), HIST))
    lab("P1_A")
    e("s_mov_b64 exec, -1")
    if DF == 2: rest_loads()
    if XPOS == 3: xt_loads()
    for i in range(8):
        d = DST + i
        e("v_and_b32 %s, 0xffff, %s" % (vr(d), vr(d)))
        e("v_mul_hi_u32_u24 %s, %s, %s" % (vr(d), sr(sKx), vr(d)))
        e("v_lshlrev_b32 %s, 2, %s" % (vr(d), vr(d)))
    for i in range(8):
        e("ds_read_b32 %s, %s offset:%d" % (vr(DST + i), vr(DST + i), UTB))
    key = ["s_nop 0"] * 64
    e("s_waitcnt lgkmcnt(0)")
    e("s_barrier")
    stamp("hist")
    e("ds_read_b128 %s, %s offset:%d" % (vr(CN, 4), vr(T16), HIST))
    e("s_waitcnt lgkmcnt(0)")
    e("v_add_u32 %s, %s, %s" % (vr(ST + 2), vr(CN), vr(CN + 1)))
    e("v_add_u32 %s, %s, %s" % (vr(ST + 3), vr(ST + 2), vr(CN + 2)))
    e("v_add_u32 %s, %s, %s" % (vr(tA), vr(ST + 3), vr(CN + 3)))
    e("v_mov_b32 %s, %s" % (vr(tB), vr(tA)))
    scan64("v_add_u32", tB)
    e("s_mov_b32 exec_lo, 0"); e("s_mov_b32 exec_hi, 0x80000000")
    e("ds_write_b32 %s, %s offset:%d" % (vr(tE), vr(tB), WTOT))
    e("s_mov_b64 exec, -1")
    e("s_waitcnt vmcnt(%d)" % (6 + NLATE + NPF + 2 * (XPOS == 3)))
    e("v_readfirstlane_b32 %s, %s" % (sr(sTag), vr(EP)))
    e("v_readfirstlane_b32 %s, %s" % (sr(sE2), vr(EP + 1)))
    e(key.pop(0)); e(key.pop(0))
    e("s_mul_i32 %s, %s, 1664525" % (sr(sTag), sr(sTag))); e("s_add_u32 %s, %s, 1013904223" % (sr(sTag), sr(sTag)))
    e("s_mul_i32 %s, %s, 22695477" % (sr(sE2), sr(sE2))); e("s_add_u32 %s, %s, 0x9e3779b9" % (sr(sE2), sr(sE2)))
    e("s_and_b32 %s, %s, 0xffff0000" % (sr(sTagH), sr(sE2)))
    e("s_lshr_b32 %s, %s, 24" % (sr(sTagB), sr(sE2)))
    e("s_and_b32 %s, %s, 0xff000000" % (sr(sKm), sr(sE2)))
    e("s_mov_b32 %s, 0xffff" % sr(sKx))
    e("s_waitcnt lgkmcnt(0)")
    e("s_barrier")
    e("ds_read_b32 %s, %s offset:%d" % (vr(tC), vr(tF), WTOT))
    e("v_mov_b32 %s, %s" % (vr(PC_ + 3), sr(sTag)))
    e("s_waitcnt lgkmcnt(0)")
    e("v_mov_b32 %s, %s" % (vr(tD), vr(tC)))
    for sh in (1, 2, 4):
        e(key.pop(0)); e(key.pop(0))
        e("v_add_u32_dpp %s, %s, %s row_shr:%d row_mask:0xf bank_mask:0xf" % (vr(tD), vr(tD), vr(tD), sh))
    e("v_sub_u32 %s, %s, %s" % (vr(tD), vr(tD), vr(tC)))
    e(key.pop(0))
    e("v_readlane_b32 s3, %s, %s" % (vr(tD), sr(sW)))
    e("s_lshl_b32 s91, s2, 13")
    e("s_nop 0")
    e("v_add_u32 %s, s3, %s" % (vr(tB), vr(tB)))
    e("v_sub_u32 %s, %s, %s" % (vr(ST), vr(tB), vr(tA)))
    e("v_add_u32 %s, %s, %s" % (vr(ST + 1), vr(ST), vr(CN)))
    e("v_add_u32 %s, %s, %s" % (vr(ST + 2), vr(ST), vr(ST + 2)))
    e("v_add_u32 %s, %s, %s" % (vr(ST + 3), vr(ST), vr(ST + 3)))
    e("v_lshl_or_b32 %s, %s, 16, %s" % (vr(PC_), vr(ST + 1), vr(ST)))
    e("v_lshl_or_b32 %s, %s, 16, %s" % (vr(PC_ + 1), vr(ST + 3), vr(ST + 2)))
    e("v_or_b32 %s, %s, %s" % (vr(PC_ + 2), sr(sTagH), vr(tB)))
    PUB = int(opts.get('pub', 0))
    pub = "buffer_store_dwordx4 %s, %s, %s, s91 offen %s" % (vr(PC_, 4), vr(T16), sr(SOFS, 4), STF)
    if PUB == 0: e(pub)
    if XPOS == 4: xt_loads()
    for i in range(4): e("v_lshlrev_b32 %s, 4, %s" % (vr(ST + i), vr(ST + i)))
    e("ds_write_b128 %s, %s offset:%d" % (vr(T16), vr(ST, 4), HIST))
    e("s_waitcnt lgkmcnt(0)")
    e("s_barrier")
    stamp("scan")
    mark(5)
    for i in range(8):
        e("ds_read_b32 %s, %s offset:%d" % (vr(HA + i), vr(HA + i), HIST))
    e("s_waitcnt vmcnt(%d)" % (NLATE + (PUB == 0) + 2 * (XPOS in (3, 4))))
    stamp("inputs")
    mark(9)
    def assemble(rd):
        for k in range(2 * rd, 2 * rd + 2):
            e("v_mov_b32 %s, %s" % (vr(EA + 8 * k + 4), vr(EA + 8 * k + 2)))
            e("v_mov_b32 %s, %s" % (vr(EA + 8 * k + 5), vr(EA + 8 * k + 3)))
        for i in range(4 * rd, 4 * rd + 4):
            e("v_bitop3_b32 %s, %s, %s, %s bitop3:0x96" % (vr(EA + 4 * i + 2), vr(DST + i), vr(SRCV + i), sr(sKm)))
            e("v_mov_b32 %s, %s" % (vr(EA + 4 * i + 3), sr(sTag)))
    for rd in range(2):
        e("s_mov_b64 exec, s[%d:%d]" % (92 + 2 * rd, 93 + 2 * rd))
        e("s_cbranch_execz P1_B")
        assemble(rd)
        e("s_waitcnt lgkmcnt(4)")
        for i in range(4 * rd, 4 * rd + 4):
            e("v_lshl_add_u32 %s, %s, 4, %s" % (vr(HA + i), vr(RK + i), vr(HA + i)))
        for i in range(4 * rd, 4 * rd + 4):
            e("ds_write_b128 %s, %s offset:%d" % (vr(HA + i), vr(EA + 4 * i, 4), RECB))
    lab("P1_B")
    e("s_mov_b64 exec, -1")
    if PUB == 2: e(pub)
    SF = int(opts.get('sf', 0))
    SFP = int(opts.get('sfp', 0))
    if not SF or SFP: late_loads()
    PA = tA; PW_ = tB; PC2 = ST
    e("v_bfe_u32 %s, %s, 1, 7" % (vr(tC), vr(TID)))
    e("v_and_b32 %s, 1, %s" % (vr(tD), vr(TID)))
    PA2 = tE
    if ROT:
        e("v_add_u32 %s, %s, %s" % (vr(PA), sr(sC0), vr(tC)))
        e("v_and_b32 %s, 255, %s" % (vr(PA), vr(PA)))
    e("v_lshlrev_b32 %s, 13, %s" % (vr(PA), vr(PA if ROT else tC)))
    e("v_lshl_or_b32 %s, %s, 4, %s" % (vr(PA), vr(tD), vr(PA)))
    e("v_xor_b32 %s, 0x100000, %s" % (vr(PA2), vr(PA)))
    e("s_lshl_b32 s97, %s, 5" % sr(sBin))
    poll = ["buffer_load_dwordx4 %s, %s, %s, s97 offen %s" % (vr(PC_, 4), vr(PA), sr(SOFS, 4), PLF),
            "buffer_load_dwordx4 %s, %s, %s, s97 offen %s" % (vr(PC2, 4), vr(PA2), sr(SOFS, 4), PLF)]
    e("v_lshlrev_b32 %s, 12, %s" % (vr(PW_), vr(tD)))
    e("v_lshl_or_b32 %s, %s, 2, %s" % (vr(PW_), vr(tC), vr(PW_)))
    e("v_add_u32 %s, %d, %s" % (vr(PW_), PCB, vr(PW_)))
    e("v_add_u32 %s, %d, %s" % (vr(c2), XBB + 4096, vr(L16)))
    WL = r.WB; WH = r.WB + 16; WP = r.WV
    e("s_mov_b32 s92, 0x%x" % NEGLOG2E)
    EN = r.G[1]; Z = r.V[1]; P = r.V[1] + 4; D = r.V[1] + 8
    LA, CB, PREV, JB = [r.V[1] + 12 + i for i in range(4)]
    TOT, INC, C512, W4 = r.PS, r.PC, r.PT, r.PE
    M = r.S
    def expand_pre():
        for i in range(4): e("v_mov_b32 %s, 0" % vr(Z + i))
        e("v_lshl_add_u32 %s, %s, 5, %s" % (vr(LA), vr(lane), sr(sREC)))
        e("v_mul_u32_u24 %s, %d, %s" % (vr(CB), 4 * CH, vr(lane)))
        e("v_subrev_u32 %s, %s, %s" % (vr(CB), sr(sW0), vr(CB)))
        if ROT:
            e("s_add_u32 s3, %s, %s" % (sr(sW0), sr(sCB)))
            e("v_lshl_add_u32 %s, %s, 3, s3" % (vr(JB), vr(lane)))
        else:
            e("v_lshl_add_u32 %s, %s, 3, %s" % (vr(JB), vr(lane), sr(sW0)))
        e("v_mov_b32 %s, 512" % vr(C512))
        e("v_mov_b32 %s, 0" % vr(PREV))
        e("v_lshl_add_u32 %s, %s, 2, %s" % (vr(r.PL), vr(lane), sr(sREC)))
        e("s_lshl_b32 s3, %s, 2" % sr(sW))
        e("v_mov_b32 %s, s3" % vr(W4))
    def zero_list():
        e("ds_write_b128 %s, %s offset:%d" % (vr(LA), vr(Z, 4), LOFF))
        e("ds_write_b128 %s, %s offset:%d" % (vr(LA), vr(Z, 4), LOFF + 16))
    expand_pre()
    e("s_lshl_b32 s3, %s, 10" % sr(sW)); e("s_add_u32 s3, s3, %d" % PCB)
    e("v_add_u32 %s, s3, %s" % (vr(r.RI), vr(L16)))
    if int(opts.get('early', 1)) == 2:
        e("s_cmp_lt_u32 %s, 4" % sr(sW))
        e("s_cbranch_scc1 P1_P")
        for t in poll: e(t)
        lab("P1_P")
    e("s_waitcnt lgkmcnt(0)")
    e("s_barrier")
    stamp("scatter")
    mark(7)
    if PUB == 1: e(pub)
    ST8 = int(opts.get('st8', 0))
    EARLY = int(opts.get('early', 1))
    if ST8:
        NS = 7
        if EARLY == 1:
            e("s_cmp_lt_u32 %s, 4" % sr(sW))
            e("s_cbranch_scc1 P1_S")
            for t in poll: e(t)
            lab("P1_S")
        CO = DST
        e("s_cmp_lt_u32 s2, %d" % NC)
        e("s_cselect_b32 %s, %s, 0" % (sr(SC_ + 2), sr(SC_ + 2)))
        for k in range(NS):
            e("ds_read_b128 %s, %s offset:%d" % (vr(CO + 4 * k, 4), vr(T16), RECB + 8192 * k))
        e("v_add_u32 %s, 49152, %s" % (vr(T32), vr(T16)))
        for k in range(NS):
            if k < NS - 1: e("s_mov_b32 s3, %d" % (8192 * k))
            e("s_waitcnt lgkmcnt(%d)" % (NS - 1 - k))
            if k < NS - 1: e("buffer_store_dwordx4 %s, %s, %s, s3 offen %s" % (vr(CO + 4 * k, 4), vr(T16), sr(SC_, 4), STF))
            else: e("buffer_store_dwordx4 %s, %s, %s, 0 offen %s" % (vr(CO + 4 * k, 4), vr(T32), sr(SC_, 4), STF))
        e("s_waitcnt vmcnt(%d)" % NS)
        e("s_cmp_lt_u32 %s, 4" % sr(sW))
        e("s_cbranch_scc1 POLL_DONE")
    else:
        e("s_cmp_gt_u32 %s, 3" % sr(sW))
        e("s_cbranch_scc1 P1_D")
        e("s_cmp_ge_u32 s2, %d" % NC)
        e("s_cbranch_scc1 P1_N")
        if DELAY:
            e("s_and_b32 s3, s2, 15"); e("s_cmp_lg_u32 s3, 5"); e("s_cbranch_scc1 P1_ND")
            for _ in range(DELAY): e("s_sleep 100")
            lab("P1_ND")
        if ROT:
            CO = DST; CA = q + 60
            e("s_mul_i32 s3, s2, 13"); e("s_lshr_b32 s3, s3, 8"); e("s_sub_u32 s3, 13, s3"); e("s_lshl_b32 s3, s3, 12")
            for k in range(13):
                e("s_cmp_eq_u32 s3, %d" % (13 * 4096)); e("s_cselect_b32 s3, 0, s3")
                e("v_add_u32 %s, s3, %s" % (vr(CA + k), vr(T16)))
                e("ds_read_b128 %s, %s offset:%d" % (vr(CO + 4 * k, 4), vr(CA + k), RECB))
                if k < 12: e("s_add_u32 s3, s3, 4096")
                if k >= 3:
                    e("s_waitcnt lgkmcnt(3)")
                    e("buffer_store_dwordx4 %s, %s, %s, 0 offen %s" % (vr(CO + 4 * (k - 3), 4), vr(CA + k - 3), sr(SC_, 4), STF))
            for k in range(10, 13):
                e("s_waitcnt lgkmcnt(%d)" % (12 - k))
                e("buffer_store_dwordx4 %s, %s, %s, 0 offen %s" % (vr(CO + 4 * k, 4), vr(CA + k), sr(SC_, 4), STF))
        else:
            CO = DST
            for k in range(13):
                e("ds_read_b128 %s, %s offset:%d" % (vr(CO + 4 * k, 4), vr(T16), RECB + 4096 * k))
            e("v_add_u32 %s, 49152, %s" % (vr(T32), vr(T16)))
            for k in range(13):
                if SF and k == SF: e("s_barrier")
                if k < 12: e("s_mov_b32 s3, %d" % (4096 * k))
                e("s_waitcnt lgkmcnt(%d)" % (12 - k))
                if k < 12: e("buffer_store_dwordx4 %s, %s, %s, s3 offen %s" % (vr(CO + 4 * k, 4), vr(T16), sr(SC_, 4), STF))
                else: e("buffer_store_dwordx4 %s, %s, %s, 0 offen %s" % (vr(CO + 4 * k, 4), vr(T32), sr(SC_, 4), STF))
        if SF:
            if SF == 13: e("s_barrier")
            e("s_branch P1_M")
            lab("P1_N")
            e("s_barrier")
            lab("P1_M")
            if not SFP: small_loads()
        else:
            e("s_waitcnt vmcnt(13)")
            e("s_branch POLL_DONE")
            lab("P1_N")
            e("s_waitcnt vmcnt(0)")
        e("s_branch POLL_DONE")
        lab("P1_D")
        if SF: e("s_barrier")
        if EARLY == 1:
            for t in poll: e(t)
        if SF and not SFP: late_loads()
    e("v_lshl_add_u32 %s, %s, 10, %s" % (vr(tC), vr(H), vr(J4)))
    e("s_add_u32 s3, s93, %d" % XBB)
    e("v_add_u32 %s, s3, %s" % (vr(tC), vr(tC)))
    if SF: e("s_waitcnt vmcnt(%d)" % (8 if SFP else 6))
    elif not ST8: e("s_waitcnt vmcnt(%d)" % ((8 if int(opts.get('early', 1)) else 6) + (PUB == 1) + XPF - 2 * ('X' in PFX or XPOS > 0)))
    mark(12)
    RAW = DST
    for i in range(32):
        e("ds_read_b32 %s, %s offset:%d" % (vr(RAW + i), vr(tC), (i >> 4) * 8192 + ((i >> 3) & 1) * 2048 + (i & 7) * 128))
    e("s_bitcmp0_b32 %s, 0" % sr(sW))
    e("s_cselect_b32 s3, s92, 1.0")
    e("v_add_u32 %s, s93, %s" % (vr(tC), vr(c2)))
    for hf in range(2):
        e("s_waitcnt lgkmcnt(%d)" % (15 if hf == 0 else 4))
        if hf == 0: e("s_nop 0")
        for i in range(16):
            e("v_lshlrev_b32 %s, 16, %s" % (vr(WL + i), vr(RAW + 16 * hf + i)))
            e("v_and_b32 %s, 0xffff0000, %s" % (vr(WH + i), vr(RAW + 16 * hf + i)))
        for i in range(0, 32, 2):
            e("v_pk_mul_f32 %s, %s, s[2:3] op_sel:[0,1] op_sel_hi:[1,1]" % (vr(WL + i, 2), vr(WL + i, 2)))
        for i in range(16):
            e("v_cvt_pk_bf16_f32 %s, %s, %s" % (vr(WP + 16 * hf + i), vr(WL + 2 * i), vr(WL + 2 * i + 1)))
        for f in range(2):
            for s_ in range(2):
                e("ds_write_b128 %s, %s offset:%d" % (vr(tC), vr(WP + 16 * hf + 8 * f + 4 * s_, 4), f * 8192 + (2 * hf + s_) * 1024))
    if not int(opts.get('early', 1)):
        for t in poll: e(t)
    mark(13)
    stamp("wconv")
    if ST8: e("s_branch POLL_1")
    lab("POLL")
    e("s_waitcnt vmcnt(0)")
    lab("POLL_1")
    e("v_xor_b32 %s, %s, %s" % (vr(c0), sr(sTagH), vr(PC_ + 2)))
    e("v_xor_b32 %s, %s, %s" % (vr(c1), sr(sTagH), vr(PC2 + 2)))
    e("v_or_b32 %s, %s, %s" % (vr(c0), vr(c0), vr(c1)))
    e("v_lshrrev_b32 %s, 16, %s" % (vr(c0), vr(c0)))
    e("v_xor_b32 %s, %s, %s" % (vr(c1), sr(sTag), vr(PC_ + 3)))
    e("v_xor_b32 %s, %s, %s" % (vr(tD), sr(sTag), vr(PC2 + 3)))
    e("v_or3_b32 %s, %s, %s, %s" % (vr(c0), vr(c0), vr(c1), vr(tD)))
    e("v_cmp_ne_u32 vcc, 0, %s" % vr(c0))
    e("s_cmp_eq_u64 vcc, 0")
    e("s_cbranch_scc1 POLL_OK")
    e("s_mov_b64 exec, vcc")
    for t in poll: e(t)
    e("s_sub_u32 %s, %s, 1" % (sr(sSpin), sr(sSpin)))
    e("s_cbranch_scc0 POLL")
    e("s_endpgm")
    lab("POLL_OK")
    e("s_mov_b64 exec, -1")
    for pc in (PC_, PC2):
        e("v_alignbit_b32 %s, %s, %s, 16" % (vr(pc + 3), vr(pc + 1), vr(pc)))
        e("v_alignbit_b32 %s, %s, %s, 16" % (vr(pc + 2), vr(pc + 2), vr(pc + 1)))
    for pc, off in ((PC_, 0), (PC2, 512)):
        for k, v in enumerate([pc, pc + 3, pc + 1, pc + 2]):
            e("ds_write_b32 %s, %s offset:%d" % (vr(PW_), vr(v), k * 1024 + off))
    lab("POLL_DONE")
    if XPOS == 2: xt_loads()
    stamp("role")
    mark(10, 11)
    e("s_waitcnt lgkmcnt(0)")
    e("s_barrier")
    stamp("offs")
    mark(4)
    wr = []
    WA = r.G[0]; WU = r.G[1]
    for m, base in enumerate([WA, WU, r.WB, r.WV]):
        for u in range(8):
            uu = m * 8 + u
            wr.append("ds_read_b128 %s, %s offset:%d" % (vr(base + 4 * u, 4), vr(c2), (uu >> 2) * 8192 + (uu & 3) * 1024))
    e("ds_read_b128 %s, %s" % (vr(EN, 4), vr(r.RI)))
    zero_list()
    for t in wr[16:24]: e(t)
    if XPOS == 1: xt_loads()
    XQ = int(opts.get('xq', 0))
    if XQ:
        e("s_lshr_b32 s3, s2, 3"); e("s_mul_i32 s3, s3, %d" % (782 * 128))
        e("s_mul_i32 s97, %s, %d" % (sr(sW), 98 * 128)); e("s_add_u32 s3, s3, s97")
        e("v_lshl_add_u32 %s, %s, 7, s3" % (vr(c1), vr(lane)))
        if XQ < 64: e("s_mov_b64 exec, 0x%x" % ((1 << XQ) - 1) if XQ <= 31 else "s_mov_b32 exec_hi, 0x%x" % ((1 << (XQ - 32)) - 1))
        e("buffer_load_dword %s, %s, %s, 0 offen" % (vr(r.T), vr(c1), sr(SX, 4)))
        if XQ > 64:
            e("s_mov_b32 exec_hi, 3")
            e("v_add_u32 %s, 8192, %s" % (vr(c1), vr(c1)))
            e("buffer_load_dword %s, %s, %s, 0 offen" % (vr(r.T), vr(c1), sr(SX, 4)))
        e("s_mov_b64 exec, -1")
    e("s_or_b32 s3, s2, %s" % sr(sW))
    e("s_cbranch_scc1 NOBUMP")
    e("v_mov_b32 %s, %s" % (vr(r.RD), sr(sTag))); e("v_mov_b32 %s, %s" % (vr(r.RD + 1), sr(sE2)))
    e("v_lshlrev_b32 %s, 3, %s" % (vr(c1), vr(lane)))
    e("buffer_store_dwordx2 %s, %s, %s, 0 offen sc0 sc1" % (vr(r.RD, 2), vr(c1), sr(SOUT, 4)))
    lab("NOBUMP")
    e("s_waitcnt lgkmcnt(10)")

    def xidx(g, t): return "ds_read_u16 %s, %s offset:%d" % (vr(r.XI + 2 * t), vr(r.PS), g * 512 + SOFF[t] + 8)
    def xm0(buf): return "s_add_u32 m0, %s, %d" % (sr(sXB), buf * 4096)
    def xdma(t): return "buffer_load_dwordx4 %s, %s, %s idxen offen offset:%d lds" % (vr(r.XI + 2 * t, 2), sr(SXI, 4), sr(sSO + t) if t < 3 else "0", t * 1024)
    def xread(buf, k): return "ds_read_b128 %s, %s offset:%d" % (vr(r.X + 4 * k, 4), vr(r.XA1 if k & 1 else r.XA0), buf * 4096 + (k >> 1) * 256)
    def t0read(g): return "ds_read_b32 %s, %s offset:%d" % (vr(r.T), vr(r.PE), g * 512)
    def tiread(g): return "ds_read_b32 %s, %s offset:%d" % (vr(r.TI), vr(r.PT), g * 512 + 8)
    def soread(g, t): return "ds_read_u8 %s, %s offset:%d" % (vr(r.SO + t), vr(r.PC), g * 512 + SOFF[t] + 12)
    def trread(t): return "ds_read_b64_tr_b16 %s, %s offset:%d" % (vr(r.S + 2 * t, 2), vr(r.SO + t), TS)
    def riread(blk, ri=None): return "ds_read_b32 %s, %s offset:%d" % (vr(r.RI if ri is None else ri), vr(r.PL), LOFF + blk * 256)
    def rload(rd, ri, fl=None): return "buffer_load_dwordx4 %s, %s, %s, 0 idxen %s" % (vr(rd, 4), vr(ri), sr(SRC, 4), RLF if fl is None else fl)
    retries = []
    def check(rd, ri, name, tmp):
        retries.append((name, rd, ri))
        return ["v_cmp_gt_u32 %s, %s, %s" % (sr(sM0, 2), sr(sLim), vr(ri)),
                name + ":",
                "v_cmp_ne_u32 vcc, %s, %s" % (sr(sTag), vr(rd + 3)),
                "v_cmp_ne_u32_sdwa %s, %s, %s src0_sel:BYTE_3 src1_sel:DWORD" % (sr(sM1, 2), vr(rd + 2), sr(sTagB)),
                "v_bfe_u32 %s, %s, 16, 8" % (vr(tmp), vr(rd + 2)),
                "s_or_b64 vcc, vcc, %s" % sr(sM1, 2),
                "s_and_b64 vcc, vcc, %s" % sr(sM0, 2),
                "s_cbranch_scc1 %s_R" % name]
    def keyfix(rd, sel, op=0x72): return "v_bitop3_b32 %s, %s, %s, %s bitop3:0x%x" % (vr(rd + 2), vr(sel), vr(rd + 2), sr(sKx), op)
    def lookup(rd, tmp, sel):
        return ["ds_read_b32 %s, %s offset:%d" % (vr(sel), vr(tmp), RTB),
                "ds_read_b32 %s, %s offset:%d" % (vr(rd + 3), vr(tmp), RTB + 4)]
    def rwrite(rd, blk): return "ds_write_b128 %s, %s offset:%d" % (vr(r.PW), vr(rd, 4), blk * 1024)
    def emit(lst):
        for t in lst:
            if t.endswith(":"): L.append(t)
            else: e(t)
    KX = c2 + 0

    lab("EXPAND")
    sd2 = "dst_sel:DWORD dst_unused:UNUSED_PAD src0_sel:WORD_1 src1_sel:WORD_0"
    sd = "dst_sel:DWORD dst_unused:UNUSED_PAD src0_sel:WORD_0 src1_sel:DWORD"
    for i in range(3): e("v_sub_u32_sdwa %s, %s, %s %s" % (vr(P + 1 + i), vr(EN + i), vr(EN + i), sd2))
    e("v_sub_u32_sdwa %s, %s, %s %s" % (vr(INC), vr(EN + 3), vr(EN + 3), sd2))
    e("v_add_u32 %s, %s, %s" % (vr(P + 2), vr(P + 1), vr(P + 2)))
    e("v_add_u32 %s, %s, %s" % (vr(P + 3), vr(P + 2), vr(P + 3)))
    e("v_add_u32 %s, %s, %s" % (vr(INC), vr(P + 3), vr(INC)))
    fill = ["v_add_u32 %s, %s, %s" % (vr(TOT), sr(sW0), vr(INC))]
    fill += ["v_add_u32_sdwa %s, %s, %s %s" % (vr(D + i), vr(EN + i), vr(CB), sd) for i in range(4)]
    fill += ["v_add_u32 %s, %d, %s" % (vr(D + i), i * CH, vr(D + i)) for i in range(1, 4)]
    fill += ["v_sub_u32 %s, %s, %s" % (vr(P + i), vr(P + i), vr(TOT)) for i in range(1, 4)]
    scan64("v_add_u32", INC, fill)
    e("v_sub_u32 %s, %s, %s" % (vr(P), vr(INC), vr(TOT)))
    e("v_readlane_b32 %s, %s, 63" % (sr(sTot), vr(INC)))
    for i in range(1, 4):
        e("v_add_u32 %s, %s, %s" % (vr(P + i), vr(INC), vr(P + i)))
    for i in range(4):
        e("v_sub_u32 %s, %s, %s" % (vr(D + i), vr(D + i), vr(P + i)))
        e("v_med3_i32 %s, %s, 0, %s" % (vr(P + i), vr(P + i), vr(C512)))
        e("v_lshl_add_u32 %s, %s, 2, %s" % (vr(P + i), vr(P + i), sr(sREC)))
    for i in range(4):
        e("ds_max_u32 %s, %s offset:%d" % (vr(P + i), vr(D + i), LOFF))
    if ROT:
        e("s_sub_u32 s3, %s, %s" % (sr(sTot), sr(sW0))); e("s_min_u32 s3, s3, 512"); e("s_lshl_b32 s3, s3, 2"); e("s_add_u32 s3, s3, %s" % sr(sREC))
        e("v_mov_b32 %s, s3" % vr(P)); e("v_mov_b32 %s, 2.0" % vr(D))
        e("s_mov_b64 exec, 1")
        e("ds_write_b32 %s, %s offset:%d" % (vr(P), vr(D), LOFF))
        e("s_mov_b64 exec, -1")
    e("ds_read_b128 %s, %s offset:%d" % (vr(M, 4), vr(LA), LOFF))
    e("ds_read_b128 %s, %s offset:%d" % (vr(M + 4, 4), vr(LA), LOFF + 16))
    e("s_lshl_b32 s3, %s, 3" % sr(sTot)); e("s_or_b32 s3, s3, %s" % sr(sW))
    e("v_mov_b32 %s, s3" % vr(TOT))
    e("s_mov_b64 exec, 1")
    e("ds_write_b32 %s, %s offset:%d" % (vr(W4), vr(TOT), TOTA))
    e("s_mov_b64 exec, -1")
    e("s_cmp_eq_u32 %s, 0" % sr(sFirst))
    e("s_cbranch_scc1 EXP_B")
    for t in wr[24:32]: e(t)
    e("s_waitcnt lgkmcnt(9)")
    e("s_branch EXP_C")
    lab("EXP_B")
    e("s_waitcnt lgkmcnt(1)")
    lab("EXP_C")
    e("v_max3_u32 %s, %s, %s, %s" % (vr(INC), vr(M), vr(M + 1), vr(M + 2)))
    e("v_max3_u32 %s, %s, %s, %s" % (vr(INC), vr(INC), vr(M + 3), vr(M + 4)))
    e("v_max3_u32 %s, %s, %s, %s" % (vr(INC), vr(INC), vr(M + 5), vr(M + 6)))
    e("v_max_u32 %s, %s, %s" % (vr(INC), vr(INC), vr(M + 7)))
    scan64("v_max_u32", INC, ["v_max_u32 %s, %s, %s" % (vr(M + k), vr(M + k - 1), vr(M + k)) for k in range(1, 8)])
    e("s_nop 1")
    e("v_mov_b32_dpp %s, %s wave_shr:1 row_mask:0xf bank_mask:0xf" % (vr(PREV), vr(INC)))
    for k in range(8):
        e("v_max_u32 %s, %s, %s" % (vr(M + k), vr(PREV), vr(M + k)))
        e("v_add3_u32 %s, %s, %s, %d" % (vr(M + k), vr(M + k), vr(JB), k))
        if ROT:
            e("v_subrev_u32 %s, %d, %s" % (vr(INC), 256 * CH, vr(M + k)))
            e("v_min_u32 %s, %s, %s" % (vr(M + k), vr(INC), vr(M + k)))
    e("ds_write_b128 %s, %s offset:%d" % (vr(LA), vr(M, 4), LOFF))
    e("ds_write_b128 %s, %s offset:%d" % (vr(LA), vr(M + 4, 4), LOFF + 16))
    RI1 = r.TI; RD1 = r.S; F0 = r.XI; F1 = r.XI + 2
    e("v_lshrrev_b32 %s, 3, %s" % (vr(c0), vr(lane)))
    e("v_lshlrev_b32 %s, 2, %s" % (vr(c0), vr(c0)))
    e("v_and_b32 %s, 7, %s" % (vr(c1), vr(lane)))
    e("v_lshlrev_b32 %s, 3, %s" % (vr(r.XI + 4), vr(c1)))
    e("v_lshlrev_b32 %s, 2, %s" % (vr(c1), vr(c1)))
    e("s_sub_u32 s3, 7, %s" % sr(sW)); e("s_sub_u32 s97, %s, 4" % sr(sW))
    e("s_cmp_lt_u32 %s, 4" % sr(sW)); e("s_cselect_b32 s97, s3, s97")
    e("s_waitcnt lgkmcnt(0)")
    def pointers():
        e("v_bfe_u32 %s, %s, 2, 2" % (vr(c0), vr(lane)))
        e("v_lshrrev_b32 %s, 5, %s" % (vr(c1), vr(lane)))
        e("v_lshl_or_b32 %s, %s, 3, %s" % (vr(c0), vr(c1), vr(c0)))
        e("v_lshl_add_u32 %s, %s, 4, %s" % (vr(r.PS), vr(c0), sr(sREC)))
        e("v_and_b32 %s, 3, %s" % (vr(c0), vr(lane)))
        e("v_add_u32 %s, %s, %s" % (vr(r.PC), vr(c0), vr(r.PS)))
        e("v_and_b32 %s, 31, %s" % (vr(c0), vr(lane)))
        e("v_lshl_add_u32 %s, %s, 4, %s" % (vr(r.PT), vr(c0), sr(sREC)))
        e("v_lshl_add_u32 %s, %s, 2, %s" % (vr(r.PE), vr(c1), vr(r.PT)))
        e("v_lshl_add_u32 %s, %s, 4, %s" % (vr(r.PW), vr(lane), sr(sREC)))
        e("s_min_u32 %s, %s, %s" % (sr(sTot), sr(sTot), sr(sLim)))
        e("s_sub_u32 s3, %s, %s" % (sr(sTot), sr(sW0)))
        e("s_min_u32 s3, s3, 512")
        e("s_add_u32 s3, s3, 31")
        e("s_bitcmp0_b32 s3, 4")
        e("s_cselect_b32 %s, 0, -1" % sr(sRET))
        e("s_lshr_b32 s3, s3, 5")
        e("s_max_u32 s3, s3, 1")
        e("s_sub_u32 %s, s3, 1" % sr(sNG))
        e("s_mov_b32 %s, 2" % sr(sBLK))
    e("s_cmp_eq_u32 %s, 0" % sr(sFirst))
    e("s_cbranch_scc1 LATER")
    stamp("expand")
    if SF or XPOS in (1, 2): e("s_waitcnt vmcnt(0)")
    e("s_barrier")
    e("ds_read_b32 %s, %s offset:%d" % (vr(c0), vr(c0), TOTA))
    e("ds_read_b32 %s, %s offset:%d" % (vr(c1), vr(c1), TOTA))
    for s in wr[8:12]: e(s)
    e("s_waitcnt lgkmcnt(4)")
    e("v_cmp_lt_u32 vcc, %s, %s" % (vr(c1), vr(c0)))
    e(wr[12]); e(wr[13])
    e("v_lshrrev_b64 %s, %s, vcc" % (vr(r.SO, 2), vr(r.XI + 4)))
    e("v_and_b32 %s, 0xff, %s" % (vr(r.SO), vr(r.SO)))
    e("v_bcnt_u32_b32 %s, %s, 0" % (vr(r.SO), vr(r.SO)))
    e("v_cmp_eq_u32 vcc, s97, %s" % vr(r.SO))
    e("s_ff1_i32_b64 s97, vcc")
    e("v_readlane_b32 %s, %s, s97" % (sr(sTot), vr(c1)))
    e("s_lshl_b32 %s, s97, 11" % sr(sXT)); e("s_add_u32 %s, %s, %d" % (sr(sXT), sr(sXT), XTB))
    e("s_lshl_b32 %s, s97, 13" % sr(sREC)); e("s_add_u32 %s, %s, %d" % (sr(sREC), sr(sREC), RECB))
    e("v_lshl_add_u32 %s, %s, 2, %s" % (vr(r.PL), vr(lane), sr(sREC)))
    e(riread(0)); e(riread(1, RI1))
    def xtile(mapreg, dst):
        e("v_add_u32 %s, %s, %s" % (vr(mapreg), sr(sXT), vr(mapreg)))
        tm = [mapreg, c0, c1, r.SO]
        for s in range(1, 4): e("v_xor_b32 %s, %d, %s" % (vr(tm[s]), 32 * s, vr(mapreg)))
        for s in range(4): e("ds_read_b128 %s, %s" % (vr(dst + 4 * s, 4), vr(tm[s])))
    NU = int(opts.get('nu', 16))
    xtile(FU, r.AT)
    RP = int(opts.get('rp', 8)); RP1 = int(opts.get('rp1', RP))
    if RP < 0:
        e("s_waitcnt lgkmcnt(4)")
        e(rload(r.RD, r.RI, RL0))
        if RP1 < 0: e(rload(RD1, RI1, RL0))
    e(wr[14]); e(wr[15])
    xtile(FA, r.X)
    for s in wr[0:8]: e(s)
    WT = r.ACC[0]
    for i in range(4):
        e("v_lshlrev_b32 %s, 16, %s" % (vr(WT + i), vr(WCR + i)))
        e("v_and_b32 %s, 0xffff0000, %s" % (vr(WT + 4 + i), vr(WCR + i)))
    for i in range(8):
        e("v_mul_f32 %s, s92, %s" % (vr(WT + i), vr(WT + i)))
    for i in range(4):
        e("v_cvt_pk_bf16_f32 %s, %s, %s" % (vr(WCR + i), vr(WT + 2 * i), vr(WT + 2 * i + 1)))
    e("s_lshr_b32 %s, %s, 3" % (sr(sTot), sr(sTot)))
    e("s_lshl_b32 %s, %s, 3" % (sr(sT), sr(sBin))); e("s_add_u32 %s, %s, s97" % (sr(sT), sr(sT)))
    ua = []
    for f in range(2):
        for s in range(4):
            ua.append(mfma(r.ACC[f], r.AT + 4 * s, WU + 16 * f + 4 * s, None if s == 0 else r.ACC[f]))
    for f in range(2):
        for s in range(4):
            ua.append(mfma(WU + 16 * f, r.X + 4 * s, WA + 16 * f + 4 * s, None if s == 0 else WU + 16 * f))
    n0 = len(L)
    pointers()
    tile_range()
    e("s_min_u32 %s, %s, %d" % (sr(sEnd), sr(sEnd), N_NODES))
    e("s_sub_u32 s3, %s, %s" % (sr(sEnd), sr(sStart))); e("s_lshl_b32 s3, s3, 7")
    e("s_lshl_b32 s97, %s, 7" % sr(sStart))
    srd(SOUT, 22, "s3", "s97")
    misc = L[n0:]; del L[n0:]
    RPY = int(opts.get('rpy', 0))
    def young():
        e("s_cbranch_vccnz RY_B"); e(rload(r.RD, r.RI, RL0)); e(rload(RD1, RI1, RL0)); lab("RY_B")
    if RPY: e("s_mov_b64 vcc, s[10:11]")
    e("s_waitcnt lgkmcnt(12)")
    for k in range(NU):
        if k == 8: e("s_waitcnt lgkmcnt(0)")
        if RPY and k == RP:
            e("s_cbranch_vccz RY_A"); e(rload(r.RD, r.RI, RL0)); e(rload(RD1, RI1, RL0)); lab("RY_A")
        elif not RPY:
            if k == RP: e(rload(r.RD, r.RI, RL0))
            if k == RP1: e(rload(RD1, RI1, RL0))
        e(ua[k])
        for _ in range(5):
            if misc: L.append(misc.pop(0))
    L.extend(misc)
    CV = int(opts.get('cv', 1))
    def cvts():
        for i in range(8):
            e("v_cvt_pk_bf16_f32 %s, %s, %s" % (vr(r.U + i), vr(r.ACC[0] + i), vr(r.ACC[1] + i)))
        e("s_mov_b32 s3, 0x358637bd")
        for f in range(2):
            for i in range(16): e("v_mov_b32 %s, %s" % (vr(r.ACC[f] + i), "s3" if i < 8 else "0"))
        for f in range(2):
            for i in range(8):
                e("v_cvt_pk_bf16_f32 %s, %s, %s" % (vr(r.AT + 8 * f + i), vr(WU + 16 * f + 2 * i) if i & 1 else "0", vr(WU + 16 * f + 2 * i + 1)))
        e("s_mov_b32 exec_hi, 0")
        for f in range(2):
            e("v_mov_b32 %s, %s" % (vr(r.AT + 8 * f), vr(WCR + 2 * f)))
            e("v_mov_b32 %s, %s" % (vr(r.AT + 8 * f + 4), vr(WCR + 2 * f + 1)))
        e("s_mov_b64 exec, -1")
    if RPY == 16: young()
    if RP == 16: e(rload(r.RD, r.RI, RL0))
    if RP1 == 16: e(rload(RD1, RI1, RL0))
    e("s_waitcnt lgkmcnt(0)")
    e("s_barrier")
    if CV:
        assert NU == 16
        e("s_nop 3")
        cvts()
    if int(opts.get('rdl', 0)): e("s_sleep %d" % int(opts['rdl']))
    if RPY == 17: young()
    if RP == 17: e(rload(r.RD, r.RI, RL0))
    if RP1 == 17: e(rload(RD1, RI1, RL0))
    lab("NOW")
    e("s_mov_b32 m0, %s" % sr(sXB))
    e("s_waitcnt vmcnt(1)")
    emit(check(r.RD, r.RI, "FX0", c0))
    e("v_xor_b32 %s, 0xffff, %s" % (vr(r.RD + 2), vr(r.RD + 2)))
    e(rwrite(r.RD, 0))
    for t in range(4): e(xidx(0, t))
    emit(lookup(r.RD, c0, c1))
    e(riread(2))
    stamp("rec")
    mark(8)
    e("s_waitcnt lgkmcnt(3)")
    for t in range(4): e(xdma(t))
    for t in range(4): e(xidx(1, t))
    e("s_cmp_eq_u32 %s, 0" % sr(sFirst))
    e("s_cbranch_scc1 NOW2")
    for t in ua[NU:]: e(t)
    lab("NOW2")
    e("s_waitcnt vmcnt(4)")
    emit(check(RD1, RI1, "FX1", c0))
    emit(lookup(RD1, c0, c2))
    e("s_waitcnt lgkmcnt(2)")
    e(keyfix(r.RD, c1, 0xd8))
    e("ds_write_b64 %s, %s offset:8" % (vr(r.PW), vr(r.RD + 2, 2)))
    e(t0read(0)); e(tiread(0))
    e(xm0(1))
    X1L = int(opts.get('x1l', 0))
    def x1():
        for t in range(4): e(xdma(t))
        e(rload(r.RD, r.RI, RL2))
        for t in range(4): e(xidx(2, t))
    e("s_cmp_eq_u32 %s, 0" % sr(sFirst))
    e("s_cbranch_scc1 NOW3")
    if not CV: cvts()
    lab("NOW3")
    e("s_waitcnt lgkmcnt(2)")
    e(keyfix(RD1, c2))
    e(rwrite(RD1, 1))
    if not X1L: x1()
    stamp("atile")
    e("s_waitcnt vmcnt(%d)" % (0 if X1L else 5))
    stamp("x0")
    for k in range(4): e(xread(0, k))
    if X1L: x1()
    e(xm0(0))
    for s_ in range(4):
        e("s_waitcnt lgkmcnt(%d)" % (0 if s_ == 3 else 3 - s_ + 4 * X1L))
        e(mfma(r.G[0], r.X + 4 * s_, r.WB + 4 * s_, None if s_ == 0 else r.G[0]))
    e(xdma(0))
    e(smf(r.G[0], r.T, r.AT, r.TI, 1))
    e(xdma(1))
    e("s_nop 6")
    stamp("loop"); stamp("rtloop", True)
    if STAMP:
        e("s_add_u32 s100, %s, 1" % sr(sNG)); e("v_writelane_b32 v%d, s100, 28" % STV)
    mark(3)

    def I(text, lds=None, need=()): return dict(text=text, lds=lds, need=list(need))
    def oct_(base, o):
        o %= 4
        return base[o >> 1] + 8 * (o & 1)
    def C_(o, i): return "v_cvt_pk_bf16_f32 %s, %s, %s" % (vr(oct_(r.V, o) + i), vr(r.ETA + i), vr(oct_(r.V, o) + i))
    def R_(o, i): return "v_rcp_f32 %s, %s" % (vr(r.ETA + i), vr(oct_(r.G, o) + i))
    def E_(o, i): return "v_exp_f32 %s, %s" % (vr(oct_(r.G, o) + i), vr(oct_(r.G, o) + i))
    def A_(o):
        g_ = oct_(r.G, o)
        return ["v_pk_add_f32 %s, %s, 1.0 op_sel_hi:[1,0]" % (vr(g_ + i, 2), vr(g_ + i, 2)) for i in range(0, 8, 2)]
    def M_(o, pk=True):
        v_ = oct_(r.V, o)
        if pk: return ["v_pk_mul_f32 %s, %s, %s" % (vr(v_ + i, 2), vr(v_ + i, 2), vr(r.ETA + i, 2)) for i in range(0, 8, 2)]
        return ["v_mul_f32 %s, %s, %s" % (vr(v_ + i), vr(r.ETA + i), vr(v_ + i)) for i in range(8)]
    def red(f, hi): return smf(r.ACC[f], r.S + 4 * hi, r.V[f] + 8 * hi, r.SI)
    def gch(f): return [mfma(r.G[f], r.X + 4 * k, r.WB + 16 * f + 4 * k, None if k == 0 else r.G[f]) for k in range(4)] + [smf(r.G[f], r.T, r.AT + 8 * f, r.TI, 1)]
    def vch(f): return [mfma(r.V[f], r.X + 4 * k, r.WV + 16 * f + 4 * k, None if k == 0 else r.V[f]) for k in range(4)]
    CUT6 = [int(x) for x in opts.get('cut6', '0,3,6,10,14,18').split(',')]; CUT5 = [int(x) for x in opts.get('cut5', '0,4,9,13,18').split(',')]
    HALF = int(opts.get('half', 1))
    def sub(s_, g, first=False):
        nb = (g + 1) & 1
        tail = []
        if s_ == 0:
            mm = [I(red(0, 0), need=['S3']), I(red(0, 1))] + [I(t) for t in vch(0)]
            aux = [[], [I(soread(g, 0), lds='SO0')], [I(xdma(2)), I(soread(g, 1), lds='SO1')], [I(xdma(3))],
                   [I(soread(g, 2), lds='SO2')], [I(soread(g, 3), lds='SO3')]]
            if g == 1:
                aux[0] += [I("s_cmp_eq_u32 %s, 0" % sr(sLim))]
                aux[1] = [I("s_cbranch_scc1 WR_S", need=['RT']), I(rwrite(r.RD, 2)), I("WR_S:")] + aux[1]
                aux[4].insert(0, I(rload(r.RD, r.RI), need=['RI', 'SO0']))
        elif s_ == 1:
            mm = [I(t) for t in gch(1)]
            aux = [[I(xidx(g + 3, k), lds='XI%d' % k)] for k in range(4)] + [[I(t0read(g + 1), lds='T0')]]
        elif s_ == 2:
            mm = [I(red(1, 0)), I(red(1, 1))] + [I(t) for t in vch(1)]
            aux = [[I(tiread(g + 1), lds='TI')], [I("s_waitcnt vmcnt(%d)" % (4 if g == 0 else 5), need=['XI3']), I(trread(0), lds='S0')]] + [[I(xread(nb, k), lds='X%d' % k)] for k in range(4)]
            aux[5].insert(0, I("s_waitcnt", need=['X1']))
            dec = I("s_sub_u32 %s, %s, 1" % (sr(sNG), sr(sNG)))
            if g == 0:
                tail = [I(t) for t in check(r.RD, r.RI, "FXP" if first else "FXL", c0)]
                tail += [dec]
                if not first:
                    aux[3].insert(0, I("s_cmp_gt_u32 %s, 7" % sr(sBLK)))
                    aux[4].insert(0, I("s_cselect_b32 %s, 0, %s" % (sr(sLim), sr(sLim))))
            else: aux[4].insert(0, dec)
        else:
            gc = gch(0)
            mm = [I(gc[k], need=['X%d' % k]) for k in range(4)] + [I(gc[4], need=['T0', 'TI'])]
            aux = [[I(trread(1), lds='S1')], [I("s_waitcnt", need=['X3']), I(trread(2), lds='S2')], [I(xm0(nb)), I(trread(3), lds='S3')],
                   [I(xdma(0))], [I("s_waitcnt", need=['S3']), I(xdma(1))]]
            if HALF: aux[3].insert(0, I("s_or_b32 s3, %s, %s" % (sr(sNG), sr(sRET))))
            if g == 0:
                aux[2].append(I(riread(3), lds='RI'))
                aux[0].insert(0, I("s_add_u32 %s, %s, 1" % (sr(sBLK), sr(sBLK))))
                lk = lookup(r.RD, c0, c1)
                aux[0].append(I(lk[0], lds='RT0')); aux[1].append(I(lk[1], lds='RT'))
                tail = [I(keyfix(r.RD, c1), need=['RT'])]
            else:
                tail = [I("v_lshl_add_u64 %s, %s, 0, %s" % (vr(r.PS, 2), vr(r.PS, 2), sr(sINC, 2))),
                        I("v_lshl_add_u64 %s, %s, 0, %s" % (vr(r.PT, 2), vr(r.PT, 2), sr(sINC, 2))),
                        I("v_lshl_add_u64 %s, %s, 0, %s" % (vr(r.PL, 2), vr(r.PL, 2), sr(sINC2, 2)))]
        va = []
        for i in range(8):
            if not (first and s_ < 2): va.append(C_(s_ - 2, i))
            if not (first and s_ < 1): va.append(R_(s_ - 1, i))
            va.append(E_(s_, i))
        cut = CUT6 if len(mm) == 6 else CUT5
        if first and s_ in (0, 2):
            aux = [aux[0] + aux[1] + aux[2]] + aux[3:]; mm = mm[2:]
            cut = [0, 2, 4, 6] if s_ == 0 else [0, 4, 8, 12]
        if first and s_ == 1: cut = [0, 3, 6, 9, 12]
        aux[0].insert(0, I("s_setprio @%d" % (4 * g + s_)))
        BPM = int(opts.get('bpm', 1))
        if BPM == 1: aux[-1].insert(0, I("s_setprio 3"))
        elif BPM == 2: tail = tail + [I("s_setprio 3")]
        elif BPM == 3: aux[-1].append(I("s_setprio 3"))
        out = []
        AP = int(opts.get('auxpre', 0)); held = []
        MP = int(opts.get('mp', 0))
        for k, t in enumerate(va):
            if k in cut:
                j = cut.index(k)
                out.extend(held); held = []
                if MP and 0 < j: out.append(I("s_setprio 2"))
                out.append(mm[j])
                if MP and 0 < j < len(mm) - 1: out.append(I("s_setprio 1"))
                if AP and not first and j < len(mm) - 1:
                    mem = lambda it: it['text'].startswith(('buffer',) if AP == 2 else ('ds_', 'buffer'))
                    p = next((n for n, it in enumerate(aux[j]) if mem(it) or it['text'].startswith('s_cbranch')), len(aux[j]))
                    out.extend(aux[j][:p]); held = aux[j][p:]
                else: out.extend(aux[j])
            out.append(I(t))
        out += tail + [I(t) for t in ([] if first and s_ == 0 else M_(s_ - 1)) + A_(s_)]
        if s_ == 2: out.append(I("s_cbranch_scc1 TAIL"))
        return out
    state = dict(issued=[], done=0)
    def run(seq, out):
        issued = state['issued']
        for it in seq:
            n = None
            for tag in it['need']:
                idxs = [k for k, t in enumerate(issued) if t == tag]
                if not idxs: continue
                k = idxs[-1]
                if k >= state['done']:
                    n = len(issued) - 1 - k
                    state['done'] = k + 1
            tx = it['text']
            if n is not None:
                assert n <= 15
                if tx.startswith("s_waitcnt"): tx += " lgkmcnt(%d)" % n
                elif out: e("s_waitcnt lgkmcnt(%d)" % n)
            if 'abl' in opts and re.match(opts['abl'].replace('_', '.'), tx): tx = "s_waitcnt"
            if out and tx != "s_waitcnt": emit([tx])
            if it['lds']: issued.append(it['lds'])
    cyc = lambda g, first=False: sum((sub(s_, g, first) for s_ in range(4)), [])
    c_first, c_even, c_odd = cyc(0, True), cyc(0), cyc(1)
    FAIR = opts.get('fair', '')
    n0 = len(L)
    run(c_first, True)
    for k in range(n0, len(L)): L[k] = re.sub(r"@\d", "1", L[k])
    if FAIR:
        e("s_mov_b64 vcc, s[10:11]")
        e("s_cbranch_vccnz MID_O")
    e("s_branch MID")
    run(c_odd, False)
    n0 = len(L)
    L.append(".p2align 3")
    lab("LOOP")
    run(c_even, True)
    lab("MID")
    if HALF: e("s_cbranch_scc0 HALF1")
    run(c_odd, True)
    body_txt = L[n0:]
    for k in range(n0, len(L)): L[k] = re.sub(r"@\d", "1", L[k])
    if FAIR:
        tail_txt = L[n0:]; del L[n0:]
        for t in body_txt:
            t = re.sub(r"@(\d)", lambda m: "0" if m.group(1) in FAIR else "2", t)
            t = re.sub(r"\b(LOOP|MID|FXL|FXL_R|WR_S)\b", lambda m: m.group(1).replace("FXL", "FXO") + ("" if m.group(1).startswith("FXL") else "_O"), t)
            L.append(t)
        e("s_cbranch_scc1 LOOP_O")
        e("s_branch HALF0")
        retries.append(("FXO", r.RD, r.RI))
        L.extend(tail_txt)
    XR = r.X; UF = r.G[0]; XF = r.V[0]
    def epi_addr():
        return ["v_lshrrev_b32 %s, 5, %s" % (vr(c0), vr(lane)),
                "v_and_b32 %s, 31, %s" % (vr(c1), vr(lane)),
                "v_lshlrev_b32 %s, 2, %s" % (vr(c1), vr(c1)),
                "v_mul_u32_u24 %s, 0x240, %s" % (vr(c2), vr(c0)),
                "v_xor_b32 %s, %s, %s" % (vr(c2), vr(c2), vr(c1)),
                "v_add_u32 %s, %s, %s" % (vr(c2), sr(sXT), vr(c2))]
    if HALF:
        e("s_cbranch_scc1 LOOP")
        e("s_branch HALF0")
        lab("HALF1")
        e("v_add_u32 %s, 512, %s" % (vr(r.PC), vr(r.PC)))
        lab("HALF0")
        def weave(mm, va, cut):
            for k, t in enumerate(va):
                if k in cut: e(mm[cut.index(k)])
                e(t)
        e("s_setprio 1")
        e(soread(0, 0)); e(soread(0, 1))
        va = []
        for i in range(8): va += [C_(2, i), R_(3, i), E_(0, i)]
        weave([red(0, 0), red(0, 1)] + vch(0), va, CUT6)
        e("s_setprio 3")
        for t in M_(3) + A_(0): e(t)
        e("s_setprio 1")
        va = []
        for i in range(8): va += [C_(3, i), R_(0, i)]
        weave(gch(1), va, [0, 3, 6, 9, 12])
        for t in M_(0, False): e(t)
        e(red(1, 0))
        e("s_waitcnt lgkmcnt(0)")
        e(trread(0)); e(trread(1))
        va = []
        for i in range(8): va += [C_(0, i), E_(2, i)]
        weave([red(1, 1)] + vch(1), va, [1, 4, 7, 10, 13])
        for i in range(8): e("v_add_f32 %s, 1.0, %s" % (vr(r.G[1] + i), vr(r.G[1] + i)))
        e("s_waitcnt lgkmcnt(0)")
        e(red(0, 0))
        for i in range(8): e(R_(2, i))
        pre = epi_addr()
        e(pre.pop(0))
        for t in M_(2, False): e(t)
        for i in range(8): e(C_(2, i))
        for t in pre: e(t)
        e(red(1, 0))
        e("s_branch FIN")
    else:
        e("s_branch LOOP")
    lab("TAIL")
    e("s_setprio 2")
    e(trread(1)); e(trread(2)); e(trread(3))
    for i in range(8): e(C_(1, i)); e(R_(2, i)); e(E_(3, i))
    e("s_waitcnt lgkmcnt(0)")
    e(red(0, 0))
    for t in M_(2, False): e(t)
    e(red(0, 1))
    for i in range(8): e("v_add_f32 %s, 1.0, %s" % (vr(r.G[1] + 8 + i), vr(r.G[1] + 8 + i)))
    pre = epi_addr()
    for i in range(8): e(C_(2, i)); e(R_(3, i))
    e(pre.pop(0)); e(pre.pop(0))
    e(red(1, 0))
    for t in M_(3, False): e(t)
    for i in range(8): e(C_(3, i))
    for t in pre: e(t)
    e(red(1, 1))
    lab("FIN")
    stamp("loopend"); stamp("rtloopend", True)
    e("s_setprio 3")
    e("s_add_u32 %s, %s, 512" % (sr(sW0), sr(sW0)))
    e("s_cmp_lt_u32 %s, %s" % (sr(sW0), sr(sTot)))
    e("s_cbranch_scc1 MORE")
    EA_ = r.X + 8
    for q_ in range(1, 4): e("v_xor_b32 %s, %d, %s" % (vr(EA_ + q_), 16 * q_, vr(c2)))
    for q_ in range(4):
        e("ds_read_b32 %s, %s offset:%d" % (vr(XR + q_), vr(EA_ + q_ if q_ else c2), q_ * 128))
        if q_ < 3: e("ds_read_b32 %s, %s offset:%d" % (vr(XR + q_ + 4), vr(EA_ + q_ if q_ else c2), q_ * 128 + 1024))
    for q_ in range(7):
        e("v_lshlrev_b32 %s, 16, %s" % (vr(UF + q_), vr(r.U + q_)))
        e("v_and_b32 %s, 0xffff0000, %s" % (vr(UF + 8 + q_), vr(r.U + q_)))
    B0, B1 = EA_ + 4, EA_ + 5
    e("v_lshl_add_u32 %s, %s, 9, %s" % (vr(B0), vr(c0), vr(c1)))
    e("s_movk_i32 s3, 384")
    e("v_mad_u32_u24 %s, %s, s3, %s" % (vr(B1), vr(c0), vr(c1)))
    for f in range(2):
        for q_ in range(7):
            e("v_rcp_f32 %s, %s" % (vr(r.ACC[f] + q_), vr(r.ACC[f] + q_)))
    e("s_waitcnt lgkmcnt(0)")
    for q_ in range(7):
        e("v_lshlrev_b32 %s, 16, %s" % (vr(XF + q_), vr(XR + q_)))
        e("v_and_b32 %s, 0xffff0000, %s" % (vr(XF + 8 + q_), vr(XR + q_)))
    for f in range(2):
        for q_ in range(0, 8, 2):
            e("v_pk_fma_f32 %s, %s, %s, %s" % (vr(UF + 8 * f + q_, 2), vr(r.ACC[f] + q_, 2), vr(r.ACC[f] + 8 + q_, 2), vr(UF + 8 * f + q_, 2)))
    for f in range(2):
        for q_ in range(7):
            e("v_max_f32 %s, 0, %s" % (vr(UF + 8 * f + q_), vr(UF + 8 * f + q_)))
    for q_ in range(0, 8, 2):
        for f in range(2):
            e("v_pk_add_f32 %s, %s, %s" % (vr(UF + 8 * f + q_, 2), vr(UF + 8 * f + q_, 2), vr(XF + 8 * f + q_, 2)))
    for q_ in range(7):
        e("v_cvt_pk_bf16_f32 %s, %s, %s" % (vr(r.U + q_), vr(UF + q_), vr(UF + 8 + q_)))
        e("buffer_store_dword %s, %s, %s, 0 offen offset:%d %s" % (vr(r.U + q_), vr(B0 if q_ < 4 else B1), sr(SOUT, 4), (q_ if q_ < 4 else q_ + 4) * 128, OSF))
    if STAMP:
        e("s_waitcnt vmcnt(0)")
        stamp("end"); stamp("rtend", True)
        e("s_sub_u32 s100, %d, %s" % (SPINMAX, sr(sSpin))); e("v_writelane_b32 v%d, s100, 29" % STV)
        e("s_getreg_b32 s100, hwreg(HW_REG_HW_ID)"); e("v_writelane_b32 v%d, s100, 30" % STV)
        e("s_lshl_b32 s3, s2, 3"); e("s_add_u32 s3, s3, %s" % sr(sW)); e("s_lshl_b32 s3, s3, 7"); e("s_add_u32 s3, s3, 0x%x" % WS_DBG)
        srd(SA, 26, 128, "s3")
        e("v_lshlrev_b32 %s, 2, %s" % (vr(c0), vr(lane)))
        e("buffer_store_dword v%d, %s, %s, 0 offen" % (STV, vr(c0), sr(SA, 4)))
    if DW:
        if 'dwg' in opts:
            e("s_cmp_lg_u32 s2, %s" % opts['dwg']); e("s_cbranch_scc1 K_END")
        if DW == 10: e("s_cmp_gt_u32 %s, 3" % sr(sW)); e("s_cbranch_scc1 K_END")
        if DW in (11, 12, 13): e("s_cmp_lt_u32 %s, 4" % sr(sW)); e("s_cbranch_scc1 K_END")
        e("s_waitcnt vmcnt(0) lgkmcnt(0)")
        lab("SPIN")
        e("s_memrealtime s[100:101]"); e("s_waitcnt lgkmcnt(0)")
        e("s_sub_u32 s100, s100, s98"); e("s_cmp_lt_u32 s100, 6000"); e("s_cbranch_scc1 SPIN")
    lab("K_END")
    e("s_endpgm")
    for name, rd, ri in retries:
        lab(name + "_R")
        e("s_mov_b64 exec, vcc")
        if int(opts.get('rsl', 0)): e("s_sleep %d" % int(opts.get('rsl', 0)))
        e(rload(rd, ri, "sc0 sc1"))
        e("s_mov_b64 exec, -1")
        e("s_sub_u32 %s, %s, 1" % (sr(sSpin), sr(sSpin)))
        e("s_waitcnt vmcnt(0)")
        e("s_cbranch_scc0 %s" % name)
        e("s_endpgm")
    lab("LATER")
    e(riread(0)); e(riread(1, RI1))
    pointers()
    e("s_waitcnt lgkmcnt(0)")
    e(rload(r.RD, r.RI)); e(rload(RD1, RI1))
    e("s_branch NOW")
    lab("MORE")
    e("s_mov_b32 %s, %d" % (sr(sLim), NC * CH))
    e("s_mov_b32 %s, 0" % sr(sFirst))
    e("s_waitcnt vmcnt(0) lgkmcnt(0)")
    e("s_nop 15")
    e("s_lshr_b32 s3, %s, 2" % sr(sT)); e("s_lshl_b32 s3, s3, 4")
    e("s_and_b32 s97, %s, 3" % sr(sT)); e("s_lshl_b32 s97, s97, 1"); e("s_add_u32 s3, s3, s97")
    e("v_lshl_add_u32 %s, %s, 2, %s" % (vr(c0), vr(lane), sr(sC0) if ROT else "0"))
    for i in range(4):
        e("v_and_b32 %s, 255, %s" % (vr(c1), vr(c0)))
        e("v_lshl_add_u32 %s, %s, 13, s3" % (vr(c1), vr(c1)))
        e("buffer_load_ushort %s, %s, %s, 0 offen sc0 sc1" % (vr(EN + i), vr(c1), sr(SOFS, 4)))
        e("buffer_load_ushort %s, %s, %s, 0 offen offset:2 sc0 sc1" % (vr(D + i), vr(c1), sr(SOFS, 4)))
        e("v_add_u32 %s, 1, %s" % (vr(c0), vr(c0)))
    expand_pre()
    zero_list()
    e("s_waitcnt vmcnt(0)")
    for i in range(4): e("v_lshl_or_b32 %s, %s, 16, %s" % (vr(EN + i), vr(D + i), vr(EN + i)))
    e("s_branch EXPAND")
    return r.n

DOC = """; GatedGCN layer, one launch, 256 workgroups (one per CU) x 8 waves.
;          out = x + relu(x@w_u + sum(eta*hv) / (sum(eta) + 1e-6)). Tiles of any size are handled in windows."""
hdr = open('cdna_kernels/%s.s.ref' % NAME).read().split('\n')
hdr = [l for l in hdr if l.startswith(';   offset') or l.startswith('; Kernarg')]
L.append('.amdgcn_target "amdgcn-amd-amdhsa--gfx950"')
L.append('.text')
nv = kernel()
L.append('.section .rodata,"a"')
L += [".p2align 6", ".amdhsa_kernel %s" % KN, "  .amdhsa_next_free_vgpr 256", "  .amdhsa_next_free_sgpr 102",
      "  .amdhsa_accum_offset 256", "  .amdhsa_group_segment_fixed_size 0", "  .amdhsa_kernarg_size 96",
      "  .amdhsa_user_sgpr_count 2", "  .amdhsa_user_sgpr_kernarg_segment_ptr 1", "  .amdhsa_system_sgpr_workgroup_id_x 1",
      ".end_amdhsa_kernel"]
if opts.get('list', '0') == '1':
    top = hdr + ["; @launch kernel=%s grid=(256,1,1) block=(512,1,1) lds=%d" % (KN, LDS_BYTES)]
else:
    top = hdr + ["; @launch grid=(256,1,1) block=(512,1,1) lds=%d" % LDS_BYTES]
open(OUT, 'w').write("\n".join(top + DOC.split("\n") + [l.rstrip() for l in L]) + "\n")
if STAMP: open('stamps.txt', 'w').write(" ".join(names))
print("vgprs:", nv, "lines:", len(L))
```

```python
import sys, re

NAME = "standalone__edge_featured_mpnn_gatedgcn__graph"
KN = NAME + "_kernel"
N_NODES = 25000
CH = 3200
NC = 250
TMUL = 5368
WS_REC = 0
WS_OFF = 0xD00000
WS_CMP = 0xC80000
WS_EPO = 0xF00000
WS_DBG = 0x1000000
NEGLOG2E = 0xBFB8AA3B
SPINMAX = 2000000

opts = dict(a.split('=') for a in sys.argv[1:] if '=' in a)
OUT = opts.get('out', 'cdna_kernels/%s.s' % NAME)
STAMP = int(opts.get('stamp', 0))
STF = opts.get('stf', 'sc1').replace('+', ' ')
LDF = opts.get('ldf', 'nt').replace('+', ' ')
RLF = opts.get('rlf', '').replace('+', ' ')
RL0 = opts.get('rl0', '').replace('+', ' ')
RL2 = opts.get('rl2', '').replace('+', ' ')
XPF = int(opts.get('xpf', 0))
PLF = opts.get('plf', 'sc1').replace('+', ' ')
OSF = opts.get('osf', 'sc1').replace('+', ' ')
DW = int(opts.get('dw', 0))
LOWS = opts.get('lows', '')
DELAY = int(opts.get('delay', 0))

L = []
def e(s): L.append("    " + s)
def lab(s): L.append(s + ":")
def vr(a, n=1): return "v%d" % a if n == 1 else "v[%d:%d]" % (a, a + n - 1)
def sr(a, n=1): return "s%d" % a if n == 1 else "s[%d:%d]" % (a, a + n - 1)

DPPS = ["row_shr:1 row_mask:0xf bank_mask:0xf", "row_shr:2 row_mask:0xf bank_mask:0xf",
        "row_shr:4 row_mask:0xf bank_mask:0xf", "row_shr:8 row_mask:0xf bank_mask:0xf",
        "row_bcast:15 row_mask:0xa bank_mask:0xf", "row_bcast:31 row_mask:0xc bank_mask:0xf"]
def scan64(op, v, fill=()):
    fill = list(fill)
    for m in DPPS:
        n = 0
        while n < 2 and fill:
            e(fill.pop(0)); n += 1
        if n < 2: e("s_nop %d" % (1 - n))
        e("%s_dpp %s, %s, %s %s" % (op, vr(v), vr(v), vr(v), m))
    for f in fill: e(f)

def srd(d, base, nbytes, add=None, stride=0, sub=None):
    if sub is not None:
        e("s_sub_u32 %s, %s, %s" % (sr(d), sr(base), sub))
        e("s_subb_u32 %s, %s, 0" % (sr(d + 1), sr(base + 1)))
        e("s_and_b32 %s, %s, 0xffff" % (sr(d + 1), sr(d + 1)))
    elif add is None:
        e("s_mov_b32 %s, %s" % (sr(d), sr(base)))
        e("s_and_b32 %s, %s, 0xffff" % (sr(d + 1), sr(base + 1)))
    else:
        e("s_add_u32 %s, %s, %s" % (sr(d), sr(base), add))
        e("s_addc_u32 %s, %s, 0" % (sr(d + 1), sr(base + 1)))
        e("s_and_b32 %s, %s, 0xffff" % (sr(d + 1), sr(d + 1)))
    if stride:
        e("s_or_b32 %s, %s, 0x%x" % (sr(d + 1), sr(d + 1), stride << 16))
    e("s_mov_b32 %s, %s" % (sr(d + 2), nbytes if isinstance(nbytes, str) else "0x%x" % nbytes))
    e("s_mov_b32 %s, 0x20000" % sr(d + 3))

STV = 255
names = []
def stamp(name, real=False):
    if not STAMP: return
    if 'only' in opts and name not in opts['only'].split(',') + ['rt0', 'start', 'loop', 'rtloop', 'loopend', 'rtloopend', 'end', 'rtend']: return
    k = len(names); names.append(name)
    e("s_mem%stime s[100:101]" % ("real" if real else ""))
    e("s_waitcnt lgkmcnt(0)")
    e("v_writelane_b32 v%d, s100, %d" % (STV, k))
def mark(*modes):
    if DW in modes: e("s_memrealtime s[98:99]"); e("s_waitcnt lgkmcnt(0)")

TS, TOTA, WTOT, UTB, RTB = 0, 64, 128, 192, 256
RECB = 1024
HIST = RECB + CH * 16
XTB = RECB + 65536
XBB = XTB + 16384
PCB = XBB + 65536
LDS_BYTES = PCB + 8192
LOFF = 8192 - 2048 - 16

class R: pass
def alloc():
    r = R(); p = 0
    def a(n, al=1):
        nonlocal p
        p = (p + al - 1) // al * al
        b = p; p += n
        return b
    r.LANE = a(1); r.SI = a(1)
    r.PS = a(1, 2); r.PC = a(1); r.PT = a(1, 2); r.PE = a(1); r.PL = a(1, 2); r.PW = a(1)
    r.XA0 = a(1); r.XA1 = a(1); r.TI = a(1); r.TMP = a(3); r.RI = a(1)
    r.SO = a(4, 2); r.XI = a(8, 2); r.T = a(4, 2); r.RD = a(4, 2); r.U = a(8, 2)
    r.S = a(8, 2); r.ETA = a(8, 2); r.X = a(16, 2)
    r.ACC = [a(16, 2), a(16, 2)]
    r.G = [a(16, 2), None]; r.V = [a(16, 2), None]
    r.G[1] = a(16, 2); r.V[1] = a(16, 2)
    r.WB = a(32, 2); r.WV = a(32, 2); r.AT = a(16, 2)
    r.n = p
    return r

def mfma(d, a, b, c):
    return "v_mfma_f32_32x32x16_bf16 %s, %s, %s, %s" % (vr(d, 16), vr(a, 4), vr(b, 4), "0" if c is None else vr(c, 16))
def smf(d, a, b, idx, abid=0):
    return "v_smfmac_f32_32x32x32_bf16 %s, %s, %s, %s%s" % (vr(d, 16), vr(a, 4), vr(b, 8), vr(idx), " abid:1" if abid else "")
SOFF = [0, 64, 256, 320]

def kernel():
    r = alloc()
    assert r.n <= 255, r.n
    SX, SXI, SOFS, SRC, SOUT, SA, SB, SC_ = 28, 32, 36, 40, 44, 48, 52, 56
    sW, sT, sStart, sEnd, sTot, sW0, sNG, sXB, sREC, sFirst, sBin, sMag, sBLK, sXT, sTag, sTagH, sSpin, sLim, sKm, sKx = range(60, 80)
    sINC = 80; sINC2 = 82; sSO = 84; sTagB = 87; sE2 = 88; sRET = 90; sM0 = 4; sM1 = 6; sC0 = 8; sCB = 89
    TP = int(opts.get('tp', 0)); CP = int(opts.get('cp', 4))
    ROT = int(opts.get('rot', 0)); MARG = int(opts.get('marg', 25))
    lane = r.LANE
    c0, c1, c2 = r.TMP, r.TMP + 1, r.TMP + 2
    MAG = -(-(1 << 41) // 671)
    for t in range(2049):
        n = t * 8192 + 670
        assert (n * MAG) >> 41 == n // 671
    def tile_range():
        e("s_lshl_b32 s3, %s, 13" % sr(sT)); e("s_add_u32 s3, s3, 670")
        e("s_mul_hi_u32 %s, s3, %s" % (sr(sStart), sr(sMag))); e("s_lshr_b32 %s, %s, 9" % (sr(sStart), sr(sStart)))
        e("s_add_u32 s3, s3, 8192")
        e("s_mul_hi_u32 %s, s3, %s" % (sr(sEnd), sr(sMag))); e("s_lshr_b32 %s, %s, 9" % (sr(sEnd), sr(sEnd)))
    L.append(".globl %s" % KN); L.append(".p2align 8"); L.append(".type %s,@function" % KN); lab(KN)
    e("s_load_dwordx16 s[4:19], s[0:1], 0")
    e("s_load_dwordx8 s[20:27], s[0:1], 64")
    e("s_cmp_gt_u32 s2, 255")
    e("s_cbranch_scc1 K_END")
    e("s_setprio 3")
    mark(1)
    stamp("rt0", True); stamp("start")
    q = r.X
    TID = q; T16 = q + 1; T32 = q + 2; ONE = q + 3; ZER = q + 4
    DST = q + 8
    SRCV = q + 16
    EA = q + 24
    HA = q + 56
    RK = q + 64
    CN = q + 72
    ST = q + 76
    PC_ = q + 80
    tA, tB, tC, tD, tE, tF = [q + 84 + i for i in range(6)]
    EP = q + 90
    T16B = q + 92; T32B = q + 93
    assert q + 94 <= r.WB
    WRAW = r.AT
    WCR = r.ETA
    e("v_mov_b32 %s, v0" % vr(TID))
    e("v_lshrrev_b32 %s, 6, v0" % vr(tA))
    e("v_lshlrev_b32 %s, 4, v0" % vr(T16))
    e("v_readfirstlane_b32 %s, %s" % (sr(sW), vr(tA)))
    e("v_lshlrev_b32 %s, 5, v0" % vr(T32))
    e("v_and_b32 %s, 63, v0" % vr(lane))
    e("v_add_u32 %s, 8192, %s" % (vr(T16B), vr(T16)))
    e("v_add_u32 %s, 16384, %s" % (vr(T32B), vr(T32)))
    for i in range(4): e("v_mov_b32 %s, 0" % vr(ZER + i))
    e("v_mov_b32 %s, 1" % vr(ONE))
    e("ds_write_b128 %s, %s offset:%d" % (vr(T16), vr(ZER, 4), HIST))
    e("s_min_u32 s3, s2, %d" % (NC - 1))
    e("s_mul_i32 s92, s3, %d" % (CH * 4))
    e("s_lshl_b32 s93, s92, 1")
    e("s_cmp_lt_u32 s2, %d" % NC)
    e("s_cselect_b32 s94, %d, 0" % (CH * 4))
    e("s_cselect_b32 s95, %d, 0" % (CH * 8))
    e("s_cselect_b32 s96, %d, 0" % (CH // 4))
    e("s_and_b32 s3, s2, 7"); e("s_lshl_b32 s3, s3, 5"); e("s_lshr_b32 %s, s2, 3" % sr(sBin)); e("s_add_u32 %s, %s, s3" % (sr(sBin), sr(sBin)))
    if int(opts.get('binid', 0)): e("s_mov_b32 %s, s2" % sr(sBin))
    e("s_lshl_b32 %s, %s, 13" % (sr(sREC), sr(sW)))
    e("s_add_u32 %s, %s, %d" % (sr(sXB), sr(sREC), XBB))
    e("s_add_u32 %s, %s, %d" % (sr(sREC), sr(sREC), RECB))
    e("s_lshl_b32 %s, %s, 3" % (sr(sT), sr(sBin))); e("s_add_u32 %s, %s, %s" % (sr(sT), sr(sT), sr(sW)))
    e("s_mov_b32 %s, 0x%x" % (sr(sMag), MAG))
    tile_range()
    e("s_waitcnt lgkmcnt(0)")
    if int(opts.get('wsb', 0)):
        e("s_add_u32 s26, s26, 0x%x" % (int(opts['wsb']) << 20)); e("s_addc_u32 s27, s27, 0")
    if int(opts.get('tt', 0)):
        e("s_cmp_lt_u32 s2, %d" % int(opts.get('ttw', 248)))
        e("s_cbranch_scc1 TT_SKIP")
        e("s_cmp_lg_u32 %s, 7" % sr(sW))
        e("s_cbranch_scc1 TT_SKIP")
        e("v_lshlrev_b32 %s, 18, %s" % (vr(tA), vr(lane)))
        e("v_lshlrev_b32 %s, 16, %s" % (vr(tB), vr(lane)))
        srd(SA, 26, 0x1000000)
        e("buffer_load_dword %s, %s, %s, 0 offen sc0 sc1" % (vr(r.AT), vr(tA), sr(SA, 4)))
        srd(SA, 4, N_NODES * 128)
        e("buffer_load_dword %s, %s, %s, 0 offen" % (vr(r.AT), vr(tB), sr(SA, 4)))
        srd(SA, 22, N_NODES * 128)
        e("buffer_load_dword %s, %s, %s, 0 offen sc0 sc1" % (vr(r.AT), vr(tB), sr(SA, 4)))
        for p in (12, 14, 16, 18, 20):
            srd(SA, p, 512)
            e("buffer_load_dword %s, %s, %s, 0 offen" % (vr(r.AT), vr(tB), sr(SA, 4)))
        lab("TT_SKIP")
    srd(SA, 10, "s94", "s92")
    e("buffer_load_dwordx4 %s, %s, %s, 0 offen %s" % (vr(DST, 4), vr(T16), sr(SA, 4), LDF))
    e("buffer_load_dwordx4 %s, %s, %s, 0 offen %s" % (vr(DST + 4, 4), vr(T16B), sr(SA, 4), LDF))
    srd(SOUT, 26, 8, "0x%x" % WS_EPO)
    e("buffer_load_dwordx2 %s, %s, %s, 0 offen sc1" % (vr(EP, 2), vr(ZER), sr(SOUT, 4)))
    DF = int(opts.get('df', 2))
    SS, SE = (SB, SC_) if not DF else (SRC, SOFS)
    srd(SS, 8, "s94", "s92")
    srd(SE, 6, "s95", "s93")
    RL = ["buffer_load_dwordx4 %s, %s, %s, 0 offen %s" % (vr(SRCV, 4), vr(T16), sr(SS, 4), LDF),
          "buffer_load_dwordx4 %s, %s, %s, 0 offen %s" % (vr(SRCV + 4, 4), vr(T16B), sr(SS, 4), LDF)]
    for k in (2, 3, 0, 1):
        RL.append("buffer_load_dwordx4 %s, %s, %s, 0 offen offset:%d %s" % (vr(EA + 8 * k, 4), vr(T32B if k >> 1 else T32), sr(SE, 4), 16 * (k & 1), LDF))
    NE = int(opts.get('ne', 2))
    NE2 = int(opts.get('ne2', 0))
    for _ in range(NE): e(RL.pop(0))
    def rest_loads():
        for t in RL: e(t)
        if DF:
            srd(SOFS, 26, WS_OFF - WS_CMP + 256 * 8192, "0x%x" % WS_CMP)
            srd(SRC, 26, NC * CH, stride=16)
    if DF == 0: rest_loads()
    e("v_cmp_gt_u32 vcc, s96, %s" % vr(TID))
    e("s_mov_b64 s[92:93], vcc")
    e("v_add_u32 %s, 512, %s" % (vr(tA), vr(TID)))
    e("v_cmp_gt_u32 vcc, s96, %s" % vr(tA))
    e("s_mov_b64 s[94:95], vcc")
    e("s_and_b32 s3, %s, 3" % sr(sW))
    e("s_cmp_eq_u32 s3, 1"); e("s_cselect_b32 s12, s18, s12"); e("s_cselect_b32 s13, s19, s13")
    e("s_cmp_eq_u32 s3, 2"); e("s_cselect_b32 s12, s14, s12"); e("s_cselect_b32 s13, s15, s13")
    e("s_cmp_eq_u32 s3, 3"); e("s_cselect_b32 s12, s20, s12"); e("s_cselect_b32 s13, s21, s13")
    srd(SA, 12, 8192)
    srd(SB, 16, 512)
    srd(SX, 4, N_NODES * 128)
    H = r.SO
    XT0, XT1, J4, L16 = r.RD, r.RD + 1, r.RD + 2, r.RD + 3
    e("v_lshrrev_b32 %s, 5, %s" % (vr(H), vr(lane)))
    e("v_and_b32 %s, 31, %s" % (vr(J4), vr(lane)))
    e("v_lshlrev_b32 %s, 2, %s" % (vr(J4), vr(J4)))
    e("v_lshlrev_b32 %s, 4, %s" % (vr(L16), vr(lane)))
    e("v_lshrrev_b32 %s, 3, %s" % (vr(tA), vr(lane)))
    e("v_xor_b32 %s, %s, %s" % (vr(tB), vr(tA), vr(lane)))
    e("v_and_b32 %s, 7, %s" % (vr(tB), vr(tB)))
    e("v_lshlrev_b32 %s, 4, %s" % (vr(tB), vr(tB)))
    e("v_add_u32 %s, %s, %s" % (vr(tA), sr(sStart), vr(tA)))
    e("v_sub_u32 %s, %s, %s" % (vr(tC), vr(tA), vr(H)))
    e("v_add_u32 %s, 8, %s" % (vr(tC), vr(tC)))
    e("v_lshl_add_u32 %s, %s, 7, %s" % (vr(XT0), vr(tA), vr(tB)))
    e("v_lshl_add_u32 %s, %s, 7, %s" % (vr(XT1), vr(tC), vr(tB)))
    XPOS = int(opts.get('xpos', 0))
    def late_loads():
        if 'lt' in opts: e("s_waitcnt vmcnt(0) lgkmcnt(0)"); e("s_barrier"); stamp("l0")
        e("s_cmp_lt_u32 %s, 4" % sr(sW))
        e("s_cbranch_scc1 LATE_B")
        e("s_and_b32 s93, %s, 3" % sr(sW)); e("s_lshl_b32 s93, s93, 14")
        e("s_add_u32 m0, s93, %d" % XBB)
        e("s_mov_b32 s3, 4096")
        for k in range(4):
            e("buffer_load_dwordx4 %s, %s, 0 offen offset:%d %s lds" % (vr(L16), sr(SA, 4), k * 1024, opts.get('wf', '')))
        e("s_add_u32 m0, s93, %d" % (XBB + 8192))
        e("s_nop 0")
        for k in range(4):
            e("buffer_load_dwordx4 %s, %s, s3 offen offset:%d %s lds" % (vr(L16), sr(SA, 4), k * 1024, opts.get('wf', '')))
        if XPF:
            e("s_lshr_b32 s3, s2, 3"); e("s_mul_i32 s3, s3, %d" % (782 * 128))
            e("s_lshr_b32 s94, s93, 1"); e("s_mul_i32 s94, s94, %d" % XPF); e("s_add_u32 s3, s3, s94")
            e("v_lshl_add_u32 %s, %s, 7, s3" % (vr(tF), vr(lane)))
            for k in range(XPF):
                e("buffer_load_dword %s, %s, %s, 0 offen" % (vr(tE), vr(tF), sr(SX, 4)))
                if k + 1 < XPF: e("v_add_u32 %s, 8192, %s" % (vr(tF), vr(tF)))
        lab("LATE_B")
        if 'lt' in opts: e("s_waitcnt vmcnt(0)"); stamp("lw")
        small_loads()
        if 'lt' in opts: e("s_waitcnt vmcnt(0)"); stamp("lx")
    def small_loads():
        e("s_mov_b32 exec_hi, 0")
        for i in range(4):
            e("buffer_load_dword %s, %s, %s, 0 offen offset:%d %s" % (vr(WCR + i), vr(J4), sr(SB, 4), i * 128, opts.get('wf', '')))
        e("s_mov_b64 exec, -1")
        if 'lt' in opts: e("s_waitcnt vmcnt(0)"); stamp("lc")
        if 'X' not in opts.get('pfx', '') and not XPOS: xt_loads()
    def xt_loads():
        e("s_lshl_b32 s3, %s, 11" % sr(sW))
        e("s_add_u32 m0, s3, %d" % XTB)
        e("s_nop 0")
        e("buffer_load_dwordx4 %s, %s, 0 offen %s lds" % (vr(XT0), sr(SX, 4), opts.get('xtf', '')))
        e("s_add_u32 m0, s3, %d" % (XTB + 1024))
        e("s_nop 0")
        e("buffer_load_dwordx4 %s, %s, 0 offen %s lds" % (vr(XT1), sr(SX, 4), opts.get('xtf', '')))
    e("s_mul_i32 s3, s2, %d" % (CH * 16))
    NLATE = 0
    srd(SC_, 26, CH * 16, "s3")
    if not DF: srd(SOFS, 26, WS_OFF - WS_CMP + 256 * 8192, "0x%x" % WS_CMP)
    srd(SXI, 4, N_NODES, stride=128, sub="3072")
    if not DF: srd(SRC, 26, NC * CH, stride=16)
    PFX = opts.get('pfx', '')
    NPF = 0
    if PFX:
        e("v_lshlrev_b32 %s, 7, %s" % (vr(tA), vr(lane)))
    if 'c' in PFX or 'w' in PFX:
        e("s_cmp_lt_u32 s2, 248")
        e("s_cbranch_scc1 PF_SKIP")
        if 'c' in PFX:
            e("s_getpc_b64 s[96:97]")
            lab("PCREF")
            e("s_and_b32 s3, %s, 1" % sr(sW)); e("s_lshl_b32 s3, s3, 13")
            e("v_add_u32 %s, s3, %s" % (vr(tB), vr(tA)))
            e("v_min_u32 %s, K_END-PCREF, %s" % (vr(tB), vr(tB)))
            e("s_cmp_lt_u32 %s, 2" % sr(sW)); e("s_cselect_b64 exec, -1, 1")
            e("global_load_dword %s, %s, s[96:97]" % (vr(r.AT), vr(tB)))
        if 'w' in PFX:
            e("s_cmp_gt_u32 %s, 3" % sr(sW)); e("s_cselect_b64 exec, -1, 1")
            e("buffer_load_dword %s, %s, %s, 0 offen" % (vr(r.AT), vr(tA), sr(SA, 4)))
            e("s_mov_b64 exec, 15")
            e("buffer_load_dword %s, %s, %s, 0 offen" % (vr(r.AT), vr(tA), sr(SB, 4)))
        e("s_mov_b64 exec, -1")
        lab("PF_SKIP")
    if 'X' in PFX:
        xt_loads()
        NPF += 2
    if 'x' in PFX:
        e("s_mov_b64 exec, 0x01010101"); e("s_mov_b32 exec_hi, 0x01010101")
        e("buffer_load_dword %s, %s, %s, 0 offen" % (vr(r.AT), vr(XT0), sr(SX, 4)))
        e("buffer_load_dword %s, %s, %s, 0 offen" % (vr(r.AT), vr(XT1), sr(SX, 4)))
        e("s_mov_b64 exec, -1")
        NPF += 2
    if 's' in PFX:
        e("s_mov_b64 exec, 1")
        e("buffer_load_dword %s, %s, %s, 0 offen sc0 sc1" % (vr(r.AT), vr(T32B), sr(SC_, 4)))
        e("s_mov_b64 exec, -1")
        NPF += 1
    e("s_mov_b32 %s, 1024" % sr(sINC)); e("s_mov_b32 %s, 1024" % sr(sINC + 1))
    e("s_mov_b32 %s, 256" % sr(sINC2)); e("s_mov_b32 %s, 1024" % sr(sINC2 + 1))
    e("s_mov_b32 %s, 3072" % sr(sSO)); e("s_mov_b32 %s, 2048" % sr(sSO + 1)); e("s_mov_b32 %s, 1024" % sr(sSO + 2))
    e("s_mov_b32 %s, %d" % (sr(sLim), NC * CH))
    e("s_mov_b32 %s, 0" % sr(sW0)); e("s_mov_b32 %s, 1" % sr(sFirst)); e("s_mov_b32 %s, %d" % (sr(sSpin), SPINMAX))
    e("v_mov_b32 %s, 0x%x" % (vr(tA), (1 << 4) | (2 << 8) | (1 << 14) | (2 << 18)))
    e("v_lshlrev_b32 %s, 1, %s" % (vr(tB), vr(lane)))
    e("v_bfe_u32 %s, %s, %s, 2" % (vr(tA), vr(tA), vr(tB)))
    e("v_mul_u32_u24 %s, 0x8001, %s" % (vr(tA), vr(tA)))
    e("v_and_b32 %s, 0x10001, %s" % (vr(tA), vr(tA)))
    e("v_mul_u32_u24 %s, 0x3f80, %s" % (vr(tA), vr(tA)))
    e("v_lshlrev_b32 %s, 2, %s" % (vr(tB), vr(lane)))
    e("s_mov_b64 exec, 0x3ff")
    e("ds_write_b32 %s, %s offset:%d" % (vr(tB), vr(tA), TS))
    e("s_mov_b64 exec, -1")
    e("v_mul_u32_u24 %s, 140, %s" % (vr(tC), vr(lane)))
    e("v_lshrrev_b32 %s, 7, %s" % (vr(tC), vr(tC)))
    e("v_lshlrev_b32 %s, 19, %s" % (vr(tC), vr(tC)))
    e("v_or_b32 %s, 0x80ffff, %s" % (vr(tC), vr(tC)))
    e("s_mov_b64 exec, 0x3fff")
    e("ds_write_b32 %s, %s offset:%d" % (vr(tB), vr(tC), UTB))
    e("s_mov_b64 exec, -1")
    e("v_mul_u32_u24 %s, 11, %s" % (vr(tA), vr(lane)))
    e("v_lshrrev_b32 %s, 5, %s" % (vr(tA), vr(tA)))
    e("v_mad_i32_i24 %s, %s, -3, %s" % (vr(tB), vr(tA), vr(lane)))
    e("v_add_u32 %s, 1, %s" % (vr(tB), vr(tB)))
    e("v_lshl_add_u32 %s, %s, 1, 20" % (vr(tA), vr(tA)))
    e("v_lshlrev_b32 %s, %s, %s" % (vr(tC), vr(tA), vr(tB)))
    e("v_and_b32 %s, 3, %s" % (vr(tA), vr(lane)))
    e("v_add_u32 %s, 1, %s" % (vr(tA), vr(tA)))
    e("v_and_b32 %s, 12, %s" % (vr(tB), vr(lane)))
    e("v_lshl_add_u32 %s, %s, 1, 3" % (vr(tB), vr(tB)))
    e("v_lshlrev_b32 %s, %s, %s" % (vr(tD), vr(tB), vr(tA)))
    e("v_lshlrev_b32 %s, 3, %s" % (vr(tA), vr(lane)))
    e("v_xor_b32 %s, 0x80, %s" % (vr(tA), vr(tA)))
    e("s_mov_b64 exec, 0x10000")
    e("v_mov_b32 %s, 0" % vr(tC)); e("v_mov_b32 %s, 0" % vr(tD))
    e("s_mov_b64 exec, 0x1ffff")
    e("v_or_b32 %s, 0x40000, %s" % (vr(tC), vr(tC)))
    assert tD == tC + 1 and tC % 2 == 0
    e("ds_write_b64 %s, %s offset:%d" % (vr(tA), vr(tC, 2), RTB))
    e("s_mov_b64 exec, -1")
    e("s_mov_b32 %s, %d" % (sr(sKx), 800106))
    if 'perm' in opts: e("s_mov_b32 s9, 0x07060302")
    if 'fair' in opts or 'rpy' in opts:
        e("s_cmp_lt_u32 %s, 4" % sr(sW)); e("s_cselect_b64 s[10:11], -1, 0")
    if ROT:
        e("s_mul_i32 s3, %s, 123" % sr(sBin)); e("s_lshr_b32 s3, s3, 7"); e("s_sub_u32 s3, %d, s3" % (256 + MARG))
        e("s_and_b32 %s, s3, 255" % sr(sC0))
        e("s_mul_i32 %s, %s, %d" % (sr(sCB), sr(sC0), CH))
    if TP:
        e("v_lshrrev_b32 %s, 1, %s" % (vr(tA), vr(TID)))
        e("v_and_b32 %s, 16, %s" % (vr(r.TI), vr(T16)))
        e("v_lshl_or_b32 %s, %s, 13, %s" % (vr(r.TI), vr(tA), vr(r.TI)))
    e("v_and_b32 %s, 3, %s" % (vr(c0), vr(lane)))
    e("v_bfe_u32 %s, %s, 4, 1" % (vr(c1), vr(lane)))
    e("v_mul_u32_u24 %s, 0x5555, %s" % (vr(r.SI), vr(c1)))
    e("v_or_b32 %s, 0x8888, %s" % (vr(r.SI), vr(r.SI)))
    e("v_xor_b32 %s, %s, %s" % (vr(c2), vr(c0), vr(H)))
    e("v_lshl_or_b32 %s, %s, 2, %s" % (vr(c2), vr(c1), vr(c2)))
    e("v_lshlrev_b32 %s, 4, %s" % (vr(r.XI + 1), vr(c2)))
    e("v_mov_b32 %s, %s" % (vr(r.XI + 3), vr(r.XI + 1)))
    e("v_xor_b32 %s, 32, %s" % (vr(r.XI + 5), vr(r.XI + 1)))
    e("v_mov_b32 %s, %s" % (vr(r.XI + 7), vr(r.XI + 5)))
    e("v_bfe_u32 %s, %s, 3, 2" % (vr(c2), vr(lane)))
    e("v_xor_b32 %s, %s, %s" % (vr(c2), vr(c2), vr(H)))
    e("v_lshlrev_b32 %s, 4, %s" % (vr(r.XA0), vr(c2)))
    e("v_lshl_or_b32 %s, %s, 6, %s" % (vr(r.XA0), vr(c0), vr(r.XA0)))
    e("v_bfe_u32 %s, %s, 3, 1" % (vr(c2), vr(lane)))
    e("v_lshl_or_b32 %s, %s, 9, %s" % (vr(r.XA0), vr(c2), vr(r.XA0)))
    e("v_bfe_u32 %s, %s, 2, 1" % (vr(tA), vr(lane)))
    e("v_lshl_or_b32 %s, %s, 10, %s" % (vr(r.XA0), vr(tA), vr(r.XA0)))
    e("v_lshl_or_b32 %s, %s, 11, %s" % (vr(r.XA0), vr(c1), vr(r.XA0)))
    e("v_xor_b32 %s, 32, %s" % (vr(r.XA1), vr(r.XA0)))
    e("v_add_u32 %s, %s, %s" % (vr(r.XA0), sr(sXB), vr(r.XA0)))
    e("v_add_u32 %s, %s, %s" % (vr(r.XA1), sr(sXB), vr(r.XA1)))
    FA, FU = r.SO + 2, r.SO + 3
    e("v_lshl_or_b32 %s, %s, 1, %s" % (vr(c2), vr(tA), vr(c2)))
    e("v_lshl_or_b32 %s, %s, 1, %s" % (vr(c2), vr(c2), vr(c1)))
    e("v_mad_u32_u24 %s, %s, 3, %s" % (vr(c2), vr(c2), vr(c0)))
    e("v_add_u32 %s, 9, %s" % (vr(c2), vr(c2)))
    e("v_and_b32 %s, 15, %s" % (vr(c2), vr(c2)))
    for dst, src in ((FA, c2), (FU, None)):
        if src is None:
            e("v_and_b32 %s, 15, %s" % (vr(c2), vr(lane)))
        e("v_xor_b32 %s, %s, %s" % (vr(tA), vr(c2), vr(H)))
        e("v_and_b32 %s, 7, %s" % (vr(tA), vr(tA)))
        e("v_lshlrev_b32 %s, 4, %s" % (vr(tA), vr(tA)))
        e("v_lshl_or_b32 %s, %s, 7, %s" % (vr(dst), vr(c2), vr(tA)))
    e("v_lshlrev_b32 %s, 4, %s" % (vr(tA), vr(H)))
    e("v_mov_b32 %s, 0x3f80" % vr(tB))
    e("v_lshlrev_b32 %s, %s, %s" % (vr(r.T + 1), vr(tA), vr(tB)))
    e("v_mov_b32 %s, %s" % (vr(r.T + 2), vr(r.T + 1)))
    e("v_mov_b32 %s, %s" % (vr(r.T + 3), vr(r.T + 1)))
    e("s_lshl_b32 s3, %s, 2" % sr(sW))
    e("v_mov_b32 %s, s3" % vr(tE))
    e("v_and_b32 %s, 7, %s" % (vr(tF), vr(lane)))
    e("v_lshlrev_b32 %s, 2, %s" % (vr(tF), vr(tF)))
    e("s_waitcnt lgkmcnt(0)")
    e("s_barrier")
    if DF == 1: rest_loads()
    if DF == 2:
        for _ in range(NE2): e(RL.pop(0))
    e("s_waitcnt vmcnt(%d)" % (1 + NE + NE2 + NPF if DF == 2 else 7 + NPF))
    stamp("dst")
    mark(6)
    for rd in range(2):
        e("s_mov_b64 exec, s[%d:%d]" % (92 + 2 * rd, 93 + 2 * rd))
        e("s_cbranch_execz P1_A")
        for i in range(4 * rd, 4 * rd + 4):
            e("v_mul_u32_u24 %s, %d, %s" % (vr(DST + i), TMUL, vr(DST + i)))
            e("v_lshrrev_b32 %s, 14, %s" % (vr(HA + i), vr(DST + i)))
            e("v_and_b32 %s, 0x1ffc, %s" % (vr(HA + i), vr(HA + i)))
        for i in range(4 * rd, 4 * rd + 4):
            e("ds_add_rtn_u32 %s, %s, %s offset:%d" % (vr(RK + i), vr(HA + i), vr(ONE), HIST))
    lab("P1_A")
    e("s_mov_b64 exec, -1")
    if DF == 2: rest_loads()
    if XPOS == 3: xt_loads()
    for i in range(8):
        d = DST + i
        e("v_and_b32 %s, 0xffff, %s" % (vr(d), vr(d)))
        e("v_mul_hi_u32_u24 %s, %s, %s" % (vr(d), sr(sKx), vr(d)))
        e("v_lshlrev_b32 %s, 2, %s" % (vr(d), vr(d)))
    for i in range(8):
        e("ds_read_b32 %s, %s offset:%d" % (vr(DST + i), vr(DST + i), UTB))
    key = ["s_nop 0"] * 64
    e("s_waitcnt lgkmcnt(0)")
    e("s_barrier")
    stamp("hist")
    e("ds_read_b128 %s, %s offset:%d" % (vr(CN, 4), vr(T16), HIST))
    e("s_waitcnt lgkmcnt(0)")
    e("v_add_u32 %s, %s, %s" % (vr(ST + 2), vr(CN), vr(CN + 1)))
    e("v_add_u32 %s, %s, %s" % (vr(ST + 3), vr(ST + 2), vr(CN + 2)))
    e("v_add_u32 %s, %s, %s" % (vr(tA), vr(ST + 3), vr(CN + 3)))
    e("v_mov_b32 %s, %s" % (vr(tB), vr(tA)))
    CU = q + 96; NB = q + 100
    fill = ["v_max3_u32 %s, %s, %s, %s" % (vr(tC), vr(CN), vr(CN + 1), vr(CN + 2)),
            "v_max_u32 %s, %s, %s" % (vr(tC), vr(tC), vr(CN + 3)),
            "v_cmp_lt_u32 vcc, 14, %s" % vr(tC)]
    fill += ["v_min_u32 %s, 15, %s" % (vr(NB + i), vr(CN + i)) for i in range(4)]
    fill += ["v_lshl_or_b32 %s, %s, 4, %s" % (vr(NB), vr(NB + 1), vr(NB)),
             "v_lshl_or_b32 %s, %s, 4, %s" % (vr(NB + 2), vr(NB + 3), vr(NB + 2)),
             "v_lshl_or_b32 %s, %s, 8, %s" % (vr(NB), vr(NB + 2), vr(NB)),
             "v_lshrrev_b32 %s, 2, %s" % (vr(NB + 3), vr(T16)),
             "v_mov_b32_dpp %s, %s quad_perm:[1,1,3,3] row_mask:0xf bank_mask:0xf" % (vr(NB + 1), vr(NB))]
    scan64("v_add_u32", tB, fill)
    e("s_mov_b32 exec_lo, 0"); e("s_mov_b32 exec_hi, 0x80000000")
    e("ds_write_b32 %s, %s offset:%d" % (vr(tE), vr(tB), WTOT))
    e("s_mov_b64 exec, -1")
    e("s_waitcnt vmcnt(%d)" % (6 + NLATE + NPF + 2 * (XPOS == 3)))
    e("v_readfirstlane_b32 %s, %s" % (sr(sTag), vr(EP)))
    e("v_readfirstlane_b32 %s, %s" % (sr(sE2), vr(EP + 1)))
    e(key.pop(0)); e(key.pop(0))
    e("s_mul_i32 %s, %s, 1664525" % (sr(sTag), sr(sTag))); e("s_add_u32 %s, %s, 1013904223" % (sr(sTag), sr(sTag)))
    e("s_mul_i32 %s, %s, 22695477" % (sr(sE2), sr(sE2))); e("s_add_u32 %s, %s, 0x9e3779b9" % (sr(sE2), sr(sE2)))
    e("s_and_b32 %s, %s, 0xffff0000" % (sr(sTagH), sr(sE2)))
    e("s_lshr_b32 %s, %s, 24" % (sr(sTagB), sr(sE2)))
    e("s_and_b32 %s, %s, 0xff000000" % (sr(sKm), sr(sE2)))
    e("s_mov_b32 %s, 0xffff" % sr(sKx))
    e("s_waitcnt lgkmcnt(0)")
    e("s_barrier")
    e("ds_read_b32 %s, %s offset:%d" % (vr(tC), vr(tF), WTOT))
    e("v_lshl_or_b32 %s, %s, 16, %s" % (vr(CU), vr(NB + 1), vr(NB)))
    e("v_mov_b32 %s, %s" % (vr(CU + 3), sr(sTag)))
    e("s_nop 0")
    e("v_mov_b32_dpp %s, %s quad_perm:[2,2,2,2] row_mask:0xf bank_mask:0xf" % (vr(CU + 1), vr(CU)))
    e("s_waitcnt lgkmcnt(0)")
    e("v_mov_b32 %s, %s" % (vr(tD), vr(tC)))
    for sh in (1, 2, 4):
        e(key.pop(0)); e(key.pop(0))
        e("v_add_u32_dpp %s, %s, %s row_shr:%d row_mask:0xf bank_mask:0xf" % (vr(tD), vr(tD), vr(tD), sh))
    e("v_sub_u32 %s, %s, %s" % (vr(tD), vr(tD), vr(tC)))
    e(key.pop(0))
    e("v_readlane_b32 s3, %s, %s" % (vr(tD), sr(sW)))
    e("s_lshl_b32 s91, s2, 11")
    e("s_nop 0")
    e("v_add_u32 %s, s3, %s" % (vr(tB), vr(tB)))
    e("v_sub_u32 %s, %s, %s" % (vr(ST), vr(tB), vr(tA)))
    e("v_add_u32 %s, %s, %s" % (vr(ST + 1), vr(ST), vr(CN)))
    e("v_add_u32 %s, %s, %s" % (vr(ST + 2), vr(ST), vr(ST + 2)))
    e("v_add_u32 %s, %s, %s" % (vr(ST + 3), vr(ST), vr(ST + 3)))
    PUB = 0
    e("v_mov_b32_dpp %s, %s quad_perm:[2,2,2,2] row_mask:0xf bank_mask:0xf" % (vr(CU + 2), vr(ST)))
    e("ds_write_b128 %s, %s offset:%d" % (vr(T16), vr(ST, 4), HIST))
    e("v_lshl_or_b32 %s, %s, 12, %s" % (vr(CU + 2), vr(CU + 2), vr(ST)))
    e("v_or_b32 %s, %s, %s" % (vr(CU + 2), sr(sKm), vr(CU + 2)))
    e("s_cbranch_vccnz PUB_X")
    lab("PUB_C")
    e("s_mov_b32 exec_lo, 0x11111111"); e("s_mov_b32 exec_hi, 0x11111111")
    e("buffer_store_dwordx4 %s, %s, %s, s91 offen %s" % (vr(CU, 4), vr(NB + 3), sr(SOFS, 4), STF))
    e("s_mov_b64 exec, -1")
    e("s_waitcnt lgkmcnt(0)")
    e("s_barrier")
    stamp("scan")
    mark(5)
    for i in range(8):
        e("ds_read_b32 %s, %s offset:%d" % (vr(HA + i), vr(HA + i), HIST))
    e("s_waitcnt vmcnt(%d)" % (NLATE + (PUB == 0) + 2 * (XPOS in (3, 4))))
    stamp("inputs")
    mark(9)
    def assemble(rd):
        for k in range(2 * rd, 2 * rd + 2):
            e("v_mov_b32 %s, %s" % (vr(EA + 8 * k + 4), vr(EA + 8 * k + 2)))
            e("v_mov_b32 %s, %s" % (vr(EA + 8 * k + 5), vr(EA + 8 * k + 3)))
        for i in range(4 * rd, 4 * rd + 4):
            e("v_bitop3_b32 %s, %s, %s, %s bitop3:0x96" % (vr(EA + 4 * i + 2), vr(DST + i), vr(SRCV + i), sr(sKm)))
            e("v_mov_b32 %s, %s" % (vr(EA + 4 * i + 3), sr(sTag)))
    for rd in range(2):
        e("s_mov_b64 exec, s[%d:%d]" % (92 + 2 * rd, 93 + 2 * rd))
        e("s_cbranch_execz P1_B")
        assemble(rd)
        e("s_waitcnt lgkmcnt(4)")
        for i in range(4 * rd, 4 * rd + 4):
            e("v_add_lshl_u32 %s, %s, %s, 4" % (vr(HA + i), vr(RK + i), vr(HA + i)))
        for i in range(4 * rd, 4 * rd + 4):
            e("ds_write_b128 %s, %s offset:%d" % (vr(HA + i), vr(EA + 4 * i, 4), RECB))
    lab("P1_B")
    e("s_mov_b64 exec, -1")
    if PUB == 2: e(pub)
    SF = int(opts.get('sf', 0))
    SFP = int(opts.get('sfp', 0))
    if not SF or SFP: late_loads()
    PA = tA; PW_ = tB; PC2 = ST
    e("v_and_b32 %s, 255, %s" % (vr(tC), vr(TID)))
    e("v_lshlrev_b32 %s, 11, %s" % (vr(PA), vr(tC)))
    e("s_lshr_b32 s97, %s, 1" % sr(sBin)); e("s_lshl_b32 s97, s97, 4")
    poll = ["buffer_load_dwordx4 %s, %s, %s, s97 offen %s" % (vr(PC_, 4), vr(PA), sr(SOFS, 4), PLF)]
    e("v_lshlrev_b32 %s, 2, %s" % (vr(PW_), vr(tC)))
    e("v_add_u32 %s, %d, %s" % (vr(PW_), PCB, vr(PW_)))
    e("v_add_u32 %s, %d, %s" % (vr(c2), XBB + 4096, vr(L16)))
    WL = r.WB; WH = r.WB + 16; WP = r.WV
    e("s_mov_b32 s92, 0x%x" % NEGLOG2E)
    EN = r.G[1]; Z = r.V[1]; P = r.V[1] + 4; D = r.V[1] + 8
    LA, CB, PREV, JB = [r.V[1] + 12 + i for i in range(4)]
    TOT, INC, C512, W4 = r.PS, r.PC, r.PT, r.PE
    M = r.S
    def expand_pre():
        for i in range(4): e("v_mov_b32 %s, 0" % vr(Z + i))
        e("v_lshl_add_u32 %s, %s, 5, %s" % (vr(LA), vr(lane), sr(sREC)))
        e("v_mul_u32_u24 %s, %d, %s" % (vr(CB), 4 * CH, vr(lane)))
        e("v_subrev_u32 %s, %s, %s" % (vr(CB), sr(sW0), vr(CB)))
        if ROT:
            e("s_add_u32 s3, %s, %s" % (sr(sW0), sr(sCB)))
            e("v_lshl_add_u32 %s, %s, 3, s3" % (vr(JB), vr(lane)))
        else:
            e("v_lshl_add_u32 %s, %s, 3, %s" % (vr(JB), vr(lane), sr(sW0)))
        e("v_mov_b32 %s, 512" % vr(C512))
        e("v_mov_b32 %s, 0" % vr(PREV))
        e("v_lshl_add_u32 %s, %s, 2, %s" % (vr(r.PL), vr(lane), sr(sREC)))
        e("s_lshl_b32 s3, %s, 2" % sr(sW))
        e("v_mov_b32 %s, s3" % vr(W4))
    def zero_list():
        e("ds_write_b128 %s, %s offset:%d" % (vr(LA), vr(Z, 4), LOFF))
        e("ds_write_b128 %s, %s offset:%d" % (vr(LA), vr(Z, 4), LOFF + 16))
    expand_pre()
    e("s_lshl_b32 s3, %s, 10" % sr(sW)); e("s_add_u32 s3, s3, %d" % PCB)
    e("v_add_u32 %s, s3, %s" % (vr(r.RI), vr(L16)))
    if int(opts.get('early', 1)) == 2:
        e("s_cmp_lt_u32 %s, 4" % sr(sW))
        e("s_cbranch_scc1 P1_P")
        for t in poll: e(t)
        lab("P1_P")
    e("s_waitcnt lgkmcnt(0)")
    e("s_barrier")
    stamp("scatter")
    mark(7)
    if PUB == 1: e(pub)
    ST8 = int(opts.get('st8', 0))
    EARLY = int(opts.get('early', 1))
    if ST8:
        NS = 7
        if EARLY == 1:
            e("s_cmp_lt_u32 %s, 4" % sr(sW))
            e("s_cbranch_scc1 P1_S")
            for t in poll: e(t)
            lab("P1_S")
        CO = DST
        e("s_cmp_lt_u32 s2, %d" % NC)
        e("s_cselect_b32 %s, %s, 0" % (sr(SC_ + 2), sr(SC_ + 2)))
        for k in range(NS):
            e("ds_read_b128 %s, %s offset:%d" % (vr(CO + 4 * k, 4), vr(T16), RECB + 8192 * k))
        e("v_add_u32 %s, 49152, %s" % (vr(T32), vr(T16)))
        for k in range(NS):
            if k < NS - 1: e("s_mov_b32 s3, %d" % (8192 * k))
            e("s_waitcnt lgkmcnt(%d)" % (NS - 1 - k))
            if k < NS - 1: e("buffer_store_dwordx4 %s, %s, %s, s3 offen %s" % (vr(CO + 4 * k, 4), vr(T16), sr(SC_, 4), STF))
            else: e("buffer_store_dwordx4 %s, %s, %s, 0 offen %s" % (vr(CO + 4 * k, 4), vr(T32), sr(SC_, 4), STF))
        e("s_waitcnt vmcnt(%d)" % NS)
        e("s_cmp_lt_u32 %s, 4" % sr(sW))
        e("s_cbranch_scc1 POLL_DONE")
    else:
        e("s_cmp_gt_u32 %s, 3" % sr(sW))
        e("s_cbranch_scc1 P1_D")
        e("s_cmp_ge_u32 s2, %d" % NC)
        e("s_cbranch_scc1 P1_N")
        if DELAY:
            e("s_and_b32 s3, s2, 15"); e("s_cmp_lg_u32 s3, 5"); e("s_cbranch_scc1 P1_ND")
            for _ in range(DELAY): e("s_sleep 100")
            lab("P1_ND")
        if ROT:
            CO = DST; CA = q + 60
            e("s_mul_i32 s3, s2, 13"); e("s_lshr_b32 s3, s3, 8"); e("s_sub_u32 s3, 13, s3"); e("s_lshl_b32 s3, s3, 12")
            for k in range(13):
                e("s_cmp_eq_u32 s3, %d" % (13 * 4096)); e("s_cselect_b32 s3, 0, s3")
                e("v_add_u32 %s, s3, %s" % (vr(CA + k), vr(T16)))
                e("ds_read_b128 %s, %s offset:%d" % (vr(CO + 4 * k, 4), vr(CA + k), RECB))
                if k < 12: e("s_add_u32 s3, s3, 4096")
                if k >= 3:
                    e("s_waitcnt lgkmcnt(3)")
                    e("buffer_store_dwordx4 %s, %s, %s, 0 offen %s" % (vr(CO + 4 * (k - 3), 4), vr(CA + k - 3), sr(SC_, 4), STF))
            for k in range(10, 13):
                e("s_waitcnt lgkmcnt(%d)" % (12 - k))
                e("buffer_store_dwordx4 %s, %s, %s, 0 offen %s" % (vr(CO + 4 * k, 4), vr(CA + k), sr(SC_, 4), STF))
        else:
            CO = DST
            for k in range(13):
                e("ds_read_b128 %s, %s offset:%d" % (vr(CO + 4 * k, 4), vr(T16), RECB + 4096 * k))
            e("v_add_u32 %s, 49152, %s" % (vr(T32), vr(T16)))
            for k in range(13):
                if SF and k == SF: e("s_barrier")
                if k < 12: e("s_mov_b32 s3, %d" % (4096 * k))
                e("s_waitcnt lgkmcnt(%d)" % (12 - k))
                if k < 12: e("buffer_store_dwordx4 %s, %s, %s, s3 offen %s" % (vr(CO + 4 * k, 4), vr(T16), sr(SC_, 4), STF))
                else: e("buffer_store_dwordx4 %s, %s, %s, 0 offen %s" % (vr(CO + 4 * k, 4), vr(T32), sr(SC_, 4), STF))
        if SF:
            if SF == 13: e("s_barrier")
            e("s_branch P1_M")
            lab("P1_N")
            e("s_barrier")
            lab("P1_M")
            if not SFP: small_loads()
        else:
            e("s_waitcnt vmcnt(13)")
            e("s_branch POLL_DONE")
            lab("P1_N")
            e("s_waitcnt vmcnt(0)")
        e("s_branch POLL_DONE")
        lab("P1_D")
        if SF: e("s_barrier")
        if EARLY == 1:
            for t in poll: e(t)
        if SF and not SFP: late_loads()
    e("v_lshl_add_u32 %s, %s, 10, %s" % (vr(tC), vr(H), vr(J4)))
    e("s_add_u32 s3, s93, %d" % XBB)
    e("v_add_u32 %s, s3, %s" % (vr(tC), vr(tC)))
    if SF: e("s_waitcnt vmcnt(%d)" % (7 if SFP else 6))
    elif not ST8: e("s_waitcnt vmcnt(%d)" % ((8 if int(opts.get("early", 1)) else 7) + (PUB == 1) + XPF - 1 - 2 * ('X' in PFX or XPOS > 0)))
    mark(12)
    RAW = DST
    for i in range(32):
        e("ds_read_b32 %s, %s offset:%d" % (vr(RAW + i), vr(tC), (i >> 4) * 8192 + ((i >> 3) & 1) * 2048 + (i & 7) * 128))
    e("s_bitcmp0_b32 %s, 0" % sr(sW))
    e("s_cselect_b32 s3, s92, 1.0")
    e("v_add_u32 %s, s93, %s" % (vr(tC), vr(c2)))
    for hf in range(2):
        e("s_waitcnt lgkmcnt(%d)" % (15 if hf == 0 else 4))
        if hf == 0: e("s_nop 0")
        for i in range(16):
            e("v_lshlrev_b32 %s, 16, %s" % (vr(WL + i), vr(RAW + 16 * hf + i)))
            e("v_and_b32 %s, 0xffff0000, %s" % (vr(WH + i), vr(RAW + 16 * hf + i)))
        for i in range(0, 32, 2):
            e("v_pk_mul_f32 %s, %s, s[2:3] op_sel:[0,1] op_sel_hi:[1,1]" % (vr(WL + i, 2), vr(WL + i, 2)))
        for i in range(16):
            e("v_cvt_pk_bf16_f32 %s, %s, %s" % (vr(WP + 16 * hf + i), vr(WL + 2 * i), vr(WL + 2 * i + 1)))
        for f in range(2):
            for s_ in range(2):
                e("ds_write_b128 %s, %s offset:%d" % (vr(tC), vr(WP + 16 * hf + 8 * f + 4 * s_, 4), f * 8192 + (2 * hf + s_) * 1024))
    if not int(opts.get('early', 1)):
        for t in poll: e(t)
    mark(13)
    stamp("wconv")
    if ST8: e("s_branch POLL_1")
    lab("POLL")
    e("s_waitcnt vmcnt(0)")
    e("v_cmp_ne_u32 vcc, %s, %s" % (sr(sTag), vr(PC_ + 3)))
    e("v_cmp_ne_u32_sdwa %s, %s, %s src0_sel:BYTE_3 src1_sel:DWORD" % (sr(sM1, 2), vr(PC_ + 2), sr(sTagB)))
    e("s_or_b64 vcc, vcc, %s" % sr(sM1, 2))
    e("s_cbranch_scc0 POLL_OK")
    e("s_mov_b64 exec, vcc")
    for t in poll: e(t)
    e("s_sub_u32 %s, %s, 1" % (sr(sSpin), sr(sSpin)))
    e("s_cbranch_scc0 POLL")
    e("s_endpgm")
    lab("POLL_OK")
    e("s_mov_b64 exec, -1")
    SS_ = q + 8; EX = q + 20
    e("s_bitcmp1_b32 %s, 0" % sr(sBin))
    e("s_cselect_b32 s3, 12, 0")
    e("s_cbranch_scc0 POLL_E")
    e("v_mov_b32 %s, %s" % (vr(PC_), vr(PC_ + 1)))
    lab("POLL_E")
    e("v_bfe_u32 %s, %s, s3, 12" % (vr(SS_), vr(PC_ + 2)))
    e("v_lshrrev_b32 %s, 1, %s" % (vr(c0), vr(PC_)))
    e("v_and_b32 %s, %s, %s" % (vr(c0), vr(c0), vr(PC_)))
    e("v_lshrrev_b32 %s, 2, %s" % (vr(c1), vr(c0)))
    e("v_and_b32 %s, %s, %s" % (vr(c0), vr(c0), vr(c1)))
    e("v_and_b32 %s, 0x11111111, %s" % (vr(c0), vr(c0)))
    e("v_cmp_ne_u32 vcc, 0, %s" % vr(c0))
    for k in range(8):
        e("v_bfe_u32 %s, %s, %d, 4" % (vr(c1), vr(PC_), 4 * k))
        e("v_add_u32 %s, %s, %s" % (vr(SS_ + k + 1), vr(c1), vr(SS_ + k)))
    for k in range(8):
        e("v_lshl_or_b32 %s, %s, 16, %s" % (vr(SS_ + k), vr(SS_ + k + 1), vr(SS_ + k)))
    e("s_cbranch_vccnz ESCAPE")
    lab("ESC_DONE")
    for k in range(8):
        e("ds_write_b32 %s, %s offset:%d" % (vr(PW_), vr(SS_ + k), k * 1024))
    lab("POLL_DONE")
    if XPOS == 2: xt_loads()
    stamp("role")
    mark(10, 11)
    e("s_waitcnt lgkmcnt(0)")
    e("s_barrier")
    stamp("offs")
    mark(4)
    wr = []
    WA = r.G[0]; WU = r.G[1]
    for m, base in enumerate([WA, WU, r.WB, r.WV]):
        for u in range(8):
            uu = m * 8 + u
            wr.append("ds_read_b128 %s, %s offset:%d" % (vr(base + 4 * u, 4), vr(c2), (uu >> 2) * 8192 + (uu & 3) * 1024))
    e("ds_read_b128 %s, %s" % (vr(EN, 4), vr(r.RI)))
    zero_list()
    for t in wr[16:24]: e(t)
    if XPOS == 1: xt_loads()
    XQ = int(opts.get('xq', 0))
    if XQ:
        e("s_lshr_b32 s3, s2, 3"); e("s_mul_i32 s3, s3, %d" % (782 * 128))
        e("s_mul_i32 s97, %s, %d" % (sr(sW), 98 * 128)); e("s_add_u32 s3, s3, s97")
        e("v_lshl_add_u32 %s, %s, 7, s3" % (vr(c1), vr(lane)))
        if XQ < 64: e("s_mov_b64 exec, 0x%x" % ((1 << XQ) - 1) if XQ <= 31 else "s_mov_b32 exec_hi, 0x%x" % ((1 << (XQ - 32)) - 1))
        e("buffer_load_dword %s, %s, %s, 0 offen" % (vr(r.T), vr(c1), sr(SX, 4)))
        if XQ > 64:
            e("s_mov_b32 exec_hi, 3")
            e("v_add_u32 %s, 8192, %s" % (vr(c1), vr(c1)))
            e("buffer_load_dword %s, %s, %s, 0 offen" % (vr(r.T), vr(c1), sr(SX, 4)))
        e("s_mov_b64 exec, -1")
    e("s_or_b32 s3, s2, %s" % sr(sW))
    e("s_cbranch_scc1 NOBUMP")
    e("v_mov_b32 %s, %s" % (vr(r.RD), sr(sTag))); e("v_mov_b32 %s, %s" % (vr(r.RD + 1), sr(sE2)))
    e("v_lshlrev_b32 %s, 3, %s" % (vr(c1), vr(lane)))
    e("buffer_store_dwordx2 %s, %s, %s, 0 offen sc0 sc1" % (vr(r.RD, 2), vr(c1), sr(SOUT, 4)))
    lab("NOBUMP")
    e("s_waitcnt lgkmcnt(10)")

    def xidx(g, t): return "ds_read_u16 %s, %s offset:%d" % (vr(r.XI + 2 * t), vr(r.PS), g * 512 + SOFF[t] + 8)
    def xm0(buf): return "s_add_u32 m0, %s, %d" % (sr(sXB), buf * 4096)
    def xdma(t): return "buffer_load_dwordx4 %s, %s, %s idxen offen offset:%d lds" % (vr(r.XI + 2 * t, 2), sr(SXI, 4), sr(sSO + t) if t < 3 else "0", t * 1024)
    def xread(buf, k): return "ds_read_b128 %s, %s offset:%d" % (vr(r.X + 4 * k, 4), vr(r.XA1 if k & 1 else r.XA0), buf * 4096 + (k >> 1) * 256)
    def t0read(g): return "ds_read_b32 %s, %s offset:%d" % (vr(r.T), vr(r.PE), g * 512)
    def tiread(g): return "ds_read_b32 %s, %s offset:%d" % (vr(r.TI), vr(r.PT), g * 512 + 8)
    def soread(g, t): return "ds_read_u8 %s, %s offset:%d" % (vr(r.SO + t), vr(r.PC), g * 512 + SOFF[t] + 12)
    def trread(t): return "ds_read_b64_tr_b16 %s, %s offset:%d" % (vr(r.S + 2 * t, 2), vr(r.SO + t), TS)
    def riread(blk, ri=None): return "ds_read_b32 %s, %s offset:%d" % (vr(r.RI if ri is None else ri), vr(r.PL), LOFF + blk * 256)
    def rload(rd, ri, fl=None): return "buffer_load_dwordx4 %s, %s, %s, 0 idxen %s" % (vr(rd, 4), vr(ri), sr(SRC, 4), RLF if fl is None else fl)
    retries = []
    def check(rd, ri, name, tmp):
        retries.append((name, rd, ri))
        return ["v_cmp_gt_u32 %s, %s, %s" % (sr(sM0, 2), sr(sLim), vr(ri)),
                name + ":",
                "v_cmp_ne_u32 vcc, %s, %s" % (sr(sTag), vr(rd + 3)),
                "v_cmp_ne_u32_sdwa %s, %s, %s src0_sel:BYTE_3 src1_sel:DWORD" % (sr(sM1, 2), vr(rd + 2), sr(sTagB)),
                "v_bfe_u32 %s, %s, 16, 8" % (vr(tmp), vr(rd + 2)),
                "s_or_b64 vcc, vcc, %s" % sr(sM1, 2),
                "s_and_b64 vcc, vcc, %s" % sr(sM0, 2),
                "s_cbranch_scc1 %s_R" % name]
    def keyfix(rd, sel, op=0x72): return "v_bitop3_b32 %s, %s, %s, %s bitop3:0x%x" % (vr(rd + 2), vr(sel), vr(rd + 2), sr(sKx), op)
    def lookup(rd, tmp, sel):
        return ["ds_read_b32 %s, %s offset:%d" % (vr(sel), vr(tmp), RTB),
                "ds_read_b32 %s, %s offset:%d" % (vr(rd + 3), vr(tmp), RTB + 4)]
    def rwrite(rd, blk): return "ds_write_b128 %s, %s offset:%d" % (vr(r.PW), vr(rd, 4), blk * 1024)
    def emit(lst):
        for t in lst:
            if t.endswith(":"): L.append(t)
            else: e(t)
    KX = c2 + 0

    lab("EXPAND")
    sd2 = "dst_sel:DWORD dst_unused:UNUSED_PAD src0_sel:WORD_1 src1_sel:WORD_0"
    sd = "dst_sel:DWORD dst_unused:UNUSED_PAD src0_sel:WORD_0 src1_sel:DWORD"
    for i in range(3): e("v_sub_u32_sdwa %s, %s, %s %s" % (vr(P + 1 + i), vr(EN + i), vr(EN + i), sd2))
    e("v_sub_u32_sdwa %s, %s, %s %s" % (vr(INC), vr(EN + 3), vr(EN + 3), sd2))
    e("v_add_u32 %s, %s, %s" % (vr(P + 2), vr(P + 1), vr(P + 2)))
    e("v_add_u32 %s, %s, %s" % (vr(P + 3), vr(P + 2), vr(P + 3)))
    e("v_add_u32 %s, %s, %s" % (vr(INC), vr(P + 3), vr(INC)))
    fill = ["v_add_u32 %s, %s, %s" % (vr(TOT), sr(sW0), vr(INC))]
    fill += ["v_add_u32_sdwa %s, %s, %s %s" % (vr(D + i), vr(EN + i), vr(CB), sd) for i in range(4)]
    fill += ["v_add_u32 %s, %d, %s" % (vr(D + i), i * CH, vr(D + i)) for i in range(1, 4)]
    fill += ["v_sub_u32 %s, %s, %s" % (vr(P + i), vr(P + i), vr(TOT)) for i in range(1, 4)]
    scan64("v_add_u32", INC, fill)
    e("v_sub_u32 %s, %s, %s" % (vr(P), vr(INC), vr(TOT)))
    e("v_readlane_b32 %s, %s, 63" % (sr(sTot), vr(INC)))
    for i in range(1, 4):
        e("v_add_u32 %s, %s, %s" % (vr(P + i), vr(INC), vr(P + i)))
    for i in range(4):
        e("v_sub_u32 %s, %s, %s" % (vr(D + i), vr(D + i), vr(P + i)))
        e("v_med3_i32 %s, %s, 0, %s" % (vr(P + i), vr(P + i), vr(C512)))
        e("v_lshl_add_u32 %s, %s, 2, %s" % (vr(P + i), vr(P + i), sr(sREC)))
    for i in range(4):
        e("ds_max_u32 %s, %s offset:%d" % (vr(P + i), vr(D + i), LOFF))
    if ROT:
        e("s_sub_u32 s3, %s, %s" % (sr(sTot), sr(sW0))); e("s_min_u32 s3, s3, 512"); e("s_lshl_b32 s3, s3, 2"); e("s_add_u32 s3, s3, %s" % sr(sREC))
        e("v_mov_b32 %s, s3" % vr(P)); e("v_mov_b32 %s, 2.0" % vr(D))
        e("s_mov_b64 exec, 1")
        e("ds_write_b32 %s, %s offset:%d" % (vr(P), vr(D), LOFF))
        e("s_mov_b64 exec, -1")
    e("ds_read_b128 %s, %s offset:%d" % (vr(M, 4), vr(LA), LOFF))
    e("ds_read_b128 %s, %s offset:%d" % (vr(M + 4, 4), vr(LA), LOFF + 16))
    e("s_lshl_b32 s3, %s, 3" % sr(sTot)); e("s_or_b32 s3, s3, %s" % sr(sW))
    e("v_mov_b32 %s, s3" % vr(TOT))
    e("s_mov_b64 exec, 1")
    e("ds_write_b32 %s, %s offset:%d" % (vr(W4), vr(TOT), TOTA))
    e("s_mov_b64 exec, -1")
    e("s_cmp_eq_u32 %s, 0" % sr(sFirst))
    e("s_cbranch_scc1 EXP_B")
    for t in wr[24:32]: e(t)
    e("s_waitcnt lgkmcnt(9)")
    e("s_branch EXP_C")
    lab("EXP_B")
    e("s_waitcnt lgkmcnt(1)")
    lab("EXP_C")
    e("v_max3_u32 %s, %s, %s, %s" % (vr(INC), vr(M), vr(M + 1), vr(M + 2)))
    e("v_max3_u32 %s, %s, %s, %s" % (vr(INC), vr(INC), vr(M + 3), vr(M + 4)))
    e("v_max3_u32 %s, %s, %s, %s" % (vr(INC), vr(INC), vr(M + 5), vr(M + 6)))
    e("v_max_u32 %s, %s, %s" % (vr(INC), vr(INC), vr(M + 7)))
    scan64("v_max_u32", INC, ["v_max_u32 %s, %s, %s" % (vr(M + k), vr(M + k - 1), vr(M + k)) for k in range(1, 8)])
    e("s_nop 1")
    e("v_mov_b32_dpp %s, %s wave_shr:1 row_mask:0xf bank_mask:0xf" % (vr(PREV), vr(INC)))
    for k in range(8):
        e("v_max_u32 %s, %s, %s" % (vr(M + k), vr(PREV), vr(M + k)))
        e("v_add3_u32 %s, %s, %s, %d" % (vr(M + k), vr(M + k), vr(JB), k))
        if ROT:
            e("v_subrev_u32 %s, %d, %s" % (vr(INC), 256 * CH, vr(M + k)))
            e("v_min_u32 %s, %s, %s" % (vr(M + k), vr(INC), vr(M + k)))
    e("ds_write_b128 %s, %s offset:%d" % (vr(LA), vr(M, 4), LOFF))
    e("ds_write_b128 %s, %s offset:%d" % (vr(LA), vr(M + 4, 4), LOFF + 16))
    RI1 = r.TI; RD1 = r.S; F0 = r.XI; F1 = r.XI + 2
    e("v_lshrrev_b32 %s, 3, %s" % (vr(c0), vr(lane)))
    e("v_lshlrev_b32 %s, 2, %s" % (vr(c0), vr(c0)))
    e("v_and_b32 %s, 7, %s" % (vr(c1), vr(lane)))
    e("v_lshlrev_b32 %s, 3, %s" % (vr(r.XI + 4), vr(c1)))
    e("v_lshlrev_b32 %s, 2, %s" % (vr(c1), vr(c1)))
    e("s_sub_u32 s3, 7, %s" % sr(sW)); e("s_sub_u32 s97, %s, 4" % sr(sW))
    e("s_cmp_lt_u32 %s, 4" % sr(sW)); e("s_cselect_b32 s97, s3, s97")
    e("s_waitcnt lgkmcnt(0)")
    def pointers():
        e("v_bfe_u32 %s, %s, 2, 2" % (vr(c0), vr(lane)))
        e("v_lshrrev_b32 %s, 5, %s" % (vr(c1), vr(lane)))
        e("v_lshl_or_b32 %s, %s, 3, %s" % (vr(c0), vr(c1), vr(c0)))
        e("v_lshl_add_u32 %s, %s, 4, %s" % (vr(r.PS), vr(c0), sr(sREC)))
        e("v_and_b32 %s, 3, %s" % (vr(c0), vr(lane)))
        e("v_add_u32 %s, %s, %s" % (vr(r.PC), vr(c0), vr(r.PS)))
        e("v_and_b32 %s, 31, %s" % (vr(c0), vr(lane)))
        e("v_lshl_add_u32 %s, %s, 4, %s" % (vr(r.PT), vr(c0), sr(sREC)))
        e("v_lshl_add_u32 %s, %s, 2, %s" % (vr(r.PE), vr(c1), vr(r.PT)))
        e("v_lshl_add_u32 %s, %s, 4, %s" % (vr(r.PW), vr(lane), sr(sREC)))
        e("s_min_u32 %s, %s, %s" % (sr(sTot), sr(sTot), sr(sLim)))
        e("s_sub_u32 s3, %s, %s" % (sr(sTot), sr(sW0)))
        e("s_min_u32 s3, s3, 512")
        e("s_add_u32 s3, s3, 31")
        e("s_bitcmp0_b32 s3, 4")
        e("s_cselect_b32 %s, 0, -1" % sr(sRET))
        e("s_lshr_b32 s3, s3, 5")
        e("s_max_u32 s3, s3, 1")
        e("s_sub_u32 %s, s3, 1" % sr(sNG))
        e("s_mov_b32 %s, 2" % sr(sBLK))
    e("s_cmp_eq_u32 %s, 0" % sr(sFirst))
    e("s_cbranch_scc1 LATER")
    stamp("expand")
    if SF or XPOS in (1, 2): e("s_waitcnt vmcnt(0)")
    e("s_barrier")
    e("ds_read_b32 %s, %s offset:%d" % (vr(c0), vr(c0), TOTA))
    e("ds_read_b32 %s, %s offset:%d" % (vr(c1), vr(c1), TOTA))
    for s in wr[8:12]: e(s)
    e("s_waitcnt lgkmcnt(4)")
    e("v_cmp_lt_u32 vcc, %s, %s" % (vr(c1), vr(c0)))
    e(wr[12]); e(wr[13])
    e("v_lshrrev_b64 %s, %s, vcc" % (vr(r.SO, 2), vr(r.XI + 4)))
    e("v_and_b32 %s, 0xff, %s" % (vr(r.SO), vr(r.SO)))
    e("v_bcnt_u32_b32 %s, %s, 0" % (vr(r.SO), vr(r.SO)))
    e("v_cmp_eq_u32 vcc, s97, %s" % vr(r.SO))
    e("s_ff1_i32_b64 s97, vcc")
    e("v_readlane_b32 %s, %s, s97" % (sr(sTot), vr(c1)))
    e("s_lshl_b32 %s, s97, 11" % sr(sXT)); e("s_add_u32 %s, %s, %d" % (sr(sXT), sr(sXT), XTB))
    e("s_lshl_b32 %s, s97, 13" % sr(sREC)); e("s_add_u32 %s, %s, %d" % (sr(sREC), sr(sREC), RECB))
    e("v_lshl_add_u32 %s, %s, 2, %s" % (vr(r.PL), vr(lane), sr(sREC)))
    e(riread(0)); e(riread(1, RI1))
    def xtile(mapreg, dst):
        e("v_add_u32 %s, %s, %s" % (vr(mapreg), sr(sXT), vr(mapreg)))
        tm = [mapreg, c0, c1, r.SO]
        for s in range(1, 4): e("v_xor_b32 %s, %d, %s" % (vr(tm[s]), 32 * s, vr(mapreg)))
        for s in range(4): e("ds_read_b128 %s, %s" % (vr(dst + 4 * s, 4), vr(tm[s])))
    NU = int(opts.get('nu', 16))
    xtile(FU, r.AT)
    RP = int(opts.get('rp', 8)); RP1 = int(opts.get('rp1', RP))
    if RP < 0:
        e("s_waitcnt lgkmcnt(4)")
        e(rload(r.RD, r.RI, RL0))
        if RP1 < 0: e(rload(RD1, RI1, RL0))
    e(wr[14]); e(wr[15])
    xtile(FA, r.X)
    for s in wr[0:8]: e(s)
    WT = r.ACC[0]
    for i in range(4):
        e("v_lshlrev_b32 %s, 16, %s" % (vr(WT + i), vr(WCR + i)))
        e("v_and_b32 %s, 0xffff0000, %s" % (vr(WT + 4 + i), vr(WCR + i)))
    for i in range(8):
        e("v_mul_f32 %s, s92, %s" % (vr(WT + i), vr(WT + i)))
    for i in range(4):
        e("v_cvt_pk_bf16_f32 %s, %s, %s" % (vr(WCR + i), vr(WT + 2 * i), vr(WT + 2 * i + 1)))
    e("s_lshr_b32 %s, %s, 3" % (sr(sTot), sr(sTot)))
    e("s_lshl_b32 %s, %s, 3" % (sr(sT), sr(sBin))); e("s_add_u32 %s, %s, s97" % (sr(sT), sr(sT)))
    ua = []
    for f in range(2):
        for s in range(4):
            ua.append(mfma(r.ACC[f], r.AT + 4 * s, WU + 16 * f + 4 * s, None if s == 0 else r.ACC[f]))
    for f in range(2):
        for s in range(4):
            ua.append(mfma(WU + 16 * f, r.X + 4 * s, WA + 16 * f + 4 * s, None if s == 0 else WU + 16 * f))
    n0 = len(L)
    pointers()
    tile_range()
    e("s_min_u32 %s, %s, %d" % (sr(sEnd), sr(sEnd), N_NODES))
    e("s_sub_u32 s3, %s, %s" % (sr(sEnd), sr(sStart))); e("s_lshl_b32 s3, s3, 7")
    e("s_lshl_b32 s97, %s, 7" % sr(sStart))
    srd(SOUT, 22, "s3", "s97")
    misc = L[n0:]; del L[n0:]
    RPY = int(opts.get('rpy', 0))
    def young():
        e("s_cbranch_vccnz RY_B"); e(rload(r.RD, r.RI, RL0)); e(rload(RD1, RI1, RL0)); lab("RY_B")
    if RPY: e("s_mov_b64 vcc, s[10:11]")
    e("s_waitcnt lgkmcnt(12)")
    for k in range(NU):
        if k == 8: e("s_waitcnt lgkmcnt(0)")
        if RPY and k == RP:
            e("s_cbranch_vccz RY_A"); e(rload(r.RD, r.RI, RL0)); e(rload(RD1, RI1, RL0)); lab("RY_A")
        elif not RPY:
            if k == RP: e(rload(r.RD, r.RI, RL0))
            if k == RP1: e(rload(RD1, RI1, RL0))
        e(ua[k])
        for _ in range(5):
            if misc: L.append(misc.pop(0))
    L.extend(misc)
    CV = int(opts.get('cv', 1))
    def cvts():
        for i in range(8):
            e("v_cvt_pk_bf16_f32 %s, %s, %s" % (vr(r.U + i), vr(r.ACC[0] + i), vr(r.ACC[1] + i)))
        e("s_mov_b32 s3, 0x358637bd")
        for f in range(2):
            for i in range(16): e("v_mov_b32 %s, %s" % (vr(r.ACC[f] + i), "s3" if i < 8 else "0"))
        for f in range(2):
            for i in range(8):
                e("v_cvt_pk_bf16_f32 %s, %s, %s" % (vr(r.AT + 8 * f + i), vr(WU + 16 * f + 2 * i) if i & 1 else "0", vr(WU + 16 * f + 2 * i + 1)))
        e("s_mov_b32 exec_hi, 0")
        for f in range(2):
            e("v_mov_b32 %s, %s" % (vr(r.AT + 8 * f), vr(WCR + 2 * f)))
            e("v_mov_b32 %s, %s" % (vr(r.AT + 8 * f + 4), vr(WCR + 2 * f + 1)))
        e("s_mov_b64 exec, -1")
    if RPY == 16: young()
    if RP == 16: e(rload(r.RD, r.RI, RL0))
    if RP1 == 16: e(rload(RD1, RI1, RL0))
    e("s_waitcnt lgkmcnt(0)")
    e("s_barrier")
    if CV:
        assert NU == 16
        e("s_nop 3")
        cvts()
    if int(opts.get('rdl', 0)): e("s_sleep %d" % int(opts['rdl']))
    if RPY == 17: young()
    if RP == 17: e(rload(r.RD, r.RI, RL0))
    if RP1 == 17: e(rload(RD1, RI1, RL0))
    lab("NOW")
    e("s_mov_b32 m0, %s" % sr(sXB))
    e("s_waitcnt vmcnt(1)")
    emit(check(r.RD, r.RI, "FX0", c0))
    e("v_xor_b32 %s, 0xffff, %s" % (vr(r.RD + 2), vr(r.RD + 2)))
    e(rwrite(r.RD, 0))
    for t in range(4): e(xidx(0, t))
    emit(lookup(r.RD, c0, c1))
    e(riread(2))
    stamp("rec")
    mark(8)
    e("s_waitcnt lgkmcnt(3)")
    for t in range(4): e(xdma(t))
    for t in range(4): e(xidx(1, t))
    e("s_cmp_eq_u32 %s, 0" % sr(sFirst))
    e("s_cbranch_scc1 NOW2")
    for t in ua[NU:]: e(t)
    lab("NOW2")
    e("s_waitcnt vmcnt(4)")
    emit(check(RD1, RI1, "FX1", c0))
    emit(lookup(RD1, c0, c2))
    e("s_waitcnt lgkmcnt(2)")
    e(keyfix(r.RD, c1, 0xd8))
    e("ds_write_b64 %s, %s offset:8" % (vr(r.PW), vr(r.RD + 2, 2)))
    e(t0read(0)); e(tiread(0))
    e(xm0(1))
    X1L = int(opts.get('x1l', 1))
    def x1():
        for t in range(4): e(xdma(t))
        e(rload(r.RD, r.RI, RL2))
        for t in range(4): e(xidx(2, t))
    e("s_cmp_eq_u32 %s, 0" % sr(sFirst))
    e("s_cbranch_scc1 NOW3")
    if not CV: cvts()
    lab("NOW3")
    e("s_waitcnt lgkmcnt(2)")
    e(keyfix(RD1, c2))
    e(rwrite(RD1, 1))
    if not X1L: x1()
    stamp("atile")
    e("s_waitcnt vmcnt(%d)" % (0 if X1L else 5))
    stamp("x0")
    for k in range(4): e(xread(0, k))
    if X1L: x1()
    e(xm0(0))
    for s_ in range(4):
        e("s_waitcnt lgkmcnt(%d)" % (0 if s_ == 3 else 3 - s_ + 4 * X1L))
        e(mfma(r.G[0], r.X + 4 * s_, r.WB + 4 * s_, None if s_ == 0 else r.G[0]))
    e(xdma(0))
    e(smf(r.G[0], r.T, r.AT, r.TI, 1))
    e(xdma(1))
    e("s_nop 6")
    stamp("loop"); stamp("rtloop", True)
    if STAMP:
        e("s_add_u32 s100, %s, 1" % sr(sNG)); e("v_writelane_b32 v%d, s100, 28" % STV)
    mark(3)

    def I(text, lds=None, need=()): return dict(text=text, lds=lds, need=list(need))
    def oct_(base, o):
        o %= 4
        return base[o >> 1] + 8 * (o & 1)
    def C_(o, i): return "v_cvt_pk_bf16_f32 %s, %s, %s" % (vr(oct_(r.V, o) + i), vr(r.ETA + i), vr(oct_(r.V, o) + i))
    def R_(o, i): return "v_rcp_f32 %s, %s" % (vr(r.ETA + i), vr(oct_(r.G, o) + i))
    def E_(o, i): return "v_exp_f32 %s, %s" % (vr(oct_(r.G, o) + i), vr(oct_(r.G, o) + i))
    def A_(o):
        g_ = oct_(r.G, o)
        return ["v_pk_add_f32 %s, %s, 1.0 op_sel_hi:[1,0]" % (vr(g_ + i, 2), vr(g_ + i, 2)) for i in range(0, 8, 2)]
    def M_(o, pk=True):
        v_ = oct_(r.V, o)
        if pk: return ["v_pk_mul_f32 %s, %s, %s" % (vr(v_ + i, 2), vr(v_ + i, 2), vr(r.ETA + i, 2)) for i in range(0, 8, 2)]
        return ["v_mul_f32 %s, %s, %s" % (vr(v_ + i), vr(r.ETA + i), vr(v_ + i)) for i in range(8)]
    def red(f, hi): return smf(r.ACC[f], r.S + 4 * hi, r.V[f] + 8 * hi, r.SI)
    def gch(f): return [mfma(r.G[f], r.X + 4 * k, r.WB + 16 * f + 4 * k, None if k == 0 else r.G[f]) for k in range(4)] + [smf(r.G[f], r.T, r.AT + 8 * f, r.TI, 1)]
    def vch(f): return [mfma(r.V[f], r.X + 4 * k, r.WV + 16 * f + 4 * k, None if k == 0 else r.V[f]) for k in range(4)]
    CUT6 = [int(x) for x in opts.get('cut6', '0,3,6,10,14,18').split(',')]; CUT5 = [int(x) for x in opts.get('cut5', '0,4,9,13,18').split(',')]
    HALF = int(opts.get('half', 1))
    def sub(s_, g, first=False):
        nb = (g + 1) & 1
        tail = []
        if s_ == 0:
            mm = [I(red(0, 0), need=['S3']), I(red(0, 1))] + [I(t) for t in vch(0)]
            aux = [[], [I(soread(g, 0), lds='SO0')], [I(xdma(2)), I(soread(g, 1), lds='SO1')], [I(xdma(3))],
                   [I(soread(g, 2), lds='SO2')], [I(soread(g, 3), lds='SO3')]]
            if g == 1:
                aux[0] += [I("s_cmp_eq_u32 %s, 0" % sr(sLim))]
                aux[1] = [I("s_cbranch_scc1 WR_S", need=['RT']), I(rwrite(r.RD, 2)), I("WR_S:")] + aux[1]
                aux[4].insert(0, I(rload(r.RD, r.RI), need=['RI', 'SO0']))
        elif s_ == 1:
            mm = [I(t) for t in gch(1)]
            aux = [[I(xidx(g + 3, k), lds='XI%d' % k)] for k in range(4)] + [[I(t0read(g + 1), lds='T0')]]
        elif s_ == 2:
            mm = [I(red(1, 0)), I(red(1, 1))] + [I(t) for t in vch(1)]
            aux = [[I(tiread(g + 1), lds='TI')], [I("s_waitcnt vmcnt(%d)" % (4 if g == 0 else 5), need=['XI3']), I(trread(0), lds='S0')]] + [[I(xread(nb, k), lds='X%d' % k)] for k in range(4)]
            aux[5].insert(0, I("s_waitcnt", need=['X1']))
            dec = I("s_sub_u32 %s, %s, 1" % (sr(sNG), sr(sNG)))
            if g == 0:
                tail = [I(t) for t in check(r.RD, r.RI, "FXP" if first else "FXL", c0)]
                tail += [dec]
                if not first:
                    aux[3].insert(0, I("s_cmp_gt_u32 %s, 7" % sr(sBLK)))
                    aux[4].insert(0, I("s_cselect_b32 %s, 0, %s" % (sr(sLim), sr(sLim))))
            else: aux[4].insert(0, dec)
        else:
            gc = gch(0)
            mm = [I(gc[k], need=['X%d' % k]) for k in range(4)] + [I(gc[4], need=['T0', 'TI'])]
            aux = [[I(trread(1), lds='S1')], [I("s_waitcnt", need=['X3']), I(trread(2), lds='S2')], [I(xm0(nb)), I(trread(3), lds='S3')],
                   [I(xdma(0))], [I("s_waitcnt", need=['S3']), I(xdma(1))]]
            if HALF: aux[3].insert(0, I("s_or_b32 s3, %s, %s" % (sr(sNG), sr(sRET))))
            if g == 0:
                aux[2].append(I(riread(3), lds='RI'))
                aux[0].insert(0, I("s_add_u32 %s, %s, 1" % (sr(sBLK), sr(sBLK))))
                lk = lookup(r.RD, c0, c1)
                aux[0].append(I(lk[0], lds='RT0')); aux[1].append(I(lk[1], lds='RT'))
                tail = [I(keyfix(r.RD, c1), need=['RT'])]
            else:
                tail = [I("v_lshl_add_u64 %s, %s, 0, %s" % (vr(r.PS, 2), vr(r.PS, 2), sr(sINC, 2))),
                        I("v_lshl_add_u64 %s, %s, 0, %s" % (vr(r.PT, 2), vr(r.PT, 2), sr(sINC, 2))),
                        I("v_lshl_add_u64 %s, %s, 0, %s" % (vr(r.PL, 2), vr(r.PL, 2), sr(sINC2, 2)))]
        va = []
        PLA = int(opts.get('pla', 0)); PLM = int(opts.get('plm', 0))
        for i in range(8):
            if not (first and s_ < 2): va.append(C_(s_ - 2, i))
            if not (first and s_ < 1): va.append(R_(s_ - 1, i))
            va.append(E_(s_, i))
            if PLA and not first and i >= 1 and i - 1 < PLA: va.append("v_add_f32 %s, 1.0, %s" % (vr(oct_(r.G, s_) + i - 1), vr(oct_(r.G, s_) + i - 1)))
            if PLM and not first and i >= 1 and i - 1 < PLM: va.append(M_(s_ - 1, False)[i - 1])
        cut = CUT6 if len(mm) == 6 else CUT5
        if first and s_ == 3: cut = [0, 4, 9, 13, 18]
        if first and s_ in (0, 2):
            aux = [aux[0] + aux[1] + aux[2]] + aux[3:]; mm = mm[2:]
            cut = [0, 2, 4, 6] if s_ == 0 else [0, 4, 8, 12]
        if first and s_ == 1: cut = [0, 3, 6, 9, 12]
        aux[0].insert(0, I("s_setprio @%d" % (4 * g + s_)))
        BPM = int(opts.get('bpm', 1))
        if BPM == 1: aux[-1].insert(0, I("s_setprio 3"))
        elif BPM == 2: tail = tail + [I("s_setprio 3")]
        elif BPM == 3: aux[-1].append(I("s_setprio 3"))
        out = []
        AP = int(opts.get('auxpre', 0)); held = []
        MP = int(opts.get('mp', 0))
        for k, t in enumerate(va):
            if k in cut:
                j = cut.index(k)
                out.extend(held); held = []
                if MP and 0 < j: out.append(I("s_setprio 2"))
                out.append(mm[j])
                if MP and 0 < j < len(mm) - 1: out.append(I("s_setprio 1"))
                if AP and not first and j < len(mm) - 1:
                    mem = lambda it: it['text'].startswith(('buffer',) if AP == 2 else ('ds_', 'buffer'))
                    p = next((n for n, it in enumerate(aux[j]) if mem(it) or it['text'].startswith('s_cbranch')), len(aux[j]))
                    out.extend(aux[j][:p]); held = aux[j][p:]
                else: out.extend(aux[j])
            out.append(I(t))
        out += tail + [I(t) for t in ([] if first and s_ == 0 else M_(s_ - 1)[(0 if first else PLM // 2):]) + A_(s_)[(0 if first else PLA // 2):]]
        if s_ == 2: out.append(I("s_cbranch_scc1 TAIL"))
        return out
    state = dict(issued=[], done=0)
    def run(seq, out):
        issued = state['issued']
        for it in seq:
            n = None
            for tag in it['need']:
                idxs = [k for k, t in enumerate(issued) if t == tag]
                if not idxs: continue
                k = idxs[-1]
                if k >= state['done']:
                    n = len(issued) - 1 - k
                    state['done'] = k + 1
            tx = it['text']
            if n is not None:
                assert n <= 15
                if tx.startswith("s_waitcnt"): tx += " lgkmcnt(%d)" % n
                elif out: e("s_waitcnt lgkmcnt(%d)" % n)
            if 'abl' in opts and re.match(opts['abl'].replace('_', '.'), tx): tx = "s_waitcnt"
            if 'sub' in opts:
                a_, b_ = opts['sub'].split(':'); tx = tx.replace(a_, b_)
            if 'perm' in opts and tx.startswith('v_cvt_pk'):
                p_ = tx.replace(',', '').split(); tx = "v_perm_b32 %s, %s, %s, s9" % (p_[1], p_[3], p_[2])
            if out and tx != "s_waitcnt": emit([tx])
            if it['lds']: issued.append(it['lds'])
    cyc = lambda g, first=False: sum((sub(s_, g, first) for s_ in range(4)), [])
    c_first, c_even, c_odd = cyc(0, True), cyc(0), cyc(1)
    FAIR = opts.get('fair', '')
    n0 = len(L)
    run(c_first, True)
    for k in range(n0, len(L)): L[k] = re.sub(r"@\d", "1", L[k])
    if FAIR:
        e("s_mov_b64 vcc, s[10:11]")
        e("s_cbranch_vccnz MID_O")
    e("s_branch MID")
    run(c_odd, False)
    n0 = len(L)
    L.append(".p2align 3")
    lab("LOOP")
    run(c_even, True)
    lab("MID")
    if HALF: e("s_cbranch_scc0 HALF1")
    run(c_odd, True)
    body_txt = L[n0:]
    for k in range(n0, len(L)): L[k] = re.sub(r"@\d", "1", L[k])
    if FAIR:
        tail_txt = L[n0:]; del L[n0:]
        for t in body_txt:
            t = re.sub(r"@(\d)", lambda m: "0" if m.group(1) in FAIR else "2", t)
            t = re.sub(r"\b(LOOP|MID|FXL|FXL_R|WR_S)\b", lambda m: m.group(1).replace("FXL", "FXO") + ("" if m.group(1).startswith("FXL") else "_O"), t)
            L.append(t)
        e("s_cbranch_scc1 LOOP_O")
        e("s_branch HALF0")
        retries.append(("FXO", r.RD, r.RI))
        L.extend(tail_txt)
    XR = r.X; UF = r.G[0]; XF = r.V[0]
    def epi_addr():
        return ["v_lshrrev_b32 %s, 5, %s" % (vr(c0), vr(lane)),
                "v_and_b32 %s, 31, %s" % (vr(c1), vr(lane)),
                "v_lshlrev_b32 %s, 2, %s" % (vr(c1), vr(c1)),
                "v_mul_u32_u24 %s, 0x240, %s" % (vr(c2), vr(c0)),
                "v_xor_b32 %s, %s, %s" % (vr(c2), vr(c2), vr(c1)),
                "v_add_u32 %s, %s, %s" % (vr(c2), sr(sXT), vr(c2))]
    if HALF:
        e("s_cbranch_scc1 LOOP")
        e("s_branch HALF0")
        lab("HALF1")
        e("v_add_u32 %s, 512, %s" % (vr(r.PC), vr(r.PC)))
        lab("HALF0")
        def weave(mm, va, cut):
            for k, t in enumerate(va):
                if k in cut: e(mm[cut.index(k)])
                e(t)
        e("s_setprio 1")
        e(soread(0, 0)); e(soread(0, 1))
        va = []
        for i in range(8): va += [C_(2, i), R_(3, i), E_(0, i)]
        weave([red(0, 0), red(0, 1)] + vch(0), va, [0, 3, 6, 10, 14, 18])
        e("s_setprio 3")
        for t in M_(3) + A_(0): e(t)
        e("s_setprio 1")
        va = []
        for i in range(8): va += [C_(3, i), R_(0, i)]
        weave(gch(1), va, [0, 3, 6, 9, 12])
        for t in M_(0, False): e(t)
        e(red(1, 0))
        e("s_waitcnt lgkmcnt(0)")
        e(trread(0)); e(trread(1))
        va = []
        for i in range(8): va += [C_(0, i), E_(2, i)]
        weave([red(1, 1)] + vch(1), va, [1, 4, 7, 10, 13])
        for i in range(8): e("v_add_f32 %s, 1.0, %s" % (vr(r.G[1] + i), vr(r.G[1] + i)))
        e("s_waitcnt lgkmcnt(0)")
        e(red(0, 0))
        for i in range(8): e(R_(2, i))
        pre = epi_addr()
        e(pre.pop(0))
        for t in M_(2, False): e(t)
        for i in range(8): e(C_(2, i))
        for t in pre: e(t)
        e(red(1, 0))
        e("s_branch FIN")
    else:
        e("s_branch LOOP")
    lab("TAIL")
    e("s_setprio 2")
    e(trread(1)); e(trread(2)); e(trread(3))
    for i in range(8): e(C_(1, i)); e(R_(2, i)); e(E_(3, i))
    e("s_waitcnt lgkmcnt(0)")
    e(red(0, 0))
    for t in M_(2, False): e(t)
    e(red(0, 1))
    for i in range(8): e("v_add_f32 %s, 1.0, %s" % (vr(r.G[1] + 8 + i), vr(r.G[1] + 8 + i)))
    pre = epi_addr()
    for i in range(8): e(C_(2, i)); e(R_(3, i))
    e(pre.pop(0)); e(pre.pop(0))
    e(red(1, 0))
    for t in M_(3, False): e(t)
    for i in range(8): e(C_(3, i))
    for t in pre: e(t)
    e(red(1, 1))
    lab("FIN")
    stamp("loopend"); stamp("rtloopend", True)
    e("s_setprio 3")
    e("s_add_u32 %s, %s, 512" % (sr(sW0), sr(sW0)))
    e("s_cmp_lt_u32 %s, %s" % (sr(sW0), sr(sTot)))
    e("s_cbranch_scc1 MORE")
    EA_ = r.X + 8
    for q_ in range(1, 4): e("v_xor_b32 %s, %d, %s" % (vr(EA_ + q_), 16 * q_, vr(c2)))
    for q_ in range(4):
        e("ds_read_b32 %s, %s offset:%d" % (vr(XR + q_), vr(EA_ + q_ if q_ else c2), q_ * 128))
        if q_ < 3: e("ds_read_b32 %s, %s offset:%d" % (vr(XR + q_ + 4), vr(EA_ + q_ if q_ else c2), q_ * 128 + 1024))
    for q_ in range(7):
        e("v_lshlrev_b32 %s, 16, %s" % (vr(UF + q_), vr(r.U + q_)))
        e("v_and_b32 %s, 0xffff0000, %s" % (vr(UF + 8 + q_), vr(r.U + q_)))
    B0, B1 = EA_ + 4, EA_ + 5
    e("v_lshl_add_u32 %s, %s, 9, %s" % (vr(B0), vr(c0), vr(c1)))
    e("s_movk_i32 s3, 384")
    e("v_mad_u32_u24 %s, %s, s3, %s" % (vr(B1), vr(c0), vr(c1)))
    for f in range(2):
        for q_ in range(7):
            e("v_rcp_f32 %s, %s" % (vr(r.ACC[f] + q_), vr(r.ACC[f] + q_)))
    e("s_waitcnt lgkmcnt(0)")
    for q_ in range(7):
        e("v_lshlrev_b32 %s, 16, %s" % (vr(XF + q_), vr(XR + q_)))
        e("v_and_b32 %s, 0xffff0000, %s" % (vr(XF + 8 + q_), vr(XR + q_)))
    for f in range(2):
        for q_ in range(0, 8, 2):
            e("v_pk_fma_f32 %s, %s, %s, %s" % (vr(UF + 8 * f + q_, 2), vr(r.ACC[f] + q_, 2), vr(r.ACC[f] + 8 + q_, 2), vr(UF + 8 * f + q_, 2)))
    for f in range(2):
        for q_ in range(7):
            e("v_max_f32 %s, 0, %s" % (vr(UF + 8 * f + q_), vr(UF + 8 * f + q_)))
    for q_ in range(0, 8, 2):
        for f in range(2):
            e("v_pk_add_f32 %s, %s, %s" % (vr(UF + 8 * f + q_, 2), vr(UF + 8 * f + q_, 2), vr(XF + 8 * f + q_, 2)))
    for q_ in range(7):
        e("v_cvt_pk_bf16_f32 %s, %s, %s" % (vr(r.U + q_), vr(UF + q_), vr(UF + 8 + q_)))
        e("buffer_store_dword %s, %s, %s, 0 offen offset:%d %s" % (vr(r.U + q_), vr(B0 if q_ < 4 else B1), sr(SOUT, 4), (q_ if q_ < 4 else q_ + 4) * 128, OSF))
    if STAMP:
        e("s_waitcnt vmcnt(0)")
        stamp("end"); stamp("rtend", True)
        e("s_sub_u32 s100, %d, %s" % (SPINMAX, sr(sSpin))); e("v_writelane_b32 v%d, s100, 29" % STV)
        e("s_getreg_b32 s100, hwreg(HW_REG_HW_ID)"); e("v_writelane_b32 v%d, s100, 30" % STV)
        e("s_lshl_b32 s3, s2, 3"); e("s_add_u32 s3, s3, %s" % sr(sW)); e("s_lshl_b32 s3, s3, 7"); e("s_add_u32 s3, s3, 0x%x" % WS_DBG)
        srd(SA, 26, 128, "s3")
        e("v_lshlrev_b32 %s, 2, %s" % (vr(c0), vr(lane)))
        e("buffer_store_dword v%d, %s, %s, 0 offen" % (STV, vr(c0), sr(SA, 4)))
    if DW:
        if 'dwg' in opts:
            e("s_cmp_lg_u32 s2, %s" % opts['dwg']); e("s_cbranch_scc1 K_END")
        if DW == 10: e("s_cmp_gt_u32 %s, 3" % sr(sW)); e("s_cbranch_scc1 K_END")
        if DW in (11, 12, 13): e("s_cmp_lt_u32 %s, 4" % sr(sW)); e("s_cbranch_scc1 K_END")
        e("s_waitcnt vmcnt(0) lgkmcnt(0)")
        lab("SPIN")
        e("s_memrealtime s[100:101]"); e("s_waitcnt lgkmcnt(0)")
        e("s_sub_u32 s100, s100, s98"); e("s_cmp_lt_u32 s100, 6000"); e("s_cbranch_scc1 SPIN")
    lab("K_END")
    e("s_endpgm")
    for name, rd, ri in retries:
        lab(name + "_R")
        e("s_mov_b64 exec, vcc")
        if int(opts.get('rsl', 0)): e("s_sleep %d" % int(opts.get('rsl', 0)))
        e(rload(rd, ri, "sc0 sc1"))
        e("s_mov_b64 exec, -1")
        e("s_sub_u32 %s, %s, 1" % (sr(sSpin), sr(sSpin)))
        e("s_waitcnt vmcnt(0)")
        e("s_cbranch_scc0 %s" % name)
        e("s_endpgm")
    lab("PUB_X")
    e("v_lshl_or_b32 %s, %s, 16, %s" % (vr(PC_), vr(ST + 1), vr(ST)))
    e("v_lshl_or_b32 %s, %s, 16, %s" % (vr(PC_ + 1), vr(ST + 3), vr(ST + 2)))
    e("v_or_b32 %s, %s, %s" % (vr(PC_ + 2), sr(sTagH), vr(tB)))
    e("v_mov_b32 %s, %s" % (vr(PC_ + 3), sr(sTag)))
    e("s_lshl_b32 s3, s2, 13"); e("s_add_u32 s3, s3, %d" % (WS_OFF - WS_CMP))
    e("buffer_store_dwordx4 %s, %s, %s, s3 offen %s" % (vr(PC_, 4), vr(T16), sr(SOFS, 4), STF))
    e("s_branch PUB_C")
    lab("ESCAPE")
    e("s_mov_b64 %s, vcc" % sr(sM0, 2))
    e("v_lshlrev_b32 %s, 2, %s" % (vr(PA), vr(PA)))
    e("s_lshl_b32 s97, %s, 5" % sr(sBin)); e("s_add_u32 s97, s97, %d" % (WS_OFF - WS_CMP))
    lab("ESC_L")
    e("s_mov_b64 exec, vcc")
    e("buffer_load_dwordx4 %s, %s, %s, s97 offen sc0 sc1" % (vr(EX, 4), vr(PA), sr(SOFS, 4)))
    e("buffer_load_dwordx4 %s, %s, %s, s97 offen offset:16 sc0 sc1" % (vr(EX + 4, 4), vr(PA), sr(SOFS, 4)))
    e("s_waitcnt vmcnt(0)")
    e("v_xor_b32 %s, %s, %s" % (vr(c0), sr(sTagH), vr(EX + 2)))
    e("v_xor_b32 %s, %s, %s" % (vr(c1), sr(sTagH), vr(EX + 6)))
    e("v_or_b32 %s, %s, %s" % (vr(c0), vr(c0), vr(c1)))
    e("v_lshrrev_b32 %s, 16, %s" % (vr(c0), vr(c0)))
    e("v_xor_b32 %s, %s, %s" % (vr(c1), sr(sTag), vr(EX + 3)))
    e("v_xor_b32 %s, %s, %s" % (vr(tD), sr(sTag), vr(EX + 7)))
    e("v_or3_b32 %s, %s, %s, %s" % (vr(c0), vr(c0), vr(c1), vr(tD)))
    e("v_cmp_ne_u32 vcc, 0, %s" % vr(c0))
    e("s_cmp_eq_u64 vcc, 0")
    e("s_cbranch_scc1 ESC_OK")
    e("s_sub_u32 %s, %s, 1" % (sr(sSpin), sr(sSpin)))
    e("s_cbranch_scc0 ESC_L")
    e("s_endpgm")
    lab("ESC_OK")
    e("s_mov_b64 exec, %s" % sr(sM0, 2))
    for hh in range(2):
        b_ = EX + 4 * hh
        e("v_mov_b32 %s, %s" % (vr(SS_ + 4 * hh), vr(b_)))
        e("v_alignbit_b32 %s, %s, %s, 16" % (vr(SS_ + 4 * hh + 1), vr(b_ + 1), vr(b_)))
        e("v_mov_b32 %s, %s" % (vr(SS_ + 4 * hh + 2), vr(b_ + 1)))
        e("v_alignbit_b32 %s, %s, %s, 16" % (vr(SS_ + 4 * hh + 3), vr(b_ + 2), vr(b_ + 1)))
    e("s_mov_b64 exec, -1")
    e("s_branch ESC_DONE")
    lab("LATER")
    e(riread(0)); e(riread(1, RI1))
    pointers()
    e("s_waitcnt lgkmcnt(0)")
    e(rload(r.RD, r.RI)); e(rload(RD1, RI1))
    e("s_branch NOW")
    lab("MORE")
    e("s_mov_b32 %s, %d" % (sr(sLim), NC * CH))
    e("s_mov_b32 %s, 0" % sr(sFirst))
    e("s_waitcnt vmcnt(0) lgkmcnt(0)")
    e("s_nop 15")
    e("s_and_b32 s3, %s, 7" % sr(sT)); e("s_lshl_b32 s3, s3, 10"); e("s_add_u32 s3, s3, %d" % PCB)
    e("v_lshl_add_u32 %s, %s, 4, s3" % (vr(c0), vr(lane)))
    e("ds_read_b128 %s, %s" % (vr(EN, 4), vr(c0)))
    expand_pre()
    zero_list()
    e("s_waitcnt lgkmcnt(0)")
    e("s_branch EXPAND")
    return r.n

DOC = """; GatedGCN layer, one launch, 256 workgroups (one per CU) x 8 waves.
;          out = x + relu(x@w_u + sum(eta*hv) / (sum(eta) + 1e-6)). Tiles of any size are handled in windows."""
hdr = open('cdna_kernels/%s.s.ref' % NAME).read().split('\n')
hdr = [l for l in hdr if l.startswith(';   offset') or l.startswith('; Kernarg')]
L.append('.amdgcn_target "amdgcn-amd-amdhsa--gfx950"')
L.append('.text')
nv = kernel()
L.append('.section .rodata,"a"')
L += [".p2align 6", ".amdhsa_kernel %s" % KN, "  .amdhsa_next_free_vgpr 256", "  .amdhsa_next_free_sgpr 102",
      "  .amdhsa_accum_offset 256", "  .amdhsa_group_segment_fixed_size 0", "  .amdhsa_kernarg_size 96",
      "  .amdhsa_user_sgpr_count 2", "  .amdhsa_user_sgpr_kernarg_segment_ptr 1", "  .amdhsa_system_sgpr_workgroup_id_x 1",
      ".end_amdhsa_kernel"]
if opts.get('list', '0') == '1':
    top = hdr + ["; @launch kernel=%s grid=(256,1,1) block=(512,1,1) lds=%d" % (KN, LDS_BYTES)]
else:
    top = hdr + ["; @launch grid=(256,1,1) block=(512,1,1) lds=%d" % LDS_BYTES]
open(OUT, 'w').write("\n".join(top + DOC.split("\n") + [l.rstrip() for l in L]) + "\n")
if STAMP: open('stamps.txt', 'w').write(" ".join(names))
print("vgprs:", nv, "lines:", len(L))
```
